```python
import torch

def _softmax(x, axis=-1):
    return torch.softmax(x, dim=axis)
def _gelu(x):
    return torch.nn.functional.gelu(x, approximate="tanh")
def _silu(x):
    return torch.nn.functional.silu(x)
def _sigmoid(x):
    return torch.sigmoid(x)
def _layernorm(x, axis=-1, eps=1e-5):
    m = x.mean(dim=axis, keepdim=True)
    v = x.var(dim=axis, keepdim=True, unbiased=False)
    return (x - m) / torch.sqrt(v + eps)
def _scatter_add(tgt, idx, src, axis=0):
    return tgt.clone().index_add_(axis, idx, src)
def _segment_sum(src, seg, n):
    out = torch.zeros((n,) + src.shape[1:], dtype=src.dtype)
    return out.index_add_(0, seg, src)
def _pad(x, pw):
    flat = tuple(v for pair in reversed(pw) for v in pair)
    return torch.nn.functional.pad(x, flat)

kernel_name = 'interleave_layers__ssm_conv_s4d__dense_activation_silu__prompt'

def setup_inputs():

    _w = (lambda a: (lambda t: t.to(torch.bfloat16) if t.is_floating_point() else t)(torch.as_tensor(a)))
    def _A_setup():
        Bsz, L, D, N = 1, 2048, 512, 128
        return {
            "u": _w((lambda *s: torch.randn(*s, dtype=torch.bfloat16) * 0.05)(Bsz, L, D)),
            "log_A_real": _w((lambda *s: torch.randn(*s, dtype=torch.bfloat16) * 3.2)(D, N) * 0.5),
            "A_imag": _w((lambda *s: torch.randn(*s, dtype=torch.bfloat16) * 0.05)(D, N) * 3.14),
            "C_real": _w((lambda *s: torch.randn(*s, dtype=torch.bfloat16) * 0.05)(D, N) / N ** 0.5),
            "C_imag": _w((lambda *s: torch.randn(*s, dtype=torch.bfloat16) * 0.05)(D, N) / N ** 0.5),
            "log_dt": _w((lambda *s: torch.randn(*s, dtype=torch.bfloat16) * 0.05)(D) * 0.5 - 4.0),
            "D_skip": _w((lambda *s: torch.randn(*s, dtype=torch.bfloat16) * 0.05)(D)),
        }
    _A_in = _A_setup()

    def _B_setup():
        B, S, D, F = 1, 2048, 512, 1792
        return {
            "x": _w((lambda *s: torch.randn(*s, dtype=torch.bfloat16) * 0.05)(B, S, D)),
            "w1": _w((lambda *s: torch.randn(*s, dtype=torch.bfloat16) * 0.8)(D, F) * (D ** -0.5)),
            "w2": _w((lambda *s: torch.randn(*s, dtype=torch.bfloat16) * 0.2)(F, D) * (F ** -0.5)),
        }
    _B_in = _B_setup()

    return {
        "A_u": _A_in["u"],
        "A_log_A_real": _A_in["log_A_real"],
        "A_A_imag": _A_in["A_imag"],
        "A_C_real": _A_in["C_real"],
        "A_C_imag": _A_in["C_imag"],
        "A_log_dt": _A_in["log_dt"],
        "A_D_skip": _A_in["D_skip"],
        "B_x": _B_in["x"],
        "B_w1": _B_in["w1"],
        "B_w2": _B_in["w2"],
    }

def reference(A_u, A_log_A_real, A_A_imag, A_C_real, A_C_imag, A_log_dt, A_D_skip, B_x, B_w1, B_w2):
    def _A_ref(u, log_A_real, A_imag, C_real, C_imag, log_dt, D_skip):
        L = u.shape[1]
        dt = torch.exp(log_dt)
        A = -torch.exp(log_A_real) + 1j * A_imag
        C = (C_real + 1j * C_imag) * dt[:, None]
        pos = (lambda x, dt: x.to(dt))(torch.arange(L), log_dt.dtype)
        P = torch.exp((A * dt[:, None])[:, :, None] * pos[None, None, :])
        K = 2.0 * torch.einsum("dn,dnl->dl", C, P).real
        L2 = 2 * L
        u_t = (lambda x, *d: x.permute(*d))(u, 0, 2, 1)
        Kf = (lambda x, *a, **k: torch.fft.rfft(x.float(), *a, **k))(K, L2)
        Uf = (lambda x, *a, **k: torch.fft.rfft(x.float(), *a, **k))(u_t, L2)
        y = (lambda x, *a, **k: torch.fft.irfft(x, *a, **k).to(torch.bfloat16))(Uf * Kf[None, :, :], L2)[:, :, :L]
        y = (lambda x, *d: x.permute(*d))(y, 0, 2, 1)
        return y + u * D_skip[None, None, :]

    def _B_ref(x, w1, w2):
        h = torch.einsum("bsd,df->bsf", x, w1)
        h = _silu(h)
        out = torch.einsum("bsf,fd->bsd", h, w2)
        return out

    x = A_u
    x = x + _A_ref(_layernorm(x, axis=-1), A_log_A_real, A_A_imag, A_C_real, A_C_imag, A_log_dt, A_D_skip)
    x = x + _B_ref(_layernorm(x, axis=-1), B_w1, B_w2)
    x = x + _A_ref(_layernorm(x, axis=-1), A_log_A_real, A_A_imag, A_C_real, A_C_imag, A_log_dt, A_D_skip)
    x = x + _B_ref(_layernorm(x, axis=-1), B_w1, B_w2)
    return x
```

```python
class Asm:
    def __init__(self):
        self.lines = []
        self.launches = []
        self.kernels = []
        self.uid = 0
    def __call__(self, s):
        for ln in s.strip("\n").split("\n"):
            self.lines.append("    " + ln.strip())
    def raw(self, s): self.lines.append(s)
    def label(self, name): self.lines.append(name + ":")
    def newlabel(self, base="L"):
        self.uid += 1
        return f".{base}_{self.uid}"
    def comment(self, s): self.lines.append("    ; " + s)
    def kernel(self, name, vgpr=256, sgpr=102, accum=None):
        self.kernels.append((name, vgpr, sgpr, accum))
        self.raw(f".globl {name}")
        self.raw(".p2align 8")
        self.raw(f".type {name},@function")
        self.raw(f"{name}:")
    def launch(self, name, grid, block, lds=0):
        self.launches.append(f"; @launch kernel={name} grid=({grid},1,1) block=({block},1,1) lds={lds}")
    def srd(self, sd, sb, nbytes, off=0):
        if off:
            self(f"s_add_u32 s{sd}, s{sb}, {off:#x}")
            self(f"s_addc_u32 s{sd+1}, s{sb+1}, 0")
        else:
            self(f"s_mov_b32 s{sd}, s{sb}")
            self(f"s_mov_b32 s{sd+1}, s{sb+1}")
        self(f"s_mov_b32 s{sd+2}, {nbytes:#x}")
        self(f"s_mov_b32 s{sd+3}, 0x20000")
    def text(self, header=""):
        out = []
        if header: out.append(header.rstrip("\n"))
        out += self.launches
        out.append('.amdgcn_target "amdgcn-amd-amdhsa--gfx950"')
        out.append(".text")
        out += self.lines
        out.append('.section .rodata,"a"')
        for name, vgpr, sgpr, accum in self.kernels:
            acc = accum if accum is not None else min(256, (vgpr + 3) // 4 * 4)
            out.append(".p2align 6")
            out.append(f".amdhsa_kernel {name}")
            out.append(f"  .amdhsa_next_free_vgpr {vgpr}")
            out.append(f"  .amdhsa_next_free_sgpr {sgpr}")
            out.append(f"  .amdhsa_accum_offset {acc}")
            out.append("  .amdhsa_group_segment_fixed_size 0")
            out.append("  .amdhsa_kernarg_size 104")
            out.append("  .amdhsa_user_sgpr_count 2")
            out.append("  .amdhsa_user_sgpr_kernarg_segment_ptr 1")
            out.append("  .amdhsa_system_sgpr_workgroup_id_x 1")
            out.append("  .amdhsa_float_denorm_mode_32 3")
            out.append(".end_amdhsa_kernel")
        return "\n".join(out) + "\n"
```

```python
import re
REG = re.compile(r"(?<![\w.])(-?)(?:abs\()?([vas])(?:(\d+)|\[(\d+):(\d+)\])|(vcc_lo|vcc_hi|vcc|exec_lo|exec_hi|exec|m0|scc)\b")
def regs(op):
    out = set()
    for m in REG.finditer(op):
        if m.group(6):
            n = m.group(6)
            out.add(n.split("_")[0])
        else:
            k = m.group(2)
            if m.group(3) is not None: out.add((k, int(m.group(3))))
            else:
                for i in range(int(m.group(4)), int(m.group(5)) + 1): out.add((k, i))
    return out
def split_ops(s):
    ops, depth, cur = [], 0, ""
    for ch in s:
        if ch in "[(": depth += 1
        if ch in "])": depth -= 1
        if ch == "," and depth == 0: ops.append(cur.strip()); cur = ""
        else: cur += ch
    if cur.strip(): ops.append(cur.strip())
    return ops
TRANS = ("v_exp_f32", "v_log_f32", "v_rcp_f32", "v_rsq_f32", "v_sqrt_f32", "v_sin_f32", "v_cos_f32")
class I: pass
def parse(line):
    s = line.split(";")[0].strip()
    if not s or s.endswith(":") or s.startswith("."): return None
    parts = s.split(None, 1)
    op = parts[0]; rest = parts[1] if len(parts) > 1 else ""
    ops = split_ops(rest)
    if ops:
        last = ops[-1].split()
        mods = last[1:]; ops[-1] = last[0]
    else: mods = []
    x = I(); x.op = op; x.w = set(); x.r = set(); x.mods = mods; x.kind = "other"; x.states = 1
    x.srcc = set(); x.ab = set(); x.data = set(); x.passes = 0
    R = [regs(o) for o in ops]
    if op == "s_nop": x.states = int(ops[0], 0) + 1; x.kind = "nop"
    elif op.startswith("v_mfma"):
        x.kind = "mfma"; x.w = R[0]; x.ab = R[1] | R[2]; x.srcc = R[3]; x.r = x.ab | x.srcc
        x.passes = 8 if "32x32x16" in op else 4
    elif op.startswith("v_"):
        x.kind = "valu"
        if op.startswith("v_swap") or "permlane" in op:
            x.w = R[0] | R[1]; x.r = R[0] | R[1]
        elif op.startswith("v_cmp"):
            x.w = R[0]; x.r = set().union(*R[1:])
        elif op.startswith(("v_add_co", "v_sub_co", "v_addc_co", "v_subb_co")):
            x.w = R[0] | R[1]; x.r = set().union(*R[2:])
        else:
            x.w = R[0]; x.r = set().union(*R[1:]) if len(R) > 1 else set()
            if op.startswith(("v_fmac", "v_dot2c", "v_writelane")) or "_dpp" in op: x.r |= R[0] if op.startswith(("v_fmac", "v_dot2c", "v_writelane")) else set()
        x.trans = op.startswith(TRANS); x.dpp = "_dpp" in op; x.perm = "permlane" in op
        x.rdlane = op.startswith(("v_readfirstlane", "v_readlane")); x.dot = op.startswith("v_dot")
    elif op.startswith("ds_"):
        x.kind = "ds"
        if op.startswith(("ds_read", "ds_bpermute", "ds_swizzle", "ds_permute")): x.w = R[0]; x.r = set().union(*R[1:])
        else: x.r = set().union(*R)
    elif op.startswith("buffer_") and ops:
        x.kind = "vmem"
        if "lds" in mods: x.r = set().union(*R) | {"m0"}; x.lds = True
        elif "load" in op: x.w = R[0]; x.r = set().union(*R[1:])
        else:
            x.r = set().union(*R)
            if "x4" in op or "x3" in op: x.data = R[0]
            if "atomic" in op and "sc0" in mods: x.w = R[0]
    elif op.startswith("global_"):
        x.kind = "vmem"
        if "load" in op: x.w = R[0]; x.r = set().union(*R[1:])
        else:
            x.r = set().union(*R)
            if "x4" in op or "x3" in op: x.data = R[1]
    elif op.startswith("s_"):
        x.kind = "salu"
        if op.startswith(("s_cmp", "s_cbranch", "s_branch", "s_waitcnt", "s_barrier", "s_endpgm", "s_sleep", "s_setprio", "s_setpc")):
            x.r = set().union(*R) if R else set()
        else:
            x.w = R[0] if R else set(); x.r = set().union(*R[1:]) if len(R) > 1 else set()
            if "saveexec" in op: x.w |= {"exec"}
    return x
def isv(r): return isinstance(r, tuple) and r[0] in "va"
def iss(r): return (isinstance(r, tuple) and r[0] == "s") or r == "vcc"
def need(p, c):
    n = 0
    if p.kind == "valu":
        vw = {r for r in p.w if isv(r)}; sw = {r for r in p.w if iss(r)}
        if c.kind == "mfma" and vw & c.r: n = max(n, 3 if p.dot else 2)
        if c.kind == "valu":
            if (c.dpp or c.perm) and vw & c.r: n = max(n, 2)
            if c.rdlane and vw & c.r: n = max(n, 1)
            if p.trans and not c.trans and vw & c.r: n = max(n, 1)
            if sw & c.r: n = max(n, 4 if c.op.startswith(("v_readlane", "v_writelane")) else 2)
            if p.dot and vw & (c.r | c.w):
                if not (c.op == p.op and not (vw & (c.r - c.w))): n = max(n, 3)
            if "exec" in p.w: n = max(n, 5)
        if p.dot and c.kind in ("vmem", "ds") and vw & c.r: n = max(n, 3)
        if c.kind == "vmem" and sw & c.r: n = max(n, 5)
        if c.kind == "salu" and sw & c.r and not c.op.startswith("s_cbranch"): n = max(n, 1)
    if p.kind == "mfma":
        big = p.passes == 8
        if c.kind == "mfma":
            if p.w & c.ab: n = max(n, 12 if big else 8)
            if p.w & c.srcc and not (p.w == c.srcc and p.passes == c.passes): n = max(n, 10 if big else 6)
            if p.w & c.w and not (p.w == c.srcc): n = max(n, 10 if big else 6)
        elif c.kind in ("valu", "vmem", "ds"):
            if p.w & (c.r | c.w): n = max(n, 12 if big else 8)
            if c.kind == "valu" and p.srcc & c.w: n = max(n, 7 if big else 3)
    if p.kind == "salu" and "m0" in p.w and c.kind == "vmem" and "m0" in c.r: n = max(n, 1)
    if p.kind == "vmem" and p.data and p.data & c.w: n = max(n, 2)
    return n
def fix(lines, window=14):
    out = []; hists = [[]]; snaps = {}
    added = 0
    for ln in lines:
        st = ln.split(";")[0].strip()
        if st.endswith(":") and not st.startswith(".amd"):
            hists = hists + snaps.pop(st[:-1], [])
            out.append(ln); continue
        x = parse(ln)
        if x is None:
            out.append(ln); continue
        if x.kind != "nop":
            req = 0
            for hist in hists:
                dist = 0
                for p in reversed(hist):
                    req = max(req, need(p, x) - dist)
                    dist += p.states
                    if dist >= window: break
            if req > 0:
                out.append(f"    s_nop {req-1}"); nop = parse(f"s_nop {req-1}")
                for hist in hists: hist.append(nop)
                added += 1
        out.append(ln)
        for hist in hists: hist.append(x)
        hists = [h[-20:] for h in hists]
        uniq = []
        for h in hists:
            if not any(len(h) == len(u) and all(a is b for a, b in zip(h, u)) for u in uniq): uniq.append(h)
        hists = uniq
        if x.op.startswith(("s_cbranch", "s_branch")):
            tgt = st.split()[1]
            snaps.setdefault(tgt, []).extend([list(h) for h in hists])
            if x.op == "s_branch": hists = [[]]
        if x.op in ("s_endpgm", "s_setpc_b64"): hists = [[]]
    return out, added
```

```python
import sys, struct, math
sys.path.insert(0, "work")
from asmgen import Asm
import hazard
NAME = "interleave_layers__ssm_conv_s4d__dense_activation_silu__prompt"
STAMP = "--stamp" in sys.argv
DUMP = "--dump" in sys.argv
OUT = [x for x in sys.argv[1:] if not x.startswith("--")]
OUT = OUT[0] if OUT else f"cdna_kernels/{NAME}.s"

def f2u(x): return struct.unpack("<I", struct.pack("<f", x))[0]
LOG2E = 1.4426950408889634
CNT = 0; GCNT = 0x38000
ST0 = 0x80000; ST2 = 0x84000
XP = [0x100000, 0x300000, 0x500000, 0x700000]
HB = [0x900000, 0x1000000]
DBG = 0x1800000
WS_BYTES = 0x2000000
HT = 114688
LW = 0; LPK = 114688; PKS = 8256; LCS = 131200; LSCR = 131712
LU = LSCR; US = 4608; LEX = LSCR + 9216
LE = LPK; ES = 8704; LGT = LPK + 4 * ES
LDS_BYTES = 163840
SWS, SW1, SW2, SOUT = 44, 48, 52, 56
sW, sLayer, sHalf, sCP, sRT, sCT, sLT, sDT = 60, 61, 62, 63, 64, 65, 66, 67
sDK0, sDK1, sONE, sMSK, sINV, sEPS, sNL2E = 68, 69, 70, 71, 72, 74, 75
sXin, sSTin, sXout, sH, sREP, sSHD = 76, 77, 78, 79, 81, 82
sSTAMP = 84
SPIN = 60000

a = Asm()
def srd(n): return f"s[{n}:{n+3}]"
def v(n, k=1): return f"v{n}" if k == 1 else f"v[{n}:{n+k-1}]"
def ac(n, k=1): return f"a{n}" if k == 1 else f"a[{n}:{n+k-1}]"

stamp_id = [0]; STAMPS = []
def stamp(name):
    if not STAMP: return
    i = stamp_id[0]; stamp_id[0] += 1
    sk = a.newlabel("st")
    a(f"s_cmp_lg_u32 s{sW}, 0\ns_cbranch_scc1 {sk}")
    a(f"s_memrealtime s[{sSTAMP}:{sSTAMP+1}]")
    a("s_waitcnt lgkmcnt(0)")
    a(f"v_writelane_b32 v7, s{sSTAMP}, {i}")
    a.label(sk)
    STAMPS.append(name)
def stamp_flush(area):
    if not STAMP: return
    sk = a.newlabel("sf")
    a(f"s_cmp_lg_u32 s{sW}, 0\ns_cbranch_scc1 {sk}")
    a(f"s_lshl_b32 s3, s{sLayer}, 1\ns_add_u32 s3, s3, s{sHalf}\ns_lshl_b32 s3, s3, 8\ns_add_u32 s3, s3, s2\ns_lshl_b32 s3, s3, 8\ns_add_u32 s3, s3, {DBG + 0x400000 + area*0x40000}")
    a("v_lshlrev_b32 v3, 2, v1")
    a(f"buffer_store_dword v7, v3, {srd(SWS)}, s3 offen")
    a("s_waitcnt vmcnt(0)")
    a.label(sk)

def wait_all(soff):
    sk = a.newlabel("wk"); lp = a.newlabel("wp"); out = a.newlabel("wo")
    a(f"s_cmp_lg_u32 s{sW}, 0\ns_cbranch_scc1 {sk}")
    a("s_mov_b64 exec, 0xffff")
    a(f"v_lshlrev_b32 v3, 8, v1\nv_add_u32 v3, s{sREP}, v3")
    a(f"s_mov_b32 s10, {SPIN}")
    a.label(lp)
    a(f"buffer_load_dword v4, v3, {srd(SWS)}, s{soff} offen sc1\ns_waitcnt vmcnt(0)")
    a("v_cmp_gt_u32 vcc, 16, v4")
    a(f"s_cbranch_vccz {out}")
    a(f"s_sub_u32 s10, s10, 1\ns_cmp_lg_u32 s10, 0\ns_cbranch_scc1 {lp}")
    a.label(out)
    a("s_mov_b64 exec, -1")
    a.label(sk)
    a("s_barrier")
def signal_all(soff):
    sk = a.newlabel("sg")
    a("s_barrier")
    a(f"s_cmp_lg_u32 s{sW}, 1\ns_cbranch_scc1 {sk}")
    a("s_mov_b64 exec, 0xff")
    a(f"v_lshlrev_b32 v3, 12, v1\nv_add_u32 v3, s{sSHD}, v3\nv_mov_b32 v4, 1")
    a(f"buffer_atomic_add v4, v3, {srd(SWS)}, s{soff} offen sc1")
    a("s_mov_b64 exec, -1")
    a.label(sk)
def group_off(sd):
    a(f"s_lshl_b32 s{sd}, s{sLayer}, 1\ns_add_u32 s{sd}, s{sd}, s{sHalf}\ns_lshl_b32 s{sd}, s{sd}, 4\ns_add_u32 s{sd}, s{sd}, s{sRT}\ns_lshl_b32 s{sd}, s{sd}, 8\ns_add_u32 s{sd}, s{sd}, {GCNT}")
def wait_group(soff):
    sk = a.newlabel("wk"); lp = a.newlabel("wp"); out = a.newlabel("wo")
    a(f"s_cmp_lg_u32 s{sW}, 0\ns_cbranch_scc1 {sk}")
    a("s_mov_b64 exec, 1\nv_mov_b32 v3, 0")
    a(f"s_mov_b32 s10, {SPIN}")
    a.label(lp)
    a(f"buffer_load_dword v4, v3, {srd(SWS)}, s{soff} offen sc1\ns_waitcnt vmcnt(0)")
    a("v_cmp_gt_u32 vcc, 16, v4")
    a(f"s_cbranch_vccz {out}")
    a(f"s_sub_u32 s10, s10, 1\ns_cmp_lg_u32 s10, 0\ns_cbranch_scc1 {lp}")
    a.label(out)
    a("s_mov_b64 exec, -1")
    a.label(sk)
    a("s_barrier")
def signal_group(soff):
    sk = a.newlabel("sg")
    a("s_barrier")
    a(f"s_cmp_lg_u32 s{sW}, 1\ns_cbranch_scc1 {sk}")
    a("s_mov_b64 exec, 1\nv_mov_b32 v3, 0\nv_mov_b32 v4, 1")
    a(f"buffer_atomic_add v4, v3, {srd(SWS)}, s{soff} offen sc1")
    a("s_mov_b64 exec, -1")
    a.label(sk)

def xsum(regs, tmp, steps):
    for s in steps:
        for i, r in enumerate(regs): a(f"v_mov_b32 v{tmp+i}, v{r}")
        for i, r in enumerate(regs): a(f"v_permlane{s}_swap_b32 v{r}, v{tmp+i}")
        for i, r in enumerate(regs): a(f"v_add_f32 v{r}, v{r}, v{tmp+i}")

def dma_w2(rnd):
    a("v_lshrrev_b32 v5, 3, v1\nv_lshlrev_b32 v5, 10, v5\nv_and_b32 v6, 7, v1\nv_lshl_add_u32 v5, v6, 4, v5")
    a(f"s_mul_i32 s3, s{sW}, {448*1024}\ns_lshl_b32 s4, s{sDT}, 7\ns_add_u32 s3, s3, s4")
    if rnd: a(f"s_add_u32 s3, s3, {224*1024}")
    a(f"s_mul_i32 s4, s{sW}, 28672")
    for i in range(28):
        a("s_mov_b32 m0, s4")
        a("s_add_u32 s4, s4, 1024")
        a(f"buffer_load_dwordx4 v5, {srd(SW2)}, s3 offen lds")
        a("s_add_u32 s3, s3, 8192")
def tr_w2(rnd):
    a("v_bfe_u32 v3, v1, 4, 1")
    a(f"v_xor_b32 v5, s{sW}, v3\nv_xor_b32 v6, 2, v5")
    a("v_lshrrev_b32 v3, 5, v1\nv_lshlrev_b32 v3, 3, v3\nv_bfe_u32 v4, v1, 2, 2\nv_add_u32 v3, v3, v4\nv_lshlrev_b32 v3, 7, v3")
    a("v_and_b32 v4, 3, v1\nv_lshl_add_u32 v3, v4, 3, v3")
    a(f"s_mul_i32 s4, s{sW}, 28672\nv_add_u32 v3, s4, v3")
    a("v_lshl_add_u32 v5, v5, 5, v3\nv_lshl_add_u32 v6, v6, 5, v3")
    for ks in range(14):
        for mt in range(2):
            for hf in range(2):
                d = ((14 * rnd + ks) * 2 + mt) * 4 + 2 * hf
                a(f"ds_read_b64_tr_b16 {ac(d,2)}, v{5+mt} offset:{(16*ks+4*hf)*128}")
    a("s_waitcnt lgkmcnt(0)")
def dma_w1(tmp):
    for k in range(7):
        a(f"v_add_u32 v3, {64*k}, v1\nv_mul_u32_u24 v4, 4682, v3\nv_lshrrev_b32 v4, 16, v4")
        a(f"v_mul_u32_u24 v5, 14, v4\nv_sub_u32 v3, v3, v5\nv_mul_u32_u24 v4, 3584, v4\nv_lshl_add_u32 v{tmp+k}, v3, 4, v4")
    a(f"s_mul_i32 s3, s{sW}, {128*3584}\ns_mul_i32 s4, s{sCT}, 224\ns_add_u32 s3, s3, s4")
    a(f"s_mul_i32 s4, s{sW}, 28672")
    for grp in range(4):
        for k in range(7):
            a("s_mov_b32 m0, s4")
            a("s_add_u32 s4, s4, 1024")
            a(f"buffer_load_dwordx4 v{tmp+k}, {srd(SW1)}, s3 offen lds")
        a(f"s_add_u32 s3, s3, {32*3584}")

def cmul(r, x, y, t):
    a(f"v_pk_mul_f32 {v(t,2)}, {v(x,2)}, {v(y,2)} op_sel_hi:[1,0]")
    a(f"v_pk_fma_f32 {v(r,2)}, {v(x,2)}, {v(y,2)}, {v(t,2)} op_sel:[1,1,0] op_sel_hi:[0,1,1] neg_lo:[1,0,0]")

K = NAME + "_kernel"
a.kernel(K, vgpr=512, sgpr=96, accum=256)
DONE = ".Ldone"
a("s_cmp_ge_u32 s2, 256")
a(f"s_cbranch_scc1 {DONE}")
a("s_load_dwordx16 s[16:31], s[0:1], 0\ns_load_dwordx8 s[32:39], s[0:1], 64\ns_load_dwordx2 s[40:41], s[0:1], 96")
a("v_and_b32 v1, 63, v0\nv_lshlrev_b32 v2, 4, v1\nv_lshrrev_b32 v3, 6, v0")
a(f"v_readfirstlane_b32 s{sW}, v3")
a(f"s_mov_b32 s{sLayer}, 0\ns_mov_b32 s{sHalf}, 0")
if STAMP: a("v_mov_b32 v7, 0")
a(f"s_lshl_b32 s{sCP}, s2, 8")
a(f"s_and_b32 s3, s2, 7\ns_lshr_b32 s4, s2, 3")
a(f"s_lshl_b32 s{sREP}, s3, 12\ns_and_b32 s{sCT}, s4, 15\ns_lshl_b32 s{sSHD}, s{sCT}, 8")
a(f"s_lshl_b32 s{sRT}, s3, 1\ns_lshr_b32 s5, s4, 4\ns_add_u32 s{sRT}, s{sRT}, s5")
a(f"s_lshl_b32 s{sLT}, s{sRT}, 1\ns_bfe_u32 s5, s4, 0x10003\ns_add_u32 s{sLT}, s{sLT}, s5\ns_and_b32 s{sDT}, s4, 7")
a(f"s_mov_b32 s{sONE}, 0x3f803f80\ns_mov_b32 s{sMSK}, 0xffff0000\ns_mov_b32 s{sINV}, {f2u(1/512):#x}\ns_mov_b32 s{sINV+1}, {f2u(1/512):#x}")
a(f"s_mov_b32 s{sEPS}, {f2u(1e-5):#x}\ns_mov_b32 s{sNL2E}, {f2u(-LOG2E):#x}")
a(f"s_mov_b32 s{sXin}, {XP[0]}\ns_mov_b32 s{sSTin}, {ST0}\ns_mov_b32 s{sXout}, {XP[1]}\ns_mov_b32 s{sH}, {HB[0]}")
a("s_waitcnt lgkmcnt(0)")
stamp("start")
a.srd(SWS, 40, WS_BYTES); a.srd(SW1, 32, 512*1792*2); a.srd(SW2, 34, 512*1792*2); a.srd(SOUT, 36, 2048*512*2)
a("s_lshl_b32 s3, s2, 2")
a("s_load_dword s12, s[26:27], s3\ns_load_dword s13, s[28:29], s3")
nz0 = a.newlabel("nz")
a(f"s_cmp_lg_u32 s2, 0\ns_cbranch_scc1 {nz0}")
a("v_lshlrev_b32 v8, 8, v0\nv_mov_b32 v9, 0\ns_mov_b32 s3, 0")
for k in range(4):
    a(f"buffer_store_dword v9, v8, {srd(SWS)}, s3 offen sc1\ns_add_u32 s3, s3, 65536")
a.label(nz0)
a(f"s_lshl_b32 s3, s2, 13\ns_lshl_b32 s4, s{sW}, 11\ns_add_u32 s4, s3, s4\nv_add_u32 v3, s4, v2")
a("global_load_dwordx4 v[32:35], v3, s[16:17]\nglobal_load_dwordx4 v[36:39], v3, s[16:17] offset:1024")
a("v_lshlrev_b32 v4, 2, v0\nv_add_u32 v4, s3, v4\nv_add_u32 v5, 4096, v4")
for i in range(8):
    a(f"global_load_dword v{40+i}, v{4 + i//4}, s[16:17] offset:{(i%4)*1024}")
a("s_lshl_b32 s4, s2, 9\nv_lshlrev_b32 v6, 1, v0\nv_add_u32 v6, s4, v6")
for i in range(4):
    a(f"global_load_ushort v{48+i}, v6, s[{18+2*i}:{19+2*i}]")
nz = a.newlabel("nz")
a(f"s_cmp_lg_u32 s2, 0\ns_cbranch_scc1 {nz}")
a("s_waitcnt vmcnt(14)\ns_barrier")
a("v_mov_b32 v8, 0\nv_mov_b32 v9, 1")
a("global_store_dword v8, v9, s[38:39] sc1")
a.label(nz)
IDX = 100
for k in range(9):
    a(f"v_lshlrev_b32 v8, 3, v0\nv_add_u32 v8, {k-1}, v8\nv_max_i32 v8, 0, v8\nv_cvt_f32_u32 v8, v8")
    a(f"v_cvt_pk_bf16_f32 v8, v8, v8\nv_and_b32 v8, s{sMSK}, v8\nv_cvt_u32_f32 v9, v8")
    a("v_lshrrev_b32 v8, 23, v8\nv_add_u32 v8, -134, v8\nv_med3_i32 v8, v8, 0, 3") if False else \
    a("v_lshrrev_b32 v8, 23, v8\nv_subrev_u32 v8, 134, v8\nv_med3_i32 v8, v8, 0, 3")
    a("v_lshrrev_b32 v10, 7, v9\nv_and_b32 v11, 7, v9\nv_lshl_or_b32 v10, v10, 3, v11\nv_lshrrev_b32 v10, v8, v10\nv_lshl_add_u32 v10, v8, 3, v10")
    a(f"v_bfe_u32 v9, v9, 3, 4\nv_lshlrev_b32 v9, 2, v9\nv_lshl_add_u32 v9, v10, 6, v9\nv_add_u32 v{IDX+k}, {LGT}, v9")
a("s_waitcnt vmcnt(0)")
stamp("p0 loads")
for i in range(4): a(f"v_mov_b32 v{52+i}, 0")
for q in range(4):
    a(f"v_dot2c_f32_bf16 v52, s{sONE}, v{32+q}\nv_dot2c_f32_bf16 v53, v{32+q}, v{32+q}")
    a(f"v_dot2c_f32_bf16 v54, s{sONE}, v{36+q}\nv_dot2c_f32_bf16 v55, v{36+q}, v{36+q}")
for m in ["quad_perm:[1,0,3,2]", "quad_perm:[2,3,0,1]", "row_half_mirror", "row_mirror"]:
    for i in range(4): a(f"v_add_f32_dpp v{52+i}, v{52+i}, v{52+i} {m} row_mask:0xf bank_mask:0xf")
xsum([52, 53, 54, 55], 56, [16, 32])
a(f"s_lshr_b32 s3, s2, 3\ns_lshl_b32 s3, s3, 16\ns_and_b32 s4, s2, 7\ns_lshl_b32 s4, s4, 5\ns_add_u32 s3, s3, s4\ns_add_u32 s3, s3, {XP[0]}")
a("v_lshlrev_b32 v3, 8, v0")
a(f"buffer_store_dwordx4 v[40:43], v3, {srd(SWS)}, s3 offen sc1\nbuffer_store_dwordx4 v[44:47], v3, {srd(SWS)}, s3 offen offset:16 sc1")
a(f"s_lshl_b32 s3, s2, 6\ns_lshl_b32 s4, s{sW}, 4\ns_add_u32 s3, s3, s4\ns_add_u32 s4, s3, {ST2}\ns_add_u32 s3, s3, {ST0}")
for i in range(4): a(f"v_mov_b32 v{56+i}, 0")
a("s_mov_b64 exec, 1\nv_mov_b32 v3, 0")
a(f"buffer_store_dwordx4 v[52:55], v3, {srd(SWS)}, s3 offen sc1\nbuffer_store_dwordx4 v[56:59], v3, {srd(SWS)}, s4 offen sc1")
a("global_load_dword v60, v3, s[38:39] sc1")
a("s_mov_b64 exec, -1")
dma_w2(0)
a("s_waitcnt vmcnt(28)")
rd = a.newlabel("rd"); rl = a.newlabel("rl")
a(f"v_readfirstlane_b32 s3, v60\ns_cmp_lg_u32 s3, 0\ns_cbranch_scc1 {rd}")
a(f"s_mov_b32 s10, {SPIN}\nv_mov_b32 v3, 0")
a.label(rl)
a("global_load_dword v60, v3, s[38:39] sc1\ns_waitcnt vmcnt(0)")
a(f"v_readfirstlane_b32 s3, v60\ns_cmp_lg_u32 s3, 0\ns_cbranch_scc1 {rd}")
a(f"s_sub_u32 s10, s10, 1\ns_cmp_lg_u32 s10, 0\ns_cbranch_scc1 {rl}")
a.label(rd)
a(f"s_mov_b32 s11, {CNT}")
signal_all(11)
stamp("p0 signalled")
a("s_waitcnt lgkmcnt(0)")
a(f"s_lshl_b32 s{sDK0}, s13, 16\ns_and_b32 s{sDK1}, s13, s{sMSK}")
a(f"s_lshl_b32 s3, s12, 16\ns_and_b32 s4, s12, s{sMSK}\ns_cmp_ge_u32 s{sW}, 2\ns_cselect_b32 s3, s4, s3")
L2E = f"{f2u(LOG2E):#x}"
a(f"v_mov_b32 v8, s3\nv_mul_f32 v8, {L2E}, v8\nv_exp_f32 v8, v8")
for i in range(4): a(f"v_lshlrev_b32 v{48+i}, 16, v{48+i}")
a(f"v_mul_f32 v48, {L2E}, v48\nv_exp_f32 v48, v48")
a(f"v_cvt_pk_bf16_f32 v8, v8, v48\nv_and_b32 v48, s{sMSK}, v8\nv_lshlrev_b32 v8, 16, v8")
a(f"v_mul_f32 v48, v48, v8\nv_mul_f32 v48, s{sNL2E}, v48")
a(f"v_mul_f32 v49, v49, v8\nv_mul_f32 v49, 0.15915494, v49")
a("v_add_f32 v8, v8, v8\nv_mul_f32 v50, v50, v8\nv_mul_f32 v51, v51, v8")
E1, E8, E128, E1K = 32, 34, 36, 38
for dst, p in [(E1, 1.0), (E8, 8.0), (E128, 128.0), (E1K, 1024.0)]:
    a(f"v_mul_f32 v8, {f2u(p):#x}, v48\nv_mul_f32 v9, {f2u(p):#x}, v49\nv_exp_f32 v8, v8\nv_fract_f32 v9, v9")
    a(f"v_cos_f32 v{dst}, v9\nv_sin_f32 v{dst+1}, v9")
    a(f"v_mul_f32 v{dst}, v{dst}, v8\nv_mul_f32 v{dst+1}, v{dst+1}, v8")
a(f"s_mul_i32 s3, s{sW}, {ES}\ns_add_u32 s3, s3, {LE}")
a("v_lshlrev_b32 v10, 2, v1\nv_add_u32 v10, s3, v10")
a("v_and_b32 v11, 15, v1\nv_mul_u32_u24 v11, 272, v11\nv_lshrrev_b32 v12, 4, v1\nv_lshl_add_u32 v11, v12, 4, v11\nv_add_u32 v11, s3, v11")
rot = [0]
def put(row, r, neg=False):
    t = 12 + (rot[0] % 4); rot[0] += 1
    a(f"v_cvt_pk_bf16_f32 v{t}, v{r}, {'-' if neg else ''}v{r+1}")
    a(f"ds_write_b32 v10, v{t} offset:{row*272}")
EC = 62
BB = 78
TM = 40; Y = 50; R2 = 44
a(f"v_mov_b32 v{EC}, 1.0\nv_mov_b32 v{EC+1}, 0\nv_mov_b32 v{EC+2}, v{E1}\nv_mov_b32 v{EC+3}, v{E1+1}")
a(f"v_mov_b32 v{BB+2}, v{E128}\nv_mov_b32 v{BB+3}, v{E128+1}")
put(0, Y, True); put(16, EC); put(17, EC + 2); put(24, E128)
for i in range(1, 16):
    cmul(Y, Y, E8, TM)
    if 2 <= i + 1 <= 7:
        c = i + 1
        cmul(EC + 2*c, EC + 2*(c-1), E1, TM + 2)
        cmul(BB + 2*c, BB + 2*(c-1), E128, R2 + 2)
        put(16 + c, EC + 2*c)
    if 8 <= i <= 14:
        c = i - 7
        cmul(R2, EC + 2*c, E128, TM + 2); put(24 + c, R2)
    put(i, Y, True)
LOF, HF = 112, 128
a("s_waitcnt lgkmcnt(0)")
for s in range(4):
    a(f"ds_read_b128 {v(LOF+4*s,4)}, v11 offset:{s*64}\nds_read_b128 {v(HF+4*s,4)}, v11 offset:{16*272+s*64}")
a("s_waitcnt lgkmcnt(0)")
GD = 160
for s in range(4):
    a(f"v_mfma_f32_16x16x32_bf16 {v(GD,4)}, {v(HF+4*s,4)}, {v(LOF+4*s,4)}, {'0' if s == 0 else v(GD,4)}")
for i in range(16):
    if i < 8: b, c = 2 + (i >> 2), 2 * (i & 3)
    else: b, c = 4 + ((i - 8) >> 1), 4 * (i & 1)
    if c == 0: put(i, BB + 2*b)
    else:
        t = R2 + 2 * (i & 1)
        cmul(t, BB + 2*b, EC + 2*c, TM + 2 * (i & 1)); put(i, t)
put(16, E1K)
for i in range(1, 9):
    t = R2 + 2 * (i & 1)
    cmul(t, E1K, BB + 2*i if i < 8 else E1K, TM + 2 * (i & 1)); put(16 + i, t)
a("s_waitcnt lgkmcnt(0)")
for s in range(4):
    a(f"ds_read_b128 {v(HF+4*s,4)}, v11 offset:{s*64}\nds_read_b128 {v(HF+16+4*s,4)}, v11 offset:{16*272+s*64}")
a("s_waitcnt lgkmcnt(0)")
for s in range(4):
    a(f"v_mfma_f32_16x16x32_bf16 {v(GD+4,4)}, {v(HF+4*s,4)}, {v(LOF+4*s,4)}, {'0' if s == 0 else v(GD+4,4)}")
    a(f"v_mfma_f32_16x16x32_bf16 {v(GD+8,4)}, {v(HF+16+4*s,4)}, {v(LOF+4*s,4)}, {'0' if s == 0 else v(GD+8,4)}")
a(f"s_mul_i32 s3, s{sW}, 3072\ns_add_u32 s3, s3, {LGT}")
a("v_and_b32 v8, 15, v1\nv_lshlrev_b32 v8, 2, v8\nv_lshrrev_b32 v9, 4, v1\nv_lshl_add_u32 v8, v9, 8, v8\nv_add_u32 v8, s3, v8")
for T in range(3):
    for r in range(4):
        a(f"ds_write_b32 v8, v{GD+4*T+r} offset:{(T*16+r)*64}")
a("s_waitcnt lgkmcnt(0)\ns_barrier")
for c in range(2):
    for k in range(9):
        a(f"ds_read2st64_b32 {v(32+c*18+2*k,2)}, v{IDX+k} offset0:{24*c} offset1:{24*c+12}")
a(f"v_bfe_u32 v8, v0, 4, 1\nv_mul_u32_u24 v8, {PKS}, v8\nv_and_b32 v9, 15, v0\nv_lshl_add_u32 v8, v9, 2, v8\nv_add_u32 v8, {LPK}, v8\nv_mov_b32 v9, 0")
a("ds_write_b32 v8, v9")
a(f"v_lshlrev_b32 v8, 5, v0\nv_add_u32 v8, {LPK+64}, v8")
a("v_cmp_eq_u32 vcc, 0, v0")
a("s_waitcnt lgkmcnt(0)")
for c in range(2):
    for k in range(9):
        r = 32 + c*18 + 2*k
        a(f"v_add_f32 v{r}, v{r}, v{r+1}")
    a(f"v_cndmask_b32 v{32+c*18}, v{32+c*18}, v9, vcc")
    for k in range(8):
        a(f"v_cvt_pk_bf16_f32 v{72+c*8+k}, v{32+c*18+2*(k+1)}, v{32+c*18+2*k}")
    a(f"ds_write_b128 v8, {v(72+c*8,4)} offset:{c*PKS}\nds_write_b128 v8, {v(76+c*8,4)} offset:{c*PKS+16}")
if DUMP:
    a(f"s_lshl_b32 s3, s2, 14\ns_add_u32 s3, s3, {DBG}\nv_lshlrev_b32 v9, 5, v0")
    for c in range(2):
        a(f"buffer_store_dwordx4 {v(72+c*8,4)}, v9, {srd(SWS)}, s3 offen\nbuffer_store_dwordx4 {v(76+c*8,4)}, v9, {srd(SWS)}, s3 offen offset:16")
        a("s_add_u32 s3, s3, 8192")
stamp("kgen done")
a("s_waitcnt vmcnt(0)")
tr_w2(0)
stamp("w2 r1")

LAYER = ".Llayer"
a.label(LAYER)
T0, U0, AC = 32, 160, 224
def conv_half(half):
    first = half == 0
    a(f"s_mov_b32 s{sHalf}, {half}")
    a(f"s_mul_i32 s11, s{sLayer}, {(3+half)*0x8000}")
    wait_all(11)
    stamp(f"conv{half} ready")
    a("v_bfe_u32 v8, v1, 2, 2\nv_lshlrev_b32 v8, 16, v8\nv_and_b32 v9, 3, v1\nv_lshl_add_u32 v8, v9, 6, v8\nv_lshrrev_b32 v10, 4, v1\nv_lshl_add_u32 v8, v10, 4, v8")
    a(f"s_lshl_b32 s3, s{sW}, 18\ns_add_u32 s3, s3, s{sCP}\ns_add_u32 s14, s3, {half*0x100000}\ns_add_u32 s3, s14, s{sXin}\ns_add_u32 s14, s14, s{sXout}")
    a(f"buffer_load_dwordx4 v[24:27], v8, {srd(SWS)}, s3 offen sc1")
    a("v_and_b32 v11, 15, v1\nv_lshlrev_b32 v9, 7, v11\nv_lshl_add_u32 v9, v10, 5, v9")
    a(f"s_lshl_b32 s4, s{sW}, 11\ns_add_u32 s4, s4, s{sSTin}\ns_add_u32 s4, s4, {half*8192}")
    S = 208
    a(f"buffer_load_dwordx4 {v(S,4)}, v9, {srd(SWS)}, s4 offen sc1\nbuffer_load_dwordx4 {v(S+4,4)}, v9, {srd(SWS)}, s4 offen offset:16 sc1")
    l1 = a.newlabel("l1"); jn = a.newlabel("jn")
    a(f"s_cmp_lg_u32 s{sLayer}, 0\ns_cbranch_scc1 {l1}")
    if first: dma_w2(1)
    else:
        tr_w2(1); dma_w1(160)
    a.label(l1)
    a(f"s_lshr_b32 s5, s{sW}, 1\ns_and_b32 s6, s{sW}, 1")
    a(f"v_lshlrev_b32 v12, 5, v11\nv_lshl_add_u32 v12, v10, 3, v12\ns_lshl_b32 s3, s{sW}, 9\ns_add_u32 s3, s3, {LU + 512 + half*2048}\nv_add_u32 v12, s3, v12")
    a(f"v_lshlrev_b32 v13, 5, v11\nv_lshl_add_u32 v13, v10, 4, v13\ns_mul_i32 s3, s5, {US}\ns_lshl_b32 s4, s6, 8\ns_sub_u32 s3, s3, s4\ns_add_u32 s3, s3, {LU}\nv_add_u32 v13, s3, v13")
    if first:
        a(f"v_lshlrev_b32 v14, 3, v10\nv_sub_u32 v14, v11, v14\nv_lshlrev_b32 v14, 2, v14\ns_mul_i32 s3, s5, {PKS}\ns_lshl_b32 s4, s6, 9\ns_add_u32 s3, s3, s4\ns_add_u32 s3, s3, {LPK + 26*4}\nv_add_u32 v14, s3, v14")
        for j in range(8):
            for t in range(4):
                r = T0 + (j*4 + t)*4
                a(f"ds_read2_b32 {v(r,2)}, v14 offset0:{32*t+6} offset1:{32*t+4}\nds_read2_b32 {v(r+2,2)}, v14 offset0:{32*t+2} offset1:{32*t}")
            if j < 7: a("v_add_u32 v14, 1024, v14")
        a(f"v_lshrrev_b32 v3, 7, v0\nv_mul_u32_u24 v3, {US}, v3\nv_and_b32 v4, 127, v0\nv_lshl_add_u32 v3, v4, 2, v3\nv_add_u32 v3, {LU}, v3\nv_mov_b32 v4, 0")
        a("ds_write_b32 v3, v4")
    w0 = a.newlabel("w0"); w1 = a.newlabel("w1")
    a(f"s_cmp_lg_u32 s{sLayer}, 0\ns_cbranch_scc1 {w0}")
    a(f"s_waitcnt vmcnt(28)\ns_branch {w1}")
    a.label(w0); a("s_waitcnt vmcnt(0)"); a.label(w1)
    stamp(f"conv{half} loaded")
    M, RI, XF, DD = 192, 196, 176, 184
    for i in range(4): a(f"v_pk_mul_f32 {v(S+2*i,2)}, {v(S+2*i,2)}, s[{sINV}:{sINV+1}]")
    for i in range(4): a(f"v_fma_f32 v{S+2*i+1}, -v{S+2*i}, v{S+2*i}, v{S+2*i+1}")
    for i in range(4): a(f"v_max_f32 v{S+2*i+1}, 0, v{S+2*i+1}")
    for i in range(4): a(f"v_cvt_pk_bf16_f32 v{S+2*i}, v{S+2*i}, v{S+2*i+1}")
    for i in range(4): a(f"v_lshlrev_b32 v{M+i}, 16, v{S+2*i}\nv_and_b32 v{RI+i}, s{sMSK}, v{S+2*i}")
    for i in range(4): a(f"v_add_f32 v{RI+i}, s{sEPS}, v{RI+i}")
    def rnd4():
        a(f"v_cvt_pk_bf16_f32 v{S}, v{RI}, v{RI+1}\nv_cvt_pk_bf16_f32 v{S+1}, v{RI+2}, v{RI+3}")
        a(f"v_lshlrev_b32 v{RI}, 16, v{S}\nv_and_b32 v{RI+1}, s{sMSK}, v{S}\nv_lshlrev_b32 v{RI+2}, 16, v{S+1}\nv_and_b32 v{RI+3}, s{sMSK}, v{S+1}")
    rnd4()
    for i in range(4): a(f"v_sqrt_f32 v{RI+i}, v{RI+i}")
    for i in range(4): a(f"v_lshlrev_b32 v{16+i}, 16, v{24+i}\nv_and_b32 v{20+i}, s{sMSK}, v{24+i}")
    rnd4()
    for i in range(4): a(f"v_rcp_f32 v{RI+i}, v{RI+i}")
    for i in range(4): a(f"v_sub_f32 v{DD+i}, v{16+i}, v{M+i}\nv_sub_f32 v{DD+4+i}, v{20+i}, v{M+i}")
    for i in range(4): a(f"v_cvt_pk_bf16_f32 v{XF+i}, v{DD+i}, v{DD+4+i}")
    for i in range(4): a(f"v_lshlrev_b32 v{DD+i}, 16, v{XF+i}\nv_and_b32 v{DD+4+i}, s{sMSK}, v{XF+i}")
    for i in range(4): a(f"v_mul_f32 v{DD+i}, v{DD+i}, v{RI+i}\nv_mul_f32 v{DD+4+i}, v{DD+4+i}, v{RI+i}")
    for k in range(4): a(f"v_cvt_pk_bf16_f32 v{28+k}, v{DD+2*k}, v{DD+2*k+1}")
    a(f"ds_write_b64 v12, v[28:29]\nds_write_b64 v12, v[30:31] offset:{US}")
    a("s_waitcnt lgkmcnt(0)\ns_barrier")
    for t in range(4):
        for tp in range(4):
            a(f"ds_read_b128 {v(U0+(tp*4+t)*4,4)}, v13 offset:{512 + 512*(tp+4*half) - 64*t - 32}")
    for k in range(4):
        c = k >> 1; i = (k & 1) * 2; sd = sDK1 if c else sDK0
        a(f"v_lshlrev_b32 v3, 16, v{28+k}\nv_and_b32 v4, s{sMSK}, v{28+k}")
        a(f"v_fma_f32 v{16+4*c+i}, v3, s{sd}, v{16+4*c+i}\nv_fma_f32 v{16+4*c+i+1}, v4, s{sd}, v{16+4*c+i+1}")
    for t in range(4):
        a(f"s_waitcnt lgkmcnt({12-4*t})")
        for tp in range(4):
            for r in range(tp, 4):
                acc = AC + (4*half + r)*4
                cin = "0" if (first and t == 0 and tp == 0) else v(acc, 4)
                a(f"v_mfma_f32_16x16x32_bf16 {v(acc,4)}, {v(T0+((r-tp)*4+t)*4,4)}, {v(U0+(tp*4+t)*4,4)}, {cin}")
    a(f"s_lshl_b32 s3, s{sW}, 10\ns_add_u32 s3, s3, {LEX}\nv_add_u32 v3, s3, v2\ns_lshl_b32 s3, s{sW}, 12\ns_add_u32 s3, s3, {LEX}\nv_add_u32 v4, s3, v2")
    for r in range(4): a(f"ds_write_b128 v3, {v(AC+(4*half+r)*4,4)} offset:{r*4096}")
    a("s_waitcnt lgkmcnt(0)\ns_barrier")
    RV = AC + (16 if first else 0)
    for src in range(4): a(f"ds_read_b128 {v(RV+4*src,4)}, v4 offset:{src*1024}")
    for c in range(2):
        a(f"s_waitcnt lgkmcnt({2-2*c})")
        for i in range(4): a(f"v_add_f32 v{RV+8*c+i}, v{RV+8*c+i}, v{RV+8*c+4+i}")
        for i in range(4): a(f"v_add_f32 v{16+4*c+i}, v{16+4*c+i}, v{RV+8*c+i}")
    for i in range(4): a(f"v_cvt_pk_bf16_f32 v{24+i}, v{16+i}, v{20+i}")
    a(f"buffer_store_dwordx4 v[24:27], v8, {srd(SWS)}, s14 offen sc1")
    stamp(f"conv{half} stored")
    if first:
        for t in range(4):
            for tp in range(4):
                for r in range(4, 8):
                    acc = AC + r*4
                    cin = "0" if (t == 0 and tp == 0) else v(acc, 4)
                    a(f"v_mfma_f32_16x16x32_bf16 {v(acc,4)}, {v(T0+((r-tp)*4+t)*4,4)}, {v(U0+(tp*4+t)*4,4)}, {cin}")
    a(f"s_lshl_b32 s11, s{sLayer}, 17\ns_add_u32 s11, s11, {(1+half)*0x8000}")
    a("s_waitcnt vmcnt(0)")
    signal_all(11)
    stamp(f"conv{half} signalled")
conv_half(0)
conv_half(1)
ncs = a.newlabel("ncs")
a(f"s_cmp_lg_u32 s{sLayer}, 0\ns_cbranch_scc1 {ncs}")
a("v_lshrrev_b32 v3, 4, v1\nv_lshlrev_b32 v3, 2, v3\nv_bfe_u32 v4, v1, 2, 2\nv_add_u32 v3, v3, v4\nv_mul_u32_u24 v3, 224, v3\nv_and_b32 v4, 3, v1\nv_lshl_add_u32 v3, v4, 3, v3")
a(f"s_lshl_b32 s3, s{sW}, 5\nv_add_u32 v3, s3, v3\nv_add_u32 v4, {256*224}, v3")
for i in range(4): a(f"v_mov_b32 v{24+i}, s{sONE}")
for f2 in range(2):
    for ks in range(16):
        for hf in range(2):
            a(f"ds_read_b64_tr_b16 {v(32+(f2*16+ks)*4+2*hf,2)}, v{3 + ks//8} offset:{(32*(ks%8)+16*hf)*224 + 128*f2}")
a("s_waitcnt lgkmcnt(0)")
for ks in range(16):
    for f2 in range(2):
        a(f"v_mfma_f32_16x16x32_bf16 {v(16+4*f2,4)}, {v(32+(f2*16+ks)*4,4)}, v[24:27], {'0' if ks == 0 else v(16+4*f2,4)}")
a(f"v_lshrrev_b32 v3, 4, v1\nv_lshlrev_b32 v3, 4, v3\ns_lshl_b32 s3, s{sW}, 6\ns_add_u32 s3, s3, {LCS}\nv_add_u32 v3, s3, v3")
a("ds_write_b128 v3, v[16:19]\nds_write_b128 v3, v[20:23] offset:256")
a("s_waitcnt lgkmcnt(0)")
a.label(ncs)

a(f"s_mov_b32 s{sHalf}, 0")
G1L = ".Lg1"
a.label(G1L)
a(f"s_lshl_b32 s11, s{sLayer}, 2\ns_add_u32 s11, s11, s{sHalf}\ns_add_u32 s11, s11, 1\ns_lshl_b32 s11, s11, 15")
wait_all(11)
stamp("g1 ready")
X0, A0, WB, SS = 32, 96, 152, 208
a(f"s_and_b32 s5, s{sW}, 1\ns_lshr_b32 s6, s{sW}, 1")
a("v_lshrrev_b32 v10, 4, v1\nv_and_b32 v11, 15, v1\nv_lshlrev_b32 v8, 9, v10\nv_lshl_add_u32 v8, v11, 3, v8")
a(f"s_lshl_b32 s3, s{sHalf}, 20\ns_lshl_b32 s4, s{sRT}, 16\ns_add_u32 s3, s3, s4\ns_add_u32 s3, s3, s{sXout}\ns_lshl_b32 s4, s5, 7\ns_add_u32 s3, s3, s4\ns_lshl_b32 s4, s6, 15\ns_add_u32 s3, s3, s4")
for ks in range(8):
    for dst, off in [(0, 0), (4, 256), (2, 2048), (6, 2304)]:
        a(f"buffer_load_dwordx2 {v(X0+8*ks+dst,2)}, v8, {srd(SWS)}, s3 offen offset:{off} sc1")
    if ks < 7: a("s_add_u32 s3, s3, 4096")
a("v_lshlrev_b32 v9, 2, v10\nv_bfe_u32 v3, v1, 2, 2\nv_add_u32 v9, v9, v3\nv_mul_u32_u24 v9, 224, v9\nv_and_b32 v3, 3, v1\nv_lshl_add_u32 v9, v3, 3, v9")
a(f"s_mul_i32 s3, s6, {256*224}\nv_add_u32 v9, s3, v9")
def wread(ks, ft):
    b = WB + (ks & 1) * 28 + ft * 4
    for hf in range(2):
        a(f"ds_read_b64_tr_b16 {v(b+2*hf,2)}, v9 offset:{(32*ks+16*hf)*224 + 32*ft}")
for ft in range(7): wread(0, ft)
for i in range(4): a(f"v_mov_b32 v{SS+i}, 0")
for ks in range(8):
    x = X0 + 8 * ks
    a(f"s_waitcnt vmcnt({28-4*ks})")
    a(f"v_swap_b32 v{x+1}, v{x+4}\nv_swap_b32 v{x+3}, v{x+6}")
    a("s_waitcnt lgkmcnt(0)")
    dots = []
    for q in range(4):
        dots += [f"v_dot2c_f32_bf16 v{SS}, s{sONE}, v{x+q}", f"v_dot2c_f32_bf16 v{SS+1}, v{x+q}, v{x+q}",
                 f"v_dot2c_f32_bf16 v{SS+2}, s{sONE}, v{x+4+q}", f"v_dot2c_f32_bf16 v{SS+3}, v{x+4+q}, v{x+4+q}"]
    for ft in range(7):
        b = WB + (ks & 1) * 28 + ft * 4
        for j in range(2):
            acc = A0 + (ft*2 + j)*4
            a(f"v_mfma_f32_16x16x32_bf16 {v(acc,4)}, {v(b,4)}, {v(x+4*j,4)}, {'0' if ks == 0 else v(acc,4)}")
            a(dots.pop(0))
        if ks < 7: wread(ks + 1, ft)
    for d_ in dots: a(d_)
stamp("g1 mfma")
a(f"s_mul_i32 s3, s{sW}, 7680\ns_add_u32 s3, s3, {LSCR}\nv_add_u32 v3, s3, v2\nv_lshrrev_b32 v5, 1, v2\nv_add_u32 v5, s3, v5")
a(f"s_xor_b32 s4, s{sW}, 2\ns_mul_i32 s3, s4, 7680\ns_add_u32 s3, s3, {LSCR}\nv_add_u32 v4, s3, v2\nv_lshrrev_b32 v6, 1, v2\nv_add_u32 v6, s3, v6")
a(f"v_lshlrev_b32 v12, 4, v10\nv_add_u32 v12, {LCS}, v12")
RV, CSR = 32, 64
k1 = a.newlabel("k1"); kj = a.newlabel("kj")
a(f"s_cmp_lg_u32 s6, 0\ns_cbranch_scc1 {k1}")
for kh in range(2):
    if kh: a.label(k1)
    o = 1 - kh
    for ft in range(7): a(f"ds_write_b128 v3, {v(A0+(ft*2+o)*4,4)} offset:{ft*1024}")
    a(f"ds_write_b64 v5, {v(SS+2*o,2)} offset:7168")
    for ft in range(7): a(f"ds_read_b128 {v(CSR+4*ft,4)}, v12 offset:{ft*64}")
    a("s_waitcnt lgkmcnt(0)\ns_barrier")
    a("ds_read_b64 v[14:15], v6 offset:7168")
    for ft in range(7): a(f"ds_read_b128 {v(RV+4*ft,4)}, v4 offset:{ft*1024}")
    a("s_waitcnt lgkmcnt(7)")
    a(f"v_add_f32 v14, v14, v{SS+2*kh}\nv_add_f32 v15, v15, v{SS+2*kh+1}")
    xsum([14, 15], 16, [16, 32])
    a("s_waitcnt lgkmcnt(0)")
    for ft in range(7):
        for r in range(4): a(f"v_add_f32 v{RV+4*ft+r}, v{RV+4*ft+r}, v{A0+(ft*2+kh)*4+r}")
    if kh == 0: a(f"s_branch {kj}")
a.label(kj)
a(f"v_pk_mul_f32 v[14:15], v[14:15], s[{sINV}:{sINV+1}]\nv_fma_f32 v15, -v14, v14, v15\nv_max_f32 v15, 0, v15\nv_cvt_pk_bf16_f32 v15, v14, v15")
a(f"v_lshlrev_b32 v14, 16, v15\nv_and_b32 v15, s{sMSK}, v15\nv_add_f32 v15, s{sEPS}, v15\nv_cvt_pk_bf16_f32 v15, v15, v15\nv_and_b32 v15, s{sMSK}, v15")
a(f"v_sqrt_f32 v15, v15\nv_cvt_pk_bf16_f32 v15, v15, v15\nv_and_b32 v15, s{sMSK}, v15\nv_rcp_f32 v16, v15\nv_mul_f32 v16, s{sNL2E}, v16")
a(f"s_lshl_b32 s3, s{sHalf}, 5\ns_lshl_b32 s4, s{sRT}, 1\ns_add_u32 s3, s3, s4\ns_add_u32 s3, s3, s5\ns_mul_i32 s3, s3, {HT}\ns_mul_i32 s4, s{sCT}, 7168\ns_add_u32 s3, s3, s4\ns_add_u32 s3, s3, s{sH}\ns_lshl_b32 s4, s6, 8\ns_add_u32 s3, s3, s4")
a("v_and_b32 v3, 1, v10\nv_lshlrev_b32 v8, 10, v3\nv_lshrrev_b32 v4, 1, v10\nv_lshl_add_u32 v8, v4, 9, v8\nv_lshl_add_u32 v8, v11, 4, v8")
a("v_lshlrev_b32 v9, 9, v4\nv_lshl_add_u32 v9, v11, 4, v9\nv_lshl_add_u32 v9, v3, 3, v9")
PKR, ET = 96, 112
def silu_tile(ft):
    for r in range(4): a(f"v_fma_f32 v{RV+4*ft+r}, -v14, v{CSR+4*ft+r}, v{RV+4*ft+r}")
    for r in range(4): a(f"v_mul_f32 v{ET+r}, v{RV+4*ft+r}, v16")
    for r in range(4): a(f"v_exp_f32 v{ET+r}, v{ET+r}")
    for r in range(4): a(f"v_fma_f32 v{ET+r}, v{ET+r}, v15, v15")
    for r in range(4): a(f"v_rcp_f32 v{ET+r}, v{ET+r}")
    for r in range(4): a(f"v_mul_f32 v{ET+r}, v{ET+r}, v{RV+4*ft+r}")
    a(f"v_cvt_pk_bf16_f32 v{PKR+2*ft}, v{ET}, v{ET+1}\nv_cvt_pk_bf16_f32 v{PKR+2*ft+1}, v{ET+2}, v{ET+3}")
for pr in range(3):
    silu_tile(2*pr); silu_tile(2*pr + 1)
    p = PKR + 4*pr
    a(f"v_permlane16_swap_b32 v{p}, v{p+2}\nv_permlane16_swap_b32 v{p+1}, v{p+3}")
    a(f"buffer_store_dwordx4 {v(p,4)}, v8, {srd(SWS)}, s3 offen sc1\ns_add_u32 s3, s3, 2048")
silu_tile(6)
a(f"buffer_store_dwordx2 {v(PKR+12,2)}, v9, {srd(SWS)}, s3 offen sc1")
stamp("g1 stored")
group_off(11)
a("s_waitcnt vmcnt(0)")
signal_group(11)
stamp("g1 signalled")
stamp_flush(0)
a(f"s_add_u32 s{sHalf}, s{sHalf}, 1\ns_cmp_lt_u32 s{sHalf}, 2\ns_cbranch_scc1 {G1L}")

a(f"s_mov_b32 s{sHalf}, 0")
G2L = ".Lg2"
a.label(G2L)
group_off(11)
wait_group(11)
stamp("g2 ready")
H0, C2, RS = 32, 144, 176
a(f"s_lshl_b32 s3, s{sHalf}, 5\ns_add_u32 s5, s3, s{sLT}\ns_mul_i32 s3, s5, {HT}\ns_mul_i32 s4, s{sW}, 28672\ns_add_u32 s3, s3, s4\ns_add_u32 s3, s3, s{sH}")
for ks in range(28):
    a(f"buffer_load_dwordx4 {v(H0+4*ks,4)}, v2, {srd(SWS)}, s3 offen offset:{(ks%4)*1024} sc1")
    if ks % 4 == 3 and ks < 27: a("s_add_u32 s3, s3, 4096")
a("v_and_b32 v10, 15, v1\nv_lshlrev_b32 v10, 1, v10\nv_bfe_u32 v3, v1, 4, 1\nv_add_u32 v10, v10, v3\nv_lshrrev_b32 v11, 5, v1")
a("v_lshlrev_b32 v8, 9, v11\nv_lshl_add_u32 v8, v10, 2, v8")
a(f"s_lshr_b32 s3, s5, 1\ns_lshl_b32 s3, s3, 16\ns_and_b32 s4, s5, 1\ns_lshl_b32 s4, s4, 7\ns_add_u32 s3, s3, s4\ns_lshl_b32 s4, s{sDT}, 13\ns_add_u32 s3, s3, s4\ns_lshl_b32 s4, s{sW}, 11\ns_add_u32 s14, s3, s4\ns_add_u32 s3, s14, s{sXout}")
for k in range(4):
    a(f"buffer_load_dword v{RS+k}, v8, {srd(SWS)}, s3 offen offset:{(k>>1)*1024 + (k&1)*256} sc1")
for ks in range(28):
    a(f"s_waitcnt vmcnt({31-ks})")
    for mt in range(2):
        a(f"v_mfma_f32_32x32x16_bf16 {v(C2+16*mt,16)}, {ac((ks*2+mt)*4,4)}, {v(H0+4*ks,4)}, {'0' if ks == 0 else v(C2+16*mt,16)}")
stamp("g2 mfma")
for sg in range(1, 4):
    a(f"s_xor_b32 s3, s{sW}, {sg}\ns_mul_i32 s3, s3, 6144\ns_add_u32 s3, s3, {LSCR + (sg-1)*2048}\nv_add_u32 v{2+sg}, s3, v2")
for sg in range(1, 4):
    a(f"ds_write_b128 v{2+sg}, {v(C2+8*sg,4)}\nds_write_b128 v{2+sg}, {v(C2+8*sg+4,4)} offset:1024")
a(f"s_mul_i32 s3, s{sW}, 6144\ns_add_u32 s3, s3, {LSCR}\nv_add_u32 v6, s3, v2")
a("s_waitcnt lgkmcnt(0)\ns_barrier")
for k in range(6): a(f"ds_read_b128 {v(32+4*k,4)}, v6 offset:{k*1024}")
a("s_waitcnt vmcnt(0)")
for k in range(4): a(f"v_lshlrev_b32 v{64+2*k}, 16, v{RS+k}\nv_and_b32 v{65+2*k}, s{sMSK}, v{RS+k}")
for s3_ in range(3):
    a(f"s_waitcnt lgkmcnt({4-2*s3_})")
    for r in range(8): a(f"v_add_f32 v{C2+r}, v{C2+r}, v{32+8*s3_+r}")
for k in range(4): a(f"v_cvt_pk_bf16_f32 v{72+k}, v{C2+2*k}, v{C2+2*k+1}")
for k in range(4): a(f"v_lshlrev_b32 v{C2+2*k}, 16, v{72+k}\nv_and_b32 v{C2+2*k+1}, s{sMSK}, v{72+k}")
for r in range(8): a(f"v_add_f32 v{C2+r}, v{C2+r}, v{64+r}")
for k in range(4): a(f"v_cvt_pk_bf16_f32 v{72+k}, v{C2+2*k}, v{C2+2*k+1}")
fin = a.newlabel("fin"); g2e = a.newlabel("g2e")
a(f"s_cmp_lg_u32 s{sLayer}, 0\ns_cbranch_scc1 {fin}")
a(f"s_add_u32 s3, s14, {XP[2]}")
for k in range(4):
    a(f"buffer_store_dword v{72+k}, v8, {srd(SWS)}, s3 offen offset:{(k>>1)*1024 + (k&1)*256} sc1")
a("v_mov_b32 v14, 0\nv_mov_b32 v15, 0")
for k in range(4): a(f"v_dot2c_f32_bf16 v14, s{sONE}, v{72+k}\nv_dot2c_f32_bf16 v15, v{72+k}, v{72+k}")
a("v_permlane32_swap_b32 v14, v15\nv_add_f32 v14, v14, v15")
a(f"v_lshlrev_b32 v9, 3, v10\nv_lshl_add_u32 v9, v11, 2, v9\ns_lshl_b32 s3, s5, 8\ns_add_u32 s3, s3, {ST2}")
a(f"buffer_atomic_add_f32 v14, v9, {srd(SWS)}, s3 offen sc1")
stamp("g2 stored")
a(f"s_add_u32 s11, s{sHalf}, 3\ns_lshl_b32 s11, s11, 15")
a("s_waitcnt vmcnt(0)")
signal_all(11)
a(f"s_branch {g2e}")
a.label(fin)
a("v_permlane32_swap_b32 v72, v74\nv_permlane32_swap_b32 v73, v75")
a(f"v_lshlrev_b32 v9, 10, v10\nv_lshl_add_u32 v9, v11, 4, v9\ns_lshl_b32 s3, s5, 15\ns_lshl_b32 s4, s{sDT}, 7\ns_add_u32 s3, s3, s4\ns_lshl_b32 s4, s{sW}, 5\ns_add_u32 s3, s3, s4")
a(f"buffer_store_dwordx4 v[72:75], v9, {srd(SOUT)}, s3 offen")
a("s_barrier")
a.label(g2e)
stamp("g2 signalled")
stamp_flush(1)
a(f"s_add_u32 s{sHalf}, s{sHalf}, 1\ns_cmp_lt_u32 s{sHalf}, 2\ns_cbranch_scc1 {G2L}")
a(f"s_mov_b32 s{sXin}, {XP[2]}\ns_mov_b32 s{sSTin}, {ST2}\ns_mov_b32 s{sXout}, {XP[3]}\ns_mov_b32 s{sH}, {HB[1]}")
a(f"s_add_u32 s{sLayer}, s{sLayer}, 1\ns_cmp_lt_u32 s{sLayer}, 2\ns_cbranch_scc1 {LAYER}")
a.label(DONE)
a("s_endpgm")

a.lines, added = hazard.fix(a.lines)
print("nops added", added, "lines", len(a.lines), file=sys.stderr)
hdr = "".join(l for l in open(f"cdna_kernels/{NAME}.s.ref").readlines() if l.startswith(";") and "@launch" not in l and "Override" not in l and "grid=ceil" not in l)
a.launches = [f"; @launch grid=(256,1,1) block=(256,1,1) lds={LDS_BYTES}"]
open(OUT, "w").write(a.text(hdr))

import json; json.dump(STAMPS, open(OUT + ".stamps.json", "w"))
```

```python
import sys, struct, math
sys.path.insert(0, "work")
from asmgen import Asm
import hazard
NAME = "interleave_layers__ssm_conv_s4d__dense_activation_silu__prompt"
STAMP = "--stamp" in sys.argv
DUMP = "--dump" in sys.argv
OUT = [x for x in sys.argv[1:] if not x.startswith("--")]
OUT = OUT[0] if OUT else f"cdna_kernels/{NAME}.s"

def f2u(x): return struct.unpack("<I", struct.pack("<f", x))[0]
LOG2E = 1.4426950408889634
CNT = 0; GCNT = 0x38000
ST0 = 0x80000; ST2 = 0x84000
XP = [0x100000, 0x300000, 0x500000, 0x700000]
HB = [0x900000, 0x1000000]
DBG = 0x1800000
WS_BYTES = 0x2000000
HT = 114688
LW = 0; LPK = 114688; PKS = 8256; LCS = 131200; LSCR = 131712
LU = LSCR; US = 4608; LEX = LSCR + 9216
LE = LPK; ES = 8704; LGT = LPK + 4 * ES
LDS_BYTES = 163840
SWS, SW1, SW2, SOUT = 44, 48, 52, 56
sW, sLayer, sHalf, sCP, sRT, sCT, sLT, sDT = 60, 61, 62, 63, 64, 65, 66, 67
sDK0, sDK1, sONE, sMSK, sINV, sEPS, sNL2E = 68, 69, 70, 71, 72, 74, 75
sXin, sSTin, sXout, sH, sREP, sSHD = 76, 77, 78, 79, 81, 82
sSTAMP = 84
SPIN = 60000

a = Asm()
def srd(n): return f"s[{n}:{n+3}]"
def v(n, k=1): return f"v{n}" if k == 1 else f"v[{n}:{n+k-1}]"
def ac(n, k=1): return f"a{n}" if k == 1 else f"a[{n}:{n+k-1}]"

stamp_id = [0]; STAMPS = []
def stamp(name):
    if not STAMP: return
    i = stamp_id[0]; stamp_id[0] += 1
    sk = a.newlabel("st")
    a(f"s_cmp_lg_u32 s{sW}, 0\ns_cbranch_scc1 {sk}")
    a(f"s_memrealtime s[{sSTAMP}:{sSTAMP+1}]")
    a("s_waitcnt lgkmcnt(0)")
    a(f"v_writelane_b32 v7, s{sSTAMP}, {i}")
    a.label(sk)
    STAMPS.append(name)
def stamp_flush(area):
    if not STAMP: return
    sk = a.newlabel("sf")
    a(f"s_cmp_lg_u32 s{sW}, 0\ns_cbranch_scc1 {sk}")
    a(f"s_lshl_b32 s3, s{sLayer}, 1\ns_add_u32 s3, s3, s{sHalf}\ns_lshl_b32 s3, s3, 8\ns_add_u32 s3, s3, s2\ns_lshl_b32 s3, s3, 8\ns_add_u32 s3, s3, {DBG + 0x400000 + area*0x40000}")
    a("v_lshlrev_b32 v3, 2, v1")
    a(f"buffer_store_dword v7, v3, {srd(SWS)}, s3 offen")
    a("s_waitcnt vmcnt(0)")
    a.label(sk)

def wait_all(soff):
    sk = a.newlabel("wk"); lp = a.newlabel("wp"); out = a.newlabel("wo")
    a(f"s_cmp_lg_u32 s{sW}, 0\ns_cbranch_scc1 {sk}")
    a("s_mov_b64 exec, 0xffff")
    a(f"v_lshlrev_b32 v3, 8, v1\nv_add_u32 v3, s{sREP}, v3")
    a(f"s_mov_b32 s10, {SPIN}")
    a.label(lp)
    a(f"buffer_load_dword v4, v3, {srd(SWS)}, s{soff} offen sc1\ns_waitcnt vmcnt(0)")
    a("v_cmp_gt_u32 vcc, 16, v4")
    a(f"s_cbranch_vccz {out}")
    a(f"s_sub_u32 s10, s10, 1\ns_cmp_lg_u32 s10, 0\ns_cbranch_scc1 {lp}")
    a.label(out)
    a("s_mov_b64 exec, -1")
    a.label(sk)
    a("s_barrier")
def signal_all(soff):
    sk = a.newlabel("sg")
    a("s_barrier")
    a(f"s_cmp_lg_u32 s{sW}, 1\ns_cbranch_scc1 {sk}")
    a("s_mov_b64 exec, 0xff")
    a(f"v_lshlrev_b32 v3, 12, v1\nv_add_u32 v3, s{sSHD}, v3\nv_mov_b32 v4, 1")
    a(f"buffer_atomic_add v4, v3, {srd(SWS)}, s{soff} offen sc1")
    a("s_mov_b64 exec, -1")
    a.label(sk)
def group_off(sd):
    a(f"s_lshl_b32 s{sd}, s{sLayer}, 1\ns_add_u32 s{sd}, s{sd}, s{sHalf}\ns_lshl_b32 s{sd}, s{sd}, 4\ns_add_u32 s{sd}, s{sd}, s{sRT}\ns_lshl_b32 s{sd}, s{sd}, 8\ns_add_u32 s{sd}, s{sd}, {GCNT}")
def wait_group(soff):
    sk = a.newlabel("wk"); lp = a.newlabel("wp"); out = a.newlabel("wo")
    a(f"s_cmp_lg_u32 s{sW}, 0\ns_cbranch_scc1 {sk}")
    a("s_mov_b64 exec, 1\nv_mov_b32 v3, 0")
    a(f"s_mov_b32 s10, {SPIN}")
    a.label(lp)
    a(f"buffer_load_dword v4, v3, {srd(SWS)}, s{soff} offen sc1\ns_waitcnt vmcnt(0)")
    a("v_cmp_gt_u32 vcc, 16, v4")
    a(f"s_cbranch_vccz {out}")
    a(f"s_sub_u32 s10, s10, 1\ns_cmp_lg_u32 s10, 0\ns_cbranch_scc1 {lp}")
    a.label(out)
    a("s_mov_b64 exec, -1")
    a.label(sk)
    a("s_barrier")
def signal_group(soff):
    sk = a.newlabel("sg")
    a("s_barrier")
    a(f"s_cmp_lg_u32 s{sW}, 1\ns_cbranch_scc1 {sk}")
    a("s_mov_b64 exec, 1\nv_mov_b32 v3, 0\nv_mov_b32 v4, 1")
    a(f"buffer_atomic_add v4, v3, {srd(SWS)}, s{soff} offen sc1")
    a("s_mov_b64 exec, -1")
    a.label(sk)

def xsum(regs, tmp, steps):
    for s in steps:
        for i, r in enumerate(regs): a(f"v_mov_b32 v{tmp+i}, v{r}")
        for i, r in enumerate(regs): a(f"v_permlane{s}_swap_b32 v{r}, v{tmp+i}")
        for i, r in enumerate(regs): a(f"v_add_f32 v{r}, v{r}, v{tmp+i}")

def dma_w2(rnd):
    a("v_lshrrev_b32 v5, 3, v1\nv_lshlrev_b32 v5, 10, v5\nv_and_b32 v6, 7, v1\nv_lshl_add_u32 v5, v6, 4, v5")
    a(f"s_mul_i32 s3, s{sW}, {448*1024}\ns_lshl_b32 s4, s{sDT}, 7\ns_add_u32 s3, s3, s4")
    if rnd: a(f"s_add_u32 s3, s3, {224*1024}")
    a(f"s_mul_i32 s4, s{sW}, 28672")
    for i in range(28):
        a("s_mov_b32 m0, s4")
        a("s_add_u32 s4, s4, 1024")
        a(f"buffer_load_dwordx4 v5, {srd(SW2)}, s3 offen lds")
        a("s_add_u32 s3, s3, 8192")
def tr_w2(rnd):
    a("v_bfe_u32 v3, v1, 4, 1")
    a(f"v_xor_b32 v5, s{sW}, v3\nv_xor_b32 v6, 2, v5")
    a("v_lshrrev_b32 v3, 5, v1\nv_lshlrev_b32 v3, 3, v3\nv_bfe_u32 v4, v1, 2, 2\nv_add_u32 v3, v3, v4\nv_lshlrev_b32 v3, 7, v3")
    a("v_and_b32 v4, 3, v1\nv_lshl_add_u32 v3, v4, 3, v3")
    a(f"s_mul_i32 s4, s{sW}, 28672\nv_add_u32 v3, s4, v3")
    a("v_lshl_add_u32 v5, v5, 5, v3\nv_lshl_add_u32 v6, v6, 5, v3")
    for ks in range(14):
        for mt in range(2):
            for hf in range(2):
                d = ((14 * rnd + ks) * 2 + mt) * 4 + 2 * hf
                a(f"ds_read_b64_tr_b16 {ac(d,2)}, v{5+mt} offset:{(16*ks+4*hf)*128}")
    a("s_waitcnt lgkmcnt(0)")
def dma_w1(tmp):
    for k in range(7):
        a(f"v_add_u32 v3, {64*k}, v1\nv_mul_u32_u24 v4, 4682, v3\nv_lshrrev_b32 v4, 16, v4")
        a(f"v_mul_u32_u24 v5, 14, v4\nv_sub_u32 v3, v3, v5\nv_mul_u32_u24 v4, 3584, v4\nv_lshl_add_u32 v{tmp+k}, v3, 4, v4")
    a(f"s_mul_i32 s3, s{sW}, {128*3584}\ns_mul_i32 s4, s{sCT}, 224\ns_add_u32 s3, s3, s4")
    a(f"s_mul_i32 s4, s{sW}, 28672")
    for grp in range(4):
        for k in range(7):
            a("s_mov_b32 m0, s4")
            a("s_add_u32 s4, s4, 1024")
            a(f"buffer_load_dwordx4 v{tmp+k}, {srd(SW1)}, s3 offen lds")
        a(f"s_add_u32 s3, s3, {32*3584}")

def cmul(r, x, y, t):
    a(f"v_pk_mul_f32 {v(t,2)}, {v(x,2)}, {v(y,2)} op_sel_hi:[1,0]")
    a(f"v_pk_fma_f32 {v(r,2)}, {v(x,2)}, {v(y,2)}, {v(t,2)} op_sel:[1,1,0] op_sel_hi:[0,1,1] neg_lo:[1,0,0]")

K = NAME + "_kernel"
a.kernel(K, vgpr=512, sgpr=96, accum=256)
DONE = ".Ldone"
a("s_cmp_ge_u32 s2, 256")
a(f"s_cbranch_scc1 {DONE}")
a("s_load_dwordx16 s[16:31], s[0:1], 0\ns_load_dwordx8 s[32:39], s[0:1], 64\ns_load_dwordx2 s[40:41], s[0:1], 96")
a("v_and_b32 v1, 63, v0\nv_lshlrev_b32 v2, 4, v1\nv_lshrrev_b32 v3, 6, v0")
a(f"v_readfirstlane_b32 s{sW}, v3")
a(f"s_mov_b32 s{sLayer}, 0\ns_mov_b32 s{sHalf}, 0")
if STAMP: a("v_mov_b32 v7, 0")
a(f"s_lshl_b32 s{sCP}, s2, 8")
a(f"s_and_b32 s3, s2, 7\ns_lshr_b32 s4, s2, 3")
a(f"s_lshl_b32 s{sREP}, s3, 12\ns_and_b32 s{sCT}, s4, 15\ns_lshl_b32 s{sSHD}, s{sCT}, 8")
a(f"s_lshl_b32 s{sRT}, s3, 1\ns_lshr_b32 s5, s4, 4\ns_add_u32 s{sRT}, s{sRT}, s5")
a(f"s_lshl_b32 s{sLT}, s{sRT}, 1\ns_bfe_u32 s5, s4, 0x10003\ns_add_u32 s{sLT}, s{sLT}, s5\ns_and_b32 s{sDT}, s4, 7")
a(f"s_mov_b32 s{sONE}, 0x3f803f80\ns_mov_b32 s{sMSK}, 0xffff0000\ns_mov_b32 s{sINV}, {f2u(1/512):#x}\ns_mov_b32 s{sINV+1}, {f2u(1/512):#x}")
a(f"s_mov_b32 s{sEPS}, {f2u(1e-5):#x}\ns_mov_b32 s{sNL2E}, {f2u(-LOG2E):#x}")
a(f"s_mov_b32 s{sXin}, {XP[0]}\ns_mov_b32 s{sSTin}, {ST0}\ns_mov_b32 s{sXout}, {XP[1]}\ns_mov_b32 s{sH}, {HB[0]}")
a("s_waitcnt lgkmcnt(0)")
stamp("start")
a.srd(SWS, 40, WS_BYTES); a.srd(SW1, 32, 512*1792*2); a.srd(SW2, 34, 512*1792*2); a.srd(SOUT, 36, 2048*512*2)
a("s_lshl_b32 s3, s2, 2")
a("s_load_dword s12, s[26:27], s3\ns_load_dword s13, s[28:29], s3")
nz0 = a.newlabel("nz")
a(f"s_cmp_lg_u32 s2, 0\ns_cbranch_scc1 {nz0}")
a("v_lshlrev_b32 v8, 8, v0\nv_mov_b32 v9, 0\ns_mov_b32 s3, 0")
for k in range(4):
    a(f"buffer_store_dword v9, v8, {srd(SWS)}, s3 offen sc1\ns_add_u32 s3, s3, 65536")
a.label(nz0)
a(f"s_lshl_b32 s3, s2, 13\ns_lshl_b32 s4, s{sW}, 11\ns_add_u32 s4, s3, s4\nv_add_u32 v3, s4, v2")
a("global_load_dwordx4 v[32:35], v3, s[16:17]\nglobal_load_dwordx4 v[36:39], v3, s[16:17] offset:1024")
a("v_lshlrev_b32 v4, 2, v0\nv_add_u32 v4, s3, v4\nv_add_u32 v5, 4096, v4")
for i in range(8):
    a(f"global_load_dword v{40+i}, v{4 + i//4}, s[16:17] offset:{(i%4)*1024}")
a("s_lshl_b32 s4, s2, 9\nv_lshlrev_b32 v6, 1, v0\nv_add_u32 v6, s4, v6")
for i in range(4):
    a(f"global_load_ushort v{48+i}, v6, s[{18+2*i}:{19+2*i}]")
nz = a.newlabel("nz")
a(f"s_cmp_lg_u32 s2, 0\ns_cbranch_scc1 {nz}")
a("s_waitcnt vmcnt(14)\ns_barrier")
a("v_mov_b32 v8, 0\nv_mov_b32 v9, 1")
a("global_store_dword v8, v9, s[38:39] sc1")
a.label(nz)
IDX = 100
for k in range(9):
    a(f"v_lshlrev_b32 v8, 3, v0\nv_add_u32 v8, {k-1}, v8\nv_max_i32 v8, 0, v8\nv_cvt_f32_u32 v8, v8")
    a(f"v_cvt_pk_bf16_f32 v8, v8, v8\nv_and_b32 v8, s{sMSK}, v8\nv_cvt_u32_f32 v9, v8")
    a("v_lshrrev_b32 v8, 23, v8\nv_add_u32 v8, -134, v8\nv_med3_i32 v8, v8, 0, 3") if False else \
    a("v_lshrrev_b32 v8, 23, v8\nv_subrev_u32 v8, 134, v8\nv_med3_i32 v8, v8, 0, 3")
    a("v_lshrrev_b32 v10, 7, v9\nv_and_b32 v11, 7, v9\nv_lshl_or_b32 v10, v10, 3, v11\nv_lshrrev_b32 v10, v8, v10\nv_lshl_add_u32 v10, v8, 3, v10")
    a(f"v_bfe_u32 v9, v9, 3, 4\nv_lshlrev_b32 v9, 2, v9\nv_lshl_add_u32 v9, v10, 6, v9\nv_add_u32 v{IDX+k}, {LGT}, v9")
a("s_waitcnt vmcnt(0)")
stamp("p0 loads")
for i in range(4): a(f"v_mov_b32 v{52+i}, 0")
for q in range(4):
    a(f"v_dot2c_f32_bf16 v52, s{sONE}, v{32+q}\nv_dot2c_f32_bf16 v53, v{32+q}, v{32+q}")
    a(f"v_dot2c_f32_bf16 v54, s{sONE}, v{36+q}\nv_dot2c_f32_bf16 v55, v{36+q}, v{36+q}")
for m in ["quad_perm:[1,0,3,2]", "quad_perm:[2,3,0,1]", "row_half_mirror", "row_mirror"]:
    for i in range(4): a(f"v_add_f32_dpp v{52+i}, v{52+i}, v{52+i} {m} row_mask:0xf bank_mask:0xf")
xsum([52, 53, 54, 55], 56, [16, 32])
a(f"s_lshr_b32 s3, s2, 3\ns_lshl_b32 s3, s3, 16\ns_and_b32 s4, s2, 7\ns_lshl_b32 s4, s4, 5\ns_add_u32 s3, s3, s4\ns_add_u32 s3, s3, {XP[0]}")
a("v_lshlrev_b32 v3, 8, v0")
a(f"buffer_store_dwordx4 v[40:43], v3, {srd(SWS)}, s3 offen sc1\nbuffer_store_dwordx4 v[44:47], v3, {srd(SWS)}, s3 offen offset:16 sc1")
a(f"s_lshl_b32 s3, s2, 6\ns_lshl_b32 s4, s{sW}, 4\ns_add_u32 s3, s3, s4\ns_add_u32 s4, s3, {ST2}\ns_add_u32 s3, s3, {ST0}")
for i in range(4): a(f"v_mov_b32 v{56+i}, 0")
a("s_mov_b64 exec, 1\nv_mov_b32 v3, 0")
a(f"buffer_store_dwordx4 v[52:55], v3, {srd(SWS)}, s3 offen sc1\nbuffer_store_dwordx4 v[56:59], v3, {srd(SWS)}, s4 offen sc1")
a("global_load_dword v60, v3, s[38:39] sc1")
a("s_mov_b64 exec, -1")
dma_w2(0)
a("s_waitcnt vmcnt(28)")
rd = a.newlabel("rd"); rl = a.newlabel("rl")
a(f"v_readfirstlane_b32 s3, v60\ns_cmp_lg_u32 s3, 0\ns_cbranch_scc1 {rd}")
a(f"s_mov_b32 s10, {SPIN}\nv_mov_b32 v3, 0")
a.label(rl)
a("global_load_dword v60, v3, s[38:39] sc1\ns_waitcnt vmcnt(0)")
a(f"v_readfirstlane_b32 s3, v60\ns_cmp_lg_u32 s3, 0\ns_cbranch_scc1 {rd}")
a(f"s_sub_u32 s10, s10, 1\ns_cmp_lg_u32 s10, 0\ns_cbranch_scc1 {rl}")
a.label(rd)
a(f"s_mov_b32 s11, {CNT}")
signal_all(11)
stamp("p0 signalled")
a("s_waitcnt lgkmcnt(0)")
a(f"s_lshl_b32 s{sDK0}, s13, 16\ns_and_b32 s{sDK1}, s13, s{sMSK}")
a(f"s_lshl_b32 s3, s12, 16\ns_and_b32 s4, s12, s{sMSK}\ns_cmp_ge_u32 s{sW}, 2\ns_cselect_b32 s3, s4, s3")
L2E = f"{f2u(LOG2E):#x}"
a(f"v_mov_b32 v8, s3\nv_mul_f32 v8, {L2E}, v8\nv_exp_f32 v8, v8")
for i in range(4): a(f"v_lshlrev_b32 v{48+i}, 16, v{48+i}")
a(f"v_mul_f32 v48, {L2E}, v48\nv_exp_f32 v48, v48")
a(f"v_cvt_pk_bf16_f32 v8, v8, v48\nv_and_b32 v48, s{sMSK}, v8\nv_lshlrev_b32 v8, 16, v8")
a(f"v_mul_f32 v48, v48, v8\nv_mul_f32 v48, s{sNL2E}, v48")
a(f"v_mul_f32 v49, v49, v8\nv_mul_f32 v49, 0.15915494, v49")
a("v_add_f32 v8, v8, v8\nv_mul_f32 v50, v50, v8\nv_mul_f32 v51, v51, v8")
E1, E8, E128, E1K = 32, 34, 36, 38
for dst, p in [(E1, 1.0), (E8, 8.0), (E128, 128.0), (E1K, 1024.0)]:
    a(f"v_mul_f32 v8, {f2u(p):#x}, v48\nv_mul_f32 v9, {f2u(p):#x}, v49\nv_exp_f32 v8, v8\nv_fract_f32 v9, v9")
    a(f"v_cos_f32 v{dst}, v9\nv_sin_f32 v{dst+1}, v9")
    a(f"v_mul_f32 v{dst}, v{dst}, v8\nv_mul_f32 v{dst+1}, v{dst+1}, v8")
a(f"s_mul_i32 s3, s{sW}, {ES}\ns_add_u32 s3, s3, {LE}")
a("v_lshlrev_b32 v10, 2, v1\nv_add_u32 v10, s3, v10")
a("v_and_b32 v11, 15, v1\nv_mul_u32_u24 v11, 272, v11\nv_lshrrev_b32 v12, 4, v1\nv_lshl_add_u32 v11, v12, 4, v11\nv_add_u32 v11, s3, v11")
rot = [0]
def put(row, r, neg=False):
    t = 12 + (rot[0] % 4); rot[0] += 1
    a(f"v_cvt_pk_bf16_f32 v{t}, v{r}, {'-' if neg else ''}v{r+1}")
    a(f"ds_write_b32 v10, v{t} offset:{row*272}")
EC = 62
BB = 78
TM = 40; Y = 50; R2 = 44
a(f"v_mov_b32 v{EC}, 1.0\nv_mov_b32 v{EC+1}, 0\nv_mov_b32 v{EC+2}, v{E1}\nv_mov_b32 v{EC+3}, v{E1+1}")
a(f"v_mov_b32 v{BB+2}, v{E128}\nv_mov_b32 v{BB+3}, v{E128+1}")
put(0, Y, True); put(16, EC); put(17, EC + 2); put(24, E128)
for i in range(1, 16):
    cmul(Y, Y, E8, TM)
    if 2 <= i + 1 <= 7:
        c = i + 1
        cmul(EC + 2*c, EC + 2*(c-1), E1, TM + 2)
        cmul(BB + 2*c, BB + 2*(c-1), E128, R2 + 2)
        put(16 + c, EC + 2*c)
    if 8 <= i <= 14:
        c = i - 7
        cmul(R2, EC + 2*c, E128, TM + 2); put(24 + c, R2)
    put(i, Y, True)
LOF, HF = 112, 128
a("s_waitcnt lgkmcnt(0)")
for s in range(4):
    a(f"ds_read_b128 {v(LOF+4*s,4)}, v11 offset:{s*64}\nds_read_b128 {v(HF+4*s,4)}, v11 offset:{16*272+s*64}")
a("s_waitcnt lgkmcnt(0)")
GD = 160
for s in range(4):
    a(f"v_mfma_f32_16x16x32_bf16 {v(GD,4)}, {v(HF+4*s,4)}, {v(LOF+4*s,4)}, {'0' if s == 0 else v(GD,4)}")
for i in range(16):
    if i < 8: b, c = 2 + (i >> 2), 2 * (i & 3)
    else: b, c = 4 + ((i - 8) >> 1), 4 * (i & 1)
    if c == 0: put(i, BB + 2*b)
    else:
        t = R2 + 2 * (i & 1)
        cmul(t, BB + 2*b, EC + 2*c, TM + 2 * (i & 1)); put(i, t)
put(16, E1K)
for i in range(1, 9):
    t = R2 + 2 * (i & 1)
    cmul(t, E1K, BB + 2*i if i < 8 else E1K, TM + 2 * (i & 1)); put(16 + i, t)
a("s_waitcnt lgkmcnt(0)")
for s in range(4):
    a(f"ds_read_b128 {v(HF+4*s,4)}, v11 offset:{s*64}\nds_read_b128 {v(HF+16+4*s,4)}, v11 offset:{16*272+s*64}")
a("s_waitcnt lgkmcnt(0)")
for s in range(4):
    a(f"v_mfma_f32_16x16x32_bf16 {v(GD+4,4)}, {v(HF+4*s,4)}, {v(LOF+4*s,4)}, {'0' if s == 0 else v(GD+4,4)}")
    a(f"v_mfma_f32_16x16x32_bf16 {v(GD+8,4)}, {v(HF+16+4*s,4)}, {v(LOF+4*s,4)}, {'0' if s == 0 else v(GD+8,4)}")
a(f"s_mul_i32 s3, s{sW}, 3072\ns_add_u32 s3, s3, {LGT}")
a("v_and_b32 v8, 15, v1\nv_lshlrev_b32 v8, 2, v8\nv_lshrrev_b32 v9, 4, v1\nv_lshl_add_u32 v8, v9, 8, v8\nv_add_u32 v8, s3, v8")
for T in range(3):
    for r in range(4):
        a(f"ds_write_b32 v8, v{GD+4*T+r} offset:{(T*16+r)*64}")
a("s_waitcnt lgkmcnt(0)\ns_barrier")
for c in range(2):
    for k in range(9):
        a(f"ds_read2st64_b32 {v(32+c*18+2*k,2)}, v{IDX+k} offset0:{24*c} offset1:{24*c+12}")
a(f"v_bfe_u32 v8, v0, 4, 1\nv_mul_u32_u24 v8, {PKS}, v8\nv_and_b32 v9, 15, v0\nv_lshl_add_u32 v8, v9, 2, v8\nv_add_u32 v8, {LPK}, v8\nv_mov_b32 v9, 0")
a("ds_write_b32 v8, v9")
a(f"v_lshlrev_b32 v8, 5, v0\nv_add_u32 v8, {LPK+64}, v8")
a("v_cmp_eq_u32 vcc, 0, v0")
a("s_waitcnt lgkmcnt(0)")
for c in range(2):
    for k in range(9):
        r = 32 + c*18 + 2*k
        a(f"v_add_f32 v{r}, v{r}, v{r+1}")
    a(f"v_cndmask_b32 v{32+c*18}, v{32+c*18}, v9, vcc")
    for k in range(8):
        a(f"v_cvt_pk_bf16_f32 v{72+c*8+k}, v{32+c*18+2*(k+1)}, v{32+c*18+2*k}")
    a(f"ds_write_b128 v8, {v(72+c*8,4)} offset:{c*PKS}\nds_write_b128 v8, {v(76+c*8,4)} offset:{c*PKS+16}")
if DUMP:
    a(f"s_lshl_b32 s3, s2, 14\ns_add_u32 s3, s3, {DBG}\nv_lshlrev_b32 v9, 5, v0")
    for c in range(2):
        a(f"buffer_store_dwordx4 {v(72+c*8,4)}, v9, {srd(SWS)}, s3 offen\nbuffer_store_dwordx4 {v(76+c*8,4)}, v9, {srd(SWS)}, s3 offen offset:16")
        a("s_add_u32 s3, s3, 8192")
stamp("kgen done")
a("s_waitcnt vmcnt(0)")
tr_w2(0)
stamp("w2 r1")

LAYER = ".Llayer"
a.label(LAYER)
T0, U0, AC = 32, 160, 224
def conv_half(half):
    first = half == 0
    a(f"s_mov_b32 s{sHalf}, {half}")
    a(f"s_mul_i32 s11, s{sLayer}, {(3+half)*0x8000}")
    wait_all(11)
    stamp(f"conv{half} ready")
    a("v_bfe_u32 v8, v1, 2, 2\nv_lshlrev_b32 v8, 16, v8\nv_and_b32 v9, 3, v1\nv_lshl_add_u32 v8, v9, 6, v8\nv_lshrrev_b32 v10, 4, v1\nv_lshl_add_u32 v8, v10, 4, v8")
    a(f"s_lshl_b32 s3, s{sW}, 18\ns_add_u32 s3, s3, s{sCP}\ns_add_u32 s14, s3, {half*0x100000}\ns_add_u32 s3, s14, s{sXin}\ns_add_u32 s14, s14, s{sXout}")
    a(f"buffer_load_dwordx4 v[24:27], v8, {srd(SWS)}, s3 offen sc1")
    a("v_and_b32 v11, 15, v1\nv_lshlrev_b32 v9, 7, v11\nv_lshl_add_u32 v9, v10, 5, v9")
    a(f"s_lshl_b32 s4, s{sW}, 11\ns_add_u32 s4, s4, s{sSTin}\ns_add_u32 s4, s4, {half*8192}")
    S = 208
    a(f"buffer_load_dwordx4 {v(S,4)}, v9, {srd(SWS)}, s4 offen sc1\nbuffer_load_dwordx4 {v(S+4,4)}, v9, {srd(SWS)}, s4 offen offset:16 sc1")
    l1 = a.newlabel("l1"); jn = a.newlabel("jn")
    a(f"s_cmp_lg_u32 s{sLayer}, 0\ns_cbranch_scc1 {l1}")
    if first: dma_w2(1)
    else:
        tr_w2(1); dma_w1(160)
    a.label(l1)
    a(f"s_lshr_b32 s5, s{sW}, 1\ns_and_b32 s6, s{sW}, 1")
    a(f"v_lshlrev_b32 v12, 5, v11\nv_lshl_add_u32 v12, v10, 3, v12\ns_lshl_b32 s3, s{sW}, 9\ns_add_u32 s3, s3, {LU + 512 + half*2048}\nv_add_u32 v12, s3, v12")
    a(f"v_lshlrev_b32 v13, 5, v11\nv_lshl_add_u32 v13, v10, 4, v13\ns_mul_i32 s3, s5, {US}\ns_lshl_b32 s4, s6, 8\ns_sub_u32 s3, s3, s4\ns_add_u32 s3, s3, {LU}\nv_add_u32 v13, s3, v13")
    if first:
        a(f"v_lshlrev_b32 v14, 3, v10\nv_sub_u32 v14, v11, v14\nv_lshlrev_b32 v14, 2, v14\ns_mul_i32 s3, s5, {PKS}\ns_lshl_b32 s4, s6, 9\ns_add_u32 s3, s3, s4\ns_add_u32 s3, s3, {LPK + 26*4}\nv_add_u32 v14, s3, v14")
        for j in range(8):
            for t in range(4):
                r = T0 + (j*4 + t)*4
                a(f"ds_read2_b32 {v(r,2)}, v14 offset0:{32*t+6} offset1:{32*t+4}\nds_read2_b32 {v(r+2,2)}, v14 offset0:{32*t+2} offset1:{32*t}")
            if j < 7: a("v_add_u32 v14, 1024, v14")
        a(f"v_lshrrev_b32 v3, 7, v0\nv_mul_u32_u24 v3, {US}, v3\nv_and_b32 v4, 127, v0\nv_lshl_add_u32 v3, v4, 2, v3\nv_add_u32 v3, {LU}, v3\nv_mov_b32 v4, 0")
        a("ds_write_b32 v3, v4")
    w0 = a.newlabel("w0"); w1 = a.newlabel("w1")
    a(f"s_cmp_lg_u32 s{sLayer}, 0\ns_cbranch_scc1 {w0}")
    a(f"s_waitcnt vmcnt(28)\ns_branch {w1}")
    a.label(w0); a("s_waitcnt vmcnt(0)"); a.label(w1)
    stamp(f"conv{half} loaded")
    M, RI, XF, DD = 192, 196, 176, 184
    for i in range(4): a(f"v_pk_mul_f32 {v(S+2*i,2)}, {v(S+2*i,2)}, s[{sINV}:{sINV+1}]")
    for i in range(4): a(f"v_fma_f32 v{S+2*i+1}, -v{S+2*i}, v{S+2*i}, v{S+2*i+1}")
    for i in range(4): a(f"v_max_f32 v{S+2*i+1}, 0, v{S+2*i+1}")
    for i in range(4): a(f"v_cvt_pk_bf16_f32 v{S+2*i}, v{S+2*i}, v{S+2*i+1}")
    for i in range(4): a(f"v_lshlrev_b32 v{M+i}, 16, v{S+2*i}\nv_and_b32 v{RI+i}, s{sMSK}, v{S+2*i}")
    for i in range(4): a(f"v_add_f32 v{RI+i}, s{sEPS}, v{RI+i}")
    def rnd4():
        a(f"v_cvt_pk_bf16_f32 v{S}, v{RI}, v{RI+1}\nv_cvt_pk_bf16_f32 v{S+1}, v{RI+2}, v{RI+3}")
        a(f"v_lshlrev_b32 v{RI}, 16, v{S}\nv_and_b32 v{RI+1}, s{sMSK}, v{S}\nv_lshlrev_b32 v{RI+2}, 16, v{S+1}\nv_and_b32 v{RI+3}, s{sMSK}, v{S+1}")
    rnd4()
    for i in range(4): a(f"v_sqrt_f32 v{RI+i}, v{RI+i}")
    for i in range(4): a(f"v_lshlrev_b32 v{16+i}, 16, v{24+i}\nv_and_b32 v{20+i}, s{sMSK}, v{24+i}")
    rnd4()
    for i in range(4): a(f"v_rcp_f32 v{RI+i}, v{RI+i}")
    for i in range(4): a(f"v_sub_f32 v{DD+i}, v{16+i}, v{M+i}\nv_sub_f32 v{DD+4+i}, v{20+i}, v{M+i}")
    for i in range(4): a(f"v_cvt_pk_bf16_f32 v{XF+i}, v{DD+i}, v{DD+4+i}")
    for i in range(4): a(f"v_lshlrev_b32 v{DD+i}, 16, v{XF+i}\nv_and_b32 v{DD+4+i}, s{sMSK}, v{XF+i}")
    for i in range(4): a(f"v_mul_f32 v{DD+i}, v{DD+i}, v{RI+i}\nv_mul_f32 v{DD+4+i}, v{DD+4+i}, v{RI+i}")
    for k in range(4): a(f"v_cvt_pk_bf16_f32 v{28+k}, v{DD+2*k}, v{DD+2*k+1}")
    a(f"ds_write_b64 v12, v[28:29]\nds_write_b64 v12, v[30:31] offset:{US}")
    a("s_waitcnt lgkmcnt(0)\ns_barrier")
    for t in range(4):
        for tp in range(4):
            a(f"ds_read_b128 {v(U0+(tp*4+t)*4,4)}, v13 offset:{512 + 512*(tp+4*half) - 64*t - 32}")
    for k in range(4):
        c = k >> 1; i = (k & 1) * 2; sd = sDK1 if c else sDK0
        a(f"v_lshlrev_b32 v3, 16, v{28+k}\nv_and_b32 v4, s{sMSK}, v{28+k}")
        a(f"v_fma_f32 v{16+4*c+i}, v3, s{sd}, v{16+4*c+i}\nv_fma_f32 v{16+4*c+i+1}, v4, s{sd}, v{16+4*c+i+1}")
    for t in range(4):
        a(f"s_waitcnt lgkmcnt({12-4*t})")
        for tp in range(4):
            for r in range(tp, 4):
                acc = AC + (4*half + r)*4
                cin = "0" if (first and t == 0 and tp == 0) else v(acc, 4)
                a(f"v_mfma_f32_16x16x32_bf16 {v(acc,4)}, {v(T0+((r-tp)*4+t)*4,4)}, {v(U0+(tp*4+t)*4,4)}, {cin}")
    a(f"s_lshl_b32 s3, s{sW}, 10\ns_add_u32 s3, s3, {LEX}\nv_add_u32 v3, s3, v2\ns_lshl_b32 s3, s{sW}, 12\ns_add_u32 s3, s3, {LEX}\nv_add_u32 v4, s3, v2")
    for r in range(4): a(f"ds_write_b128 v3, {v(AC+(4*half+r)*4,4)} offset:{r*4096}")
    a("s_waitcnt lgkmcnt(0)\ns_barrier")
    RV = AC + (16 if first else 0)
    for src in range(4): a(f"ds_read_b128 {v(RV+4*src,4)}, v4 offset:{src*1024}")
    for c in range(2):
        a(f"s_waitcnt lgkmcnt({2-2*c})")
        for i in range(4): a(f"v_add_f32 v{RV+8*c+i}, v{RV+8*c+i}, v{RV+8*c+4+i}")
        for i in range(4): a(f"v_add_f32 v{16+4*c+i}, v{16+4*c+i}, v{RV+8*c+i}")
    for i in range(4): a(f"v_cvt_pk_bf16_f32 v{24+i}, v{16+i}, v{20+i}")
    a(f"buffer_store_dwordx4 v[24:27], v8, {srd(SWS)}, s14 offen sc1")
    stamp(f"conv{half} stored")
    if first:
        for t in range(4):
            for tp in range(4):
                for r in range(4, 8):
                    acc = AC + r*4
                    cin = "0" if (t == 0 and tp == 0) else v(acc, 4)
                    a(f"v_mfma_f32_16x16x32_bf16 {v(acc,4)}, {v(T0+((r-tp)*4+t)*4,4)}, {v(U0+(tp*4+t)*4,4)}, {cin}")
    a(f"s_lshl_b32 s11, s{sLayer}, 17\ns_add_u32 s11, s11, {(1+half)*0x8000}")
    a("s_waitcnt vmcnt(0)")
    signal_all(11)
    stamp(f"conv{half} signalled")
conv_half(0)
conv_half(1)
ncs = a.newlabel("ncs")
a(f"s_cmp_lg_u32 s{sLayer}, 0\ns_cbranch_scc1 {ncs}")
a("v_lshrrev_b32 v3, 4, v1\nv_lshlrev_b32 v3, 2, v3\nv_bfe_u32 v4, v1, 2, 2\nv_add_u32 v3, v3, v4\nv_mul_u32_u24 v3, 224, v3\nv_and_b32 v4, 3, v1\nv_lshl_add_u32 v3, v4, 3, v3")
a(f"s_lshl_b32 s3, s{sW}, 5\nv_add_u32 v3, s3, v3\nv_add_u32 v4, {256*224}, v3")
for i in range(4): a(f"v_mov_b32 v{24+i}, s{sONE}")
for f2 in range(2):
    for ks in range(16):
        for hf in range(2):
            a(f"ds_read_b64_tr_b16 {v(32+(f2*16+ks)*4+2*hf,2)}, v{3 + ks//8} offset:{(32*(ks%8)+16*hf)*224 + 128*f2}")
a("s_waitcnt lgkmcnt(0)")
for ks in range(16):
    for f2 in range(2):
        a(f"v_mfma_f32_16x16x32_bf16 {v(16+4*f2,4)}, {v(32+(f2*16+ks)*4,4)}, v[24:27], {'0' if ks == 0 else v(16+4*f2,4)}")
a(f"v_lshrrev_b32 v3, 4, v1\nv_lshlrev_b32 v3, 4, v3\ns_lshl_b32 s3, s{sW}, 6\ns_add_u32 s3, s3, {LCS}\nv_add_u32 v3, s3, v3")
a("ds_write_b128 v3, v[16:19]\nds_write_b128 v3, v[20:23] offset:256")
a("s_waitcnt lgkmcnt(0)")
a.label(ncs)

a(f"s_mov_b32 s{sHalf}, 0")
G1L = ".Lg1"
a.label(G1L)
a(f"s_lshl_b32 s11, s{sLayer}, 2\ns_add_u32 s11, s11, s{sHalf}\ns_add_u32 s11, s11, 1\ns_lshl_b32 s11, s11, 15")
wait_all(11)
stamp("g1 ready")
X0, A0, WB, SS = 32, 96, 152, 208
a(f"s_and_b32 s5, s{sW}, 1\ns_lshr_b32 s6, s{sW}, 1")
a("v_lshrrev_b32 v10, 4, v1\nv_and_b32 v11, 15, v1\nv_lshlrev_b32 v8, 9, v10\nv_lshl_add_u32 v8, v11, 3, v8")
a(f"s_lshl_b32 s3, s{sHalf}, 20\ns_lshl_b32 s4, s{sRT}, 16\ns_add_u32 s3, s3, s4\ns_add_u32 s3, s3, s{sXout}\ns_lshl_b32 s4, s5, 7\ns_add_u32 s3, s3, s4\ns_lshl_b32 s4, s6, 15\ns_add_u32 s3, s3, s4")
for ks in range(8):
    for dst, off in [(0, 0), (4, 256), (2, 2048), (6, 2304)]:
        a(f"buffer_load_dwordx2 {v(X0+8*ks+dst,2)}, v8, {srd(SWS)}, s3 offen offset:{off} sc1")
    if ks < 7: a("s_add_u32 s3, s3, 4096")
a("v_lshlrev_b32 v9, 2, v10\nv_bfe_u32 v3, v1, 2, 2\nv_add_u32 v9, v9, v3\nv_mul_u32_u24 v9, 224, v9\nv_and_b32 v3, 3, v1\nv_lshl_add_u32 v9, v3, 3, v9")
a(f"s_mul_i32 s3, s6, {256*224}\nv_add_u32 v9, s3, v9")
def wread(ks, ft):
    b = WB + (ks & 1) * 28 + ft * 4
    for hf in range(2):
        a(f"ds_read_b64_tr_b16 {v(b+2*hf,2)}, v9 offset:{(32*ks+16*hf)*224 + 32*ft}")
for ft in range(7): wread(0, ft)
for i in range(4): a(f"v_mov_b32 v{SS+i}, 0")
for ks in range(8):
    x = X0 + 8 * ks
    a(f"s_waitcnt vmcnt({28-4*ks})")
    a(f"v_swap_b32 v{x+1}, v{x+4}\nv_swap_b32 v{x+3}, v{x+6}")
    a("s_waitcnt lgkmcnt(0)")
    dots = []
    for q in range(4):
        dots += [f"v_dot2c_f32_bf16 v{SS}, s{sONE}, v{x+q}", f"v_dot2c_f32_bf16 v{SS+1}, v{x+q}, v{x+q}",
                 f"v_dot2c_f32_bf16 v{SS+2}, s{sONE}, v{x+4+q}", f"v_dot2c_f32_bf16 v{SS+3}, v{x+4+q}, v{x+4+q}"]
    for ft in range(7):
        b = WB + (ks & 1) * 28 + ft * 4
        for j in range(2):
            acc = A0 + (ft*2 + j)*4
            a(f"v_mfma_f32_16x16x32_bf16 {v(acc,4)}, {v(b,4)}, {v(x+4*j,4)}, {'0' if ks == 0 else v(acc,4)}")
            a(dots.pop(0))
        if ks < 7: wread(ks + 1, ft)
    for d_ in dots: a(d_)
stamp("g1 mfma")
a(f"s_mul_i32 s3, s{sW}, 7680\ns_add_u32 s3, s3, {LSCR}\nv_add_u32 v3, s3, v2\nv_lshrrev_b32 v5, 1, v2\nv_add_u32 v5, s3, v5")
a(f"s_xor_b32 s4, s{sW}, 2\ns_mul_i32 s3, s4, 7680\ns_add_u32 s3, s3, {LSCR}\nv_add_u32 v4, s3, v2\nv_lshrrev_b32 v6, 1, v2\nv_add_u32 v6, s3, v6")
a(f"v_lshlrev_b32 v12, 4, v10\nv_add_u32 v12, {LCS}, v12")
RV, CSR = 32, 64
k1 = a.newlabel("k1"); kj = a.newlabel("kj")
a(f"s_cmp_lg_u32 s6, 0\ns_cbranch_scc1 {k1}")
for kh in range(2):
    if kh: a.label(k1)
    o = 1 - kh
    for ft in range(7): a(f"ds_write_b128 v3, {v(A0+(ft*2+o)*4,4)} offset:{ft*1024}")
    a(f"ds_write_b64 v5, {v(SS+2*o,2)} offset:7168")
    for ft in range(7): a(f"ds_read_b128 {v(CSR+4*ft,4)}, v12 offset:{ft*64}")
    a("s_waitcnt lgkmcnt(0)\ns_barrier")
    a("ds_read_b64 v[14:15], v6 offset:7168")
    for ft in range(7): a(f"ds_read_b128 {v(RV+4*ft,4)}, v4 offset:{ft*1024}")
    a("s_waitcnt lgkmcnt(7)")
    a(f"v_add_f32 v14, v14, v{SS+2*kh}\nv_add_f32 v15, v15, v{SS+2*kh+1}")
    xsum([14, 15], 16, [16, 32])
    a("s_waitcnt lgkmcnt(0)")
    for ft in range(7):
        for r in range(4): a(f"v_add_f32 v{RV+4*ft+r}, v{RV+4*ft+r}, v{A0+(ft*2+kh)*4+r}")
    if kh == 0: a(f"s_branch {kj}")
a.label(kj)
a(f"v_pk_mul_f32 v[14:15], v[14:15], s[{sINV}:{sINV+1}]\nv_fma_f32 v15, -v14, v14, v15\nv_max_f32 v15, 0, v15\nv_cvt_pk_bf16_f32 v15, v14, v15")
a(f"v_lshlrev_b32 v14, 16, v15\nv_and_b32 v15, s{sMSK}, v15\nv_add_f32 v15, s{sEPS}, v15\nv_cvt_pk_bf16_f32 v15, v15, v15\nv_and_b32 v15, s{sMSK}, v15")
a(f"v_sqrt_f32 v15, v15\nv_cvt_pk_bf16_f32 v15, v15, v15\nv_and_b32 v15, s{sMSK}, v15\nv_rcp_f32 v16, v15\nv_mul_f32 v16, s{sNL2E}, v16")
a(f"s_lshl_b32 s3, s{sHalf}, 5\ns_lshl_b32 s4, s{sRT}, 1\ns_add_u32 s3, s3, s4\ns_add_u32 s3, s3, s5\ns_mul_i32 s3, s3, {HT}\ns_mul_i32 s4, s{sCT}, 7168\ns_add_u32 s3, s3, s4\ns_add_u32 s3, s3, s{sH}\ns_lshl_b32 s4, s6, 8\ns_add_u32 s3, s3, s4")
a("v_and_b32 v3, 1, v10\nv_lshlrev_b32 v8, 10, v3\nv_lshrrev_b32 v4, 1, v10\nv_lshl_add_u32 v8, v4, 9, v8\nv_lshl_add_u32 v8, v11, 4, v8")
a("v_lshlrev_b32 v9, 9, v4\nv_lshl_add_u32 v9, v11, 4, v9\nv_lshl_add_u32 v9, v3, 3, v9")
PKR, ET = 96, 112
def silu_tile(ft):
    for r in range(4): a(f"v_fma_f32 v{RV+4*ft+r}, -v14, v{CSR+4*ft+r}, v{RV+4*ft+r}")
    for r in range(4): a(f"v_mul_f32 v{ET+r}, v{RV+4*ft+r}, v16")
    for r in range(4): a(f"v_exp_f32 v{ET+r}, v{ET+r}")
    for r in range(4): a(f"v_fma_f32 v{ET+r}, v{ET+r}, v15, v15")
    for r in range(4): a(f"v_rcp_f32 v{ET+r}, v{ET+r}")
    for r in range(4): a(f"v_mul_f32 v{ET+r}, v{ET+r}, v{RV+4*ft+r}")
    a(f"v_cvt_pk_bf16_f32 v{PKR+2*ft}, v{ET}, v{ET+1}\nv_cvt_pk_bf16_f32 v{PKR+2*ft+1}, v{ET+2}, v{ET+3}")
for pr in range(3):
    silu_tile(2*pr); silu_tile(2*pr + 1)
    p = PKR + 4*pr
    a(f"v_permlane16_swap_b32 v{p}, v{p+2}\nv_permlane16_swap_b32 v{p+1}, v{p+3}")
    a(f"buffer_store_dwordx4 {v(p,4)}, v8, {srd(SWS)}, s3 offen sc1\ns_add_u32 s3, s3, 2048")
silu_tile(6)
a(f"buffer_store_dwordx2 {v(PKR+12,2)}, v9, {srd(SWS)}, s3 offen sc1")
stamp("g1 stored")
group_off(11)
a("s_waitcnt vmcnt(0)")
signal_group(11)
stamp("g1 signalled")
stamp_flush(0)
a(f"s_add_u32 s{sHalf}, s{sHalf}, 1\ns_cmp_lt_u32 s{sHalf}, 2\ns_cbranch_scc1 {G1L}")

a(f"s_mov_b32 s{sHalf}, 0")
G2L = ".Lg2"
a.label(G2L)
group_off(11)
wait_group(11)
stamp("g2 ready")
H0, C2, RS = 32, 144, 176
a(f"s_lshl_b32 s3, s{sHalf}, 5\ns_add_u32 s5, s3, s{sLT}\ns_mul_i32 s3, s5, {HT}\ns_mul_i32 s4, s{sW}, 28672\ns_add_u32 s3, s3, s4\ns_add_u32 s3, s3, s{sH}")
for ks in range(28):
    a(f"buffer_load_dwordx4 {v(H0+4*ks,4)}, v2, {srd(SWS)}, s3 offen offset:{(ks%4)*1024} sc1")
    if ks % 4 == 3 and ks < 27: a("s_add_u32 s3, s3, 4096")
a("v_and_b32 v10, 15, v1\nv_lshlrev_b32 v10, 1, v10\nv_bfe_u32 v3, v1, 4, 1\nv_add_u32 v10, v10, v3\nv_lshrrev_b32 v11, 5, v1")
a("v_lshlrev_b32 v8, 9, v11\nv_lshl_add_u32 v8, v10, 2, v8")
a(f"s_lshr_b32 s3, s5, 1\ns_lshl_b32 s3, s3, 16\ns_and_b32 s4, s5, 1\ns_lshl_b32 s4, s4, 7\ns_add_u32 s3, s3, s4\ns_lshl_b32 s4, s{sDT}, 13\ns_add_u32 s3, s3, s4\ns_lshl_b32 s4, s{sW}, 11\ns_add_u32 s14, s3, s4\ns_add_u32 s3, s14, s{sXout}")
for k in range(4):
    a(f"buffer_load_dword v{RS+k}, v8, {srd(SWS)}, s3 offen offset:{(k>>1)*1024 + (k&1)*256} sc1")
for ks in range(28):
    a(f"s_waitcnt vmcnt({31-ks})")
    for mt in range(2):
        a(f"v_mfma_f32_32x32x16_bf16 {v(C2+16*mt,16)}, {ac((ks*2+mt)*4,4)}, {v(H0+4*ks,4)}, {'0' if ks == 0 else v(C2+16*mt,16)}")
stamp("g2 mfma")
for sg in range(1, 4):
    a(f"s_xor_b32 s3, s{sW}, {sg}\ns_mul_i32 s3, s3, 6144\ns_add_u32 s3, s3, {LSCR + (sg-1)*2048}\nv_add_u32 v{2+sg}, s3, v2")
for sg in range(1, 4):
    a(f"ds_write_b128 v{2+sg}, {v(C2+8*sg,4)}\nds_write_b128 v{2+sg}, {v(C2+8*sg+4,4)} offset:1024")
a(f"s_mul_i32 s3, s{sW}, 6144\ns_add_u32 s3, s3, {LSCR}\nv_add_u32 v6, s3, v2")
a("s_waitcnt lgkmcnt(0)\ns_barrier")
for k in range(6): a(f"ds_read_b128 {v(32+4*k,4)}, v6 offset:{k*1024}")
a("s_waitcnt vmcnt(0)")
for k in range(4): a(f"v_lshlrev_b32 v{64+2*k}, 16, v{RS+k}\nv_and_b32 v{65+2*k}, s{sMSK}, v{RS+k}")
for s3_ in range(3):
    a(f"s_waitcnt lgkmcnt({4-2*s3_})")
    for r in range(8): a(f"v_add_f32 v{C2+r}, v{C2+r}, v{32+8*s3_+r}")
for k in range(4): a(f"v_cvt_pk_bf16_f32 v{72+k}, v{C2+2*k}, v{C2+2*k+1}")
for k in range(4): a(f"v_lshlrev_b32 v{C2+2*k}, 16, v{72+k}\nv_and_b32 v{C2+2*k+1}, s{sMSK}, v{72+k}")
for r in range(8): a(f"v_add_f32 v{C2+r}, v{C2+r}, v{64+r}")
for k in range(4): a(f"v_cvt_pk_bf16_f32 v{72+k}, v{C2+2*k}, v{C2+2*k+1}")
fin = a.newlabel("fin"); g2e = a.newlabel("g2e")
a(f"s_cmp_lg_u32 s{sLayer}, 0\ns_cbranch_scc1 {fin}")
a(f"s_add_u32 s3, s14, {XP[2]}")
for k in range(4):
    a(f"buffer_store_dword v{72+k}, v8, {srd(SWS)}, s3 offen offset:{(k>>1)*1024 + (k&1)*256} sc1")
a("v_mov_b32 v14, 0\nv_mov_b32 v15, 0")
for k in range(4): a(f"v_dot2c_f32_bf16 v14, s{sONE}, v{72+k}\nv_dot2c_f32_bf16 v15, v{72+k}, v{72+k}")
a("v_permlane32_swap_b32 v14, v15\nv_add_f32 v14, v14, v15")
a(f"v_lshlrev_b32 v9, 3, v10\nv_lshl_add_u32 v9, v11, 2, v9\ns_lshl_b32 s3, s5, 8\ns_add_u32 s3, s3, {ST2}")
a(f"buffer_atomic_add_f32 v14, v9, {srd(SWS)}, s3 offen sc1")
stamp("g2 stored")
a(f"s_add_u32 s11, s{sHalf}, 3\ns_lshl_b32 s11, s11, 15")
a("s_waitcnt vmcnt(0)")
signal_all(11)
a(f"s_branch {g2e}")
a.label(fin)
a("v_permlane32_swap_b32 v72, v74\nv_permlane32_swap_b32 v73, v75")
a(f"v_lshlrev_b32 v9, 10, v10\nv_lshl_add_u32 v9, v11, 4, v9\ns_lshl_b32 s3, s5, 15\ns_lshl_b32 s4, s{sDT}, 7\ns_add_u32 s3, s3, s4\ns_lshl_b32 s4, s{sW}, 5\ns_add_u32 s3, s3, s4")
a(f"buffer_store_dwordx4 v[72:75], v9, {srd(SOUT)}, s3 offen")
a("s_barrier")
a.label(g2e)
stamp("g2 signalled")
stamp_flush(1)
a(f"s_add_u32 s{sHalf}, s{sHalf}, 1\ns_cmp_lt_u32 s{sHalf}, 2\ns_cbranch_scc1 {G2L}")
a(f"s_mov_b32 s{sXin}, {XP[2]}\ns_mov_b32 s{sSTin}, {ST2}\ns_mov_b32 s{sXout}, {XP[3]}\ns_mov_b32 s{sH}, {HB[1]}")
a(f"s_add_u32 s{sLayer}, s{sLayer}, 1\ns_cmp_lt_u32 s{sLayer}, 2\ns_cbranch_scc1 {LAYER}")
if STAMP:
    a(f"s_cmp_lg_u32 s2, 9\ns_cbranch_scc1 {DONE}\ns_cmp_lg_u32 s{sW}, 0\ns_cbranch_scc1 {DONE}")
    a("v_readlane_b32 s3, v7, 0\ns_nop 3\nv_subrev_u32 v7, s3, v7")
    a("v_lshlrev_b32 v3, 2, v1\nv_subrev_u32 v4, 28, v3\nv_cmp_lt_u32 vcc, 12, v1\ns_nop 1\nv_cndmask_b32 v3, v3, v4, vcc")
    a("s_mov_b32 exec_lo, 0x1fe03e\ns_mov_b32 exec_hi, 0")
    a("global_store_dword v3, v7, s[38:39]")
a.label(DONE)
a("s_endpgm")

a.lines, added = hazard.fix(a.lines)
print("nops added", added, "lines", len(a.lines), file=sys.stderr)
hdr = "".join(l for l in open(f"cdna_kernels/{NAME}.s.ref").readlines() if l.startswith(";") and "@launch" not in l and "Override" not in l and "grid=ceil" not in l)
a.launches = [f"; @launch grid=(256,1,1) block=(256,1,1) lds={LDS_BYTES}"]
open(OUT, "w").write(a.text(hdr))

import json; json.dump(STAMPS, open(OUT + ".stamps.json", "w"))
```

```python
import re
def is_vmem(s):
    return s.startswith(("buffer_", "global_")) and not s.startswith(("buffer_wbl2", "buffer_inv"))
def is_lds(s): return s.startswith("ds_")
def resolve(lines):
    out = []; vm = []; lg = []
    for ln in lines:
        s = ln.strip()
        if s.startswith("@vm ") or s.startswith("@lg "):
            q, cap, name = (vm, 63, "vmcnt") if s[1] == "v" else (lg, 15, "lgkmcnt")
            tags = s[4:].split(",")
            idx = max((i for i, t in enumerate(q) if t in tags), default=None)
            assert idx is not None or True
            if idx is None: continue
            n = len(q) - 1 - idx
            out.append(f"    s_waitcnt {name}({min(n, cap)})")
            if n <= cap: del q[:idx + 1]
            else: del q[:len(q) - cap]
            continue
        m = re.search(r";@(\S+)", s)
        tag = m.group(1) if m else "_"
        code = s.split(";")[0].strip()
        if is_vmem(code):
            if tag != "!": vm.append(tag)
        elif is_lds(code):
            if tag != "!": lg.append(tag)
        elif code.startswith("s_waitcnt") and tag != "!":
            mv = re.search(r"vmcnt\((\d+)\)", code); ml = re.search(r"lgkmcnt\((\d+)\)", code)
            if mv:
                n = int(mv.group(1));
                if len(vm) > n: del vm[:len(vm) - n]
            if ml:
                n = int(ml.group(1))
                if len(lg) > n: del lg[:len(lg) - n]
        out.append(ln)
    return out
def interleave(fg, bg, start=0, every=None, end=None):
    end = len(fg) if end is None else end
    ok = []; depth = 0
    for i in range(len(fg) + 1):
        prev = fg[i-1].strip() if i > 0 else ""
        if prev == "@{": depth += 1
        if prev == "@}": depth -= 1
        good = depth == 0 and not prev.startswith(("s_cmp", "v_cmp")) and start <= i <= end
        if good: ok.append(i)
    if not bg: return list(fg)
    if every is None: pos = [ok[min(len(ok)-1, (k * len(ok)) // len(bg))] for k in range(len(bg))]
    else: pos = [ok[min(len(ok)-1, k * every)] for k in range(len(bg))]
    out = []; k = 0
    for i in range(len(fg) + 1):
        while k < len(bg) and pos[k] == i:
            out += bg[k]; k += 1
        if i < len(fg): out.append(fg[i])
    assert k == len(bg)
    return out
def strip_marks(lines): return [l for l in lines if l.strip() not in ("@{", "@}")]
```

```python
import sys, struct, json
sys.path.insert(0, "work")
from asmgen import Asm
import hazard
from sched import resolve, interleave, strip_marks
NAME = "interleave_layers__ssm_conv_s4d__dense_activation_silu__prompt"
STAMP = "--stamp" in sys.argv
OPT = dict(x.lstrip("-").split("=") for x in sys.argv[1:] if x.startswith("--") and "=" in x)
def opt(k, d): return type(d)(OPT.get(k, d))
OUT = [x for x in sys.argv[1:] if not x.startswith("--")]
OUT = OUT[0] if OUT else f"cdna_kernels/{NAME}.s"
def f2u(x): return struct.unpack("<I", struct.pack("<f", x))[0]
LOG2E = 1.4426950408889634
GCNT = 6 * 0x8000
ST0 = 0x80000; ST2 = 0x84000
W2F = 0x100000
XP = [None, 0x300000, 0x500000, 0x700000]
HB = [0x900000, 0x1000000]
DBG = 0x1800000
WS_BYTES = 0x2000000
HT = 114688
LPK = 114688; PKS = 8256; LCS = 131200; LSCR = 131712
LU = LSCR; US = 4608; LEX = LSCR + 9216
ES = 28672; LGT = LEX
LDS_BYTES = 163840
SWS, SW1, SW2, SOUT = 44, 48, 52, 56
sW, sCPI, sRT, sCT, sLT, sDT, sNON, sGC = 60, 61, 62, 63, 64, 65, 66, 67
sDK, sONE, sMSK, sINV, sEPS, sNL2E = 68, 70, 71, 72, 74, 75
sEXS = 76
sB0, sB1, sO, sW2B, sGS = 78, 79, 80, 81, 82
sSTAMP = 84
SPIN = 60000
vOUT, vPL, vSG, vPD, vONE = 0, 1, 2, 3, 4
vCX, vCS, vUW, vUR, vTB, vEW, vER, vGX, vWA, vXW, vXR, vSW, vSR, vCSA, vH4, vH2, vHL, vRX, vX2, vE1, vE0, vSA = \
    8, 9, 10, 11, 12, 13, 14, 15, 16, 17, 18, 19, 20, 21, 22, 23, 24, 25, 26, 27, 30, 31
vDMA = 24

class Buf:
    def __init__(self): self.l = []
    def __call__(self, s):
        for ln in s.strip("\n").split("\n"): self.l.append("    " + ln.strip())
    def label(self, n): self.l.append(n + ":")
    def add(self, lines): self.l += lines
uid = [0]
def lab(b="L"):
    uid[0] += 1; return f".{b}_{uid[0]}"
def srd(n): return f"s[{n}:{n+3}]"
def v(n, k=1): return f"v{n}" if k == 1 else f"v[{n}:{n+k-1}]"
def ac(n, k=1): return f"a{n}" if k == 1 else f"a[{n}:{n+k-1}]"
def flat(groups): return [l for g in groups for l in g]
def gen(fn, *args, **kw):
    t = Buf(); fn(t, *args, **kw); return t.l
WS = srd(SWS)
tail = Buf()
STAMPS = []
def stamp(b, name):
    if not STAMP: return
    i = len(STAMPS); STAMPS.append(name)
    assert i < 64
    b(f"@{{\ns_memrealtime s[{sSTAMP}:{sSTAMP+1}]\ns_waitcnt lgkmcnt(0)\nv_writelane_b32 v7, s{sSTAMP}, {i}\n@}}")

def poll_all(b, cnt):
    b(f"s_mov_b32 s{sO}, {cnt*0x8000}\nbuffer_load_dword v{vPD}, v{vPL}, {WS}, s{sO} offen sc1 ;@poll")
def poll_grp(b, idx):
    b(f"@{{\ns_add_u32 s{sO}, s{sGC}, {idx*16*1024}\nv_and_b32 v5, 0x300, v{vPL}\nbuffer_load_dword v{vPD}, v5, {WS}, s{sO} offen sc1 ;@poll\n@}}")
def check(b, kind, idx):
    slow = lab("slow"); back = lab("back"); lp = lab("lp")
    b("@vm poll")
    b(f"@{{\nv_cmp_gt_u32 vcc, 16, v{vPD}\ns_cbranch_vccnz {slow}")
    b.label(back); b("@}")
    tail.label(slow)
    tail(f"s_mov_b32 s10, {SPIN}")
    if kind == "all": tail(f"s_mov_b32 s11, {idx*0x8000}\nv_mov_b32 v5, v{vPL}")
    else: tail(f"s_add_u32 s11, s{sGC}, {idx*16*1024}\nv_and_b32 v5, 0x300, v{vPL}")
    tail.label(lp)
    tail(f"buffer_load_dword v{vPD}, v5, {WS}, s11 offen sc1\ns_waitcnt vmcnt(0)")
    tail(f"v_cmp_gt_u32 vcc, 16, v{vPD}\ns_cbranch_vccz {back}")
    tail(f"s_sub_u32 s10, s10, 1\ns_cmp_lg_u32 s10, 0\ns_cbranch_scc1 {lp}\ns_branch {back}")
def sig_all(b, cnt, tag):
    b(f"@vm {tag}\n@{{\ns_barrier\ns_mov_b32 s{sO}, {cnt*0x8000}\ns_mov_b64 exec, s[{sEXS}:{sEXS+1}]")
    b(f"buffer_atomic_add v{vONE}, v{vSG}, {WS}, s{sO} offen sc1\ns_mov_b64 exec, -1\n@}}")
def sig_grp(b, idx, tag):
    b(f"@vm {tag}\n@{{\ns_add_u32 s{sO}, s{sGS}, {idx*16*1024}\ns_mov_b64 exec, 1")
    b(f"buffer_atomic_add v{vONE}, off, {WS}, s{sO} sc1\ns_mov_b64 exec, -1\ns_barrier\n@}}")
def xsum(b, regs, tmp, steps):
    for s in steps:
        for i, r in enumerate(regs): b(f"v_mov_b32 v{tmp+i}, v{r}")
        for i, r in enumerate(regs): b(f"v_permlane{s}_swap_b32 v{r}, v{tmp+i}")
        for i, r in enumerate(regs): b(f"v_add_f32 v{r}, v{r}, v{tmp+i}")
def rnd(b, d, s): b(f"v_cvt_pk_bf16_f32 v{d}, 0, v{s}")

M = Buf()
DONE = ".Ldone"
M.label(".Lkstart")
M("s_cmp_ge_u32 s2, 256")
M(f"s_cbranch_scc1 {DONE}")
M("s_load_dwordx16 s[16:31], s[0:1], 0\ns_load_dwordx8 s[32:39], s[0:1], 64\ns_load_dwordx2 s[40:41], s[0:1], 96")
M("s_memrealtime s[14:15]")
M("s_getpc_b64 s[42:43]")
M("v_and_b32 v1, 63, v0\nv_lshlrev_b32 v2, 4, v1\nv_lshrrev_b32 v3, 6, v0")
M(f"v_readfirstlane_b32 s{sW}, v3")
if STAMP: M("v_mov_b32 v7, 0")
M("s_and_b32 s3, s2, 7\ns_lshr_b32 s4, s2, 3")
M(f"s_lshl_b32 s5, s4, 2\ns_add_u32 s5, s5, s{sW}\ns_min_u32 s5, s5, ((.Lkend-.Lkstart-128)>>10)-1\ns_lshl_b32 s5, s5, 10\nv_add_u32 v5, s5, v2")
M("global_load_dwordx4 v[200:203], v5, s[42:43]")
M(f"s_lshl_b32 s{sCPI}, s3, 5\ns_add_u32 s{sCPI}, s{sCPI}, s4")
M(f"s_and_b32 s{sCT}, s4, 15")
M(f"s_lshl_b32 s{sRT}, s3, 1\ns_lshr_b32 s5, s4, 4\ns_add_u32 s{sRT}, s{sRT}, s5")
M(f"s_lshl_b32 s{sLT}, s{sRT}, 1\ns_bfe_u32 s5, s4, 0x10003\ns_add_u32 s{sLT}, s{sLT}, s5\ns_and_b32 s{sDT}, s4, 7")
M(f"s_lshl_b32 s{sGC}, s{sRT}, 10\ns_add_u32 s{sGC}, s{sGC}, {GCNT}\ns_lshl_b32 s5, s{sW}, 8\ns_add_u32 s{sGS}, s{sGC}, s5")
M(f"s_mov_b32 s{sONE}, 0x3f803f80\ns_mov_b32 s{sMSK}, 0xffff0000\ns_mov_b32 s{sINV}, {f2u(1/512):#x}\ns_mov_b32 s{sINV+1}, {f2u(1/512):#x}")
M(f"s_mov_b32 s{sEPS}, {f2u(1e-5):#x}\ns_mov_b32 s{sNL2E}, {f2u(-LOG2E):#x}")
M(f"s_lshl_b32 s5, s{sW}, 1\ns_lshl_b32 s{sEXS}, 3, s5\ns_mov_b32 s{sEXS+1}, 0")
M(f"s_lshl_b32 s5, s2, 13\ns_lshl_b32 s6, s{sW}, 11\ns_add_u32 s5, s5, s6\nv_add_u32 v62, s5, v2")
M(f"s_lshl_b32 s5, s{sCPI}, 9\nv_lshlrev_b32 v63, 1, v0\nv_add_u32 v63, s5, v63")
M(f"s_mov_b32 s{SWS+2}, {WS_BYTES:#x}\ns_mov_b32 s{SWS+3}, 0x20000")
M("s_waitcnt lgkmcnt(0)")
stamp(M, "start")
M(f"s_mov_b32 s{SWS}, s40\ns_mov_b32 s{SWS+1}, s41")
n0 = lab("n0"); n1 = lab("n1")
M(f"s_cmp_ge_u32 s2, 128\ns_cbranch_scc1 {n1}")
M(f"s_or_b32 s5, s2, s{sW}\ns_cmp_lg_u32 s5, 0\ns_cbranch_scc1 {n0}")
M("s_or_b32 s14, s14, 1\nv_mov_b32 v5, s14\nv_lshlrev_b32 v6, 2, v1\nglobal_store_dword v6, v5, s[38:39] sc1 ;@!")
M.label(n0)
M(f"s_lshl_b32 s5, s2, 2\ns_add_u32 s5, s5, s{sW}\ns_lshl_b32 s6, s5, 9\ns_lshl_b32 s5, s5, 5\ns_add_u32 s5, s5, {ST2}")
M("v_mov_b32 v5, 0\nv_lshlrev_b32 v6, 8, v1\nv_lshlrev_b32 v8, 2, v1\ns_mov_b64 exec, 3")
M(f"buffer_store_dword v5, v6, {WS}, s6 offen sc1 ;@!\ns_mov_b64 exec, 0xff\nbuffer_store_dword v5, v8, {WS}, s5 offen sc1 ;@!\ns_mov_b64 exec, -1")
M.label(n1)
M("global_load_dwordx4 v[32:35], v62, s[16:17] ;@rows\nglobal_load_dwordx4 v[36:39], v62, s[16:17] offset:1024 ;@rows")
for i in range(4): M(f"global_load_ushort v{48+i}, v63, s[{18+2*i}:{19+2*i}] ;@par")
M(f"s_lshl_b32 s5, s{sCPI}, 2")
M("s_load_dword s12, s[26:27], s5\ns_load_dword s13, s[28:29], s5")
for sd, sb, nb in [(SW1, 32, 512*1792*2), (SW2, 34, 512*1792*2), (SOUT, 36, 2048*512*2)]:
    M(f"s_mov_b32 s{sd}, s{sb}\ns_mov_b32 s{sd+1}, s{sb+1}\ns_mov_b32 s{sd+2}, {nb:#x}\ns_mov_b32 s{sd+3}, 0x20000")
M("v_and_b32 v60, 15, v1\nv_lshrrev_b32 v61, 4, v1")
M(f"v_lshlrev_b32 v206, 14, v60\nv_lshl_add_u32 v206, v61, 12, v206\ns_lshl_b32 s5, s{sW}, 18\ns_lshl_b32 s6, s{sCPI}, 2\ns_add_u32 s5, s5, s6\nv_add_u32 v206, s5, v206\nv_add_u32 v31, 0x100000, v206")
gath = [[f"    global_load_dword v{248+4*h+i}, v{31 if h else 206}, s[16:17] offset:{i*1024} ;@xg{h}"] for h in range(2) for i in range(4)]

M(f"s_lshl_b32 s5, s4, 2\ns_add_u32 s5, s5, s{sW}\ns_mul_i32 s5, s5, {112*128}\nv_lshlrev_b32 v212, 7, v1\nv_add_u32 v212, s5, v212\ns_mov_b32 s{sB0}, {48*128}")
touch = [[f"    buffer_load_dword v213, v212, {srd(SW1)}, 0 offen"], [f"    buffer_load_dword v214, v212, {srd(SW1)}, s{sB0} offen"]]
sD0, sD1 = 88, 89
M(f"s_mul_i32 s{sD0}, s{sW}, {128*3584}\ns_mul_i32 s5, s{sCT}, 224\ns_add_u32 s{sD0}, s{sD0}, s5\ns_mul_i32 s{sD1}, s{sW}, 28672")
dma = [[f"    s_add_u32 m0, s{sD1}, {p*1024}", f"    s_add_u32 s{sB1}, s{sD0}, {(p//7)*32*3584}", f"    buffer_load_dwordx4 v{vDMA+p%7}, {srd(SW1)}, s{sB1} offen lds ;@w1"] for p in range(28)]
NE = opt("ne", 11)
dma0, dma1 = dma[28-NE:], dma[:28-NE]
def setup(b):
    b(f"s_and_b32 s5, s{sW}, 1\ns_lshr_b32 s6, s{sW}, 1")
    b(f"v_bfe_u32 v{vCX}, v1, 2, 2\nv_lshlrev_b32 v{vCX}, 16, v{vCX}\nv_and_b32 v5, 3, v1\nv_lshl_add_u32 v{vCX}, v5, 6, v{vCX}\nv_lshl_add_u32 v{vCX}, v61, 4, v{vCX}")
    b(f"s_lshl_b32 s7, s{sW}, 18\ns_lshl_b32 s8, s{sCPI}, 8\ns_add_u32 s7, s7, s8\nv_add_u32 v{vCX}, s7, v{vCX}")
    b(f"v_lshlrev_b32 v{vCS}, 7, v60\nv_lshl_add_u32 v{vCS}, v61, 5, v{vCS}\ns_lshl_b32 s7, s{sW}, 11\nv_add_u32 v{vCS}, s7, v{vCS}")
    b(f"v_lshlrev_b32 v5, 5, v60\nv_lshl_add_u32 v{vUW}, v61, 3, v5\ns_lshl_b32 s7, s{sW}, 9\ns_add_u32 s7, s7, {LU+512}\nv_add_u32 v{vUW}, s7, v{vUW}")
    b(f"v_lshl_add_u32 v{vUR}, v61, 4, v5\ns_mul_i32 s7, s6, {US}\ns_lshl_b32 s8, s5, 8\ns_sub_u32 s7, s7, s8\ns_add_u32 s7, s7, {LU}\nv_add_u32 v{vUR}, s7, v{vUR}")
    b(f"v_lshlrev_b32 v5, 3, v61\nv_sub_u32 v5, v60, v5\nv_lshlrev_b32 v5, 2, v5\ns_mul_i32 s7, s6, {PKS}\ns_lshl_b32 s8, s5, 9\ns_add_u32 s7, s7, s8\ns_add_u32 s7, s7, {LPK+26*4}\nv_add_u32 v{vTB}, s7, v5")
    b(f"s_lshl_b32 s7, s{sW}, 10\ns_add_u32 s7, s7, {LEX}\nv_add_u32 v{vEW}, s7, v2\ns_lshl_b32 s7, s{sW}, 12\ns_add_u32 s7, s7, {LEX}\nv_add_u32 v{vER}, s7, v2")
    b(f"v_lshlrev_b32 v{vGX}, 9, v61\nv_lshl_add_u32 v{vGX}, v60, 3, v{vGX}\ns_lshl_b32 s7, s{sRT}, 16\ns_lshl_b32 s8, s5, 7\ns_add_u32 s7, s7, s8\ns_lshl_b32 s8, s6, 15\ns_add_u32 s7, s7, s8\nv_add_u32 v{vGX}, s7, v{vGX}")
    b(f"v_lshlrev_b32 v5, 2, v61\nv_bfe_u32 v6, v1, 2, 2\nv_add_u32 v5, v5, v6\nv_mul_u32_u24 v5, 224, v5\nv_and_b32 v6, 3, v1\nv_lshl_add_u32 v5, v6, 3, v5\ns_mul_i32 s7, s6, {256*224}\nv_add_u32 v{vWA}, s7, v5")
    b(f"s_mul_i32 s7, s{sW}, 7680\ns_add_u32 s7, s7, {LSCR}\nv_add_u32 v{vXW}, s7, v2\nv_lshlrev_b32 v5, 3, v1\nv_add_u32 v{vSW}, s7, v5")
    b(f"s_xor_b32 s7, s{sW}, 2\ns_mul_i32 s7, s7, 7680\ns_add_u32 s7, s7, {LSCR}\nv_add_u32 v{vXR}, s7, v2\nv_add_u32 v{vSR}, s7, v5")
    b(f"v_lshlrev_b32 v{vCSA}, 4, v61\nv_add_u32 v{vCSA}, {LCS}, v{vCSA}")
    b(f"s_lshl_b32 s7, s{sRT}, 1\ns_add_u32 s7, s7, s5\ns_mul_i32 s7, s7, {HT}\ns_mul_i32 s8, s{sCT}, 7168\ns_add_u32 s7, s7, s8\ns_lshl_b32 s8, s6, 8\ns_add_u32 s7, s7, s8")
    b(f"v_and_b32 v5, 1, v61\nv_lshrrev_b32 v6, 1, v61\nv_lshlrev_b32 v{vH2}, 9, v6\nv_lshl_add_u32 v{vH2}, v60, 4, v{vH2}\nv_add_u32 v{vH2}, s7, v{vH2}\nv_lshl_add_u32 v{vH4}, v5, 10, v{vH2}\nv_lshl_add_u32 v{vH2}, v5, 3, v{vH2}")
    b(f"v_lshlrev_b32 v204, 8, v60\ns_lshl_b32 s7, s3, 12\nv_add_u32 v204, s7, v204")
    b(f"v_lshlrev_b32 v205, 12, v1\ns_lshl_b32 s7, s{sCT}, 8\nv_add_u32 v205, s7, v205\nv_mov_b32 v{vONE}, 1")
    for k in range(7):
        b(f"v_add_u32 v5, {64*k}, v1\nv_mul_u32_u24 v6, 4682, v5\nv_lshrrev_b32 v6, 16, v6\nv_mul_u32_u24 v62, 14, v6\nv_sub_u32 v5, v5, v62\nv_mul_u32_u24 v6, 3584, v6\nv_lshl_add_u32 v{vDMA+k}, v5, 4, v6")
    b(f"s_load_dword s{sNON}, s[38:39], 0")
    for k in range(9):
        b(f"v_lshlrev_b32 v5, 3, v0\nv_add_u32 v5, {k-1}, v5")
        if k == 0: b("v_max_i32 v5, 0, v5")
        b("v_cvt_f32_u32 v5, v5\nv_cvt_pk_bf16_f32 v5, 0, v5\nv_cvt_u32_f32 v6, v5")
        b("v_lshrrev_b32 v5, 23, v5\nv_subrev_u32 v5, 134, v5\nv_med3_i32 v5, v5, 0, 3")
        b("v_lshrrev_b32 v62, 7, v6\nv_and_b32 v63, 7, v6\nv_lshl_or_b32 v62, v62, 3, v63\nv_lshrrev_b32 v62, v5, v62\nv_lshl_add_u32 v62, v5, 3, v62")
        b(f"v_bfe_u32 v6, v6, 3, 4\nv_lshlrev_b32 v6, 2, v6\nv_lshl_add_u32 v6, v62, 6, v6\nv_add_u32 v{IDX+k}, {LGT}, v6")
def setup_g2(b):
    b("v_mbcnt_lo_u32_b32 v244, -1, 0\nv_mbcnt_hi_u32_b32 v244, -1, v244\nv_lshlrev_b32 v247, 4, v244")
    b(f"s_mul_i32 s7, s{sLT}, {HT}\ns_mul_i32 s8, s{sW}, 28672\ns_add_u32 s7, s7, s8\nv_add_u32 v{vHL}, s7, v247")
    b("v_and_b32 v245, 15, v244\nv_lshlrev_b32 v245, 1, v245\nv_bfe_u32 v5, v244, 4, 1\nv_add_u32 v245, v245, v5\nv_lshrrev_b32 v246, 5, v244")
    b(f"s_lshr_b32 s7, s{sLT}, 1\ns_lshl_b32 s7, s7, 16\ns_and_b32 s8, s{sLT}, 1\ns_lshl_b32 s8, s8, 7\ns_add_u32 s7, s7, s8\ns_lshl_b32 s8, s{sDT}, 13\ns_add_u32 s7, s7, s8\ns_lshl_b32 s8, s{sW}, 11\ns_add_u32 s7, s7, s8")
    b(f"v_lshlrev_b32 v{vX2}, 9, v246\nv_lshl_add_u32 v{vX2}, v245, 2, v{vX2}\nv_add_u32 v{vX2}, s7, v{vX2}\ns_and_b32 s8, s{sDT}, 4\nv_xor_b32 v{vRX}, s8, v{vX2}")
    for sg in range(1, 4):
        b(f"s_xor_b32 s7, s{sW}, {sg}\ns_mul_i32 s7, s7, 6144\ns_add_u32 s7, s7, {LSCR+(sg-1)*2048}\nv_add_u32 v{vE1+sg-1}, s7, v247")
    b(f"s_mul_i32 s7, s{sW}, 6144\ns_add_u32 s7, s7, {LSCR}\nv_add_u32 v{vE0}, s7, v247")
    b(f"v_lshlrev_b32 v{vSA}, 3, v245\nv_lshl_add_u32 v{vSA}, v246, 2, v{vSA}\ns_lshl_b32 s7, s{sLT}, 8\nv_add_u32 v{vSA}, s7, v{vSA}")
    b(f"v_lshlrev_b32 v{vOUT}, 10, v245\nv_lshl_add_u32 v{vOUT}, v246, 4, v{vOUT}\ns_lshl_b32 s7, s{sLT}, 15\ns_lshl_b32 s8, s{sDT}, 7\ns_add_u32 s7, s7, s8\ns_lshl_b32 s8, s{sW}, 5\ns_add_u32 s7, s7, s8\nv_add_u32 v{vOUT}, s7, v{vOUT}")
    b(f"s_lshl_b32 s5, s{sDT}, 2\ns_add_u32 s5, s5, s{sW}\ns_mul_i32 s5, s5, 57344\ns_add_u32 s{sW2B}, s5, {W2F}")
IDX = 100
NG0 = opt("ng0", 4)
M.add(interleave(gen(setup), gath[:NG0] + (touch if opt("touch", 0) else []), start=0))
stamp(M, "p0 setup")
M("@vm rows")
stamp(M, "p0 rows")
for i in range(4): M(f"v_mov_b32 v{52+i}, 0")
for q in range(4):
    M(f"v_dot2c_f32_bf16 v52, s{sONE}, v{32+q}\nv_dot2c_f32_bf16 v53, v{32+q}, v{32+q}")
    M(f"v_dot2c_f32_bf16 v54, s{sONE}, v{36+q}\nv_dot2c_f32_bf16 v55, v{36+q}, v{36+q}")
for m_ in ["quad_perm:[1,0,3,2]", "quad_perm:[2,3,0,1]", "row_half_mirror", "row_mirror"]:
    for i in range(4): M(f"v_add_f32_dpp v{52+i}, v{52+i}, v{52+i} {m_} row_mask:0xf bank_mask:0xf")
xsum(M, [52, 53, 54, 55], 56, [16, 32])
for r in (52, 54): M(f"v_pk_mul_f32 {v(r,2)}, {v(r,2)}, s[{sINV}:{sINV+1}]")
for r in (52, 54): M(f"v_fma_f32 v{r+1}, -v{r}, v{r}, v{r+1}")
for r in (52, 54): rnd(M, r+1, r+1)
for r in (52, 54): M(f"v_add_f32 v{r+1}, s{sEPS}, v{r+1}")
for r in (52, 54): rnd(M, r+1, r+1)
for r in (52, 54): M(f"v_sqrt_f32 v{r+1}, abs(v{r+1})")
for r in (52, 54): M(f"v_cvt_pk_bf16_f32 v{r}, v{r}, v{r+1}")
M(f"s_lshl_b32 s5, s2, 6\ns_lshl_b32 s6, s{sW}, 4\ns_add_u32 s5, s5, s6\ns_add_u32 s5, s5, {ST0}")
stamp(M, "p0 stats")
nn = lab("nn"); nl = lab("nl"); nb = lab("nb")
M("s_waitcnt lgkmcnt(0)")
M(f"s_cmp_eq_u32 s{sNON}, 0\ns_cbranch_scc1 {nn}")
M.label(nb)
tail.label(nn)
for k in range(1, 4):
    tail(f"s_load_dword s{sNON}, s[38:39], {64*k}\ns_waitcnt lgkmcnt(0)\ns_cmp_lg_u32 s{sNON}, 0\ns_cbranch_scc1 {nb}")
tail(f"s_mov_b32 s10, {SPIN}\nv_mov_b32 v5, 0")
tail.label(nl)
tail("global_load_dword v6, v5, s[38:39] sc1\ns_waitcnt vmcnt(0)")
tail(f"v_readfirstlane_b32 s{sNON}, v6\ns_cmp_lg_u32 s{sNON}, 0\ns_cbranch_scc1 {nb}")
tail(f"s_sub_u32 s10, s10, 1\ns_cmp_lg_u32 s10, 0\ns_cbranch_scc1 {nl}\ns_branch {nb}")
M(f"v_mov_b32 v53, s{sNON}\nv_mov_b32 v55, s{sNON}")
M(f"s_mov_b64 exec, 1\nbuffer_store_dwordx4 v[52:55], off, {WS}, s5 sc1\ns_mov_b64 exec, -1")
stamp(M, "p0 published")
M(f"s_mul_i32 s5, s3, 7\ns_lshl_b32 s6, s{sW}, 1\ns_add_u32 s5, s5, s6")
M("s_and_b32 s7, s4, 3\ns_lshr_b32 s8, s4, 2")
w2l = []
for i in range(2):
    M(f"s_add_u32 s9, s5, {i}\ns_min_u32 s9, s9, 55\ns_lshr_b32 s10, s9, 1\ns_and_b32 s9, s9, 1")
    M("s_mul_i32 s11, s7, 448\ns_lshl_b32 s10, s10, 4\ns_add_u32 s10, s10, s11\ns_lshl_b32 s10, s10, 10\ns_lshl_b32 s11, s8, 7\ns_add_u32 s10, s10, s11")
    M("s_lshl_b32 s9, s9, 1\nv_bfe_u32 v5, v1, 4, 1\nv_add_u32 v5, s9, v5\nv_xor_b32 v5, s7, v5\nv_lshlrev_b32 v5, 5, v5")
    M(f"v_lshl_add_u32 v5, v60, 1, v5\nv_lshrrev_b32 v6, 5, v1\nv_lshl_add_u32 v5, v6, 13, v5\nv_add_u32 v{208+2*i}, s10, v5\nv_add_u32 v{209+2*i}, 4096, v{208+2*i}")
    for e in range(8):
        op = "buffer_load_short_d16_hi" if e & 1 else "buffer_load_ushort"
        dst = (224 if e & 1 else 40) + 4*i + e//2
        w2l.append([f"    {op} v{dst}, v{208+2*i+e//4}, {srd(SW2)}, 0 offen offset:{(e%4)*1024} ;@w2l"])
def kgen(Kg):
    Kg(f"s_lshl_b32 s{sDK}, s13, 16\ns_and_b32 s{sDK+1}, s13, s{sMSK}")
    Kg(f"@{{\ns_lshl_b32 s5, s12, 16\ns_and_b32 s6, s12, s{sMSK}\ns_cmp_ge_u32 s{sW}, 2\ns_cselect_b32 s5, s6, s5\n@}}")
    L2E = f"{f2u(LOG2E):#x}"
    VAL = lambda row: 110 + 2*row if row < 45 else 62 + 2*(row - 45)
    Kg(f"v_mov_b32 v5, s5\nv_mul_f32 v5, {L2E}, v5\nv_exp_f32 v5, v5")
    for i in range(4): Kg(f"v_lshlrev_b32 v{48+i}, 16, v{48+i}")
    Kg(f"v_mul_f32 v48, {L2E}, v48\nv_exp_f32 v48, v48")
    Kg(f"s_mul_i32 s5, s{sW}, {ES}")
    Kg("v_lshlrev_b32 v98, 2, v1\nv_add_u32 v98, s5, v98")
    rnd(Kg, 5, 5); rnd(Kg, 48, 48)
    Kg(f"v_mul_f32 v49, v49, v5\nv_mul_f32 v48, v48, v5\nv_mul_f32 v49, 0.15915494, v49\nv_mul_f32 v48, s{sNL2E}, v48")
    Kg(f"v_add_f32 v5, v5, v5\nv_mul_f32 v{VAL(0)}, v50, v5\nv_mul_f32 v{VAL(0)+1}, v51, v5")
    E1, E8, E128, E1K = VAL(17), 34, VAL(24), VAL(48)
    PS = [(E1, 1.0), (E8, 8.0), (E128, 128.0), (E1K, 1024.0)]
    for k, (dst, p) in enumerate(PS): Kg(f"v_mul_f32 v{52+k}, {f2u(p):#x}, v48\nv_mul_f32 v{56+k}, {f2u(p):#x}, v49")
    for k, (dst, p) in enumerate(PS): Kg(f"v_exp_f32 v{52+k}, v{52+k}\nv_fract_f32 v{56+k}, v{56+k}")
    for k, (dst, p) in enumerate(PS): Kg(f"v_cos_f32 v{dst}, v{56+k}\nv_sin_f32 v{dst+1}, v{56+k}")
    Kg("v_mul_u32_u24 v99, 272, v60\nv_lshl_add_u32 v99, v61, 4, v99\nv_add_u32 v99, s5, v99")
    Kg(f"v_mov_b32 v{VAL(16)}, 1.0\nv_mov_b32 v{VAL(16)+1}, 0")
    for k, (dst, p) in enumerate(PS): Kg(f"v_mul_f32 v{dst}, v{dst}, v{52+k}\nv_mul_f32 v{dst+1}, v{dst+1}, v{52+k}")
    e16, e32, e64 = 36, 38, 32
    V = VAL
    levels = [
        [(V(1), V(0), E8), (V(18), E1, E1), (V(32), E128, E128), (e16, E8, E8), (V(56), E1K, E1K), (V(25), E1, E128), (V(49), E1K, E128)],
        [(e32, e16, e16), (V(20), V(18), V(18)), (V(40), V(32), V(32)), (V(2), V(0), e16), (V(3), V(1), e16), (V(19), V(18), E1), (V(36), V(32), E128),
         (V(26), V(18), E128), (V(50), E1K, V(32)), (V(33), V(32), V(18))],
        [(e64, e32, e32), (V(4), V(0), e32), (V(5), V(1), e32), (V(6), V(2), e32), (V(7), V(3), e32), (V(21), V(20), E1), (V(22), V(20), V(18)), (V(23), V(20), V(19)),
         (V(42), V(40), E128), (V(44), V(40), V(32)), (V(46), V(40), V(36)), (V(27), V(19), E128), (V(28), V(20), E128), (V(51), E1K, V(36)), (V(52), E1K, V(40)),
         (V(34), V(32), V(20)), (V(37), V(36), V(18)), (V(38), V(36), V(20)), (V(41), V(40), V(20))],
        [(V(8 + i), V(i), e64) for i in range(8)] +
        [(V(29), V(21), E128), (V(30), V(22), E128), (V(31), V(23), E128), (V(35), V(32), V(22)), (V(39), V(36), V(22)),
         (V(43), V(42), V(20)), (V(45), V(44), V(20)), (V(47), V(46), V(20)), (V(53), E1K, V(42)), (V(54), E1K, V(44)), (V(55), E1K, V(46))],
    ]
    row_of = {VAL(r): r for r in range(57)}
    pend = [0, 16, 17, 24, 48]; written = []
    rot = [0]
    def puts(rows):
        g = []
        for r in rows:
            t = 86 + rot[0] % 12; rot[0] += 1
            g.append((f"    v_cvt_pk_bf16_f32 v{t}, v{VAL(r)}, {'-' if r < 16 else ''}v{VAL(r)+1}", f"    ds_write_b32 v98, v{t} offset:{r*272}"))
            written.append(r)
        out = []
        for k in range(len(g) + 1):
            out.append(([g[k][0]] if k < len(g) else []) + ([g[k-1][1]] if k > 0 else []))
        return out
    for lv in levels:
        t = Buf()
        for d_, x_, y_ in lv: t(f"v_pk_mul_f32 {v(d_,2)}, {v(x_,2)}, {v(y_,2)} op_sel_hi:[1,0]")
        for d_, x_, y_ in lv: t(f"v_pk_fma_f32 {v(d_,2)}, {v(x_,2)}, {v(y_,2)}, {v(d_,2)} op_sel:[1,1,0] op_sel_hi:[0,1,1] neg_lo:[1,0,0]")
        Kg.add(interleave(t.l, puts(pend)))
        pend = [row_of[d_] for d_, _, _ in lv if d_ in row_of]
    Kg.add(flat(puts(pend)))
    assert sorted(written) == list(range(57))
    LOF, HF, GD = 110, 126, 62
    Kg("s_waitcnt lgkmcnt(0)")
    for s_ in range(4):
        Kg(f"ds_read_b128 {v(LOF+4*s_,4)}, v99 offset:{s_*64} ;@kf{s_}")
        for T in range(3): Kg(f"ds_read_b128 {v(HF+16*T+4*s_,4)}, v99 offset:{(16+16*T)*272+s_*64} ;@kf{s_}")
    Kg(f"s_mul_i32 s5, s{sW}, 3072\ns_add_u32 s5, s5, {LGT}")
    Kg("v_lshlrev_b32 v5, 2, v60\nv_lshl_add_u32 v5, v61, 8, v5\nv_add_u32 v5, s5, v5")
    for s_ in range(4):
        Kg(f"@lg kf{s_}")
        for T in range(3): Kg(f"v_mfma_f32_16x16x32_bf16 {v(GD+4*T,4)}, {v(HF+16*T+4*s_,4)}, {v(LOF+4*s_,4)}, {'0' if s_ == 0 else v(GD+4*T,4)}")
    for T in range(3):
        for r in range(0, 4, 2): Kg(f"ds_write2_b32 v5, v{GD+4*T+r}, v{GD+4*T+r+1} offset0:{r*16} offset1:{r*16+16}") if T == 0 else None
        if T:
            for r in range(4): Kg(f"ds_write_b32 v5, v{GD+4*T+r} offset:{(T*16+r)*64}")
M("@vm par")
kl = gen(kgen)
M.add(interleave(kl, dma0, start=5))
stamp(M, "kgen core")
M.add(flat(w2l))
stamp(M, "w2l issued")
M("s_waitcnt lgkmcnt(0)\ns_barrier")
for c in range(2):
    for k in range(9): M(f"ds_read2st64_b32 {v(110+c*18+2*k,2)}, v{IDX+k} offset0:{24*c} offset1:{24*c+12} ;@g{c}")
M(f"v_bfe_u32 v5, v0, 4, 1\nv_mul_u32_u24 v5, {PKS}, v5\nv_lshl_add_u32 v5, v60, 2, v5\nv_add_u32 v5, {LPK}, v5\nv_mov_b32 v6, 0")
M("ds_write_b32 v5, v6")
M(f"v_lshlrev_b32 v5, 5, v0\nv_add_u32 v5, {LPK+64}, v5")
M("v_cmp_eq_u32 vcc, 0, v0")
for c in range(2):
    M(f"@lg g{c}")
    for k in range(9):
        r = 110 + c*18 + 2*k
        M(f"v_add_f32 v{r}, v{r}, v{r+1}")
    M(f"v_cndmask_b32 v{110+c*18}, v{110+c*18}, v6, vcc")
    for k in range(8): M(f"v_cvt_pk_bf16_f32 v{72+c*8+k}, v{110+c*18+2*(k+1)}, v{110+c*18+2*k}")
    M(f"ds_write_b128 v5, {v(72+c*8,4)} offset:{c*PKS}\nds_write_b128 v5, {v(76+c*8,4)} offset:{c*PKS+16}")
def w2_store(b):
    b("@vm w2l")
    for i in range(8): b(f"v_and_or_b32 v{200+i}, v{224+i}, s{sMSK}, v{40+i}")
    b(f"s_mul_i32 s5, s3, 7\ns_lshl_b32 s6, s{sW}, 1\ns_add_u32 s5, s5, s6\ns_mul_i32 s6, s4, 56\ns_add_u32 s5, s5, s6\ns_lshl_b32 s5, s5, 10\ns_add_u32 s5, s5, {W2F}")
    b(f"buffer_store_dwordx4 v[200:203], v0, {WS}, s5 offen sc1")
    n3 = lab("n3")
    b(f"s_cmp_eq_u32 s{sW}, 3\ns_cbranch_scc1 {n3}")
    b(f"buffer_store_dwordx4 v[204:207], v0, {WS}, s5 offen offset:1024 sc1 ;@!")
    b.label(n3)
T0, U0, ACC = 32, 160, 224
BASE, RV, CST, UPK = 224, 232, 232, 240
def conv_inputs(b, layer, half):
    if layer == 0:
        b(f"s_mov_b32 s{sO}, {ST0 + half*8192}")
    else:
        b(f"s_mov_b32 s{sO}, {XP[2] + half*0x100000}\nbuffer_load_dwordx4 v[248:251], v{vCX}, {WS}, s{sO} offen sc1 ;@cin")
        b(f"s_mov_b32 s{sO}, {ST2 + half*8192}")
    b(f"buffer_load_dwordx4 {v(CST,4)}, v{vCS}, {WS}, s{sO} offen sc1 ;@cin\nbuffer_load_dwordx4 {v(CST+4,4)}, v{vCS}, {WS}, s{sO} offen offset:16 sc1 ;@cin")
def t_loads(b, js):
    for j in js:
        if j: b(f"v_add_u32 v5, {1024*j}, v{vTB}")
        ad = 5 if j else vTB
        for t in range(4):
            r = T0 + (j*4 + t)*4
            b(f"ds_read2_b32 {v(r,2)}, v{ad} offset0:{32*t+6} offset1:{32*t+4} ;@T\nds_read2_b32 {v(r+2,2)}, v{ad} offset0:{32*t+2} offset1:{32*t} ;@T")
def t_groups():
    g = []
    for k in range(32):
        j, t = k >> 2, k & 3
        r = T0 + 4*k
        grp = [f"    v_add_u32 v188, {1024*j}, v{vTB}"] if t == 0 else []
        grp += [f"    ds_read2_b32 {v(r,2)}, v188 offset0:{32*t+6} offset1:{32*t+4} ;@T", f"    ds_read2_b32 {v(r+2,2)}, v188 offset0:{32*t+2} offset1:{32*t} ;@T"]
        g.append(grp)
    return g
def u_pad(b):
    b(f"v_subrev_u32 v5, {LEX}, v{vEW}\nv_and_b32 v5, 0x3f0, v5\nv_lshrrev_b32 v5, 1, v5\nv_add_u32 v5, {LU}, v5\nv_mov_b32 v{UPK}, 0\nv_mov_b32 v{UPK+1}, 0")
    b(f"ds_write_b64 v5, {v(UPK,2)}\nds_write_b64 v5, {v(UPK,2)} offset:{US}")
def conv_half(b, layer, half, bg=[], pre_barrier=None, after_ln=None, after_mfma=None, tailbg=[]):
    X = 248 if (layer or not half) else 252
    MN, RI, DD = 192, 196, 176
    b(f"@vm cin,xg{half}")
    if layer == 0:
        slow = lab("gs"); back = lab("gb"); lp = lab("gl")
        def chk(o):
            o(f"v_xor_b32 v5, s{sNON}, v{CST+1}\nv_xor_b32 v6, s{sNON}, v{CST+3}\nv_xor_b32 v{DD}, s{sNON}, v{CST+5}\nv_xor_b32 v{DD+1}, s{sNON}, v{CST+7}\nv_or3_b32 v5, v5, v6, v{DD}\nv_or_b32 v5, v5, v{DD+1}\nv_cmp_ne_u32 vcc, 0, v5")
        chk(b); b(f"s_cbranch_vccnz {slow}"); b.label(back)
        tail.label(slow); tail(f"s_mov_b32 s10, {SPIN}\ns_mov_b32 s11, {ST0 + half*8192}")
        tail.label(lp)
        tail(f"buffer_load_dwordx4 {v(CST,4)}, v{vCS}, {WS}, s11 offen sc1\nbuffer_load_dwordx4 {v(CST+4,4)}, v{vCS}, {WS}, s11 offen offset:16 sc1\ns_waitcnt vmcnt(0)")
        chk(tail); tail(f"s_cbranch_vccz {back}")
        tail(f"s_sub_u32 s10, s10, 1\ns_cmp_lg_u32 s10, 0\ns_cbranch_scc1 {lp}\ns_branch {back}")
    stamp(b, f"L{layer} conv{half} loaded")
    if layer == 0:
        for i in range(4): b(f"v_and_b32 v{RI+i}, s{sMSK}, v{CST+2*i}")
        for i in range(4): b(f"v_rcp_f32 v{RI+i}, v{RI+i}")
        for i in range(4): b(f"v_lshlrev_b32 v{MN+i}, 16, v{CST+2*i}")
    else:
        for i in range(4): b(f"v_pk_mul_f32 {v(CST+2*i,2)}, {v(CST+2*i,2)}, s[{sINV}:{sINV+1}]")
        for i in range(4): b(f"v_fma_f32 v{RI+i}, -v{CST+2*i}, v{CST+2*i}, v{CST+2*i+1}")
        for i in range(4): rnd(b, RI+i, RI+i)
        for i in range(4): b(f"v_add_f32 v{RI+i}, s{sEPS}, v{RI+i}")
        for i in range(4): rnd(b, RI+i, RI+i)
        for i in range(4): b(f"v_sqrt_f32 v{RI+i}, abs(v{RI+i})")
        for i in range(4): rnd(b, MN+i, CST+2*i)
        for i in range(4): rnd(b, RI+i, RI+i)
        for i in range(4): b(f"v_rcp_f32 v{RI+i}, v{RI+i}")
    for i in range(4): b(f"v_lshlrev_b32 v{BASE+i}, 16, v{X+i}\nv_and_b32 v{BASE+4+i}, s{sMSK}, v{X+i}")
    for k in range(4): b(f"v_pk_add_f32 {v(DD+2*k,2)}, {v(BASE+2*k,2)}, {v(MN+2*(k&1),2)} neg_lo:[0,1] neg_hi:[0,1]")
    for k in range(8): rnd(b, DD+k, DD+k)
    for k in range(4): b(f"v_pk_mul_f32 {v(DD+2*k,2)}, {v(DD+2*k,2)}, {v(RI+2*(k&1),2)}")
    for k in range(4): b(f"v_cvt_pk_bf16_f32 v{UPK+k}, v{DD+2*k}, v{DD+2*k+1}")
    b(f"ds_write_b64 v{vUW}, {v(UPK,2)} offset:{half*2048}\nds_write_b64 v{vUW}, {v(UPK+2,2)} offset:{US+half*2048}")
    if pre_barrier: b(pre_barrier)
    b("s_waitcnt lgkmcnt(0)\ns_barrier")
    if after_ln: after_ln(b)
    for tp in range(4):
        for t in range(4):
            b(f"ds_read_b128 {v(U0+(tp*4+t)*4,4)}, v{vUR} offset:{512 + 512*(tp+4*half) - 64*t - 32} ;@U{tp}")
    for k in range(4):
        b(f"v_lshlrev_b32 v{RV+2*k}, 16, v{UPK+k}\nv_and_b32 v{RV+2*k+1}, s{sMSK}, v{UPK+k}")
    for k in range(4):
        c = k >> 1
        b(f"v_pk_fma_f32 {v(BASE+2*k,2)}, {v(RV+2*k,2)}, s[{sDK}:{sDK+1}], {v(BASE+2*k,2)} op_sel:[0,{c},0] op_sel_hi:[1,{c},1]")
    mm = Buf()
    for tp in range(4):
        mm(f"@lg U{tp}")
        n_ = 0
        for r in range(tp, 4):
            for t in range(4):
                acc = ACC + (4*half + r)*4
                cin = "0" if (half == 0 and t == 0 and tp == 0) else ac(acc, 4)
                mm(f"v_mfma_f32_16x16x32_bf16 {ac(acc,4)}, {v(T0+((r-tp)*4+t)*4,4)}, {v(U0+(tp*4+t)*4,4)}, {cin}")
            if r == tp + 1 or (r == tp == 3): pass
        if tp < 3 or True:
            pass
    ml = []; cnt = 0; due = {}
    lastidx = {0: 3, 1: 19, 2: 31, 3: 39}
    for ln in mm.l:
        ml.append(ln)
        if "v_mfma" in ln:
            for r in range(3):
                if cnt == lastidx[r] + 8: ml.append(f"    ds_write_b128 v{vEW}, {ac(ACC+(4*half+r)*4,4)} offset:{r*4096}")
            cnt += 1
    ml = interleave(ml, bg, start=2)
    b.add(ml)
    tailbg = list(tailbg)
    if after_mfma: after_mfma(b)
    b(f"ds_write_b128 v{vEW}, {ac(ACC+(4*half+3)*4,4)} offset:{3*4096}")
    b.add(flat(tailbg[:2]))
    b("s_waitcnt lgkmcnt(0)\ns_barrier")
    for src in range(4): b(f"ds_read_b128 {v(RV+4*src,4)}, v{vER} offset:{src*1024} ;@E{src>>1}")
    b.add(flat(tailbg[2:]))
    b(f"s_mov_b32 s{sO}, {XP[1+2*layer] + half*0x100000}")
    for c in range(2):
        b(f"@lg E{c}")
        for k in range(2): b(f"v_pk_add_f32 {v(RV+8*c+2*k,2)}, {v(RV+8*c+2*k,2)}, {v(RV+8*c+4+2*k,2)}")
        for k in range(2): b(f"v_pk_add_f32 {v(BASE+4*c+2*k,2)}, {v(BASE+4*c+2*k,2)}, {v(RV+8*c+2*k,2)}")
    sw = lab("sw"); sj = lab("sj")
    b(f"s_cmp_ge_u32 s{sCPI}, 128\ns_cbranch_scc1 {sw}")
    for i in range(4): b(f"v_cvt_pk_bf16_f32 v{244+i}, v{BASE+i}, v{BASE+4+i}")
    b.label(sj)
    tail.label(sw)
    for i in range(4): tail(f"v_cvt_pk_bf16_f32 v{244+(i^1)}, v{BASE+i}, v{BASE+4+i}")
    tail(f"s_branch {sj}")
    b(f"buffer_store_dwordx4 v[244:247], v{vCX}, {WS}, s{sO} offen sc1 ;@cst")
    stamp(b, f"L{layer} conv{half} stored")
def conv_ab(b):
    b("@lg T")
    for t in range(4):
        for tp in range(4):
            for r in range(4, 8):
                acc = ACC + r*4
                cin = "0" if (t == 0 and tp == 0) else ac(acc, 4)
                b(f"v_mfma_f32_16x16x32_bf16 {ac(acc,4)}, {v(T0+((r-tp)*4+t)*4,4)}, {v(U0+(tp*4+t)*4,4)}, {cin}")
def colsum(b):
    b(f"s_mul_i32 s5, s{sW}, 32\ns_lshr_b32 s6, s{sW}, 1\ns_mul_i32 s6, s6, {256*224}\ns_sub_u32 s5, s5, s6\nv_add_u32 v5, s5, v{vWA}\nv_add_u32 v6, {256*224}, v5")
    for i in range(4): b(f"v_mov_b32 v{240+i}, s{sONE}")
    def rd(ks):
        for f2 in range(2):
            for hf in range(2):
                b(f"ds_read_b64_tr_b16 {v(96+(f2*8+ks%8)*4+2*hf,2)}, v{5 + ks//8} offset:{(32*(ks%8)+16*hf)*224 + 128*f2} ;@c{ks}")
    for ks in range(3): rd(ks)
    for ks in range(16):
        if ks + 3 < 16: rd(ks + 3)
        b(f"@lg c{ks}")
        for f2 in range(2):
            b(f"v_mfma_f32_16x16x32_bf16 {v(232+4*f2,4)}, {v(96+(f2*8+ks%8)*4,4)}, v[240:243], {'0' if ks == 0 else v(232+4*f2,4)}")
    b(f"s_lshl_b32 s5, s{sW}, 6\nv_add_u32 v5, s5, v{vCSA}")
    b("ds_write_b128 v5, v[232:235] ;@cs\nds_write_b128 v5, v[236:239] offset:256 ;@cs")

WB, SS, KA, SA = 160, 216, 224, 224
def g1_loads(layer, half):
    g = []
    X0 = 32 + 64 * half
    for ks in range(8):
        for n_, (dst, off) in enumerate([(0, 0), (4, 256), (2, 2048), (6, 2304)]):
            grp = []
            if n_ == 0: grp.append(f"    s_mov_b32 s{sB0}, {XP[1+2*layer] + half*0x100000 + ks*4096}")
            grp.append(f"    buffer_load_dwordx2 {v(X0+8*ks+dst,2)}, v{vGX}, {WS}, s{sB0} offen offset:{off} sc1 ;@x{ks}")
            g.append(grp)
    return g
def wread(b, ks, ft, hfs=(0, 1)):
    r = WB + (ks & 1) * 28 + ft * 4
    for hf in hfs:
        b(f"ds_read_b64_tr_b16 {v(r+2*hf,2)}, v{vWA} offset:{(32*ks+16*hf)*224 + 32*ft} ;@w{ks}_{ft}")
def g1_pre(b):
    for ft in range(7): wread(b, 0, ft)
def g1_loop(b, half, bg, hooks={}):
    X0 = 32 + 64 * half
    bg = list(bg)
    def swaps(ks):
        x = X0 + 8 * ks
        b(f"@vm x{ks}\nv_swap_b32 v{x+1}, v{x+4}\nv_swap_b32 v{x+3}, v{x+6}")
    swaps(0)
    for ks in range(8):
        x = X0 + 8 * ks
        if ks in hooks: hooks[ks](b)
        for ft in range(7):
            r = WB + (ks & 1) * 28 + ft * 4
            if ft in (0, 4): b(f"@lg w{ks}_{3 if ft == 0 else 6}")
            b(f"v_mfma_f32_16x16x32_bf16 {ac(SA+4*ft,4)}, {v(r,4)}, {v(x+4,4)}, {'0' if ks == 0 else ac(SA+4*ft,4)}")
            if ks < 7: wread(b, ks + 1, ft, (0,))
            if ft in (0, 2, 4, 6) and bg: b.add(bg.pop(0))
            b(f"v_mfma_f32_16x16x32_bf16 {v(KA+4*ft,4)}, {v(r,4)}, {v(x,4)}, {'0' if ks == 0 else v(KA+4*ft,4)}")
            if ks < 7: wread(b, ks + 1, ft, (1,))
            if ft == 5 and ks < 7: swaps(ks + 1)
    assert not bg
RC, CSR = 160, 188
def g1_post1(b, half, bg=[]):
    X0 = 32 + 64 * half
    d = Buf()
    for i in range(8): d(f"v_mov_b32 v{SS+i}, 0")
    for ks in range(8):
        x = X0 + 8 * ks
        for q in range(4):
            o = 4 * (q & 1)
            d(f"v_dot2c_f32_bf16 v{SS+o}, s{sONE}, v{x+q}\nv_dot2c_f32_bf16 v{SS+o+1}, v{x+q}, v{x+q}")
            d(f"v_dot2c_f32_bf16 v{SS+o+2}, s{sONE}, v{x+4+q}\nv_dot2c_f32_bf16 v{SS+o+3}, v{x+4+q}, v{x+4+q}")
    wr = [[f"    ds_write_b128 v{vXW}, {ac(SA+4*ft,4)} offset:{ft*1024}"] for ft in range(7)]
    wr += [[f"    ds_read_b128 {v(CSR+4*ft,4)}, v{vCSA} offset:{ft*64}"] for ft in range(7)]
    dl = interleave(d.l, wr, start=8, every=9)
    b.add(interleave(dl, bg, start=4))
    b(f"v_pk_add_f32 {v(SS+2,2)}, {v(SS+2,2)}, {v(SS+6,2)}\nv_pk_add_f32 {v(SS,2)}, {v(SS,2)}, {v(SS+4,2)}")
    b(f"ds_write_b64 v{vSW}, {v(SS+2,2)} offset:7168")
    b("s_waitcnt lgkmcnt(0)\ns_barrier")
    b(f"ds_read_b64 {v(SS+2,2)}, v{vSR} offset:7168 ;@s")
    for ft in range(7): b(f"ds_read_b128 {v(RC+4*ft,4)}, v{vXR} offset:{ft*1024} ;@r{ft}")
def g1_post2(b, layer, half):
    b("@lg s")
    b(f"v_pk_add_f32 {v(SS,2)}, {v(SS,2)}, {v(SS+2,2)}")
    xsum(b, [SS, SS+1], SS+2, [16, 32])
    mn, sd, c2 = SS, SS+1, SS+2
    st = Buf()
    st(f"v_pk_mul_f32 {v(SS,2)}, {v(SS,2)}, s[{sINV}:{sINV+1}]\nv_fma_f32 v{sd}, -v{mn}, v{mn}, v{sd}")
    rnd(st, sd, sd); rnd(st, mn, mn)
    st(f"v_add_f32 v{sd}, s{sEPS}, v{sd}"); rnd(st, sd, sd)
    st(f"v_sqrt_f32 v{sd}, abs(v{sd})"); rnd(st, sd, sd)
    st(f"v_rcp_f32 v{c2}, v{sd}\nv_mul_f32 v{c2}, s{sNL2E}, v{c2}")
    adds = []
    for ft in range(7):
        t = RC + 4*ft
        adds.append([f"    @lg r{ft}"] + [f"    v_pk_add_f32 {v(t+2*k,2)}, {v(t+2*k,2)}, {v(KA+4*ft+2*k,2)}" for k in range(2)])
    b.add(interleave(st.l, adds, start=1, every=1))
    ET = [SS+4, 252]
    def tiles(fts):
        E = [ET[ft & 1] for ft in fts]; T = [RC + 4*ft for ft in fts]
        for ft, t in zip(fts, T):
            for k in range(2): b(f"v_pk_fma_f32 {v(t+2*k,2)}, {v(CSR+4*ft+2*k,2)}, {v(mn,2)}, {v(t+2*k,2)} op_sel_hi:[1,0,1] neg_lo:[0,1,0] neg_hi:[0,1,0]")
        for e, t in zip(E, T):
            for k in range(2): b(f"v_pk_mul_f32 {v(e+2*k,2)}, {v(t+2*k,2)}, {v(c2,2)} op_sel_hi:[1,0]")
        for e in E:
            for r in range(4): b(f"v_exp_f32 v{e+r}, v{e+r}")
        for e in E:
            for k in range(2): b(f"v_pk_fma_f32 {v(e+2*k,2)}, {v(e+2*k,2)}, {v(mn,2)}, {v(mn,2)} op_sel:[0,1,1] op_sel_hi:[1,1,1]")
        for e in E:
            for r in range(4): b(f"v_rcp_f32 v{e+r}, v{e+r}")
        for e, t in zip(E, T):
            for k in range(2): b(f"v_pk_mul_f32 {v(e+2*k,2)}, {v(e+2*k,2)}, {v(t+2*k,2)}")
        for ft, e in zip(fts, E):
            p = KA + 8*(ft >> 1) + 2*(ft & 1)
            b(f"v_cvt_pk_bf16_f32 v{p}, v{e}, v{e+1}\nv_cvt_pk_bf16_f32 v{p+1}, v{e+2}, v{e+3}")
    hb = HB[layer] + half * 32 * HT
    for pr in range(3):
        tiles([2*pr, 2*pr + 1])
        p = KA + 8*pr
        b(f"s_mov_b32 s{sO}, {hb + pr*2048}")
        b(f"v_permlane16_swap_b32 v{p}, v{p+2}\nv_permlane16_swap_b32 v{p+1}, v{p+3}")
        b(f"buffer_store_dwordx4 {v(p,4)}, v{vH4}, {WS}, s{sO} offen sc1 ;@hst")
    tiles([6])
    b(f"s_mov_b32 s{sO}, {hb + 3*2048}\nbuffer_store_dwordx2 {v(KA+24,2)}, v{vH2}, {WS}, s{sO} offen sc1 ;@hst")

H0, C2, RS = 32, 192, 184
def g2_loads(layer, half):
    g = []
    for ks in range(28):
        grp = []
        if ks % 4 == 0: grp.append(f"    s_mov_b32 s{sB0}, {HB[layer] + half*32*HT + ks*1024}")
        grp.append(f"    buffer_load_dwordx4 {v(H0+4*ks,4)}, v{vHL}, {WS}, s{sB0} offen offset:{(ks%4)*1024} sc1 ;@h{ks}")
        g.append(grp)
    return g
def w2_loads():
    g = []
    for i in range(56):
        grp = []
        if i % 4 == 0: grp.append(f"    s_add_u32 s{sB1}, s{sW2B}, {(i//4)*4096}")
        grp.append(f"    buffer_load_dwordx4 {ac(4*i,4)}, v6, {WS}, s{sB1} offen offset:{(i%4)*1024} sc1 ;@a{i//2}")
        g.append(grp)
    return g
def g2_res(layer, half):
    g = [[f"    s_mov_b32 s{sO}, {XP[1+2*layer] + half*0x100000}"] +
         [f"    buffer_load_dword v{RS+k}, v{vRX}, {WS}, s{sO} offen offset:{(k>>1)*1024 + (k&1)*256} sc1 ;@res" for k in range(4)]]
    return g
def g2_loop(b, bg, hooks={}, tg=None):
    bg = list(bg)
    if tg: b.add(flat(tg[28:]))
    for ks in range(28):
        if ks in hooks: hooks[ks](b)
        b(f"@vm h{ks},a{ks}")
        for mt in range(2):
            b(f"v_mfma_f32_32x32x16_bf16 {v(C2+16*mt,16)}, {ac((ks*2+mt)*4,4)}, {v(H0+4*ks,4)}, {'0' if ks == 0 else v(C2+16*mt,16)}")
            if mt == 0 and bg: b.add(bg.pop(0))
            if mt == 1 and tg and ks >= 1: b.add(tg[ks-1])
    if tg: b.add(["    s_nop 7"] + tg[27])
    assert not bg
def g2_post1(b):
    for sg in range(1, 4):
        b(f"ds_write_b128 v{vE1+sg-1}, {v(C2+8*sg,4)}\nds_write_b128 v{vE1+sg-1}, {v(C2+8*sg+4,4)} offset:1024")
    b("@vm res")
    for k in range(4): b(f"v_lshlrev_b32 v{224+2*k}, 16, v{RS+k}\nv_and_b32 v{225+2*k}, s{sMSK}, v{RS+k}")
    b("s_waitcnt lgkmcnt(0)\ns_barrier")
    for k in range(6): b(f"ds_read_b128 {v(160+4*k,4)}, v{vE0} offset:{k*1024} ;@q{k>>1}")
def g2_post2(b, layer, half):
    for s_ in range(3):
        b(f"@lg q{s_}")
        for k in range(4): b(f"v_pk_add_f32 {v(C2+2*k,2)}, {v(C2+2*k,2)}, {v(160+8*s_+2*k,2)}")
    for r in range(8): rnd(b, C2+r, C2+r)
    for k in range(4): b(f"v_pk_add_f32 {v(C2+2*k,2)}, {v(C2+2*k,2)}, {v(224+2*k,2)}")
    for k in range(4): b(f"v_cvt_pk_bf16_f32 v{240+k}, v{C2+2*k}, v{C2+2*k+1}")
    if layer == 0:
        b(f"@{{\ns_mov_b32 s{sO}, {XP[2] + half*0x100000}")
        for k in range(4):
            b(f"buffer_store_dword v{240+k}, v{vX2}, {WS}, s{sO} offen offset:{(k>>1)*1024 + (k&1)*256} sc1 ;@xst")
        b("@}\nv_mov_b32 v244, 0\nv_mov_b32 v245, 0")
        for k in range(4): b(f"v_dot2c_f32_bf16 v244, s{sONE}, v{240+k}\nv_dot2c_f32_bf16 v245, v{240+k}, v{240+k}")
        b("v_permlane32_swap_b32 v244, v245\nv_add_f32 v244, v244, v245")
        b(f"s_mov_b32 s{sO}, {ST2 + half*8192}\nbuffer_atomic_add_f32 v244, v{vSA}, {WS}, s{sO} offen sc1 ;@xst")
    else:
        b("v_permlane32_swap_b32 v240, v242\nv_permlane32_swap_b32 v241, v243")
        b(f"s_mov_b32 s{sO}, {half*0x100000}\nbuffer_store_dwordx4 v[240:243], v{vOUT}, {srd(SOUT)}, s{sO} offen")

conv_inputs(M, 0, 0)
M(f"v_mov_b32 v{vPL}, v204\nv_mov_b32 v0, v2\nv_mov_b32 v{vSG}, v205")
M("s_waitcnt lgkmcnt(0)\ns_barrier")
stamp(M, "kgen done")
XT, XUP, XPF, HPF, HP2, HUP = opt("xt", 6), opt("xup", 12), opt("xpf", 16), opt("hpf", 14), opt("hp2", 4), opt("hup", 12)
D1, D2, D3 = opt("d1", 3), opt("d2", 5), opt("d3", 9)
M.add(interleave(gen(t_loads, range(2, 8)), dma1[:D1]))
w2_store(M)
t_loads(M, range(2)); u_pad(M)
for layer in range(2):
    L0 = layer == 0
    cA, cB = 4*layer, 4*layer + 1
    xa, xb, ha, hb_ = g1_loads(layer, 0), g1_loads(layer, 1), g2_loads(layer, 0), g2_loads(layer, 1)
    if L0: conv_half(M, layer, 0, bg=gath[NG0:] + dma1[D1:D1+D2])
    else: conv_half(M, layer, 0, bg=[[]]*opt("sgc", 3) + [gen(sig_all, 3, "xst")] + [[]]*(9-opt("sgc", 3)))
    if L0: conv_inputs(M, 0, 1)
    else: poll_all(M, 3)
    M.add(interleave(gen(conv_ab), dma1[D1+D2:] if L0 else [], start=1))
    sig_all(M, cA, "cst")
    stamp(M, f"L{layer} conv0 signalled")
    if not L0:
        check(M, "all", 3); conv_inputs(M, 1, 1)
        conv_half(M, layer, 1, after_ln=lambda b: poll_all(b, cA), after_mfma=lambda b: check(b, "all", cA), tailbg=xa[:XT])
        M.add(flat(xa[XT:XUP]))
        g1_pre(M)
        sig_all(M, cB, "cst")
    else:
        conv_half(M, layer, 1, pre_barrier="@vm w1")
        poll_all(M, cA)
        setup_g2(M)
        check(M, "all", cA)
        M.add(interleave(gen(colsum), xa[:XUP]))
        M("v_mov_b32 v6, v247")
        g1_pre(M)
        M("@lg cs")
        sig_all(M, cB, "cst")
    stamp(M, f"L{layer} g1A ready")
    w2 = w2_loads() if L0 else []
    def take(n):
        r = w2[:n]; del w2[:n]; return r
    g1_loop(M, 0, xa[XUP:] + take(XUP))
    stamp(M, f"L{layer} g1A loop")
    poll_all(M, cB)
    g1_post1(M, 0, take(8))
    check(M, "all", cB)
    stamp(M, f"L{layer} g1A post1")
    M.add(interleave(gen(g1_post2, layer, 0), xb[:XPF]))
    stamp(M, f"L{layer} g1A stored")
    g1_pre(M)
    g1_loop(M, 1, xb[XPF:] + take(XPF), {3: lambda b: sig_grp(b, 2*layer, "hst")})
    stamp(M, f"L{layer} g1B loop")
    poll_grp(M, 2*layer)
    g1_post1(M, 1, take(8))
    check(M, "grp", 2*layer)
    stamp(M, f"L{layer} g1B post1")
    M.add(interleave(gen(g1_post2, layer, 1), ha[:HPF]))
    stamp(M, f"L{layer} g1B stored")
    rest = ha[HPF:]
    if w2:
        mix = []
        while rest or w2:
            mix.append((rest.pop(0) if rest else []) + (w2.pop(0) if w2 else []))
        rest = mix
    g2_loop(M, rest + g2_res(layer, 0), {opt("sg2", 12): lambda b: sig_grp(b, 2*layer+1, "hst")})
    stamp(M, f"L{layer} g2A loop")
    poll_grp(M, 2*layer+1)
    g2_post1(M)
    if HP2:
        check(M, "grp", 2*layer+1)
        M.add(interleave(gen(g2_post2, layer, 0), hb_[:HP2]))
    else:
        g2_post2(M, layer, 0); check(M, "grp", 2*layer+1)
    stamp(M, f"L{layer} g2A stored")
    M.add(flat(hb_[HP2:HUP]))
    if L0:
        sig_all(M, 2, "xst")
        g2_loop(M, hb_[HUP:] + g2_res(layer, 1), {22: lambda b: poll_all(b, 2)}, tg=t_groups())
        stamp(M, f"L{layer} g2B loop")
        g2_post1(M)
        check(M, "all", 2); conv_inputs(M, 1, 0)
        g2_post2(M, layer, 1)
        stamp(M, f"L{layer} g2B stored")
        M("s_barrier")
        u_pad(M)
        DEFER = True
    else:
        M("s_barrier")
        g2_loop(M, hb_[HUP:] + g2_res(layer, 1))
        stamp(M, f"L{layer} g2B loop")
        g2_post1(M); g2_post2(M, layer, 1)
        stamp(M, f"L{layer} g2B stored")
if STAMP:
    M(f"s_cmp_lg_u32 s{sW}, 0\ns_cbranch_scc1 {DONE}")
    M(f"v_mbcnt_lo_u32_b32 v5, -1, 0\nv_mbcnt_hi_u32_b32 v5, -1, v5\nv_lshlrev_b32 v5, 2, v5\ns_lshl_b32 s5, s2, 8\ns_add_u32 s5, s5, {DBG + 0x400000}")
    M(f"buffer_store_dword v7, v5, {WS}, s5 offen")
M.label(DONE)
M("s_endpgm")

a = Asm()
a.kernel(NAME + "_kernel", vgpr=512, sgpr=96, accum=256)
lines = resolve(strip_marks(M.l)) + tail.l + [".Lkend:"]
lines, added = hazard.fix(lines)
a.lines += lines
print("nops added", added, "lines", len(a.lines), file=sys.stderr)
hdr = "".join(l for l in open(f"cdna_kernels/{NAME}.s.ref").readlines() if l.startswith(";") and "@launch" not in l and "Override" not in l and "grid=ceil" not in l)
a.launches = [f"; @launch grid=(256,1,1) block=(256,1,1) lds={LDS_BYTES}"]
open(OUT, "w").write(a.text(hdr))
json.dump(STAMPS, open("work/" + OUT.split("/")[-1] + ".stamps.json", "w"))
```

```python
import sys, struct, json
sys.path.insert(0, "work")
from asmgen import Asm
import hazard
from sched import resolve, interleave, strip_marks
NAME = "interleave_layers__ssm_conv_s4d__dense_activation_silu__prompt"
STAMP = "--stamp" in sys.argv
OPT = dict(x.lstrip("-").split("=") for x in sys.argv[1:] if x.startswith("--") and "=" in x)
def opt(k, d): return type(d)(OPT.get(k, d))
OUT = [x for x in sys.argv[1:] if not x.startswith("--")]
OUT = OUT[0] if OUT else f"cdna_kernels/{NAME}.s"
def f2u(x): return struct.unpack("<I", struct.pack("<f", x))[0]
LOG2E = 1.4426950408889634
GCNT = 6 * 0x8000
ST0 = 0x80000; ST2 = 0x84000
W2F = 0x100000
W1F = 0x1900000
XP = [0x1700000, 0x300000, 0x500000, 0x700000]
HB = [0x900000, 0x1000000]
WS_BYTES = 0x2000000
HT = 114688
LPK = 114688; PKS = 8256; LCS = 131200; LSCR = 131712
LU = LSCR; US = 4608; LEX = LSCR + 9216
ES = 28672; LGT = LEX
LDS_BYTES = 163840
SWS, SW1, SW2, SOUT = 44, 48, 52, 56
sW, sCPI, sRT, sCT, sLT, sDT, sNON, sGC = 60, 61, 62, 63, 64, 65, 66, 67
sDK, sONE, sMSK, sINV, sEPS, sNL2E = 68, 70, 71, 72, 74, 75
sEXS = 76
sB0, sB1, sO, sW2B, sGS = 78, 79, 80, 81, 82
sSTAMP = 84
sEXQ = 92
SPIN = 60000
vOUT, vPL, vSG, vPD, vONE = 0, 1, 2, 3, 4
vCX, vCS, vUW, vUR, vTB, vEW, vER, vGX, vWA, vXW, vXR, vSW, vSR, vCSA, vH4, vH2, vHL, vRX, vX2, vE1, vE0, vSA = \
    8, 9, 10, 11, 12, 13, 14, 15, 16, 17, 18, 19, 20, 21, 22, 23, 24, 25, 26, 27, 30, 31
vDMA = 24

HSC = "sc1" if opt("hsc", 1) else opt("hfl", "")
GFLAG = opt("gflag", 0)
if opt("samehb", 0): HB = [HB[0], HB[0]]
class Buf:
    def __init__(self): self.l = []
    def __call__(self, s):
        for ln in s.strip("\n").split("\n"): self.l.append("    " + ln.strip())
    def label(self, n): self.l.append(n + ":")
    def add(self, lines): self.l += lines
uid = [0]
def lab(b="L"):
    uid[0] += 1; return f".{b}_{uid[0]}"
def srd(n): return f"s[{n}:{n+3}]"
def v(n, k=1): return f"v{n}" if k == 1 else f"v[{n}:{n+k-1}]"
def ac(n, k=1): return f"a{n}" if k == 1 else f"a[{n}:{n+k-1}]"
def flat(groups): return [l for g in groups for l in g]
def gen(fn, *args, **kw):
    t = Buf(); fn(t, *args, **kw); return t.l
WS = srd(SWS)
tail = Buf()
STAMPS = []
def stamp(b, name):
    if not STAMP: return
    i = len(STAMPS); STAMPS.append(name)
    assert i < 64
    b(f"@{{\n{'s_memtime' if opt('cyc', 0) else 's_memrealtime'} s[{sSTAMP}:{sSTAMP+1}]\ns_waitcnt lgkmcnt(0)\nv_writelane_b32 v7, s{sSTAMP}, {i}\n@}}")

GADDR = f"v_lshrrev_b32 v5, 10, v{vSG}\nv_and_b32 v5, 0xfc, v5" if GFLAG else f"v_and_b32 v5, 0x300, v{vPL}"
def poll_all(b, cnt):
    b(f"s_mov_b32 s{sO}, {cnt*0x8000}\nbuffer_load_dword v{vPD}, v{vPL}, {WS}, s{sO} offen sc1 ;@poll")
def poll_grp(b, idx):
    b(f"@{{\ns_add_u32 s{sO}, s{sGC}, {idx*16*1024}\n{GADDR}\nbuffer_load_dword v{vPD}, v5, {WS}, s{sO} offen sc1 ;@poll\n@}}")
def check(b, kind, idx):
    slow = lab("slow"); back = lab("back"); lp = lab("lp")
    b("@vm poll")
    b(f"@{{\nv_cmp_gt_u32 vcc, {1 if (GFLAG and kind == 'grp') else 16}, v{vPD}\ns_cbranch_vccnz {slow}")
    b.label(back); b("@}")
    tail.label(slow)
    tail(f"s_mov_b32 s10, {SPIN}")
    if kind == "all": tail(f"s_mov_b32 s11, {idx*0x8000}\nv_mov_b32 v5, v{vPL}")
    else: tail(f"s_add_u32 s11, s{sGC}, {idx*16*1024}\n{GADDR}")
    tail.label(lp)
    tail(f"buffer_load_dword v{vPD}, v5, {WS}, s11 offen sc1\ns_waitcnt vmcnt(0)")
    tail(f"v_cmp_gt_u32 vcc, {1 if (GFLAG and kind == 'grp') else 16}, v{vPD}\ns_cbranch_vccz {back}")
    tail(f"s_sub_u32 s10, s10, 1\ns_cmp_lg_u32 s10, 0\ns_cbranch_scc1 {lp}\ns_branch {back}")
def sig_all(b, cnt, tag, barrier=True):
    b(f"@vm {tag}\n@{{\n{'s_barrier' if barrier else 's_nop 0'}\ns_mov_b32 s{sO}, {cnt*0x8000}\ns_mov_b64 exec, s[{sEXS}:{sEXS+1}]")
    b(f"buffer_atomic_add v{vONE}, v{vSG}, {WS}, s{sO} offen sc1\ns_mov_b64 exec, -1\n@}}")
def sig_grp(b, idx, tag):
    b(f"@vm {tag}\n@{{\ns_add_u32 s{sO}, s{sGS}, {idx*16*1024}\ns_mov_b64 exec, 1")
    if GFLAG: b(f"buffer_store_dword v{vONE}, off, {WS}, s{sO} {HSC}\ns_mov_b64 exec, -1\ns_barrier\n@}}")
    else: b(f"buffer_atomic_add v{vONE}, off, {WS}, s{sO} sc1\ns_mov_b64 exec, -1\ns_barrier\n@}}")
def xsum(b, regs, tmp, steps):
    for s in steps:
        for i, r in enumerate(regs): b(f"v_mov_b32 v{tmp+i}, v{r}")
        for i, r in enumerate(regs): b(f"v_permlane{s}_swap_b32 v{r}, v{tmp+i}")
        for i, r in enumerate(regs): b(f"v_add_f32 v{r}, v{r}, v{tmp+i}")
def rnd(b, d, s): b(f"v_cvt_pk_bf16_f32 v{d}, 0, v{s}")

M = Buf()
DONE = ".Ldone"
M.label(".Lkstart")
M("s_cmp_ge_u32 s2, 256")
M(f"s_cbranch_scc1 {DONE}")
M("s_load_dwordx16 s[16:31], s[0:1], 0\ns_load_dwordx8 s[32:39], s[0:1], 64\ns_load_dwordx2 s[40:41], s[0:1], 96")
M("s_memrealtime s[14:15]")
M("s_getpc_b64 s[42:43]")
M("v_and_b32 v1, 63, v0\nv_lshlrev_b32 v2, 4, v1\nv_lshrrev_b32 v3, 6, v0")
M(f"v_readfirstlane_b32 s{sW}, v3")
if STAMP: M("v_mov_b32 v7, 0")
M("s_and_b32 s3, s2, 7\ns_lshr_b32 s4, s2, 3")
M(f"s_lshl_b32 s5, s4, 2\ns_add_u32 s5, s5, s{sW}\ns_min_u32 s5, s5, ((.Lkend-.Lkstart-128)>>10)-1\ns_lshl_b32 s5, s5, 10\nv_add_u32 v5, s5, v2")
M("global_load_dwordx4 v[200:203], v5, s[42:43]\ns_mov_b32 s90, s5")
M(f"s_lshl_b32 s{sCPI}, s3, 5\ns_add_u32 s{sCPI}, s{sCPI}, s4")
M(f"s_and_b32 s{sCT}, s4, 15")
M(f"s_lshl_b32 s{sRT}, s3, 1\ns_lshr_b32 s5, s4, 4\ns_add_u32 s{sRT}, s{sRT}, s5")
M(f"s_lshl_b32 s{sLT}, s{sRT}, 1\ns_bfe_u32 s5, s4, 0x10003\ns_add_u32 s{sLT}, s{sLT}, s5\ns_and_b32 s{sDT}, s4, 7")
M(f"s_lshl_b32 s{sGC}, s{sRT}, 10\ns_add_u32 s{sGC}, s{sGC}, {GCNT}\ns_lshl_b32 s5, s{sW}, 8\ns_add_u32 s{sGS}, s{sGC}, s5")
if GFLAG: M(f"s_lshl_b32 s5, s{sCT}, 2\ns_add_u32 s5, s5, s{sW}\ns_lshl_b32 s5, s5, 2\ns_add_u32 s{sGS}, s{sGC}, s5")
M(f"s_mov_b32 s{sONE}, 0x3f803f80\ns_mov_b32 s{sMSK}, 0xffff0000\ns_mov_b32 s{sINV}, {f2u(1/512):#x}\ns_mov_b32 s{sINV+1}, {f2u(1/512):#x}")
M(f"s_mov_b32 s{sEPS}, {f2u(1e-5):#x}\ns_mov_b32 s{sNL2E}, {f2u(-LOG2E):#x}")
M(f"s_lshl_b32 s5, s{sW}, 1\ns_lshl_b32 s{sEXS}, 3, s5\ns_mov_b32 s{sEXS+1}, 0")
M(f"s_lshl_b32 s5, s{sW}, 2\ns_lshl_b32 s{sEXQ}, 0x000f000f, s5\ns_mov_b32 s{sEXQ+1}, s{sEXQ}")
M(f"s_lshl_b32 s5, s2, 13\ns_lshl_b32 s6, s{sW}, 11\ns_add_u32 s5, s5, s6\nv_add_u32 v62, s5, v2")
M(f"s_lshl_b32 s5, s{sCPI}, 9\nv_lshlrev_b32 v63, 1, v0\nv_add_u32 v63, s5, v63")
M(f"s_lshr_b32 s5, s2, 2\ns_lshl_b32 s5, s5, 15\ns_and_b32 s6, s2, 3\ns_lshl_b32 s6, s6, 8\ns_add_u32 s5, s5, s6\ns_lshl_b32 s6, s{sW}, 6\ns_add_u32 s5, s5, s6")
M("v_and_b32 v5, 7, v1\nv_lshlrev_b32 v64, 12, v5\nv_lshrrev_b32 v6, 3, v1\nv_lshl_add_u32 v64, v6, 3, v64\nv_add_u32 v64, s5, v64")
M("v_lshlrev_b32 v65, 10, v6\nv_lshl_add_u32 v65, v5, 4, v65\nv_lshlrev_b32 v207, 9, v6\nv_lshl_add_u32 v207, v5, 4, v207")
M(f"s_lshl_b32 s94, s2, 2\ns_add_u32 s94, s94, s{sW}\ns_min_u32 s94, s94, 895")
M("s_mul_i32 s95, s94, 2341\ns_lshr_b32 s95, s95, 16\ns_mul_i32 s5, s95, 28\ns_sub_u32 s96, s94, s5")
M("s_and_b32 s5, s95, 3\ns_mul_i32 s5, s5, 448\ns_lshl_b32 s6, s96, 4\ns_add_u32 s5, s5, s6\ns_lshl_b32 s7, s5, 10\ns_lshr_b32 s5, s95, 2\ns_lshl_b32 s5, s5, 7\ns_add_u32 s7, s7, s5")
M(f"s_lshl_b32 s9, s{sW}, 12\ns_add_u32 s9, s9, {LPK}")
M(f"s_mov_b32 s{SWS+2}, {WS_BYTES:#x}\ns_mov_b32 s{SWS+3}, 0x20000")
M("s_waitcnt lgkmcnt(0)")
stamp(M, "start")
M(f"s_mov_b32 s{SWS}, s40\ns_mov_b32 s{SWS+1}, s41")
n0 = lab("n0"); n1 = lab("n1")
M(f"s_cmp_ge_u32 s2, 128\ns_cbranch_scc1 {n1}")
M(f"s_or_b32 s5, s2, s{sW}\ns_cmp_lg_u32 s5, 0\ns_cbranch_scc1 {n0}")
M("s_or_b32 s14, s14, 1\nv_mov_b32 v5, s14\nv_lshlrev_b32 v6, 2, v1\nglobal_store_dword v6, v5, s[38:39] sc1 ;@!")
M.label(n0)
M(f"s_lshl_b32 s5, s2, 2\ns_add_u32 s5, s5, s{sW}\ns_lshl_b32 s6, s5, 9\ns_lshl_b32 s5, s5, 5\ns_add_u32 s5, s5, {ST2}")
M("v_mov_b32 v4, 0\nv_mov_b32 v5, 0\nv_lshlrev_b32 v6, 3, v1\nv_lshlrev_b32 v8, 2, v1")
M(f"buffer_store_dwordx2 v[4:5], v6, {WS}, s6 offen sc1 ;@!\ns_mov_b64 exec, 0xff\nbuffer_store_dword v5, v8, {WS}, s5 offen sc1 ;@!\ns_mov_b64 exec, -1")
M.label(n1)
for i, dst in enumerate([216, 220, 218, 222]): M(f"global_load_dwordx2 {v(dst,2)}, v64, s[16:17] offset:{i*1024} ;@b1")
M("global_load_dwordx4 v[32:35], v62, s[16:17] ;@b1\nglobal_load_dwordx4 v[36:39], v62, s[16:17] offset:1024 ;@b1")
for sd, sb, nb in [(SW1, 32, 512*1792*2), (SW2, 34, 512*1792*2), (SOUT, 36, 2048*512*2)]:
    M(f"s_mov_b32 s{sd}, s{sb}\ns_mov_b32 s{sd+1}, s{sb+1}\ns_mov_b32 s{sd+2}, {nb:#x}\ns_mov_b32 s{sd+3}, 0x20000")
M(f"s_mov_b32 m0, s9\ns_add_u32 s5, s7, 8192\nbuffer_load_dwordx4 v65, {srd(SW2)}, s7 offen lds ;@b2\ns_add_u32 m0, s9, 1024\ns_nop 0\nbuffer_load_dwordx4 v65, {srd(SW2)}, s5 offen lds ;@b2")
for i in range(4): M(f"global_load_ushort v{48+i}, v63, s[{18+2*i}:{19+2*i}] ;@par")
M(f"s_lshl_b32 s5, s{sCPI}, 2")
M("s_load_dword s12, s[26:27], s5\ns_load_dword s13, s[28:29], s5")
if opt("tlb", 1):
    M(f"v_lshlrev_b32 v5, 20, v1\ns_mov_b64 exec, 0x7ffffff\ns_mov_b32 s5, 0xc0000\nbuffer_load_dword v240, v5, {WS}, s5 offen sc1\ns_mov_b64 exec, 3")
    M(f"buffer_load_dword v243, v5, {srd(SOUT)}, 0 offen\ns_mov_b64 exec, -1")
M("v_and_b32 v60, 15, v1\nv_lshrrev_b32 v61, 4, v1")
sD0, sD1 = 88, 89
sRX, sRH = 16, 24
M(f"s_mul_i32 s{sD0}, s{sW}, {128*3584}\ns_mul_i32 s5, s{sCT}, 224\ns_add_u32 s{sD0}, s{sD0}, s5\ns_mul_i32 s{sD1}, s{sW}, 28672")
dma = [[f"    s_add_u32 m0, s{sD1}, {p*1024}", f"    s_add_u32 s{sB1}, s{sD0}, {(p//7)*32*3584}", f"    buffer_load_dwordx4 v{vDMA+p%7}, {srd(SW1)}, s{sB1} offen lds ;@w1"] for p in range(28)]
dma = dma[17:] + dma[:17]
def setup_dma(b):
    b(f"s_and_b32 s7, s{sCT}, 1\ns_lshl_b32 s8, s7, 5\ns_mul_i32 s7, s7, 192\ns_sub_u32 s7, 192, s7")
    b("v_and_b32 v64, 3, v1\nv_lshlrev_b32 v64, 4, v64\nv_add_u32 v65, s8, v64\nv_xor_b32 v66, 32, v64")
    b(f"v_add_u32 v66, s8, v66\nv_add_u32 v66, {3584-192}, v66")
    b("v_and_b32 v67, 16, v64\nv_add_u32 v67, s7, v67\nv_lshrrev_b32 v64, 5, v64\nv_mul_u32_u24 v64, 3584, v64")
    b(f"v_add_u32 v67, v67, v64\nv_subrev_u32 v67, {6*64}, v67\nv_lshrrev_b32 v64, 2, v1")
    for k in range(7):
        b(f"v_add_u32 v5, {16*k}, v64\nv_mul_u32_u24 v6, 9363, v5\nv_lshrrev_b32 v6, 16, v6\nv_mul_u32_u24 v62, 7, v6\nv_sub_u32 v5, v5, v62")
        b(f"@{{\nv_cmp_lt_u32 vcc, 2, v5\nv_mul_u32_u24 v6, 7168, v6\nv_lshl_add_u32 v6, v5, 6, v6\nv_cndmask_b32 v62, v65, v66, vcc\nv_cmp_eq_u32 vcc, 6, v5\ns_nop 1\nv_cndmask_b32 v62, v62, v67, vcc\n@}}")
        b(f"v_add_u32 v{vDMA+k}, v6, v62")
def setup(b):
    b(f"s_and_b32 s5, s{sW}, 1\ns_lshr_b32 s6, s{sW}, 1")
    b(f"v_bfe_u32 v{vCX}, v1, 2, 2\nv_lshlrev_b32 v{vCX}, 16, v{vCX}\nv_and_b32 v5, 3, v1\nv_lshl_add_u32 v{vCX}, v5, 6, v{vCX}\nv_lshl_add_u32 v{vCX}, v61, 4, v{vCX}")
    b(f"s_lshl_b32 s7, s{sW}, 18\ns_lshl_b32 s8, s{sCPI}, 8\ns_add_u32 s7, s7, s8\nv_add_u32 v{vCX}, s7, v{vCX}")
    b(f"v_lshlrev_b32 v{vCS}, 7, v60\nv_lshl_add_u32 v{vCS}, v61, 5, v{vCS}\ns_lshl_b32 s7, s{sW}, 11\nv_add_u32 v{vCS}, s7, v{vCS}")
    b(f"v_lshlrev_b32 v5, 5, v60\nv_lshl_add_u32 v{vUW}, v61, 3, v5\ns_lshl_b32 s7, s{sW}, 9\ns_add_u32 s7, s7, {LU+512}\nv_add_u32 v{vUW}, s7, v{vUW}")
    b(f"v_lshl_add_u32 v{vUR}, v61, 4, v5\ns_mul_i32 s7, s6, {US}\ns_lshl_b32 s8, s5, 8\ns_sub_u32 s7, s7, s8\ns_add_u32 s7, s7, {LU}\nv_add_u32 v{vUR}, s7, v{vUR}")
    b(f"v_lshlrev_b32 v5, 3, v61\nv_sub_u32 v5, v60, v5\nv_lshlrev_b32 v5, 2, v5\ns_mul_i32 s7, s6, {PKS}\ns_lshl_b32 s8, s5, 9\ns_add_u32 s7, s7, s8\ns_add_u32 s7, s7, {LPK+26*4}\nv_add_u32 v{vTB}, s7, v5")
    b(f"s_lshl_b32 s7, s{sW}, 10\ns_add_u32 s7, s7, {LEX}\nv_add_u32 v{vEW}, s7, v2\ns_lshl_b32 s7, s{sW}, 12\ns_add_u32 s7, s7, {LEX}\nv_add_u32 v{vER}, s7, v2")
    b(f"v_lshlrev_b32 v{vGX}, 9, v61\nv_lshl_add_u32 v{vGX}, v60, 3, v{vGX}\ns_lshl_b32 s7, s{sRT}, 16\ns_lshl_b32 s8, s5, 7\ns_add_u32 s7, s7, s8\ns_lshl_b32 s8, s6, 15\ns_add_u32 s7, s7, s8\nv_add_u32 v{vGX}, s7, v{vGX}")
    b(f"v_lshlrev_b32 v5, 2, v61\nv_bfe_u32 v6, v1, 2, 2\nv_add_u32 v5, v5, v6\nv_mul_u32_u24 v5, 224, v5\nv_and_b32 v6, 3, v1\nv_lshl_add_u32 v5, v6, 3, v5\ns_mul_i32 s7, s6, {256*224}\nv_add_u32 v{vWA}, s7, v5")
    b(f"s_mul_i32 s7, s{sW}, 7680\ns_add_u32 s7, s7, {LSCR}\nv_add_u32 v{vXW}, s7, v2\nv_lshlrev_b32 v5, 3, v1\nv_add_u32 v{vSW}, s7, v5")
    b(f"s_xor_b32 s7, s{sW}, 2\ns_mul_i32 s7, s7, 7680\ns_add_u32 s7, s7, {LSCR}\nv_add_u32 v{vXR}, s7, v2\nv_add_u32 v{vSR}, s7, v5")
    b(f"v_lshlrev_b32 v{vCSA}, 4, v61\nv_add_u32 v{vCSA}, {LCS}, v{vCSA}")
    b(f"s_lshl_b32 s7, s{sRT}, 1\ns_add_u32 s7, s7, s5\ns_mul_i32 s7, s7, {HT}\ns_mul_i32 s8, s{sCT}, 7168\ns_add_u32 s7, s7, s8\ns_lshl_b32 s8, s6, 8\ns_add_u32 s7, s7, s8")
    b(f"v_and_b32 v5, 1, v61\nv_lshrrev_b32 v6, 1, v61\nv_lshlrev_b32 v{vH2}, 9, v6\nv_lshl_add_u32 v{vH2}, v60, 4, v{vH2}\nv_add_u32 v{vH2}, s7, v{vH2}\nv_lshl_add_u32 v{vH4}, v5, 10, v{vH2}\nv_lshl_add_u32 v{vH2}, v5, 3, v{vH2}")
    b(f"s_and_b32 s7, s{sCT}, 1\ns_lshl_b32 s8, s7, 10\nv_add_u32 v{vH4}, s8, v{vH4}\ns_mul_i32 s8, s7, 6144\nv_subrev_u32 v{vH2}, s8, v{vH2}")
    b(f"v_lshlrev_b32 v204, 8, v60\ns_lshl_b32 s7, s3, 12\nv_add_u32 v204, s7, v204")
    b(f"v_lshlrev_b32 v205, 12, v1\ns_lshl_b32 s7, s{sCT}, 8\nv_add_u32 v205, s7, v205\nv_mov_b32 v{vONE}, 1")
    b(f"s_load_dword s{sNON}, s[38:39], 0")
    for k in range(9):
        b(f"v_lshlrev_b32 v5, 3, v0\nv_add_u32 v5, {k-1}, v5")
        if k == 0: b("v_max_i32 v5, 0, v5")
        b("v_cvt_f32_u32 v5, v5\nv_cvt_pk_bf16_f32 v5, 0, v5\nv_cvt_u32_f32 v6, v5")
        b("v_lshrrev_b32 v5, 23, v5\nv_subrev_u32 v5, 134, v5\nv_med3_i32 v5, v5, 0, 3")
        b("v_lshrrev_b32 v62, 7, v6\nv_and_b32 v63, 7, v6\nv_lshl_or_b32 v62, v62, 3, v63\nv_lshrrev_b32 v62, v5, v62\nv_lshl_add_u32 v62, v5, 3, v62")
        b(f"v_bfe_u32 v6, v6, 3, 4\nv_lshlrev_b32 v6, 2, v6\nv_lshl_add_u32 v6, v62, 6, v6\nv_add_u32 v{IDX+k}, {LGT}, v6")
def setup_g2(b):
    b("v_mbcnt_lo_u32_b32 v248, -1, 0\nv_mbcnt_hi_u32_b32 v248, -1, v248\nv_lshlrev_b32 v6, 4, v248")
    b(f"s_mul_i32 s7, s{sLT}, {HT}\ns_mul_i32 s8, s{sW}, 28672\ns_add_u32 s7, s7, s8\nv_add_u32 v{vHL}, s7, v6")
    b("v_and_b32 v249, 15, v248\nv_lshlrev_b32 v249, 1, v249\nv_bfe_u32 v5, v248, 4, 1\nv_add_u32 v249, v249, v5\nv_lshrrev_b32 v250, 5, v248")
    b(f"s_lshr_b32 s7, s{sLT}, 1\ns_lshl_b32 s7, s7, 16\ns_and_b32 s8, s{sLT}, 1\ns_lshl_b32 s8, s8, 7\ns_add_u32 s7, s7, s8\ns_lshl_b32 s8, s{sDT}, 13\ns_add_u32 s7, s7, s8\ns_lshl_b32 s8, s{sW}, 11\ns_add_u32 s7, s7, s8")
    b(f"v_lshlrev_b32 v{vX2}, 9, v250\nv_lshl_add_u32 v{vX2}, v249, 2, v{vX2}\nv_add_u32 v{vX2}, s7, v{vX2}\ns_and_b32 s8, s{sDT}, 4\nv_xor_b32 v{vRX}, s8, v{vX2}")
    for sg in range(1, 4):
        b(f"s_xor_b32 s7, s{sW}, {sg}\ns_mul_i32 s7, s7, 6144\ns_add_u32 s7, s7, {LSCR+(sg-1)*2048}\nv_add_u32 v{vE1+sg-1}, s7, v6")
    b(f"s_mul_i32 s7, s{sW}, 6144\ns_add_u32 s7, s7, {LSCR}\nv_add_u32 v{vE0}, s7, v6")
    b(f"v_lshlrev_b32 v{vSA}, 3, v249\nv_lshl_add_u32 v{vSA}, v250, 2, v{vSA}\ns_lshl_b32 s7, s{sLT}, 8\nv_add_u32 v{vSA}, s7, v{vSA}")
    b(f"v_lshlrev_b32 v{vOUT}, 10, v249\nv_lshl_add_u32 v{vOUT}, v250, 4, v{vOUT}\ns_lshl_b32 s7, s{sLT}, 15\ns_lshl_b32 s8, s{sDT}, 7\ns_add_u32 s7, s7, s8\ns_lshl_b32 s8, s{sW}, 5\ns_add_u32 s7, s7, s8\nv_add_u32 v{vOUT}, s7, v{vOUT}")
    b(f"s_lshl_b32 s5, s{sDT}, 2\ns_add_u32 s5, s5, s{sW}\ns_mul_i32 s5, s5, 57344\ns_add_u32 s{sW2B}, s5, {W2F}")
def setup_p0(b):
    b("v_lshrrev_b32 v254, 5, v1")
    b("s_and_b32 s5, s95, 3\nv_and_b32 v5, 1, v61\nv_xor_b32 v209, s5, v5\nv_xor_b32 v210, 2, v209")
    b("v_lshlrev_b32 v5, 3, v254\nv_bfe_u32 v6, v1, 2, 2\nv_add_u32 v5, v5, v6\nv_lshlrev_b32 v5, 7, v5\nv_and_b32 v62, 3, v1\nv_lshl_add_u32 v5, v62, 3, v5\nv_add_u32 v5, s9, v5")
    b("v_lshl_add_u32 v209, v209, 5, v5\nv_lshl_add_u32 v210, v210, 5, v5")
    b(f"s_lshl_b32 s99, s94, 11\ns_add_u32 s99, s99, {W2F}")
    b(f"s_lshl_b32 s11, s4, 16\ns_bfe_u32 s6, s2, 0x10002\ns_lshl_b32 s6, s6, 7\ns_add_u32 s11, s11, s6\ns_and_b32 s6, s2, 3\ns_lshl_b32 s6, s6, 14\ns_add_u32 s11, s11, s6\ns_lshl_b32 s6, s{sW}, 12\ns_add_u32 s11, s11, s6\ns_add_u32 s11, s11, {XP[0]}")
IDX = 100
wq = list(dma)
def take(n):
    r = wq[:n]; del wq[:n]; return r
setup_p0(M); setup_dma(M)
M.add(interleave(gen(setup), take(opt("e0", 3)), start=20))
stamp(M, "p0 setup")
M("@vm b1")
stamp(M, "p0 rows")
M("v_swap_b32 v217, v220\nv_swap_b32 v219, v222")
M(f"buffer_store_dwordx4 v[216:219], v207, {WS}, s11 offen sc1 ;@p0s\nbuffer_store_dwordx4 v[220:223], v207, {WS}, s11 offen offset:256 sc1 ;@p0s")
for i in range(4): M(f"v_mov_b32 v{52+i}, 0")
for q in range(4):
    M(f"v_dot2c_f32_bf16 v52, s{sONE}, v{32+q}\nv_dot2c_f32_bf16 v53, v{32+q}, v{32+q}")
    M(f"v_dot2c_f32_bf16 v54, s{sONE}, v{36+q}\nv_dot2c_f32_bf16 v55, v{36+q}, v{36+q}")
for m_ in ["quad_perm:[1,0,3,2]", "quad_perm:[2,3,0,1]", "row_half_mirror", "row_mirror"]:
    for i in range(4): M(f"v_add_f32_dpp v{52+i}, v{52+i}, v{52+i} {m_} row_mask:0xf bank_mask:0xf")
xsum(M, [52, 53, 54, 55], 56, [16, 32])
for r in (52, 54): M(f"v_pk_mul_f32 {v(r,2)}, {v(r,2)}, s[{sINV}:{sINV+1}]")
for r in (52, 54): M(f"v_fma_f32 v{r+1}, -v{r}, v{r}, v{r+1}")
for r in (52, 54): rnd(M, r+1, r+1)
for r in (52, 54): M(f"v_add_f32 v{r+1}, s{sEPS}, v{r+1}")
for r in (52, 54): rnd(M, r+1, r+1)
for r in (52, 54): M(f"v_sqrt_f32 v{r+1}, abs(v{r+1})")
for r in (52, 54): M(f"v_cvt_pk_bf16_f32 v{r}, v{r}, v{r+1}")
M(f"s_lshl_b32 s5, s2, 6\ns_lshl_b32 s6, s{sW}, 4\ns_add_u32 s5, s5, s6\ns_add_u32 s15, s5, {ST0}")
stamp(M, "p0 stats")
nn = lab("nn"); nl = lab("nl"); nb = lab("nb")
M("s_waitcnt lgkmcnt(0)")
M(f"s_cmp_eq_u32 s{sNON}, 0\ns_cbranch_scc1 {nn}")
M.label(nb)
tail.label(nn)
for k in range(1, 4):
    tail(f"s_load_dword s{sNON}, s[38:39], {64*k}\ns_waitcnt lgkmcnt(0)\ns_cmp_lg_u32 s{sNON}, 0\ns_cbranch_scc1 {nb}")
tail(f"s_mov_b32 s10, {SPIN}\nv_mov_b32 v5, 0")
tail.label(nl)
tail("global_load_dword v6, v5, s[38:39] sc1\ns_waitcnt vmcnt(0)")
tail(f"v_readfirstlane_b32 s{sNON}, v6\ns_cmp_lg_u32 s{sNON}, 0\ns_cbranch_scc1 {nb}")
tail(f"s_sub_u32 s10, s10, 1\ns_cmp_lg_u32 s10, 0\ns_cbranch_scc1 {nl}\ns_branch {nb}")
M(f"v_mov_b32 v212, v52\nv_mov_b32 v213, s{sNON}\nv_mov_b32 v214, v54\nv_mov_b32 v215, s{sNON}")
publish = gen(lambda b: (b(f"@vm p0s\n@{{\ns_barrier\ns_mov_b64 exec, 1\nbuffer_store_dwordx4 v[212:215], off, {WS}, s15 sc1\ns_mov_b64 exec, -1\n@}}"), stamp(b, "p0 published")))
def w2_relay(b):
    n3 = lab("n3")
    b("@vm b2")
    for mt in range(2):
        for hf in range(2): b(f"ds_read_b64_tr_b16 {v(224+4*mt+2*hf,2)}, v{209+mt} offset:{hf*512} ;@w2r")
    b(f"@lg w2r\n@{{\ns_cmp_ge_u32 s2, 224\ns_cbranch_scc1 {n3}")
    b(f"buffer_store_dwordx4 v[224:227], v2, {WS}, s99 offen sc1 ;@!\nbuffer_store_dwordx4 v[228:231], v2, {WS}, s99 offen offset:1024 sc1 ;@!")
    b.label(n3); b("@}")
def kgen(Kg):
    Kg(f"s_lshl_b32 s{sDK}, s13, 16\ns_and_b32 s{sDK+1}, s13, s{sMSK}")
    Kg(f"@{{\ns_lshl_b32 s5, s12, 16\ns_and_b32 s6, s12, s{sMSK}\ns_cmp_ge_u32 s{sW}, 2\ns_cselect_b32 s5, s6, s5\n@}}")
    L2E = f"{f2u(LOG2E):#x}"
    VAL = lambda row: 110 + 2*row if row < 45 else 62 + 2*(row - 45)
    Kg(f"v_mov_b32 v5, s5\nv_mul_f32 v5, {L2E}, v5\nv_exp_f32 v5, v5")
    for i in range(4): Kg(f"v_lshlrev_b32 v{48+i}, 16, v{48+i}")
    Kg(f"v_mul_f32 v48, {L2E}, v48\nv_exp_f32 v48, v48")
    Kg(f"s_mul_i32 s5, s{sW}, {ES}")
    Kg("v_lshlrev_b32 v98, 2, v1\nv_add_u32 v98, s5, v98")
    rnd(Kg, 5, 5); rnd(Kg, 48, 48)
    Kg(f"v_mul_f32 v49, v49, v5\nv_mul_f32 v48, v48, v5\nv_mul_f32 v49, 0.15915494, v49\nv_mul_f32 v48, s{sNL2E}, v48")
    Kg(f"v_add_f32 v5, v5, v5\nv_mul_f32 v{VAL(0)}, v50, v5\nv_mul_f32 v{VAL(0)+1}, v51, v5")
    E1, E8, E128, E1K = VAL(17), 34, VAL(24), VAL(48)
    PS = [(E1, 1.0), (E8, 8.0), (E128, 128.0), (E1K, 1024.0)]
    for k, (dst, p) in enumerate(PS): Kg(f"v_mul_f32 v{52+k}, {f2u(p):#x}, v48\nv_mul_f32 v{56+k}, {f2u(p):#x}, v49")
    for k, (dst, p) in enumerate(PS): Kg(f"v_exp_f32 v{52+k}, v{52+k}\nv_fract_f32 v{56+k}, v{56+k}")
    for k, (dst, p) in enumerate(PS): Kg(f"v_cos_f32 v{dst}, v{56+k}\nv_sin_f32 v{dst+1}, v{56+k}")
    Kg("v_mul_u32_u24 v99, 272, v60\nv_lshl_add_u32 v99, v61, 4, v99\nv_add_u32 v99, s5, v99")
    Kg(f"v_mov_b32 v{VAL(16)}, 1.0\nv_mov_b32 v{VAL(16)+1}, 0")
    for k, (dst, p) in enumerate(PS): Kg(f"v_mul_f32 v{dst}, v{dst}, v{52+k}\nv_mul_f32 v{dst+1}, v{dst+1}, v{52+k}")
    e16, e32, e64 = 36, 38, 32
    V = VAL
    levels = [
        [(V(1), V(0), E8), (V(18), E1, E1), (V(32), E128, E128), (e16, E8, E8), (V(56), E1K, E1K), (V(25), E1, E128), (V(49), E1K, E128)],
        [(e32, e16, e16), (V(20), V(18), V(18)), (V(40), V(32), V(32)), (V(2), V(0), e16), (V(3), V(1), e16), (V(19), V(18), E1), (V(36), V(32), E128),
         (V(26), V(18), E128), (V(50), E1K, V(32)), (V(33), V(32), V(18))],
        [(e64, e32, e32), (V(4), V(0), e32), (V(5), V(1), e32), (V(6), V(2), e32), (V(7), V(3), e32), (V(21), V(20), E1), (V(22), V(20), V(18)), (V(23), V(20), V(19)),
         (V(42), V(40), E128), (V(44), V(40), V(32)), (V(46), V(40), V(36)), (V(27), V(19), E128), (V(28), V(20), E128), (V(51), E1K, V(36)), (V(52), E1K, V(40)),
         (V(34), V(32), V(20)), (V(37), V(36), V(18)), (V(38), V(36), V(20)), (V(41), V(40), V(20))],
        [(V(8 + i), V(i), e64) for i in range(8)] +
        [(V(29), V(21), E128), (V(30), V(22), E128), (V(31), V(23), E128), (V(35), V(32), V(22)), (V(39), V(36), V(22)),
         (V(43), V(42), V(20)), (V(45), V(44), V(20)), (V(47), V(46), V(20)), (V(53), E1K, V(42)), (V(54), E1K, V(44)), (V(55), E1K, V(46))],
    ]
    row_of = {VAL(r): r for r in range(57)}
    pend = [0, 16, 17, 24, 48]; written = []
    rot = [0]
    def puts(rows):
        g = []
        for r in rows:
            t = 86 + rot[0] % 12; rot[0] += 1
            g.append((f"    v_cvt_pk_bf16_f32 v{t}, v{VAL(r)}, {'-' if r < 16 else ''}v{VAL(r)+1}", f"    ds_write_b32 v98, v{t} offset:{r*272}"))
            written.append(r)
        out = []
        for k in range(len(g) + 1):
            out.append(([g[k][0]] if k < len(g) else []) + ([g[k-1][1]] if k > 0 else []))
        return out
    for lv in levels:
        t = Buf()
        for d_, x_, y_ in lv: t(f"v_pk_mul_f32 {v(d_,2)}, {v(x_,2)}, {v(y_,2)} op_sel_hi:[1,0]")
        for d_, x_, y_ in lv: t(f"v_pk_fma_f32 {v(d_,2)}, {v(x_,2)}, {v(y_,2)}, {v(d_,2)} op_sel:[1,1,0] op_sel_hi:[0,1,1] neg_lo:[1,0,0]")
        Kg.add(interleave(t.l, puts(pend)))
        pend = [row_of[d_] for d_, _, _ in lv if d_ in row_of]
    Kg.add(flat(puts(pend)))
    assert sorted(written) == list(range(57))
    LOF, HF, GD = 110, 126, 62
    Kg("s_waitcnt lgkmcnt(0)")
    for s_ in range(4):
        Kg(f"ds_read_b128 {v(LOF+4*s_,4)}, v99 offset:{s_*64} ;@kf{s_}")
        for T in range(3): Kg(f"ds_read_b128 {v(HF+16*T+4*s_,4)}, v99 offset:{(16+16*T)*272+s_*64} ;@kf{s_}")
    Kg(f"s_mul_i32 s5, s{sW}, 3072\ns_add_u32 s5, s5, {LGT}")
    Kg("v_lshlrev_b32 v5, 2, v60\nv_lshl_add_u32 v5, v61, 8, v5\nv_add_u32 v5, s5, v5")
    for s_ in range(4):
        Kg(f"@lg kf{s_}")
        for T in range(3): Kg(f"v_mfma_f32_16x16x32_bf16 {v(GD+4*T,4)}, {v(HF+16*T+4*s_,4)}, {v(LOF+4*s_,4)}, {'0' if s_ == 0 else v(GD+4*T,4)}")
    for T in range(3):
        for r in range(0, 4, 2): Kg(f"ds_write2_b32 v5, v{GD+4*T+r}, v{GD+4*T+r+1} offset0:{r*16} offset1:{r*16+16}") if T == 0 else None
        if T:
            for r in range(4): Kg(f"ds_write_b32 v5, v{GD+4*T+r} offset:{(T*16+r)*64}")
M("@vm par")
kl = gen(kgen)
PUB = opt("pub", 70)
kl = interleave(kl, [publish + gen(w2_relay)], start=PUB, every=1)
M.add(interleave(kl, take(11 - opt("e0", 3)), start=4))
stamp(M, "kgen core")
M(f"s_mov_b32 s{sO}, {ST0}\nbuffer_load_dwordx4 v[232:235], v{vCS}, {WS}, s{sO} offen sc1 ;@cin\nbuffer_load_dwordx4 v[236:239], v{vCS}, {WS}, s{sO} offen offset:16 sc1 ;@cin")
M(f"s_mov_b32 s{sO}, {ST0+8192}\nbuffer_load_dwordx4 v[240:243], v{vCS}, {WS}, s{sO} offen sc1 ;@cin\nbuffer_load_dwordx4 v[244:247], v{vCS}, {WS}, s{sO} offen offset:16 sc1 ;@cin")
M("s_waitcnt lgkmcnt(0)\ns_barrier")
for c in range(2):
    for k in range(9): M(f"ds_read2st64_b32 {v(110+c*18+2*k,2)}, v{IDX+k} offset0:{24*c} offset1:{24*c+12} ;@g{c}")
M(f"v_bfe_u32 v5, v0, 4, 1\nv_mul_u32_u24 v5, {PKS}, v5\nv_lshl_add_u32 v5, v60, 2, v5\nv_add_u32 v5, {LPK}, v5\nv_mov_b32 v6, 0")
M("ds_write_b32 v5, v6")
M(f"v_lshlrev_b32 v5, 5, v0\nv_add_u32 v5, {LPK+64}, v5")
M("v_cmp_eq_u32 vcc, 0, v0")
for c in range(2):
    M(f"@lg g{c}")
    for k in range(9):
        r = 110 + c*18 + 2*k
        M(f"v_add_f32 v{r}, v{r}, v{r+1}")
    M(f"v_cndmask_b32 v{110+c*18}, v{110+c*18}, v6, vcc")
    for k in range(8): M(f"v_cvt_pk_bf16_f32 v{72+c*8+k}, v{110+c*18+2*(k+1)}, v{110+c*18+2*k}")
    M(f"ds_write_b128 v5, {v(72+c*8,4)} offset:{c*PKS}\nds_write_b128 v5, {v(76+c*8,4)} offset:{c*PKS+16}")
T0, U0, ACC = 32, 160, 224
BASE, RV, CST, UPK = 224, 232, 232, 240
def conv_stats(b, layer, half):
    b(f"s_mov_b32 s{sO}, {(ST2 if layer else ST0) + half*8192}")
    b(f"buffer_load_dwordx4 {v(CST,4)}, v{vCS}, {WS}, s{sO} offen sc1 ;@cin\nbuffer_load_dwordx4 {v(CST+4,4)}, v{vCS}, {WS}, s{sO} offen offset:16 sc1 ;@cin")
def conv_x(b, layer, half):
    b(f"s_mov_b32 s{sO}, {XP[2*layer] + half*0x100000}\nbuffer_load_dwordx4 v[248:251], v{vCX}, {WS}, s{sO} offen sc1 ;@cin")
def conv_inputs(b, layer, half):
    conv_x(b, layer, half); conv_stats(b, layer, half)
def gcheck(b):
    slow = lab("gs"); back = lab("gb"); lp = lab("gl")
    def chk(o):
        for k in range(8): o(f"v_xor_b32 v{160+k}, s{sNON}, v{CST+2*k+1}")
        o("v_or3_b32 v160, v160, v161, v162\nv_or3_b32 v163, v163, v164, v165\nv_or3_b32 v160, v160, v166, v167\nv_or_b32 v160, v160, v163\nv_cmp_ne_u32 vcc, 0, v160")
    b("@vm cin\n@{")
    chk(b); b(f"s_cbranch_vccnz {slow}"); b.label(back); b("@}")
    for k in range(4): b(f"v_mov_b32 v{252+k}, v{CST+8+2*k}")
    tail.label(slow); tail(f"s_mov_b32 s10, {SPIN}\ns_mov_b32 s11, {ST0}\ns_mov_b32 s5, {ST0+8192}")
    tail.label(lp)
    for k in range(4): tail(f"buffer_load_dwordx4 {v(CST+4*k,4)}, v{vCS}, {WS}, s{5 if k >= 2 else 11} offen offset:{16*(k&1)} sc1")
    tail("s_waitcnt vmcnt(0)")
    chk(tail); tail(f"s_cbranch_vccz {back}")
    tail(f"s_sub_u32 s10, s10, 1\ns_cmp_lg_u32 s10, 0\ns_cbranch_scc1 {lp}\ns_branch {back}")
def t_loads(b, js):
    for j in js:
        if j: b(f"v_add_u32 v5, {1024*j}, v{vTB}")
        ad = 5 if j else vTB
        for t in range(4):
            r = T0 + (j*4 + t)*4
            b(f"ds_read2_b32 {v(r,2)}, v{ad} offset0:{32*t+6} offset1:{32*t+4} ;@T\nds_read2_b32 {v(r+2,2)}, v{ad} offset0:{32*t+2} offset1:{32*t} ;@T")
def t_groups(ta=188):
    g = []
    for k in range(32):
        j, t = k >> 2, k & 3
        r = T0 + 4*k
        grp = [f"    v_add_u32 v{ta}, {1024*j}, v{vTB}"] if t == 0 else []
        grp += [f"    ds_read2_b32 {v(r,2)}, v{ta} offset0:{32*t+6} offset1:{32*t+4} ;@T", f"    ds_read2_b32 {v(r+2,2)}, v{ta} offset0:{32*t+2} offset1:{32*t} ;@T"]
        g.append(grp)
    return g
def u_pad(b):
    b(f"v_subrev_u32 v5, {LEX}, v{vEW}\nv_and_b32 v5, 0x3f0, v5\nv_lshrrev_b32 v5, 1, v5\nv_add_u32 v5, {LU}, v5\nv_mov_b32 v{UPK}, 0\nv_mov_b32 v{UPK+1}, 0")
    b(f"ds_write_b64 v5, {v(UPK,2)}\nds_write_b64 v5, {v(UPK,2)} offset:{US}")
def conv_half(b, layer, half, bg=[], pre_barrier=None, after_ln=None, after_mfma=None, tailbg=[], pre_barrier2=None):
    X = 248
    MN, RI, DD = 192, 196, 176
    b("@vm cin")
    stamp(b, f"L{layer} conv{half} loaded")
    if layer == 0:
        G = (lambda i: 252 + i) if half else (lambda i: CST + 2*i)
        for i in range(4): b(f"v_and_b32 v{RI+i}, s{sMSK}, v{G(i)}")
        for i in range(4): b(f"v_rcp_f32 v{RI+i}, v{RI+i}")
        for i in range(4): b(f"v_lshlrev_b32 v{MN+i}, 16, v{G(i)}")
    else:
        for i in range(4): b(f"v_pk_mul_f32 {v(CST+2*i,2)}, {v(CST+2*i,2)}, s[{sINV}:{sINV+1}]")
        for i in range(4): b(f"v_fma_f32 v{RI+i}, -v{CST+2*i}, v{CST+2*i}, v{CST+2*i+1}")
        for i in range(4): rnd(b, RI+i, RI+i)
        for i in range(4): b(f"v_add_f32 v{RI+i}, s{sEPS}, v{RI+i}")
        for i in range(4): rnd(b, RI+i, RI+i)
        for i in range(4): b(f"v_sqrt_f32 v{RI+i}, abs(v{RI+i})")
        for i in range(4): rnd(b, MN+i, CST+2*i)
        for i in range(4): rnd(b, RI+i, RI+i)
        for i in range(4): b(f"v_rcp_f32 v{RI+i}, v{RI+i}")
    for i in range(4): b(f"v_lshlrev_b32 v{BASE+i}, 16, v{X+i}\nv_and_b32 v{BASE+4+i}, s{sMSK}, v{X+i}")
    for k in range(4): b(f"v_pk_add_f32 {v(DD+2*k,2)}, {v(BASE+2*k,2)}, {v(MN+2*(k&1),2)} neg_lo:[0,1] neg_hi:[0,1]")
    for k in range(8): rnd(b, DD+k, DD+k)
    for k in range(4): b(f"v_pk_mul_f32 {v(DD+2*k,2)}, {v(DD+2*k,2)}, {v(RI+2*(k&1),2)}")
    for k in range(4): b(f"v_cvt_pk_bf16_f32 v{UPK+k}, v{DD+2*k}, v{DD+2*k+1}")
    b(f"ds_write_b64 v{vUW}, {v(UPK,2)} offset:{half*2048}\nds_write_b64 v{vUW}, {v(UPK+2,2)} offset:{US+half*2048}")
    if pre_barrier: b(pre_barrier)
    b("s_waitcnt lgkmcnt(0)\ns_barrier")
    if after_ln: after_ln(b)
    for tp in range(4):
        for t in range(4):
            b(f"ds_read_b128 {v(U0+(tp*4+t)*4,4)}, v{vUR} offset:{512 + 512*(tp+4*half) - 64*t - 32} ;@U{tp}")
    for k in range(4):
        b(f"v_lshlrev_b32 v{RV+2*k}, 16, v{UPK+k}\nv_and_b32 v{RV+2*k+1}, s{sMSK}, v{UPK+k}")
    for k in range(4):
        c = k >> 1
        b(f"v_pk_fma_f32 {v(BASE+2*k,2)}, {v(RV+2*k,2)}, s[{sDK}:{sDK+1}], {v(BASE+2*k,2)} op_sel:[0,{c},0] op_sel_hi:[1,{c},1]")
    mm = Buf()
    for tp in range(4):
        mm(f"@lg U{tp}")
        n_ = 0
        for r in range(tp, 4):
            for t in range(4):
                acc = ACC + (4*half + r)*4
                cin = "0" if (half == 0 and t == 0 and tp == 0) else ac(acc, 4)
                mm(f"v_mfma_f32_16x16x32_bf16 {ac(acc,4)}, {v(T0+((r-tp)*4+t)*4,4)}, {v(U0+(tp*4+t)*4,4)}, {cin}")
            if r == tp + 1 or (r == tp == 3): pass
        if tp < 3 or True:
            pass
    ml = []; cnt = 0; due = {}
    lastidx = {0: 3, 1: 19, 2: 31, 3: 39}
    for ln in mm.l:
        ml.append(ln)
        if "v_mfma" in ln:
            for r in range(3):
                if cnt == lastidx[r] + 8: ml.append(f"    ds_write_b128 v{vEW}, {ac(ACC+(4*half+r)*4,4)} offset:{r*4096}")
            cnt += 1
    ml = interleave(ml, bg, start=2)
    b.add(ml)
    tailbg = list(tailbg)
    if after_mfma: after_mfma(b)
    b(f"ds_write_b128 v{vEW}, {ac(ACC+(4*half+3)*4,4)} offset:{3*4096}")
    b.add(flat(tailbg[:2]))
    if pre_barrier2: b(pre_barrier2)
    b("s_waitcnt lgkmcnt(0)\ns_barrier")
    for src in range(4): b(f"ds_read_b128 {v(RV+4*src,4)}, v{vER} offset:{src*1024} ;@E{src>>1}")
    b.add(flat(tailbg[2:]))
    b(f"s_mov_b32 s{sO}, {XP[1+2*layer] + half*0x100000}")
    for c in range(2):
        b(f"@lg E{c}")
        for k in range(2): b(f"v_pk_add_f32 {v(RV+8*c+2*k,2)}, {v(RV+8*c+2*k,2)}, {v(RV+8*c+4+2*k,2)}")
        for k in range(2): b(f"v_pk_add_f32 {v(BASE+4*c+2*k,2)}, {v(BASE+4*c+2*k,2)}, {v(RV+8*c+2*k,2)}")
    sw = lab("sw"); sj = lab("sj")
    b(f"s_cmp_ge_u32 s{sCPI}, 128\ns_cbranch_scc1 {sw}")
    for i in range(4): b(f"v_cvt_pk_bf16_f32 v{244+i}, v{BASE+i}, v{BASE+4+i}")
    b.label(sj)
    tail.label(sw)
    for i in range(4): tail(f"v_cvt_pk_bf16_f32 v{244+(i^1)}, v{BASE+i}, v{BASE+4+i}")
    tail(f"s_branch {sj}")
    b(f"buffer_store_dwordx4 v[244:247], v{vCX}, {WS}, s{sO} offen sc1 ;@cst")
    stamp(b, f"L{layer} conv{half} stored")
def conv_ab(b):
    b("@lg T")
    for t in range(4):
        for tp in range(4):
            for r in range(4, 8):
                acc = ACC + r*4
                cin = "0" if (t == 0 and tp == 0) else ac(acc, 4)
                b(f"v_mfma_f32_16x16x32_bf16 {ac(acc,4)}, {v(T0+((r-tp)*4+t)*4,4)}, {v(U0+(tp*4+t)*4,4)}, {cin}")
def colsum(b):
    wa_regs(b)
    b(f"@{{\ns_lshr_b32 s6, s{sW}, 1\ns_mul_i32 s6, s6, {256*224}\ns_lshl_b32 s5, s{sW}, 6\ns_cmp_eq_u32 s{sW}, 3\ns_cselect_b32 s5, 0, s5\ns_cselect_b64 vcc, -1, 0\ns_sub_u32 s5, s5, s6\n@}}")
    b(f"v_cndmask_b32 v248, v{vWA}, v253, vcc\nv_cndmask_b32 v249, v252, v253, vcc\nv_add_u32 v248, s5, v248\nv_add_u32 v249, s5, v249\nv_add_u32 v250, {256*224}, v248\nv_add_u32 v251, {256*224}, v249")
    for i in range(4): b(f"v_mov_b32 v{240+i}, s{sONE}")
    def rd(ks):
        for f2 in range(2):
            for hf in range(2):
                b(f"ds_read_b64_tr_b16 {v(96+(f2*8+ks%8)*4+2*hf,2)}, v{248 + f2 + 2*(ks//8)} offset:{(32*(ks%8)+16*hf)*224} ;@c{ks}")
    for ks in range(3): rd(ks)
    for ks in range(16):
        if ks + 3 < 16: rd(ks + 3)
        b(f"@lg c{ks}")
        for f2 in range(2):
            b(f"v_mfma_f32_16x16x32_bf16 {v(232+4*f2,4)}, {v(96+(f2*8+ks%8)*4,4)}, v[240:243], {'0' if ks == 0 else v(232+4*f2,4)}")
    b(f"s_lshl_b32 s5, s{sW}, 7\nv_add_u32 v5, s5, v{vCSA}")
    b("ds_write_b128 v5, v[232:235] ;@cs\nds_write_b128 v5, v[236:239] offset:64 ;@cs")

WB, SS, KA, SA = 160, 216, 224, 224
def g1_loads(layer, half):
    g = []
    X0 = 32 + 64 * half
    for ks in range(8):
        for n_, (dst, off) in enumerate([(0, 0), (4, 256), (2, 2048), (6, 2304)]):
            grp = []
            if n_ == 0: grp.append(f"    s_mov_b32 s{sB0}, {XP[1+2*layer] + half*0x100000 + ks*4096}")
            grp.append(f"    buffer_load_dwordx2 {v(X0+8*ks+dst,2)}, v{vGX}, {WS}, s{sB0} offen offset:{off} sc1 ;@x{ks}")
            g.append(grp)
    return g
def wread(b, ks, ft, hfs=(0, 1)):
    r = WB + (ks & 1) * 28 + ft * 4
    for hf in hfs:
        ad, off = (253, 0) if ft == 6 else ((252 if ft & 1 else vWA), (ft >> 1) * 64)
        b(f"ds_read_b64_tr_b16 {v(r+2*hf,2)}, v{ad} offset:{(32*ks+16*hf)*224 + off} ;@w{ks}_{ft}")
def wa_regs(b):
    b(f"v_xor_b32 v252, 32, v{vWA}\nv_and_b32 v253, 32, v{vWA}\nv_mul_u32_u24 v253, 6, v253\nv_sub_u32 v253, v{vWA}, v253\nv_add_u32 v253, 384, v253")
def g1_pre(b):
    wa_regs(b)
    for ft in range(7): wread(b, 0, ft)
def g1_loop(b, half, bg, hooks={}):
    X0 = 32 + 64 * half
    bg = list(bg)
    slots = (0, 2, 4, 6) if len(bg) <= 32 else (0, 1, 3, 4, 6)
    def swaps(ks):
        x = X0 + 8 * ks
        b(f"@vm x{ks}\nv_swap_b32 v{x+1}, v{x+4}\nv_swap_b32 v{x+3}, v{x+6}")
    swaps(0)
    for ks in range(8):
        x = X0 + 8 * ks
        if ks in hooks: hooks[ks](b)
        for ft in range(7):
            r = WB + (ks & 1) * 28 + ft * 4
            if ft in (0, 4): b(f"@lg w{ks}_{3 if ft == 0 else 6}")
            b(f"v_mfma_f32_16x16x32_bf16 {ac(SA+4*ft,4)}, {v(r,4)}, {v(x+4,4)}, {'0' if ks == 0 else ac(SA+4*ft,4)}")
            if ks < 7: wread(b, ks + 1, ft, (0,))
            if ft in slots and bg: b.add(bg.pop(0))
            b(f"v_mfma_f32_16x16x32_bf16 {v(KA+4*ft,4)}, {v(r,4)}, {v(x,4)}, {'0' if ks == 0 else v(KA+4*ft,4)}")
            if ks < 7: wread(b, ks + 1, ft, (1,))
            if ft == 5 and ks < 7: swaps(ks + 1)
    assert not bg
RC, CSR = 160, 188
def g1_post1(b, half, bg=[], chk=None, bg2=[]):
    X0 = 32 + 64 * half
    d = Buf()
    for ks in range(8):
        x = X0 + 8 * ks
        for q in range(4):
            o = 4 * (q & 1)
            if ks == 0 and q < 2:
                d(f"v_dot2_f32_bf16 v{SS+o}, s{sONE}, v{x+q}, 0\nv_dot2_f32_bf16 v{SS+o+1}, v{x+q}, v{x+q}, 0")
                d(f"v_dot2_f32_bf16 v{SS+o+2}, s{sONE}, v{x+4+q}, 0\nv_dot2_f32_bf16 v{SS+o+3}, v{x+4+q}, v{x+4+q}, 0")
                continue
            d(f"v_dot2c_f32_bf16 v{SS+o}, s{sONE}, v{x+q}\nv_dot2c_f32_bf16 v{SS+o+1}, v{x+q}, v{x+q}")
            d(f"v_dot2c_f32_bf16 v{SS+o+2}, s{sONE}, v{x+4+q}\nv_dot2c_f32_bf16 v{SS+o+3}, v{x+4+q}, v{x+4+q}")
    wr = [[f"    ds_write_b128 v{vXW}, {ac(SA+4*ft,4)} offset:{ft*1024}"] for ft in range(7)]
    wr += [[f"    ds_read_b128 {v(CSR+4*ft,4)}, v{vCSA} offset:{ft*64}"] for ft in range(7)]
    dl = interleave(d.l, wr, start=8, every=9)
    cut = opt("cut", 140)
    b.add(interleave(dl[:cut], bg, start=4))
    chk(b)
    b.add(interleave(dl[cut:], bg2))
    b(f"v_pk_add_f32 {v(SS+2,2)}, {v(SS+2,2)}, {v(SS+6,2)}\nv_pk_add_f32 {v(SS,2)}, {v(SS,2)}, {v(SS+4,2)}")
    b(f"ds_write_b64 v{vSW}, {v(SS+2,2)} offset:7168")
    b("s_waitcnt lgkmcnt(0)\ns_barrier")
    b(f"ds_read_b64 {v(SS+2,2)}, v{vSR} offset:7168 ;@s")
    for ft in range(7): b(f"ds_read_b128 {v(RC+4*ft,4)}, v{vXR} offset:{ft*1024} ;@r{ft}")
def g1_post2(b, layer, half):
    b("@lg s")
    b(f"v_pk_add_f32 {v(SS,2)}, {v(SS,2)}, {v(SS+2,2)}")
    xsum(b, [SS, SS+1], SS+2, [16, 32])
    mn, sd, c2 = SS, SS+1, SS+2
    st = Buf()
    st(f"v_pk_mul_f32 {v(SS,2)}, {v(SS,2)}, s[{sINV}:{sINV+1}]\nv_fma_f32 v{sd}, -v{mn}, v{mn}, v{sd}")
    rnd(st, sd, sd); rnd(st, mn, mn)
    st(f"v_add_f32 v{sd}, s{sEPS}, v{sd}"); rnd(st, sd, sd)
    st(f"v_sqrt_f32 v{sd}, abs(v{sd})"); rnd(st, sd, sd)
    st(f"v_rcp_f32 v{c2}, v{sd}\nv_mul_f32 v{c2}, s{sNL2E}, v{c2}")
    adds = []
    for ft in range(7):
        t = RC + 4*ft
        adds.append([f"    @lg r{ft}"] + [f"    v_pk_add_f32 {v(t+2*k,2)}, {v(t+2*k,2)}, {v(KA+4*ft+2*k,2)}" for k in range(2)])
    b.add(interleave(st.l, adds, start=1, every=1))
    for k in range(14): b(f"v_pk_fma_f32 {v(RC+2*k,2)}, {v(CSR+2*k,2)}, {v(mn,2)}, {v(RC+2*k,2)} op_sel_hi:[1,0,1] neg_lo:[0,1,0] neg_hi:[0,1,0]")
    for k in range(14): b(f"v_pk_mul_f32 {v(CSR+2*k,2)}, {v(RC+2*k,2)}, {v(c2,2)} op_sel_hi:[1,0]")
    for r in range(28): b(f"v_exp_f32 v{CSR+r}, v{CSR+r}")
    for k in range(14): b(f"v_pk_fma_f32 {v(CSR+2*k,2)}, {v(CSR+2*k,2)}, {v(mn,2)}, {v(mn,2)} op_sel:[0,1,1] op_sel_hi:[1,1,1]")
    for r in range(28): b(f"v_rcp_f32 v{CSR+r}, v{CSR+r}")
    for k in range(14): b(f"v_pk_mul_f32 {v(CSR+2*k,2)}, {v(CSR+2*k,2)}, {v(RC+2*k,2)}")
    for k in range(14):
        ft = k >> 1
        b(f"v_cvt_pk_bf16_f32 v{KA + 8*(ft >> 1) + 2*(ft & 1) + (k & 1)}, v{CSR+2*k}, v{CSR+2*k+1}")
    for pr in range(3):
        p = KA + 8*pr
        b(f"v_permlane16_swap_b32 v{p}, v{p+2}\nv_permlane16_swap_b32 v{p+1}, v{p+3}")
def g1_store(b, layer, half):
    hb = HB[layer] + half * 32 * HT
    b(f"s_mov_b32 s{sO}, {hb}\ns_mov_b32 s5, {hb + 4096}")
    for pr in range(3):
        b(f"buffer_store_dwordx4 {v(KA+8*pr,4)}, v{vH4}, {WS}, s{sO if pr < 2 else 5} offen offset:{(pr&1)*2048} {HSC} ;@hst")
    b(f"buffer_store_dwordx2 {v(KA+24,2)}, v{vH2}, {WS}, s5 offen offset:2048 {HSC} ;@hst")

H0, C2, RS = 32, 192, 184
def g2_loads(layer, half):
    g = []
    for ks in range(28):
        grp = []
        if ks % 4 == 0: grp.append(f"    s_mov_b32 s{sB0}, {HB[layer] + half*32*HT + ks*1024}")
        grp.append(f"    buffer_load_dwordx4 {v(H0+4*ks,4)}, v{vHL}, {WS}, s{sB0} offen offset:{(ks%4)*1024} sc1 ;@h{ks}")
        g.append(grp)
    return g
def w2_loads():
    g = []
    for i in range(56):
        grp = []
        if i % 4 == 0: grp.append(f"    s_add_u32 s{sB1}, s{sW2B}, {(i//4)*4096}")
        grp.append(f"    buffer_load_dwordx4 {ac(4*i,4)}, v6, {WS}, s{sB1} offen offset:{(i%4)*1024} sc1 ;@a{i//2}")
        g.append(grp)
    return g
def g2_res(layer, half):
    RS = 144 if half == 0 else 184
    g = [[f"    s_mov_b32 s{sO}, {XP[1+2*layer] + half*0x100000}"] +
         [f"    buffer_load_dword v{RS+k}, v{vRX}, {WS}, s{sO} offen offset:{(k>>1)*1024 + (k&1)*256} sc1 ;@res" for k in range(4)]]
    return g
def g2_loop(b, bg, hooks={}, tg=None, nm=None, late=[]):
    bg = list(bg); late = list(late)
    if tg: b.add(flat(tg[28:]))
    LAG = opt("lag", 8)
    def mf(ks, mt):
        b(f"v_mfma_f32_32x32x16_bf16 {v(C2+16*mt,16)}, {ac((ks*2+mt)*4,4)}, {v(H0+4*ks,4)}, {'0' if ks == 0 else v(C2+16*mt,16)}")
    for ks in range(28):
        if ks in hooks: hooks[ks](b)
        b(f"@vm h{ks},a{ks}")
        if nm and ks in (0, 4, 8, 12, 16, 20, 24): stamp(b, f"{nm} k{ks}")
        mf(ks, 1)
        if bg: b.add(bg.pop(0))
        if ks < 28 - LAG:
            mf(ks, 0)
            if tg and ks >= 1: b.add(tg[ks-1])
    if "end" in hooks: hooks["end"](b)
    wr = [f"ds_write_b128 v{vE1+sg-1}, {v(C2+8*sg+4*q,4)} offset:{q*1024}" for sg in (2, 3) for q in range(2)]
    for n_, ks in enumerate(range(28 - LAG, 28)):
        mf(ks, 0)
        if tg: b.add(tg[ks-1])
        if n_ >= 2 and n_ % 2 == 0 or n_ == LAG - 1:
            if wr: b(wr.pop(0))
        if late: b.add(late.pop(0))
    for w_ in wr: b(w_)
    if tg: b.add(["    s_nop 7"] + tg[27])
    assert not bg and not late
def g2_post1(b, half):
    RS = 144 if half == 0 else 184
    b("@vm res")
    for k in range(4): b(f"v_lshlrev_b32 v{224+2*k}, 16, v{RS+k}\nv_and_b32 v{225+2*k}, s{sMSK}, v{RS+k}")
    b(f"ds_write_b128 v{vE1}, {v(C2+8,4)}\nds_write_b128 v{vE1}, {v(C2+12,4)} offset:1024")
    b("s_waitcnt lgkmcnt(0)\ns_barrier")
    for k in range(6): b(f"ds_read_b128 {v(160+4*k,4)}, v{vE0} offset:{k*1024} ;@q{k>>1}")
def g2_post2(b, layer, half):
    for s_ in range(3):
        b(f"@lg q{s_}")
        for k in range(4): b(f"v_pk_add_f32 {v(C2+2*k,2)}, {v(C2+2*k,2)}, {v(160+8*s_+2*k,2)}")
    for r in range(8): rnd(b, C2+r, C2+r)
    for k in range(4): b(f"v_pk_add_f32 {v(C2+2*k,2)}, {v(C2+2*k,2)}, {v(224+2*k,2)}")
    for k in range(4): b(f"v_cvt_pk_bf16_f32 v{240+k}, v{C2+2*k}, v{C2+2*k+1}")
    if layer == 0:
        b(f"@{{\ns_mov_b32 s{sO}, {XP[2] + half*0x100000}")
        for k in range(4):
            b(f"buffer_store_dword v{240+k}, v{vX2}, {WS}, s{sO} offen offset:{(k>>1)*1024 + (k&1)*256} sc1 ;@xst")
        b("@}\nv_mov_b32 v244, 0\nv_mov_b32 v245, 0")
        for k in range(4): b(f"v_dot2c_f32_bf16 v244, s{sONE}, v{240+k}\nv_dot2c_f32_bf16 v245, v{240+k}, v{240+k}")
        b("v_permlane32_swap_b32 v244, v245\nv_add_f32 v244, v244, v245")
        LST = LSCR + 24576
        b(f"v_lshrrev_b32 v246, 2, v6\nv_add_u32 v246, {LST}, v246\ns_lshl_b32 s5, s{sW}, 8\nv_add_u32 v247, s5, v246")
        b("ds_write_b32 v247, v244\ns_waitcnt lgkmcnt(0)\ns_barrier")
        b("ds_read2st64_b32 v[244:245], v246 offset0:0 offset1:1\nds_read2st64_b32 v[246:247], v246 offset0:2 offset1:3")
        b(f"s_mov_b32 s{sO}, {ST2 + half*8192}\ns_waitcnt lgkmcnt(0)\nv_pk_add_f32 v[244:245], v[244:245], v[246:247]\nv_add_f32 v244, v244, v245")
        b(f"@{{\ns_mov_b64 exec, s[{sEXQ}:{sEXQ+1}]\nbuffer_atomic_add_f32 v244, v{vSA}, {WS}, s{sO} offen sc1 ;@xst\ns_mov_b64 exec, -1\n@}}")
    else:
        b("v_permlane32_swap_b32 v240, v242\nv_permlane32_swap_b32 v241, v243")
        b(f"s_mov_b32 s{sO}, {half*0x100000}\nbuffer_store_dwordx4 v[240:243], v{vOUT}, {srd(SOUT)}, s{sO} offen")

gcheck(M); conv_x(M, 0, 0)
M(f"v_mov_b32 v{vPL}, v204\nv_mov_b32 v{vSG}, v205")
M("s_waitcnt lgkmcnt(0)\ns_barrier")
stamp(M, "kgen done")
XT, XUP, XPF, HPF, HP2, HUP = opt("xt", 6), opt("xup", 12), opt("xpf", 16), opt("hpf", 18), opt("hp2", 6), opt("hup", 16)
D1, D2, D3, D4, D5 = opt("d1", 4), opt("d2", 5), opt("d3", 8), opt("d4", 0), opt("d5", 0)
M.add(interleave(gen(t_loads, range(4)), take(D1))); u_pad(M)
for layer in range(2):
    L0 = layer == 0
    cA, cB = 4*layer, 4*layer + 1
    xa, xb, ha, hb_ = g1_loads(layer, 0), g1_loads(layer, 1), g2_loads(layer, 0), g2_loads(layer, 1)
    if L0:
        vm_ = take(D2); tg_ = t_groups(5)[16:]
        conv_half(M, layer, 0, bg=[tg_[k] + (vm_[k//2] if (k % 2 == 0 and k//2 < len(vm_)) else []) for k in range(16)])
        conv_x(M, 0, 1)
        M.add(interleave(gen(conv_ab), take(D3), start=1))
    else:
        conv_half(M, layer, 0, pre_barrier="@vm xst", after_ln=lambda b: sig_all(b, 3, "xst", barrier=False))
        M.add(interleave(gen(conv_ab), [gen(poll_all, 3)], start=opt("abp", 24), every=1))
    sig_all(M, cA, "cst")
    stamp(M, f"L{layer} conv0 signalled")
    if not L0:
        check(M, "all", 3); conv_inputs(M, 1, 1)
        conv_half(M, layer, 1, after_ln=lambda b: poll_all(b, cA), after_mfma=lambda b: check(b, "all", cA), tailbg=xa[:XT])
        g1_pre(M)
        M.add(flat(xa[XT:XUP]))
    else:
        assert not wq
        wq += w2_loads()
        sg_ = gen(setup_g2)
        conv_half(M, layer, 1, pre_barrier2="@vm w1", bg=[sg_[k:k+2] for k in range(0, len(sg_), 2)])
        poll_all(M, cA)
        cs_ = gen(colsum); cc = opt("cc", 60)
        M.add(interleave(cs_[:cc], take(D5), start=20))
        check(M, "all", cA)
        M.add(interleave(cs_[cc:], xa[:XUP]))
        g1_pre(M)
        M("@lg cs")
    stamp(M, f"L{layer} g1A ready")
    w2 = wq
    def mixw(x_, w_):
        if len(x_) + len(w_) <= 32: return x_ + w_
        x_ = list(x_); w_ = list(w_); o = []
        while x_ or w_:
            for q in range(5):
                src = x_ if (x_ and q < 4) else w_
                if src: o.append(src.pop(0))
                elif x_: o.append(x_.pop(0))
        return o + [[]] * (40 - len(o))
    XP1, HP1 = opt("xp1", 0), opt("hp1", 0)
    g1_loop(M, 0, mixw(xa[XUP:], take(opt("wa", 12))), {(0 if L0 else opt("sg0", 1)): lambda b: sig_all(b, cB, "cst")})
    stamp(M, f"L{layer} g1A loop")
    poll_all(M, cB)
    g1_post1(M, 0, take(opt("wp", 6)), lambda b: check(b, "all", cB), xb[:XP1])
    stamp(M, f"L{layer} g1A post1")
    M.add(interleave(gen(g1_post2, layer, 0), xb[XP1:XPF]))
    g1_pre(M)
    g1_store(M, layer, 0)
    stamp(M, f"L{layer} g1A stored")
    g1_loop(M, 1, mixw(xb[XPF:], take(opt("wb", 16))), {opt("sg1", 3): lambda b: sig_grp(b, 2*layer, "hst")})
    stamp(M, f"L{layer} g1B loop")
    poll_grp(M, 2*layer)
    g1_post1(M, 1, take(opt("wp", 6)), lambda b: check(b, "grp", 2*layer), ha[:HP1])
    stamp(M, f"L{layer} g1B post1")
    M.add(interleave(gen(g1_post2, layer, 1), g2_res(layer, 0) + ha[HP1:HPF]))
    g1_store(M, layer, 1)
    stamp(M, f"L{layer} g1B stored")
    rest = ha[HPF:]
    if w2:
        mix = []
        while rest or w2:
            mix.append((rest.pop(0) if rest else []) + (w2.pop(0) if w2 else []))
        rest = mix
    HP0 = opt("hp0", 0)
    g2_loop(M, rest, {opt("sg2", 12): lambda b: sig_grp(b, 2*layer+1, "hst"), opt("pg2", 27): lambda b: poll_grp(b, 2*layer+1),
                      "end": (lambda b: check(b, "grp", 2*layer+1) if HP0 else None)}, nm=("L1 g2A" if layer and opt("fine", 0) else None), late=hb_[:HP0])
    stamp(M, f"L{layer} g2A loop")
    if HP0: M.add(interleave(gen(g2_post1, 0) + gen(g2_post2, layer, 0), hb_[HP0:HP0+HP2], end=opt("hpe", 40)))
    else:
        g2_post1(M, 0); check(M, "grp", 2*layer+1)
        M.add(interleave(gen(g2_post2, layer, 0), hb_[:HP2], end=opt("hpe", 30)))
    HP2_ = HP0 + HP2
    if L0 and opt("cpf", 1): M("v_add_u32 v5, s90, v6\nglobal_load_dwordx4 v[252:255], v5, s[42:43]")
    stamp(M, f"L{layer} g2A stored")
    M.add(flat(hb_[HP2_:HUP]))
    if L0:
        g2_loop(M, hb_[HUP:] + g2_res(layer, 1), {opt("sg3", 4): lambda b: sig_all(b, 2, "xst"), 24: lambda b: poll_all(b, 2)}, tg=t_groups())
        stamp(M, f"L{layer} g2B loop")
        g2_post1(M, 1)
        check(M, "all", 2); conv_inputs(M, 1, 0)
        g2_post2(M, layer, 1)
        stamp(M, f"L{layer} g2B stored")
        u_pad(M)
    else:
        M("s_barrier")
        g2_loop(M, hb_[HUP:] + g2_res(layer, 1), nm=("L1 g2B" if opt("fine", 0) else None))
        stamp(M, f"L{layer} g2B loop")
        g2_post1(M, 1); g2_post2(M, layer, 1)
        stamp(M, f"L{layer} g2B stored")
if STAMP:
    M(f"s_cmp_lg_u32 s{sW}, 0\ns_cbranch_scc1 {DONE}")
    M(f"v_mbcnt_lo_u32_b32 v5, -1, 0\nv_mbcnt_hi_u32_b32 v5, -1, v5\nv_lshlrev_b32 v5, 2, v5\ns_lshl_b32 s5, s2, 8\ns_add_u32 s5, s5, {0x1800000 + 0x400000}")
    M(f"buffer_store_dword v7, v5, {WS}, s5 offen")
M.label(DONE)
M("s_endpgm")

a = Asm()
a.kernel(NAME + "_kernel", vgpr=512, sgpr=102, accum=256)
lines = resolve(strip_marks(M.l)) + tail.l + [".Lkend:"]
lines, added = hazard.fix(lines)
a.lines += lines
print("nops added", added, "lines", len(a.lines), file=sys.stderr)
hdr = "".join(l for l in open(f"cdna_kernels/{NAME}.s.ref").readlines() if l.startswith(";") and "@launch" not in l and "Override" not in l and "grid=ceil" not in l)
a.launches = [f"; @launch grid=(256,1,1) block=(256,1,1) lds={LDS_BYTES}"]
open(OUT, "w").write(a.text(hdr))
json.dump(STAMPS, open("work/" + OUT.split("/")[-1] + ".stamps.json", "w"))
```

```python
import sys, struct, json
sys.path.insert(0, "work")
from asmgen import Asm
import hazard
from sched import resolve, interleave, strip_marks
NAME = "interleave_layers__ssm_conv_s4d__dense_activation_silu__prompt"
STAMP = "--stamp" in sys.argv
OPT = dict(x.lstrip("-").split("=") for x in sys.argv[1:] if x.startswith("--") and "=" in x)
def opt(k, d): return type(d)(OPT.get(k, d))
OUT = [x for x in sys.argv[1:] if not x.startswith("--")]
OUT = OUT[0] if OUT else f"cdna_kernels/{NAME}.s"
def f2u(x): return struct.unpack("<I", struct.pack("<f", x))[0]
LOG2E = 1.4426950408889634
GCNT = 6 * 0x8000
ST0 = 0x80000; ST2 = 0x84000
W2F = 0x100000
W1F = 0x1900000
XP = [0x1700000, 0x300000, 0x500000, 0x700000]
HB = [0x900000, 0x1000000]
WS_BYTES = 0x2000000
HT = 114688
LPK = 114688; PKS = 8256; LCS = 131200; LSCR = 131712
LU = LSCR; US = 4608; LEX = LSCR + 9216
ES = 28672; LGT = LEX
LDS_BYTES = 163840
SWS, SW1, SW2, SOUT = 44, 48, 52, 56
sW, sCPI, sRT, sCT, sLT, sDT, sNON, sGC = 60, 61, 62, 63, 64, 65, 66, 67
sDK, sONE, sMSK, sINV, sEPS, sNL2E = 68, 70, 71, 72, 74, 75
sEXS = 76
sB0, sB1, sO, sW2B, sGS = 78, 79, 80, 81, 82
sSTAMP = 84
sEXQ = 92
SPIN = 60000
vOUT, vPL, vSG, vPD, vONE = 0, 1, 2, 3, 4
vCX, vCS, vUW, vUR, vTB, vEW, vER, vGX, vWA, vXW, vXR, vSW, vSR, vCSA, vH4, vH2, vHL, vRX, vX2, vE1, vE0, vSA = \
    8, 9, 10, 11, 12, 13, 14, 15, 16, 17, 18, 19, 20, 21, 22, 23, 24, 25, 26, 27, 30, 31
vDMA = 24

HSC = "sc1" if opt("hsc", 1) else opt("hfl", "")
GFLAG = opt("gflag", 0)
if opt("samehb", 0): HB = [HB[0], HB[0]]
class Buf:
    def __init__(self): self.l = []
    def __call__(self, s):
        for ln in s.strip("\n").split("\n"): self.l.append("    " + ln.strip())
    def label(self, n): self.l.append(n + ":")
    def add(self, lines): self.l += lines
uid = [0]
def lab(b="L"):
    uid[0] += 1; return f".{b}_{uid[0]}"
def srd(n): return f"s[{n}:{n+3}]"
def v(n, k=1): return f"v{n}" if k == 1 else f"v[{n}:{n+k-1}]"
def ac(n, k=1): return f"a{n}" if k == 1 else f"a[{n}:{n+k-1}]"
def flat(groups): return [l for g in groups for l in g]
def gen(fn, *args, **kw):
    t = Buf(); fn(t, *args, **kw); return t.l
WS = srd(SWS)
tail = Buf()
STAMPS = []
def stamp(b, name):
    if not STAMP: return
    i = len(STAMPS); STAMPS.append(name)
    assert i < 64
    b(f"@{{\n{'s_memtime' if opt('cyc', 0) else 's_memrealtime'} s[{sSTAMP}:{sSTAMP+1}]\ns_waitcnt lgkmcnt(0)\nv_writelane_b32 v7, s{sSTAMP}, {i}\n@}}")

GADDR = f"v_lshrrev_b32 v5, 10, v{vSG}\nv_and_b32 v5, 0xfc, v5" if GFLAG else f"v_and_b32 v5, 0x300, v{vPL}"
def poll_all(b, cnt):
    b(f"s_mov_b32 s{sO}, {cnt*0x8000}\nbuffer_load_dword v{vPD}, v{vPL}, {WS}, s{sO} offen sc1 ;@poll")
def poll_grp(b, idx):
    b(f"@{{\ns_add_u32 s{sO}, s{sGC}, {idx*16*1024}\n{GADDR}\nbuffer_load_dword v{vPD}, v5, {WS}, s{sO} offen sc1 ;@poll\n@}}")
def check(b, kind, idx):
    slow = lab("slow"); back = lab("back"); lp = lab("lp")
    b("@vm poll")
    b(f"@{{\nv_cmp_gt_u32 vcc, {1 if (GFLAG and kind == 'grp') else 16}, v{vPD}\ns_cbranch_vccnz {slow}")
    b.label(back); b("@}")
    tail.label(slow)
    tail(f"s_mov_b32 s10, {SPIN}")
    if kind == "all": tail(f"s_mov_b32 s11, {idx*0x8000}\nv_mov_b32 v5, v{vPL}")
    else: tail(f"s_add_u32 s11, s{sGC}, {idx*16*1024}\n{GADDR}")
    tail.label(lp)
    tail(f"buffer_load_dword v{vPD}, v5, {WS}, s11 offen sc1\ns_waitcnt vmcnt(0)")
    tail(f"v_cmp_gt_u32 vcc, {1 if (GFLAG and kind == 'grp') else 16}, v{vPD}\ns_cbranch_vccz {back}")
    tail(f"s_sub_u32 s10, s10, 1\ns_cmp_lg_u32 s10, 0\ns_cbranch_scc1 {lp}\ns_branch {back}")
def sig_all(b, cnt, tag, barrier=True):
    b(f"@vm {tag}\n@{{\n{'s_barrier' if barrier else 's_nop 0'}\ns_mov_b32 s{sO}, {cnt*0x8000}\ns_mov_b64 exec, s[{sEXS}:{sEXS+1}]")
    b(f"buffer_atomic_add v{vONE}, v{vSG}, {WS}, s{sO} offen sc1\ns_mov_b64 exec, -1\n@}}")
def sig_grp(b, idx, tag):
    b(f"@vm {tag}\n@{{\ns_add_u32 s{sO}, s{sGS}, {idx*16*1024}\ns_mov_b64 exec, 1")
    if GFLAG: b(f"buffer_store_dword v{vONE}, off, {WS}, s{sO} {HSC}\ns_mov_b64 exec, -1\ns_barrier\n@}}")
    else: b(f"buffer_atomic_add v{vONE}, off, {WS}, s{sO} sc1\ns_mov_b64 exec, -1\ns_barrier\n@}}")
def xsum(b, regs, tmp, steps):
    for s in steps:
        for i, r in enumerate(regs): b(f"v_mov_b32 v{tmp+i}, v{r}")
        for i, r in enumerate(regs): b(f"v_permlane{s}_swap_b32 v{r}, v{tmp+i}")
        for i, r in enumerate(regs): b(f"v_add_f32 v{r}, v{r}, v{tmp+i}")
def rnd(b, d, s): b(f"v_cvt_pk_bf16_f32 v{d}, 0, v{s}")

M = Buf()
DONE = ".Ldone"
M.label(".Lkstart")
M("s_cmp_ge_u32 s2, 256")
M(f"s_cbranch_scc1 {DONE}")
M("s_load_dwordx16 s[16:31], s[0:1], 0\ns_load_dwordx8 s[32:39], s[0:1], 64\ns_load_dwordx2 s[40:41], s[0:1], 96")
M("s_memrealtime s[14:15]")
M("s_getpc_b64 s[42:43]")
M("v_and_b32 v1, 63, v0\nv_lshlrev_b32 v2, 4, v1\nv_lshrrev_b32 v3, 6, v0")
M(f"v_readfirstlane_b32 s{sW}, v3")
if STAMP: M("v_mov_b32 v7, 0")
M("s_and_b32 s3, s2, 7\ns_lshr_b32 s4, s2, 3")
M(f"s_lshl_b32 s5, s4, 2\ns_add_u32 s5, s5, s{sW}\ns_min_u32 s5, s5, ((.Lkend-.Lkstart-128)>>10)-1\ns_lshl_b32 s5, s5, 10\nv_add_u32 v5, s5, v2")
M("global_load_dwordx4 v[200:203], v5, s[42:43]\ns_mov_b32 s90, s5")
M(f"s_lshl_b32 s{sCPI}, s3, 5\ns_add_u32 s{sCPI}, s{sCPI}, s4")
M(f"s_and_b32 s{sCT}, s4, 15")
M(f"s_lshl_b32 s{sRT}, s3, 1\ns_lshr_b32 s5, s4, 4\ns_add_u32 s{sRT}, s{sRT}, s5")
M(f"s_lshl_b32 s{sLT}, s{sRT}, 1\ns_bfe_u32 s5, s4, 0x10003\ns_add_u32 s{sLT}, s{sLT}, s5\ns_and_b32 s{sDT}, s4, 7")
M(f"s_lshl_b32 s{sGC}, s{sRT}, 10\ns_add_u32 s{sGC}, s{sGC}, {GCNT}\ns_lshl_b32 s5, s{sW}, 8\ns_add_u32 s{sGS}, s{sGC}, s5")
if GFLAG: M(f"s_lshl_b32 s5, s{sCT}, 2\ns_add_u32 s5, s5, s{sW}\ns_lshl_b32 s5, s5, 2\ns_add_u32 s{sGS}, s{sGC}, s5")
M(f"s_mov_b32 s{sONE}, 0x3f803f80\ns_mov_b32 s{sMSK}, 0xffff0000\ns_mov_b32 s{sINV}, {f2u(1/512):#x}\ns_mov_b32 s{sINV+1}, {f2u(1/512):#x}")
M(f"s_mov_b32 s{sEPS}, {f2u(1e-5):#x}\ns_mov_b32 s{sNL2E}, {f2u(-LOG2E):#x}")
M(f"s_lshl_b32 s5, s{sW}, 1\ns_lshl_b32 s{sEXS}, 3, s5\ns_mov_b32 s{sEXS+1}, 0")
M(f"s_lshl_b32 s5, s{sW}, 2\ns_lshl_b32 s{sEXQ}, 0x000f000f, s5\ns_mov_b32 s{sEXQ+1}, s{sEXQ}")
M(f"s_lshl_b32 s5, s2, 13\ns_lshl_b32 s6, s{sW}, 11\ns_add_u32 s5, s5, s6\nv_add_u32 v62, s5, v2")
M(f"s_lshl_b32 s5, s{sCPI}, 9\nv_lshlrev_b32 v63, 1, v0\nv_add_u32 v63, s5, v63")
M(f"s_lshr_b32 s5, s2, 2\ns_lshl_b32 s5, s5, 15\ns_and_b32 s6, s2, 3\ns_lshl_b32 s6, s6, 8\ns_add_u32 s5, s5, s6\ns_lshl_b32 s6, s{sW}, 6\ns_add_u32 s5, s5, s6")
M("v_and_b32 v5, 7, v1\nv_lshlrev_b32 v64, 12, v5\nv_lshrrev_b32 v6, 3, v1\nv_lshl_add_u32 v64, v6, 3, v64\nv_add_u32 v64, s5, v64")
M("v_lshlrev_b32 v65, 10, v6\nv_lshl_add_u32 v65, v5, 4, v65\nv_lshlrev_b32 v207, 9, v6\nv_lshl_add_u32 v207, v5, 4, v207")
M(f"s_lshl_b32 s94, s2, 2\ns_add_u32 s94, s94, s{sW}\ns_min_u32 s94, s94, 895")
M("s_mul_i32 s95, s94, 2341\ns_lshr_b32 s95, s95, 16\ns_mul_i32 s5, s95, 28\ns_sub_u32 s96, s94, s5")
M("s_and_b32 s5, s95, 3\ns_mul_i32 s5, s5, 448\ns_lshl_b32 s6, s96, 4\ns_add_u32 s5, s5, s6\ns_lshl_b32 s7, s5, 10\ns_lshr_b32 s5, s95, 2\ns_lshl_b32 s5, s5, 7\ns_add_u32 s7, s7, s5")
M(f"s_lshl_b32 s9, s{sW}, 12\ns_add_u32 s9, s9, {LPK}")
M(f"s_mov_b32 s{SWS+2}, {WS_BYTES:#x}\ns_mov_b32 s{SWS+3}, 0x20000")
M("s_waitcnt lgkmcnt(0)")
stamp(M, "start")
M(f"s_mov_b32 s{SWS}, s40\ns_mov_b32 s{SWS+1}, s41")
n0 = lab("n0"); n1 = lab("n1")
M(f"s_cmp_ge_u32 s2, 128\ns_cbranch_scc1 {n1}")
M(f"s_or_b32 s5, s2, s{sW}\ns_cmp_lg_u32 s5, 0\ns_cbranch_scc1 {n0}")
M("s_or_b32 s14, s14, 1\nv_mov_b32 v5, s14\nv_lshlrev_b32 v6, 2, v1\nglobal_store_dword v6, v5, s[38:39] sc1 ;@!")
M.label(n0)
M(f"s_lshl_b32 s5, s2, 2\ns_add_u32 s5, s5, s{sW}\ns_lshl_b32 s6, s5, 9\ns_lshl_b32 s5, s5, 5\ns_add_u32 s5, s5, {ST2}")
M("v_mov_b32 v4, 0\nv_mov_b32 v5, 0\nv_lshlrev_b32 v6, 3, v1\nv_lshlrev_b32 v8, 2, v1")
M(f"buffer_store_dwordx2 v[4:5], v6, {WS}, s6 offen sc1 ;@!\ns_mov_b64 exec, 0xff\nbuffer_store_dword v5, v8, {WS}, s5 offen sc1 ;@!\ns_mov_b64 exec, -1")
M.label(n1)
for i, dst in enumerate([216, 220, 218, 222]): M(f"global_load_dwordx2 {v(dst,2)}, v64, s[16:17] offset:{i*1024} ;@b1")
M("global_load_dwordx4 v[32:35], v62, s[16:17] ;@b1\nglobal_load_dwordx4 v[36:39], v62, s[16:17] offset:1024 ;@b1")
for sd, sb, nb in [(SW1, 32, 512*1792*2), (SW2, 34, 512*1792*2), (SOUT, 36, 2048*512*2)]:
    M(f"s_mov_b32 s{sd}, s{sb}\ns_mov_b32 s{sd+1}, s{sb+1}\ns_mov_b32 s{sd+2}, {nb:#x}\ns_mov_b32 s{sd+3}, 0x20000")
M(f"s_mov_b32 m0, s9\ns_add_u32 s5, s7, 8192\nbuffer_load_dwordx4 v65, {srd(SW2)}, s7 offen lds ;@b2\ns_add_u32 m0, s9, 1024\ns_nop 0\nbuffer_load_dwordx4 v65, {srd(SW2)}, s5 offen lds ;@b2")
for i in range(4): M(f"global_load_ushort v{48+i}, v63, s[{18+2*i}:{19+2*i}] ;@par")
M(f"s_lshl_b32 s5, s{sCPI}, 2")
M("s_load_dword s12, s[26:27], s5\ns_load_dword s13, s[28:29], s5")
if opt("tlb", 1):
    M(f"v_lshlrev_b32 v5, 20, v1\ns_mov_b64 exec, 0x7ffffff\ns_mov_b32 s5, 0xc0000\nbuffer_load_dword v240, v5, {WS}, s5 offen sc1\ns_mov_b64 exec, 3")
    M(f"buffer_load_dword v243, v5, {srd(SOUT)}, 0 offen\ns_mov_b64 exec, -1")
M("v_and_b32 v60, 15, v1\nv_lshrrev_b32 v61, 4, v1")
sD0, sD1 = 88, 89
sRX, sRH = 16, 24
M(f"s_mul_i32 s{sD0}, s{sW}, {128*3584}\ns_mul_i32 s5, s{sCT}, 224\ns_add_u32 s{sD0}, s{sD0}, s5\ns_mul_i32 s{sD1}, s{sW}, 28672")
dma = [[f"    s_add_u32 m0, s{sD1}, {p*1024}", f"    s_add_u32 s{sB1}, s{sD0}, {(p//7)*32*3584}", f"    buffer_load_dwordx4 v{vDMA+p%7}, {srd(SW1)}, s{sB1} offen lds ;@w1"] for p in range(28)]
dma = dma[17:] + dma[:17]
def setup_dma(b):
    b(f"s_and_b32 s7, s{sCT}, 1\ns_lshl_b32 s8, s7, 5\ns_mul_i32 s7, s7, 192\ns_sub_u32 s7, 192, s7")
    b("v_and_b32 v64, 3, v1\nv_lshlrev_b32 v64, 4, v64\nv_add_u32 v65, s8, v64\nv_xor_b32 v66, 32, v64")
    b(f"v_add_u32 v66, s8, v66\nv_add_u32 v66, {3584-192}, v66")
    b("v_and_b32 v67, 16, v64\nv_add_u32 v67, s7, v67\nv_lshrrev_b32 v64, 5, v64\nv_mul_u32_u24 v64, 3584, v64")
    b(f"v_add_u32 v67, v67, v64\nv_subrev_u32 v67, {6*64}, v67\nv_lshrrev_b32 v64, 2, v1")
    for k in range(7):
        b(f"v_add_u32 v5, {16*k}, v64\nv_mul_u32_u24 v6, 9363, v5\nv_lshrrev_b32 v6, 16, v6\nv_mul_u32_u24 v62, 7, v6\nv_sub_u32 v5, v5, v62")
        b(f"@{{\nv_cmp_lt_u32 vcc, 2, v5\nv_mul_u32_u24 v6, 7168, v6\nv_lshl_add_u32 v6, v5, 6, v6\nv_cndmask_b32 v62, v65, v66, vcc\nv_cmp_eq_u32 vcc, 6, v5\ns_nop 1\nv_cndmask_b32 v62, v62, v67, vcc\n@}}")
        b(f"v_add_u32 v{vDMA+k}, v6, v62")
def setup(b):
    b(f"s_and_b32 s5, s{sW}, 1\ns_lshr_b32 s6, s{sW}, 1")
    b(f"v_bfe_u32 v{vCX}, v1, 2, 2\nv_lshlrev_b32 v{vCX}, 16, v{vCX}\nv_and_b32 v5, 3, v1\nv_lshl_add_u32 v{vCX}, v5, 6, v{vCX}\nv_lshl_add_u32 v{vCX}, v61, 4, v{vCX}")
    b(f"s_lshl_b32 s7, s{sW}, 18\ns_lshl_b32 s8, s{sCPI}, 8\ns_add_u32 s7, s7, s8\nv_add_u32 v{vCX}, s7, v{vCX}")
    b(f"v_lshlrev_b32 v{vCS}, 7, v60\nv_lshl_add_u32 v{vCS}, v61, 5, v{vCS}\ns_lshl_b32 s7, s{sW}, 11\nv_add_u32 v{vCS}, s7, v{vCS}")
    b(f"v_lshlrev_b32 v5, 5, v60\nv_lshl_add_u32 v{vUW}, v61, 3, v5\ns_lshl_b32 s7, s{sW}, 9\ns_add_u32 s7, s7, {LU+512}\nv_add_u32 v{vUW}, s7, v{vUW}")
    b(f"v_lshl_add_u32 v{vUR}, v61, 4, v5\ns_mul_i32 s7, s6, {US}\ns_lshl_b32 s8, s5, 8\ns_sub_u32 s7, s7, s8\ns_add_u32 s7, s7, {LU}\nv_add_u32 v{vUR}, s7, v{vUR}")
    b(f"v_lshlrev_b32 v5, 3, v61\nv_sub_u32 v5, v60, v5\nv_lshlrev_b32 v5, 2, v5\ns_mul_i32 s7, s6, {PKS}\ns_lshl_b32 s8, s5, 9\ns_add_u32 s7, s7, s8\ns_add_u32 s7, s7, {LPK+26*4}\nv_add_u32 v{vTB}, s7, v5")
    b(f"s_lshl_b32 s7, s{sW}, 10\ns_add_u32 s7, s7, {LEX}\nv_add_u32 v{vEW}, s7, v2\ns_lshl_b32 s7, s{sW}, 12\ns_add_u32 s7, s7, {LEX}\nv_add_u32 v{vER}, s7, v2")
    b(f"v_lshlrev_b32 v{vGX}, 9, v61\nv_lshl_add_u32 v{vGX}, v60, 3, v{vGX}\ns_lshl_b32 s7, s{sRT}, 16\ns_lshl_b32 s8, s5, 7\ns_add_u32 s7, s7, s8\ns_lshl_b32 s8, s6, 15\ns_add_u32 s7, s7, s8\nv_add_u32 v{vGX}, s7, v{vGX}")
    b(f"v_lshlrev_b32 v5, 2, v61\nv_bfe_u32 v6, v1, 2, 2\nv_add_u32 v5, v5, v6\nv_mul_u32_u24 v5, 224, v5\nv_and_b32 v6, 3, v1\nv_lshl_add_u32 v5, v6, 3, v5\ns_mul_i32 s7, s6, {256*224}\nv_add_u32 v{vWA}, s7, v5")
    b(f"s_mul_i32 s7, s{sW}, 7680\ns_add_u32 s7, s7, {LSCR}\nv_add_u32 v{vXW}, s7, v2\nv_lshlrev_b32 v5, 3, v1\nv_add_u32 v{vSW}, s7, v5")
    b(f"s_xor_b32 s7, s{sW}, 2\ns_mul_i32 s7, s7, 7680\ns_add_u32 s7, s7, {LSCR}\nv_add_u32 v{vXR}, s7, v2\nv_add_u32 v{vSR}, s7, v5")
    b(f"v_lshlrev_b32 v{vCSA}, 4, v61\nv_add_u32 v{vCSA}, {LCS}, v{vCSA}")
    b(f"s_lshl_b32 s7, s{sRT}, 1\ns_add_u32 s7, s7, s5\ns_mul_i32 s7, s7, {HT}\ns_mul_i32 s8, s{sCT}, 7168\ns_add_u32 s7, s7, s8\ns_lshl_b32 s8, s6, 8\ns_add_u32 s7, s7, s8")
    b(f"v_and_b32 v5, 1, v61\nv_lshrrev_b32 v6, 1, v61\nv_lshlrev_b32 v{vH2}, 9, v6\nv_lshl_add_u32 v{vH2}, v60, 4, v{vH2}\nv_add_u32 v{vH2}, s7, v{vH2}\nv_lshl_add_u32 v{vH4}, v5, 10, v{vH2}\nv_lshl_add_u32 v{vH2}, v5, 3, v{vH2}")
    b(f"s_and_b32 s7, s{sCT}, 1\ns_lshl_b32 s8, s7, 10\nv_add_u32 v{vH4}, s8, v{vH4}\ns_mul_i32 s8, s7, 6144\nv_subrev_u32 v{vH2}, s8, v{vH2}")
    b(f"v_lshlrev_b32 v204, 8, v60\ns_lshl_b32 s7, s3, 12\nv_add_u32 v204, s7, v204")
    b(f"v_lshlrev_b32 v205, 12, v1\ns_lshl_b32 s7, s{sCT}, 8\nv_add_u32 v205, s7, v205\nv_mov_b32 v{vONE}, 1")
    b(f"s_load_dword s{sNON}, s[38:39], 0")
    for k in range(9):
        b(f"v_lshlrev_b32 v5, 3, v0\nv_add_u32 v5, {k-1}, v5")
        if k == 0: b("v_max_i32 v5, 0, v5")
        b("v_cvt_f32_u32 v5, v5\nv_cvt_pk_bf16_f32 v5, 0, v5\nv_cvt_u32_f32 v6, v5")
        b("v_lshrrev_b32 v5, 23, v5\nv_subrev_u32 v5, 134, v5\nv_med3_i32 v5, v5, 0, 3")
        b("v_lshrrev_b32 v62, 7, v6\nv_and_b32 v63, 7, v6\nv_lshl_or_b32 v62, v62, 3, v63\nv_lshrrev_b32 v62, v5, v62\nv_lshl_add_u32 v62, v5, 3, v62")
        b(f"v_bfe_u32 v6, v6, 3, 4\nv_lshlrev_b32 v6, 2, v6\nv_lshl_add_u32 v6, v62, 6, v6\nv_add_u32 v{IDX+k}, {LGT}, v6")
def setup_g2(b):
    b("v_mbcnt_lo_u32_b32 v248, -1, 0\nv_mbcnt_hi_u32_b32 v248, -1, v248\nv_lshlrev_b32 v6, 4, v248")
    b(f"s_mul_i32 s7, s{sLT}, {HT}\ns_mul_i32 s8, s{sW}, 28672\ns_add_u32 s7, s7, s8\nv_add_u32 v{vHL}, s7, v6")
    b("v_and_b32 v249, 15, v248\nv_lshlrev_b32 v249, 1, v249\nv_bfe_u32 v5, v248, 4, 1\nv_add_u32 v249, v249, v5\nv_lshrrev_b32 v250, 5, v248")
    b(f"s_lshr_b32 s7, s{sLT}, 1\ns_lshl_b32 s7, s7, 16\ns_and_b32 s8, s{sLT}, 1\ns_lshl_b32 s8, s8, 7\ns_add_u32 s7, s7, s8\ns_lshl_b32 s8, s{sDT}, 13\ns_add_u32 s7, s7, s8\ns_lshl_b32 s8, s{sW}, 11\ns_add_u32 s7, s7, s8")
    b(f"v_lshlrev_b32 v{vX2}, 9, v250\nv_lshl_add_u32 v{vX2}, v249, 2, v{vX2}\nv_add_u32 v{vX2}, s7, v{vX2}\ns_and_b32 s8, s{sDT}, 4\nv_xor_b32 v{vRX}, s8, v{vX2}")
    for sg in range(1, 4):
        b(f"s_xor_b32 s7, s{sW}, {sg}\ns_mul_i32 s7, s7, 6144\ns_add_u32 s7, s7, {LSCR+(sg-1)*2048}\nv_add_u32 v{vE1+sg-1}, s7, v6")
    b(f"s_mul_i32 s7, s{sW}, 6144\ns_add_u32 s7, s7, {LSCR}\nv_add_u32 v{vE0}, s7, v6")
    b(f"v_lshlrev_b32 v{vSA}, 3, v249\nv_lshl_add_u32 v{vSA}, v250, 2, v{vSA}\ns_lshl_b32 s7, s{sLT}, 8\nv_add_u32 v{vSA}, s7, v{vSA}")
    b(f"v_lshlrev_b32 v{vOUT}, 10, v249\nv_lshl_add_u32 v{vOUT}, v250, 4, v{vOUT}\ns_lshl_b32 s7, s{sLT}, 15\ns_lshl_b32 s8, s{sDT}, 7\ns_add_u32 s7, s7, s8\ns_lshl_b32 s8, s{sW}, 5\ns_add_u32 s7, s7, s8\nv_add_u32 v{vOUT}, s7, v{vOUT}")
    b(f"s_lshl_b32 s5, s{sDT}, 2\ns_add_u32 s5, s5, s{sW}\ns_mul_i32 s5, s5, 57344\ns_add_u32 s{sW2B}, s5, {W2F}")
def setup_p0(b):
    b("v_lshrrev_b32 v254, 5, v1")
    b("s_and_b32 s5, s95, 3\nv_and_b32 v5, 1, v61\nv_xor_b32 v209, s5, v5\nv_xor_b32 v210, 2, v209")
    b("v_lshlrev_b32 v5, 3, v254\nv_bfe_u32 v6, v1, 2, 2\nv_add_u32 v5, v5, v6\nv_lshlrev_b32 v5, 7, v5\nv_and_b32 v62, 3, v1\nv_lshl_add_u32 v5, v62, 3, v5\nv_add_u32 v5, s9, v5")
    b("v_lshl_add_u32 v209, v209, 5, v5\nv_lshl_add_u32 v210, v210, 5, v5")
    b(f"s_lshl_b32 s99, s94, 11\ns_add_u32 s99, s99, {W2F}")
    b(f"s_lshl_b32 s11, s4, 16\ns_bfe_u32 s6, s2, 0x10002\ns_lshl_b32 s6, s6, 7\ns_add_u32 s11, s11, s6\ns_and_b32 s6, s2, 3\ns_lshl_b32 s6, s6, 14\ns_add_u32 s11, s11, s6\ns_lshl_b32 s6, s{sW}, 12\ns_add_u32 s11, s11, s6\ns_add_u32 s11, s11, {XP[0]}")
IDX = 100
wq = list(dma)
def take(n):
    r = wq[:n]; del wq[:n]; return r
setup_p0(M); setup_dma(M)
M.add(interleave(gen(setup), take(opt("e0", 0)), start=20))
stamp(M, "p0 setup")
M("@vm b1")
stamp(M, "p0 rows")
M("v_swap_b32 v217, v220\nv_swap_b32 v219, v222")
M(f"buffer_store_dwordx4 v[216:219], v207, {WS}, s11 offen sc1 ;@p0s\nbuffer_store_dwordx4 v[220:223], v207, {WS}, s11 offen offset:256 sc1 ;@p0s")
for i in range(4): M(f"v_mov_b32 v{52+i}, 0")
for q in range(4):
    M(f"v_dot2c_f32_bf16 v52, s{sONE}, v{32+q}\nv_dot2c_f32_bf16 v53, v{32+q}, v{32+q}")
    M(f"v_dot2c_f32_bf16 v54, s{sONE}, v{36+q}\nv_dot2c_f32_bf16 v55, v{36+q}, v{36+q}")
for m_ in ["quad_perm:[1,0,3,2]", "quad_perm:[2,3,0,1]", "row_half_mirror", "row_mirror"]:
    for i in range(4): M(f"v_add_f32_dpp v{52+i}, v{52+i}, v{52+i} {m_} row_mask:0xf bank_mask:0xf")
xsum(M, [52, 53, 54, 55], 56, [16, 32])
for r in (52, 54): M(f"v_pk_mul_f32 {v(r,2)}, {v(r,2)}, s[{sINV}:{sINV+1}]")
for r in (52, 54): M(f"v_fma_f32 v{r+1}, -v{r}, v{r}, v{r+1}")
for r in (52, 54): rnd(M, r+1, r+1)
for r in (52, 54): M(f"v_add_f32 v{r+1}, s{sEPS}, v{r+1}")
for r in (52, 54): rnd(M, r+1, r+1)
for r in (52, 54): M(f"v_sqrt_f32 v{r+1}, abs(v{r+1})")
for r in (52, 54): M(f"v_cvt_pk_bf16_f32 v{r}, v{r}, v{r+1}")
M(f"s_lshl_b32 s5, s2, 6\ns_lshl_b32 s6, s{sW}, 4\ns_add_u32 s5, s5, s6\ns_add_u32 s15, s5, {ST0}")
stamp(M, "p0 stats")
nn = lab("nn"); nl = lab("nl"); nb = lab("nb")
M("s_waitcnt lgkmcnt(0)")
M(f"s_cmp_eq_u32 s{sNON}, 0\ns_cbranch_scc1 {nn}")
M.label(nb)
tail.label(nn)
for k in range(1, 4):
    tail(f"s_load_dword s{sNON}, s[38:39], {64*k}\ns_waitcnt lgkmcnt(0)\ns_cmp_lg_u32 s{sNON}, 0\ns_cbranch_scc1 {nb}")
tail(f"s_mov_b32 s10, {SPIN}\nv_mov_b32 v5, 0")
tail.label(nl)
tail("global_load_dword v6, v5, s[38:39] sc1\ns_waitcnt vmcnt(0)")
tail(f"v_readfirstlane_b32 s{sNON}, v6\ns_cmp_lg_u32 s{sNON}, 0\ns_cbranch_scc1 {nb}")
tail(f"s_sub_u32 s10, s10, 1\ns_cmp_lg_u32 s10, 0\ns_cbranch_scc1 {nl}\ns_branch {nb}")
M(f"v_mov_b32 v212, v52\nv_mov_b32 v213, s{sNON}\nv_mov_b32 v214, v54\nv_mov_b32 v215, s{sNON}")
publish = gen(lambda b: (b(f"@vm p0s\n@{{\ns_barrier\ns_mov_b64 exec, 1\nbuffer_store_dwordx4 v[212:215], off, {WS}, s15 sc1\ns_mov_b64 exec, -1\n@}}"), stamp(b, "p0 published")))
def w2_relay(b):
    n3 = lab("n3")
    b("@vm b2")
    for mt in range(2):
        for hf in range(2): b(f"ds_read_b64_tr_b16 {v(224+4*mt+2*hf,2)}, v{209+mt} offset:{hf*512} ;@w2r")
    b(f"@lg w2r\n@{{\ns_cmp_ge_u32 s2, 224\ns_cbranch_scc1 {n3}")
    b(f"buffer_store_dwordx4 v[224:227], v2, {WS}, s99 offen sc1 ;@!\nbuffer_store_dwordx4 v[228:231], v2, {WS}, s99 offen offset:1024 sc1 ;@!")
    b.label(n3); b("@}")
def kgen(Kg):
    Kg(f"s_lshl_b32 s{sDK}, s13, 16\ns_and_b32 s{sDK+1}, s13, s{sMSK}")
    Kg(f"@{{\ns_lshl_b32 s5, s12, 16\ns_and_b32 s6, s12, s{sMSK}\ns_cmp_ge_u32 s{sW}, 2\ns_cselect_b32 s5, s6, s5\n@}}")
    L2E = f"{f2u(LOG2E):#x}"
    VAL = lambda row: 110 + 2*row if row < 45 else 62 + 2*(row - 45)
    Kg(f"v_mov_b32 v5, s5\nv_mul_f32 v5, {L2E}, v5\nv_exp_f32 v5, v5")
    for i in range(4): Kg(f"v_lshlrev_b32 v{48+i}, 16, v{48+i}")
    Kg(f"v_mul_f32 v48, {L2E}, v48\nv_exp_f32 v48, v48")
    Kg(f"s_mul_i32 s5, s{sW}, {ES}")
    Kg("v_lshlrev_b32 v98, 2, v1\nv_add_u32 v98, s5, v98")
    rnd(Kg, 5, 5); rnd(Kg, 48, 48)
    Kg(f"v_mul_f32 v49, v49, v5\nv_mul_f32 v48, v48, v5\nv_mul_f32 v49, 0.15915494, v49\nv_mul_f32 v48, s{sNL2E}, v48")
    Kg(f"v_add_f32 v5, v5, v5\nv_mul_f32 v{VAL(0)}, v50, v5\nv_mul_f32 v{VAL(0)+1}, v51, v5")
    E1, E8, E128, E1K = VAL(17), 34, VAL(24), VAL(48)
    PS = [(E1, 1.0), (E8, 8.0), (E128, 128.0), (E1K, 1024.0)]
    for k, (dst, p) in enumerate(PS): Kg(f"v_mul_f32 v{52+k}, {f2u(p):#x}, v48\nv_mul_f32 v{56+k}, {f2u(p):#x}, v49")
    for k, (dst, p) in enumerate(PS): Kg(f"v_exp_f32 v{52+k}, v{52+k}\nv_fract_f32 v{56+k}, v{56+k}")
    for k, (dst, p) in enumerate(PS): Kg(f"v_cos_f32 v{dst}, v{56+k}\nv_sin_f32 v{dst+1}, v{56+k}")
    Kg("v_mul_u32_u24 v99, 272, v60\nv_lshl_add_u32 v99, v61, 4, v99\nv_add_u32 v99, s5, v99")
    Kg(f"v_mov_b32 v{VAL(16)}, 1.0\nv_mov_b32 v{VAL(16)+1}, 0")
    for k, (dst, p) in enumerate(PS): Kg(f"v_mul_f32 v{dst}, v{dst}, v{52+k}\nv_mul_f32 v{dst+1}, v{dst+1}, v{52+k}")
    e16, e32, e64 = 36, 38, 32
    V = VAL
    levels = [
        [(V(1), V(0), E8), (V(18), E1, E1), (V(32), E128, E128), (e16, E8, E8), (V(56), E1K, E1K), (V(25), E1, E128), (V(49), E1K, E128)],
        [(e32, e16, e16), (V(20), V(18), V(18)), (V(40), V(32), V(32)), (V(2), V(0), e16), (V(3), V(1), e16), (V(19), V(18), E1), (V(36), V(32), E128),
         (V(26), V(18), E128), (V(50), E1K, V(32)), (V(33), V(32), V(18))],
        [(e64, e32, e32), (V(4), V(0), e32), (V(5), V(1), e32), (V(6), V(2), e32), (V(7), V(3), e32), (V(21), V(20), E1), (V(22), V(20), V(18)), (V(23), V(20), V(19)),
         (V(42), V(40), E128), (V(44), V(40), V(32)), (V(46), V(40), V(36)), (V(27), V(19), E128), (V(28), V(20), E128), (V(51), E1K, V(36)), (V(52), E1K, V(40)),
         (V(34), V(32), V(20)), (V(37), V(36), V(18)), (V(38), V(36), V(20)), (V(41), V(40), V(20))],
        [(V(8 + i), V(i), e64) for i in range(8)] +
        [(V(29), V(21), E128), (V(30), V(22), E128), (V(31), V(23), E128), (V(35), V(32), V(22)), (V(39), V(36), V(22)),
         (V(43), V(42), V(20)), (V(45), V(44), V(20)), (V(47), V(46), V(20)), (V(53), E1K, V(42)), (V(54), E1K, V(44)), (V(55), E1K, V(46))],
    ]
    row_of = {VAL(r): r for r in range(57)}
    pend = [0, 16, 17, 24, 48]; written = []
    rot = [0]
    def puts(rows):
        g = []
        for r in rows:
            t = 86 + rot[0] % 12; rot[0] += 1
            g.append((f"    v_cvt_pk_bf16_f32 v{t}, v{VAL(r)}, {'-' if r < 16 else ''}v{VAL(r)+1}", f"    ds_write_b32 v98, v{t} offset:{r*272}"))
            written.append(r)
        out = []
        for k in range(len(g) + 1):
            out.append(([g[k][0]] if k < len(g) else []) + ([g[k-1][1]] if k > 0 else []))
        return out
    for lv in levels:
        t = Buf()
        for d_, x_, y_ in lv: t(f"v_pk_mul_f32 {v(d_,2)}, {v(x_,2)}, {v(y_,2)} op_sel_hi:[1,0]")
        for d_, x_, y_ in lv: t(f"v_pk_fma_f32 {v(d_,2)}, {v(x_,2)}, {v(y_,2)}, {v(d_,2)} op_sel:[1,1,0] op_sel_hi:[0,1,1] neg_lo:[1,0,0]")
        Kg.add(interleave(t.l, puts(pend)))
        pend = [row_of[d_] for d_, _, _ in lv if d_ in row_of]
    Kg.add(flat(puts(pend)))
    assert sorted(written) == list(range(57))
    LOF, HF, GD = 110, 126, 62
    Kg("s_waitcnt lgkmcnt(0)")
    for s_ in range(4):
        Kg(f"ds_read_b128 {v(LOF+4*s_,4)}, v99 offset:{s_*64} ;@kf{s_}")
        for T in range(3): Kg(f"ds_read_b128 {v(HF+16*T+4*s_,4)}, v99 offset:{(16+16*T)*272+s_*64} ;@kf{s_}")
    Kg(f"s_mul_i32 s5, s{sW}, 3072\ns_add_u32 s5, s5, {LGT}")
    Kg("v_lshlrev_b32 v5, 2, v60\nv_lshl_add_u32 v5, v61, 8, v5\nv_add_u32 v5, s5, v5")
    for s_ in range(4):
        Kg(f"@lg kf{s_}")
        for T in range(3): Kg(f"v_mfma_f32_16x16x32_bf16 {v(GD+4*T,4)}, {v(HF+16*T+4*s_,4)}, {v(LOF+4*s_,4)}, {'0' if s_ == 0 else v(GD+4*T,4)}")
    for T in range(3):
        for r in range(0, 4, 2): Kg(f"ds_write2_b32 v5, v{GD+4*T+r}, v{GD+4*T+r+1} offset0:{r*16} offset1:{r*16+16}") if T == 0 else None
        if T:
            for r in range(4): Kg(f"ds_write_b32 v5, v{GD+4*T+r} offset:{(T*16+r)*64}")
M("@vm par")
kl = gen(kgen)
PUB = opt("pub", 110)
kl = interleave(kl, [publish + gen(w2_relay)], start=PUB, every=1)
M.add(interleave(kl, take(11 - opt("e0", 0)), start=4))
stamp(M, "kgen core")
M(f"s_mov_b32 s{sO}, {ST0}\nbuffer_load_dwordx4 v[232:235], v{vCS}, {WS}, s{sO} offen sc1 ;@cin\nbuffer_load_dwordx4 v[236:239], v{vCS}, {WS}, s{sO} offen offset:16 sc1 ;@cin")
M(f"s_mov_b32 s{sO}, {ST0+8192}\nbuffer_load_dwordx4 v[240:243], v{vCS}, {WS}, s{sO} offen sc1 ;@cin\nbuffer_load_dwordx4 v[244:247], v{vCS}, {WS}, s{sO} offen offset:16 sc1 ;@cin")
M("s_waitcnt lgkmcnt(0)\ns_barrier")
for c in range(2):
    for k in range(9): M(f"ds_read2st64_b32 {v(110+c*18+2*k,2)}, v{IDX+k} offset0:{24*c} offset1:{24*c+12} ;@g{c}")
M(f"v_bfe_u32 v5, v0, 4, 1\nv_mul_u32_u24 v5, {PKS}, v5\nv_lshl_add_u32 v5, v60, 2, v5\nv_add_u32 v5, {LPK}, v5\nv_mov_b32 v6, 0")
M("ds_write_b32 v5, v6")
M(f"v_lshlrev_b32 v5, 5, v0\nv_add_u32 v5, {LPK+64}, v5")
M("v_cmp_eq_u32 vcc, 0, v0")
for c in range(2):
    M(f"@lg g{c}")
    for k in range(9):
        r = 110 + c*18 + 2*k
        M(f"v_add_f32 v{r}, v{r}, v{r+1}")
    M(f"v_cndmask_b32 v{110+c*18}, v{110+c*18}, v6, vcc")
    for k in range(8): M(f"v_cvt_pk_bf16_f32 v{72+c*8+k}, v{110+c*18+2*(k+1)}, v{110+c*18+2*k}")
    M(f"ds_write_b128 v5, {v(72+c*8,4)} offset:{c*PKS}\nds_write_b128 v5, {v(76+c*8,4)} offset:{c*PKS+16}")
T0, U0, ACC = 32, 160, 224
BASE, RV, CST, UPK = 224, 232, 232, 240
def conv_stats(b, layer, half):
    b(f"s_mov_b32 s{sO}, {(ST2 if layer else ST0) + half*8192}")
    b(f"buffer_load_dwordx4 {v(CST,4)}, v{vCS}, {WS}, s{sO} offen sc1 ;@cin\nbuffer_load_dwordx4 {v(CST+4,4)}, v{vCS}, {WS}, s{sO} offen offset:16 sc1 ;@cin")
def conv_x(b, layer, half):
    b(f"s_mov_b32 s{sO}, {XP[2*layer] + half*0x100000}\nbuffer_load_dwordx4 v[248:251], v{vCX}, {WS}, s{sO} offen sc1 ;@cin")
def conv_inputs(b, layer, half):
    conv_x(b, layer, half); conv_stats(b, layer, half)
def gcheck(b):
    slow = lab("gs"); back = lab("gb"); lp = lab("gl")
    def chk(o):
        for k in range(8): o(f"v_xor_b32 v{160+k}, s{sNON}, v{CST+2*k+1}")
        o("v_or3_b32 v160, v160, v161, v162\nv_or3_b32 v163, v163, v164, v165\nv_or3_b32 v160, v160, v166, v167\nv_or_b32 v160, v160, v163\nv_cmp_ne_u32 vcc, 0, v160")
    b("@vm cin\n@{")
    chk(b); b(f"s_cbranch_vccnz {slow}"); b.label(back); b("@}")
    for k in range(4): b(f"v_mov_b32 v{252+k}, v{CST+8+2*k}")
    tail.label(slow); tail(f"s_mov_b32 s10, {SPIN}\ns_mov_b32 s11, {ST0}\ns_mov_b32 s5, {ST0+8192}")
    tail.label(lp)
    for k in range(4): tail(f"buffer_load_dwordx4 {v(CST+4*k,4)}, v{vCS}, {WS}, s{5 if k >= 2 else 11} offen offset:{16*(k&1)} sc1")
    tail("s_waitcnt vmcnt(0)")
    chk(tail); tail(f"s_cbranch_vccz {back}")
    tail(f"s_sub_u32 s10, s10, 1\ns_cmp_lg_u32 s10, 0\ns_cbranch_scc1 {lp}\ns_branch {back}")
def t_loads(b, js):
    for j in js:
        if j: b(f"v_add_u32 v5, {1024*j}, v{vTB}")
        ad = 5 if j else vTB
        for t in range(4):
            r = T0 + (j*4 + t)*4
            b(f"ds_read2_b32 {v(r,2)}, v{ad} offset0:{32*t+6} offset1:{32*t+4} ;@T\nds_read2_b32 {v(r+2,2)}, v{ad} offset0:{32*t+2} offset1:{32*t} ;@T")
def t_groups(ta=188):
    g = []
    for k in range(32):
        j, t = k >> 2, k & 3
        r = T0 + 4*k
        grp = [f"    v_add_u32 v{ta}, {1024*j}, v{vTB}"] if t == 0 else []
        grp += [f"    ds_read2_b32 {v(r,2)}, v{ta} offset0:{32*t+6} offset1:{32*t+4} ;@T", f"    ds_read2_b32 {v(r+2,2)}, v{ta} offset0:{32*t+2} offset1:{32*t} ;@T"]
        g.append(grp)
    return g
def u_pad(b):
    b(f"v_subrev_u32 v5, {LEX}, v{vEW}\nv_and_b32 v5, 0x3f0, v5\nv_lshrrev_b32 v5, 1, v5\nv_add_u32 v5, {LU}, v5\nv_mov_b32 v{UPK}, 0\nv_mov_b32 v{UPK+1}, 0")
    b(f"ds_write_b64 v5, {v(UPK,2)}\nds_write_b64 v5, {v(UPK,2)} offset:{US}")
def conv_half(b, layer, half, bg=[], pre_barrier=None, after_ln=None, after_mfma=None, tailbg=[], pre_barrier2=None):
    X = 248
    MN, RI, DD = 192, 196, 176
    b("@vm cin")
    stamp(b, f"L{layer} conv{half} loaded")
    if layer == 0:
        G = (lambda i: 252 + i) if half else (lambda i: CST + 2*i)
        for i in range(4): b(f"v_and_b32 v{RI+i}, s{sMSK}, v{G(i)}")
        for i in range(4): b(f"v_rcp_f32 v{RI+i}, v{RI+i}")
        for i in range(4): b(f"v_lshlrev_b32 v{MN+i}, 16, v{G(i)}")
    else:
        for i in range(4): b(f"v_pk_mul_f32 {v(CST+2*i,2)}, {v(CST+2*i,2)}, s[{sINV}:{sINV+1}]")
        for i in range(4): b(f"v_fma_f32 v{RI+i}, -v{CST+2*i}, v{CST+2*i}, v{CST+2*i+1}")
        for i in range(4): rnd(b, RI+i, RI+i)
        for i in range(4): b(f"v_add_f32 v{RI+i}, s{sEPS}, v{RI+i}")
        for i in range(4): rnd(b, RI+i, RI+i)
        for i in range(4): b(f"v_sqrt_f32 v{RI+i}, abs(v{RI+i})")
        for i in range(4): rnd(b, MN+i, CST+2*i)
        for i in range(4): rnd(b, RI+i, RI+i)
        for i in range(4): b(f"v_rcp_f32 v{RI+i}, v{RI+i}")
    for i in range(4): b(f"v_lshlrev_b32 v{BASE+i}, 16, v{X+i}\nv_and_b32 v{BASE+4+i}, s{sMSK}, v{X+i}")
    for k in range(4): b(f"v_pk_add_f32 {v(DD+2*k,2)}, {v(BASE+2*k,2)}, {v(MN+2*(k&1),2)} neg_lo:[0,1] neg_hi:[0,1]")
    for k in range(8): rnd(b, DD+k, DD+k)
    for k in range(4): b(f"v_pk_mul_f32 {v(DD+2*k,2)}, {v(DD+2*k,2)}, {v(RI+2*(k&1),2)}")
    for k in range(4): b(f"v_cvt_pk_bf16_f32 v{UPK+k}, v{DD+2*k}, v{DD+2*k+1}")
    b(f"ds_write_b64 v{vUW}, {v(UPK,2)} offset:{half*2048}\nds_write_b64 v{vUW}, {v(UPK+2,2)} offset:{US+half*2048}")
    if pre_barrier: b(pre_barrier)
    b("s_waitcnt lgkmcnt(0)\ns_barrier")
    if after_ln: after_ln(b)
    for tp in range(4):
        for t in range(4):
            b(f"ds_read_b128 {v(U0+(tp*4+t)*4,4)}, v{vUR} offset:{512 + 512*(tp+4*half) - 64*t - 32} ;@U{tp}")
    for k in range(4):
        b(f"v_lshlrev_b32 v{RV+2*k}, 16, v{UPK+k}\nv_and_b32 v{RV+2*k+1}, s{sMSK}, v{UPK+k}")
    for k in range(4):
        c = k >> 1
        b(f"v_pk_fma_f32 {v(BASE+2*k,2)}, {v(RV+2*k,2)}, s[{sDK}:{sDK+1}], {v(BASE+2*k,2)} op_sel:[0,{c},0] op_sel_hi:[1,{c},1]")
    mm = Buf()
    for tp in range(4):
        mm(f"@lg U{tp}")
        n_ = 0
        for r in range(tp, 4):
            for t in range(4):
                acc = ACC + (4*half + r)*4
                cin = "0" if (half == 0 and t == 0 and tp == 0) else ac(acc, 4)
                mm(f"v_mfma_f32_16x16x32_bf16 {ac(acc,4)}, {v(T0+((r-tp)*4+t)*4,4)}, {v(U0+(tp*4+t)*4,4)}, {cin}")
            if r == tp + 1 or (r == tp == 3): pass
        if tp < 3 or True:
            pass
    ml = []; cnt = 0; due = {}
    lastidx = {0: 3, 1: 19, 2: 31, 3: 39}
    for ln in mm.l:
        ml.append(ln)
        if "v_mfma" in ln:
            for r in range(3):
                if cnt == lastidx[r] + 8: ml.append(f"    ds_write_b128 v{vEW}, {ac(ACC+(4*half+r)*4,4)} offset:{r*4096}")
            cnt += 1
    ml = interleave(ml, bg, start=2)
    b.add(ml)
    tailbg = list(tailbg)
    if after_mfma: after_mfma(b)
    b(f"ds_write_b128 v{vEW}, {ac(ACC+(4*half+3)*4,4)} offset:{3*4096}")
    b.add(flat(tailbg[:2]))
    if pre_barrier2: b(pre_barrier2)
    b("s_waitcnt lgkmcnt(0)\ns_barrier")
    for src in range(4): b(f"ds_read_b128 {v(RV+4*src,4)}, v{vER} offset:{src*1024} ;@E{src>>1}")
    b.add(flat(tailbg[2:]))
    b(f"s_mov_b32 s{sO}, {XP[1+2*layer] + half*0x100000}")
    for c in range(2):
        b(f"@lg E{c}")
        for k in range(2): b(f"v_pk_add_f32 {v(RV+8*c+2*k,2)}, {v(RV+8*c+2*k,2)}, {v(RV+8*c+4+2*k,2)}")
        for k in range(2): b(f"v_pk_add_f32 {v(BASE+4*c+2*k,2)}, {v(BASE+4*c+2*k,2)}, {v(RV+8*c+2*k,2)}")
    sw = lab("sw"); sj = lab("sj")
    b(f"s_cmp_ge_u32 s{sCPI}, 128\ns_cbranch_scc1 {sw}")
    for i in range(4): b(f"v_cvt_pk_bf16_f32 v{244+i}, v{BASE+i}, v{BASE+4+i}")
    b.label(sj)
    tail.label(sw)
    for i in range(4): tail(f"v_cvt_pk_bf16_f32 v{244+(i^1)}, v{BASE+i}, v{BASE+4+i}")
    tail(f"s_branch {sj}")
    b(f"buffer_store_dwordx4 v[244:247], v{vCX}, {WS}, s{sO} offen sc1 ;@cst")
    stamp(b, f"L{layer} conv{half} stored")
def conv_ab(b):
    b("@lg T")
    for t in range(4):
        for tp in range(4):
            for r in range(4, 8):
                acc = ACC + r*4
                cin = "0" if (t == 0 and tp == 0) else ac(acc, 4)
                b(f"v_mfma_f32_16x16x32_bf16 {ac(acc,4)}, {v(T0+((r-tp)*4+t)*4,4)}, {v(U0+(tp*4+t)*4,4)}, {cin}")
def colsum(b):
    wa_regs(b)
    b(f"@{{\ns_lshr_b32 s6, s{sW}, 1\ns_mul_i32 s6, s6, {256*224}\ns_lshl_b32 s5, s{sW}, 6\ns_cmp_eq_u32 s{sW}, 3\ns_cselect_b32 s5, 0, s5\ns_cselect_b64 vcc, -1, 0\ns_sub_u32 s5, s5, s6\n@}}")
    b(f"v_cndmask_b32 v248, v{vWA}, v253, vcc\nv_cndmask_b32 v249, v252, v253, vcc\nv_add_u32 v248, s5, v248\nv_add_u32 v249, s5, v249\nv_add_u32 v250, {256*224}, v248\nv_add_u32 v251, {256*224}, v249")
    for i in range(4): b(f"v_mov_b32 v{240+i}, s{sONE}")
    def rd(ks):
        for f2 in range(2):
            for hf in range(2):
                b(f"ds_read_b64_tr_b16 {v(96+(f2*8+ks%8)*4+2*hf,2)}, v{248 + f2 + 2*(ks//8)} offset:{(32*(ks%8)+16*hf)*224} ;@c{ks}")
    for ks in range(3): rd(ks)
    for ks in range(16):
        if ks + 3 < 16: rd(ks + 3)
        b(f"@lg c{ks}")
        for f2 in range(2):
            b(f"v_mfma_f32_16x16x32_bf16 {v(232+4*f2,4)}, {v(96+(f2*8+ks%8)*4,4)}, v[240:243], {'0' if ks == 0 else v(232+4*f2,4)}")
    b(f"s_lshl_b32 s5, s{sW}, 7\nv_add_u32 v5, s5, v{vCSA}")
    b("ds_write_b128 v5, v[232:235] ;@cs\nds_write_b128 v5, v[236:239] offset:64 ;@cs")

WB, SS, KA, SA = 160, 216, 224, 224
def g1_loads(layer, half):
    g = []
    X0 = 32 + 64 * half
    for ks in range(8):
        for n_, (dst, off) in enumerate([(0, 0), (4, 256), (2, 2048), (6, 2304)]):
            grp = []
            if n_ == 0: grp.append(f"    s_mov_b32 s{sB0}, {XP[1+2*layer] + half*0x100000 + ks*4096}")
            grp.append(f"    buffer_load_dwordx2 {v(X0+8*ks+dst,2)}, v{vGX}, {WS}, s{sB0} offen offset:{off} sc1 ;@x{ks}")
            g.append(grp)
    return g
def wread(b, ks, ft, hfs=(0, 1)):
    r = WB + (ks & 1) * 28 + ft * 4
    for hf in hfs:
        ad, off = (253, 0) if ft == 6 else ((252 if ft & 1 else vWA), (ft >> 1) * 64)
        b(f"ds_read_b64_tr_b16 {v(r+2*hf,2)}, v{ad} offset:{(32*ks+16*hf)*224 + off} ;@w{ks}_{ft}")
def wa_regs(b):
    b(f"v_xor_b32 v252, 32, v{vWA}\nv_and_b32 v253, 32, v{vWA}\nv_mul_u32_u24 v253, 6, v253\nv_sub_u32 v253, v{vWA}, v253\nv_add_u32 v253, 384, v253")
def g1_pre(b):
    wa_regs(b)
    for ft in range(7): wread(b, 0, ft)
def g1_loop(b, half, bg, hooks={}, slots=None):
    X0 = 32 + 64 * half
    bg = list(bg)
    if slots is None: slots = (0, 2, 4, 6) if len(bg) <= 32 else (0, 1, 3, 4, 6)
    def swaps(ks):
        x = X0 + 8 * ks
        b(f"@vm x{ks}\nv_swap_b32 v{x+1}, v{x+4}\nv_swap_b32 v{x+3}, v{x+6}")
    swaps(0)
    for ks in range(8):
        x = X0 + 8 * ks
        if ks in hooks: hooks[ks](b)
        for ft in range(7):
            r = WB + (ks & 1) * 28 + ft * 4
            if ft in (0, 4): b(f"@lg w{ks}_{3 if ft == 0 else 6}")
            b(f"v_mfma_f32_16x16x32_bf16 {ac(SA+4*ft,4)}, {v(r,4)}, {v(x+4,4)}, {'0' if ks == 0 else ac(SA+4*ft,4)}")
            if ks < 7: wread(b, ks + 1, ft, (0,))
            if ft in slots and bg: b.add(bg.pop(0))
            b(f"v_mfma_f32_16x16x32_bf16 {v(KA+4*ft,4)}, {v(r,4)}, {v(x,4)}, {'0' if ks == 0 else v(KA+4*ft,4)}")
            if ks < 7: wread(b, ks + 1, ft, (1,))
            if ft == 5 and ks < 7: swaps(ks + 1)
    assert not bg
RC, CSR = 160, 188
def g1_post1(b, half, bg=[], chk=None, bg2=[]):
    X0 = 32 + 64 * half
    d = Buf()
    for ks in range(8):
        x = X0 + 8 * ks
        for q in range(4):
            o = 4 * (q & 1)
            if ks == 0 and q < 2:
                d(f"v_dot2_f32_bf16 v{SS+o}, s{sONE}, v{x+q}, 0\nv_dot2_f32_bf16 v{SS+o+1}, v{x+q}, v{x+q}, 0")
                d(f"v_dot2_f32_bf16 v{SS+o+2}, s{sONE}, v{x+4+q}, 0\nv_dot2_f32_bf16 v{SS+o+3}, v{x+4+q}, v{x+4+q}, 0")
                continue
            d(f"v_dot2c_f32_bf16 v{SS+o}, s{sONE}, v{x+q}\nv_dot2c_f32_bf16 v{SS+o+1}, v{x+q}, v{x+q}")
            d(f"v_dot2c_f32_bf16 v{SS+o+2}, s{sONE}, v{x+4+q}\nv_dot2c_f32_bf16 v{SS+o+3}, v{x+4+q}, v{x+4+q}")
    wr = [[f"    ds_write_b128 v{vXW}, {ac(SA+4*ft,4)} offset:{ft*1024}"] for ft in range(7)]
    wr += [[f"    ds_read_b128 {v(CSR+4*ft,4)}, v{vCSA} offset:{ft*64}"] for ft in range(7)]
    dl = interleave(d.l, wr, start=8, every=9)
    cut = opt("cut", 140)
    b.add(interleave(dl[:cut], bg, start=4))
    chk(b)
    b.add(interleave(dl[cut:], bg2))
    b(f"v_pk_add_f32 {v(SS+2,2)}, {v(SS+2,2)}, {v(SS+6,2)}\nv_pk_add_f32 {v(SS,2)}, {v(SS,2)}, {v(SS+4,2)}")
    b(f"ds_write_b64 v{vSW}, {v(SS+2,2)} offset:7168")
    b("s_waitcnt lgkmcnt(0)\ns_barrier")
    b(f"ds_read_b64 {v(SS+2,2)}, v{vSR} offset:7168 ;@s")
    for ft in range(7): b(f"ds_read_b128 {v(RC+4*ft,4)}, v{vXR} offset:{ft*1024} ;@r{ft}")
def g1_post2(b, layer, half):
    b("@lg s")
    b(f"v_pk_add_f32 {v(SS,2)}, {v(SS,2)}, {v(SS+2,2)}")
    xsum(b, [SS, SS+1], SS+2, [16, 32])
    mn, sd, c2 = SS, SS+1, SS+2
    st = Buf()
    st(f"v_pk_mul_f32 {v(SS,2)}, {v(SS,2)}, s[{sINV}:{sINV+1}]\nv_fma_f32 v{sd}, -v{mn}, v{mn}, v{sd}")
    rnd(st, sd, sd); rnd(st, mn, mn)
    st(f"v_add_f32 v{sd}, s{sEPS}, v{sd}"); rnd(st, sd, sd)
    st(f"v_sqrt_f32 v{sd}, abs(v{sd})"); rnd(st, sd, sd)
    st(f"v_rcp_f32 v{c2}, v{sd}\nv_mul_f32 v{c2}, s{sNL2E}, v{c2}")
    adds = []
    for ft in range(7):
        t = RC + 4*ft
        adds.append([f"    @lg r{ft}"] + [f"    v_pk_add_f32 {v(t+2*k,2)}, {v(t+2*k,2)}, {v(KA+4*ft+2*k,2)}" for k in range(2)])
    b.add(interleave(st.l, adds, start=1, every=1))
    for k in range(14): b(f"v_pk_fma_f32 {v(RC+2*k,2)}, {v(CSR+2*k,2)}, {v(mn,2)}, {v(RC+2*k,2)} op_sel_hi:[1,0,1] neg_lo:[0,1,0] neg_hi:[0,1,0]")
    for k in range(14): b(f"v_pk_mul_f32 {v(CSR+2*k,2)}, {v(RC+2*k,2)}, {v(c2,2)} op_sel_hi:[1,0]")
    for r in range(28): b(f"v_exp_f32 v{CSR+r}, v{CSR+r}")
    for k in range(14): b(f"v_pk_fma_f32 {v(CSR+2*k,2)}, {v(CSR+2*k,2)}, {v(mn,2)}, {v(mn,2)} op_sel:[0,1,1] op_sel_hi:[1,1,1]")
    for r in range(28): b(f"v_rcp_f32 v{CSR+r}, v{CSR+r}")
    for k in range(14): b(f"v_pk_mul_f32 {v(CSR+2*k,2)}, {v(CSR+2*k,2)}, {v(RC+2*k,2)}")
    for k in range(14):
        ft = k >> 1
        b(f"v_cvt_pk_bf16_f32 v{KA + 8*(ft >> 1) + 2*(ft & 1) + (k & 1)}, v{CSR+2*k}, v{CSR+2*k+1}")
    for pr in range(3):
        p = KA + 8*pr
        b(f"v_permlane16_swap_b32 v{p}, v{p+2}\nv_permlane16_swap_b32 v{p+1}, v{p+3}")
def g1_store(b, layer, half):
    hb = HB[layer] + half * 32 * HT
    b(f"s_mov_b32 s{sO}, {hb}\ns_mov_b32 s5, {hb + 4096}")
    for pr in range(3):
        b(f"buffer_store_dwordx4 {v(KA+8*pr,4)}, v{vH4}, {WS}, s{sO if pr < 2 else 5} offen offset:{(pr&1)*2048} {HSC} ;@hst")
    b(f"buffer_store_dwordx2 {v(KA+24,2)}, v{vH2}, {WS}, s5 offen offset:2048 {HSC} ;@hst")

H0, C2, RS = 32, 192, 184
def g2_loads(layer, half):
    g = []
    for ks in range(28):
        grp = []
        if ks % 4 == 0: grp.append(f"    s_mov_b32 s{sB0}, {HB[layer] + half*32*HT + ks*1024}")
        grp.append(f"    buffer_load_dwordx4 {v(H0+4*ks,4)}, v{vHL}, {WS}, s{sB0} offen offset:{(ks%4)*1024} sc1 ;@h{half}_{ks}")
        g.append(grp)
    return g
def w2_loads():
    g = []
    for i in range(56):
        grp = []
        if i % 4 == 0: grp.append(f"    s_add_u32 s{sB1}, s{sW2B}, {(i//4)*4096}")
        grp.append(f"    buffer_load_dwordx4 {ac(4*i,4)}, v6, {WS}, s{sB1} offen offset:{(i%4)*1024} sc1 ;@a{i//2}")
        g.append(grp)
    return g
def g2_res(layer, half):
    RS = 144 if half == 0 else 184
    g = [[f"    s_mov_b32 s{sO}, {XP[1+2*layer] + half*0x100000}"] +
         [f"    buffer_load_dword v{RS+k}, v{vRX}, {WS}, s{sO} offen offset:{(k>>1)*1024 + (k&1)*256} sc1 ;@res" for k in range(4)]]
    return g
def g2_loop(b, half, bg, hooks={}, tg=None, nm=None, late=[]):
    bg = list(bg); late = list(late)
    if tg: b.add(flat(tg[28:]))
    LAG = opt("lag", 8)
    def mf(ks, mt):
        b(f"v_mfma_f32_32x32x16_bf16 {v(C2+16*mt,16)}, {ac((ks*2+mt)*4,4)}, {v(H0+4*ks,4)}, {'0' if ks == 0 else v(C2+16*mt,16)}")
    for ks in range(28):
        if ks in hooks: hooks[ks](b)
        b(f"@vm h{half}_{ks},a{ks}")
        if nm and ks in (0, 4, 8, 12, 16, 20, 24): stamp(b, f"{nm} k{ks}")
        mf(ks, 1)
        if bg: b.add(bg.pop(0))
        if ks < 28 - LAG:
            mf(ks, 0)
            if tg and ks >= 1: b.add(tg[ks-1])
    if "end" in hooks: hooks["end"](b)
    wr = [f"ds_write_b128 v{vE1+sg-1}, {v(C2+8*sg+4*q,4)} offset:{q*1024}" for sg in (2, 3) for q in range(2)]
    for n_, ks in enumerate(range(28 - LAG, 28)):
        mf(ks, 0)
        if tg: b.add(tg[ks-1])
        if n_ >= 2 and n_ % 2 == 0 or n_ == LAG - 1:
            if wr: b(wr.pop(0))
        if late: b.add(late.pop(0))
    for w_ in wr: b(w_)
    if tg: b.add(["    s_nop 7"] + tg[27])
    assert not bg and not late
def g2_post1(b, half):
    RS = 144 if half == 0 else 184
    b("@vm res")
    for k in range(4): b(f"v_lshlrev_b32 v{224+2*k}, 16, v{RS+k}\nv_and_b32 v{225+2*k}, s{sMSK}, v{RS+k}")
    b(f"ds_write_b128 v{vE1}, {v(C2+8,4)}\nds_write_b128 v{vE1}, {v(C2+12,4)} offset:1024")
    b("s_waitcnt lgkmcnt(0)\ns_barrier")
    for k in range(6): b(f"ds_read_b128 {v(160+4*k,4)}, v{vE0} offset:{k*1024} ;@q{k>>1}")
def g2_post2(b, layer, half):
    for s_ in range(3):
        b(f"@lg q{s_}")
        for k in range(4): b(f"v_pk_add_f32 {v(C2+2*k,2)}, {v(C2+2*k,2)}, {v(160+8*s_+2*k,2)}")
    for r in range(8): rnd(b, C2+r, C2+r)
    for k in range(4): b(f"v_pk_add_f32 {v(C2+2*k,2)}, {v(C2+2*k,2)}, {v(224+2*k,2)}")
    for k in range(4): b(f"v_cvt_pk_bf16_f32 v{240+k}, v{C2+2*k}, v{C2+2*k+1}")
    if layer == 0:
        b(f"@{{\ns_mov_b32 s{sO}, {XP[2] + half*0x100000}")
        for k in range(4):
            b(f"buffer_store_dword v{240+k}, v{vX2}, {WS}, s{sO} offen offset:{(k>>1)*1024 + (k&1)*256} sc1 ;@xst")
        b("@}\nv_mov_b32 v244, 0\nv_mov_b32 v245, 0")
        for k in range(4): b(f"v_dot2c_f32_bf16 v244, s{sONE}, v{240+k}\nv_dot2c_f32_bf16 v245, v{240+k}, v{240+k}")
        b("v_permlane32_swap_b32 v244, v245\nv_add_f32 v244, v244, v245")
        LST = LSCR + 24576
        b(f"v_lshrrev_b32 v246, 2, v6\nv_add_u32 v246, {LST}, v246\ns_lshl_b32 s5, s{sW}, 8\nv_add_u32 v247, s5, v246")
        b("ds_write_b32 v247, v244\ns_waitcnt lgkmcnt(0)\ns_barrier")
        b("ds_read2st64_b32 v[244:245], v246 offset0:0 offset1:1\nds_read2st64_b32 v[246:247], v246 offset0:2 offset1:3")
        b(f"s_mov_b32 s{sO}, {ST2 + half*8192}\ns_waitcnt lgkmcnt(0)\nv_pk_add_f32 v[244:245], v[244:245], v[246:247]\nv_add_f32 v244, v244, v245")
        b(f"@{{\ns_mov_b64 exec, s[{sEXQ}:{sEXQ+1}]\nbuffer_atomic_add_f32 v244, v{vSA}, {WS}, s{sO} offen sc1 ;@xst\ns_mov_b64 exec, -1\n@}}")
    else:
        b("v_permlane32_swap_b32 v240, v242\nv_permlane32_swap_b32 v241, v243")
        b(f"s_mov_b32 s{sO}, {half*0x100000}\nbuffer_store_dwordx4 v[240:243], v{vOUT}, {srd(SOUT)}, s{sO} offen")

gcheck(M); conv_x(M, 0, 0)
M(f"v_mov_b32 v{vPL}, v204\nv_mov_b32 v{vSG}, v205")
M("s_waitcnt lgkmcnt(0)\ns_barrier")
stamp(M, "kgen done")
XT, XUP, XPF, HPF, HP2, HUP = opt("xt", 6), opt("xup", 12), opt("xpf", 16), opt("hpf", 18), opt("hp2", 6), opt("hup", 16)
D1, D2, D3, D4, D5 = opt("d1", 4), opt("d2", 5), opt("d3", 8), opt("d4", 0), opt("d5", 0)
M.add(interleave(gen(t_loads, range(4)), take(D1))); u_pad(M)
for layer in range(2):
    L0 = layer == 0
    cA, cB = 4*layer, 4*layer + 1
    xa, xb, ha, hb_ = g1_loads(layer, 0), g1_loads(layer, 1), g2_loads(layer, 0), g2_loads(layer, 1)
    if L0:
        vm_ = take(D2); tg_ = t_groups(5)[16:]
        conv_half(M, layer, 0, bg=[tg_[k] + (vm_[k//2] if (k % 2 == 0 and k//2 < len(vm_)) else []) for k in range(16)])
        conv_x(M, 0, 1)
        M.add(interleave(gen(conv_ab), take(D3), start=1))
    else:
        conv_half(M, layer, 0, pre_barrier="@vm xst", after_ln=lambda b: sig_all(b, 3, "xst", barrier=False))
        ab = interleave(gen(conv_ab), [gen(check, "all", 3) + gen(conv_inputs, 1, 1)], start=opt("abc", 65), every=1)
        M.add(interleave(ab, [gen(poll_all, 3)], start=opt("abp", 24), every=1))
    sig_all(M, cA, "cst")
    stamp(M, f"L{layer} conv0 signalled")
    if not L0:
        if opt("lateC", 0):
            conv_half(M, layer, 1, after_mfma=lambda b: poll_all(b, cA))
            g1_pre(M); check(M, "all", cA)
            M.add(flat(xa[:XUP]))
        else:
            conv_half(M, layer, 1, after_ln=lambda b: poll_all(b, cA), after_mfma=lambda b: check(b, "all", cA), tailbg=xa[:XT])
            g1_pre(M)
            M.add(flat(xa[XT:XUP]))
    else:
        assert not wq
        wq += w2_loads()
        sg_ = gen(setup_g2)
        conv_half(M, layer, 1, pre_barrier2="@vm w1", bg=[sg_[k:k+2] for k in range(0, len(sg_), 2)])
        poll_all(M, cA)
        cs_ = gen(colsum); cc = opt("cc", 60)
        M.add(interleave(cs_[:cc], take(D5), start=20))
        check(M, "all", cA)
        M.add(interleave(cs_[cc:], xa[:XUP]))
        g1_pre(M)
        M("@lg cs")
    stamp(M, f"L{layer} g1A ready")
    w2 = wq
    def mixw(x_, w_):
        if len(x_) + len(w_) <= 32: return x_ + w_
        x_ = list(x_); w_ = list(w_); o = []
        while x_ or w_:
            for q in range(5):
                src = x_ if (x_ and q < 4) else w_
                if src: o.append(src.pop(0))
                elif x_: o.append(x_.pop(0))
        return o + [[]] * (40 - len(o))
    XP1, HP1 = opt("xp1", 0), opt("hp1", 0)
    g1_loop(M, 0, mixw(xa[XUP:], take(opt("wa", 12))), {(opt("sg00", 0) if L0 else opt("sg0", 1)): lambda b: sig_all(b, cB, "cst")},
            slots=(None if L0 else [(0, 2, 4, 6), (0, 1, 3, 4, 6), (0, 1, 2, 3, 4, 5, 6)][opt("xs", 0)]))
    stamp(M, f"L{layer} g1A loop")
    poll_all(M, cB)
    g1_post1(M, 0, take(opt("wp", 14)), lambda b: check(b, "all", cB), xb[:XP1])
    stamp(M, f"L{layer} g1A post1")
    M.add(interleave(gen(g1_post2, layer, 0), xb[XP1:XPF]))
    g1_pre(M)
    g1_store(M, layer, 0)
    stamp(M, f"L{layer} g1A stored")
    if opt("fast", 0) and not L0:
        c1_, c2_ = opt("fc1", 5), opt("fc2", 16)
        n1 = 4 * (8 - c1_)
        g1_loop(M, 1, xb[XPF:] + [[]] * (4*c1_ - (32 - XPF)) + ha[:n1],
                {opt("sg1", 3): lambda b: sig_grp(b, 2*layer, "hst"), c1_ - 1: lambda b: poll_grp(b, 2*layer), c1_: lambda b: check(b, "grp", 2*layer)})
        stamp(M, f"L{layer} g1B loop")
        g1_post1(M, 1, [], lambda b: None, [])
        stamp(M, f"L{layer} g1B post1")
        M.add(interleave(gen(g1_post2, layer, 1), g2_res(layer, 0) + ha[n1:HPF]))
        g1_store(M, layer, 1)
        stamp(M, f"L{layer} g1B stored")
        rest = ha[HPF:]
        n2 = 28 - c2_
        g2_loop(M, 0, rest + [[]] * (c2_ - len(rest)) + hb_[:n2],
                {opt("sg2", 12): lambda b: sig_grp(b, 2*layer+1, "hst"), c2_ - 5: lambda b: poll_grp(b, 2*layer+1), c2_: lambda b: check(b, "grp", 2*layer+1)},
                late=hb_[n2:min(20, n2+8)])
        stamp(M, f"L{layer} g2A loop")
        g2_post1(M, 0); g2_post2(M, layer, 0)
        HP2_ = HUP = min(20, n2 + 8)
    else:
        g1_loop(M, 1, mixw(xb[XPF:], take(opt("wb", 16))), {opt("sg1", 3): lambda b: sig_grp(b, 2*layer, "hst")})
        stamp(M, f"L{layer} g1B loop")
        poll_grp(M, 2*layer)
        g1_post1(M, 1, take(opt("wp", 14)), lambda b: check(b, "grp", 2*layer), ha[:HP1])
        stamp(M, f"L{layer} g1B post1")
        M.add(interleave(gen(g1_post2, layer, 1), g2_res(layer, 0) + ha[HP1:HPF]))
        g1_store(M, layer, 1)
        stamp(M, f"L{layer} g1B stored")
        rest = ha[HPF:]
        if w2:
            mix = []
            while rest or w2:
                mix.append((rest.pop(0) if rest else []) + (w2.pop(0) if w2 else []))
            rest = mix
        HP0 = opt("hp0", 0)
        g2_loop(M, 0, rest, {opt("sg2", 12): lambda b: sig_grp(b, 2*layer+1, "hst"), opt("pg2", 27): lambda b: poll_grp(b, 2*layer+1),
                          "end": (lambda b: check(b, "grp", 2*layer+1) if HP0 else None)}, nm=("L1 g2A" if layer and opt("fine", 0) else None), late=hb_[:HP0])
        stamp(M, f"L{layer} g2A loop")
        if HP0: M.add(interleave(gen(g2_post1, 0) + gen(g2_post2, layer, 0), hb_[HP0:HP0+HP2], end=opt("hpe", 40)))
        else:
            if opt("lateA", 0) and L0:
                g2_post1(M, 0); g2_post2(M, layer, 0); check(M, "grp", 2*layer+1); M.add(flat(hb_[:HP2]))
            else:
                g2_post1(M, 0); check(M, "grp", 2*layer+1)
                M.add(interleave(gen(g2_post2, layer, 0), hb_[:HP2], end=opt("hpe", 30)))
        HP2_ = HP0 + HP2
    if L0 and opt("cpf", 1): M("v_add_u32 v5, s90, v6\nglobal_load_dwordx4 v[252:255], v5, s[42:43]")
    stamp(M, f"L{layer} g2A stored")
    M.add(flat(hb_[HP2_:HUP]))
    if L0:
        g2_loop(M, 1, hb_[HUP:] + g2_res(layer, 1), {opt("sg3", 4): lambda b: sig_all(b, 2, "xst"), 24: lambda b: poll_all(b, 2)}, tg=t_groups())
        stamp(M, f"L{layer} g2B loop")
        g2_post1(M, 1)
        if opt("lateB", 0):
            poll_all(M, 2); g2_post2(M, layer, 1); check(M, "all", 2); conv_inputs(M, 1, 0)
        else:
            check(M, "all", 2); conv_inputs(M, 1, 0)
            g2_post2(M, layer, 1)
        stamp(M, f"L{layer} g2B stored")
        u_pad(M)
    else:
        M("s_barrier")
        g2_loop(M, 1, hb_[HUP:] + g2_res(layer, 1), nm=("L1 g2B" if opt("fine", 0) else None))
        stamp(M, f"L{layer} g2B loop")
        g2_post1(M, 1); g2_post2(M, layer, 1)
        stamp(M, f"L{layer} g2B stored")
if STAMP:
    M(f"s_cmp_lg_u32 s{sW}, 0\ns_cbranch_scc1 {DONE}")
    M(f"v_mbcnt_lo_u32_b32 v5, -1, 0\nv_mbcnt_hi_u32_b32 v5, -1, v5\nv_lshlrev_b32 v5, 2, v5\ns_lshl_b32 s5, s2, 8\ns_add_u32 s5, s5, {0x1800000 + 0x400000}")
    M(f"buffer_store_dword v7, v5, {WS}, s5 offen")
M.label(DONE)
M("s_endpgm")

a = Asm()
a.kernel(NAME + "_kernel", vgpr=512, sgpr=102, accum=256)
lines = resolve(strip_marks(M.l)) + tail.l + [".Lkend:"]
lines, added = hazard.fix(lines)
a.lines += lines
print("nops added", added, "lines", len(a.lines), file=sys.stderr)
hdr = "".join(l for l in open(f"cdna_kernels/{NAME}.s.ref").readlines() if l.startswith(";") and "@launch" not in l and "Override" not in l and "grid=ceil" not in l)
a.launches = [f"; @launch grid=(256,1,1) block=(256,1,1) lds={LDS_BYTES}"]
open(OUT, "w").write(a.text(hdr))
json.dump(STAMPS, open("work/" + OUT.split("/")[-1] + ".stamps.json", "w"))
```

```python
import sys, struct, json
sys.path.insert(0, "work")
from asmgen import Asm
import hazard
from sched import resolve, interleave, strip_marks
NAME = "interleave_layers__ssm_conv_s4d__dense_activation_silu__prompt"
STAMP = "--stamp" in sys.argv
OPT = dict(x.lstrip("-").split("=") for x in sys.argv[1:] if x.startswith("--") and "=" in x)
def opt(k, d): return type(d)(OPT.get(k, d))
OUT = [x for x in sys.argv[1:] if not x.startswith("--")]
OUT = OUT[0] if OUT else f"cdna_kernels/{NAME}.s"
def f2u(x): return struct.unpack("<I", struct.pack("<f", x))[0]
LOG2E = 1.4426950408889634
GCNT = 6 * 0x8000
ST0 = 0x80000; ST2 = 0x84000
W2F = 0x100000
W1F = 0x1900000
XP = [0x1700000, 0x300000, 0x500000, 0x700000]
HB = [0x900000, 0x1000000]
WS_BYTES = 0x2000000
HT = 114688
LPK = 114688; PKS = 8256; LCS = 131200; LSCR = 131712
LU = LSCR; US = 4608; LEX = LSCR + 9216
ES = 28672; LGT = LEX
LDS_BYTES = 163840
SWS, SW1, SW2, SOUT = 44, 48, 52, 56
sW, sCPI, sRT, sCT, sLT, sDT, sNON, sGC = 60, 61, 62, 63, 64, 65, 66, 67
sDK, sONE, sMSK, sINV, sEPS, sNL2E = 68, 70, 71, 72, 74, 75
sEXS = 76
sB0, sB1, sO, sW2B, sGS = 78, 79, 80, 81, 82
sSTAMP = 84
sEXQ = 92
SPIN = 60000
vOUT, vPL, vSG, vPD, vONE = 0, 1, 2, 3, 4
vCX, vCS, vUW, vUR, vTB, vEW, vER, vGX, vWA, vXW, vXR, vSW, vSR, vCSA, vH4, vH2, vHL, vRX, vX2, vE1, vE0, vSA = \
    8, 9, 10, 11, 12, 13, 14, 15, 16, 17, 18, 19, 20, 21, 22, 23, 24, 25, 26, 27, 30, 31
vDMA = 24

HSC = "sc1" if opt("hsc", 1) else opt("hfl", "")
GFLAG = opt("gflag", 0)
if opt("samehb", 0): HB = [HB[0], HB[0]]
NSH = opt('nsh', 16)
class Buf:
    def __init__(self): self.l = []
    def __call__(self, s):
        for ln in s.strip("\n").split("\n"): self.l.append("    " + ln.strip())
    def label(self, n): self.l.append(n + ":")
    def add(self, lines): self.l += lines
uid = [0]
def lab(b="L"):
    uid[0] += 1; return f".{b}_{uid[0]}"
def srd(n): return f"s[{n}:{n+3}]"
def v(n, k=1): return f"v{n}" if k == 1 else f"v[{n}:{n+k-1}]"
def ac(n, k=1): return f"a{n}" if k == 1 else f"a[{n}:{n+k-1}]"
def flat(groups): return [l for g in groups for l in g]
def gen(fn, *args, **kw):
    t = Buf(); fn(t, *args, **kw); return t.l
WS = srd(SWS)
tail = Buf()
STAMPS = []
def stamp(b, name):
    if not STAMP: return
    i = len(STAMPS); STAMPS.append(name)
    assert i < 64
    b(f"@{{\n{'s_memtime' if opt('cyc', 0) else 's_memrealtime'} s[{sSTAMP}:{sSTAMP+1}]\ns_waitcnt lgkmcnt(0)\nv_writelane_b32 v7, s{sSTAMP}, {i}\n@}}")

GADDR = f"v_lshrrev_b32 v5, 10, v{vSG}\nv_and_b32 v5, 0xfc, v5" if GFLAG else f"v_and_b32 v5, 0x300, v{vPL}"
def poll_all(b, cnt):
    b(f"s_mov_b32 s{sO}, {cnt*0x8000}\nbuffer_load_dword v{vPD}, v{vPL}, {WS}, s{sO} offen sc1 ;@poll")
def poll_grp(b, idx):
    b(f"@{{\ns_add_u32 s{sO}, s{sGC}, {idx*16*1024}\n{GADDR}\nbuffer_load_dword v{vPD}, v5, {WS}, s{sO} offen sc1 ;@poll\n@}}")
def check(b, kind, idx):
    slow = lab("slow"); back = lab("back"); lp = lab("lp")
    b("@vm poll")
    b(f"@{{\nv_cmp_gt_u32 vcc, {16 if kind == 'grp' else 256 // NSH}, v{vPD}\ns_cbranch_vccnz {slow}")
    b.label(back); b("@}")
    tail.label(slow)
    tail(f"s_mov_b32 s10, {SPIN}")
    if kind == "all": tail(f"s_mov_b32 s11, {idx*0x8000}\nv_mov_b32 v5, v{vPL}")
    else: tail(f"s_add_u32 s11, s{sGC}, {idx*16*1024}\n{GADDR}")
    tgt = 16 if kind == 'grp' else 256 // NSH
    if opt("pp", 1):
        tail(f"buffer_load_dword v{vPD}, v5, {WS}, s11 offen sc1\ns_sleep {opt('ppd', 4)}")
        tail.label(lp)
        tail(f"buffer_load_dword v4, v5, {WS}, s11 offen sc1\ns_waitcnt vmcnt(1)\nv_cmp_gt_u32 vcc, {tgt}, v{vPD}\ns_cbranch_vccz {back}")
        tail(f"buffer_load_dword v{vPD}, v5, {WS}, s11 offen sc1\ns_waitcnt vmcnt(1)\nv_cmp_gt_u32 vcc, {tgt}, v4\ns_cbranch_vccz {back}")
    else:
        tail.label(lp)
        tail(f"buffer_load_dword v{vPD}, v5, {WS}, s11 offen sc1\ns_waitcnt vmcnt(0)")
        tail(f"v_cmp_gt_u32 vcc, {tgt}, v{vPD}\ns_cbranch_vccz {back}")
    tail(f"s_sub_u32 s10, s10, 1\ns_cmp_lg_u32 s10, 0\ns_cbranch_scc1 {lp}\ns_branch {back}")
def sig_all(b, cnt, tag, barrier=True):
    b(f"@vm {tag}\n@{{\n{'s_barrier' if barrier else 's_nop 0'}\ns_mov_b32 s{sO}, {cnt*0x8000}\ns_mov_b64 exec, s[{sEXS}:{sEXS+1}]")
    b(f"v_mov_b32 v5, 1\nbuffer_atomic_add v5, v{vSG}, {WS}, s{sO} offen sc1\ns_mov_b64 exec, -1\n@}}")
def sig_grp(b, idx, tag):
    b(f"@vm {tag}\n@{{\ns_add_u32 s{sO}, s{sGS}, {idx*16*1024}\ns_mov_b64 exec, 1")
    if GFLAG: b(f"buffer_store_dword v{vONE}, off, {WS}, s{sO} {HSC}\ns_mov_b64 exec, -1\ns_barrier\n@}}")
    else: b(f"v_mov_b32 v5, 1\nbuffer_atomic_add v5, off, {WS}, s{sO} sc1\ns_mov_b64 exec, -1\ns_barrier\n@}}")
def xsum(b, regs, tmp, steps):
    for s in steps:
        for i, r in enumerate(regs): b(f"v_mov_b32 v{tmp+i}, v{r}")
        for i, r in enumerate(regs): b(f"v_permlane{s}_swap_b32 v{r}, v{tmp+i}")
        for i, r in enumerate(regs): b(f"v_add_f32 v{r}, v{r}, v{tmp+i}")
def rnd(b, d, s): b(f"v_cvt_pk_bf16_f32 v{d}, 0, v{s}")

M = Buf()
DONE = ".Ldone"
M.label(".Lkstart")
M("s_cmp_ge_u32 s2, 256")
M(f"s_cbranch_scc1 {DONE}")
M("s_load_dwordx16 s[16:31], s[0:1], 0\ns_load_dwordx8 s[32:39], s[0:1], 64\ns_load_dwordx2 s[40:41], s[0:1], 96")
M("s_memrealtime s[14:15]")
M("s_getpc_b64 s[42:43]")
M("v_and_b32 v1, 63, v0\nv_lshlrev_b32 v2, 4, v1\nv_lshrrev_b32 v3, 6, v0")
M(f"v_readfirstlane_b32 s{sW}, v3")
if STAMP: M("v_mov_b32 v7, 0")
M("s_and_b32 s3, s2, 7\ns_lshr_b32 s4, s2, 3")
M(f"s_lshl_b32 s5, s4, 2\ns_add_u32 s5, s5, s{sW}\ns_min_u32 s5, s5, ((.Lkend-.Lkstart-128)>>10)-1\ns_lshl_b32 s5, s5, 10\nv_add_u32 v5, s5, v2")
M("s_mov_b32 s90, s5")
if opt("cp0", 0) == 0: M("global_load_dwordx4 v[200:203], v5, s[42:43]")
M(f"s_lshl_b32 s{sCPI}, s3, 5\ns_add_u32 s{sCPI}, s{sCPI}, s4")
M(f"s_and_b32 s{sCT}, s4, 15")
M(f"s_lshl_b32 s{sRT}, s3, 1\ns_lshr_b32 s5, s4, 4\ns_add_u32 s{sRT}, s{sRT}, s5")
M(f"s_lshl_b32 s{sLT}, s{sRT}, 1\ns_bfe_u32 s5, s4, 0x10003\ns_add_u32 s{sLT}, s{sLT}, s5\ns_and_b32 s{sDT}, s4, 7")
M(f"s_lshl_b32 s{sGC}, s{sRT}, 10\ns_add_u32 s{sGC}, s{sGC}, {GCNT}\ns_lshl_b32 s5, s{sW}, 8\ns_add_u32 s{sGS}, s{sGC}, s5")
if GFLAG: M(f"s_lshl_b32 s5, s{sCT}, 2\ns_add_u32 s5, s5, s{sW}\ns_lshl_b32 s5, s5, 2\ns_add_u32 s{sGS}, s{sGC}, s5")
M(f"s_mov_b32 s{sONE}, 0x3f803f80\ns_mov_b32 s{sMSK}, 0xffff0000\ns_mov_b32 s{sINV}, {f2u(1/512):#x}\ns_mov_b32 s{sINV+1}, {f2u(1/512):#x}")
M(f"s_mov_b32 s{sEPS}, {f2u(1e-5):#x}\ns_mov_b32 s{sNL2E}, {f2u(-LOG2E):#x}")
M(f"s_lshl_b32 s5, s{sW}, 1\ns_lshl_b32 s{sEXS}, 3, s5\ns_mov_b32 s{sEXS+1}, 0")
M(f"s_lshl_b32 s5, s{sW}, 2\ns_lshl_b32 s{sEXQ}, 0x000f000f, s5\ns_mov_b32 s{sEXQ+1}, s{sEXQ}")
M(f"s_lshl_b32 s5, s2, 13\ns_lshl_b32 s6, s{sW}, 11\ns_add_u32 s5, s5, s6\nv_add_u32 v62, s5, v2")
M(f"s_lshl_b32 s5, s{sCPI}, 9\nv_lshlrev_b32 v63, 1, v0\nv_add_u32 v63, s5, v63")
M(f"s_lshr_b32 s5, s2, 2\ns_lshl_b32 s5, s5, 15\ns_and_b32 s6, s2, 3\ns_lshl_b32 s6, s6, 8\ns_add_u32 s5, s5, s6\ns_lshl_b32 s6, s{sW}, 6\ns_add_u32 s5, s5, s6")
M("v_and_b32 v5, 7, v1\nv_lshlrev_b32 v64, 12, v5\nv_lshrrev_b32 v6, 3, v1\nv_lshl_add_u32 v64, v6, 3, v64\nv_add_u32 v64, s5, v64")
M("v_lshlrev_b32 v65, 10, v6\nv_lshl_add_u32 v65, v5, 4, v65\nv_lshlrev_b32 v207, 9, v6\nv_lshl_add_u32 v207, v5, 4, v207")
M(f"s_lshl_b32 s94, s2, 2\ns_add_u32 s94, s94, s{sW}\ns_min_u32 s94, s94, 895")
M("s_mul_i32 s95, s94, 2341\ns_lshr_b32 s95, s95, 16\ns_mul_i32 s5, s95, 28\ns_sub_u32 s96, s94, s5")
M("s_and_b32 s5, s95, 3\ns_mul_i32 s5, s5, 448\ns_lshl_b32 s6, s96, 4\ns_add_u32 s5, s5, s6\ns_lshl_b32 s7, s5, 10\ns_lshr_b32 s5, s95, 2\ns_lshl_b32 s5, s5, 7\ns_add_u32 s7, s7, s5")
M(f"s_lshl_b32 s9, s{sW}, 12\ns_add_u32 s9, s9, {LPK}")
M(f"s_mov_b32 s{SWS+2}, {WS_BYTES:#x}\ns_mov_b32 s{SWS+3}, 0x20000")
M("s_waitcnt lgkmcnt(0)")
stamp(M, "start")
M(f"s_mov_b32 s{SWS}, s40\ns_mov_b32 s{SWS+1}, s41")
n0 = lab("n0"); n1 = lab("n1")
M(f"s_cmp_ge_u32 s2, 128\ns_cbranch_scc1 {n1}")
M(f"s_or_b32 s5, s2, s{sW}\ns_cmp_lg_u32 s5, 0\ns_cbranch_scc1 {n0}")
M("s_or_b32 s14, s14, 1\nv_mov_b32 v5, s14\nv_lshlrev_b32 v6, 2, v1\nglobal_store_dword v6, v5, s[38:39] sc1 ;@!")
M.label(n0)
M(f"s_lshl_b32 s5, s2, 2\ns_add_u32 s5, s5, s{sW}\ns_lshl_b32 s6, s5, 9\ns_lshl_b32 s5, s5, 5\ns_add_u32 s5, s5, {ST2}")
M("v_mov_b32 v4, 0\nv_mov_b32 v5, 0\nv_lshlrev_b32 v6, 3, v1\nv_lshlrev_b32 v8, 2, v1")
M(f"buffer_store_dwordx2 v[4:5], v6, {WS}, s6 offen sc1 ;@!\ns_mov_b64 exec, 0xff\nbuffer_store_dword v5, v8, {WS}, s5 offen sc1 ;@!\ns_mov_b64 exec, -1")
M.label(n1)
for i, dst in enumerate([216, 220, 218, 222]): M(f"global_load_dwordx2 {v(dst,2)}, v64, s[16:17] offset:{i*1024} ;@b1")
M("global_load_dwordx4 v[32:35], v62, s[16:17] ;@b1\nglobal_load_dwordx4 v[36:39], v62, s[16:17] offset:1024 ;@b1")
for sd, sb, nb in [(SW1, 32, 512*1792*2), (SW2, 34, 512*1792*2), (SOUT, 36, 2048*512*2)]:
    M(f"s_mov_b32 s{sd}, s{sb}\ns_mov_b32 s{sd+1}, s{sb+1}\ns_mov_b32 s{sd+2}, {nb:#x}\ns_mov_b32 s{sd+3}, 0x20000")
M(f"s_mov_b32 m0, s9\ns_add_u32 s5, s7, 8192\nbuffer_load_dwordx4 v65, {srd(SW2)}, s7 offen lds ;@b2\ns_add_u32 m0, s9, 1024\ns_nop 0\nbuffer_load_dwordx4 v65, {srd(SW2)}, s5 offen lds ;@b2")
for i in range(4): M(f"global_load_ushort v{48+i}, v63, s[{18+2*i}:{19+2*i}] ;@par")
M(f"s_lshl_b32 s5, s{sCPI}, 2")
M("s_load_dword s12, s[26:27], s5\ns_load_dword s13, s[28:29], s5")
if opt("tlb", 0):
    M(f"v_lshlrev_b32 v5, 20, v1\ns_mov_b64 exec, 0x7ffffff\ns_mov_b32 s5, 0xc0000\nbuffer_load_dword v240, v5, {WS}, s5 offen sc1\ns_mov_b64 exec, 3")
    M(f"buffer_load_dword v243, v5, {srd(SOUT)}, 0 offen\ns_mov_b64 exec, -1")
M("v_and_b32 v60, 15, v1\nv_lshrrev_b32 v61, 4, v1")
sD0, sD1 = 88, 89
sRX, sRH = 16, 24
M(f"s_mul_i32 s{sD0}, s{sW}, {128*3584}\ns_mul_i32 s5, s{sCT}, 224\ns_add_u32 s{sD0}, s{sD0}, s5\ns_mul_i32 s{sD1}, s{sW}, 28672")
dma = [[f"    s_add_u32 m0, s{sD1}, {p*1024}", f"    s_add_u32 s{sB1}, s{sD0}, {(p//7)*32*3584}", f"    buffer_load_dwordx4 v{vDMA+p%7}, {srd(SW1)}, s{sB1} offen lds ;@w1"] for p in range(28)]
dma = dma[17:] + dma[:17]
def setup_dma(b):
    b(f"s_and_b32 s7, s{sCT}, 1\ns_lshl_b32 s8, s7, 5\ns_mul_i32 s7, s7, 192\ns_sub_u32 s7, 192, s7")
    b("v_and_b32 v64, 3, v1\nv_lshlrev_b32 v64, 4, v64\nv_add_u32 v65, s8, v64\nv_xor_b32 v66, 32, v64")
    b(f"v_add_u32 v66, s8, v66\nv_add_u32 v66, {3584-192}, v66")
    b("v_and_b32 v67, 16, v64\nv_add_u32 v67, s7, v67\nv_lshrrev_b32 v64, 5, v64\nv_mul_u32_u24 v64, 3584, v64")
    b(f"v_add_u32 v67, v67, v64\nv_subrev_u32 v67, {6*64}, v67\nv_lshrrev_b32 v64, 2, v1")
    for k in range(7):
        b(f"v_add_u32 v5, {16*k}, v64\nv_mul_u32_u24 v6, 9363, v5\nv_lshrrev_b32 v6, 16, v6\nv_mul_u32_u24 v62, 7, v6\nv_sub_u32 v5, v5, v62")
        b(f"@{{\nv_cmp_lt_u32 vcc, 2, v5\nv_mul_u32_u24 v6, 7168, v6\nv_lshl_add_u32 v6, v5, 6, v6\nv_cndmask_b32 v62, v65, v66, vcc\nv_cmp_eq_u32 vcc, 6, v5\ns_nop 1\nv_cndmask_b32 v62, v62, v67, vcc\n@}}")
        b(f"v_add_u32 v{vDMA+k}, v6, v62")
def setup(b):
    b(f"s_and_b32 s5, s{sW}, 1\ns_lshr_b32 s6, s{sW}, 1")
    b(f"v_bfe_u32 v{vCX}, v1, 2, 2\nv_lshlrev_b32 v{vCX}, 16, v{vCX}\nv_and_b32 v5, 3, v1\nv_lshl_add_u32 v{vCX}, v5, 6, v{vCX}\nv_lshl_add_u32 v{vCX}, v61, 4, v{vCX}")
    b(f"s_lshl_b32 s7, s{sW}, 18\ns_lshl_b32 s8, s{sCPI}, 8\ns_add_u32 s7, s7, s8\nv_add_u32 v{vCX}, s7, v{vCX}")
    b(f"v_lshlrev_b32 v{vCS}, 7, v60\nv_lshl_add_u32 v{vCS}, v61, 5, v{vCS}\ns_lshl_b32 s7, s{sW}, 11\nv_add_u32 v{vCS}, s7, v{vCS}")
    b(f"v_lshlrev_b32 v5, 5, v60\nv_lshl_add_u32 v{vUW}, v61, 3, v5\ns_lshl_b32 s7, s{sW}, 9\ns_add_u32 s7, s7, {LU+512}\nv_add_u32 v{vUW}, s7, v{vUW}")
    b(f"v_lshl_add_u32 v{vUR}, v61, 4, v5\ns_mul_i32 s7, s6, {US}\ns_lshl_b32 s8, s5, 8\ns_sub_u32 s7, s7, s8\ns_add_u32 s7, s7, {LU}\nv_add_u32 v{vUR}, s7, v{vUR}")
    b(f"v_lshlrev_b32 v5, 3, v61\nv_sub_u32 v5, v60, v5\nv_lshlrev_b32 v5, 2, v5\ns_mul_i32 s7, s6, {PKS}\ns_lshl_b32 s8, s5, 9\ns_add_u32 s7, s7, s8\ns_add_u32 s7, s7, {LPK+26*4}\nv_add_u32 v{vTB}, s7, v5")
    b(f"s_lshl_b32 s7, s{sW}, 10\ns_add_u32 s7, s7, {LEX}\nv_add_u32 v{vEW}, s7, v2\ns_lshl_b32 s7, s{sW}, 12\ns_add_u32 s7, s7, {LEX}\nv_add_u32 v{vER}, s7, v2")
    b(f"v_lshlrev_b32 v{vGX}, 9, v61\nv_lshl_add_u32 v{vGX}, v60, 3, v{vGX}\ns_lshl_b32 s7, s{sRT}, 16\ns_lshl_b32 s8, s5, 7\ns_add_u32 s7, s7, s8\ns_lshl_b32 s8, s6, 15\ns_add_u32 s7, s7, s8\nv_add_u32 v{vGX}, s7, v{vGX}")
    b(f"v_lshlrev_b32 v5, 2, v61\nv_bfe_u32 v6, v1, 2, 2\nv_add_u32 v5, v5, v6\nv_mul_u32_u24 v5, 224, v5\nv_and_b32 v6, 3, v1\nv_lshl_add_u32 v5, v6, 3, v5\ns_mul_i32 s7, s6, {256*224}\nv_add_u32 v{vWA}, s7, v5")
    b(f"s_mul_i32 s7, s{sW}, 7680\ns_add_u32 s7, s7, {LSCR}\nv_add_u32 v{vXW}, s7, v2\nv_lshlrev_b32 v5, 3, v1\nv_add_u32 v{vSW}, s7, v5")
    b(f"s_xor_b32 s7, s{sW}, 2\ns_mul_i32 s7, s7, 7680\ns_add_u32 s7, s7, {LSCR}\nv_add_u32 v{vXR}, s7, v2\nv_add_u32 v{vSR}, s7, v5")
    b(f"v_lshlrev_b32 v{vCSA}, 4, v61\nv_add_u32 v{vCSA}, {LCS}, v{vCSA}")
    b(f"s_lshl_b32 s7, s{sRT}, 1\ns_add_u32 s7, s7, s5\ns_mul_i32 s7, s7, {HT}\ns_mul_i32 s8, s{sCT}, 7168\ns_add_u32 s7, s7, s8\ns_lshl_b32 s8, s6, 8\ns_add_u32 s7, s7, s8")
    b(f"v_and_b32 v5, 1, v61\nv_lshrrev_b32 v6, 1, v61\nv_lshlrev_b32 v{vH2}, 9, v6\nv_lshl_add_u32 v{vH2}, v60, 4, v{vH2}\nv_add_u32 v{vH2}, s7, v{vH2}\nv_lshl_add_u32 v{vH4}, v5, 10, v{vH2}\nv_lshl_add_u32 v{vH2}, v5, 3, v{vH2}")
    b(f"s_and_b32 s7, s{sCT}, 1\ns_lshl_b32 s8, s7, 10\nv_add_u32 v{vH4}, s8, v{vH4}\ns_mul_i32 s8, s7, 6144\nv_subrev_u32 v{vH2}, s8, v{vH2}")
    b(f"v_and_b32 v204, {NSH-1}, v1\nv_lshlrev_b32 v204, 8, v204\ns_lshl_b32 s7, s3, 12\nv_add_u32 v204, s7, v204")
    b(f"v_lshlrev_b32 v205, 12, v1\ns_and_b32 s7, s{sCT}, {NSH-1}\ns_lshl_b32 s7, s7, 8\nv_add_u32 v205, s7, v205\nv_mov_b32 v{vONE}, 1")
    b(f"s_load_dword s{sNON}, s[38:39], 0")
    for k in range(9):
        b(f"v_lshlrev_b32 v5, 3, v0\nv_add_u32 v5, {k-1}, v5")
        if k == 0: b("v_max_i32 v5, 0, v5")
        b("v_cvt_f32_u32 v5, v5\nv_cvt_pk_bf16_f32 v5, 0, v5\nv_cvt_u32_f32 v6, v5")
        b("v_lshrrev_b32 v5, 23, v5\nv_subrev_u32 v5, 134, v5\nv_med3_i32 v5, v5, 0, 3")
        b("v_lshrrev_b32 v62, 7, v6\nv_and_b32 v63, 7, v6\nv_lshl_or_b32 v62, v62, 3, v63\nv_lshrrev_b32 v62, v5, v62\nv_lshl_add_u32 v62, v5, 3, v62")
        b(f"v_bfe_u32 v6, v6, 3, 4\nv_lshlrev_b32 v6, 2, v6\nv_lshl_add_u32 v6, v62, 6, v6\nv_add_u32 v{IDX+k}, {LGT}, v6")
def setup_g2(b):
    b("v_mbcnt_lo_u32_b32 v248, -1, 0\nv_mbcnt_hi_u32_b32 v248, -1, v248\nv_lshlrev_b32 v6, 4, v248")
    b(f"s_mul_i32 s7, s{sLT}, {HT}\ns_mul_i32 s8, s{sW}, 28672\ns_add_u32 s7, s7, s8\nv_add_u32 v{vHL}, s7, v6")
    b("v_and_b32 v249, 15, v248\nv_lshlrev_b32 v249, 1, v249\nv_bfe_u32 v5, v248, 4, 1\nv_add_u32 v249, v249, v5\nv_lshrrev_b32 v250, 5, v248")
    b(f"s_lshr_b32 s7, s{sLT}, 1\ns_lshl_b32 s7, s7, 16\ns_and_b32 s8, s{sLT}, 1\ns_lshl_b32 s8, s8, 7\ns_add_u32 s7, s7, s8\ns_lshl_b32 s8, s{sDT}, 13\ns_add_u32 s7, s7, s8\ns_lshl_b32 s8, s{sW}, 11\ns_add_u32 s7, s7, s8")
    b(f"v_lshlrev_b32 v{vX2}, 9, v250\nv_lshl_add_u32 v{vX2}, v249, 2, v{vX2}\nv_add_u32 v{vX2}, s7, v{vX2}\ns_and_b32 s8, s{sDT}, 4\nv_xor_b32 v{vRX}, s8, v{vX2}")
    for sg in range(1, 4):
        b(f"s_xor_b32 s7, s{sW}, {sg}\ns_mul_i32 s7, s7, 6144\ns_add_u32 s7, s7, {LSCR+(sg-1)*2048}\nv_add_u32 v{vE1+sg-1}, s7, v6")
    b(f"s_mul_i32 s7, s{sW}, 6144\ns_add_u32 s7, s7, {LSCR}\nv_add_u32 v{vE0}, s7, v6")
    b(f"v_lshlrev_b32 v{vSA}, 3, v249\nv_lshl_add_u32 v{vSA}, v250, 2, v{vSA}\ns_lshl_b32 s7, s{sLT}, 8\nv_add_u32 v{vSA}, s7, v{vSA}")
    b(f"v_lshlrev_b32 v{vOUT}, 10, v249\nv_lshl_add_u32 v{vOUT}, v250, 4, v{vOUT}\ns_lshl_b32 s7, s{sLT}, 15\ns_lshl_b32 s8, s{sDT}, 7\ns_add_u32 s7, s7, s8\ns_lshl_b32 s8, s{sW}, 5\ns_add_u32 s7, s7, s8\nv_add_u32 v{vOUT}, s7, v{vOUT}")
    b(f"s_lshl_b32 s5, s{sDT}, 2\ns_add_u32 s5, s5, s{sW}\ns_mul_i32 s5, s5, 57344\ns_add_u32 s{sW2B}, s5, {W2F}")
def setup_p0(b):
    b("v_lshrrev_b32 v254, 5, v1")
    b("s_and_b32 s5, s95, 3\nv_and_b32 v5, 1, v61\nv_xor_b32 v209, s5, v5\nv_xor_b32 v210, 2, v209")
    b("v_lshlrev_b32 v5, 3, v254\nv_bfe_u32 v6, v1, 2, 2\nv_add_u32 v5, v5, v6\nv_lshlrev_b32 v5, 7, v5\nv_and_b32 v62, 3, v1\nv_lshl_add_u32 v5, v62, 3, v5\nv_add_u32 v5, s9, v5")
    b("v_lshl_add_u32 v209, v209, 5, v5\nv_lshl_add_u32 v210, v210, 5, v5")
    b(f"s_lshl_b32 s99, s94, 11\ns_add_u32 s99, s99, {W2F}")
    b(f"s_lshl_b32 s11, s4, 16\ns_bfe_u32 s6, s2, 0x10002\ns_lshl_b32 s6, s6, 7\ns_add_u32 s11, s11, s6\ns_and_b32 s6, s2, 3\ns_lshl_b32 s6, s6, 14\ns_add_u32 s11, s11, s6\ns_lshl_b32 s6, s{sW}, 12\ns_add_u32 s11, s11, s6\ns_add_u32 s11, s11, {XP[0]}")
IDX = 100
wq = list(dma)
def take(n):
    r = wq[:n]; del wq[:n]; return r
setup_p0(M); setup_dma(M)
M.add(interleave(gen(setup), take(opt("e0", 0)), start=20))
stamp(M, "p0 setup")
M("@vm b1")
stamp(M, "p0 rows")
M("v_swap_b32 v217, v220\nv_swap_b32 v219, v222")
M(f"buffer_store_dwordx4 v[216:219], v207, {WS}, s11 offen sc1 ;@p0s\nbuffer_store_dwordx4 v[220:223], v207, {WS}, s11 offen offset:256 sc1 ;@p0s")
for i in range(4): M(f"v_mov_b32 v{52+i}, 0")
for q in range(4):
    M(f"v_dot2c_f32_bf16 v52, s{sONE}, v{32+q}\nv_dot2c_f32_bf16 v53, v{32+q}, v{32+q}")
    M(f"v_dot2c_f32_bf16 v54, s{sONE}, v{36+q}\nv_dot2c_f32_bf16 v55, v{36+q}, v{36+q}")
for m_ in ["quad_perm:[1,0,3,2]", "quad_perm:[2,3,0,1]", "row_half_mirror", "row_mirror"]:
    for i in range(4): M(f"v_add_f32_dpp v{52+i}, v{52+i}, v{52+i} {m_} row_mask:0xf bank_mask:0xf")
xsum(M, [52, 53, 54, 55], 56, [16, 32])
for r in (52, 54): M(f"v_pk_mul_f32 {v(r,2)}, {v(r,2)}, s[{sINV}:{sINV+1}]")
for r in (52, 54): M(f"v_fma_f32 v{r+1}, -v{r}, v{r}, v{r+1}")
for r in (52, 54): rnd(M, r+1, r+1)
for r in (52, 54): M(f"v_add_f32 v{r+1}, s{sEPS}, v{r+1}")
for r in (52, 54): rnd(M, r+1, r+1)
for r in (52, 54): M(f"v_sqrt_f32 v{r+1}, abs(v{r+1})")
for r in (52, 54): M(f"v_cvt_pk_bf16_f32 v{r}, v{r}, v{r+1}")
M(f"s_lshl_b32 s5, s2, 6\ns_lshl_b32 s6, s{sW}, 4\ns_add_u32 s5, s5, s6\ns_add_u32 s15, s5, {ST0}")
stamp(M, "p0 stats")
nn = lab("nn"); nl = lab("nl"); nb = lab("nb")
M("s_waitcnt lgkmcnt(0)")
M(f"s_cmp_eq_u32 s{sNON}, 0\ns_cbranch_scc1 {nn}")
M.label(nb)
tail.label(nn)
for k in range(1, 4):
    tail(f"s_load_dword s{sNON}, s[38:39], {64*k}\ns_waitcnt lgkmcnt(0)\ns_cmp_lg_u32 s{sNON}, 0\ns_cbranch_scc1 {nb}")
tail(f"s_mov_b32 s10, {SPIN}\nv_mov_b32 v5, 0")
tail.label(nl)
tail("global_load_dword v6, v5, s[38:39] sc1\ns_waitcnt vmcnt(0)")
tail(f"v_readfirstlane_b32 s{sNON}, v6\ns_cmp_lg_u32 s{sNON}, 0\ns_cbranch_scc1 {nb}")
tail(f"s_sub_u32 s10, s10, 1\ns_cmp_lg_u32 s10, 0\ns_cbranch_scc1 {nl}\ns_branch {nb}")
M(f"v_mov_b32 v212, v52\nv_mov_b32 v213, s{sNON}\nv_mov_b32 v214, v54\nv_mov_b32 v215, s{sNON}")
publish = gen(lambda b: (b(f"@vm p0s\n@{{\ns_barrier\ns_mov_b64 exec, 1\nbuffer_store_dwordx4 v[212:215], off, {WS}, s15 sc1\ns_mov_b64 exec, -1\n@}}"), stamp(b, "p0 published")))
def w2_relay(b):
    n3 = lab("n3")
    b("@vm b2")
    for mt in range(2):
        for hf in range(2): b(f"ds_read_b64_tr_b16 {v(224+4*mt+2*hf,2)}, v{209+mt} offset:{hf*512} ;@w2r")
    b(f"@lg w2r\n@{{\ns_cmp_ge_u32 s2, 224\ns_cbranch_scc1 {n3}")
    b(f"buffer_store_dwordx4 v[224:227], v2, {WS}, s99 offen sc1 ;@!\nbuffer_store_dwordx4 v[228:231], v2, {WS}, s99 offen offset:1024 sc1 ;@!")
    b.label(n3); b("@}")
def kgen(Kg):
    Kg(f"s_lshl_b32 s{sDK}, s13, 16\ns_and_b32 s{sDK+1}, s13, s{sMSK}")
    Kg(f"@{{\ns_lshl_b32 s5, s12, 16\ns_and_b32 s6, s12, s{sMSK}\ns_cmp_ge_u32 s{sW}, 2\ns_cselect_b32 s5, s6, s5\n@}}")
    L2E = f"{f2u(LOG2E):#x}"
    VAL = lambda row: 110 + 2*row if row < 45 else 62 + 2*(row - 45)
    Kg(f"v_mov_b32 v5, s5\nv_mul_f32 v5, {L2E}, v5\nv_exp_f32 v5, v5")
    for i in range(4): Kg(f"v_lshlrev_b32 v{48+i}, 16, v{48+i}")
    Kg(f"v_mul_f32 v48, {L2E}, v48\nv_exp_f32 v48, v48")
    Kg(f"s_mul_i32 s5, s{sW}, {ES}")
    Kg("v_lshlrev_b32 v98, 2, v1\nv_add_u32 v98, s5, v98")
    rnd(Kg, 5, 5); rnd(Kg, 48, 48)
    Kg(f"v_mul_f32 v49, v49, v5\nv_mul_f32 v48, v48, v5\nv_mul_f32 v49, 0.15915494, v49\nv_mul_f32 v48, s{sNL2E}, v48")
    Kg(f"v_add_f32 v5, v5, v5\nv_mul_f32 v{VAL(0)}, v50, v5\nv_mul_f32 v{VAL(0)+1}, v51, v5")
    E1, E8, E128, E1K = VAL(17), 34, VAL(24), VAL(48)
    PS = [(E1, 1.0), (E8, 8.0), (E128, 128.0), (E1K, 1024.0)]
    for k, (dst, p) in enumerate(PS): Kg(f"v_mul_f32 v{52+k}, {f2u(p):#x}, v48\nv_mul_f32 v{56+k}, {f2u(p):#x}, v49")
    for k, (dst, p) in enumerate(PS): Kg(f"v_exp_f32 v{52+k}, v{52+k}\nv_fract_f32 v{56+k}, v{56+k}")
    for k, (dst, p) in enumerate(PS): Kg(f"v_cos_f32 v{dst}, v{56+k}\nv_sin_f32 v{dst+1}, v{56+k}")
    Kg("v_mul_u32_u24 v99, 272, v60\nv_lshl_add_u32 v99, v61, 4, v99\nv_add_u32 v99, s5, v99")
    Kg(f"v_mov_b32 v{VAL(16)}, 1.0\nv_mov_b32 v{VAL(16)+1}, 0")
    for k, (dst, p) in enumerate(PS): Kg(f"v_mul_f32 v{dst}, v{dst}, v{52+k}\nv_mul_f32 v{dst+1}, v{dst+1}, v{52+k}")
    e16, e32, e64 = 36, 38, 32
    V = VAL
    levels = [
        [(V(1), V(0), E8), (V(18), E1, E1), (V(32), E128, E128), (e16, E8, E8), (V(56), E1K, E1K), (V(25), E1, E128), (V(49), E1K, E128)],
        [(e32, e16, e16), (V(20), V(18), V(18)), (V(40), V(32), V(32)), (V(2), V(0), e16), (V(3), V(1), e16), (V(19), V(18), E1), (V(36), V(32), E128),
         (V(26), V(18), E128), (V(50), E1K, V(32)), (V(33), V(32), V(18))],
        [(e64, e32, e32), (V(4), V(0), e32), (V(5), V(1), e32), (V(6), V(2), e32), (V(7), V(3), e32), (V(21), V(20), E1), (V(22), V(20), V(18)), (V(23), V(20), V(19)),
         (V(42), V(40), E128), (V(44), V(40), V(32)), (V(46), V(40), V(36)), (V(27), V(19), E128), (V(28), V(20), E128), (V(51), E1K, V(36)), (V(52), E1K, V(40)),
         (V(34), V(32), V(20)), (V(37), V(36), V(18)), (V(38), V(36), V(20)), (V(41), V(40), V(20))],
        [(V(8 + i), V(i), e64) for i in range(8)] +
        [(V(29), V(21), E128), (V(30), V(22), E128), (V(31), V(23), E128), (V(35), V(32), V(22)), (V(39), V(36), V(22)),
         (V(43), V(42), V(20)), (V(45), V(44), V(20)), (V(47), V(46), V(20)), (V(53), E1K, V(42)), (V(54), E1K, V(44)), (V(55), E1K, V(46))],
    ]
    row_of = {VAL(r): r for r in range(57)}
    pend = [0, 16, 17, 24, 48]; written = []
    rot = [0]
    def puts(rows):
        g = []
        for r in rows:
            t = 86 + rot[0] % 12; rot[0] += 1
            g.append((f"    v_cvt_pk_bf16_f32 v{t}, v{VAL(r)}, {'-' if r < 16 else ''}v{VAL(r)+1}", f"    ds_write_b32 v98, v{t} offset:{r*272}"))
            written.append(r)
        out = []
        for k in range(len(g) + 1):
            out.append(([g[k][0]] if k < len(g) else []) + ([g[k-1][1]] if k > 0 else []))
        return out
    for lv in levels:
        t = Buf()
        for d_, x_, y_ in lv: t(f"v_pk_mul_f32 {v(d_,2)}, {v(x_,2)}, {v(y_,2)} op_sel_hi:[1,0]")
        for d_, x_, y_ in lv: t(f"v_pk_fma_f32 {v(d_,2)}, {v(x_,2)}, {v(y_,2)}, {v(d_,2)} op_sel:[1,1,0] op_sel_hi:[0,1,1] neg_lo:[1,0,0]")
        Kg.add(interleave(t.l, puts(pend)))
        pend = [row_of[d_] for d_, _, _ in lv if d_ in row_of]
    Kg.add(flat(puts(pend)))
    assert sorted(written) == list(range(57))
    LOF, HF, GD = 110, 126, 62
    Kg("s_waitcnt lgkmcnt(0)")
    for s_ in range(4):
        Kg(f"ds_read_b128 {v(LOF+4*s_,4)}, v99 offset:{s_*64} ;@kf{s_}")
        for T in range(3): Kg(f"ds_read_b128 {v(HF+16*T+4*s_,4)}, v99 offset:{(16+16*T)*272+s_*64} ;@kf{s_}")
    Kg(f"s_mul_i32 s5, s{sW}, 3072\ns_add_u32 s5, s5, {LGT}")
    Kg("v_lshlrev_b32 v5, 2, v60\nv_lshl_add_u32 v5, v61, 8, v5\nv_add_u32 v5, s5, v5")
    for s_ in range(4):
        Kg(f"@lg kf{s_}")
        for T in range(3): Kg(f"v_mfma_f32_16x16x32_bf16 {v(GD+4*T,4)}, {v(HF+16*T+4*s_,4)}, {v(LOF+4*s_,4)}, {'0' if s_ == 0 else v(GD+4*T,4)}")
    for T in range(3):
        for r in range(0, 4, 2): Kg(f"ds_write2_b32 v5, v{GD+4*T+r}, v{GD+4*T+r+1} offset0:{r*16} offset1:{r*16+16}") if T == 0 else None
        if T:
            for r in range(4): Kg(f"ds_write_b32 v5, v{GD+4*T+r} offset:{(T*16+r)*64}")
M("@vm par")
kl = gen(kgen)
PUB = opt("pub", 110)
cpl = ["    v_add_u32 v200, s90, v2", "    global_load_dwordx4 v[200:203], v200, s[42:43]"] if opt("cp0", 0) == 1 else []
kl = interleave(kl, [publish + cpl + gen(w2_relay)], start=PUB, every=1)
M.add(interleave(kl, take(11 - opt("e0", 0)), start=opt("e1", 4)))
stamp(M, "kgen core")
M(f"s_mov_b32 s{sO}, {ST0}\nbuffer_load_dwordx4 v[232:235], v{vCS}, {WS}, s{sO} offen sc1 ;@cin\nbuffer_load_dwordx4 v[236:239], v{vCS}, {WS}, s{sO} offen offset:16 sc1 ;@cin")
M(f"s_mov_b32 s{sO}, {ST0+8192}\nbuffer_load_dwordx4 v[240:243], v{vCS}, {WS}, s{sO} offen sc1 ;@cin\nbuffer_load_dwordx4 v[244:247], v{vCS}, {WS}, s{sO} offen offset:16 sc1 ;@cin")
M("s_waitcnt lgkmcnt(0)\ns_barrier")
for c in range(2):
    for k in range(9): M(f"ds_read2st64_b32 {v(110+c*18+2*k,2)}, v{IDX+k} offset0:{24*c} offset1:{24*c+12} ;@g{c}")
M(f"v_bfe_u32 v5, v0, 4, 1\nv_mul_u32_u24 v5, {PKS}, v5\nv_lshl_add_u32 v5, v60, 2, v5\nv_add_u32 v5, {LPK}, v5\nv_mov_b32 v6, 0")
M("ds_write_b32 v5, v6")
M(f"v_lshlrev_b32 v5, 5, v0\nv_add_u32 v5, {LPK+64}, v5")
M("v_cmp_eq_u32 vcc, 0, v0")
for c in range(2):
    M(f"@lg g{c}")
    for k in range(9):
        r = 110 + c*18 + 2*k
        M(f"v_add_f32 v{r}, v{r}, v{r+1}")
    M(f"v_cndmask_b32 v{110+c*18}, v{110+c*18}, v6, vcc")
    for k in range(8): M(f"v_cvt_pk_bf16_f32 v{72+c*8+k}, v{110+c*18+2*(k+1)}, v{110+c*18+2*k}")
    M(f"ds_write_b128 v5, {v(72+c*8,4)} offset:{c*PKS}\nds_write_b128 v5, {v(76+c*8,4)} offset:{c*PKS+16}")
T0, U0, ACC = 32, 160, 224
BASE, RV, CST, UPK = 224, 232, 232, 240
def conv_stats(b, layer, half):
    b(f"s_mov_b32 s{sO}, {(ST2 if layer else ST0) + half*8192}")
    b(f"buffer_load_dwordx4 {v(CST,4)}, v{vCS}, {WS}, s{sO} offen sc1 ;@cin\nbuffer_load_dwordx4 {v(CST+4,4)}, v{vCS}, {WS}, s{sO} offen offset:16 sc1 ;@cin")
def conv_x(b, layer, half):
    b(f"s_mov_b32 s{sO}, {XP[2*layer] + half*0x100000}\nbuffer_load_dwordx4 v[248:251], v{vCX}, {WS}, s{sO} offen sc1 ;@cin")
def conv_inputs(b, layer, half):
    conv_x(b, layer, half); conv_stats(b, layer, half)
def gcheck(b):
    slow = lab("gs"); back = lab("gb"); lp = lab("gl")
    def chk(o):
        for k in range(8): o(f"v_xor_b32 v{160+k}, s{sNON}, v{CST+2*k+1}")
        o("v_or3_b32 v160, v160, v161, v162\nv_or3_b32 v163, v163, v164, v165\nv_or3_b32 v160, v160, v166, v167\nv_or_b32 v160, v160, v163\nv_cmp_ne_u32 vcc, 0, v160")
    b("@vm cin\n@{")
    chk(b); b(f"s_cbranch_vccnz {slow}"); b.label(back); b("@}")
    for k in range(4): b(f"v_mov_b32 v{252+k}, v{CST+8+2*k}")
    tail.label(slow); tail(f"s_mov_b32 s10, {SPIN}\ns_mov_b32 s11, {ST0}\ns_mov_b32 s5, {ST0+8192}")
    tail.label(lp)
    for k in range(4): tail(f"buffer_load_dwordx4 {v(CST+4*k,4)}, v{vCS}, {WS}, s{5 if k >= 2 else 11} offen offset:{16*(k&1)} sc1")
    tail("s_waitcnt vmcnt(0)")
    chk(tail); tail(f"s_cbranch_vccz {back}")
    tail(f"s_sub_u32 s10, s10, 1\ns_cmp_lg_u32 s10, 0\ns_cbranch_scc1 {lp}\ns_branch {back}")
def t_loads(b, js):
    for j in js:
        if j: b(f"v_add_u32 v5, {1024*j}, v{vTB}")
        ad = 5 if j else vTB
        for t in range(4):
            r = T0 + (j*4 + t)*4
            b(f"ds_read2_b32 {v(r,2)}, v{ad} offset0:{32*t+6} offset1:{32*t+4} ;@T\nds_read2_b32 {v(r+2,2)}, v{ad} offset0:{32*t+2} offset1:{32*t} ;@T")
def t_groups(ta=188):
    g = []
    for k in range(32):
        j, t = k >> 2, k & 3
        r = T0 + 4*k
        grp = [f"    v_add_u32 v{ta}, {1024*j}, v{vTB}"] if t == 0 else []
        grp += [f"    ds_read2_b32 {v(r,2)}, v{ta} offset0:{32*t+6} offset1:{32*t+4} ;@T", f"    ds_read2_b32 {v(r+2,2)}, v{ta} offset0:{32*t+2} offset1:{32*t} ;@T"]
        g.append(grp)
    return g
def u_pad(b):
    b(f"v_subrev_u32 v5, {LEX}, v{vEW}\nv_and_b32 v5, 0x3f0, v5\nv_lshrrev_b32 v5, 1, v5\nv_add_u32 v5, {LU}, v5\nv_mov_b32 v{UPK}, 0\nv_mov_b32 v{UPK+1}, 0")
    b(f"ds_write_b64 v5, {v(UPK,2)}\nds_write_b64 v5, {v(UPK,2)} offset:{US}")
def conv_half(b, layer, half, bg=[], pre_barrier=None, after_ln=None, after_mfma=None, tailbg=[], pre_barrier2=None):
    X = 248
    MN, RI, DD = 192, 196, 176
    b("@vm cin")
    stamp(b, f"L{layer} conv{half} loaded")
    if layer == 0:
        G = (lambda i: 252 + i) if half else (lambda i: CST + 2*i)
        for i in range(4): b(f"v_and_b32 v{RI+i}, s{sMSK}, v{G(i)}")
        for i in range(4): b(f"v_rcp_f32 v{RI+i}, v{RI+i}")
        for i in range(4): b(f"v_lshlrev_b32 v{MN+i}, 16, v{G(i)}")
    else:
        for i in range(4): b(f"v_pk_mul_f32 {v(CST+2*i,2)}, {v(CST+2*i,2)}, s[{sINV}:{sINV+1}]")
        for i in range(4): b(f"v_fma_f32 v{RI+i}, -v{CST+2*i}, v{CST+2*i}, v{CST+2*i+1}")
        for i in range(4): rnd(b, RI+i, RI+i)
        for i in range(4): b(f"v_add_f32 v{RI+i}, s{sEPS}, v{RI+i}")
        for i in range(4): rnd(b, RI+i, RI+i)
        for i in range(4): b(f"v_sqrt_f32 v{RI+i}, abs(v{RI+i})")
        for i in range(4): rnd(b, MN+i, CST+2*i)
        for i in range(4): rnd(b, RI+i, RI+i)
        for i in range(4): b(f"v_rcp_f32 v{RI+i}, v{RI+i}")
    for i in range(4): b(f"v_lshlrev_b32 v{BASE+i}, 16, v{X+i}\nv_and_b32 v{BASE+4+i}, s{sMSK}, v{X+i}")
    for k in range(4): b(f"v_pk_add_f32 {v(DD+2*k,2)}, {v(BASE+2*k,2)}, {v(MN+2*(k&1),2)} neg_lo:[0,1] neg_hi:[0,1]")
    for k in range(8): rnd(b, DD+k, DD+k)
    for k in range(4): b(f"v_pk_mul_f32 {v(DD+2*k,2)}, {v(DD+2*k,2)}, {v(RI+2*(k&1),2)}")
    for k in range(4): b(f"v_cvt_pk_bf16_f32 v{UPK+k}, v{DD+2*k}, v{DD+2*k+1}")
    b(f"ds_write_b64 v{vUW}, {v(UPK,2)} offset:{half*2048}\nds_write_b64 v{vUW}, {v(UPK+2,2)} offset:{US+half*2048}")
    if pre_barrier: b(pre_barrier)
    b("s_waitcnt lgkmcnt(0)\ns_barrier")
    if after_ln: after_ln(b)
    for tp in range(4):
        for t in range(4):
            b(f"ds_read_b128 {v(U0+(tp*4+t)*4,4)}, v{vUR} offset:{512 + 512*(tp+4*half) - 64*t - 32} ;@U{tp}")
    for k in range(4):
        b(f"v_lshlrev_b32 v{RV+2*k}, 16, v{UPK+k}\nv_and_b32 v{RV+2*k+1}, s{sMSK}, v{UPK+k}")
    for k in range(4):
        c = k >> 1
        b(f"v_pk_fma_f32 {v(BASE+2*k,2)}, {v(RV+2*k,2)}, s[{sDK}:{sDK+1}], {v(BASE+2*k,2)} op_sel:[0,{c},0] op_sel_hi:[1,{c},1]")
    mm = Buf()
    for tp in range(4):
        mm(f"@lg U{tp}")
        n_ = 0
        for r in range(tp, 4):
            for t in range(4):
                acc = ACC + (4*half + r)*4
                cin = "0" if (half == 0 and t == 0 and tp == 0) else ac(acc, 4)
                mm(f"v_mfma_f32_16x16x32_bf16 {ac(acc,4)}, {v(T0+((r-tp)*4+t)*4,4)}, {v(U0+(tp*4+t)*4,4)}, {cin}")
            if r == tp + 1 or (r == tp == 3): pass
        if tp < 3 or True:
            pass
    ml = []; cnt = 0; due = {}
    lastidx = {0: 3, 1: 19, 2: 31, 3: 39}
    for ln in mm.l:
        ml.append(ln)
        if "v_mfma" in ln:
            for r in range(3):
                if cnt == lastidx[r] + 8: ml.append(f"    ds_write_b128 v{vEW}, {ac(ACC+(4*half+r)*4,4)} offset:{r*4096}")
            cnt += 1
    ml = interleave(ml, bg, start=2)
    b.add(ml)
    tailbg = list(tailbg)
    if after_mfma: after_mfma(b)
    b(f"ds_write_b128 v{vEW}, {ac(ACC+(4*half+3)*4,4)} offset:{3*4096}")
    b.add(flat(tailbg[:2]))
    if pre_barrier2: b(pre_barrier2)
    b("s_waitcnt lgkmcnt(0)\ns_barrier")
    for src in range(4): b(f"ds_read_b128 {v(RV+4*src,4)}, v{vER} offset:{src*1024} ;@E{src>>1}")
    b.add(flat(tailbg[2:]))
    b(f"s_mov_b32 s{sO}, {XP[1+2*layer] + half*0x100000}")
    for c in range(2):
        b(f"@lg E{c}")
        for k in range(2): b(f"v_pk_add_f32 {v(RV+8*c+2*k,2)}, {v(RV+8*c+2*k,2)}, {v(RV+8*c+4+2*k,2)}")
        for k in range(2): b(f"v_pk_add_f32 {v(BASE+4*c+2*k,2)}, {v(BASE+4*c+2*k,2)}, {v(RV+8*c+2*k,2)}")
    sw = lab("sw"); sj = lab("sj")
    b(f"s_cmp_ge_u32 s{sCPI}, 128\ns_cbranch_scc1 {sw}")
    for i in range(4): b(f"v_cvt_pk_bf16_f32 v{244+i}, v{BASE+i}, v{BASE+4+i}")
    b.label(sj)
    tail.label(sw)
    for i in range(4): tail(f"v_cvt_pk_bf16_f32 v{244+(i^1)}, v{BASE+i}, v{BASE+4+i}")
    tail(f"s_branch {sj}")
    b(f"buffer_store_dwordx4 v[244:247], v{vCX}, {WS}, s{sO} offen sc1 ;@cst")
    stamp(b, f"L{layer} conv{half} stored")
def conv_ab(b):
    b("@lg T")
    for t in range(4):
        for tp in range(4):
            for r in range(4, 8):
                acc = ACC + r*4
                cin = "0" if (t == 0 and tp == 0) else ac(acc, 4)
                b(f"v_mfma_f32_16x16x32_bf16 {ac(acc,4)}, {v(T0+((r-tp)*4+t)*4,4)}, {v(U0+(tp*4+t)*4,4)}, {cin}")
def colsum(b):
    wa_regs(b)
    b(f"@{{\ns_lshr_b32 s6, s{sW}, 1\ns_mul_i32 s6, s6, {256*224}\ns_lshl_b32 s5, s{sW}, 6\ns_cmp_eq_u32 s{sW}, 3\ns_cselect_b32 s5, 0, s5\ns_cselect_b64 vcc, -1, 0\ns_sub_u32 s5, s5, s6\n@}}")
    b(f"v_cndmask_b32 v248, v{vWA}, v253, vcc\nv_cndmask_b32 v249, v252, v253, vcc\nv_add_u32 v248, s5, v248\nv_add_u32 v249, s5, v249\nv_add_u32 v250, {256*224}, v248\nv_add_u32 v251, {256*224}, v249")
    for i in range(4): b(f"v_mov_b32 v{240+i}, s{sONE}")
    def rd(ks):
        for f2 in range(2):
            for hf in range(2):
                b(f"ds_read_b64_tr_b16 {v(96+(f2*8+ks%8)*4+2*hf,2)}, v{248 + f2 + 2*(ks//8)} offset:{(32*(ks%8)+16*hf)*224} ;@c{ks}")
    for ks in range(3): rd(ks)
    for ks in range(16):
        if ks + 3 < 16: rd(ks + 3)
        b(f"@lg c{ks}")
        for f2 in range(2):
            b(f"v_mfma_f32_16x16x32_bf16 {v(232+4*f2,4)}, {v(96+(f2*8+ks%8)*4,4)}, v[240:243], {'0' if ks == 0 else v(232+4*f2,4)}")
    b(f"s_lshl_b32 s5, s{sW}, 7\nv_add_u32 v5, s5, v{vCSA}")
    b("ds_write_b128 v5, v[232:235] ;@cs\nds_write_b128 v5, v[236:239] offset:64 ;@cs")

WB, SS, KA, SA = 160, 216, 224, 224
def g1_loads(layer, half):
    g = []
    X0 = 32 + 64 * half
    for ks in range(8):
        for n_, (dst, off) in enumerate([(0, 0), (4, 256), (2, 2048), (6, 2304)]):
            grp = []
            if n_ == 0: grp.append(f"    s_mov_b32 s{sB0}, {XP[1+2*layer] + half*0x100000 + ks*4096}")
            grp.append(f"    buffer_load_dwordx2 {v(X0+8*ks+dst,2)}, v{vGX}, {WS}, s{sB0} offen offset:{off} sc1 ;@x{ks}")
            g.append(grp)
    return g
def wread(b, ks, ft, hfs=(0, 1)):
    r = WB + (ks & 1) * 28 + ft * 4
    for hf in hfs:
        ad, off = (253, 0) if ft == 6 else ((252 if ft & 1 else vWA), (ft >> 1) * 64)
        b(f"ds_read_b64_tr_b16 {v(r+2*hf,2)}, v{ad} offset:{(32*ks+16*hf)*224 + off} ;@w{ks}_{ft}")
def wa_regs(b):
    b(f"v_xor_b32 v252, 32, v{vWA}\nv_and_b32 v253, 32, v{vWA}\nv_mul_u32_u24 v253, 6, v253\nv_sub_u32 v253, v{vWA}, v253\nv_add_u32 v253, 384, v253")
def g1_pre(b):
    wa_regs(b)
    for ft in range(7): wread(b, 0, ft)
def g1_loop(b, half, bg, hooks={}, slots=None):
    X0 = 32 + 64 * half
    bg = list(bg)
    if slots is None: slots = (0, 2, 4, 6) if len(bg) <= 32 else (0, 1, 3, 4, 6)
    def swaps(ks):
        x = X0 + 8 * ks
        b(f"@vm x{ks}\nv_swap_b32 v{x+1}, v{x+4}\nv_swap_b32 v{x+3}, v{x+6}")
    swaps(0)
    for ks in range(8):
        x = X0 + 8 * ks
        if ks in hooks: hooks[ks](b)
        for ft in range(7):
            r = WB + (ks & 1) * 28 + ft * 4
            if ft in (0, 4): b(f"@lg w{ks}_{3 if ft == 0 else 6}")
            b(f"v_mfma_f32_16x16x32_bf16 {ac(SA+4*ft,4)}, {v(r,4)}, {v(x+4,4)}, {'0' if ks == 0 else ac(SA+4*ft,4)}")
            if ks < 7: wread(b, ks + 1, ft, (0,))
            if ft in slots and bg: b.add(bg.pop(0))
            b(f"v_mfma_f32_16x16x32_bf16 {v(KA+4*ft,4)}, {v(r,4)}, {v(x,4)}, {'0' if ks == 0 else v(KA+4*ft,4)}")
            if ks < 7: wread(b, ks + 1, ft, (1,))
            if ft == 5 and ks < 7: swaps(ks + 1)
    assert not bg
RC, CSR = 160, 188
def g1_post1(b, half, bg=[], chk=None, bg2=[]):
    X0 = 32 + 64 * half
    d = Buf()
    for ks in range(8):
        x = X0 + 8 * ks
        for q in range(4):
            o = 4 * (q & 1)
            if ks == 0 and q < 2:
                d(f"v_dot2_f32_bf16 v{SS+o}, s{sONE}, v{x+q}, 0\nv_dot2_f32_bf16 v{SS+o+1}, v{x+q}, v{x+q}, 0")
                d(f"v_dot2_f32_bf16 v{SS+o+2}, s{sONE}, v{x+4+q}, 0\nv_dot2_f32_bf16 v{SS+o+3}, v{x+4+q}, v{x+4+q}, 0")
                continue
            d(f"v_dot2c_f32_bf16 v{SS+o}, s{sONE}, v{x+q}\nv_dot2c_f32_bf16 v{SS+o+1}, v{x+q}, v{x+q}")
            d(f"v_dot2c_f32_bf16 v{SS+o+2}, s{sONE}, v{x+4+q}\nv_dot2c_f32_bf16 v{SS+o+3}, v{x+4+q}, v{x+4+q}")
    wr = [[f"    ds_write_b128 v{vXW}, {ac(SA+4*ft,4)} offset:{ft*1024}"] for ft in range(7)]
    wr += [[f"    ds_read_b128 {v(CSR+4*ft,4)}, v{vCSA} offset:{ft*64}"] for ft in range(7)]
    dl = interleave(d.l, wr, start=8, every=9)
    cut = opt("cut", 140)
    b.add(interleave(dl[:cut], bg, start=4))
    chk(b)
    b.add(interleave(dl[cut:], bg2))
    b(f"v_pk_add_f32 {v(SS+2,2)}, {v(SS+2,2)}, {v(SS+6,2)}\nv_pk_add_f32 {v(SS,2)}, {v(SS,2)}, {v(SS+4,2)}")
    b(f"ds_write_b64 v{vSW}, {v(SS+2,2)} offset:7168")
    b("s_waitcnt lgkmcnt(0)\ns_barrier")
    b(f"ds_read_b64 {v(SS+2,2)}, v{vSR} offset:7168 ;@s")
    for ft in range(7): b(f"ds_read_b128 {v(RC+4*ft,4)}, v{vXR} offset:{ft*1024} ;@r{ft}")
def g1_post2(b, layer, half):
    b("@lg s")
    b(f"v_pk_add_f32 {v(SS,2)}, {v(SS,2)}, {v(SS+2,2)}")
    xsum(b, [SS, SS+1], SS+2, [16, 32])
    mn, sd, c2 = SS, SS+1, SS+2
    st = Buf()
    st(f"v_pk_mul_f32 {v(SS,2)}, {v(SS,2)}, s[{sINV}:{sINV+1}]\nv_fma_f32 v{sd}, -v{mn}, v{mn}, v{sd}")
    rnd(st, sd, sd); rnd(st, mn, mn)
    st(f"v_add_f32 v{sd}, s{sEPS}, v{sd}"); rnd(st, sd, sd)
    st(f"v_sqrt_f32 v{sd}, abs(v{sd})"); rnd(st, sd, sd)
    st(f"v_rcp_f32 v{c2}, v{sd}\nv_mul_f32 v{c2}, s{sNL2E}, v{c2}")
    adds = []
    for ft in range(7):
        t = RC + 4*ft
        adds.append([f"    @lg r{ft}"] + [f"    v_pk_add_f32 {v(t+2*k,2)}, {v(t+2*k,2)}, {v(KA+4*ft+2*k,2)}" for k in range(2)])
    b.add(interleave(st.l, adds, start=1, every=1))
    for k in range(14): b(f"v_pk_fma_f32 {v(RC+2*k,2)}, {v(CSR+2*k,2)}, {v(mn,2)}, {v(RC+2*k,2)} op_sel_hi:[1,0,1] neg_lo:[0,1,0] neg_hi:[0,1,0]")
    for k in range(14): b(f"v_pk_mul_f32 {v(CSR+2*k,2)}, {v(RC+2*k,2)}, {v(c2,2)} op_sel_hi:[1,0]")
    for r in range(28): b(f"v_exp_f32 v{CSR+r}, v{CSR+r}")
    for k in range(14): b(f"v_pk_fma_f32 {v(CSR+2*k,2)}, {v(CSR+2*k,2)}, {v(mn,2)}, {v(mn,2)} op_sel:[0,1,1] op_sel_hi:[1,1,1]")
    for r in range(28): b(f"v_rcp_f32 v{CSR+r}, v{CSR+r}")
    for k in range(14): b(f"v_pk_mul_f32 {v(CSR+2*k,2)}, {v(CSR+2*k,2)}, {v(RC+2*k,2)}")
    for k in range(14):
        ft = k >> 1
        b(f"v_cvt_pk_bf16_f32 v{KA + 8*(ft >> 1) + 2*(ft & 1) + (k & 1)}, v{CSR+2*k}, v{CSR+2*k+1}")
    for pr in range(3):
        p = KA + 8*pr
        b(f"v_permlane16_swap_b32 v{p}, v{p+2}\nv_permlane16_swap_b32 v{p+1}, v{p+3}")
def g1_store(b, layer, half):
    hb = HB[layer] + half * 32 * HT
    b(f"s_mov_b32 s{sO}, {hb}\ns_mov_b32 s5, {hb + 4096}")
    for pr in range(3):
        b(f"buffer_store_dwordx4 {v(KA+8*pr,4)}, v{vH4}, {WS}, s{sO if pr < 2 else 5} offen offset:{(pr&1)*2048} {HSC} ;@hst")
    b(f"buffer_store_dwordx2 {v(KA+24,2)}, v{vH2}, {WS}, s5 offen offset:2048 {HSC} ;@hst")

H0, C2, RS = 32, 192, 184
def g2_loads(layer, half):
    g = []
    for ks in range(28):
        grp = []
        if ks % 4 == 0: grp.append(f"    s_mov_b32 s{sB0}, {HB[layer] + half*32*HT + ks*1024}")
        grp.append(f"    buffer_load_dwordx4 {v(H0+4*ks,4)}, v{vHL}, {WS}, s{sB0} offen offset:{(ks%4)*1024} sc1 ;@h{half}_{ks}")
        g.append(grp)
    return g
def w2_loads():
    g = []
    for i in range(56):
        grp = []
        if i % 4 == 0: grp.append(f"    s_add_u32 s{sB1}, s{sW2B}, {(i//4)*4096}")
        grp.append(f"    buffer_load_dwordx4 {ac(4*i,4)}, v6, {WS}, s{sB1} offen offset:{(i%4)*1024} sc1 ;@a{i//2}")
        g.append(grp)
    return g
def g2_res(layer, half):
    RS = 144 if half == 0 else 184
    g = [[f"    s_mov_b32 s{sO}, {XP[1+2*layer] + half*0x100000}"] +
         [f"    buffer_load_dword v{RS+k}, v{vRX}, {WS}, s{sO} offen offset:{(k>>1)*1024 + (k&1)*256} sc1 ;@res" for k in range(4)]]
    return g
def g2_loop(b, half, bg, hooks={}, tg=None, nm=None, late=[]):
    bg = list(bg); late = list(late)
    if tg: b.add(flat(tg[28:]))
    LAG = opt("lag", 8)
    def mf(ks, mt):
        b(f"v_mfma_f32_32x32x16_bf16 {v(C2+16*mt,16)}, {ac((ks*2+mt)*4,4)}, {v(H0+4*ks,4)}, {'0' if ks == 0 else v(C2+16*mt,16)}")
    for ks in range(28):
        if ks in hooks: hooks[ks](b)
        b(f"@vm h{half}_{ks},a{ks}")
        if nm and ks in (0, 4, 8, 12, 16, 20, 24): stamp(b, f"{nm} k{ks}")
        mf(ks, 1)
        if bg: b.add(bg.pop(0))
        if ks < 28 - LAG:
            mf(ks, 0)
            if tg and ks >= 1: b.add(tg[ks-1])
    if "end" in hooks: hooks["end"](b)
    wr = [f"ds_write_b128 v{vE1+sg-1}, {v(C2+8*sg+4*q,4)} offset:{q*1024}" for sg in (2, 3) for q in range(2)]
    for n_, ks in enumerate(range(28 - LAG, 28)):
        mf(ks, 0)
        if tg: b.add(tg[ks-1])
        if n_ >= 2 and n_ % 2 == 0 or n_ == LAG - 1:
            if wr: b(wr.pop(0))
        if late: b.add(late.pop(0))
    for w_ in wr: b(w_)
    if tg: b.add(["    s_nop 7"] + tg[27])
    assert not bg and not late
def g2_post1(b, half):
    RS = 144 if half == 0 else 184
    b("@vm res")
    for k in range(4): b(f"v_lshlrev_b32 v{224+2*k}, 16, v{RS+k}\nv_and_b32 v{225+2*k}, s{sMSK}, v{RS+k}")
    b(f"ds_write_b128 v{vE1}, {v(C2+8,4)}\nds_write_b128 v{vE1}, {v(C2+12,4)} offset:1024")
    b("s_waitcnt lgkmcnt(0)\ns_barrier")
    for k in range(6): b(f"ds_read_b128 {v(160+4*k,4)}, v{vE0} offset:{k*1024} ;@q{k>>1}")
def g2_post2(b, layer, half):
    for s_ in range(3):
        b(f"@lg q{s_}")
        for k in range(4): b(f"v_pk_add_f32 {v(C2+2*k,2)}, {v(C2+2*k,2)}, {v(160+8*s_+2*k,2)}")
    for r in range(8): rnd(b, C2+r, C2+r)
    for k in range(4): b(f"v_pk_add_f32 {v(C2+2*k,2)}, {v(C2+2*k,2)}, {v(224+2*k,2)}")
    for k in range(4): b(f"v_cvt_pk_bf16_f32 v{240+k}, v{C2+2*k}, v{C2+2*k+1}")
    if layer == 0:
        b(f"@{{\ns_mov_b32 s{sO}, {XP[2] + half*0x100000}")
        for k in range(4):
            b(f"buffer_store_dword v{240+k}, v{vX2}, {WS}, s{sO} offen offset:{(k>>1)*1024 + (k&1)*256} sc1 ;@xst")
        b("@}\nv_mov_b32 v244, 0\nv_mov_b32 v245, 0")
        for k in range(4): b(f"v_dot2c_f32_bf16 v244, s{sONE}, v{240+k}\nv_dot2c_f32_bf16 v245, v{240+k}, v{240+k}")
        b("v_permlane32_swap_b32 v244, v245\nv_add_f32 v244, v244, v245")
        LST = LSCR + 24576
        b(f"v_lshrrev_b32 v246, 2, v6\nv_add_u32 v246, {LST}, v246\ns_lshl_b32 s5, s{sW}, 8\nv_add_u32 v247, s5, v246")
        b("ds_write_b32 v247, v244\ns_waitcnt lgkmcnt(0)\ns_barrier")
        b("ds_read2st64_b32 v[244:245], v246 offset0:0 offset1:1\nds_read2st64_b32 v[246:247], v246 offset0:2 offset1:3")
        b(f"s_mov_b32 s{sO}, {ST2 + half*8192}\ns_waitcnt lgkmcnt(0)\nv_pk_add_f32 v[244:245], v[244:245], v[246:247]\nv_add_f32 v244, v244, v245")
        b(f"@{{\ns_mov_b64 exec, s[{sEXQ}:{sEXQ+1}]\nbuffer_atomic_add_f32 v244, v{vSA}, {WS}, s{sO} offen sc1 ;@xst\ns_mov_b64 exec, -1\n@}}")
    else:
        b("v_permlane32_swap_b32 v240, v242\nv_permlane32_swap_b32 v241, v243")
        b(f"s_mov_b32 s{sO}, {half*0x100000}\nbuffer_store_dwordx4 v[240:243], v{vOUT}, {srd(SOUT)}, s{sO} offen {opt('ofl', 'x').replace('x', '').replace('_', ' ')}")

gcheck(M); conv_x(M, 0, 0)
M(f"v_mov_b32 v{vPL}, v204\nv_mov_b32 v{vSG}, v205")
M("s_waitcnt lgkmcnt(0)\ns_barrier")
stamp(M, "kgen done")
XT, XUP, XPF, HPF, HP2, HUP = opt("xt", 6), opt("xup", 12), opt("xpf", 16), opt("hpf", 18), opt("hp2", 6), opt("hup", 16)
D1, D2, D3, D4, D5 = opt("d1", 4), opt("d2", 5), opt("d3", 8), opt("d4", 0), opt("d5", 0)
M.add(interleave(gen(t_loads, range(4)), take(D1))); u_pad(M)
for layer in range(2):
    L0 = layer == 0
    cA, cB = 4*layer, 4*layer + 1
    xa, xb, ha, hb_ = g1_loads(layer, 0), g1_loads(layer, 1), g2_loads(layer, 0), g2_loads(layer, 1)
    if L0:
        vm_ = take(D2); tg_ = t_groups(5)[16:]
        conv_half(M, layer, 0, bg=[tg_[k] + (vm_[k//2] if (k % 2 == 0 and k//2 < len(vm_)) else []) for k in range(16)])
        conv_x(M, 0, 1)
        M.add(interleave(gen(conv_ab), take(D3), start=1))
    else:
        conv_half(M, layer, 0, pre_barrier="@vm xst", after_ln=lambda b: sig_all(b, 3, "xst", barrier=False))
        ab = interleave(gen(conv_ab), [gen(check, "all", 3) + gen(conv_inputs, 1, 1)], start=opt("abc", 65), every=1)
        M.add(interleave(ab, [gen(poll_all, 3)], start=opt("abp", 24), every=1))
    sig_all(M, cA, "cst")
    stamp(M, f"L{layer} conv0 signalled")
    if not L0:
        if opt("lateC", 0):
            conv_half(M, layer, 1, after_mfma=lambda b: poll_all(b, cA))
            g1_pre(M); check(M, "all", cA)
            M.add(flat(xa[:XUP]))
        else:
            conv_half(M, layer, 1, after_ln=lambda b: poll_all(b, cA), after_mfma=lambda b: check(b, "all", cA), tailbg=xa[:XT])
            g1_pre(M)
            M.add(flat(xa[XT:XUP]))
    else:
        assert not wq
        wq += w2_loads()
        sg_ = gen(setup_g2)
        conv_half(M, layer, 1, pre_barrier2="@vm w1", bg=[sg_[k:k+2] for k in range(0, len(sg_), 2)])
        poll_all(M, cA)
        cs_ = gen(colsum); cc = opt("cc", 60)
        M.add(interleave(cs_[:cc], take(D5), start=20))
        check(M, "all", cA)
        M.add(interleave(cs_[cc:], xa[:XUP]))
        g1_pre(M)
        M("@lg cs")
    stamp(M, f"L{layer} g1A ready")
    w2 = wq
    def mixw(x_, w_):
        if len(x_) + len(w_) <= 32: return x_ + w_
        x_ = list(x_); w_ = list(w_); o = []
        while x_ or w_:
            for q in range(5):
                src = x_ if (x_ and q < 4) else w_
                if src: o.append(src.pop(0))
                elif x_: o.append(x_.pop(0))
        return o + [[]] * (40 - len(o))
    XP1, HP1 = opt("xp1", 0), opt("hp1", 0)
    g1_loop(M, 0, mixw(xa[XUP:], take(opt("wa", 12))), {(opt("sg00", 0) if L0 else opt("sg0", 1)): lambda b: sig_all(b, cB, "cst")},
            slots=(None if L0 else [(0, 2, 4, 6), (0, 1, 3, 4, 6), (0, 1, 2, 3, 4, 5, 6)][opt("xs", 0)]))
    stamp(M, f"L{layer} g1A loop")
    poll_all(M, cB)
    g1_post1(M, 0, take(opt("wp", 14)), lambda b: check(b, "all", cB), xb[:XP1])
    stamp(M, f"L{layer} g1A post1")
    M.add(interleave(gen(g1_post2, layer, 0), xb[XP1:XPF]))
    g1_pre(M)
    g1_store(M, layer, 0)
    stamp(M, f"L{layer} g1A stored")
    if opt("fast", 0) and not L0:
        c1_, c2_ = opt("fc1", 5), opt("fc2", 16)
        n1 = 4 * (8 - c1_)
        g1_loop(M, 1, xb[XPF:] + [[]] * (4*c1_ - (32 - XPF)) + ha[:n1],
                {opt("sg1", 3): lambda b: sig_grp(b, 2*layer, "hst"), c1_ - 1: lambda b: poll_grp(b, 2*layer), c1_: lambda b: check(b, "grp", 2*layer)})
        stamp(M, f"L{layer} g1B loop")
        g1_post1(M, 1, [], lambda b: None, [])
        stamp(M, f"L{layer} g1B post1")
        M.add(interleave(gen(g1_post2, layer, 1), g2_res(layer, 0) + ha[n1:HPF]))
        g1_store(M, layer, 1)
        stamp(M, f"L{layer} g1B stored")
        rest = ha[HPF:]
        n2 = 28 - c2_
        g2_loop(M, 0, rest + [[]] * (c2_ - len(rest)) + hb_[:n2],
                {opt("sg2", 12): lambda b: sig_grp(b, 2*layer+1, "hst"), c2_ - 5: lambda b: poll_grp(b, 2*layer+1), c2_: lambda b: check(b, "grp", 2*layer+1)},
                late=hb_[n2:min(20, n2+8)])
        stamp(M, f"L{layer} g2A loop")
        g2_post1(M, 0); g2_post2(M, layer, 0)
        HP2_ = HUP = min(20, n2 + 8)
    else:
        g1_loop(M, 1, mixw(xb[XPF:], take(opt("wb", 16))), {opt("sg1", 3): lambda b: sig_grp(b, 2*layer, "hst")})
        stamp(M, f"L{layer} g1B loop")
        poll_grp(M, 2*layer)
        g1_post1(M, 1, take(opt("wp", 14)), lambda b: check(b, "grp", 2*layer), ha[:HP1])
        stamp(M, f"L{layer} g1B post1")
        M.add(interleave(gen(g1_post2, layer, 1), g2_res(layer, 0) + ha[HP1:HPF]))
        g1_store(M, layer, 1)
        stamp(M, f"L{layer} g1B stored")
        rest = ha[HPF:]
        if w2:
            mix = []
            while rest or w2:
                mix.append((rest.pop(0) if rest else []) + (w2.pop(0) if w2 else []))
            rest = mix
        HP0 = opt("hp0", 0)
        g2_loop(M, 0, rest, {opt("sg2", 12): lambda b: sig_grp(b, 2*layer+1, "hst"), opt("pg2", 27): lambda b: poll_grp(b, 2*layer+1),
                          "end": (lambda b: check(b, "grp", 2*layer+1) if HP0 else None)}, nm=("L1 g2A" if layer and opt("fine", 0) else None), late=hb_[:HP0])
        stamp(M, f"L{layer} g2A loop")
        if HP0: M.add(interleave(gen(g2_post1, 0) + gen(g2_post2, layer, 0), hb_[HP0:HP0+HP2], end=opt("hpe", 40)))
        else:
            if opt("lateA", 0) and L0:
                g2_post1(M, 0); g2_post2(M, layer, 0); check(M, "grp", 2*layer+1); M.add(flat(hb_[:HP2]))
            else:
                g2_post1(M, 0); check(M, "grp", 2*layer+1)
                M.add(interleave(gen(g2_post2, layer, 0), hb_[:HP2], end=opt("hpe", 30)))
        HP2_ = HP0 + HP2
    if L0 and opt("cpf", 1): M("v_add_u32 v5, s90, v6\nglobal_load_dwordx4 v[252:255], v5, s[42:43]")
    stamp(M, f"L{layer} g2A stored")
    M.add(flat(hb_[HP2_:HUP]))
    if L0:
        g2_loop(M, 1, hb_[HUP:] + g2_res(layer, 1), {opt("sg3", 4): lambda b: sig_all(b, 2, "xst"), 24: lambda b: poll_all(b, 2)}, tg=t_groups())
        stamp(M, f"L{layer} g2B loop")
        g2_post1(M, 1)
        if opt("lateB", 0):
            poll_all(M, 2); g2_post2(M, layer, 1); check(M, "all", 2); conv_inputs(M, 1, 0)
        else:
            check(M, "all", 2); conv_inputs(M, 1, 0)
            g2_post2(M, layer, 1)
        stamp(M, f"L{layer} g2B stored")
        u_pad(M)
    else:
        M("s_barrier")
        g2_loop(M, 1, hb_[HUP:] + g2_res(layer, 1), nm=("L1 g2B" if opt("fine", 0) else None))
        stamp(M, f"L{layer} g2B loop")
        g2_post1(M, 1); g2_post2(M, layer, 1)
        stamp(M, f"L{layer} g2B stored")
if STAMP:
    M(f"s_cmp_lg_u32 s{sW}, 0\ns_cbranch_scc1 {DONE}")
    M(f"v_mbcnt_lo_u32_b32 v5, -1, 0\nv_mbcnt_hi_u32_b32 v5, -1, v5\nv_lshlrev_b32 v5, 2, v5\ns_lshl_b32 s5, s2, 8\ns_add_u32 s5, s5, {0x1800000 + 0x400000}")
    M(f"buffer_store_dword v7, v5, {WS}, s5 offen")
M.label(DONE)
M("s_endpgm")

a = Asm()
a.kernel(NAME + "_kernel", vgpr=512, sgpr=102, accum=256)
lines = resolve(strip_marks(M.l)) + tail.l + [".Lkend:"]
lines, added = hazard.fix(lines)
a.lines += lines
print("nops added", added, "lines", len(a.lines), file=sys.stderr)
hdr = "".join(l for l in open(f"cdna_kernels/{NAME}.s.ref").readlines() if l.startswith(";") and "@launch" not in l and "Override" not in l and "grid=ceil" not in l)
a.launches = [f"; @launch grid=(256,1,1) block=(256,1,1) lds={LDS_BYTES}"]
open(OUT, "w").write(a.text(hdr))
json.dump(STAMPS, open("work/" + OUT.split("/")[-1] + ".stamps.json", "w"))
```

```python
import sys, struct, json
sys.path.insert(0, "work")
from asmgen import Asm
import hazard
from sched import resolve, interleave, strip_marks
NAME = "interleave_layers__ssm_conv_s4d__dense_activation_silu__prompt"
STAMP = "--stamp" in sys.argv
OPT = dict(x.lstrip("-").split("=") for x in sys.argv[1:] if x.startswith("--") and "=" in x)
def opt(k, d): return type(d)(OPT.get(k, d))
OUT = [x for x in sys.argv[1:] if not x.startswith("--")]
OUT = OUT[0] if OUT else f"cdna_kernels/{NAME}.s"
def f2u(x): return struct.unpack("<I", struct.pack("<f", x))[0]
LOG2E = 1.4426950408889634
GCNT = 6 * 0x8000
ST0 = 0x80000; ST2 = 0x84000
W2F = 0x100000
W1F = 0x1900000
XP = [0x1700000, 0x300000, 0x500000, 0x700000]
HB = [0x900000, 0x1000000]
WS_BYTES = 0x2000000
HT = 114688
LPK = 114688; PKS = 8256; LCS = 131200; LSCR = 131712
LU = LSCR; US = 4608; LEX = LSCR + 9216
ES = 28672; LGT = LEX
LDS_BYTES = 163840
SWS, SW1, SW2, SOUT = 44, 48, 52, 56
sW, sCPI, sRT, sCT, sLT, sDT, sNON, sGC = 60, 61, 62, 63, 64, 65, 66, 67
sDK, sONE, sMSK, sINV, sEPS, sNL2E = 68, 70, 71, 72, 74, 75
sEXS = 76
sB0, sB1, sO, sW2B, sGS = 78, 79, 80, 81, 82
sSTAMP = 84
sEXQ = 92
SPIN = 60000
vOUT, vPL, vSG, vPD, vONE = 0, 1, 2, 3, 4
vCX, vCS, vUW, vUR, vTB, vEW, vER, vGX, vWA, vXW, vXR, vSW, vSR, vCSA, vH4, vH2, vHL, vRX, vX2, vE1, vE0, vSA = \
    8, 9, 10, 11, 12, 13, 14, 15, 16, 17, 18, 19, 20, 21, 22, 23, 24, 25, 26, 27, 30, 31
vDMA = 24

HSC = "sc1" if opt("hsc", 1) else opt("hfl", "")
GFLAG = opt("gflag", 0)
if opt("samehb", 0): HB = [HB[0], HB[0]]
NSH = opt('nsh', 16)
class Buf:
    def __init__(self): self.l = []
    def __call__(self, s):
        for ln in s.strip("\n").split("\n"): self.l.append("    " + ln.strip())
    def label(self, n): self.l.append(n + ":")
    def add(self, lines): self.l += lines
uid = [0]
def lab(b="L"):
    uid[0] += 1; return f".{b}_{uid[0]}"
def srd(n): return f"s[{n}:{n+3}]"
def v(n, k=1): return f"v{n}" if k == 1 else f"v[{n}:{n+k-1}]"
def ac(n, k=1): return f"a{n}" if k == 1 else f"a[{n}:{n+k-1}]"
def flat(groups): return [l for g in groups for l in g]
def gen(fn, *args, **kw):
    t = Buf(); fn(t, *args, **kw); return t.l
WS = srd(SWS)
tail = Buf()
STAMPS = []
def stamp(b, name):
    if not STAMP: return
    i = len(STAMPS); STAMPS.append(name)
    assert i < 64
    b(f"@{{\n{'s_memtime' if opt('cyc', 0) else 's_memrealtime'} s[{sSTAMP}:{sSTAMP+1}]\ns_waitcnt lgkmcnt(0)\nv_writelane_b32 v7, s{sSTAMP}, {i}\n@}}")

GADDR = f"v_lshrrev_b32 v5, 10, v{vSG}\nv_and_b32 v5, 0xfc, v5" if GFLAG else f"v_and_b32 v5, 0x300, v{vPL}"
def poll_all(b, cnt):
    b(f"s_mov_b32 s{sO}, {cnt*0x8000}\nbuffer_load_dword v{vPD}, v{vPL}, {WS}, s{sO} offen sc1 ;@poll")
def poll_grp(b, idx):
    b(f"@{{\ns_add_u32 s{sO}, s{sGC}, {idx*16*1024}\n{GADDR}\nbuffer_load_dword v{vPD}, v5, {WS}, s{sO} offen sc1 ;@poll\n@}}")
def check(b, kind, idx):
    slow = lab("slow"); back = lab("back"); lp = lab("lp")
    b("@vm poll")
    b(f"@{{\nv_cmp_gt_u32 vcc, {16 if kind == 'grp' else 256 // NSH}, v{vPD}\ns_cbranch_vccnz {slow}")
    b.label(back); b("@}")
    tail.label(slow)
    tail(f"s_mov_b32 s10, {SPIN}")
    if kind == "all": tail(f"s_mov_b32 s11, {idx*0x8000}\nv_mov_b32 v5, v{vPL}")
    else: tail(f"s_add_u32 s11, s{sGC}, {idx*16*1024}\n{GADDR}")
    tgt = 16 if kind == 'grp' else 256 // NSH
    if opt("pp", 1):
        tail(f"buffer_load_dword v{vPD}, v5, {WS}, s11 offen sc1\ns_sleep {opt('ppd', 4)}")
        tail.label(lp)
        tail(f"buffer_load_dword v4, v5, {WS}, s11 offen sc1\ns_waitcnt vmcnt(1)\nv_cmp_gt_u32 vcc, {tgt}, v{vPD}\ns_cbranch_vccz {back}")
        tail(f"buffer_load_dword v{vPD}, v5, {WS}, s11 offen sc1\ns_waitcnt vmcnt(1)\nv_cmp_gt_u32 vcc, {tgt}, v4\ns_cbranch_vccz {back}")
    else:
        tail.label(lp)
        tail(f"buffer_load_dword v{vPD}, v5, {WS}, s11 offen sc1\ns_waitcnt vmcnt(0)")
        tail(f"v_cmp_gt_u32 vcc, {tgt}, v{vPD}\ns_cbranch_vccz {back}")
    tail(f"s_sub_u32 s10, s10, 1\ns_cmp_lg_u32 s10, 0\ns_cbranch_scc1 {lp}\ns_branch {back}")
def sig_all(b, cnt, tag, barrier=True):
    b(f"@vm {tag}\n@{{\n{'s_barrier' if barrier else 's_nop 0'}\ns_mov_b32 s{sO}, {cnt*0x8000}\ns_mov_b64 exec, s[{sEXS}:{sEXS+1}]")
    b(f"v_mov_b32 v5, 1\nbuffer_atomic_add v5, v{vSG}, {WS}, s{sO} offen sc1\ns_mov_b64 exec, -1\n@}}")
def sig_grp(b, idx, tag):
    b(f"@vm {tag}\n@{{\ns_add_u32 s{sO}, s{sGS}, {idx*16*1024}\ns_mov_b64 exec, 1")
    if GFLAG: b(f"buffer_store_dword v{vONE}, off, {WS}, s{sO} {HSC}\ns_mov_b64 exec, -1\ns_barrier\n@}}")
    else: b(f"v_mov_b32 v5, 1\nbuffer_atomic_add v5, off, {WS}, s{sO} sc1\ns_mov_b64 exec, -1\ns_barrier\n@}}")
def xsum(b, regs, tmp, steps):
    for s in steps:
        for i, r in enumerate(regs): b(f"v_mov_b32 v{tmp+i}, v{r}")
        for i, r in enumerate(regs): b(f"v_permlane{s}_swap_b32 v{r}, v{tmp+i}")
        for i, r in enumerate(regs): b(f"v_add_f32 v{r}, v{r}, v{tmp+i}")
def rnd(b, d, s): b(f"v_cvt_pk_bf16_f32 v{d}, 0, v{s}")

M = Buf()
DONE = ".Ldone"
M.label(".Lkstart")
M("s_cmp_ge_u32 s2, 256")
M(f"s_cbranch_scc1 {DONE}")
M("s_load_dwordx16 s[16:31], s[0:1], 0\ns_load_dwordx8 s[32:39], s[0:1], 64\ns_load_dwordx2 s[40:41], s[0:1], 96")
M("s_memrealtime s[14:15]")
M("s_getpc_b64 s[42:43]")
M("v_and_b32 v1, 63, v0\nv_lshlrev_b32 v2, 4, v1\nv_lshrrev_b32 v3, 6, v0")
M(f"v_readfirstlane_b32 s{sW}, v3")
if STAMP: M("v_mov_b32 v7, 0")
M("s_and_b32 s3, s2, 7\ns_lshr_b32 s4, s2, 3")
M(f"s_lshl_b32 s5, s4, 2\ns_add_u32 s5, s5, s{sW}\ns_min_u32 s5, s5, ((.Lkend-.Lkstart-128)>>10)-1\ns_lshl_b32 s5, s5, 10\nv_add_u32 v5, s5, v2")
M("s_mov_b32 s90, s5")
if opt("cp0", 0) == 0: M("global_load_dwordx4 v[200:203], v5, s[42:43]")
M(f"s_lshl_b32 s{sCPI}, s3, 5\ns_add_u32 s{sCPI}, s{sCPI}, s4")
M(f"s_and_b32 s{sCT}, s4, 15")
M(f"s_lshl_b32 s{sRT}, s3, 1\ns_lshr_b32 s5, s4, 4\ns_add_u32 s{sRT}, s{sRT}, s5")
M(f"s_lshl_b32 s{sLT}, s{sRT}, 1\ns_bfe_u32 s5, s4, 0x10003\ns_add_u32 s{sLT}, s{sLT}, s5\ns_and_b32 s{sDT}, s4, 7")
M(f"s_lshl_b32 s{sGC}, s{sRT}, 10\ns_add_u32 s{sGC}, s{sGC}, {GCNT}\ns_lshl_b32 s5, s{sW}, 8\ns_add_u32 s{sGS}, s{sGC}, s5")
if GFLAG: M(f"s_lshl_b32 s5, s{sCT}, 2\ns_add_u32 s5, s5, s{sW}\ns_lshl_b32 s5, s5, 2\ns_add_u32 s{sGS}, s{sGC}, s5")
M(f"s_mov_b32 s{sONE}, 0x3f803f80\ns_mov_b32 s{sMSK}, 0xffff0000\ns_mov_b32 s{sINV}, {f2u(1/512):#x}\ns_mov_b32 s{sINV+1}, {f2u(1/512):#x}")
M(f"s_mov_b32 s{sEPS}, {f2u(1e-5):#x}\ns_mov_b32 s{sNL2E}, {f2u(-LOG2E):#x}")
M(f"s_lshl_b32 s5, s{sW}, 1\ns_lshl_b32 s{sEXS}, 3, s5\ns_mov_b32 s{sEXS+1}, 0")
M(f"s_lshl_b32 s5, s{sW}, 2\ns_lshl_b32 s{sEXQ}, 0x000f000f, s5\ns_mov_b32 s{sEXQ+1}, s{sEXQ}")
M(f"s_lshl_b32 s5, s2, 13\ns_lshl_b32 s6, s{sW}, 11\ns_add_u32 s5, s5, s6\nv_add_u32 v62, s5, v2")
M(f"s_lshl_b32 s5, s{sCPI}, 9\nv_lshlrev_b32 v63, 1, v0\nv_add_u32 v63, s5, v63")
M(f"s_lshr_b32 s5, s2, 2\ns_lshl_b32 s5, s5, 15\ns_and_b32 s6, s2, 3\ns_lshl_b32 s6, s6, 8\ns_add_u32 s5, s5, s6\ns_lshl_b32 s6, s{sW}, 6\ns_add_u32 s5, s5, s6")
M("v_and_b32 v5, 7, v1\nv_lshlrev_b32 v64, 12, v5\nv_lshrrev_b32 v6, 3, v1\nv_lshl_add_u32 v64, v6, 3, v64\nv_add_u32 v64, s5, v64")
M("v_lshlrev_b32 v65, 10, v6\nv_lshl_add_u32 v65, v5, 4, v65\nv_lshlrev_b32 v207, 9, v6\nv_lshl_add_u32 v207, v5, 4, v207")
M(f"s_lshl_b32 s94, s2, 2\ns_add_u32 s94, s94, s{sW}\ns_min_u32 s94, s94, 895")
M("s_mul_i32 s95, s94, 2341\ns_lshr_b32 s95, s95, 16\ns_mul_i32 s5, s95, 28\ns_sub_u32 s96, s94, s5")
M("s_and_b32 s5, s95, 3\ns_mul_i32 s5, s5, 448\ns_lshl_b32 s6, s96, 4\ns_add_u32 s5, s5, s6\ns_lshl_b32 s7, s5, 10\ns_lshr_b32 s5, s95, 2\ns_lshl_b32 s5, s5, 7\ns_add_u32 s7, s7, s5")
M(f"s_lshl_b32 s9, s{sW}, 12\ns_add_u32 s9, s9, {LPK}")
M(f"s_mov_b32 s{SWS+2}, {WS_BYTES:#x}\ns_mov_b32 s{SWS+3}, 0x20000")
M("s_waitcnt lgkmcnt(0)")
stamp(M, "start")
M(f"s_mov_b32 s{SWS}, s40\ns_mov_b32 s{SWS+1}, s41")
n0 = lab("n0"); n1 = lab("n1")
M(f"s_cmp_ge_u32 s2, 128\ns_cbranch_scc1 {n1}")
M(f"s_or_b32 s5, s2, s{sW}\ns_cmp_lg_u32 s5, 0\ns_cbranch_scc1 {n0}")
M("s_or_b32 s14, s14, 1\nv_mov_b32 v5, s14\nv_lshlrev_b32 v6, 2, v1\nglobal_store_dword v6, v5, s[38:39] sc1 ;@!")
M.label(n0)
M(f"s_lshl_b32 s5, s2, 2\ns_add_u32 s5, s5, s{sW}\ns_lshl_b32 s6, s5, 9\ns_lshl_b32 s5, s5, 5\ns_add_u32 s5, s5, {ST2}")
M("v_mov_b32 v4, 0\nv_mov_b32 v5, 0\nv_lshlrev_b32 v6, 3, v1\nv_lshlrev_b32 v8, 2, v1")
M(f"buffer_store_dwordx2 v[4:5], v6, {WS}, s6 offen sc1 ;@!\ns_mov_b64 exec, 0xff\nbuffer_store_dword v5, v8, {WS}, s5 offen sc1 ;@!\ns_mov_b64 exec, -1")
M.label(n1)
for i, dst in enumerate([216, 220, 218, 222]): M(f"global_load_dwordx2 {v(dst,2)}, v64, s[16:17] offset:{i*1024} ;@b1")
M("global_load_dwordx4 v[32:35], v62, s[16:17] ;@b1\nglobal_load_dwordx4 v[36:39], v62, s[16:17] offset:1024 ;@b1")
for sd, sb, nb in [(SW1, 32, 512*1792*2), (SW2, 34, 512*1792*2), (SOUT, 36, 2048*512*2)]:
    M(f"s_mov_b32 s{sd}, s{sb}\ns_mov_b32 s{sd+1}, s{sb+1}\ns_mov_b32 s{sd+2}, {nb:#x}\ns_mov_b32 s{sd+3}, 0x20000")
M(f"s_mov_b32 m0, s9\ns_add_u32 s5, s7, 8192\nbuffer_load_dwordx4 v65, {srd(SW2)}, s7 offen lds ;@b2\ns_add_u32 m0, s9, 1024\ns_nop 0\nbuffer_load_dwordx4 v65, {srd(SW2)}, s5 offen lds ;@b2")
for i in range(4): M(f"global_load_ushort v{48+i}, v63, s[{18+2*i}:{19+2*i}] ;@par")
M(f"s_lshl_b32 s5, s{sCPI}, 2")
M("s_load_dword s12, s[26:27], s5\ns_load_dword s13, s[28:29], s5")
if opt("tlb", 0):
    M(f"v_lshlrev_b32 v5, 20, v1\ns_mov_b64 exec, 0x7ffffff\ns_mov_b32 s5, 0xc0000\nbuffer_load_dword v240, v5, {WS}, s5 offen sc1\ns_mov_b64 exec, 3")
    M(f"buffer_load_dword v243, v5, {srd(SOUT)}, 0 offen\ns_mov_b64 exec, -1")
M("v_and_b32 v60, 15, v1\nv_lshrrev_b32 v61, 4, v1")
sD0, sD1 = 88, 89
sRX, sRH = 16, 24
M(f"s_mul_i32 s{sD0}, s{sW}, {128*3584}\ns_mul_i32 s5, s{sCT}, 224\ns_add_u32 s{sD0}, s{sD0}, s5\ns_mul_i32 s{sD1}, s{sW}, 28672")
dma = [[f"    s_add_u32 m0, s{sD1}, {p*1024}", f"    s_add_u32 s{sB1}, s{sD0}, {(p//7)*32*3584}", f"    buffer_load_dwordx4 v{vDMA+p%7}, {srd(SW1)}, s{sB1} offen lds ;@w1"] for p in range(28)]
dma = dma[17:] + dma[:17]
def setup_dma(b):
    b(f"s_and_b32 s7, s{sCT}, 1\ns_lshl_b32 s8, s7, 5\ns_mul_i32 s7, s7, 192\ns_sub_u32 s7, 192, s7")
    b("v_and_b32 v64, 3, v1\nv_lshlrev_b32 v64, 4, v64\nv_add_u32 v65, s8, v64\nv_xor_b32 v66, 32, v64")
    b(f"v_add_u32 v66, s8, v66\nv_add_u32 v66, {3584-192}, v66")
    b("v_and_b32 v67, 16, v64\nv_add_u32 v67, s7, v67\nv_lshrrev_b32 v64, 5, v64\nv_mul_u32_u24 v64, 3584, v64")
    b(f"v_add_u32 v67, v67, v64\nv_subrev_u32 v67, {6*64}, v67\nv_lshrrev_b32 v64, 2, v1")
    for k in range(7):
        b(f"v_add_u32 v5, {16*k}, v64\nv_mul_u32_u24 v6, 9363, v5\nv_lshrrev_b32 v6, 16, v6\nv_mul_u32_u24 v62, 7, v6\nv_sub_u32 v5, v5, v62")
        b(f"@{{\nv_cmp_lt_u32 vcc, 2, v5\nv_mul_u32_u24 v6, 7168, v6\nv_lshl_add_u32 v6, v5, 6, v6\nv_cndmask_b32 v62, v65, v66, vcc\nv_cmp_eq_u32 vcc, 6, v5\ns_nop 1\nv_cndmask_b32 v62, v62, v67, vcc\n@}}")
        b(f"v_add_u32 v{vDMA+k}, v6, v62")
def setup(b):
    b(f"s_and_b32 s5, s{sW}, 1\ns_lshr_b32 s6, s{sW}, 1")
    b(f"v_bfe_u32 v{vCX}, v1, 2, 2\nv_lshlrev_b32 v{vCX}, 16, v{vCX}\nv_and_b32 v5, 3, v1\nv_lshl_add_u32 v{vCX}, v5, 6, v{vCX}\nv_lshl_add_u32 v{vCX}, v61, 4, v{vCX}")
    b(f"s_lshl_b32 s7, s{sW}, 18\ns_lshl_b32 s8, s{sCPI}, 8\ns_add_u32 s7, s7, s8\nv_add_u32 v{vCX}, s7, v{vCX}")
    b(f"v_lshlrev_b32 v{vCS}, 7, v60\nv_lshl_add_u32 v{vCS}, v61, 5, v{vCS}\ns_lshl_b32 s7, s{sW}, 11\nv_add_u32 v{vCS}, s7, v{vCS}")
    b(f"v_lshlrev_b32 v5, 5, v60\nv_lshl_add_u32 v{vUW}, v61, 3, v5\ns_lshl_b32 s7, s{sW}, 9\ns_add_u32 s7, s7, {LU+512}\nv_add_u32 v{vUW}, s7, v{vUW}")
    b(f"v_lshl_add_u32 v{vUR}, v61, 4, v5\ns_mul_i32 s7, s6, {US}\ns_lshl_b32 s8, s5, 8\ns_sub_u32 s7, s7, s8\ns_add_u32 s7, s7, {LU}\nv_add_u32 v{vUR}, s7, v{vUR}")
    b(f"v_lshlrev_b32 v5, 3, v61\nv_sub_u32 v5, v60, v5\nv_lshlrev_b32 v5, 2, v5\ns_mul_i32 s7, s6, {PKS}\ns_lshl_b32 s8, s5, 9\ns_add_u32 s7, s7, s8\ns_add_u32 s7, s7, {LPK+26*4}\nv_add_u32 v{vTB}, s7, v5")
    b(f"s_lshl_b32 s7, s{sW}, 10\ns_add_u32 s7, s7, {LEX}\nv_add_u32 v{vEW}, s7, v2\ns_lshl_b32 s7, s{sW}, 12\ns_add_u32 s7, s7, {LEX}\nv_add_u32 v{vER}, s7, v2")
    b(f"v_lshlrev_b32 v{vGX}, 9, v61\nv_lshl_add_u32 v{vGX}, v60, 3, v{vGX}\ns_lshl_b32 s7, s{sRT}, 16\ns_lshl_b32 s8, s5, 7\ns_add_u32 s7, s7, s8\ns_lshl_b32 s8, s6, 15\ns_add_u32 s7, s7, s8\nv_add_u32 v{vGX}, s7, v{vGX}")
    b(f"v_lshlrev_b32 v5, 2, v61\nv_bfe_u32 v6, v1, 2, 2\nv_add_u32 v5, v5, v6\nv_mul_u32_u24 v5, 224, v5\nv_and_b32 v6, 3, v1\nv_lshl_add_u32 v5, v6, 3, v5\ns_mul_i32 s7, s6, {256*224}\nv_add_u32 v{vWA}, s7, v5")
    b(f"s_mul_i32 s7, s{sW}, 7680\ns_add_u32 s7, s7, {LSCR}\nv_add_u32 v{vXW}, s7, v2")
    b(f"v_lshrrev_b32 v5, 5, v1\nv_xor_b32 v5, s6, v5\nv_lshlrev_b32 v5, 8, v5\nv_lshl_add_u32 v5, v1, 2, v5\ns_lshl_b32 s7, s5, 9\ns_add_u32 s7, s7, {LSCR+30720}\nv_add_u32 v{vSW}, s7, v5")
    b(f"s_lshl_b32 s8, s6, 8\ns_add_u32 s7, s7, s8\nv_lshlrev_b32 v5, 2, v60\nv_add_u32 v{vSR}, s7, v5")
    b(f"s_xor_b32 s7, s{sW}, 2\ns_mul_i32 s7, s7, 7680\ns_add_u32 s7, s7, {LSCR}\nv_add_u32 v{vXR}, s7, v2")
    b(f"v_lshlrev_b32 v{vCSA}, 4, v61\nv_add_u32 v{vCSA}, {LCS}, v{vCSA}")
    b(f"s_lshl_b32 s7, s{sRT}, 1\ns_add_u32 s7, s7, s5\ns_mul_i32 s7, s7, {HT}\ns_mul_i32 s8, s{sCT}, 7168\ns_add_u32 s7, s7, s8\ns_lshl_b32 s8, s6, 8\ns_add_u32 s7, s7, s8")
    b(f"v_and_b32 v5, 1, v61\nv_lshrrev_b32 v6, 1, v61\nv_lshlrev_b32 v{vH2}, 9, v6\nv_lshl_add_u32 v{vH2}, v60, 4, v{vH2}\nv_add_u32 v{vH2}, s7, v{vH2}\nv_lshl_add_u32 v{vH4}, v5, 10, v{vH2}\nv_lshl_add_u32 v{vH2}, v5, 3, v{vH2}")
    b(f"s_and_b32 s7, s{sCT}, 1\ns_lshl_b32 s8, s7, 10\nv_add_u32 v{vH4}, s8, v{vH4}\ns_mul_i32 s8, s7, 6144\nv_subrev_u32 v{vH2}, s8, v{vH2}")
    b(f"v_and_b32 v204, {NSH-1}, v1\nv_lshlrev_b32 v204, 8, v204\ns_lshl_b32 s7, s3, 12\nv_add_u32 v204, s7, v204")
    b(f"v_lshlrev_b32 v205, 12, v1\ns_and_b32 s7, s{sCT}, {NSH-1}\ns_lshl_b32 s7, s7, 8\nv_add_u32 v205, s7, v205\nv_mov_b32 v{vONE}, 1")
    b(f"s_load_dword s{sNON}, s[38:39], 0")
    for k in range(9):
        b(f"v_lshlrev_b32 v5, 3, v0\nv_add_u32 v5, {k-1}, v5")
        if k == 0: b("v_max_i32 v5, 0, v5")
        b("v_cvt_f32_u32 v5, v5\nv_cvt_pk_bf16_f32 v5, 0, v5\nv_cvt_u32_f32 v6, v5")
        b("v_lshrrev_b32 v5, 23, v5\nv_subrev_u32 v5, 134, v5\nv_med3_i32 v5, v5, 0, 3")
        b("v_lshrrev_b32 v62, 7, v6\nv_and_b32 v63, 7, v6\nv_lshl_or_b32 v62, v62, 3, v63\nv_lshrrev_b32 v62, v5, v62\nv_lshl_add_u32 v62, v5, 3, v62")
        b(f"v_bfe_u32 v6, v6, 3, 4\nv_lshlrev_b32 v6, 2, v6\nv_lshl_add_u32 v6, v62, 6, v6\nv_add_u32 v{IDX+k}, {LGT}, v6")
def setup_g2(b):
    b("v_mbcnt_lo_u32_b32 v248, -1, 0\nv_mbcnt_hi_u32_b32 v248, -1, v248\nv_lshlrev_b32 v6, 4, v248")
    b(f"s_mul_i32 s7, s{sLT}, {HT}\ns_mul_i32 s8, s{sW}, 28672\ns_add_u32 s7, s7, s8\nv_add_u32 v{vHL}, s7, v6")
    b("v_and_b32 v249, 15, v248\nv_lshlrev_b32 v249, 1, v249\nv_bfe_u32 v5, v248, 4, 1\nv_add_u32 v249, v249, v5\nv_lshrrev_b32 v250, 5, v248")
    b(f"s_lshr_b32 s7, s{sLT}, 1\ns_lshl_b32 s7, s7, 16\ns_and_b32 s8, s{sLT}, 1\ns_lshl_b32 s8, s8, 7\ns_add_u32 s7, s7, s8\ns_lshl_b32 s8, s{sDT}, 13\ns_add_u32 s7, s7, s8\ns_lshl_b32 s8, s{sW}, 11\ns_add_u32 s7, s7, s8")
    b(f"v_lshlrev_b32 v{vX2}, 9, v250\nv_lshl_add_u32 v{vX2}, v249, 2, v{vX2}\nv_add_u32 v{vX2}, s7, v{vX2}\ns_and_b32 s8, s{sDT}, 4\nv_xor_b32 v{vRX}, s8, v{vX2}")
    for sg in range(1, 4):
        b(f"s_xor_b32 s7, s{sW}, {sg}\ns_mul_i32 s7, s7, 6144\ns_add_u32 s7, s7, {LSCR+(sg-1)*2048}\nv_add_u32 v{vE1+sg-1}, s7, v6")
    b(f"s_mul_i32 s7, s{sW}, 6144\ns_add_u32 s7, s7, {LSCR}\nv_add_u32 v{vE0}, s7, v6")
    b(f"v_lshlrev_b32 v{vSA}, 3, v249\nv_lshl_add_u32 v{vSA}, v250, 2, v{vSA}\ns_lshl_b32 s7, s{sLT}, 8\nv_add_u32 v{vSA}, s7, v{vSA}")
    b(f"v_lshlrev_b32 v{vOUT}, 10, v249\nv_lshl_add_u32 v{vOUT}, v250, 4, v{vOUT}\ns_lshl_b32 s7, s{sLT}, 15\ns_lshl_b32 s8, s{sDT}, 7\ns_add_u32 s7, s7, s8\ns_lshl_b32 s8, s{sW}, 5\ns_add_u32 s7, s7, s8\nv_add_u32 v{vOUT}, s7, v{vOUT}")
    b(f"s_lshl_b32 s5, s{sDT}, 2\ns_add_u32 s5, s5, s{sW}\ns_mul_i32 s5, s5, 57344\ns_add_u32 s{sW2B}, s5, {W2F}")
def setup_p0(b):
    b("v_lshrrev_b32 v254, 5, v1")
    b("s_and_b32 s5, s95, 3\nv_and_b32 v5, 1, v61\nv_xor_b32 v209, s5, v5\nv_xor_b32 v210, 2, v209")
    b("v_lshlrev_b32 v5, 3, v254\nv_bfe_u32 v6, v1, 2, 2\nv_add_u32 v5, v5, v6\nv_lshlrev_b32 v5, 7, v5\nv_and_b32 v62, 3, v1\nv_lshl_add_u32 v5, v62, 3, v5\nv_add_u32 v5, s9, v5")
    b("v_lshl_add_u32 v209, v209, 5, v5\nv_lshl_add_u32 v210, v210, 5, v5")
    b(f"s_lshl_b32 s99, s94, 11\ns_add_u32 s99, s99, {W2F}")
    b(f"s_lshl_b32 s11, s4, 16\ns_bfe_u32 s6, s2, 0x10002\ns_lshl_b32 s6, s6, 7\ns_add_u32 s11, s11, s6\ns_and_b32 s6, s2, 3\ns_lshl_b32 s6, s6, 14\ns_add_u32 s11, s11, s6\ns_lshl_b32 s6, s{sW}, 12\ns_add_u32 s11, s11, s6\ns_add_u32 s11, s11, {XP[0]}")
IDX = 100
wq = list(dma)
def take(n):
    r = wq[:n]; del wq[:n]; return r
setup_p0(M); setup_dma(M)
M.add(interleave(gen(setup), take(opt("e0", 0)), start=20))
stamp(M, "p0 setup")
M("@vm b1")
stamp(M, "p0 rows")
M("v_swap_b32 v217, v220\nv_swap_b32 v219, v222")
M(f"buffer_store_dwordx4 v[216:219], v207, {WS}, s11 offen sc1 ;@p0s\nbuffer_store_dwordx4 v[220:223], v207, {WS}, s11 offen offset:256 sc1 ;@p0s")
for i in range(4): M(f"v_mov_b32 v{52+i}, 0")
for q in range(4):
    M(f"v_dot2c_f32_bf16 v52, s{sONE}, v{32+q}\nv_dot2c_f32_bf16 v53, v{32+q}, v{32+q}")
    M(f"v_dot2c_f32_bf16 v54, s{sONE}, v{36+q}\nv_dot2c_f32_bf16 v55, v{36+q}, v{36+q}")
for m_ in ["quad_perm:[1,0,3,2]", "quad_perm:[2,3,0,1]", "row_half_mirror", "row_mirror"]:
    for i in range(4): M(f"v_add_f32_dpp v{52+i}, v{52+i}, v{52+i} {m_} row_mask:0xf bank_mask:0xf")
xsum(M, [52, 53, 54, 55], 56, [16, 32])
for r in (52, 54): M(f"v_pk_mul_f32 {v(r,2)}, {v(r,2)}, s[{sINV}:{sINV+1}]")
for r in (52, 54): M(f"v_fma_f32 v{r+1}, -v{r}, v{r}, v{r+1}")
for r in (52, 54): rnd(M, r+1, r+1)
for r in (52, 54): M(f"v_add_f32 v{r+1}, s{sEPS}, v{r+1}")
for r in (52, 54): rnd(M, r+1, r+1)
for r in (52, 54): M(f"v_sqrt_f32 v{r+1}, abs(v{r+1})")
for r in (52, 54): M(f"v_cvt_pk_bf16_f32 v{r}, v{r}, v{r+1}")
M(f"s_lshl_b32 s5, s2, 6\ns_lshl_b32 s6, s{sW}, 4\ns_add_u32 s5, s5, s6\ns_add_u32 s15, s5, {ST0}")
stamp(M, "p0 stats")
nn = lab("nn"); nl = lab("nl"); nb = lab("nb")
M("s_waitcnt lgkmcnt(0)")
M(f"s_cmp_eq_u32 s{sNON}, 0\ns_cbranch_scc1 {nn}")
M.label(nb)
tail.label(nn)
for k in range(1, 4):
    tail(f"s_load_dword s{sNON}, s[38:39], {64*k}\ns_waitcnt lgkmcnt(0)\ns_cmp_lg_u32 s{sNON}, 0\ns_cbranch_scc1 {nb}")
tail(f"s_mov_b32 s10, {SPIN}\nv_mov_b32 v5, 0")
tail.label(nl)
tail("global_load_dword v6, v5, s[38:39] sc1\ns_waitcnt vmcnt(0)")
tail(f"v_readfirstlane_b32 s{sNON}, v6\ns_cmp_lg_u32 s{sNON}, 0\ns_cbranch_scc1 {nb}")
tail(f"s_sub_u32 s10, s10, 1\ns_cmp_lg_u32 s10, 0\ns_cbranch_scc1 {nl}\ns_branch {nb}")
M(f"v_mov_b32 v212, v52\nv_mov_b32 v213, s{sNON}\nv_mov_b32 v214, v54\nv_mov_b32 v215, s{sNON}")
publish = gen(lambda b: (b(f"@vm p0s\n@{{\ns_barrier\ns_mov_b64 exec, 1\nbuffer_store_dwordx4 v[212:215], off, {WS}, s15 sc1\ns_mov_b64 exec, -1\n@}}"), stamp(b, "p0 published")))
def w2_relay(b):
    n3 = lab("n3")
    b("@vm b2")
    for mt in range(2):
        for hf in range(2): b(f"ds_read_b64_tr_b16 {v(224+4*mt+2*hf,2)}, v{209+mt} offset:{hf*512} ;@w2r")
    b(f"@lg w2r\n@{{\ns_cmp_ge_u32 s2, 224\ns_cbranch_scc1 {n3}")
    b(f"buffer_store_dwordx4 v[224:227], v2, {WS}, s99 offen sc1 ;@!\nbuffer_store_dwordx4 v[228:231], v2, {WS}, s99 offen offset:1024 sc1 ;@!")
    b.label(n3); b("@}")
def kgen(Kg):
    Kg(f"s_lshl_b32 s{sDK}, s13, 16\ns_and_b32 s{sDK+1}, s13, s{sMSK}")
    Kg(f"@{{\ns_lshl_b32 s5, s12, 16\ns_and_b32 s6, s12, s{sMSK}\ns_cmp_ge_u32 s{sW}, 2\ns_cselect_b32 s5, s6, s5\n@}}")
    L2E = f"{f2u(LOG2E):#x}"
    VAL = lambda row: 110 + 2*row if row < 45 else 62 + 2*(row - 45)
    Kg(f"v_mov_b32 v5, s5\nv_mul_f32 v5, {L2E}, v5\nv_exp_f32 v5, v5")
    for i in range(4): Kg(f"v_lshlrev_b32 v{48+i}, 16, v{48+i}")
    Kg(f"v_mul_f32 v48, {L2E}, v48\nv_exp_f32 v48, v48")
    Kg(f"s_mul_i32 s5, s{sW}, {ES}")
    Kg("v_lshlrev_b32 v98, 2, v1\nv_add_u32 v98, s5, v98")
    rnd(Kg, 5, 5); rnd(Kg, 48, 48)
    Kg(f"v_mul_f32 v49, v49, v5\nv_mul_f32 v48, v48, v5\nv_mul_f32 v49, 0.15915494, v49\nv_mul_f32 v48, s{sNL2E}, v48")
    Kg(f"v_add_f32 v5, v5, v5\nv_mul_f32 v{VAL(0)}, v50, v5\nv_mul_f32 v{VAL(0)+1}, v51, v5")
    E1, E8, E128, E1K = VAL(17), 34, VAL(24), VAL(48)
    PS = [(E1, 1.0), (E8, 8.0), (E128, 128.0), (E1K, 1024.0)]
    for k, (dst, p) in enumerate(PS): Kg(f"v_mul_f32 v{52+k}, {f2u(p):#x}, v48\nv_mul_f32 v{56+k}, {f2u(p):#x}, v49")
    for k, (dst, p) in enumerate(PS): Kg(f"v_exp_f32 v{52+k}, v{52+k}\nv_fract_f32 v{56+k}, v{56+k}")
    for k, (dst, p) in enumerate(PS): Kg(f"v_cos_f32 v{dst}, v{56+k}\nv_sin_f32 v{dst+1}, v{56+k}")
    Kg("v_mul_u32_u24 v99, 272, v60\nv_lshl_add_u32 v99, v61, 4, v99\nv_add_u32 v99, s5, v99")
    Kg(f"v_mov_b32 v{VAL(16)}, 1.0\nv_mov_b32 v{VAL(16)+1}, 0")
    for k, (dst, p) in enumerate(PS): Kg(f"v_mul_f32 v{dst}, v{dst}, v{52+k}\nv_mul_f32 v{dst+1}, v{dst+1}, v{52+k}")
    e16, e32, e64 = 36, 38, 32
    V = VAL
    levels = [
        [(V(1), V(0), E8), (V(18), E1, E1), (V(32), E128, E128), (e16, E8, E8), (V(56), E1K, E1K), (V(25), E1, E128), (V(49), E1K, E128)],
        [(e32, e16, e16), (V(20), V(18), V(18)), (V(40), V(32), V(32)), (V(2), V(0), e16), (V(3), V(1), e16), (V(19), V(18), E1), (V(36), V(32), E128),
         (V(26), V(18), E128), (V(50), E1K, V(32)), (V(33), V(32), V(18))],
        [(e64, e32, e32), (V(4), V(0), e32), (V(5), V(1), e32), (V(6), V(2), e32), (V(7), V(3), e32), (V(21), V(20), E1), (V(22), V(20), V(18)), (V(23), V(20), V(19)),
         (V(42), V(40), E128), (V(44), V(40), V(32)), (V(46), V(40), V(36)), (V(27), V(19), E128), (V(28), V(20), E128), (V(51), E1K, V(36)), (V(52), E1K, V(40)),
         (V(34), V(32), V(20)), (V(37), V(36), V(18)), (V(38), V(36), V(20)), (V(41), V(40), V(20))],
        [(V(8 + i), V(i), e64) for i in range(8)] +
        [(V(29), V(21), E128), (V(30), V(22), E128), (V(31), V(23), E128), (V(35), V(32), V(22)), (V(39), V(36), V(22)),
         (V(43), V(42), V(20)), (V(45), V(44), V(20)), (V(47), V(46), V(20)), (V(53), E1K, V(42)), (V(54), E1K, V(44)), (V(55), E1K, V(46))],
    ]
    row_of = {VAL(r): r for r in range(57)}
    pend = [0, 16, 17, 24, 48]; written = []
    rot = [0]
    def puts(rows):
        g = []
        for r in rows:
            t = 86 + rot[0] % 12; rot[0] += 1
            g.append((f"    v_cvt_pk_bf16_f32 v{t}, v{VAL(r)}, {'-' if r < 16 else ''}v{VAL(r)+1}", f"    ds_write_b32 v98, v{t} offset:{r*272}"))
            written.append(r)
        out = []
        for k in range(len(g) + 1):
            out.append(([g[k][0]] if k < len(g) else []) + ([g[k-1][1]] if k > 0 else []))
        return out
    for lv in levels:
        t = Buf()
        for d_, x_, y_ in lv: t(f"v_pk_mul_f32 {v(d_,2)}, {v(x_,2)}, {v(y_,2)} op_sel_hi:[1,0]")
        for d_, x_, y_ in lv: t(f"v_pk_fma_f32 {v(d_,2)}, {v(x_,2)}, {v(y_,2)}, {v(d_,2)} op_sel:[1,1,0] op_sel_hi:[0,1,1] neg_lo:[1,0,0]")
        Kg.add(interleave(t.l, puts(pend)))
        pend = [row_of[d_] for d_, _, _ in lv if d_ in row_of]
    Kg.add(flat(puts(pend)))
    assert sorted(written) == list(range(57))
    LOF, HF, GD = 110, 126, 62
    Kg("s_waitcnt lgkmcnt(0)")
    for s_ in range(4):
        Kg(f"ds_read_b128 {v(LOF+4*s_,4)}, v99 offset:{s_*64} ;@kf{s_}")
        for T in range(3): Kg(f"ds_read_b128 {v(HF+16*T+4*s_,4)}, v99 offset:{(16+16*T)*272+s_*64} ;@kf{s_}")
    Kg(f"s_mul_i32 s5, s{sW}, 3072\ns_add_u32 s5, s5, {LGT}")
    Kg("v_lshlrev_b32 v5, 2, v60\nv_lshl_add_u32 v5, v61, 8, v5\nv_add_u32 v5, s5, v5")
    for s_ in range(4):
        Kg(f"@lg kf{s_}")
        for T in range(3): Kg(f"v_mfma_f32_16x16x32_bf16 {v(GD+4*T,4)}, {v(HF+16*T+4*s_,4)}, {v(LOF+4*s_,4)}, {'0' if s_ == 0 else v(GD+4*T,4)}")
    for T in range(3):
        for r in range(0, 4, 2): Kg(f"ds_write2_b32 v5, v{GD+4*T+r}, v{GD+4*T+r+1} offset0:{r*16} offset1:{r*16+16}") if T == 0 else None
        if T:
            for r in range(4): Kg(f"ds_write_b32 v5, v{GD+4*T+r} offset:{(T*16+r)*64}")
M("@vm par")
kl = gen(kgen)
PUB = opt("pub", 110)
cpl = ["    v_add_u32 v200, s90, v2", "    global_load_dwordx4 v[200:203], v200, s[42:43]"] if opt("cp0", 0) == 1 else []
kl = interleave(kl, [publish + cpl + gen(w2_relay)], start=PUB, every=1)
M.add(interleave(kl, take(11 - opt("e0", 0)), start=opt("e1", 4)))
stamp(M, "kgen core")
M(f"s_mov_b32 s{sO}, {ST0}\nbuffer_load_dwordx4 v[232:235], v{vCS}, {WS}, s{sO} offen sc1 ;@cin\nbuffer_load_dwordx4 v[236:239], v{vCS}, {WS}, s{sO} offen offset:16 sc1 ;@cin")
M(f"s_mov_b32 s{sO}, {ST0+8192}\nbuffer_load_dwordx4 v[240:243], v{vCS}, {WS}, s{sO} offen sc1 ;@cin\nbuffer_load_dwordx4 v[244:247], v{vCS}, {WS}, s{sO} offen offset:16 sc1 ;@cin")
M("s_waitcnt lgkmcnt(0)\ns_barrier")
for c in range(2):
    for k in range(9): M(f"ds_read2st64_b32 {v(110+c*18+2*k,2)}, v{IDX+k} offset0:{24*c} offset1:{24*c+12} ;@g{c}")
M(f"v_bfe_u32 v5, v0, 4, 1\nv_mul_u32_u24 v5, {PKS}, v5\nv_lshl_add_u32 v5, v60, 2, v5\nv_add_u32 v5, {LPK}, v5\nv_mov_b32 v6, 0")
M("ds_write_b32 v5, v6")
M(f"v_lshlrev_b32 v5, 5, v0\nv_add_u32 v5, {LPK+64}, v5")
M("v_cmp_eq_u32 vcc, 0, v0")
for c in range(2):
    M(f"@lg g{c}")
    for k in range(9):
        r = 110 + c*18 + 2*k
        M(f"v_add_f32 v{r}, v{r}, v{r+1}")
    M(f"v_cndmask_b32 v{110+c*18}, v{110+c*18}, v6, vcc")
    for k in range(8): M(f"v_cvt_pk_bf16_f32 v{72+c*8+k}, v{110+c*18+2*(k+1)}, v{110+c*18+2*k}")
    M(f"ds_write_b128 v5, {v(72+c*8,4)} offset:{c*PKS}\nds_write_b128 v5, {v(76+c*8,4)} offset:{c*PKS+16}")
T0, U0, ACC = 32, 160, 224
BASE, RV, CST, UPK = 224, 232, 232, 240
def conv_stats(b, layer, half):
    b(f"s_mov_b32 s{sO}, {(ST2 if layer else ST0) + half*8192}")
    b(f"buffer_load_dwordx4 {v(CST,4)}, v{vCS}, {WS}, s{sO} offen sc1 ;@cin\nbuffer_load_dwordx4 {v(CST+4,4)}, v{vCS}, {WS}, s{sO} offen offset:16 sc1 ;@cin")
def conv_x(b, layer, half):
    b(f"s_mov_b32 s{sO}, {XP[2*layer] + half*0x100000}\nbuffer_load_dwordx4 v[248:251], v{vCX}, {WS}, s{sO} offen sc1 ;@cin")
def conv_inputs(b, layer, half):
    conv_x(b, layer, half); conv_stats(b, layer, half)
def gcheck(b):
    slow = lab("gs"); back = lab("gb"); lp = lab("gl")
    def chk(o):
        for k in range(8): o(f"v_xor_b32 v{160+k}, s{sNON}, v{CST+2*k+1}")
        o("v_or3_b32 v160, v160, v161, v162\nv_or3_b32 v163, v163, v164, v165\nv_or3_b32 v160, v160, v166, v167\nv_or_b32 v160, v160, v163\nv_cmp_ne_u32 vcc, 0, v160")
    b("@vm cin\n@{")
    chk(b); b(f"s_cbranch_vccnz {slow}"); b.label(back); b("@}")
    for k in range(4): b(f"v_mov_b32 v{252+k}, v{CST+8+2*k}")
    tail.label(slow); tail(f"s_mov_b32 s10, {SPIN}\ns_mov_b32 s11, {ST0}\ns_mov_b32 s5, {ST0+8192}")
    tail.label(lp)
    for k in range(4): tail(f"buffer_load_dwordx4 {v(CST+4*k,4)}, v{vCS}, {WS}, s{5 if k >= 2 else 11} offen offset:{16*(k&1)} sc1")
    tail("s_waitcnt vmcnt(0)")
    chk(tail); tail(f"s_cbranch_vccz {back}")
    tail(f"s_sub_u32 s10, s10, 1\ns_cmp_lg_u32 s10, 0\ns_cbranch_scc1 {lp}\ns_branch {back}")
def t_loads(b, js):
    for j in js:
        if j: b(f"v_add_u32 v5, {1024*j}, v{vTB}")
        ad = 5 if j else vTB
        for t in range(4):
            r = T0 + (j*4 + t)*4
            b(f"ds_read2_b32 {v(r,2)}, v{ad} offset0:{32*t+6} offset1:{32*t+4} ;@T\nds_read2_b32 {v(r+2,2)}, v{ad} offset0:{32*t+2} offset1:{32*t} ;@T")
def t_groups(ta=188):
    g = []
    for k in range(32):
        j, t = k >> 2, k & 3
        r = T0 + 4*k
        grp = [f"    v_add_u32 v{ta}, {1024*j}, v{vTB}"] if t == 0 else []
        grp += [f"    ds_read2_b32 {v(r,2)}, v{ta} offset0:{32*t+6} offset1:{32*t+4} ;@T", f"    ds_read2_b32 {v(r+2,2)}, v{ta} offset0:{32*t+2} offset1:{32*t} ;@T"]
        g.append(grp)
    return g
def u_pad(b):
    b(f"v_subrev_u32 v5, {LEX}, v{vEW}\nv_and_b32 v5, 0x3f0, v5\nv_lshrrev_b32 v5, 1, v5\nv_add_u32 v5, {LU}, v5\nv_mov_b32 v{UPK}, 0\nv_mov_b32 v{UPK+1}, 0")
    b(f"ds_write_b64 v5, {v(UPK,2)}\nds_write_b64 v5, {v(UPK,2)} offset:{US}")
def conv_half(b, layer, half, bg=[], pre_barrier=None, after_ln=None, after_mfma=None, tailbg=[], pre_barrier2=None):
    X = 248
    MN, RI, DD = 192, 196, 176
    b("@vm cin")
    stamp(b, f"L{layer} conv{half} loaded")
    if layer == 0:
        G = (lambda i: 252 + i) if half else (lambda i: CST + 2*i)
        for i in range(4): b(f"v_and_b32 v{RI+i}, s{sMSK}, v{G(i)}")
        for i in range(4): b(f"v_rcp_f32 v{RI+i}, v{RI+i}")
        for i in range(4): b(f"v_lshlrev_b32 v{MN+i}, 16, v{G(i)}")
    else:
        for i in range(4): b(f"v_pk_mul_f32 {v(CST+2*i,2)}, {v(CST+2*i,2)}, s[{sINV}:{sINV+1}]")
        for i in range(4): b(f"v_fma_f32 v{RI+i}, -v{CST+2*i}, v{CST+2*i}, v{CST+2*i+1}")
        for i in range(4): rnd(b, RI+i, RI+i)
        for i in range(4): b(f"v_add_f32 v{RI+i}, s{sEPS}, v{RI+i}")
        for i in range(4): rnd(b, RI+i, RI+i)
        for i in range(4): b(f"v_sqrt_f32 v{RI+i}, abs(v{RI+i})")
        for i in range(4): rnd(b, MN+i, CST+2*i)
        for i in range(4): rnd(b, RI+i, RI+i)
        for i in range(4): b(f"v_rcp_f32 v{RI+i}, v{RI+i}")
    for i in range(4): b(f"v_lshlrev_b32 v{BASE+i}, 16, v{X+i}\nv_and_b32 v{BASE+4+i}, s{sMSK}, v{X+i}")
    for k in range(4): b(f"v_pk_add_f32 {v(DD+2*k,2)}, {v(BASE+2*k,2)}, {v(MN+2*(k&1),2)} neg_lo:[0,1] neg_hi:[0,1]")
    for k in range(8): rnd(b, DD+k, DD+k)
    for k in range(4): b(f"v_pk_mul_f32 {v(DD+2*k,2)}, {v(DD+2*k,2)}, {v(RI+2*(k&1),2)}")
    for k in range(4): b(f"v_cvt_pk_bf16_f32 v{UPK+k}, v{DD+2*k}, v{DD+2*k+1}")
    b(f"ds_write_b64 v{vUW}, {v(UPK,2)} offset:{half*2048}\nds_write_b64 v{vUW}, {v(UPK+2,2)} offset:{US+half*2048}")
    F2 = opt("fine", 0) == 2 and layer == 1
    if F2: stamp(b, f"c{half} ln")
    if pre_barrier: b(pre_barrier)
    b("s_waitcnt lgkmcnt(0)\ns_barrier")
    if F2: stamp(b, f"c{half} bar1")
    if after_ln: after_ln(b)
    def urd(tp, t): return f"    ds_read_b128 {v(U0+(tp*4+t)*4,4)}, v{vUR} offset:{512 + 512*(tp+4*half) - 64*t - 32} ;@U{tp}_{t}"
    b.add([urd(0, t) for t in range(4)] + [urd(1, 0), urd(1, 1)])
    later = [urd(tp, t) for tp in range(1, 4) for t in range(4)][2:]
    fill = []
    for k in range(4):
        c = k >> 1
        fill += [f"    v_lshlrev_b32 v{RV+2*k}, 16, v{UPK+k}", f"    v_and_b32 v{RV+2*k+1}, s{sMSK}, v{UPK+k}"]
    for k in range(8): fill.append(f"    v_fmac_f32 v{BASE+k}, s{sDK + (k >> 2)}, v{RV+k}")
    ml = []; cnt = 0
    lastidx = {0: 12, 1: 25, 2: 34}
    for tp in range(4):
        for t in range(4):
            ml.append(f"    @lg U{tp}_{t}")
            for r in range(tp, 4):
                acc = ACC + (4*half + r)*4
                cin = "0" if (half == 0 and t == 0 and tp == 0) else ac(acc, 4)
                ml.append(f"    v_mfma_f32_16x16x32_bf16 {ac(acc,4)}, {v(T0+((r-tp)*4+t)*4,4)}, {v(U0+(tp*4+t)*4,4)}, {cin}")
                if later: ml.append(later.pop(0))
                elif fill: ml.append(fill.pop(0))
                for r_ in range(3):
                    if cnt == lastidx[r_] + (5 if r_ < 2 else 5): ml.append(f"    ds_write_b128 v{vEW}, {ac(ACC+(4*half+r_)*4,4)} offset:{r_*4096}")
                cnt += 1
    assert not later and not fill
    ml = interleave(ml, bg, start=2)
    b.add(ml)
    tailbg = list(tailbg)
    if F2: stamp(b, f"c{half} mfma")
    if after_mfma: after_mfma(b)
    if F2: stamp(b, f"c{half} chk")
    b(f"ds_write_b128 v{vEW}, {ac(ACC+(4*half+3)*4,4)} offset:{3*4096}")
    b.add(flat(tailbg[:2]))
    if pre_barrier2: b(pre_barrier2)
    b("s_waitcnt lgkmcnt(0)\ns_barrier")
    if F2: stamp(b, f"c{half} bar2")
    for src in range(4): b(f"ds_read_b128 {v(RV+4*src,4)}, v{vER} offset:{src*1024} ;@E{src>>1}")
    b.add(flat(tailbg[2:]))
    b(f"s_mov_b32 s{sO}, {XP[1+2*layer] + half*0x100000}")
    for c in range(2):
        b(f"@lg E{c}")
        for k in range(2): b(f"v_pk_add_f32 {v(RV+8*c+2*k,2)}, {v(RV+8*c+2*k,2)}, {v(RV+8*c+4+2*k,2)}")
        for k in range(2): b(f"v_pk_add_f32 {v(BASE+4*c+2*k,2)}, {v(BASE+4*c+2*k,2)}, {v(RV+8*c+2*k,2)}")
    sw = lab("sw"); sj = lab("sj")
    b(f"s_cmp_ge_u32 s{sCPI}, 128\ns_cbranch_scc1 {sw}")
    for i in range(4): b(f"v_cvt_pk_bf16_f32 v{244+i}, v{BASE+i}, v{BASE+4+i}")
    b.label(sj)
    tail.label(sw)
    for i in range(4): tail(f"v_cvt_pk_bf16_f32 v{244+(i^1)}, v{BASE+i}, v{BASE+4+i}")
    tail(f"s_branch {sj}")
    b(f"buffer_store_dwordx4 v[244:247], v{vCX}, {WS}, s{sO} offen sc1 ;@cst")
    stamp(b, f"L{layer} conv{half} stored")
def conv_ab(b):
    b("@lg T")
    for t in range(4):
        for tp in range(4):
            for r in range(4, 8):
                acc = ACC + r*4
                cin = "0" if (t == 0 and tp == 0) else ac(acc, 4)
                b(f"v_mfma_f32_16x16x32_bf16 {ac(acc,4)}, {v(T0+((r-tp)*4+t)*4,4)}, {v(U0+(tp*4+t)*4,4)}, {cin}")
def colsum(b):
    wa_regs(b)
    b(f"@{{\ns_lshr_b32 s6, s{sW}, 1\ns_mul_i32 s6, s6, {256*224}\ns_lshl_b32 s5, s{sW}, 6\ns_cmp_eq_u32 s{sW}, 3\ns_cselect_b32 s5, 0, s5\ns_cselect_b64 vcc, -1, 0\ns_sub_u32 s5, s5, s6\n@}}")
    b(f"v_cndmask_b32 v248, v{vWA}, v253, vcc\nv_cndmask_b32 v249, v252, v253, vcc\nv_add_u32 v248, s5, v248\nv_add_u32 v249, s5, v249\nv_add_u32 v250, {256*224}, v248\nv_add_u32 v251, {256*224}, v249")
    for i in range(4): b(f"v_mov_b32 v{240+i}, s{sONE}")
    def rd(ks):
        for f2 in range(2):
            for hf in range(2):
                b(f"ds_read_b64_tr_b16 {v(96+(f2*8+ks%8)*4+2*hf,2)}, v{248 + f2 + 2*(ks//8)} offset:{(32*(ks%8)+16*hf)*224} ;@c{ks}")
    for ks in range(3): rd(ks)
    for ks in range(16):
        if ks + 3 < 16: rd(ks + 3)
        b(f"@lg c{ks}")
        for f2 in range(2):
            b(f"v_mfma_f32_16x16x32_bf16 {v(232+4*f2,4)}, {v(96+(f2*8+ks%8)*4,4)}, v[240:243], {'0' if ks == 0 else v(232+4*f2,4)}")
    b(f"s_lshl_b32 s5, s{sW}, 7\nv_add_u32 v5, s5, v{vCSA}")
    b("ds_write_b128 v5, v[232:235] ;@cs\nds_write_b128 v5, v[236:239] offset:64 ;@cs")

WB, SS, KA, SA = 160, 216, 224, 224
def g1_loads(layer, half):
    g = []
    X0 = 32 + 64 * half
    for ks in range(8):
        for n_, (dst, off) in enumerate([(0, 0), (4, 256), (2, 2048), (6, 2304)]):
            grp = []
            if n_ == 0: grp.append(f"    s_mov_b32 s{sB0}, {XP[1+2*layer] + half*0x100000 + ks*4096}")
            grp.append(f"    buffer_load_dwordx2 {v(X0+8*ks+dst,2)}, v{vGX}, {WS}, s{sB0} offen offset:{off} sc1 ;@x{ks}")
            g.append(grp)
    return g
def wread(b, ks, ft, hfs=(0, 1)):
    r = WB + (ks & 1) * 28 + ft * 4
    for hf in hfs:
        ad, off = (253, 0) if ft == 6 else ((252 if ft & 1 else vWA), (ft >> 1) * 64)
        b(f"ds_read_b64_tr_b16 {v(r+2*hf,2)}, v{ad} offset:{(32*ks+16*hf)*224 + off} ;@w{ks}_{ft}")
def wa_regs(b):
    b(f"v_xor_b32 v252, 32, v{vWA}\nv_and_b32 v253, 32, v{vWA}\nv_mul_u32_u24 v253, 6, v253\nv_sub_u32 v253, v{vWA}, v253\nv_add_u32 v253, 384, v253")
def g1_pre(b):
    wa_regs(b)
    for ft in range(7): wread(b, 0, ft)
def g1_loop(b, half, bg, hooks={}, slots=None):
    X0 = 32 + 64 * half
    bg = list(bg)
    if slots is None: slots = (0, 2, 4, 6) if len(bg) <= 32 else (0, 1, 3, 4, 6)
    def swaps(ks):
        x = X0 + 8 * ks
        b(f"@vm x{ks}\nv_swap_b32 v{x+1}, v{x+4}\nv_swap_b32 v{x+3}, v{x+6}")
    swaps(0)
    for ks in range(8):
        x = X0 + 8 * ks
        if opt("fine", 0) == 3 and len(STAMPS) > 25: stamp(b, f"g1{half} k{ks}")
        if ks in hooks: hooks[ks](b)
        if ks == 7:
            for ft in range(7):
                r = WB + 28 + ft * 4
                if ft in (0, 4): b(f"@lg w{ks}_{3 if ft == 0 else 6}")
                b(f"v_mfma_f32_16x16x32_bf16 {ac(SA+4*ft,4)}, {v(r,4)}, {v(x+4,4)}, {ac(SA+4*ft,4)}")
                b(f"ds_read_b128 {v(160+4*ft,4)}, v{vCSA} offset:{ft*64}")
                if ft in slots and bg: b.add(bg.pop(0))
            for ft in range(7):
                r = WB + 28 + ft * 4
                b(f"v_mfma_f32_16x16x32_bf16 {v(KA+4*ft,4)}, {v(r,4)}, {v(x,4)}, {v(KA+4*ft,4)}")
                if ft % 2 == 0 and ft // 2 < NW0: b(f"ds_write_b128 v{vXW}, {ac(SA+4*(ft//2),4)} offset:{(ft//2)*1024}")
            continue
        for ft in range(7):
            r = WB + (ks & 1) * 28 + ft * 4
            if ft in (0, 4): b(f"@lg w{ks}_{3 if ft == 0 else 6}")
            b(f"v_mfma_f32_16x16x32_bf16 {ac(SA+4*ft,4)}, {v(r,4)}, {v(x+4,4)}, {'0' if ks == 0 else ac(SA+4*ft,4)}")
            wread(b, ks + 1, ft, (0,))
            if ft in slots and bg: b.add(bg.pop(0))
            b(f"v_mfma_f32_16x16x32_bf16 {v(KA+4*ft,4)}, {v(r,4)}, {v(x,4)}, {'0' if ks == 0 else v(KA+4*ft,4)}")
            wread(b, ks + 1, ft, (1,))
            if ft == 5: swaps(ks + 1)
    assert not bg
NW0 = opt("nw0", 2)
RC, CSR = 188, 160
def g1_post1(b, half, bg=[], chk=None, bg2=[]):
    X0 = 32 + 64 * half
    d = Buf()
    for ks in range(8):
        x = X0 + 8 * ks
        for q in range(4):
            o = 4 * (q & 1)
            if ks == 0 and q < 2:
                d(f"v_dot2_f32_bf16 v{SS+o}, s{sONE}, v{x+q}, 0\nv_dot2_f32_bf16 v{SS+o+1}, v{x+q}, v{x+q}, 0")
                d(f"v_dot2_f32_bf16 v{SS+o+2}, s{sONE}, v{x+4+q}, 0\nv_dot2_f32_bf16 v{SS+o+3}, v{x+4+q}, v{x+4+q}, 0")
                continue
            d(f"v_dot2c_f32_bf16 v{SS+o}, s{sONE}, v{x+q}\nv_dot2c_f32_bf16 v{SS+o+1}, v{x+q}, v{x+q}")
            d(f"v_dot2c_f32_bf16 v{SS+o+2}, s{sONE}, v{x+4+q}\nv_dot2c_f32_bf16 v{SS+o+3}, v{x+4+q}, v{x+4+q}")
    wr = [[f"    ds_write_b128 v{vXW}, {ac(SA+4*ft,4)} offset:{ft*1024}"] for ft in range(NW0, 7)]
    dl = interleave(d.l, wr, start=8, every=24)
    cut = opt("cut", 140)
    b.add(interleave(dl[:cut], bg, start=4))
    chk(b)
    b.add(interleave(dl[cut:], bg2))
    if opt("fine", 0) == 2: stamp(b, f"p{len(STAMPS)} dots")
    b(f"v_pk_add_f32 {v(SS+2,2)}, {v(SS+2,2)}, {v(SS+6,2)}\nv_pk_add_f32 {v(SS,2)}, {v(SS,2)}, {v(SS+4,2)}")
    b(f"v_permlane32_swap_b32 v{SS}, v{SS+2}\nv_permlane32_swap_b32 v{SS+1}, v{SS+3}\nv_pk_add_f32 {v(SS,2)}, {v(SS,2)}, {v(SS+2,2)}")
    b(f"v_permlane16_swap_b32 v{SS}, v{SS+1}\nv_add_f32 v{SS}, v{SS}, v{SS+1}\nds_write_b32 v{vSW}, v{SS}")
    b("s_waitcnt lgkmcnt(0)\ns_barrier")
    b(f"ds_read2_b32 {v(SS,2)}, v{vSR} offset0:0 offset1:16 ;@s\nds_read2_b32 {v(SS+2,2)}, v{vSR} offset0:32 offset1:48 ;@s")
    for ft in range(7): b(f"ds_read_b128 {v(RC+4*ft,4)}, v{vXR} offset:{ft*1024} ;@r{ft}")
def g1_post2(b, layer, half):
    b("@lg s")
    b(f"v_pk_add_f32 {v(SS,2)}, {v(SS,2)}, {v(SS+2,2)}")
    mn, sd, c2 = SS, SS+1, SS+2
    st = Buf()
    st(f"v_pk_mul_f32 {v(SS,2)}, {v(SS,2)}, s[{sINV}:{sINV+1}]\nv_fma_f32 v{sd}, -v{mn}, v{mn}, v{sd}")
    rnd(st, sd, sd); rnd(st, mn, mn)
    st(f"v_add_f32 v{sd}, s{sEPS}, v{sd}"); rnd(st, sd, sd)
    st(f"v_sqrt_f32 v{sd}, abs(v{sd})"); rnd(st, sd, sd)
    st(f"v_rcp_f32 v{c2}, v{sd}\nv_mul_f32 v{c2}, s{sNL2E}, v{c2}")
    adds = []
    for ft in range(7):
        t = RC + 4*ft
        adds.append([f"    @lg r{ft}"] + [f"    v_pk_add_f32 {v(t+2*k,2)}, {v(t+2*k,2)}, {v(KA+4*ft+2*k,2)}" for k in range(2)])
    b.add(interleave(st.l, adds, start=1, every=1))
    if opt("fine", 0) == 2: stamp(b, f"p{len(STAMPS)} stats")
    silu_part(b, 0, 8 if opt("sp", 1) else 14)
def silu_part(b, k0, k1):
    mn, c2 = SS, SS + 2
    K = range(k0, k1); R = range(2*k0, 2*k1)
    for k in K: b(f"v_pk_fma_f32 {v(RC+2*k,2)}, {v(CSR+2*k,2)}, {v(mn,2)}, {v(RC+2*k,2)} op_sel_hi:[1,0,1] neg_lo:[0,1,0] neg_hi:[0,1,0]")
    for k in K: b(f"v_pk_mul_f32 {v(CSR+2*k,2)}, {v(RC+2*k,2)}, {v(c2,2)} op_sel_hi:[1,0]")
    for r in R: b(f"v_exp_f32 v{CSR+r}, v{CSR+r}")
    for k in K: b(f"v_pk_fma_f32 {v(CSR+2*k,2)}, {v(CSR+2*k,2)}, {v(mn,2)}, {v(mn,2)} op_sel:[0,1,1] op_sel_hi:[1,1,1]")
    for r in R: b(f"v_rcp_f32 v{CSR+r}, v{CSR+r}")
    for k in K: b(f"v_pk_mul_f32 {v(CSR+2*k,2)}, {v(CSR+2*k,2)}, {v(RC+2*k,2)}")
    for k in K:
        ft = k >> 1
        b(f"v_cvt_pk_bf16_f32 v{KA + 8*(ft >> 1) + 2*(ft & 1) + (k & 1)}, v{CSR+2*k}, v{CSR+2*k+1}")
    for pr in range(3):
        if k0 <= 4*pr < k1:
            p = KA + 8*pr
            b(f"v_permlane16_swap_b32 v{p}, v{p+2}\nv_permlane16_swap_b32 v{p+1}, v{p+3}")
def g1_store(b, layer, half, pre=None):
    hb = HB[layer] + half * 32 * HT
    b(f"s_mov_b32 s{sO}, {hb}\ns_mov_b32 s5, {hb + 4096}")
    if not opt("sp", 1) and pre: pre(b)
    for pr in range(3):
        if pr == 2 and opt("sp", 1):
            silu_part(b, 8, 14)
            if pre: pre(b)
        b(f"buffer_store_dwordx4 {v(KA+8*pr,4)}, v{vH4}, {WS}, s{sO if pr < 2 else 5} offen offset:{(pr&1)*2048} sc1 ;@hst")
    b(f"buffer_store_dwordx2 {v(KA+24,2)}, v{vH2}, {WS}, s5 offen offset:2048 sc1 ;@hst")

H0, C2, RS = 32, 192, 184
def g2_loads(layer, half):
    g = []
    for ks in range(28):
        grp = []
        if ks % 4 == 0: grp.append(f"    s_mov_b32 s{sB0}, {HB[layer] + half*32*HT + ks*1024}")
        grp.append(f"    buffer_load_dwordx4 {v(H0+4*ks,4)}, v{vHL}, {WS}, s{sB0} offen offset:{(ks%4)*1024} sc1 ;@h{half}_{ks}")
        g.append(grp)
    return g
def w2_loads():
    g = []
    for i in range(56):
        grp = []
        if i % 4 == 0: grp.append(f"    s_add_u32 s{sB1}, s{sW2B}, {(i//4)*4096}")
        grp.append(f"    buffer_load_dwordx4 {ac(4*i,4)}, v6, {WS}, s{sB1} offen offset:{(i%4)*1024} sc1 ;@a{i//2}")
        g.append(grp)
    return g
def g2_res(layer, half):
    RS = 144 if half == 0 else 184
    g = [[f"    s_mov_b32 s{sO}, {XP[1+2*layer] + half*0x100000}"] +
         [f"    buffer_load_dword v{RS+k}, v{vRX}, {WS}, s{sO} offen offset:{(k>>1)*1024 + (k&1)*256} sc1 ;@res" for k in range(4)]]
    return g
def g2_loop(b, half, bg, hooks={}, tg=None, nm=None, late=[]):
    bg = list(bg); late = list(late)
    if tg: b.add(flat(tg[28:]))
    LAG = opt("lag", 8)
    def mf(ks, mt):
        b(f"v_mfma_f32_32x32x16_bf16 {v(C2+16*mt,16)}, {ac((ks*2+mt)*4,4)}, {v(H0+4*ks,4)}, {'0' if ks == 0 else v(C2+16*mt,16)}")
    for ks in range(28):
        if ks in hooks: hooks[ks](b)
        b(f"@vm h{half}_{ks},a{ks}")
        if nm and ks in (0, 4, 8, 12, 16, 20, 24): stamp(b, f"{nm} k{ks}")
        mf(ks, 1)
        if bg: b.add(bg.pop(0))
        if ks < 28 - LAG:
            mf(ks, 0)
            if tg and ks >= 1: b.add(tg[ks-1])
    if "end" in hooks: hooks["end"](b)
    wr = [f"ds_write_b128 v{vE1+sg-1}, {v(C2+8*sg+4*q,4)} offset:{q*1024}" for sg in (2, 3) for q in range(2)]
    for n_, ks in enumerate(range(28 - LAG, 28)):
        mf(ks, 0)
        if tg: b.add(tg[ks-1])
        if n_ >= 2 and n_ % 2 == 0 or n_ == LAG - 1:
            if wr: b(wr.pop(0))
        if late: b.add(late.pop(0))
    for w_ in wr: b(w_)
    if tg: b.add(["    s_nop 7"] + tg[27])
    assert not bg and not late
def g2_post1(b, half):
    RS = 144 if half == 0 else 184
    b("@vm res")
    for k in range(4): b(f"v_lshlrev_b32 v{224+2*k}, 16, v{RS+k}\nv_and_b32 v{225+2*k}, s{sMSK}, v{RS+k}")
    b(f"ds_write_b128 v{vE1}, {v(C2+8,4)}\nds_write_b128 v{vE1}, {v(C2+12,4)} offset:1024")
    b("s_waitcnt lgkmcnt(0)\ns_barrier")
    for k in range(6): b(f"ds_read_b128 {v(160+4*k,4)}, v{vE0} offset:{k*1024} ;@q{k>>1}")
def g2_post2(b, layer, half):
    for s_ in range(3):
        b(f"@lg q{s_}")
        for k in range(4): b(f"v_pk_add_f32 {v(C2+2*k,2)}, {v(C2+2*k,2)}, {v(160+8*s_+2*k,2)}")
    for r in range(8): rnd(b, C2+r, C2+r)
    for k in range(4): b(f"v_pk_add_f32 {v(C2+2*k,2)}, {v(C2+2*k,2)}, {v(224+2*k,2)}")
    for k in range(4): b(f"v_cvt_pk_bf16_f32 v{240+k}, v{C2+2*k}, v{C2+2*k+1}")
    if layer == 0:
        b(f"@{{\ns_mov_b32 s{sO}, {XP[2] + half*0x100000}")
        for k in range(4):
            b(f"buffer_store_dword v{240+k}, v{vX2}, {WS}, s{sO} offen offset:{(k>>1)*1024 + (k&1)*256} sc1 ;@xst")
        b("@}\nv_mov_b32 v244, 0\nv_mov_b32 v245, 0")
        for k in range(4): b(f"v_dot2c_f32_bf16 v244, s{sONE}, v{240+k}\nv_dot2c_f32_bf16 v245, v{240+k}, v{240+k}")
        b("v_permlane32_swap_b32 v244, v245\nv_add_f32 v244, v244, v245")
        LST = LSCR + 24576
        b(f"v_lshrrev_b32 v246, 2, v6\nv_add_u32 v246, {LST}, v246\ns_lshl_b32 s5, s{sW}, 8\nv_add_u32 v247, s5, v246")
        b("ds_write_b32 v247, v244\ns_waitcnt lgkmcnt(0)\ns_barrier")
        b("ds_read2st64_b32 v[244:245], v246 offset0:0 offset1:1\nds_read2st64_b32 v[246:247], v246 offset0:2 offset1:3")
        b(f"s_mov_b32 s{sO}, {ST2 + half*8192}\ns_waitcnt lgkmcnt(0)\nv_pk_add_f32 v[244:245], v[244:245], v[246:247]\nv_add_f32 v244, v244, v245")
        b(f"@{{\ns_mov_b64 exec, s[{sEXQ}:{sEXQ+1}]\nbuffer_atomic_add_f32 v244, v{vSA}, {WS}, s{sO} offen sc1 ;@xst\ns_mov_b64 exec, -1\n@}}")
    else:
        b("v_permlane32_swap_b32 v240, v242\nv_permlane32_swap_b32 v241, v243")
        b(f"s_mov_b32 s{sO}, {half*0x100000}\nbuffer_store_dwordx4 v[240:243], v{vOUT}, {srd(SOUT)}, s{sO} offen {opt('ofl', 'x').replace('x', '').replace('_', ' ')}")

gcheck(M); conv_x(M, 0, 0)
M(f"v_mov_b32 v{vPL}, v204\nv_mov_b32 v{vSG}, v205")
M("s_waitcnt lgkmcnt(0)\ns_barrier")
stamp(M, "kgen done")
XT, XUP, XPF, HPF, HP2, HUP = opt("xt", 8), opt("xup", 14), opt("xpf", 16), opt("hpf", 14), opt("hp2", 6), opt("hup", 16)
D1, D2, D3, D4, D5 = opt("d1", 4), opt("d2", 5), opt("d3", 8), opt("d4", 0), opt("d5", 0)
M.add(interleave(gen(t_loads, range(4)), take(D1))); u_pad(M)
for layer in range(2):
    L0 = layer == 0
    cA, cB = 4*layer, 4*layer + 1
    xa, xb, ha, hb_ = g1_loads(layer, 0), g1_loads(layer, 1), g2_loads(layer, 0), g2_loads(layer, 1)
    if L0:
        vm_ = take(D2); tg_ = t_groups(5)[16:]
        conv_half(M, layer, 0, bg=[tg_[k] + (vm_[k//2] if (k % 2 == 0 and k//2 < len(vm_)) else []) for k in range(16)])
        conv_x(M, 0, 1)
        M.add(interleave(gen(conv_ab), take(D3), start=1))
    else:
        conv_half(M, layer, 0, pre_barrier="@vm xst", after_ln=lambda b: sig_all(b, 3, "xst", barrier=False))
        ab = interleave(gen(conv_ab), [gen(check, "all", 3) + gen(conv_inputs, 1, 1)], start=opt("abc", 65), every=1)
        M.add(interleave(ab, [gen(poll_all, 3)], start=opt("abp", 24), every=1))
    sig_all(M, cA, "cst")
    stamp(M, f"L{layer} conv0 signalled")
    if not L0:
        if opt("lateC", 0):
            conv_half(M, layer, 1, after_mfma=lambda b: poll_all(b, cA))
            g1_pre(M); check(M, "all", cA)
            M.add(flat(xa[:XUP]))
        else:
            conv_half(M, layer, 1, after_ln=lambda b: poll_all(b, cA), after_mfma=lambda b: check(b, "all", cA), tailbg=xa[:XT])
            g1_pre(M)
            M.add(flat(xa[XT:XUP]))
    else:
        assert not wq
        wq += w2_loads()
        sg_ = gen(setup_g2)
        conv_half(M, layer, 1, pre_barrier2="@vm w1", bg=[sg_[k:k+2] for k in range(0, len(sg_), 2)])
        poll_all(M, cA)
        cs_ = gen(colsum); cc = opt("cc", 60)
        M.add(interleave(cs_[:cc], take(D5), start=20))
        check(M, "all", cA)
        M.add(interleave(cs_[cc:], xa[:XUP]))
        g1_pre(M)
        M("@lg cs")
    stamp(M, f"L{layer} g1A ready")
    w2 = wq
    def mixw(x_, w_):
        if len(x_) + len(w_) <= 32: return x_ + w_
        x_ = list(x_); w_ = list(w_); o = []
        while x_ or w_:
            for q in range(5):
                src = x_ if (x_ and q < 4) else w_
                if src: o.append(src.pop(0))
                elif x_: o.append(x_.pop(0))
        return o + [[]] * (40 - len(o))
    XP1, HP1 = opt("xp1", 0), opt("hp1", 0)
    g1_loop(M, 0, mixw(xa[XUP:], take(opt("wa", 12))), {(opt("sg00", 0) if L0 else opt("sg0", 2)): lambda b: sig_all(b, cB, "cst")},
            slots=(None if L0 else [(0, 2, 4, 6), (0, 1, 3, 4, 6), (0, 1, 2, 3, 4, 5, 6)][opt("xs", 0)]))
    stamp(M, f"L{layer} g1A loop")
    poll_all(M, cB)
    g1_post1(M, 0, take(opt("wp", 14)), lambda b: check(b, "all", cB), xb[:XP1])
    stamp(M, f"L{layer} g1A post1")
    M.add(interleave(gen(g1_post2, layer, 0), xb[XP1:XPF]))
    g1_store(M, layer, 0, g1_pre)
    stamp(M, f"L{layer} g1A stored")
    if opt("fast", 0) and not L0:
        c1_, c2_ = opt("fc1", 5), opt("fc2", 16)
        n1 = 4 * (8 - c1_)
        g1_loop(M, 1, xb[XPF:] + [[]] * (4*c1_ - (32 - XPF)) + ha[:n1],
                {opt("sg1", 3): lambda b: sig_grp(b, 2*layer, "hst"), c1_ - 1: lambda b: poll_grp(b, 2*layer), c1_: lambda b: check(b, "grp", 2*layer)})
        stamp(M, f"L{layer} g1B loop")
        g1_post1(M, 1, [], lambda b: None, [])
        stamp(M, f"L{layer} g1B post1")
        M.add(interleave(gen(g1_post2, layer, 1), g2_res(layer, 0) + ha[n1:HPF]))
        g1_store(M, layer, 1)
        stamp(M, f"L{layer} g1B stored")
        rest = ha[HPF:]
        n2 = 28 - c2_
        g2_loop(M, 0, rest + [[]] * (c2_ - len(rest)) + hb_[:n2],
                {opt("sg2", 10): lambda b: sig_grp(b, 2*layer+1, "hst"), c2_ - 5: lambda b: poll_grp(b, 2*layer+1), c2_: lambda b: check(b, "grp", 2*layer+1)},
                late=hb_[n2:min(20, n2+8)])
        stamp(M, f"L{layer} g2A loop")
        g2_post1(M, 0); g2_post2(M, layer, 0)
        HP2_ = HUP = min(20, n2 + 8)
    else:
        g1_loop(M, 1, [[]] * opt("xsk", 2) + mixw(xb[XPF:], take(XPF - opt("xsk", 2))), {opt("sg1", 3): lambda b: sig_grp(b, 2*layer, "hst")})
        stamp(M, f"L{layer} g1B loop")
        poll_grp(M, 2*layer)
        g1_post1(M, 1, take(opt("wp", 14)), lambda b: check(b, "grp", 2*layer), ha[:HP1])
        stamp(M, f"L{layer} g1B post1")
        M.add(interleave(gen(g1_post2, layer, 1), g2_res(layer, 0) + ha[HP1:HPF]))
        g1_store(M, layer, 1)
        stamp(M, f"L{layer} g1B stored")
        rest = ha[HPF:]
        if w2:
            mix = []
            while rest or w2:
                mix.append((rest.pop(0) if rest else []) + (w2.pop(0) if w2 else []))
            rest = mix
        HP0 = opt("hp00", 0) if L0 else opt("hp0", 8)
        g2_loop(M, 0, [[]] * opt("hsk", 2) + rest, {opt("sg2", 10): lambda b: sig_grp(b, 2*layer+1, "hst"), (opt("pg2", 22) if HP0 else 27): lambda b: poll_grp(b, 2*layer+1),
                          "end": (lambda b: check(b, "grp", 2*layer+1) if HP0 else None)}, nm=("L1 g2A" if layer and opt("fine", 0) == 1 else None), late=hb_[:HP0])
        stamp(M, f"L{layer} g2A loop")
        if HP0: M.add(interleave(gen(g2_post1, 0) + gen(g2_post2, layer, 0), hb_[HP0:HP0+HP2], end=opt("hpe", 40)))
        else:
            if opt("lateA", 0) and L0:
                g2_post1(M, 0); g2_post2(M, layer, 0); check(M, "grp", 2*layer+1); M.add(flat(hb_[:HP2]))
            else:
                g2_post1(M, 0); check(M, "grp", 2*layer+1)
                M.add(interleave(gen(g2_post2, layer, 0), hb_[:HP2], end=opt("hpe", 30)))
        HP2_ = HP0 + HP2
    if L0 and opt("cpf", 1): M("v_add_u32 v5, s90, v6\nglobal_load_dwordx4 v[252:255], v5, s[42:43]")
    stamp(M, f"L{layer} g2A stored")
    M.add(flat(hb_[HP2_:HUP]))
    if L0:
        g2_loop(M, 1, hb_[HUP:] + g2_res(layer, 1), {opt("sg3", 4): lambda b: sig_all(b, 2, "xst"), 24: lambda b: poll_all(b, 2)}, tg=t_groups())
        stamp(M, f"L{layer} g2B loop")
        g2_post1(M, 1)
        if opt("lateB", 0):
            poll_all(M, 2); g2_post2(M, layer, 1); check(M, "all", 2); conv_inputs(M, 1, 0)
        else:
            check(M, "all", 2); conv_inputs(M, 1, 0)
            g2_post2(M, layer, 1)
        stamp(M, f"L{layer} g2B stored")
        u_pad(M)
    else:
        M("s_barrier")
        g2_loop(M, 1, hb_[HUP:] + g2_res(layer, 1), nm=("L1 g2B" if opt("fine", 0) == 1 else None))
        stamp(M, f"L{layer} g2B loop")
        g2_post1(M, 1); g2_post2(M, layer, 1)
        stamp(M, f"L{layer} g2B stored")
if STAMP:
    M(f"s_cmp_lg_u32 s{sW}, 0\ns_cbranch_scc1 {DONE}")
    M(f"v_mbcnt_lo_u32_b32 v5, -1, 0\nv_mbcnt_hi_u32_b32 v5, -1, v5\nv_lshlrev_b32 v5, 2, v5\ns_lshl_b32 s5, s2, 8\ns_add_u32 s5, s5, {0x1800000 + 0x400000}")
    M(f"buffer_store_dword v7, v5, {WS}, s5 offen")
M.label(DONE)
M("s_endpgm")

a = Asm()
a.kernel(NAME + "_kernel", vgpr=512, sgpr=102, accum=256)
lines = resolve(strip_marks(M.l)) + tail.l + [".Lkend:"]
lines, added = hazard.fix(lines)
a.lines += lines
print("nops added", added, "lines", len(a.lines), file=sys.stderr)
hdr = "".join(l for l in open(f"cdna_kernels/{NAME}.s.ref").readlines() if l.startswith(";") and "@launch" not in l and "Override" not in l and "grid=ceil" not in l)
a.launches = [f"; @launch grid=(256,1,1) block=(256,1,1) lds={LDS_BYTES}"]
open(OUT, "w").write(a.text(hdr))
json.dump(STAMPS, open("work/" + OUT.split("/")[-1] + ".stamps.json", "w"))
```

```python
import sys, struct, json
sys.path.insert(0, "work")
from asmgen import Asm
import hazard
from sched import resolve, interleave, strip_marks
NAME = "interleave_layers__ssm_conv_s4d__dense_activation_silu__prompt"
STAMP = "--stamp" in sys.argv
OPT = dict(x.lstrip("-").split("=") for x in sys.argv[1:] if x.startswith("--") and "=" in x)
def opt(k, d): return type(d)(OPT.get(k, d))
OUT = [x for x in sys.argv[1:] if not x.startswith("--")]
OUT = OUT[0] if OUT else f"cdna_kernels/{NAME}.s"
def f2u(x): return struct.unpack("<I", struct.pack("<f", x))[0]
LOG2E = 1.4426950408889634
GCNT = 6 * 0x8000
ST0 = 0x80000; ST2 = 0x84000
W2F = 0x100000
W1F = 0x1900000
XP = [0x1700000, 0x300000, 0x500000, 0x700000]
HB = [0x900000, 0x1000000]
WS_BYTES = 0x2000000
HT = 114688
LPK = 114688; PKS = 8256; LCS = 131200; LSCR = 131712
LU = LSCR; US = 4608; LEX = LSCR + 9216
ES = 28672; LGT = LEX
LDS_BYTES = 163840
SWS, SW1, SW2, SOUT = 44, 48, 52, 56
sW, sCPI, sRT, sCT, sLT, sDT, sNON, sGC = 60, 61, 62, 63, 64, 65, 66, 67
sDK, sONE, sMSK, sINV, sEPS, sNL2E = 68, 70, 71, 72, 74, 75
sEXS = 76
sB0, sB1, sO, sW2B, sGS = 78, 79, 80, 81, 82
sSTAMP = 84
sEXQ = 92
sEXW = 100
SPIN = 60000
vOUT, vPL, vSG, vPD, vONE = 0, 1, 2, 3, 4
vCX, vCS, vUW, vUR, vTB, vEW, vER, vGX, vWA, vXW, vXR, vSW, vSR, vCSA, vH4, vH2, vHL, vRX, vX2, vE1, vE0, vSA = \
    8, 9, 10, 11, 12, 13, 14, 15, 16, 17, 18, 19, 20, 21, 22, 23, 24, 25, 26, 27, 30, 31
vDMA = 24

HSC = "sc1" if opt("hsc", 1) else opt("hfl", "")
GFLAG = opt("gflag", 0)
if opt("samehb", 0): HB = [HB[0], HB[0]]
NSH = opt('nsh', 8)
class Buf:
    def __init__(self): self.l = []
    def __call__(self, s):
        for ln in s.strip("\n").split("\n"): self.l.append("    " + ln.strip())
    def label(self, n): self.l.append(n + ":")
    def add(self, lines): self.l += lines
uid = [0]
def lab(b="L"):
    uid[0] += 1; return f".{b}_{uid[0]}"
def srd(n): return f"s[{n}:{n+3}]"
def v(n, k=1): return f"v{n}" if k == 1 else f"v[{n}:{n+k-1}]"
def ac(n, k=1): return f"a{n}" if k == 1 else f"a[{n}:{n+k-1}]"
def flat(groups): return [l for g in groups for l in g]
def gen(fn, *args, **kw):
    t = Buf(); fn(t, *args, **kw); return t.l
WS = srd(SWS)
tail = Buf()
STAMPS = []
def stamp(b, name):
    if not STAMP: return
    if opt("light", 0) and name not in ("start", "L1 g2B stored"): return
    i = len(STAMPS); STAMPS.append(name)
    assert i < 64
    b(f"@{{\n{'s_memtime' if opt('cyc', 0) else 's_memrealtime'} s[{sSTAMP}:{sSTAMP+1}]\ns_waitcnt lgkmcnt(0)\nv_writelane_b32 v7, s{sSTAMP}, {i}\n@}}")

FG = opt("fg", 1)
sGP = 91
GADDR = "v_mov_b32 v5, 0" if FG else f"v_and_b32 v5, 0x300, v{vPL}"
GT = 8 if FG else 16
def poll_all(b, cnt):
    b(f"s_mov_b32 s{sO}, {cnt*0x8000}\nbuffer_load_dword v{vPD}, v{vPL}, {WS}, s{sO} offen sc1 ;@poll")
def poll_grp(b, idx):
    b(f"@{{\ns_add_u32 s{sO}, s{sGP}, {idx*16*1024}\n{GADDR}\nbuffer_load_dword v{vPD}, v5, {WS}, s{sO} offen sc1 ;@poll\n@}}")
def check(b, kind, idx):
    slow = lab("slow"); back = lab("back"); lp = lab("lp")
    b("@vm poll")
    b(f"@{{\nv_cmp_gt_u32 vcc, {GT if kind == 'grp' else 256 // NSH}, v{vPD}\ns_cbranch_vccnz {slow}")
    b.label(back); b("@}")
    tail.label(slow)
    tail(f"s_mov_b32 s10, {SPIN}")
    if kind == "all": tail(f"s_mov_b32 s11, {idx*0x8000}\nv_mov_b32 v5, v{vPL}")
    else: tail(f"s_add_u32 s11, s{sGP}, {idx*16*1024}\n{GADDR}")
    tgt = GT if kind == 'grp' else 256 // NSH
    if opt("pp", 1):
        tail(f"buffer_load_dword v{vPD}, v5, {WS}, s11 offen sc1\ns_sleep {opt('ppd', 4)}")
        tail.label(lp)
        tail(f"buffer_load_dword v4, v5, {WS}, s11 offen sc1\ns_waitcnt vmcnt(1)\nv_cmp_gt_u32 vcc, {tgt}, v{vPD}\ns_cbranch_vccz {back}")
        tail(f"buffer_load_dword v{vPD}, v5, {WS}, s11 offen sc1\ns_waitcnt vmcnt(1)\nv_cmp_gt_u32 vcc, {tgt}, v4\ns_cbranch_vccz {back}")
    else:
        tail.label(lp)
        tail(f"buffer_load_dword v{vPD}, v5, {WS}, s11 offen sc1\ns_waitcnt vmcnt(0)")
        tail(f"v_cmp_gt_u32 vcc, {tgt}, v{vPD}\ns_cbranch_vccz {back}")
    tail(f"s_sub_u32 s10, s10, 1\ns_cmp_lg_u32 s10, 0\ns_cbranch_scc1 {lp}\ns_branch {back}")
def sig_all(b, cnt, tag, barrier=True):
    b(f"@vm {tag}\n@{{\n{'s_barrier' if barrier else 's_nop 0'}\ns_mov_b32 s{sO}, {cnt*0x8000}\ns_mov_b64 exec, s[{sEXS}:{sEXS+1}]")
    b(f"v_mov_b32 v5, 1\nbuffer_atomic_add v5, v{vSG}, {WS}, s{sO} offen sc1\ns_mov_b64 exec, -1\n@}}")
def sig_grp(b, idx, tag):
    b(f"@vm {tag}\n@{{\ns_add_u32 s{sO}, s{sGS}, {idx*16*1024}\ns_mov_b64 exec, 1")
    if GFLAG: b(f"buffer_store_dword v{vONE}, off, {WS}, s{sO} {HSC}\ns_mov_b64 exec, -1\ns_barrier\n@}}")
    else: b(f"v_mov_b32 v5, 1\nbuffer_atomic_add v5, off, {WS}, s{sO} sc1\ns_mov_b64 exec, -1\ns_barrier\n@}}")
def xsum(b, regs, tmp, steps):
    for s in steps:
        for i, r in enumerate(regs): b(f"v_mov_b32 v{tmp+i}, v{r}")
        for i, r in enumerate(regs): b(f"v_permlane{s}_swap_b32 v{r}, v{tmp+i}")
        for i, r in enumerate(regs): b(f"v_add_f32 v{r}, v{r}, v{tmp+i}")
def rnd(b, d, s): b(f"v_cvt_pk_bf16_f32 v{d}, 0, v{s}")

M = Buf()
DONE = ".Ldone"
M.label(".Lkstart")
M("s_cmp_ge_u32 s2, 256")
M(f"s_cbranch_scc1 {DONE}")
M("s_load_dwordx16 s[16:31], s[0:1], 0\ns_load_dwordx8 s[32:39], s[0:1], 64\ns_load_dwordx2 s[40:41], s[0:1], 96")
M("s_memrealtime s[14:15]")
M("s_getpc_b64 s[42:43]")
M("v_and_b32 v1, 63, v0\nv_lshlrev_b32 v2, 4, v1\nv_lshrrev_b32 v3, 6, v0")
M(f"v_readfirstlane_b32 s{sW}, v3")
if STAMP: M("v_mov_b32 v7, 0")
M("s_and_b32 s3, s2, 7\ns_lshr_b32 s4, s2, 3")
M(f"s_lshl_b32 s5, s4, 2\ns_add_u32 s5, s5, s{sW}\ns_min_u32 s5, s5, ((.Lkend-.Lkstart-128)>>10)-1\ns_lshl_b32 s5, s5, 10\nv_add_u32 v5, s5, v2")
M("s_mov_b32 s90, s5")
if opt("cp0", 0) == 0: M("global_load_dwordx4 v[200:203], v5, s[42:43]")
M(f"s_lshl_b32 s{sCPI}, s3, 5\ns_add_u32 s{sCPI}, s{sCPI}, s4")
M(f"s_and_b32 s{sCT}, s4, 15")
M(f"s_lshl_b32 s{sRT}, s3, 1\ns_lshr_b32 s5, s4, 4\ns_add_u32 s{sRT}, s{sRT}, s5")
M(f"s_lshl_b32 s{sLT}, s{sRT}, 1\ns_bfe_u32 s5, s4, 0x10003\ns_add_u32 s{sLT}, s{sLT}, s5\ns_and_b32 s{sDT}, s4, 7")
M(f"s_lshl_b32 s{sGC}, s{sRT}, 10\ns_add_u32 s{sGC}, s{sGC}, {GCNT}\ns_lshl_b32 s5, s{sW}, 8\ns_add_u32 s{sGS}, s{sGC}, s5")
M(f"s_mov_b32 s{sONE}, 0x3f803f80\ns_mov_b32 s{sMSK}, 0xffff0000\ns_mov_b32 s{sINV}, {f2u(1/512):#x}\ns_mov_b32 s{sINV+1}, {f2u(1/512):#x}")
M(f"s_mov_b32 s{sEPS}, {f2u(1e-5):#x}\ns_mov_b32 s{sNL2E}, {f2u(-LOG2E):#x}")
M(f"s_lshl_b32 s5, s{sW}, 1\ns_lshl_b32 s{sEXS}, 3, s5\ns_mov_b32 s{sEXS+1}, 0")
M(f"s_lshl_b32 s5, s{sW}, 2\ns_lshl_b32 s{sEXQ}, 0x000f000f, s5\ns_mov_b32 s{sEXQ+1}, s{sEXQ}")
M(f"s_lshl_b32 s5, s2, 13\ns_lshl_b32 s6, s{sW}, 11\ns_add_u32 s5, s5, s6\nv_add_u32 v62, s5, v2")
M(f"s_lshl_b32 s5, s{sCPI}, 9\nv_lshlrev_b32 v63, 1, v0\nv_add_u32 v63, s5, v63")
M(f"s_lshr_b32 s5, s2, 2\ns_lshl_b32 s5, s5, 15\ns_and_b32 s6, s2, 3\ns_lshl_b32 s6, s6, 8\ns_add_u32 s5, s5, s6\ns_lshl_b32 s6, s{sW}, 6\ns_add_u32 s5, s5, s6")
M("v_and_b32 v5, 7, v1\nv_lshlrev_b32 v64, 12, v5\nv_lshrrev_b32 v6, 3, v1\nv_lshl_add_u32 v64, v6, 3, v64\nv_add_u32 v64, s5, v64")
M("v_lshlrev_b32 v65, 10, v6\nv_lshl_add_u32 v65, v5, 4, v65\nv_lshlrev_b32 v207, 9, v6\nv_lshl_add_u32 v207, v5, 4, v207")
M(f"s_lshl_b32 s94, s2, 2\ns_add_u32 s94, s94, s{sW}\ns_min_u32 s94, s94, 895")
M("s_mul_i32 s95, s94, 2341\ns_lshr_b32 s95, s95, 16\ns_mul_i32 s5, s95, 28\ns_sub_u32 s96, s94, s5")
M("s_and_b32 s5, s95, 3\ns_mul_i32 s5, s5, 448\ns_lshl_b32 s6, s96, 4\ns_add_u32 s5, s5, s6\ns_lshl_b32 s7, s5, 10\ns_lshr_b32 s5, s95, 2\ns_lshl_b32 s5, s5, 7\ns_add_u32 s7, s7, s5")
M(f"s_lshl_b32 s9, s{sW}, 12\ns_add_u32 s9, s9, {LPK}")
M(f"s_mov_b32 s{SWS+2}, {WS_BYTES:#x}\ns_mov_b32 s{SWS+3}, 0x20000")
M("s_waitcnt lgkmcnt(0)")
stamp(M, "start")
if opt("cp0", 0) == 3:
    M(f"s_lshl_b32 s5, s4, 2\ns_add_u32 s5, s5, s{sW}\ns_mul_i32 s5, s5, 384\ns_min_u32 s5, s5, .Lkend-.Lkstart-512")
    M("s_add_u32 s6, s5, 128\ns_add_u32 s10, s5, 256\ns_load_dword s86, s[42:43], s5\ns_load_dword s87, s[42:43], s6\ns_load_dword s10, s[42:43], s10")
M(f"s_mov_b32 s{SWS}, s40\ns_mov_b32 s{SWS+1}, s41")
n0 = lab("n0"); n1 = lab("n1")
M(f"s_cmp_ge_u32 s2, 128\ns_cbranch_scc1 {n1}")
M(f"s_or_b32 s5, s2, s{sW}\ns_cmp_lg_u32 s5, 0\ns_cbranch_scc1 {n0}")
M("s_or_b32 s14, s14, 1\nv_mov_b32 v5, s14\nv_lshlrev_b32 v6, 2, v1\nglobal_store_dword v6, v5, s[38:39] sc1 ;@!")
M.label(n0)
M(f"s_lshl_b32 s5, s2, 2\ns_add_u32 s5, s5, s{sW}\ns_lshl_b32 s6, s5, 9\ns_lshl_b32 s5, s5, 5\ns_add_u32 s5, s5, {ST2}")
M("v_mov_b32 v4, 0\nv_mov_b32 v5, 0\nv_lshlrev_b32 v6, 3, v1\nv_lshlrev_b32 v8, 2, v1")
M(f"buffer_store_dwordx2 v[4:5], v6, {WS}, s6 offen sc1 ;@!\ns_mov_b64 exec, 0xff\nbuffer_store_dword v5, v8, {WS}, s5 offen sc1 ;@!\ns_mov_b64 exec, -1")
M.label(n1)
for i, dst in enumerate([216, 220, 218, 222]): M(f"global_load_dwordx2 {v(dst,2)}, v64, s[16:17] offset:{i*1024} ;@b1")
M("global_load_dwordx4 v[32:35], v62, s[16:17] ;@b1\nglobal_load_dwordx4 v[36:39], v62, s[16:17] offset:1024 ;@b1")
for sd, sb, nb in [(SW1, 32, 512*1792*2), (SW2, 34, 512*1792*2), (SOUT, 36, 2048*512*2)]:
    M(f"s_mov_b32 s{sd}, s{sb}\ns_mov_b32 s{sd+1}, s{sb+1}\ns_mov_b32 s{sd+2}, {nb:#x}\ns_mov_b32 s{sd+3}, 0x20000")
M(f"s_mov_b32 m0, s9\ns_add_u32 s5, s7, 8192\nbuffer_load_dwordx4 v65, {srd(SW2)}, s7 offen lds ;@b2\ns_add_u32 m0, s9, 1024\ns_nop 0\nbuffer_load_dwordx4 v65, {srd(SW2)}, s5 offen lds ;@b2")
for i in range(4): M(f"global_load_ushort v{48+i}, v63, s[{18+2*i}:{19+2*i}] ;@par")
M(f"s_lshl_b32 s5, s{sCPI}, 2")
M("s_load_dword s12, s[26:27], s5\ns_load_dword s13, s[28:29], s5")
if opt("tlb", 0):
    M(f"v_lshlrev_b32 v5, 20, v1\ns_mov_b64 exec, 0x7ffffff\ns_mov_b32 s5, 0xc0000\nbuffer_load_dword v240, v5, {WS}, s5 offen sc1\ns_mov_b64 exec, 3")
    M(f"buffer_load_dword v243, v5, {srd(SOUT)}, 0 offen\ns_mov_b64 exec, -1")
M("v_and_b32 v60, 15, v1\nv_lshrrev_b32 v61, 4, v1")
sD0, sD1 = 88, 89
sRX, sRH = 16, 24
M(f"s_mul_i32 s{sD0}, s{sW}, {128*3584}\ns_mul_i32 s5, s{sCT}, 224\ns_add_u32 s{sD0}, s{sD0}, s5\ns_mul_i32 s{sD1}, s{sW}, 28672")
dma = [[f"    s_add_u32 m0, s{sD1}, {p*1024}", f"    s_add_u32 s{sB1}, s{sD0}, {(p//7)*32*3584}", f"    buffer_load_dwordx4 v{vDMA+p%7}, {srd(SW1)}, s{sB1} offen lds ;@w1"] for p in range(28)]
dma = dma[17:] + dma[:17]
def setup_dma(b):
    b(f"s_and_b32 s7, s{sCT}, 1\ns_lshl_b32 s8, s7, 5\ns_mul_i32 s7, s7, 192\ns_sub_u32 s7, 192, s7")
    b("v_and_b32 v64, 3, v1\nv_lshlrev_b32 v64, 4, v64\nv_add_u32 v65, s8, v64\nv_xor_b32 v66, 32, v64")
    b(f"v_add_u32 v66, s8, v66\nv_add_u32 v66, {3584-192}, v66")
    b("v_and_b32 v67, 16, v64\nv_add_u32 v67, s7, v67\nv_lshrrev_b32 v64, 5, v64\nv_mul_u32_u24 v64, 3584, v64")
    b(f"v_add_u32 v67, v67, v64\nv_subrev_u32 v67, {6*64}, v67\nv_lshrrev_b32 v64, 2, v1")
    for k in range(7):
        b(f"v_add_u32 v5, {16*k}, v64\nv_mul_u32_u24 v6, 9363, v5\nv_lshrrev_b32 v6, 16, v6\nv_mul_u32_u24 v62, 7, v6\nv_sub_u32 v5, v5, v62")
        b(f"@{{\nv_cmp_lt_u32 vcc, 2, v5\nv_mul_u32_u24 v6, 7168, v6\nv_lshl_add_u32 v6, v5, 6, v6\nv_cndmask_b32 v62, v65, v66, vcc\nv_cmp_eq_u32 vcc, 6, v5\ns_nop 1\nv_cndmask_b32 v62, v62, v67, vcc\n@}}")
        b(f"v_add_u32 v{vDMA+k}, v6, v62")
def setup(b):
    b(f"s_and_b32 s5, s{sW}, 1\ns_lshr_b32 s6, s{sW}, 1")
    b(f"v_bfe_u32 v{vCX}, v1, 2, 2\nv_lshlrev_b32 v{vCX}, 16, v{vCX}\nv_and_b32 v5, 3, v1\nv_lshl_add_u32 v{vCX}, v5, 6, v{vCX}\nv_lshl_add_u32 v{vCX}, v61, 4, v{vCX}")
    b(f"s_lshl_b32 s7, s{sW}, 18\ns_lshl_b32 s8, s{sCPI}, 8\ns_add_u32 s7, s7, s8\nv_add_u32 v{vCX}, s7, v{vCX}")
    b(f"v_lshlrev_b32 v{vCS}, 7, v60\nv_lshl_add_u32 v{vCS}, v61, 5, v{vCS}\ns_lshl_b32 s7, s{sW}, 11\nv_add_u32 v{vCS}, s7, v{vCS}")
    b(f"v_lshlrev_b32 v5, 5, v60\nv_lshl_add_u32 v{vUW}, v61, 3, v5\ns_lshl_b32 s7, s{sW}, 9\ns_add_u32 s7, s7, {LU+512}\nv_add_u32 v{vUW}, s7, v{vUW}")
    b(f"v_lshl_add_u32 v{vUR}, v61, 4, v5\ns_mul_i32 s7, s6, {US}\ns_lshl_b32 s8, s5, 8\ns_sub_u32 s7, s7, s8\ns_add_u32 s7, s7, {LU}\nv_add_u32 v{vUR}, s7, v{vUR}")
    b(f"v_lshlrev_b32 v5, 3, v61\nv_sub_u32 v5, v60, v5\nv_lshlrev_b32 v5, 2, v5\ns_mul_i32 s7, s6, {PKS}\ns_lshl_b32 s8, s5, 9\ns_add_u32 s7, s7, s8\ns_add_u32 s7, s7, {LPK+26*4}\nv_add_u32 v{vTB}, s7, v5")
    b(f"s_lshl_b32 s7, s{sW}, 10\ns_add_u32 s7, s7, {LEX}\nv_add_u32 v{vEW}, s7, v2\ns_lshl_b32 s7, s{sW}, 12\ns_add_u32 s7, s7, {LEX}\nv_add_u32 v{vER}, s7, v2")
    b(f"v_lshlrev_b32 v{vGX}, 9, v61\nv_lshl_add_u32 v{vGX}, v60, 3, v{vGX}\ns_lshl_b32 s7, s{sRT}, 16\ns_lshl_b32 s8, s5, 7\ns_add_u32 s7, s7, s8\ns_lshl_b32 s8, s6, 15\ns_add_u32 s7, s7, s8\nv_add_u32 v{vGX}, s7, v{vGX}")
    b(f"v_lshlrev_b32 v5, 2, v61\nv_bfe_u32 v6, v1, 2, 2\nv_add_u32 v5, v5, v6\nv_mul_u32_u24 v5, 224, v5\nv_and_b32 v6, 3, v1\nv_lshl_add_u32 v5, v6, 3, v5\ns_mul_i32 s7, s6, {256*224}\nv_add_u32 v{vWA}, s7, v5")
    b(f"s_mul_i32 s7, s{sW}, 7680\ns_add_u32 s7, s7, {LSCR}\nv_add_u32 v{vXW}, s7, v2")
    b(f"v_lshrrev_b32 v5, 5, v1\nv_xor_b32 v5, s6, v5\nv_lshlrev_b32 v5, 8, v5\nv_lshl_add_u32 v5, v1, 2, v5\ns_lshl_b32 s7, s5, 9\ns_add_u32 s7, s7, {LSCR+30720}\nv_add_u32 v{vSW}, s7, v5")
    b(f"s_lshl_b32 s8, s6, 8\ns_add_u32 s7, s7, s8\nv_lshlrev_b32 v5, 2, v60\nv_add_u32 v{vSR}, s7, v5")
    b(f"s_xor_b32 s7, s{sW}, 2\ns_mul_i32 s7, s7, 7680\ns_add_u32 s7, s7, {LSCR}\nv_add_u32 v{vXR}, s7, v2")
    b(f"v_lshlrev_b32 v{vCSA}, 4, v61\nv_add_u32 v{vCSA}, {LCS}, v{vCSA}")
    b(f"s_lshl_b32 s7, s{sRT}, 1\ns_add_u32 s7, s7, s5\ns_mul_i32 s7, s7, {HT}\ns_mul_i32 s8, s{sCT}, 7168\ns_add_u32 s7, s7, s8\ns_lshl_b32 s8, s6, 8\ns_add_u32 s7, s7, s8")
    b(f"v_and_b32 v5, 1, v61\nv_lshrrev_b32 v6, 1, v61\nv_lshlrev_b32 v{vH2}, 9, v6\nv_lshl_add_u32 v{vH2}, v60, 4, v{vH2}\nv_add_u32 v{vH2}, s7, v{vH2}\nv_lshl_add_u32 v{vH4}, v5, 10, v{vH2}\nv_lshl_add_u32 v{vH2}, v5, 3, v{vH2}")
    b(f"s_and_b32 s7, s{sCT}, 1\ns_lshl_b32 s8, s7, 10\nv_add_u32 v{vH4}, s8, v{vH4}\ns_mul_i32 s8, s7, 6144\nv_subrev_u32 v{vH2}, s8, v{vH2}")
    b(f"v_and_b32 v204, {NSH-1}, v1\nv_lshlrev_b32 v204, 8, v204\ns_lshl_b32 s7, s3, 12\nv_add_u32 v204, s7, v204")
    b(f"v_lshlrev_b32 v205, 12, v1\ns_and_b32 s7, s{sCT}, {NSH-1}\ns_lshl_b32 s7, s7, 8\nv_add_u32 v205, s7, v205\nv_mov_b32 v{vONE}, 1")
    b(f"s_load_dword s{sNON}, s[38:39], 0")
    for k in range(9):
        b(f"v_lshlrev_b32 v5, 3, v0\nv_add_u32 v5, {k-1}, v5")
        if k == 0: b("v_max_i32 v5, 0, v5")
        b("v_cvt_f32_u32 v5, v5\nv_cvt_pk_bf16_f32 v5, 0, v5\nv_cvt_u32_f32 v6, v5")
        b("v_lshrrev_b32 v5, 23, v5\nv_subrev_u32 v5, 134, v5\nv_med3_i32 v5, v5, 0, 3")
        b("v_lshrrev_b32 v62, 7, v6\nv_and_b32 v63, 7, v6\nv_lshl_or_b32 v62, v62, 3, v63\nv_lshrrev_b32 v62, v5, v62\nv_lshl_add_u32 v62, v5, 3, v62")
        b(f"v_bfe_u32 v6, v6, 3, 4\nv_lshlrev_b32 v6, 2, v6\nv_lshl_add_u32 v6, v62, 6, v6\nv_add_u32 v{IDX+k}, {LGT}, v6")
def setup_g2(b):
    b("v_mbcnt_lo_u32_b32 v248, -1, 0\nv_mbcnt_hi_u32_b32 v248, -1, v248\nv_lshlrev_b32 v6, 4, v248")
    b(f"s_mul_i32 s7, s{sLT}, {HT}\ns_mul_i32 s8, s{sW}, 28672\ns_add_u32 s7, s7, s8\nv_add_u32 v{vHL}, s7, v6")
    b("v_and_b32 v249, 15, v248\nv_lshlrev_b32 v249, 1, v249\nv_bfe_u32 v5, v248, 4, 1\nv_add_u32 v249, v249, v5\nv_lshrrev_b32 v250, 5, v248")
    b(f"s_lshr_b32 s7, s{sLT}, 1\ns_lshl_b32 s7, s7, 16\ns_and_b32 s8, s{sLT}, 1\ns_lshl_b32 s8, s8, 7\ns_add_u32 s7, s7, s8\ns_lshl_b32 s8, s{sDT}, 13\ns_add_u32 s7, s7, s8\ns_lshl_b32 s8, s{sW}, 11\ns_add_u32 s7, s7, s8")
    b(f"v_lshlrev_b32 v{vX2}, 9, v250\nv_lshl_add_u32 v{vX2}, v249, 2, v{vX2}\nv_add_u32 v{vX2}, s7, v{vX2}\ns_and_b32 s8, s{sDT}, 4\nv_xor_b32 v{vRX}, s8, v{vX2}")
    for sg in range(1, 4):
        b(f"s_xor_b32 s7, s{sW}, {sg}\ns_mul_i32 s7, s7, 6144\ns_add_u32 s7, s7, {LSCR+(sg-1)*2048}\nv_add_u32 v{vE1+sg-1}, s7, v6")
    b(f"s_mul_i32 s7, s{sW}, 6144\ns_add_u32 s7, s7, {LSCR}\nv_add_u32 v{vE0}, s7, v6")
    b(f"v_lshlrev_b32 v{vSA}, 3, v249\nv_lshl_add_u32 v{vSA}, v250, 2, v{vSA}\ns_lshl_b32 s7, s{sLT}, 8\nv_add_u32 v{vSA}, s7, v{vSA}")
    b(f"v_lshlrev_b32 v{vOUT}, 10, v249\nv_lshl_add_u32 v{vOUT}, v250, 4, v{vOUT}\ns_lshl_b32 s7, s{sLT}, 15\ns_lshl_b32 s8, s{sDT}, 7\ns_add_u32 s7, s7, s8\ns_lshl_b32 s8, s{sW}, 5\ns_add_u32 s7, s7, s8\nv_add_u32 v{vOUT}, s7, v{vOUT}")
    b(f"s_lshl_b32 s5, s{sDT}, 2\ns_add_u32 s5, s5, s{sW}\ns_mul_i32 s5, s5, 57344\ns_add_u32 s{sW2B}, s5, {W2F}")
def setup_p0(b):
    if FG:
        b(f"s_lshr_b32 s5, s{sCT}, 2\ns_lshl_b32 s5, s5, 1\ns_and_b32 s6, s{sW}, 1\ns_add_u32 s5, s5, s6\ns_lshl_b32 s5, s5, 7\ns_add_u32 s{sGS}, s{sGC}, s5")
        b(f"s_lshl_b32 s5, s{sW}, 1\ns_and_b32 s6, s{sLT}, 1\ns_add_u32 s5, s5, s6\ns_lshl_b32 s5, s5, 7\ns_add_u32 s{sGP}, s{sGC}, s5")
    else: b(f"s_mov_b32 s{sGP}, s{sGC}")
    b(f"@{{\ns_cmp_ge_u32 s{sCPI}, 128\ns_cselect_b64 s[{sEXW}:{sEXW+1}], -1, 0\n@}}")
    b("v_lshrrev_b32 v254, 5, v1")
    b("s_and_b32 s5, s95, 3\nv_and_b32 v5, 1, v61\nv_xor_b32 v209, s5, v5\nv_xor_b32 v210, 2, v209")
    b("v_lshlrev_b32 v5, 3, v254\nv_bfe_u32 v6, v1, 2, 2\nv_add_u32 v5, v5, v6\nv_lshlrev_b32 v5, 7, v5\nv_and_b32 v62, 3, v1\nv_lshl_add_u32 v5, v62, 3, v5\nv_add_u32 v5, s9, v5")
    b("v_lshl_add_u32 v209, v209, 5, v5\nv_lshl_add_u32 v210, v210, 5, v5")
    b(f"s_lshl_b32 s99, s94, 11\ns_add_u32 s99, s99, {W2F}")
    b(f"s_lshl_b32 s11, s4, 16\ns_bfe_u32 s6, s2, 0x10002\ns_lshl_b32 s6, s6, 7\ns_add_u32 s11, s11, s6\ns_and_b32 s6, s2, 3\ns_lshl_b32 s6, s6, 14\ns_add_u32 s11, s11, s6\ns_lshl_b32 s6, s{sW}, 12\ns_add_u32 s11, s11, s6\ns_add_u32 s11, s11, {XP[0]}")
IDX = 100
wq = list(dma)
def take(n):
    r = wq[:n]; del wq[:n]; return r
setup_p0(M); setup_dma(M)
M.add(interleave(gen(setup), take(opt("e0", 0)), start=20))
stamp(M, "p0 setup")
M("@vm b1")
stamp(M, "p0 rows")
M("v_swap_b32 v217, v220\nv_swap_b32 v219, v222")
M(f"buffer_store_dwordx4 v[216:219], v207, {WS}, s11 offen sc1 ;@p0s\nbuffer_store_dwordx4 v[220:223], v207, {WS}, s11 offen offset:256 sc1 ;@p0s")
for i in range(4): M(f"v_mov_b32 v{52+i}, 0")
for q in range(4):
    M(f"v_dot2c_f32_bf16 v52, s{sONE}, v{32+q}\nv_dot2c_f32_bf16 v53, v{32+q}, v{32+q}")
    M(f"v_dot2c_f32_bf16 v54, s{sONE}, v{36+q}\nv_dot2c_f32_bf16 v55, v{36+q}, v{36+q}")
for m_ in ["quad_perm:[1,0,3,2]", "quad_perm:[2,3,0,1]", "row_half_mirror", "row_mirror"]:
    for i in range(4): M(f"v_add_f32_dpp v{52+i}, v{52+i}, v{52+i} {m_} row_mask:0xf bank_mask:0xf")
xsum(M, [52, 53, 54, 55], 56, [16, 32])
for r in (52, 54): M(f"v_pk_mul_f32 {v(r,2)}, {v(r,2)}, s[{sINV}:{sINV+1}]")
for r in (52, 54): M(f"v_fma_f32 v{r+1}, -v{r}, v{r}, v{r+1}")
for r in (52, 54): rnd(M, r+1, r+1)
for r in (52, 54): M(f"v_add_f32 v{r+1}, s{sEPS}, v{r+1}")
for r in (52, 54): rnd(M, r+1, r+1)
for r in (52, 54): M(f"v_sqrt_f32 v{r+1}, abs(v{r+1})")
for r in (52, 54): M(f"v_cvt_pk_bf16_f32 v{r}, v{r}, v{r+1}")
M(f"s_lshl_b32 s5, s2, 6\ns_lshl_b32 s6, s{sW}, 4\ns_add_u32 s5, s5, s6\ns_add_u32 s15, s5, {ST0}")
stamp(M, "p0 stats")
nn = lab("nn"); nl = lab("nl"); nb = lab("nb")
M("s_waitcnt lgkmcnt(0)")
M(f"s_cmp_eq_u32 s{sNON}, 0\ns_cbranch_scc1 {nn}")
M.label(nb)
tail.label(nn)
for k in range(1, 4):
    tail(f"s_load_dword s{sNON}, s[38:39], {64*k}\ns_waitcnt lgkmcnt(0)\ns_cmp_lg_u32 s{sNON}, 0\ns_cbranch_scc1 {nb}")
tail(f"s_mov_b32 s10, {SPIN}\nv_mov_b32 v5, 0")
tail.label(nl)
tail("global_load_dword v6, v5, s[38:39] sc1\ns_waitcnt vmcnt(0)")
tail(f"v_readfirstlane_b32 s{sNON}, v6\ns_cmp_lg_u32 s{sNON}, 0\ns_cbranch_scc1 {nb}")
tail(f"s_sub_u32 s10, s10, 1\ns_cmp_lg_u32 s10, 0\ns_cbranch_scc1 {nl}\ns_branch {nb}")
M(f"v_mov_b32 v212, v52\nv_mov_b32 v213, s{sNON}\nv_mov_b32 v214, v54\nv_mov_b32 v215, s{sNON}")
publish = gen(lambda b: (b(f"@vm p0s\n@{{\ns_barrier\ns_mov_b64 exec, 1\nbuffer_store_dwordx4 v[212:215], off, {WS}, s15 sc1\ns_mov_b64 exec, -1\n@}}"), stamp(b, "p0 published")))
def w2_relay(b):
    n3 = lab("n3")
    b("@vm b2")
    for mt in range(2):
        for hf in range(2): b(f"ds_read_b64_tr_b16 {v(224+4*mt+2*hf,2)}, v{209+mt} offset:{hf*512} ;@w2r")
    b(f"@lg w2r\n@{{\ns_cmp_ge_u32 s2, 224\ns_cbranch_scc1 {n3}")
    b(f"buffer_store_dwordx4 v[224:227], v2, {WS}, s99 offen sc1 ;@!\nbuffer_store_dwordx4 v[228:231], v2, {WS}, s99 offen offset:1024 sc1 ;@!")
    b.label(n3); b("@}")
def kgen(Kg):
    Kg(f"s_lshl_b32 s{sDK}, s13, 16\ns_and_b32 s{sDK+1}, s13, s{sMSK}")
    Kg(f"@{{\ns_lshl_b32 s5, s12, 16\ns_and_b32 s6, s12, s{sMSK}\ns_cmp_ge_u32 s{sW}, 2\ns_cselect_b32 s5, s6, s5\n@}}")
    L2E = f"{f2u(LOG2E):#x}"
    VAL = lambda row: 110 + 2*row if row < 45 else 62 + 2*(row - 45)
    Kg(f"v_mov_b32 v5, s5\nv_mul_f32 v5, {L2E}, v5\nv_exp_f32 v5, v5")
    for i in range(4): Kg(f"v_lshlrev_b32 v{48+i}, 16, v{48+i}")
    Kg(f"v_mul_f32 v48, {L2E}, v48\nv_exp_f32 v48, v48")
    Kg(f"s_mul_i32 s5, s{sW}, {ES}")
    Kg("v_lshlrev_b32 v98, 2, v1\nv_add_u32 v98, s5, v98")
    rnd(Kg, 5, 5); rnd(Kg, 48, 48)
    Kg(f"v_mul_f32 v49, v49, v5\nv_mul_f32 v48, v48, v5\nv_mul_f32 v49, 0.15915494, v49\nv_mul_f32 v48, s{sNL2E}, v48")
    Kg(f"v_add_f32 v5, v5, v5\nv_mul_f32 v{VAL(0)}, v50, v5\nv_mul_f32 v{VAL(0)+1}, v51, v5")
    E1, E8, E128, E1K = VAL(17), 34, VAL(24), VAL(48)
    PS = [(E1, 1.0), (E8, 8.0), (E128, 128.0), (E1K, 1024.0)]
    for k, (dst, p) in enumerate(PS): Kg(f"v_mul_f32 v{52+k}, {f2u(p):#x}, v48\nv_mul_f32 v{56+k}, {f2u(p):#x}, v49")
    for k, (dst, p) in enumerate(PS): Kg(f"v_exp_f32 v{52+k}, v{52+k}\nv_fract_f32 v{56+k}, v{56+k}")
    for k, (dst, p) in enumerate(PS): Kg(f"v_cos_f32 v{dst}, v{56+k}\nv_sin_f32 v{dst+1}, v{56+k}")
    Kg("v_mul_u32_u24 v99, 272, v60\nv_lshl_add_u32 v99, v61, 4, v99\nv_add_u32 v99, s5, v99")
    Kg(f"v_mov_b32 v{VAL(16)}, 1.0\nv_mov_b32 v{VAL(16)+1}, 0")
    for k, (dst, p) in enumerate(PS): Kg(f"v_mul_f32 v{dst}, v{dst}, v{52+k}\nv_mul_f32 v{dst+1}, v{dst+1}, v{52+k}")
    e16, e32, e64 = 36, 38, 32
    V = VAL
    levels = [
        [(V(1), V(0), E8), (V(18), E1, E1), (V(32), E128, E128), (e16, E8, E8), (V(56), E1K, E1K), (V(25), E1, E128), (V(49), E1K, E128)],
        [(e32, e16, e16), (V(20), V(18), V(18)), (V(40), V(32), V(32)), (V(2), V(0), e16), (V(3), V(1), e16), (V(19), V(18), E1), (V(36), V(32), E128),
         (V(26), V(18), E128), (V(50), E1K, V(32)), (V(33), V(32), V(18))],
        [(e64, e32, e32), (V(4), V(0), e32), (V(5), V(1), e32), (V(6), V(2), e32), (V(7), V(3), e32), (V(21), V(20), E1), (V(22), V(20), V(18)), (V(23), V(20), V(19)),
         (V(42), V(40), E128), (V(44), V(40), V(32)), (V(46), V(40), V(36)), (V(27), V(19), E128), (V(28), V(20), E128), (V(51), E1K, V(36)), (V(52), E1K, V(40)),
         (V(34), V(32), V(20)), (V(37), V(36), V(18)), (V(38), V(36), V(20)), (V(41), V(40), V(20))],
        [(V(8 + i), V(i), e64) for i in range(8)] +
        [(V(29), V(21), E128), (V(30), V(22), E128), (V(31), V(23), E128), (V(35), V(32), V(22)), (V(39), V(36), V(22)),
         (V(43), V(42), V(20)), (V(45), V(44), V(20)), (V(47), V(46), V(20)), (V(53), E1K, V(42)), (V(54), E1K, V(44)), (V(55), E1K, V(46))],
    ]
    row_of = {VAL(r): r for r in range(57)}
    pend = [0, 16, 17, 24, 48]; written = []
    rot = [0]
    def puts(rows):
        g = []
        for r in rows:
            t = 86 + rot[0] % 12; rot[0] += 1
            g.append((f"    v_cvt_pk_bf16_f32 v{t}, v{VAL(r)}, {'-' if r < 16 else ''}v{VAL(r)+1}", f"    ds_write_b32 v98, v{t} offset:{r*272}"))
            written.append(r)
        out = []
        for k in range(len(g) + 1):
            out.append(([g[k][0]] if k < len(g) else []) + ([g[k-1][1]] if k > 0 else []))
        return out
    for lv in levels:
        t = Buf()
        for d_, x_, y_ in lv: t(f"v_pk_mul_f32 {v(d_,2)}, {v(x_,2)}, {v(y_,2)} op_sel_hi:[1,0]")
        for d_, x_, y_ in lv: t(f"v_pk_fma_f32 {v(d_,2)}, {v(x_,2)}, {v(y_,2)}, {v(d_,2)} op_sel:[1,1,0] op_sel_hi:[0,1,1] neg_lo:[1,0,0]")
        Kg.add(interleave(t.l, puts(pend)))
        pend = [row_of[d_] for d_, _, _ in lv if d_ in row_of]
    Kg.add(flat(puts(pend)))
    assert sorted(written) == list(range(57))
    LOF, HF, GD = 110, 126, 62
    Kg("s_waitcnt lgkmcnt(0)")
    for s_ in range(4):
        Kg(f"ds_read_b128 {v(LOF+4*s_,4)}, v99 offset:{s_*64} ;@kf{s_}")
        for T in range(3): Kg(f"ds_read_b128 {v(HF+16*T+4*s_,4)}, v99 offset:{(16+16*T)*272+s_*64} ;@kf{s_}")
    Kg(f"s_mul_i32 s5, s{sW}, 3072\ns_add_u32 s5, s5, {LGT}")
    Kg("v_lshlrev_b32 v5, 2, v60\nv_lshl_add_u32 v5, v61, 8, v5\nv_add_u32 v5, s5, v5")
    for s_ in range(4):
        Kg(f"@lg kf{s_}")
        for T in range(3): Kg(f"v_mfma_f32_16x16x32_bf16 {v(GD+4*T,4)}, {v(HF+16*T+4*s_,4)}, {v(LOF+4*s_,4)}, {'0' if s_ == 0 else v(GD+4*T,4)}")
    for T in range(3):
        for r in range(0, 4, 2): Kg(f"ds_write2_b32 v5, v{GD+4*T+r}, v{GD+4*T+r+1} offset0:{r*16} offset1:{r*16+16}") if T == 0 else None
        if T:
            for r in range(4): Kg(f"ds_write_b32 v5, v{GD+4*T+r} offset:{(T*16+r)*64}")
M("@vm par")
kl = gen(kgen)
PUB = opt("pub", 110)
cpl = ["    v_add_u32 v200, s90, v2", "    global_load_dwordx4 v[200:203], v200, s[42:43]"] if opt("cp0", 0) == 1 else []
W2E = opt("w2e", 1)
if W2E:
    publish = [l.replace("@vm p0s", "s_waitcnt vmcnt(0)") for l in publish]
    kl = interleave(kl, [publish + cpl], start=PUB, every=1)
    kl = gen(w2_relay) + kl
else: kl = interleave(kl, [publish + cpl + gen(w2_relay)], start=PUB, every=1)
M.add(interleave(kl, take(11 - opt("e0", 0)), start=opt("e1", 130)))
stamp(M, "kgen core")
M(f"s_mov_b32 s{sO}, {ST0}\nbuffer_load_dwordx4 v[232:235], v{vCS}, {WS}, s{sO} offen sc1 ;@cin\nbuffer_load_dwordx4 v[236:239], v{vCS}, {WS}, s{sO} offen offset:16 sc1 ;@cin")
M(f"s_mov_b32 s{sO}, {ST0+8192}\nbuffer_load_dwordx4 v[240:243], v{vCS}, {WS}, s{sO} offen sc1 ;@cin\nbuffer_load_dwordx4 v[244:247], v{vCS}, {WS}, s{sO} offen offset:16 sc1 ;@cin")
M("s_waitcnt lgkmcnt(0)\ns_barrier")
for c in range(2):
    for k in range(9): M(f"ds_read2st64_b32 {v(110+c*18+2*k,2)}, v{IDX+k} offset0:{24*c} offset1:{24*c+12} ;@g{c}")
M(f"v_bfe_u32 v5, v0, 4, 1\nv_mul_u32_u24 v5, {PKS}, v5\nv_lshl_add_u32 v5, v60, 2, v5\nv_add_u32 v5, {LPK}, v5\nv_mov_b32 v6, 0")
M("ds_write_b32 v5, v6")
M(f"v_lshlrev_b32 v5, 5, v0\nv_add_u32 v5, {LPK+64}, v5")
M("v_cmp_eq_u32 vcc, 0, v0")
for c in range(2):
    M(f"@lg g{c}")
    for k in range(9):
        r = 110 + c*18 + 2*k
        M(f"v_add_f32 v{r}, v{r}, v{r+1}")
    M(f"v_cndmask_b32 v{110+c*18}, v{110+c*18}, v6, vcc")
    for k in range(8): M(f"v_cvt_pk_bf16_f32 v{72+c*8+k}, v{110+c*18+2*(k+1)}, v{110+c*18+2*k}")
    M(f"ds_write_b128 v5, {v(72+c*8,4)} offset:{c*PKS}\nds_write_b128 v5, {v(76+c*8,4)} offset:{c*PKS+16}")
T0, U0, ACC = 32, 160, 224
BASE, RV, CST, UPK = 224, 232, 232, 240
def conv_stats(b, layer, half):
    b(f"s_mov_b32 s{sO}, {(ST2 if layer else ST0) + half*8192}")
    b(f"buffer_load_dwordx4 {v(CST,4)}, v{vCS}, {WS}, s{sO} offen sc1 ;@cin\nbuffer_load_dwordx4 {v(CST+4,4)}, v{vCS}, {WS}, s{sO} offen offset:16 sc1 ;@cin")
def conv_x(b, layer, half):
    b(f"s_mov_b32 s{sO}, {XP[2*layer] + half*0x100000}\nbuffer_load_dwordx4 v[248:251], v{vCX}, {WS}, s{sO} offen sc1 ;@cin")
def conv_inputs(b, layer, half):
    conv_x(b, layer, half); conv_stats(b, layer, half)
def gcheck(b):
    slow = lab("gs"); back = lab("gb"); lp = lab("gl")
    def chk(o):
        for k in range(8): o(f"v_xor_b32 v{160+k}, s{sNON}, v{CST+2*k+1}")
        o("v_or3_b32 v160, v160, v161, v162\nv_or3_b32 v163, v163, v164, v165\nv_or3_b32 v160, v160, v166, v167\nv_or_b32 v160, v160, v163\nv_cmp_ne_u32 vcc, 0, v160")
    b("@vm cin\n@{")
    chk(b); b(f"s_cbranch_vccnz {slow}"); b.label(back); b("@}")
    for k in range(4): b(f"v_mov_b32 v{252+k}, v{CST+8+2*k}")
    tail.label(slow); tail(f"s_mov_b32 s10, {SPIN}\ns_mov_b32 s11, {ST0}\ns_mov_b32 s5, {ST0+8192}")
    tail.label(lp)
    for k in range(4): tail(f"buffer_load_dwordx4 {v(CST+4*k,4)}, v{vCS}, {WS}, s{5 if k >= 2 else 11} offen offset:{16*(k&1)} sc1")
    tail("s_waitcnt vmcnt(0)")
    chk(tail); tail(f"s_cbranch_vccz {back}")
    tail(f"s_sub_u32 s10, s10, 1\ns_cmp_lg_u32 s10, 0\ns_cbranch_scc1 {lp}\ns_branch {back}")
def t_loads(b, js):
    for j in js:
        if j: b(f"v_add_u32 v5, {1024*j}, v{vTB}")
        ad = 5 if j else vTB
        for t in range(4):
            r = T0 + (j*4 + t)*4
            b(f"ds_read2_b32 {v(r,2)}, v{ad} offset0:{32*t+6} offset1:{32*t+4} ;@T\nds_read2_b32 {v(r+2,2)}, v{ad} offset0:{32*t+2} offset1:{32*t} ;@T")
def t_groups(ta=188):
    g = []
    for k in range(32):
        j, t = k >> 2, k & 3
        r = T0 + 4*k
        grp = [f"    v_add_u32 v{ta}, {1024*j}, v{vTB}"] if t == 0 else []
        grp += [f"    ds_read2_b32 {v(r,2)}, v{ta} offset0:{32*t+6} offset1:{32*t+4} ;@T", f"    ds_read2_b32 {v(r+2,2)}, v{ta} offset0:{32*t+2} offset1:{32*t} ;@T"]
        g.append(grp)
    return g
def u_pad(b):
    b(f"v_subrev_u32 v5, {LEX}, v{vEW}\nv_and_b32 v5, 0x3f0, v5\nv_lshrrev_b32 v5, 1, v5\nv_add_u32 v5, {LU}, v5\nv_mov_b32 v{UPK}, 0\nv_mov_b32 v{UPK+1}, 0")
    b(f"ds_write_b64 v5, {v(UPK,2)}\nds_write_b64 v5, {v(UPK,2)} offset:{US}")
def conv_half(b, layer, half, bg=[], pre_barrier=None, after_ln=None, after_mfma=None, tailbg=[], pre_barrier2=None):
    X = 248
    MN, RI, DD = 192, 196, 176
    b("@vm cin")
    stamp(b, f"L{layer} conv{half} loaded")
    if layer == 0:
        G = (lambda i: 252 + i) if half else (lambda i: CST + 2*i)
        for i in range(4): b(f"v_and_b32 v{RI+i}, s{sMSK}, v{G(i)}")
        for i in range(4): b(f"v_rcp_f32 v{RI+i}, v{RI+i}")
        for i in range(4): b(f"v_lshlrev_b32 v{MN+i}, 16, v{G(i)}")
    else:
        for i in range(4): b(f"v_pk_mul_f32 {v(CST+2*i,2)}, {v(CST+2*i,2)}, s[{sINV}:{sINV+1}]")
        for i in range(4): b(f"v_fma_f32 v{RI+i}, -v{CST+2*i}, v{CST+2*i}, v{CST+2*i+1}")
        for i in range(4): rnd(b, RI+i, RI+i)
        for i in range(4): b(f"v_add_f32 v{RI+i}, s{sEPS}, v{RI+i}")
        for i in range(4): rnd(b, RI+i, RI+i)
        for i in range(4): b(f"v_sqrt_f32 v{RI+i}, abs(v{RI+i})")
        for i in range(4): rnd(b, MN+i, CST+2*i)
        for i in range(4): rnd(b, RI+i, RI+i)
        for i in range(4): b(f"v_rcp_f32 v{RI+i}, v{RI+i}")
    for i in range(4): b(f"v_lshlrev_b32 v{BASE+i}, 16, v{X+i}\nv_and_b32 v{BASE+4+i}, s{sMSK}, v{X+i}")
    for k in range(4): b(f"v_pk_add_f32 {v(DD+2*k,2)}, {v(BASE+2*k,2)}, {v(MN+2*(k&1),2)} neg_lo:[0,1] neg_hi:[0,1]")
    if opt("rd", 1):
        for k in range(8): rnd(b, DD+k, DD+k)
    for k in range(4): b(f"v_pk_mul_f32 {v(DD+2*k,2)}, {v(DD+2*k,2)}, {v(RI+2*(k&1),2)}")
    for k in range(4): b(f"v_cvt_pk_bf16_f32 v{UPK+k}, v{DD+2*k}, v{DD+2*k+1}")
    b(f"ds_write_b64 v{vUW}, {v(UPK,2)} offset:{half*2048}\nds_write_b64 v{vUW}, {v(UPK+2,2)} offset:{US+half*2048}")
    F2 = opt("fine", 0) == 2 and layer == 1
    if F2: stamp(b, f"c{half} ln")
    if pre_barrier: b(pre_barrier)
    b("s_waitcnt lgkmcnt(0)\ns_barrier")
    if F2: stamp(b, f"c{half} bar1")
    if after_ln: after_ln(b)
    def urd(tp, t): return f"    ds_read_b128 {v(U0+(tp*4+t)*4,4)}, v{vUR} offset:{512 + 512*(tp+4*half) - 64*t - 32} ;@U{tp}_{t}"
    b.add([urd(0, t) for t in range(4)] + [urd(1, 0), urd(1, 1)])
    later = [urd(tp, t) for tp in range(1, 4) for t in range(4)][2:]
    fill = []
    for k in range(4):
        c = k >> 1
        fill += [f"    v_lshlrev_b32 v{RV+2*k}, 16, v{UPK+k}", f"    v_and_b32 v{RV+2*k+1}, s{sMSK}, v{UPK+k}"]
    for k in range(8): fill.append(f"    v_fmac_f32 v{BASE+k}, s{sDK + (k >> 2)}, v{RV+k}")
    ml = []; cnt = 0
    lastidx = {0: 12, 1: 25, 2: 34}
    for tp in range(4):
        for t in range(4):
            ml.append(f"    @lg U{tp}_{t}")
            for r in range(tp, 4):
                acc = ACC + (4*half + r)*4
                cin = "0" if (half == 0 and t == 0 and tp == 0) else ac(acc, 4)
                ml.append(f"    v_mfma_f32_16x16x32_bf16 {ac(acc,4)}, {v(T0+((r-tp)*4+t)*4,4)}, {v(U0+(tp*4+t)*4,4)}, {cin}")
                if later: ml.append(later.pop(0))
                elif fill: ml.append(fill.pop(0))
                for r_ in range(3):
                    if cnt == lastidx[r_] + (5 if r_ < 2 else 5): ml.append(f"    ds_write_b128 v{vEW}, {ac(ACC+(4*half+r_)*4,4)} offset:{r_*4096}")
                cnt += 1
    assert not later and not fill
    ml = interleave(ml, bg, start=2)
    b.add(ml)
    tailbg = list(tailbg)
    if F2: stamp(b, f"c{half} mfma")
    if after_mfma: after_mfma(b)
    if F2: stamp(b, f"c{half} chk")
    b(f"ds_write_b128 v{vEW}, {ac(ACC+(4*half+3)*4,4)} offset:{3*4096}")
    b.add(flat(tailbg[:2]))
    if pre_barrier2: b(pre_barrier2)
    b("s_waitcnt lgkmcnt(0)\ns_barrier")
    if F2: stamp(b, f"c{half} bar2")
    for src in range(4): b(f"ds_read_b128 {v(RV+4*src,4)}, v{vER} offset:{src*1024} ;@E{src>>1}")
    b.add(flat(tailbg[2:]))
    b(f"s_mov_b32 s{sO}, {XP[1+2*layer] + half*0x100000}")
    for c in range(2):
        b(f"@lg E{c}")
        for k in range(2): b(f"v_pk_add_f32 {v(RV+8*c+2*k,2)}, {v(RV+8*c+2*k,2)}, {v(RV+8*c+4+2*k,2)}")
        for k in range(2): b(f"v_pk_add_f32 {v(BASE+4*c+2*k,2)}, {v(BASE+4*c+2*k,2)}, {v(RV+8*c+2*k,2)}")
    for i in range(4): b(f"v_cvt_pk_bf16_f32 v{244+i}, v{BASE+i}, v{BASE+4+i}")
    b(f"s_mov_b64 exec, s[{sEXW}:{sEXW+1}]\nv_swap_b32 v244, v245\nv_swap_b32 v246, v247\ns_mov_b64 exec, -1")
    b(f"buffer_store_dwordx4 v[244:247], v{vCX}, {WS}, s{sO} offen sc1 ;@cst")
    stamp(b, f"L{layer} conv{half} stored")
def conv_ab(b):
    b("@lg T")
    for t in range(4):
        for tp in range(4):
            for r in range(4, 8):
                acc = ACC + r*4
                cin = "0" if (t == 0 and tp == 0) else ac(acc, 4)
                b(f"v_mfma_f32_16x16x32_bf16 {ac(acc,4)}, {v(T0+((r-tp)*4+t)*4,4)}, {v(U0+(tp*4+t)*4,4)}, {cin}")
def colsum(b):
    wa_regs(b)
    b(f"@{{\ns_lshr_b32 s6, s{sW}, 1\ns_mul_i32 s6, s6, {256*224}\ns_lshl_b32 s5, s{sW}, 6\ns_cmp_eq_u32 s{sW}, 3\ns_cselect_b32 s5, 0, s5\ns_cselect_b64 vcc, -1, 0\ns_sub_u32 s5, s5, s6\n@}}")
    b(f"v_cndmask_b32 v248, v{vWA}, v253, vcc\nv_cndmask_b32 v249, v252, v253, vcc\nv_add_u32 v248, s5, v248\nv_add_u32 v249, s5, v249\nv_add_u32 v250, {256*224}, v248\nv_add_u32 v251, {256*224}, v249")
    for i in range(4): b(f"v_mov_b32 v{240+i}, s{sONE}")
    def rd(ks):
        for f2 in range(2):
            for hf in range(2):
                b(f"ds_read_b64_tr_b16 {v(96+(f2*8+ks%8)*4+2*hf,2)}, v{248 + f2 + 2*(ks//8)} offset:{(32*(ks%8)+16*hf)*224} ;@c{ks}")
    for ks in range(3): rd(ks)
    for ks in range(16):
        if ks + 3 < 16: rd(ks + 3)
        b(f"@lg c{ks}")
        for f2 in range(2):
            b(f"v_mfma_f32_16x16x32_bf16 {v(232+4*f2,4)}, {v(96+(f2*8+ks%8)*4,4)}, v[240:243], {'0' if ks == 0 else v(232+4*f2,4)}")
    b(f"s_lshl_b32 s5, s{sW}, 7\nv_add_u32 v5, s5, v{vCSA}")
    b("ds_write_b128 v5, v[232:235] ;@cs\nds_write_b128 v5, v[236:239] offset:64 ;@cs")

WB, SS, KA, SA = 160, 216, 224, 224
def g1_loads(layer, half):
    g = []
    X0 = 32 + 64 * half
    for ks in range(8):
        for n_, (dst, off) in enumerate([(0, 0), (4, 256), (2, 2048), (6, 2304)]):
            grp = []
            if n_ == 0: grp.append(f"    s_mov_b32 s{sB0}, {XP[1+2*layer] + half*0x100000 + ks*4096}")
            grp.append(f"    buffer_load_dwordx2 {v(X0+8*ks+dst,2)}, v{vGX}, {WS}, s{sB0} offen offset:{off} sc1 ;@x{ks}")
            g.append(grp)
    return g
def wread(b, ks, ft, hfs=(0, 1)):
    r = WB + (ks & 1) * 28 + ft * 4
    for hf in hfs:
        ad, off = (253, 0) if ft == 6 else ((252 if ft & 1 else vWA), (ft >> 1) * 64)
        b(f"ds_read_b64_tr_b16 {v(r+2*hf,2)}, v{ad} offset:{(32*ks+16*hf)*224 + off} ;@w{ks}_{ft}")
def wa_regs(b):
    b(f"v_xor_b32 v252, 32, v{vWA}\nv_and_b32 v253, 32, v{vWA}\nv_mul_u32_u24 v253, 6, v253\nv_sub_u32 v253, v{vWA}, v253\nv_add_u32 v253, 384, v253")
def g1_pre(b):
    wa_regs(b)
    for ft in range(7): wread(b, 0, ft)
def g1_loop(b, half, bg, hooks={}, slots=None):
    X0 = 32 + 64 * half
    bg = list(bg)
    if slots is None: slots = (0, 2, 4, 6) if len(bg) <= 32 else (0, 1, 3, 4, 6)
    def swaps(ks):
        x = X0 + 8 * ks
        b(f"@vm x{ks}\nv_swap_b32 v{x+1}, v{x+4}\nv_swap_b32 v{x+3}, v{x+6}")
    swaps(0)
    for ks in range(8):
        x = X0 + 8 * ks
        if opt("fine", 0) == 3 and len(STAMPS) > 25: stamp(b, f"g1{half} k{ks}")
        if ks in hooks: hooks[ks](b)
        if ks == 7:
            for ft in range(7):
                r = WB + 28 + ft * 4
                if ft in (0, 4): b(f"@lg w{ks}_{3 if ft == 0 else 6}")
                b(f"v_mfma_f32_16x16x32_bf16 {ac(SA+4*ft,4)}, {v(r,4)}, {v(x+4,4)}, {ac(SA+4*ft,4)}")
                b(f"ds_read_b128 {v(160+4*ft,4)}, v{vCSA} offset:{ft*64}")
                if ft in slots and bg: b.add(bg.pop(0))
            for ft in range(7):
                r = WB + 28 + ft * 4
                b(f"v_mfma_f32_16x16x32_bf16 {v(KA+4*ft,4)}, {v(r,4)}, {v(x,4)}, {v(KA+4*ft,4)}")
                if ft % 2 == 0 and ft // 2 < NW0: b(f"ds_write_b128 v{vXW}, {ac(SA+4*(ft//2),4)} offset:{(ft//2)*1024}")
            continue
        for ft in range(7):
            r = WB + (ks & 1) * 28 + ft * 4
            if ft in (0, 4): b(f"@lg w{ks}_{3 if ft == 0 else 6}")
            b(f"v_mfma_f32_16x16x32_bf16 {ac(SA+4*ft,4)}, {v(r,4)}, {v(x+4,4)}, {'0' if ks == 0 else ac(SA+4*ft,4)}")
            wread(b, ks + 1, ft, (0,))
            if ft in slots and bg: b.add(bg.pop(0))
            b(f"v_mfma_f32_16x16x32_bf16 {v(KA+4*ft,4)}, {v(r,4)}, {v(x,4)}, {'0' if ks == 0 else v(KA+4*ft,4)}")
            wread(b, ks + 1, ft, (1,))
            if ft == 5: swaps(ks + 1)
    assert not bg
NW0 = opt("nw0", 2)
RC, CSR = 188, 160
def g1_post1(b, half, bg=[], chk=None, bg2=[]):
    X0 = 32 + 64 * half
    d = Buf()
    for ks in range(8):
        x = X0 + 8 * ks
        for q in range(4):
            o = 4 * (q & 1)
            if ks == 0 and q < 2:
                d(f"v_dot2_f32_bf16 v{SS+o}, s{sONE}, v{x+q}, 0\nv_dot2_f32_bf16 v{SS+o+1}, v{x+q}, v{x+q}, 0")
                d(f"v_dot2_f32_bf16 v{SS+o+2}, s{sONE}, v{x+4+q}, 0\nv_dot2_f32_bf16 v{SS+o+3}, v{x+4+q}, v{x+4+q}, 0")
                continue
            d(f"v_dot2c_f32_bf16 v{SS+o}, s{sONE}, v{x+q}\nv_dot2c_f32_bf16 v{SS+o+1}, v{x+q}, v{x+q}")
            d(f"v_dot2c_f32_bf16 v{SS+o+2}, s{sONE}, v{x+4+q}\nv_dot2c_f32_bf16 v{SS+o+3}, v{x+4+q}, v{x+4+q}")
    wr = [[f"    ds_write_b128 v{vXW}, {ac(SA+4*ft,4)} offset:{ft*1024}"] for ft in range(NW0, 7)]
    dl = interleave(d.l, wr, start=8, every=24)
    cut = opt("cut", 140)
    b.add(interleave(dl[:cut], bg, start=4))
    chk(b)
    b.add(interleave(dl[cut:], bg2))
    if opt("fine", 0) == 2: stamp(b, f"p{len(STAMPS)} dots")
    b(f"v_pk_add_f32 {v(SS+2,2)}, {v(SS+2,2)}, {v(SS+6,2)}\nv_pk_add_f32 {v(SS,2)}, {v(SS,2)}, {v(SS+4,2)}")
    b(f"v_permlane32_swap_b32 v{SS}, v{SS+2}\nv_permlane32_swap_b32 v{SS+1}, v{SS+3}\nv_pk_add_f32 {v(SS,2)}, {v(SS,2)}, {v(SS+2,2)}")
    b(f"v_permlane16_swap_b32 v{SS}, v{SS+1}\nv_add_f32 v{SS}, v{SS}, v{SS+1}\nds_write_b32 v{vSW}, v{SS}")
    b("s_waitcnt lgkmcnt(0)\ns_barrier")
    b(f"ds_read2_b32 {v(SS,2)}, v{vSR} offset0:0 offset1:16 ;@s\nds_read2_b32 {v(SS+2,2)}, v{vSR} offset0:32 offset1:48 ;@s")
    for ft in range(7): b(f"ds_read_b128 {v(RC+4*ft,4)}, v{vXR} offset:{ft*1024} ;@r{ft}")
def g1_post2(b, layer, half):
    b("@lg s")
    b(f"v_pk_add_f32 {v(SS,2)}, {v(SS,2)}, {v(SS+2,2)}")
    mn, sd, c2 = SS, SS+1, SS+2
    st = Buf()
    st(f"v_pk_mul_f32 {v(SS,2)}, {v(SS,2)}, s[{sINV}:{sINV+1}]\nv_fma_f32 v{sd}, -v{mn}, v{mn}, v{sd}")
    rnd(st, sd, sd); rnd(st, mn, mn)
    st(f"v_add_f32 v{sd}, s{sEPS}, v{sd}"); rnd(st, sd, sd)
    st(f"v_sqrt_f32 v{sd}, abs(v{sd})"); rnd(st, sd, sd)
    st(f"v_rcp_f32 v{c2}, v{sd}\nv_mul_f32 v{c2}, s{sNL2E}, v{c2}")
    adds = []
    for ft in range(7):
        t = RC + 4*ft
        adds.append([f"    @lg r{ft}"] + [f"    v_pk_add_f32 {v(t+2*k,2)}, {v(t+2*k,2)}, {v(KA+4*ft+2*k,2)}" for k in range(2)])
    b.add(interleave(st.l, adds, start=1, every=1))
    if opt("fine", 0) == 2: stamp(b, f"p{len(STAMPS)} stats")
    silu_part(b, 0, SPL[0])
def silu_part(b, k0, k1):
    mn, c2 = SS, SS + 2
    K = range(k0, k1); R = range(2*k0, 2*k1)
    for k in K: b(f"v_pk_fma_f32 {v(RC+2*k,2)}, {v(CSR+2*k,2)}, {v(mn,2)}, {v(RC+2*k,2)} op_sel_hi:[1,0,1] neg_lo:[0,1,0] neg_hi:[0,1,0]")
    for k in K: b(f"v_pk_mul_f32 {v(CSR+2*k,2)}, {v(RC+2*k,2)}, {v(c2,2)} op_sel_hi:[1,0]")
    for r in R: b(f"v_exp_f32 v{CSR+r}, v{CSR+r}")
    for k in K: b(f"v_pk_fma_f32 {v(CSR+2*k,2)}, {v(CSR+2*k,2)}, {v(mn,2)}, {v(mn,2)} op_sel:[0,1,1] op_sel_hi:[1,1,1]")
    for r in R: b(f"v_rcp_f32 v{CSR+r}, v{CSR+r}")
    for k in K: b(f"v_pk_mul_f32 {v(CSR+2*k,2)}, {v(CSR+2*k,2)}, {v(RC+2*k,2)}")
    for k in K:
        ft = k >> 1
        b(f"v_cvt_pk_bf16_f32 v{KA + 8*(ft >> 1) + 2*(ft & 1) + (k & 1)}, v{CSR+2*k}, v{CSR+2*k+1}")
    for pr in range(3):
        if k0 <= 4*pr < k1:
            p = KA + 8*pr
            b(f"v_permlane16_swap_b32 v{p}, v{p+2}\nv_permlane16_swap_b32 v{p+1}, v{p+3}")
SPL = {0: [14], 1: [8, 14], 2: [8, 12, 14], 3: [4, 8, 12, 14], 4: [4, 8, 14], 5: [12, 14]}[opt("sp", 1)]
def g1_store(b, layer, half, pre=None):
    hb = HB[layer] + half * 32 * HT
    b(f"s_mov_b32 s{sO}, {hb}\ns_mov_b32 s5, {hb + 4096}")
    done = 0
    for n_, k1 in enumerate(SPL):
        if n_: silu_part(b, SPL[n_-1], k1)
        if k1 == 14 and pre: pre(b)
        while done < 3 and 4*done + 4 <= k1:
            b(f"buffer_store_dwordx4 {v(KA+8*done,4)}, v{vH4}, {WS}, s{sO if done < 2 else 5} offen offset:{(done&1)*2048} sc1 ;@hst")
            done += 1
    b(f"buffer_store_dwordx2 {v(KA+24,2)}, v{vH2}, {WS}, s5 offen offset:2048 sc1 ;@hst")

H0, C2, RS = 32, 192, 184
def g2_loads(layer, half):
    g = []
    for ks in range(28):
        grp = []
        if ks % 4 == 0: grp.append(f"    s_mov_b32 s{sB0}, {HB[layer] + half*32*HT + ks*1024}")
        grp.append(f"    buffer_load_dwordx4 {v(H0+4*ks,4)}, v{vHL}, {WS}, s{sB0} offen offset:{(ks%4)*1024} sc1 ;@h{half}_{ks}")
        g.append(grp)
    return g
def w2_loads():
    g = []
    for i in range(56):
        grp = []
        if i % 4 == 0: grp.append(f"    s_add_u32 s{sB1}, s{sW2B}, {(i//4)*4096}")
        grp.append(f"    buffer_load_dwordx4 {ac(4*i,4)}, v6, {WS}, s{sB1} offen offset:{(i%4)*1024} sc1 ;@a{i//2}")
        g.append(grp)
    return g
def g2_res(layer, half):
    RS = 144 if half == 0 else 184
    g = [[f"    s_mov_b32 s{sO}, {XP[1+2*layer] + half*0x100000}"] +
         [f"    buffer_load_dword v{RS+k}, v{vRX}, {WS}, s{sO} offen offset:{(k>>1)*1024 + (k&1)*256} sc1 ;@res" for k in range(4)]]
    return g
def g2_loop(b, half, bg, hooks={}, tg=None, nm=None, late=[]):
    bg = list(bg); late = list(late)
    if tg: b.add(flat(tg[28:]))
    LAG = opt("lag", 8)
    def mf(ks, mt):
        b(f"v_mfma_f32_32x32x16_bf16 {v(C2+16*mt,16)}, {ac((ks*2+mt)*4,4)}, {v(H0+4*ks,4)}, {'0' if ks == 0 else v(C2+16*mt,16)}")
    for ks in range(28):
        if ks in hooks: hooks[ks](b)
        b(f"@vm h{half}_{ks},a{ks}")
        if nm and ks in (0, 4, 8, 12, 16, 20, 24): stamp(b, f"{nm} k{ks}")
        mf(ks, 1)
        if bg: b.add(bg.pop(0))
        if ks < 28 - LAG:
            mf(ks, 0)
            if tg and ks >= 1: b.add(tg[ks-1])
    if "end" in hooks: hooks["end"](b)
    wr = [f"ds_write_b128 v{vE1+sg-1}, {v(C2+8*sg+4*q,4)} offset:{q*1024}" for sg in (2, 3) for q in range(2)]
    for n_, ks in enumerate(range(28 - LAG, 28)):
        mf(ks, 0)
        if tg: b.add(tg[ks-1])
        if n_ >= 2 and n_ % 2 == 0 or n_ == LAG - 1:
            if wr: b(wr.pop(0))
        if late: b.add(late.pop(0))
    for w_ in wr: b(w_)
    if tg: b.add(["    s_nop 7"] + tg[27])
    assert not bg and not late
def g2_post1(b, half):
    RS = 144 if half == 0 else 184
    b("@vm res")
    for k in range(4): b(f"v_lshlrev_b32 v{224+2*k}, 16, v{RS+k}\nv_and_b32 v{225+2*k}, s{sMSK}, v{RS+k}")
    b(f"ds_write_b128 v{vE1}, {v(C2+8,4)}\nds_write_b128 v{vE1}, {v(C2+12,4)} offset:1024")
    b("s_waitcnt lgkmcnt(0)\ns_barrier")
    for k in range(6): b(f"ds_read_b128 {v(160+4*k,4)}, v{vE0} offset:{k*1024} ;@q{k>>1}")
def g2_post2(b, layer, half):
    for s_ in range(3):
        b(f"@lg q{s_}")
        for k in range(4): b(f"v_pk_add_f32 {v(C2+2*k,2)}, {v(C2+2*k,2)}, {v(160+8*s_+2*k,2)}")
    if opt("ro", 1):
        for r in range(8): rnd(b, C2+r, C2+r)
    for k in range(4): b(f"v_pk_add_f32 {v(C2+2*k,2)}, {v(C2+2*k,2)}, {v(224+2*k,2)}")
    for k in range(4): b(f"v_cvt_pk_bf16_f32 v{240+k}, v{C2+2*k}, v{C2+2*k+1}")
    if layer == 0:
        b(f"@{{\ns_mov_b32 s{sO}, {XP[2] + half*0x100000}")
        for k in range(4):
            b(f"buffer_store_dword v{240+k}, v{vX2}, {WS}, s{sO} offen offset:{(k>>1)*1024 + (k&1)*256} sc1 ;@xst")
        b("@}\nv_mov_b32 v244, 0\nv_mov_b32 v245, 0")
        for k in range(4): b(f"v_dot2c_f32_bf16 v244, s{sONE}, v{240+k}\nv_dot2c_f32_bf16 v245, v{240+k}, v{240+k}")
        b("v_permlane32_swap_b32 v244, v245\nv_add_f32 v244, v244, v245")
        LST = LSCR + 24576
        b(f"v_lshrrev_b32 v246, 2, v6\nv_add_u32 v246, {LST}, v246\ns_lshl_b32 s5, s{sW}, 8\nv_add_u32 v247, s5, v246")
        b("ds_write_b32 v247, v244\ns_waitcnt lgkmcnt(0)\ns_barrier")
        b("ds_read2st64_b32 v[244:245], v246 offset0:0 offset1:1\nds_read2st64_b32 v[246:247], v246 offset0:2 offset1:3")
        b(f"s_mov_b32 s{sO}, {ST2 + half*8192}\ns_waitcnt lgkmcnt(0)\nv_pk_add_f32 v[244:245], v[244:245], v[246:247]\nv_add_f32 v244, v244, v245")
        b(f"@{{\ns_mov_b64 exec, s[{sEXQ}:{sEXQ+1}]\nbuffer_atomic_add_f32 v244, v{vSA}, {WS}, s{sO} offen sc1 ;@xst\ns_mov_b64 exec, -1\n@}}")
    else:
        b("v_permlane32_swap_b32 v240, v242\nv_permlane32_swap_b32 v241, v243")
        b(f"s_mov_b32 s{sO}, {half*0x100000}\nbuffer_store_dwordx4 v[240:243], v{vOUT}, {srd(SOUT)}, s{sO} offen {opt('ofl', 'x').replace('x', '').replace('_', ' ')}")

gcheck(M); conv_x(M, 0, 0)
M(f"v_mov_b32 v{vPL}, v204\nv_mov_b32 v{vSG}, v205")
M("s_waitcnt lgkmcnt(0)\ns_barrier")
stamp(M, "kgen done")
XT, XUP, XPF, HPF, HP2, HUP = opt("xt", 10), opt("xup", 16), opt("xpf", 16), opt("hpf", 14), opt("hp2", 6), opt("hup", 14)
D1, D2, D3, D4, D5 = opt("d1", 6), opt("d2", 6), opt("d3", 5), opt("d4", 8), opt("d5", 6)
M.add(interleave(gen(t_loads, range(4)), take(D1))); u_pad(M)
for layer in range(2):
    L0 = layer == 0
    cA, cB = 4*layer, 4*layer + 1
    xa, xb, ha, hb_ = g1_loads(layer, 0), g1_loads(layer, 1), g2_loads(layer, 0), g2_loads(layer, 1)
    if L0:
        vm_ = take(D2); tg_ = t_groups(5)[16:]
        conv_half(M, layer, 0, bg=[tg_[k] + (vm_[k//2] if (k % 2 == 0 and k//2 < len(vm_)) else []) for k in range(16)])
        conv_x(M, 0, 1)
        ab = interleave(gen(conv_ab), [gen(sig_all, cA, "cst")], start=opt("abs0", 30), every=1)
        M.add(interleave(ab, take(D3), start=1))
    else:
        conv_half(M, layer, 0, pre_barrier="@vm xst", after_ln=lambda b: sig_all(b, 3, "xst", barrier=False))
        ab = gen(conv_ab)
        ev = sorted([(opt("abp", 8), 0, gen(poll_all, 3)), (opt("abc", 48), 1, gen(check, "all", 3) + gen(conv_inputs, 1, 1)), (opt("abs", 50), 2, gen(sig_all, cA, "cst"))])
        pos = 0
        for p_, _, g_ in ev:
            M.add(ab[pos:p_]); M.add(g_); pos = p_
        M.add(ab[pos:])
    stamp(M, f"L{layer} conv0 signalled")
    if not L0:
        if opt("lateC", 0):
            conv_half(M, layer, 1, after_mfma=lambda b: poll_all(b, cA))
            g1_pre(M); check(M, "all", cA)
            M.add(flat(xa[:XUP]))
        else:
            conv_half(M, layer, 1, after_ln=lambda b: poll_all(b, cA), after_mfma=lambda b: check(b, "all", cA), tailbg=xa[:XT])
            g1_pre(M)
            M.add(flat(xa[XT:XUP]))
    else:
        assert not wq
        wq += w2_loads()
        sg_ = gen(setup_g2)
        sg_ = sg_[:3] + sg_[-4:] + sg_[3:-4]
        bgs = [sg_[k:k+2] for k in range(0, len(sg_), 2)]
        if W2E:
            wl = take(D4)
            for q, g_ in enumerate(wl): bgs[4 + q * ((len(bgs) - 4) // len(wl))] += g_
        conv_half(M, layer, 1, pre_barrier2="@vm w1", bg=bgs)
        poll_all(M, cA)
        cs_ = gen(colsum); cc = opt("cc", 60)
        M.add(interleave(cs_[:cc], take(D5 if W2E else 0), start=12))
        check(M, "all", cA)
        M.add(interleave(cs_[cc:], xa[:XUP]))
        g1_pre(M)
        M("@lg cs")
    stamp(M, f"L{layer} g1A ready")
    w2 = wq
    def mixw(x_, w_):
        if len(x_) + len(w_) <= 32: return x_ + w_
        x_ = list(x_); w_ = list(w_); o = []
        while x_ or w_:
            for q in range(5):
                src = x_ if (x_ and q < 4) else w_
                if src: o.append(src.pop(0))
                elif x_: o.append(x_.pop(0))
        return o + [[]] * (40 - len(o))
    XP1, HP1 = opt("xp1", 0), opt("hp1", 0)
    g1_loop(M, 0, mixw(xa[XUP:], take(opt("wa", 12))), {(opt("sg00", 0) if L0 else opt("sg0", 2)): lambda b: sig_all(b, cB, "cst")},
            slots=(None if L0 else [(0, 2, 4, 6), (0, 1, 3, 4, 6), (0, 1, 2, 3, 4, 5, 6)][opt("xs", 0)]))
    stamp(M, f"L{layer} g1A loop")
    poll_all(M, cB)
    g1_post1(M, 0, take(opt("wp", 7)), lambda b: check(b, "all", cB), xb[:XP1])
    stamp(M, f"L{layer} g1A post1")
    M.add(interleave(gen(g1_post2, layer, 0), xb[XP1:XPF]))
    g1_store(M, layer, 0, g1_pre)
    stamp(M, f"L{layer} g1A stored")
    if opt("fast", 0) and not L0:
        c1_, c2_ = opt("fc1", 5), opt("fc2", 16)
        n1 = 4 * (8 - c1_)
        g1_loop(M, 1, xb[XPF:] + [[]] * (4*c1_ - (32 - XPF)) + ha[:n1],
                {opt("sg1", 3): lambda b: sig_grp(b, 2*layer, "hst"), c1_ - 1: lambda b: poll_grp(b, 2*layer), c1_: lambda b: check(b, "grp", 2*layer)})
        stamp(M, f"L{layer} g1B loop")
        g1_post1(M, 1, [], lambda b: None, [])
        stamp(M, f"L{layer} g1B post1")
        M.add(interleave(gen(g1_post2, layer, 1), g2_res(layer, 0) + ha[n1:HPF]))
        g1_store(M, layer, 1)
        stamp(M, f"L{layer} g1B stored")
        rest = ha[HPF:]
        n2 = 28 - c2_
        g2_loop(M, 0, rest + [[]] * (c2_ - len(rest)) + hb_[:n2],
                {opt("sg2", 10): lambda b: sig_grp(b, 2*layer+1, "hst"), c2_ - 5: lambda b: poll_grp(b, 2*layer+1), c2_: lambda b: check(b, "grp", 2*layer+1)},
                late=hb_[n2:min(20, n2+8)])
        stamp(M, f"L{layer} g2A loop")
        g2_post1(M, 0); g2_post2(M, layer, 0)
        HP2_ = HUP = min(20, n2 + 8)
    else:
        g1_loop(M, 1, [[]] * opt("xsk", 2) + mixw(xb[XPF:], take(XPF - opt("xsk", 2))), {opt("sg1", 3): lambda b: sig_grp(b, 2*layer, "hst")})
        stamp(M, f"L{layer} g1B loop")
        poll_grp(M, 2*layer)
        g1_post1(M, 1, take(opt("wp", 7)), lambda b: check(b, "grp", 2*layer), ha[:HP1])
        stamp(M, f"L{layer} g1B post1")
        M.add(interleave(gen(g1_post2, layer, 1), g2_res(layer, 0) + ha[HP1:HPF]))
        g1_store(M, layer, 1)
        stamp(M, f"L{layer} g1B stored")
        rest = ha[HPF:]
        if w2:
            mix = []
            while rest or w2:
                mix.append((rest.pop(0) if rest else []) + (w2.pop(0) if w2 else []))
            rest = mix
        HP0 = opt("hp00", 0) if L0 else opt("hp0", 8)
        g2_loop(M, 0, [[]] * opt("hsk", 2) + rest, {opt("sg2", 10): lambda b: sig_grp(b, 2*layer+1, "hst"), (opt("pg2", 20) if HP0 else 27): lambda b: poll_grp(b, 2*layer+1),
                          "end": (lambda b: check(b, "grp", 2*layer+1) if HP0 else None)}, nm=("L1 g2A" if layer and opt("fine", 0) == 1 else None), late=hb_[:HP0])
        stamp(M, f"L{layer} g2A loop")
        if HP0: M.add(interleave(gen(g2_post1, 0) + gen(g2_post2, layer, 0), hb_[HP0:HP0+HP2], end=opt("hpe", 40)))
        else:
            if opt("lateA", 0) and L0:
                g2_post1(M, 0); g2_post2(M, layer, 0); check(M, "grp", 2*layer+1); M.add(flat(hb_[:HP2]))
            else:
                g2_post1(M, 0); check(M, "grp", 2*layer+1)
                M.add(interleave(gen(g2_post2, layer, 0), hb_[:HP2], end=opt("hpe", 30)))
        HP2_ = HP0 + HP2
    if L0 and opt("cpf", 1): M("v_add_u32 v5, s90, v6\nglobal_load_dwordx4 v[252:255], v5, s[42:43]")
    stamp(M, f"L{layer} g2A stored")
    M.add(flat(hb_[HP2_:HUP]))
    if L0:
        g2_loop(M, 1, hb_[HUP:] + g2_res(layer, 1), {opt("sg3", 4): lambda b: sig_all(b, 2, "xst"), 24: lambda b: poll_all(b, 2)}, tg=t_groups())
        stamp(M, f"L{layer} g2B loop")
        g2_post1(M, 1)
        if opt("lateB", 0):
            poll_all(M, 2); g2_post2(M, layer, 1); check(M, "all", 2); conv_inputs(M, 1, 0)
        else:
            check(M, "all", 2); conv_inputs(M, 1, 0)
            g2_post2(M, layer, 1)
        stamp(M, f"L{layer} g2B stored")
        u_pad(M)
    else:
        M("s_barrier")
        g2_loop(M, 1, hb_[HUP:] + g2_res(layer, 1), nm=("L1 g2B" if opt("fine", 0) == 1 else None))
        stamp(M, f"L{layer} g2B loop")
        g2_post1(M, 1); g2_post2(M, layer, 1)
        stamp(M, f"L{layer} g2B stored")
if STAMP:
    M(f"s_cmp_lg_u32 s{sW}, 0\ns_cbranch_scc1 {DONE}")
    M(f"v_mbcnt_lo_u32_b32 v5, -1, 0\nv_mbcnt_hi_u32_b32 v5, -1, v5\nv_lshlrev_b32 v5, 2, v5\ns_lshl_b32 s5, s2, 8\ns_add_u32 s5, s5, {0x1800000 + 0x400000}")
    M(f"buffer_store_dword v7, v5, {WS}, s5 offen")
M.label(DONE)
M("s_endpgm")

a = Asm()
a.kernel(NAME + "_kernel", vgpr=512, sgpr=102, accum=256)
lines = resolve(strip_marks(M.l)) + tail.l + [".Lkend:"]
lines, added = hazard.fix(lines)
a.lines += lines
print("nops added", added, "lines", len(a.lines), file=sys.stderr)
hdr = "".join(l for l in open(f"cdna_kernels/{NAME}.s.ref").readlines() if l.startswith(";") and "@launch" not in l and "Override" not in l and "grid=ceil" not in l)
a.launches = [f"; @launch grid=(256,1,1) block=(256,1,1) lds={LDS_BYTES}"]
open(OUT, "w").write(a.text(hdr))
json.dump(STAMPS, open("work/" + OUT.split("/")[-1] + ".stamps.json", "w"))
```

```python
import sys, struct, json
sys.path.insert(0, "work")
from asmgen import Asm
import hazard
from sched import resolve, interleave, strip_marks
NAME = "interleave_layers__ssm_conv_s4d__dense_activation_silu__prompt"
STAMP = "--stamp" in sys.argv
OPT = dict(x.lstrip("-").split("=") for x in sys.argv[1:] if x.startswith("--") and "=" in x)
def opt(k, d): return type(d)(OPT.get(k, d))
OUT = [x for x in sys.argv[1:] if not x.startswith("--")]
OUT = OUT[0] if OUT else f"cdna_kernels/{NAME}.s"
def f2u(x): return struct.unpack("<I", struct.pack("<f", x))[0]
LOG2E = 1.4426950408889634
GCNT = 6 * 0x8000
ST0 = 0x80000; ST2 = 0x84000
W2F = 0x100000
W1F = 0x1900000
XP = [0x1700000, 0x300000, 0x500000, 0x700000]
HB = [0x900000, 0x1000000]
WS_BYTES = 0x2000000
HT = 114688
LPK = 114688; PKS = 8256; LCS = 131200; LSCR = 131712
LU = LSCR; US = 4608; LEX = LSCR + 9216
ES = 28672; LGT = LEX
LDS_BYTES = 163840
SWS, SW1, SW2, SOUT = 44, 48, 52, 56
sW, sCPI, sRT, sCT, sLT, sDT, sNON, sGC = 60, 61, 62, 63, 64, 65, 66, 67
sDK, sONE, sMSK, sINV, sEPS, sNL2E = 68, 70, 71, 72, 74, 75
sEXS = 76
sB0, sB1, sO, sW2B, sGS = 78, 79, 80, 81, 82
sSTAMP = 84
sEXQ = 92
sEXW = 100
SPIN = 60000
vOUT, vPL, vSG, vPD, vONE = 0, 1, 2, 3, 4
vCX, vCS, vUW, vUR, vTB, vEW, vER, vGX, vWA, vXW, vXR, vSW, vSR, vCSA, vH4, vH2, vHL, vRX, vX2, vE1, vE0, vSA = \
    8, 9, 10, 11, 12, 13, 14, 15, 16, 17, 18, 19, 20, 21, 22, 23, 24, 25, 26, 27, 30, 31
vDMA = 24

HSC = "sc1" if opt("hsc", 1) else opt("hfl", "")
GFLAG = opt("gflag", 0)
if opt("samehb", 0): HB = [HB[0], HB[0]]
NSH = opt('nsh', 8)
class Buf:
    def __init__(self): self.l = []
    def __call__(self, s):
        for ln in s.strip("\n").split("\n"): self.l.append("    " + ln.strip())
    def label(self, n): self.l.append(n + ":")
    def add(self, lines): self.l += lines
uid = [0]
def lab(b="L"):
    uid[0] += 1; return f".{b}_{uid[0]}"
def srd(n): return f"s[{n}:{n+3}]"
def v(n, k=1): return f"v{n}" if k == 1 else f"v[{n}:{n+k-1}]"
def ac(n, k=1): return f"a{n}" if k == 1 else f"a[{n}:{n+k-1}]"
def flat(groups): return [l for g in groups for l in g]
def gen(fn, *args, **kw):
    t = Buf(); fn(t, *args, **kw); return t.l
WS = srd(SWS)
tail = Buf()
STAMPS = []
def stamp(b, name):
    if not STAMP: return
    if opt("light", 0) and name not in ("start", "L1 g2B stored"): return
    i = len(STAMPS); STAMPS.append(name)
    assert i < 64
    b(f"@{{\n{'s_memtime' if opt('cyc', 0) else 's_memrealtime'} s[{sSTAMP}:{sSTAMP+1}]\ns_waitcnt lgkmcnt(0)\nv_writelane_b32 v7, s{sSTAMP}, {i}\n@}}")

FG = opt("fg", 1)
sGP = 91
GADDR = "v_mov_b32 v5, 0" if FG else f"v_and_b32 v5, 0x300, v{vPL}"
GT = 8 if FG else 16
def poll_all(b, cnt):
    b(f"s_mov_b32 s{sO}, {cnt*0x8000}\nbuffer_load_dword v{vPD}, v{vPL}, {WS}, s{sO} offen sc1 ;@poll")
def poll_grp(b, idx):
    b(f"@{{\ns_add_u32 s{sO}, s{sGP}, {idx*16*1024}\n{GADDR}\nbuffer_load_dword v{vPD}, v5, {WS}, s{sO} offen sc1 ;@poll\n@}}")
def check(b, kind, idx):
    slow = lab("slow"); back = lab("back"); lp = lab("lp")
    b("@vm poll")
    b(f"@{{\nv_cmp_gt_u32 vcc, {GT if kind == 'grp' else 256 // NSH}, v{vPD}\ns_cbranch_vccnz {slow}")
    b.label(back); b("@}")
    tail.label(slow)
    tail(f"s_mov_b32 s10, {SPIN}")
    if kind == "all": tail(f"s_mov_b32 s11, {idx*0x8000}\nv_mov_b32 v5, v{vPL}")
    else: tail(f"s_add_u32 s11, s{sGP}, {idx*16*1024}\n{GADDR}")
    tgt = GT if kind == 'grp' else 256 // NSH
    if opt("pp", 1):
        tail(f"buffer_load_dword v{vPD}, v5, {WS}, s11 offen sc1\ns_sleep {opt('ppd', 4)}")
        tail.label(lp)
        tail(f"buffer_load_dword v4, v5, {WS}, s11 offen sc1\ns_waitcnt vmcnt(1)\nv_cmp_gt_u32 vcc, {tgt}, v{vPD}\ns_cbranch_vccz {back}")
        tail(f"buffer_load_dword v{vPD}, v5, {WS}, s11 offen sc1\ns_waitcnt vmcnt(1)\nv_cmp_gt_u32 vcc, {tgt}, v4\ns_cbranch_vccz {back}")
    else:
        tail.label(lp)
        tail(f"buffer_load_dword v{vPD}, v5, {WS}, s11 offen sc1\ns_waitcnt vmcnt(0)")
        tail(f"v_cmp_gt_u32 vcc, {tgt}, v{vPD}\ns_cbranch_vccz {back}")
    tail(f"s_sub_u32 s10, s10, 1\ns_cmp_lg_u32 s10, 0\ns_cbranch_scc1 {lp}\ns_branch {back}")
def sig_all(b, cnt, tag, barrier=True):
    b(f"@vm {tag}\n@{{\n{'s_barrier' if barrier else 's_nop 0'}\ns_mov_b32 s{sO}, {cnt*0x8000}\ns_mov_b64 exec, s[{sEXS}:{sEXS+1}]")
    b(f"v_mov_b32 v5, 1\nbuffer_atomic_add v5, v{vSG}, {WS}, s{sO} offen sc1\ns_mov_b64 exec, -1\n@}}")
def sig_grp(b, idx, tag):
    b(f"@vm {tag}\n@{{\ns_add_u32 s{sO}, s{sGS}, {idx*16*1024}\ns_mov_b64 exec, 1")
    if GFLAG: b(f"buffer_store_dword v{vONE}, off, {WS}, s{sO} {HSC}\ns_mov_b64 exec, -1\ns_barrier\n@}}")
    else: b(f"v_mov_b32 v5, 1\nbuffer_atomic_add v5, off, {WS}, s{sO} sc1\ns_mov_b64 exec, -1\ns_barrier\n@}}")
def xsum(b, regs, tmp, steps):
    for s in steps:
        for i, r in enumerate(regs): b(f"v_mov_b32 v{tmp+i}, v{r}")
        for i, r in enumerate(regs): b(f"v_permlane{s}_swap_b32 v{r}, v{tmp+i}")
        for i, r in enumerate(regs): b(f"v_add_f32 v{r}, v{r}, v{tmp+i}")
def rnd(b, d, s): b(f"v_cvt_pk_bf16_f32 v{d}, 0, v{s}")

M = Buf()
DONE = ".Ldone"
M.label(".Lkstart")
M("s_cmp_ge_u32 s2, 256")
M(f"s_cbranch_scc1 {DONE}")
M("s_load_dwordx16 s[16:31], s[0:1], 0\ns_load_dwordx8 s[32:39], s[0:1], 64\ns_load_dwordx2 s[40:41], s[0:1], 96")
M("s_memrealtime s[14:15]")
M("s_getpc_b64 s[42:43]")
M("v_and_b32 v1, 63, v0\nv_lshlrev_b32 v2, 4, v1\nv_lshrrev_b32 v3, 6, v0")
M(f"v_readfirstlane_b32 s{sW}, v3")
if STAMP: M("v_mov_b32 v7, 0")
M("s_and_b32 s3, s2, 7\ns_lshr_b32 s4, s2, 3")
M(f"s_lshl_b32 s5, s4, 2\ns_add_u32 s5, s5, s{sW}\ns_min_u32 s5, s5, ((.Lkend-.Lkstart-128)>>10)-1\ns_lshl_b32 s5, s5, 10\nv_add_u32 v5, s5, v2")
M("s_mov_b32 s90, s5")
if opt("cp0", 0) == 0: M("global_load_dwordx4 v[200:203], v5, s[42:43]")
M(f"s_lshl_b32 s{sCPI}, s3, 5\ns_add_u32 s{sCPI}, s{sCPI}, s4")
M(f"s_lshl_b32 s5, s2, 13\ns_lshl_b32 s6, s{sW}, 11\ns_add_u32 s5, s5, s6\nv_add_u32 v62, s5, v2")
M(f"s_lshl_b32 s5, s{sCPI}, 9\nv_lshlrev_b32 v63, 1, v0\nv_add_u32 v63, s5, v63")
M(f"s_lshr_b32 s5, s2, 2\ns_lshl_b32 s5, s5, 15\ns_and_b32 s6, s2, 3\ns_lshl_b32 s6, s6, 8\ns_add_u32 s5, s5, s6\ns_lshl_b32 s6, s{sW}, 6\ns_add_u32 s5, s5, s6")
M("v_and_b32 v5, 7, v1\nv_lshlrev_b32 v64, 12, v5\nv_lshrrev_b32 v6, 3, v1\nv_lshl_add_u32 v64, v6, 3, v64\nv_add_u32 v64, s5, v64")
M("s_waitcnt lgkmcnt(0)")
stamp(M, "start")
if opt("cp0", 0) == 3:
    M(f"s_lshl_b32 s5, s4, 2\ns_add_u32 s5, s5, s{sW}\ns_mul_i32 s5, s5, 384\ns_min_u32 s5, s5, .Lkend-.Lkstart-512")
    M("s_add_u32 s6, s5, 128\ns_add_u32 s10, s5, 256\ns_load_dword s86, s[42:43], s5\ns_load_dword s87, s[42:43], s6\ns_load_dword s10, s[42:43], s10")
for i, dst in enumerate([216, 220, 218, 222]): M(f"global_load_dwordx2 {v(dst,2)}, v64, s[16:17] offset:{i*1024} ;@b1")
M("global_load_dwordx4 v[32:35], v62, s[16:17] ;@b1\nglobal_load_dwordx4 v[36:39], v62, s[16:17] offset:1024 ;@b1")
for i in range(4): M(f"global_load_ushort v{48+i}, v63, s[{18+2*i}:{19+2*i}] ;@par")
M(f"s_and_b32 s{sCT}, s4, 15")
M(f"s_lshl_b32 s{sRT}, s3, 1\ns_lshr_b32 s5, s4, 4\ns_add_u32 s{sRT}, s{sRT}, s5")
M(f"s_lshl_b32 s{sLT}, s{sRT}, 1\ns_bfe_u32 s5, s4, 0x10003\ns_add_u32 s{sLT}, s{sLT}, s5\ns_and_b32 s{sDT}, s4, 7")
M(f"s_lshl_b32 s{sGC}, s{sRT}, 10\ns_add_u32 s{sGC}, s{sGC}, {GCNT}\ns_lshl_b32 s5, s{sW}, 8\ns_add_u32 s{sGS}, s{sGC}, s5")
M(f"s_mov_b32 s{sONE}, 0x3f803f80\ns_mov_b32 s{sMSK}, 0xffff0000\ns_mov_b32 s{sINV}, {f2u(1/512):#x}\ns_mov_b32 s{sINV+1}, {f2u(1/512):#x}")
M(f"s_mov_b32 s{sEPS}, {f2u(1e-5):#x}\ns_mov_b32 s{sNL2E}, {f2u(-LOG2E):#x}")
M(f"s_lshl_b32 s5, s{sW}, 1\ns_lshl_b32 s{sEXS}, 3, s5\ns_mov_b32 s{sEXS+1}, 0")
M(f"s_lshl_b32 s5, s{sW}, 2\ns_lshl_b32 s{sEXQ}, 0x000f000f, s5\ns_mov_b32 s{sEXQ+1}, s{sEXQ}")
M("v_and_b32 v5, 7, v1\nv_lshrrev_b32 v6, 3, v1")
M("v_lshlrev_b32 v65, 10, v6\nv_lshl_add_u32 v65, v5, 4, v65\nv_lshlrev_b32 v207, 9, v6\nv_lshl_add_u32 v207, v5, 4, v207")
M(f"s_lshl_b32 s94, s2, 2\ns_add_u32 s94, s94, s{sW}\ns_min_u32 s94, s94, 895")
M("s_mul_i32 s95, s94, 2341\ns_lshr_b32 s95, s95, 16\ns_mul_i32 s5, s95, 28\ns_sub_u32 s96, s94, s5")
M("s_and_b32 s5, s95, 3\ns_mul_i32 s5, s5, 448\ns_lshl_b32 s6, s96, 4\ns_add_u32 s5, s5, s6\ns_lshl_b32 s7, s5, 10\ns_lshr_b32 s5, s95, 2\ns_lshl_b32 s5, s5, 7\ns_add_u32 s7, s7, s5")
M(f"s_lshl_b32 s9, s{sW}, 12\ns_add_u32 s9, s9, {LPK}")
M(f"s_mov_b32 s{SWS+2}, {WS_BYTES:#x}\ns_mov_b32 s{SWS+3}, 0x20000")
M(f"s_mov_b32 s{SWS}, s40\ns_mov_b32 s{SWS+1}, s41")
n0 = lab("n0"); n1 = lab("n1")
M(f"s_cmp_ge_u32 s2, 128\ns_cbranch_scc1 {n1}")
M(f"s_or_b32 s5, s2, s{sW}\ns_cmp_lg_u32 s5, 0\ns_cbranch_scc1 {n0}")
M("s_or_b32 s14, s14, 1\nv_mov_b32 v5, s14\nv_lshlrev_b32 v6, 2, v1\nglobal_store_dword v6, v5, s[38:39] sc1 ;@!")
M.label(n0)
M(f"s_lshl_b32 s5, s2, 2\ns_add_u32 s5, s5, s{sW}\ns_lshl_b32 s6, s5, 9\ns_lshl_b32 s5, s5, 5\ns_add_u32 s5, s5, {ST2}")
M("v_mov_b32 v4, 0\nv_mov_b32 v5, 0\nv_lshlrev_b32 v6, 3, v1\nv_lshlrev_b32 v8, 2, v1")
M(f"buffer_store_dwordx2 v[4:5], v6, {WS}, s6 offen sc1 ;@!\ns_mov_b64 exec, 0xff\nbuffer_store_dword v5, v8, {WS}, s5 offen sc1 ;@!\ns_mov_b64 exec, -1")
M.label(n1)
for sd, sb, nb in [(SW1, 32, 512*1792*2), (SW2, 34, 512*1792*2), (SOUT, 36, 2048*512*2)]:
    M(f"s_mov_b32 s{sd}, s{sb}\ns_mov_b32 s{sd+1}, s{sb+1}\ns_mov_b32 s{sd+2}, {nb:#x}\ns_mov_b32 s{sd+3}, 0x20000")
M(f"s_mov_b32 m0, s9\ns_add_u32 s5, s7, 8192\nbuffer_load_dwordx4 v65, {srd(SW2)}, s7 offen lds ;@b2\ns_add_u32 m0, s9, 1024\ns_nop 0\nbuffer_load_dwordx4 v65, {srd(SW2)}, s5 offen lds ;@b2")
M(f"s_lshl_b32 s5, s{sCPI}, 2")
M("s_load_dword s12, s[26:27], s5\ns_load_dword s13, s[28:29], s5")
if opt("tlb", 0):
    M(f"v_lshlrev_b32 v5, 20, v1\ns_mov_b64 exec, 0x7ffffff\ns_mov_b32 s5, 0xc0000\nbuffer_load_dword v240, v5, {WS}, s5 offen sc1\ns_mov_b64 exec, 3")
    M(f"buffer_load_dword v243, v5, {srd(SOUT)}, 0 offen\ns_mov_b64 exec, -1")
M("v_and_b32 v60, 15, v1\nv_lshrrev_b32 v61, 4, v1")
sD0, sD1 = 88, 89
sRX, sRH = 16, 24
M(f"s_mul_i32 s{sD0}, s{sW}, {128*3584}\ns_mul_i32 s5, s{sCT}, 224\ns_add_u32 s{sD0}, s{sD0}, s5\ns_mul_i32 s{sD1}, s{sW}, 28672")
dma = [[f"    s_add_u32 m0, s{sD1}, {p*1024}", f"    s_add_u32 s{sB1}, s{sD0}, {(p//7)*32*3584}", f"    buffer_load_dwordx4 v{vDMA+p%7}, {srd(SW1)}, s{sB1} offen lds ;@w1"] for p in range(28)]
dma = dma[17:] + dma[:17]
def setup_dma(b):
    b(f"s_and_b32 s7, s{sCT}, 1\ns_lshl_b32 s8, s7, 5\ns_mul_i32 s7, s7, 192\ns_sub_u32 s7, 192, s7")
    b("v_and_b32 v64, 3, v1\nv_lshlrev_b32 v64, 4, v64\nv_add_u32 v65, s8, v64\nv_xor_b32 v66, 32, v64")
    b(f"v_add_u32 v66, s8, v66\nv_add_u32 v66, {3584-192}, v66")
    b("v_and_b32 v67, 16, v64\nv_add_u32 v67, s7, v67\nv_lshrrev_b32 v64, 5, v64\nv_mul_u32_u24 v64, 3584, v64")
    b(f"v_add_u32 v67, v67, v64\nv_subrev_u32 v67, {6*64}, v67\nv_lshrrev_b32 v64, 2, v1")
    for k in range(7):
        b(f"v_add_u32 v5, {16*k}, v64\nv_mul_u32_u24 v6, 9363, v5\nv_lshrrev_b32 v6, 16, v6\nv_mul_u32_u24 v62, 7, v6\nv_sub_u32 v5, v5, v62")
        b(f"@{{\nv_cmp_lt_u32 vcc, 2, v5\nv_mul_u32_u24 v6, 7168, v6\nv_lshl_add_u32 v6, v5, 6, v6\nv_cndmask_b32 v62, v65, v66, vcc\nv_cmp_eq_u32 vcc, 6, v5\ns_nop 1\nv_cndmask_b32 v62, v62, v67, vcc\n@}}")
        b(f"v_add_u32 v{vDMA+k}, v6, v62")
def setup(b):
    b(f"s_and_b32 s5, s{sW}, 1\ns_lshr_b32 s6, s{sW}, 1")
    b(f"v_bfe_u32 v{vCX}, v1, 2, 2\nv_lshlrev_b32 v{vCX}, 16, v{vCX}\nv_and_b32 v5, 3, v1\nv_lshl_add_u32 v{vCX}, v5, 6, v{vCX}\nv_lshl_add_u32 v{vCX}, v61, 4, v{vCX}")
    b(f"s_lshl_b32 s7, s{sW}, 18\ns_lshl_b32 s8, s{sCPI}, 8\ns_add_u32 s7, s7, s8\nv_add_u32 v{vCX}, s7, v{vCX}")
    b(f"v_lshlrev_b32 v{vCS}, 7, v60\nv_lshl_add_u32 v{vCS}, v61, 5, v{vCS}\ns_lshl_b32 s7, s{sW}, 11\nv_add_u32 v{vCS}, s7, v{vCS}")
    b(f"v_lshlrev_b32 v5, 5, v60\nv_lshl_add_u32 v{vUW}, v61, 3, v5\ns_lshl_b32 s7, s{sW}, 9\ns_add_u32 s7, s7, {LU+512}\nv_add_u32 v{vUW}, s7, v{vUW}")
    b(f"v_lshl_add_u32 v{vUR}, v61, 4, v5\ns_mul_i32 s7, s6, {US}\ns_lshl_b32 s8, s5, 8\ns_sub_u32 s7, s7, s8\ns_add_u32 s7, s7, {LU}\nv_add_u32 v{vUR}, s7, v{vUR}")
    b(f"v_lshlrev_b32 v5, 3, v61\nv_sub_u32 v5, v60, v5\nv_lshlrev_b32 v5, 2, v5\ns_mul_i32 s7, s6, {PKS}\ns_lshl_b32 s8, s5, 9\ns_add_u32 s7, s7, s8\ns_add_u32 s7, s7, {LPK+26*4}\nv_add_u32 v{vTB}, s7, v5")
    b(f"s_lshl_b32 s7, s{sW}, 10\ns_add_u32 s7, s7, {LEX}\nv_add_u32 v{vEW}, s7, v2\ns_lshl_b32 s7, s{sW}, 12\ns_add_u32 s7, s7, {LEX}\nv_add_u32 v{vER}, s7, v2")
    b(f"v_lshlrev_b32 v{vGX}, 9, v61\nv_lshl_add_u32 v{vGX}, v60, 3, v{vGX}\ns_lshl_b32 s7, s{sRT}, 16\ns_lshl_b32 s8, s5, 7\ns_add_u32 s7, s7, s8\ns_lshl_b32 s8, s6, 15\ns_add_u32 s7, s7, s8\nv_add_u32 v{vGX}, s7, v{vGX}")
    b(f"v_lshlrev_b32 v5, 2, v61\nv_bfe_u32 v6, v1, 2, 2\nv_add_u32 v5, v5, v6\nv_mul_u32_u24 v5, 224, v5\nv_and_b32 v6, 3, v1\nv_lshl_add_u32 v5, v6, 3, v5\ns_mul_i32 s7, s6, {256*224}\nv_add_u32 v{vWA}, s7, v5")
    b(f"s_mul_i32 s7, s{sW}, 7680\ns_add_u32 s7, s7, {LSCR}\nv_add_u32 v{vXW}, s7, v2")
    b(f"v_lshrrev_b32 v5, 5, v1\nv_xor_b32 v5, s6, v5\nv_lshlrev_b32 v5, 8, v5\nv_lshl_add_u32 v5, v1, 2, v5\ns_lshl_b32 s7, s5, 9\ns_add_u32 s7, s7, {LSCR+30720}\nv_add_u32 v{vSW}, s7, v5")
    b(f"s_lshl_b32 s8, s6, 8\ns_add_u32 s7, s7, s8\nv_lshlrev_b32 v5, 2, v60\nv_add_u32 v{vSR}, s7, v5")
    b(f"s_xor_b32 s7, s{sW}, 2\ns_mul_i32 s7, s7, 7680\ns_add_u32 s7, s7, {LSCR}\nv_add_u32 v{vXR}, s7, v2")
    b(f"v_lshlrev_b32 v{vCSA}, 4, v61\nv_add_u32 v{vCSA}, {LCS}, v{vCSA}")
    b(f"s_lshl_b32 s7, s{sRT}, 1\ns_add_u32 s7, s7, s5\ns_mul_i32 s7, s7, {HT}\ns_mul_i32 s8, s{sCT}, 7168\ns_add_u32 s7, s7, s8\ns_lshl_b32 s8, s6, 8\ns_add_u32 s7, s7, s8")
    b(f"v_and_b32 v5, 1, v61\nv_lshrrev_b32 v6, 1, v61\nv_lshlrev_b32 v{vH2}, 9, v6\nv_lshl_add_u32 v{vH2}, v60, 4, v{vH2}\nv_add_u32 v{vH2}, s7, v{vH2}\nv_lshl_add_u32 v{vH4}, v5, 10, v{vH2}\nv_lshl_add_u32 v{vH2}, v5, 3, v{vH2}")
    b(f"s_and_b32 s7, s{sCT}, 1\ns_lshl_b32 s8, s7, 10\nv_add_u32 v{vH4}, s8, v{vH4}\ns_mul_i32 s8, s7, 6144\nv_subrev_u32 v{vH2}, s8, v{vH2}")
    b(f"v_and_b32 v204, {NSH-1}, v1\nv_lshlrev_b32 v204, 8, v204\ns_lshl_b32 s7, s3, 12\nv_add_u32 v204, s7, v204")
    b(f"v_lshlrev_b32 v205, 12, v1\ns_and_b32 s7, s{sCT}, {NSH-1}\ns_lshl_b32 s7, s7, 8\nv_add_u32 v205, s7, v205\nv_mov_b32 v{vONE}, 1")
    b(f"s_load_dword s{sNON}, s[38:39], 0")
    for k in range(9):
        b(f"v_lshlrev_b32 v5, 3, v0\nv_add_u32 v5, {k-1}, v5")
        if k == 0: b("v_max_i32 v5, 0, v5")
        b("v_cvt_f32_u32 v5, v5\nv_cvt_pk_bf16_f32 v5, 0, v5\nv_cvt_u32_f32 v6, v5")
        b("v_lshrrev_b32 v5, 23, v5\nv_subrev_u32 v5, 134, v5\nv_med3_i32 v5, v5, 0, 3")
        b("v_lshrrev_b32 v62, 7, v6\nv_and_b32 v63, 7, v6\nv_lshl_or_b32 v62, v62, 3, v63\nv_lshrrev_b32 v62, v5, v62\nv_lshl_add_u32 v62, v5, 3, v62")
        b(f"v_bfe_u32 v6, v6, 3, 4\nv_lshlrev_b32 v6, 2, v6\nv_lshl_add_u32 v6, v62, 6, v6\nv_add_u32 v{IDX+k}, {LGT}, v6")
def setup_g2(b):
    b("v_mbcnt_lo_u32_b32 v248, -1, 0\nv_mbcnt_hi_u32_b32 v248, -1, v248\nv_lshlrev_b32 v6, 4, v248")
    b(f"s_mul_i32 s7, s{sLT}, {HT}\ns_mul_i32 s8, s{sW}, 28672\ns_add_u32 s7, s7, s8\nv_add_u32 v{vHL}, s7, v6")
    b("v_and_b32 v249, 15, v248\nv_lshlrev_b32 v249, 1, v249\nv_bfe_u32 v5, v248, 4, 1\nv_add_u32 v249, v249, v5\nv_lshrrev_b32 v250, 5, v248")
    b(f"s_lshr_b32 s7, s{sLT}, 1\ns_lshl_b32 s7, s7, 16\ns_and_b32 s8, s{sLT}, 1\ns_lshl_b32 s8, s8, 7\ns_add_u32 s7, s7, s8\ns_lshl_b32 s8, s{sDT}, 13\ns_add_u32 s7, s7, s8\ns_lshl_b32 s8, s{sW}, 11\ns_add_u32 s7, s7, s8")
    b(f"v_lshlrev_b32 v{vX2}, 9, v250\nv_lshl_add_u32 v{vX2}, v249, 2, v{vX2}\nv_add_u32 v{vX2}, s7, v{vX2}\ns_and_b32 s8, s{sDT}, 4\nv_xor_b32 v{vRX}, s8, v{vX2}")
    for sg in range(1, 4):
        b(f"s_xor_b32 s7, s{sW}, {sg}\ns_mul_i32 s7, s7, 6144\ns_add_u32 s7, s7, {LSCR+(sg-1)*2048}\nv_add_u32 v{vE1+sg-1}, s7, v6")
    b(f"s_mul_i32 s7, s{sW}, 6144\ns_add_u32 s7, s7, {LSCR}\nv_add_u32 v{vE0}, s7, v6")
    b(f"v_lshlrev_b32 v{vSA}, 3, v249\nv_lshl_add_u32 v{vSA}, v250, 2, v{vSA}\ns_lshl_b32 s7, s{sLT}, 8\nv_add_u32 v{vSA}, s7, v{vSA}")
    b(f"v_lshlrev_b32 v{vOUT}, 10, v249\nv_lshl_add_u32 v{vOUT}, v250, 4, v{vOUT}\ns_lshl_b32 s7, s{sLT}, 15\ns_lshl_b32 s8, s{sDT}, 7\ns_add_u32 s7, s7, s8\ns_lshl_b32 s8, s{sW}, 5\ns_add_u32 s7, s7, s8\nv_add_u32 v{vOUT}, s7, v{vOUT}")
    b(f"s_lshl_b32 s5, s{sDT}, 2\ns_add_u32 s5, s5, s{sW}\ns_mul_i32 s5, s5, 57344\ns_add_u32 s{sW2B}, s5, {W2F}")
def setup_p0(b):
    if FG:
        b(f"s_lshr_b32 s5, s{sCT}, 2\ns_lshl_b32 s5, s5, 1\ns_and_b32 s6, s{sW}, 1\ns_add_u32 s5, s5, s6\ns_lshl_b32 s5, s5, 7\ns_add_u32 s{sGS}, s{sGC}, s5")
        b(f"s_lshl_b32 s5, s{sW}, 1\ns_and_b32 s6, s{sLT}, 1\ns_add_u32 s5, s5, s6\ns_lshl_b32 s5, s5, 7\ns_add_u32 s{sGP}, s{sGC}, s5")
    else: b(f"s_mov_b32 s{sGP}, s{sGC}")
    b(f"@{{\ns_cmp_ge_u32 s{sCPI}, 128\ns_cselect_b64 s[{sEXW}:{sEXW+1}], -1, 0\n@}}")
    b("v_lshrrev_b32 v254, 5, v1")
    b("s_and_b32 s5, s95, 3\nv_and_b32 v5, 1, v61\nv_xor_b32 v209, s5, v5\nv_xor_b32 v210, 2, v209")
    b("v_lshlrev_b32 v5, 3, v254\nv_bfe_u32 v6, v1, 2, 2\nv_add_u32 v5, v5, v6\nv_lshlrev_b32 v5, 7, v5\nv_and_b32 v62, 3, v1\nv_lshl_add_u32 v5, v62, 3, v5\nv_add_u32 v5, s9, v5")
    b("v_lshl_add_u32 v209, v209, 5, v5\nv_lshl_add_u32 v210, v210, 5, v5")
    b(f"s_lshl_b32 s99, s94, 11\ns_add_u32 s99, s99, {W2F}")
    b(f"s_lshl_b32 s11, s4, 16\ns_bfe_u32 s6, s2, 0x10002\ns_lshl_b32 s6, s6, 7\ns_add_u32 s11, s11, s6\ns_and_b32 s6, s2, 3\ns_lshl_b32 s6, s6, 14\ns_add_u32 s11, s11, s6\ns_lshl_b32 s6, s{sW}, 12\ns_add_u32 s11, s11, s6\ns_add_u32 s11, s11, {XP[0]}")
IDX = 100
wq = list(dma)
def take(n):
    r = wq[:n]; del wq[:n]; return r
setup_p0(M); setup_dma(M)
M.add(interleave(gen(setup), take(opt("e0", 0)), start=20))
stamp(M, "p0 setup")
M("@vm b1")
stamp(M, "p0 rows")
M("v_swap_b32 v217, v220\nv_swap_b32 v219, v222")
M(f"buffer_store_dwordx4 v[216:219], v207, {WS}, s11 offen sc1 ;@p0s\nbuffer_store_dwordx4 v[220:223], v207, {WS}, s11 offen offset:256 sc1 ;@p0s")
for i in range(4): M(f"v_mov_b32 v{52+i}, 0")
for q in range(4):
    M(f"v_dot2c_f32_bf16 v52, s{sONE}, v{32+q}\nv_dot2c_f32_bf16 v53, v{32+q}, v{32+q}")
    M(f"v_dot2c_f32_bf16 v54, s{sONE}, v{36+q}\nv_dot2c_f32_bf16 v55, v{36+q}, v{36+q}")
for m_ in ["quad_perm:[1,0,3,2]", "quad_perm:[2,3,0,1]", "row_half_mirror", "row_mirror"]:
    for i in range(4): M(f"v_add_f32_dpp v{52+i}, v{52+i}, v{52+i} {m_} row_mask:0xf bank_mask:0xf")
xsum(M, [52, 53, 54, 55], 56, [16, 32])
for r in (52, 54): M(f"v_pk_mul_f32 {v(r,2)}, {v(r,2)}, s[{sINV}:{sINV+1}]")
for r in (52, 54): M(f"v_fma_f32 v{r+1}, -v{r}, v{r}, v{r+1}")
for r in (52, 54): rnd(M, r+1, r+1)
for r in (52, 54): M(f"v_add_f32 v{r+1}, s{sEPS}, v{r+1}")
for r in (52, 54): rnd(M, r+1, r+1)
for r in (52, 54): M(f"v_sqrt_f32 v{r+1}, abs(v{r+1})")
for r in (52, 54): M(f"v_cvt_pk_bf16_f32 v{r}, v{r}, v{r+1}")
M(f"s_lshl_b32 s5, s2, 6\ns_lshl_b32 s6, s{sW}, 4\ns_add_u32 s5, s5, s6\ns_add_u32 s15, s5, {ST0}")
stamp(M, "p0 stats")
nn = lab("nn"); nl = lab("nl"); nb = lab("nb")
M("s_waitcnt lgkmcnt(0)")
M(f"s_cmp_eq_u32 s{sNON}, 0\ns_cbranch_scc1 {nn}")
M.label(nb)
tail.label(nn)
for k in range(1, 4):
    tail(f"s_load_dword s{sNON}, s[38:39], {64*k}\ns_waitcnt lgkmcnt(0)\ns_cmp_lg_u32 s{sNON}, 0\ns_cbranch_scc1 {nb}")
tail(f"s_mov_b32 s10, {SPIN}\nv_mov_b32 v5, 0")
tail.label(nl)
tail("global_load_dword v6, v5, s[38:39] sc1\ns_waitcnt vmcnt(0)")
tail(f"v_readfirstlane_b32 s{sNON}, v6\ns_cmp_lg_u32 s{sNON}, 0\ns_cbranch_scc1 {nb}")
tail(f"s_sub_u32 s10, s10, 1\ns_cmp_lg_u32 s10, 0\ns_cbranch_scc1 {nl}\ns_branch {nb}")
M(f"v_mov_b32 v212, v52\nv_mov_b32 v213, s{sNON}\nv_mov_b32 v214, v54\nv_mov_b32 v215, s{sNON}")
publish = gen(lambda b: (b(f"@vm p0s\n@{{\ns_barrier\ns_mov_b64 exec, 1\nbuffer_store_dwordx4 v[212:215], off, {WS}, s15 sc1\ns_mov_b64 exec, -1\n@}}"), stamp(b, "p0 published")))
def w2_relay(b):
    n3 = lab("n3")
    b("@vm b2")
    for mt in range(2):
        for hf in range(2): b(f"ds_read_b64_tr_b16 {v(224+4*mt+2*hf,2)}, v{209+mt} offset:{hf*512} ;@w2r")
    b(f"@lg w2r\n@{{\ns_cmp_ge_u32 s2, 224\ns_cbranch_scc1 {n3}")
    b(f"buffer_store_dwordx4 v[224:227], v2, {WS}, s99 offen sc1 ;@!\nbuffer_store_dwordx4 v[228:231], v2, {WS}, s99 offen offset:1024 sc1 ;@!")
    b.label(n3); b("@}")
def kgen(Kg):
    Kg(f"s_lshl_b32 s{sDK}, s13, 16\ns_and_b32 s{sDK+1}, s13, s{sMSK}")
    Kg(f"@{{\ns_lshl_b32 s5, s12, 16\ns_and_b32 s6, s12, s{sMSK}\ns_cmp_ge_u32 s{sW}, 2\ns_cselect_b32 s5, s6, s5\n@}}")
    L2E = f"{f2u(LOG2E):#x}"
    VAL = lambda row: 110 + 2*row if row < 45 else 62 + 2*(row - 45)
    Kg(f"v_mov_b32 v5, s5\nv_mul_f32 v5, {L2E}, v5\nv_exp_f32 v5, v5")
    for i in range(4): Kg(f"v_lshlrev_b32 v{48+i}, 16, v{48+i}")
    Kg(f"v_mul_f32 v48, {L2E}, v48\nv_exp_f32 v48, v48")
    Kg(f"s_mul_i32 s5, s{sW}, {ES}")
    Kg("v_lshlrev_b32 v98, 2, v1\nv_add_u32 v98, s5, v98")
    rnd(Kg, 5, 5); rnd(Kg, 48, 48)
    Kg(f"v_mul_f32 v49, v49, v5\nv_mul_f32 v48, v48, v5\nv_mul_f32 v49, 0.15915494, v49\nv_mul_f32 v48, s{sNL2E}, v48")
    Kg(f"v_add_f32 v5, v5, v5\nv_mul_f32 v{VAL(0)}, v50, v5\nv_mul_f32 v{VAL(0)+1}, v51, v5")
    E1, E8, E128, E1K = VAL(17), 34, VAL(24), VAL(48)
    PS = [(E1, 1.0), (E8, 8.0), (E128, 128.0), (E1K, 1024.0)]
    for k, (dst, p) in enumerate(PS): Kg(f"v_mul_f32 v{52+k}, {f2u(p):#x}, v48\nv_mul_f32 v{56+k}, {f2u(p):#x}, v49")
    for k, (dst, p) in enumerate(PS): Kg(f"v_exp_f32 v{52+k}, v{52+k}\nv_fract_f32 v{56+k}, v{56+k}")
    for k, (dst, p) in enumerate(PS): Kg(f"v_cos_f32 v{dst}, v{56+k}\nv_sin_f32 v{dst+1}, v{56+k}")
    Kg("v_mul_u32_u24 v99, 272, v60\nv_lshl_add_u32 v99, v61, 4, v99\nv_add_u32 v99, s5, v99")
    Kg(f"v_mov_b32 v{VAL(16)}, 1.0\nv_mov_b32 v{VAL(16)+1}, 0")
    for k, (dst, p) in enumerate(PS): Kg(f"v_mul_f32 v{dst}, v{dst}, v{52+k}\nv_mul_f32 v{dst+1}, v{dst+1}, v{52+k}")
    e16, e32, e64 = 36, 38, 32
    V = VAL
    levels = [
        [(V(1), V(0), E8), (V(18), E1, E1), (V(32), E128, E128), (e16, E8, E8), (V(56), E1K, E1K), (V(25), E1, E128), (V(49), E1K, E128)],
        [(e32, e16, e16), (V(20), V(18), V(18)), (V(40), V(32), V(32)), (V(2), V(0), e16), (V(3), V(1), e16), (V(19), V(18), E1), (V(36), V(32), E128),
         (V(26), V(18), E128), (V(50), E1K, V(32)), (V(33), V(32), V(18))],
        [(e64, e32, e32), (V(4), V(0), e32), (V(5), V(1), e32), (V(6), V(2), e32), (V(7), V(3), e32), (V(21), V(20), E1), (V(22), V(20), V(18)), (V(23), V(20), V(19)),
         (V(42), V(40), E128), (V(44), V(40), V(32)), (V(46), V(40), V(36)), (V(27), V(19), E128), (V(28), V(20), E128), (V(51), E1K, V(36)), (V(52), E1K, V(40)),
         (V(34), V(32), V(20)), (V(37), V(36), V(18)), (V(38), V(36), V(20)), (V(41), V(40), V(20))],
        [(V(8 + i), V(i), e64) for i in range(8)] +
        [(V(29), V(21), E128), (V(30), V(22), E128), (V(31), V(23), E128), (V(35), V(32), V(22)), (V(39), V(36), V(22)),
         (V(43), V(42), V(20)), (V(45), V(44), V(20)), (V(47), V(46), V(20)), (V(53), E1K, V(42)), (V(54), E1K, V(44)), (V(55), E1K, V(46))],
    ]
    row_of = {VAL(r): r for r in range(57)}
    pend = [0, 16, 17, 24, 48]; written = []
    rot = [0]
    def puts(rows):
        g = []
        for r in rows:
            t = 86 + rot[0] % 12; rot[0] += 1
            g.append((f"    v_cvt_pk_bf16_f32 v{t}, v{VAL(r)}, {'-' if r < 16 else ''}v{VAL(r)+1}", f"    ds_write_b32 v98, v{t} offset:{r*272}"))
            written.append(r)
        out = []
        for k in range(len(g) + 1):
            out.append(([g[k][0]] if k < len(g) else []) + ([g[k-1][1]] if k > 0 else []))
        return out
    for lv in levels:
        t = Buf()
        for d_, x_, y_ in lv: t(f"v_pk_mul_f32 {v(d_,2)}, {v(x_,2)}, {v(y_,2)} op_sel_hi:[1,0]")
        for d_, x_, y_ in lv: t(f"v_pk_fma_f32 {v(d_,2)}, {v(x_,2)}, {v(y_,2)}, {v(d_,2)} op_sel:[1,1,0] op_sel_hi:[0,1,1] neg_lo:[1,0,0]")
        Kg.add(interleave(t.l, puts(pend)))
        pend = [row_of[d_] for d_, _, _ in lv if d_ in row_of]
    Kg.add(flat(puts(pend)))
    assert sorted(written) == list(range(57))
    LOF, HF, GD = 110, 126, 62
    Kg("s_waitcnt lgkmcnt(0)")
    for s_ in range(4):
        Kg(f"ds_read_b128 {v(LOF+4*s_,4)}, v99 offset:{s_*64} ;@kf{s_}")
        for T in range(3): Kg(f"ds_read_b128 {v(HF+16*T+4*s_,4)}, v99 offset:{(16+16*T)*272+s_*64} ;@kf{s_}")
    Kg(f"s_mul_i32 s5, s{sW}, 3072\ns_add_u32 s5, s5, {LGT}")
    Kg("v_lshlrev_b32 v5, 2, v60\nv_lshl_add_u32 v5, v61, 8, v5\nv_add_u32 v5, s5, v5")
    for s_ in range(4):
        Kg(f"@lg kf{s_}")
        for T in range(3): Kg(f"v_mfma_f32_16x16x32_bf16 {v(GD+4*T,4)}, {v(HF+16*T+4*s_,4)}, {v(LOF+4*s_,4)}, {'0' if s_ == 0 else v(GD+4*T,4)}")
    for T in range(3):
        for r in range(0, 4, 2): Kg(f"ds_write2_b32 v5, v{GD+4*T+r}, v{GD+4*T+r+1} offset0:{r*16} offset1:{r*16+16}") if T == 0 else None
        if T:
            for r in range(4): Kg(f"ds_write_b32 v5, v{GD+4*T+r} offset:{(T*16+r)*64}")
M("@vm par")
kl = gen(kgen)
PUB = opt("pub", 110)
cpl = ["    v_add_u32 v200, s90, v2", "    global_load_dwordx4 v[200:203], v200, s[42:43]"] if opt("cp0", 0) == 1 else []
W2E = opt("w2e", 1)
if W2E:
    publish = [l.replace("@vm p0s", "s_waitcnt vmcnt(0)") for l in publish]
    kl = interleave(kl, [publish + cpl], start=PUB, every=1)
    kl = gen(w2_relay) + kl
else: kl = interleave(kl, [publish + cpl + gen(w2_relay)], start=PUB, every=1)
M.add(interleave(kl, take(11 - opt("e0", 0)), start=opt("e1", 130)))
stamp(M, "kgen core")
M(f"s_mov_b32 s{sO}, {ST0}\nbuffer_load_dwordx4 v[232:235], v{vCS}, {WS}, s{sO} offen sc1 ;@cin\nbuffer_load_dwordx4 v[236:239], v{vCS}, {WS}, s{sO} offen offset:16 sc1 ;@cin")
M(f"s_mov_b32 s{sO}, {ST0+8192}\nbuffer_load_dwordx4 v[240:243], v{vCS}, {WS}, s{sO} offen sc1 ;@cin\nbuffer_load_dwordx4 v[244:247], v{vCS}, {WS}, s{sO} offen offset:16 sc1 ;@cin")
M("s_waitcnt lgkmcnt(0)\ns_barrier")
for c in range(2):
    for k in range(9): M(f"ds_read2st64_b32 {v(110+c*18+2*k,2)}, v{IDX+k} offset0:{24*c} offset1:{24*c+12} ;@g{c}")
M(f"v_bfe_u32 v5, v0, 4, 1\nv_mul_u32_u24 v5, {PKS}, v5\nv_lshl_add_u32 v5, v60, 2, v5\nv_add_u32 v5, {LPK}, v5\nv_mov_b32 v6, 0")
M("ds_write_b32 v5, v6")
M(f"v_lshlrev_b32 v5, 5, v0\nv_add_u32 v5, {LPK+64}, v5")
M("v_cmp_eq_u32 vcc, 0, v0")
for c in range(2):
    M(f"@lg g{c}")
    for k in range(9):
        r = 110 + c*18 + 2*k
        M(f"v_add_f32 v{r}, v{r}, v{r+1}")
    M(f"v_cndmask_b32 v{110+c*18}, v{110+c*18}, v6, vcc")
    for k in range(8): M(f"v_cvt_pk_bf16_f32 v{72+c*8+k}, v{110+c*18+2*(k+1)}, v{110+c*18+2*k}")
    M(f"ds_write_b128 v5, {v(72+c*8,4)} offset:{c*PKS}\nds_write_b128 v5, {v(76+c*8,4)} offset:{c*PKS+16}")
T0, U0, ACC = 32, 160, 224
BASE, RV, CST, UPK = 224, 232, 232, 240
def conv_stats(b, layer, half):
    b(f"s_mov_b32 s{sO}, {(ST2 if layer else ST0) + half*8192}")
    b(f"buffer_load_dwordx4 {v(CST,4)}, v{vCS}, {WS}, s{sO} offen sc1 ;@cin\nbuffer_load_dwordx4 {v(CST+4,4)}, v{vCS}, {WS}, s{sO} offen offset:16 sc1 ;@cin")
def conv_x(b, layer, half):
    b(f"s_mov_b32 s{sO}, {XP[2*layer] + half*0x100000}\nbuffer_load_dwordx4 v[248:251], v{vCX}, {WS}, s{sO} offen sc1 ;@cin")
def conv_inputs(b, layer, half):
    conv_x(b, layer, half); conv_stats(b, layer, half)
def gcheck(b):
    slow = lab("gs"); back = lab("gb"); lp = lab("gl")
    def chk(o):
        for k in range(8): o(f"v_xor_b32 v{160+k}, s{sNON}, v{CST+2*k+1}")
        o("v_or3_b32 v160, v160, v161, v162\nv_or3_b32 v163, v163, v164, v165\nv_or3_b32 v160, v160, v166, v167\nv_or_b32 v160, v160, v163\nv_cmp_ne_u32 vcc, 0, v160")
    b("@vm cin\n@{")
    chk(b); b(f"s_cbranch_vccnz {slow}"); b.label(back); b("@}")
    for k in range(4): b(f"v_mov_b32 v{252+k}, v{CST+8+2*k}")
    tail.label(slow); tail(f"s_mov_b32 s10, {SPIN}\ns_mov_b32 s11, {ST0}\ns_mov_b32 s5, {ST0+8192}")
    tail.label(lp)
    for k in range(4): tail(f"buffer_load_dwordx4 {v(CST+4*k,4)}, v{vCS}, {WS}, s{5 if k >= 2 else 11} offen offset:{16*(k&1)} sc1")
    tail("s_waitcnt vmcnt(0)")
    chk(tail); tail(f"s_cbranch_vccz {back}")
    tail(f"s_sub_u32 s10, s10, 1\ns_cmp_lg_u32 s10, 0\ns_cbranch_scc1 {lp}\ns_branch {back}")
def t_loads(b, js):
    for j in js:
        if j: b(f"v_add_u32 v5, {1024*j}, v{vTB}")
        ad = 5 if j else vTB
        for t in range(4):
            r = T0 + (j*4 + t)*4
            b(f"ds_read2_b32 {v(r,2)}, v{ad} offset0:{32*t+6} offset1:{32*t+4} ;@T\nds_read2_b32 {v(r+2,2)}, v{ad} offset0:{32*t+2} offset1:{32*t} ;@T")
def t_groups(ta=188):
    g = []
    for k in range(32):
        j, t = k >> 2, k & 3
        r = T0 + 4*k
        grp = [f"    v_add_u32 v{ta}, {1024*j}, v{vTB}"] if t == 0 else []
        grp += [f"    ds_read2_b32 {v(r,2)}, v{ta} offset0:{32*t+6} offset1:{32*t+4} ;@T", f"    ds_read2_b32 {v(r+2,2)}, v{ta} offset0:{32*t+2} offset1:{32*t} ;@T"]
        g.append(grp)
    return g
def u_pad(b):
    b(f"v_subrev_u32 v5, {LEX}, v{vEW}\nv_and_b32 v5, 0x3f0, v5\nv_lshrrev_b32 v5, 1, v5\nv_add_u32 v5, {LU}, v5\nv_mov_b32 v{UPK}, 0\nv_mov_b32 v{UPK+1}, 0")
    b(f"ds_write_b64 v5, {v(UPK,2)}\nds_write_b64 v5, {v(UPK,2)} offset:{US}")
def conv_half(b, layer, half, bg=[], pre_barrier=None, after_ln=None, after_mfma=None, tailbg=[], pre_barrier2=None):
    X = 248
    MN, RI, DD = 192, 196, 176
    b("@vm cin")
    stamp(b, f"L{layer} conv{half} loaded")
    if layer == 0:
        G = (lambda i: 252 + i) if half else (lambda i: CST + 2*i)
        for i in range(4): b(f"v_and_b32 v{RI+i}, s{sMSK}, v{G(i)}")
        for i in range(4): b(f"v_rcp_f32 v{RI+i}, v{RI+i}")
        for i in range(4): b(f"v_lshlrev_b32 v{MN+i}, 16, v{G(i)}")
    else:
        for i in range(4): b(f"v_pk_mul_f32 {v(CST+2*i,2)}, {v(CST+2*i,2)}, s[{sINV}:{sINV+1}]")
        for i in range(4): b(f"v_fma_f32 v{RI+i}, -v{CST+2*i}, v{CST+2*i}, v{CST+2*i+1}")
        for i in range(4): rnd(b, RI+i, RI+i)
        for i in range(4): b(f"v_add_f32 v{RI+i}, s{sEPS}, v{RI+i}")
        for i in range(4): rnd(b, RI+i, RI+i)
        for i in range(4): b(f"v_sqrt_f32 v{RI+i}, abs(v{RI+i})")
        for i in range(4): rnd(b, MN+i, CST+2*i)
        for i in range(4): rnd(b, RI+i, RI+i)
        for i in range(4): b(f"v_rcp_f32 v{RI+i}, v{RI+i}")
    for i in range(4): b(f"v_lshlrev_b32 v{BASE+i}, 16, v{X+i}\nv_and_b32 v{BASE+4+i}, s{sMSK}, v{X+i}")
    for k in range(4): b(f"v_pk_add_f32 {v(DD+2*k,2)}, {v(BASE+2*k,2)}, {v(MN+2*(k&1),2)} neg_lo:[0,1] neg_hi:[0,1]")
    if opt("rd", 1):
        for k in range(8): rnd(b, DD+k, DD+k)
    for k in range(4): b(f"v_pk_mul_f32 {v(DD+2*k,2)}, {v(DD+2*k,2)}, {v(RI+2*(k&1),2)}")
    for k in range(4): b(f"v_cvt_pk_bf16_f32 v{UPK+k}, v{DD+2*k}, v{DD+2*k+1}")
    b(f"ds_write_b64 v{vUW}, {v(UPK,2)} offset:{half*2048}\nds_write_b64 v{vUW}, {v(UPK+2,2)} offset:{US+half*2048}")
    F2 = opt("fine", 0) == 2 and layer == 1
    if F2: stamp(b, f"c{half} ln")
    if pre_barrier: b(pre_barrier)
    b("s_waitcnt lgkmcnt(0)\ns_barrier")
    if F2: stamp(b, f"c{half} bar1")
    if after_ln: after_ln(b)
    def urd(tp, t): return f"    ds_read_b128 {v(U0+(tp*4+t)*4,4)}, v{vUR} offset:{512 + 512*(tp+4*half) - 64*t - 32} ;@U{tp}_{t}"
    b.add([urd(0, t) for t in range(4)] + [urd(1, 0), urd(1, 1)])
    later = [urd(tp, t) for tp in range(1, 4) for t in range(4)][2:]
    fill = []
    for k in range(4):
        c = k >> 1
        fill += [f"    v_lshlrev_b32 v{RV+2*k}, 16, v{UPK+k}", f"    v_and_b32 v{RV+2*k+1}, s{sMSK}, v{UPK+k}"]
    for k in range(8): fill.append(f"    v_fmac_f32 v{BASE+k}, s{sDK + (k >> 2)}, v{RV+k}")
    ml = []; cnt = 0
    lastidx = {0: 12, 1: 25, 2: 34}
    for tp in range(4):
        for t in range(4):
            ml.append(f"    @lg U{tp}_{t}")
            for r in range(tp, 4):
                acc = ACC + (4*half + r)*4
                cin = "0" if (half == 0 and t == 0 and tp == 0) else ac(acc, 4)
                ml.append(f"    v_mfma_f32_16x16x32_bf16 {ac(acc,4)}, {v(T0+((r-tp)*4+t)*4,4)}, {v(U0+(tp*4+t)*4,4)}, {cin}")
                if later: ml.append(later.pop(0))
                elif fill: ml.append(fill.pop(0))
                for r_ in range(3):
                    if cnt == lastidx[r_] + (5 if r_ < 2 else 5): ml.append(f"    ds_write_b128 v{vEW}, {ac(ACC+(4*half+r_)*4,4)} offset:{r_*4096}")
                cnt += 1
    assert not later and not fill
    ml = interleave(ml, bg, start=2)
    b.add(ml)
    tailbg = list(tailbg)
    if F2: stamp(b, f"c{half} mfma")
    if after_mfma: after_mfma(b)
    if F2: stamp(b, f"c{half} chk")
    b(f"ds_write_b128 v{vEW}, {ac(ACC+(4*half+3)*4,4)} offset:{3*4096}")
    b.add(flat(tailbg[:2]))
    if pre_barrier2: b(pre_barrier2)
    b("s_waitcnt lgkmcnt(0)\ns_barrier")
    if F2: stamp(b, f"c{half} bar2")
    for src in range(4): b(f"ds_read_b128 {v(RV+4*src,4)}, v{vER} offset:{src*1024} ;@E{src>>1}")
    b.add(flat(tailbg[2:]))
    b(f"s_mov_b32 s{sO}, {XP[1+2*layer] + half*0x100000}")
    for c in range(2):
        b(f"@lg E{c}")
        for k in range(2): b(f"v_pk_add_f32 {v(RV+8*c+2*k,2)}, {v(RV+8*c+2*k,2)}, {v(RV+8*c+4+2*k,2)}")
        for k in range(2): b(f"v_pk_add_f32 {v(BASE+4*c+2*k,2)}, {v(BASE+4*c+2*k,2)}, {v(RV+8*c+2*k,2)}")
    for i in range(4): b(f"v_cvt_pk_bf16_f32 v{244+i}, v{BASE+i}, v{BASE+4+i}")
    b(f"s_mov_b64 exec, s[{sEXW}:{sEXW+1}]\nv_swap_b32 v244, v245\nv_swap_b32 v246, v247\ns_mov_b64 exec, -1")
    b(f"buffer_store_dwordx4 v[244:247], v{vCX}, {WS}, s{sO} offen sc1 ;@cst")
    stamp(b, f"L{layer} conv{half} stored")
def conv_ab(b):
    b("@lg T")
    for t in range(4):
        for tp in range(4):
            for r in range(4, 8):
                acc = ACC + r*4
                cin = "0" if (t == 0 and tp == 0) else ac(acc, 4)
                b(f"v_mfma_f32_16x16x32_bf16 {ac(acc,4)}, {v(T0+((r-tp)*4+t)*4,4)}, {v(U0+(tp*4+t)*4,4)}, {cin}")
def colsum(b):
    wa_regs(b)
    b(f"@{{\ns_lshr_b32 s6, s{sW}, 1\ns_mul_i32 s6, s6, {256*224}\ns_lshl_b32 s5, s{sW}, 6\ns_cmp_eq_u32 s{sW}, 3\ns_cselect_b32 s5, 0, s5\ns_cselect_b64 vcc, -1, 0\ns_sub_u32 s5, s5, s6\n@}}")
    b(f"v_cndmask_b32 v248, v{vWA}, v253, vcc\nv_cndmask_b32 v249, v252, v253, vcc\nv_add_u32 v248, s5, v248\nv_add_u32 v249, s5, v249\nv_add_u32 v250, {256*224}, v248\nv_add_u32 v251, {256*224}, v249")
    for i in range(4): b(f"v_mov_b32 v{240+i}, s{sONE}")
    def rd(ks):
        for f2 in range(2):
            for hf in range(2):
                b(f"ds_read_b64_tr_b16 {v(96+(f2*8+ks%8)*4+2*hf,2)}, v{248 + f2 + 2*(ks//8)} offset:{(32*(ks%8)+16*hf)*224} ;@c{ks}")
    for ks in range(3): rd(ks)
    for ks in range(16):
        if ks + 3 < 16: rd(ks + 3)
        b(f"@lg c{ks}")
        for f2 in range(2):
            b(f"v_mfma_f32_16x16x32_bf16 {v(232+4*f2,4)}, {v(96+(f2*8+ks%8)*4,4)}, v[240:243], {'0' if ks == 0 else v(232+4*f2,4)}")
    b(f"s_lshl_b32 s5, s{sW}, 7\nv_add_u32 v5, s5, v{vCSA}")
    b("ds_write_b128 v5, v[232:235] ;@cs\nds_write_b128 v5, v[236:239] offset:64 ;@cs")

WB, SS, KA, SA = 160, 216, 224, 224
def g1_loads(layer, half):
    g = []
    X0 = 32 + 64 * half
    for ks in range(8):
        for n_, (dst, off) in enumerate([(0, 0), (4, 256), (2, 2048), (6, 2304)]):
            grp = []
            if n_ == 0: grp.append(f"    s_mov_b32 s{sB0}, {XP[1+2*layer] + half*0x100000 + ks*4096}")
            grp.append(f"    buffer_load_dwordx2 {v(X0+8*ks+dst,2)}, v{vGX}, {WS}, s{sB0} offen offset:{off} sc1 ;@x{ks}")
            g.append(grp)
    return g
def wread(b, ks, ft, hfs=(0, 1)):
    r = WB + (ks & 1) * 28 + ft * 4
    for hf in hfs:
        ad, off = (253, 0) if ft == 6 else ((252 if ft & 1 else vWA), (ft >> 1) * 64)
        b(f"ds_read_b64_tr_b16 {v(r+2*hf,2)}, v{ad} offset:{(32*ks+16*hf)*224 + off} ;@w{ks}_{ft}")
def wa_regs(b):
    b(f"v_xor_b32 v252, 32, v{vWA}\nv_and_b32 v253, 32, v{vWA}\nv_mul_u32_u24 v253, 6, v253\nv_sub_u32 v253, v{vWA}, v253\nv_add_u32 v253, 384, v253")
def g1_pre(b):
    wa_regs(b)
    for ft in range(7): wread(b, 0, ft)
def g1_loop(b, half, bg, hooks={}, slots=None):
    X0 = 32 + 64 * half
    bg = list(bg)
    if slots is None: slots = (0, 2, 4, 6) if len(bg) <= 32 else (0, 1, 3, 4, 6)
    def swaps(ks):
        x = X0 + 8 * ks
        b(f"@vm x{ks}\nv_swap_b32 v{x+1}, v{x+4}\nv_swap_b32 v{x+3}, v{x+6}")
    swaps(0)
    for ks in range(8):
        x = X0 + 8 * ks
        if opt("fine", 0) == 3 and len(STAMPS) > 25: stamp(b, f"g1{half} k{ks}")
        if ks in hooks: hooks[ks](b)
        if ks == 7:
            for ft in range(7):
                r = WB + 28 + ft * 4
                if ft in (0, 4): b(f"@lg w{ks}_{3 if ft == 0 else 6}")
                b(f"v_mfma_f32_16x16x32_bf16 {ac(SA+4*ft,4)}, {v(r,4)}, {v(x+4,4)}, {ac(SA+4*ft,4)}")
                b(f"ds_read_b128 {v(160+4*ft,4)}, v{vCSA} offset:{ft*64}")
                if ft in slots and bg: b.add(bg.pop(0))
            for ft in range(7):
                r = WB + 28 + ft * 4
                b(f"v_mfma_f32_16x16x32_bf16 {v(KA+4*ft,4)}, {v(r,4)}, {v(x,4)}, {v(KA+4*ft,4)}")
                if ft % 2 == 0 and ft // 2 < NW0: b(f"ds_write_b128 v{vXW}, {ac(SA+4*(ft//2),4)} offset:{(ft//2)*1024}")
            continue
        for ft in range(7):
            r = WB + (ks & 1) * 28 + ft * 4
            if ft in (0, 4): b(f"@lg w{ks}_{3 if ft == 0 else 6}")
            b(f"v_mfma_f32_16x16x32_bf16 {ac(SA+4*ft,4)}, {v(r,4)}, {v(x+4,4)}, {'0' if ks == 0 else ac(SA+4*ft,4)}")
            wread(b, ks + 1, ft, (0,))
            if ft in slots and bg: b.add(bg.pop(0))
            b(f"v_mfma_f32_16x16x32_bf16 {v(KA+4*ft,4)}, {v(r,4)}, {v(x,4)}, {'0' if ks == 0 else v(KA+4*ft,4)}")
            wread(b, ks + 1, ft, (1,))
            if ft == 5: swaps(ks + 1)
    assert not bg
NW0 = opt("nw0", 2)
RC, CSR = 188, 160
def g1_post1(b, half, bg=[], chk=None, bg2=[]):
    X0 = 32 + 64 * half
    d = Buf()
    for ks in range(8):
        x = X0 + 8 * ks
        for q in range(4):
            o = 4 * (q & 1)
            if ks == 0 and q < 2:
                d(f"v_dot2_f32_bf16 v{SS+o}, s{sONE}, v{x+q}, 0\nv_dot2_f32_bf16 v{SS+o+1}, v{x+q}, v{x+q}, 0")
                d(f"v_dot2_f32_bf16 v{SS+o+2}, s{sONE}, v{x+4+q}, 0\nv_dot2_f32_bf16 v{SS+o+3}, v{x+4+q}, v{x+4+q}, 0")
                continue
            d(f"v_dot2c_f32_bf16 v{SS+o}, s{sONE}, v{x+q}\nv_dot2c_f32_bf16 v{SS+o+1}, v{x+q}, v{x+q}")
            d(f"v_dot2c_f32_bf16 v{SS+o+2}, s{sONE}, v{x+4+q}\nv_dot2c_f32_bf16 v{SS+o+3}, v{x+4+q}, v{x+4+q}")
    wr = [[f"    ds_write_b128 v{vXW}, {ac(SA+4*ft,4)} offset:{ft*1024}"] for ft in range(NW0, 7)]
    dl = interleave(d.l, wr, start=8, every=24)
    cut = opt("cut", 140)
    b.add(interleave(dl[:cut], bg, start=4))
    chk(b)
    b.add(interleave(dl[cut:], bg2))
    if opt("fine", 0) == 2: stamp(b, f"p{len(STAMPS)} dots")
    b(f"v_pk_add_f32 {v(SS+2,2)}, {v(SS+2,2)}, {v(SS+6,2)}\nv_pk_add_f32 {v(SS,2)}, {v(SS,2)}, {v(SS+4,2)}")
    b(f"v_permlane32_swap_b32 v{SS}, v{SS+2}\nv_permlane32_swap_b32 v{SS+1}, v{SS+3}\nv_pk_add_f32 {v(SS,2)}, {v(SS,2)}, {v(SS+2,2)}")
    b(f"v_permlane16_swap_b32 v{SS}, v{SS+1}\nv_add_f32 v{SS}, v{SS}, v{SS+1}\nds_write_b32 v{vSW}, v{SS}")
    b("s_waitcnt lgkmcnt(0)\ns_barrier")
    b(f"ds_read2_b32 {v(SS,2)}, v{vSR} offset0:0 offset1:16 ;@s\nds_read2_b32 {v(SS+2,2)}, v{vSR} offset0:32 offset1:48 ;@s")
    for ft in range(7): b(f"ds_read_b128 {v(RC+4*ft,4)}, v{vXR} offset:{ft*1024} ;@r{ft}")
def g1_post2(b, layer, half):
    b("@lg s")
    b(f"v_pk_add_f32 {v(SS,2)}, {v(SS,2)}, {v(SS+2,2)}")
    mn, sd, c2 = SS, SS+1, SS+2
    st = Buf()
    st(f"v_pk_mul_f32 {v(SS,2)}, {v(SS,2)}, s[{sINV}:{sINV+1}]\nv_fma_f32 v{sd}, -v{mn}, v{mn}, v{sd}")
    rnd(st, sd, sd); rnd(st, mn, mn)
    st(f"v_add_f32 v{sd}, s{sEPS}, v{sd}"); rnd(st, sd, sd)
    st(f"v_sqrt_f32 v{sd}, abs(v{sd})"); rnd(st, sd, sd)
    st(f"v_rcp_f32 v{c2}, v{sd}\nv_mul_f32 v{c2}, s{sNL2E}, v{c2}")
    adds = []
    for ft in range(7):
        t = RC + 4*ft
        adds.append([f"    @lg r{ft}"] + [f"    v_pk_add_f32 {v(t+2*k,2)}, {v(t+2*k,2)}, {v(KA+4*ft+2*k,2)}" for k in range(2)])
    b.add(interleave(st.l, adds, start=1, every=1))
    if opt("fine", 0) == 2: stamp(b, f"p{len(STAMPS)} stats")
    silu_part(b, 0, SPL[0])
def silu_part(b, k0, k1):
    mn, c2 = SS, SS + 2
    K = range(k0, k1); R = range(2*k0, 2*k1)
    for k in K: b(f"v_pk_fma_f32 {v(RC+2*k,2)}, {v(CSR+2*k,2)}, {v(mn,2)}, {v(RC+2*k,2)} op_sel_hi:[1,0,1] neg_lo:[0,1,0] neg_hi:[0,1,0]")
    for k in K: b(f"v_pk_mul_f32 {v(CSR+2*k,2)}, {v(RC+2*k,2)}, {v(c2,2)} op_sel_hi:[1,0]")
    for r in R: b(f"v_exp_f32 v{CSR+r}, v{CSR+r}")
    for k in K: b(f"v_pk_fma_f32 {v(CSR+2*k,2)}, {v(CSR+2*k,2)}, {v(mn,2)}, {v(mn,2)} op_sel:[0,1,1] op_sel_hi:[1,1,1]")
    for r in R: b(f"v_rcp_f32 v{CSR+r}, v{CSR+r}")
    for k in K: b(f"v_pk_mul_f32 {v(CSR+2*k,2)}, {v(CSR+2*k,2)}, {v(RC+2*k,2)}")
    for k in K:
        ft = k >> 1
        b(f"v_cvt_pk_bf16_f32 v{KA + 8*(ft >> 1) + 2*(ft & 1) + (k & 1)}, v{CSR+2*k}, v{CSR+2*k+1}")
    for pr in range(3):
        if k0 <= 4*pr < k1:
            p = KA + 8*pr
            b(f"v_permlane16_swap_b32 v{p}, v{p+2}\nv_permlane16_swap_b32 v{p+1}, v{p+3}")
SPL = {0: [14], 1: [8, 14], 2: [8, 12, 14], 3: [4, 8, 12, 14], 4: [4, 8, 14], 5: [12, 14]}[opt("sp", 2)]
def g1_store(b, layer, half, pre=None):
    hb = HB[layer] + half * 32 * HT
    b(f"s_mov_b32 s{sO}, {hb}\ns_mov_b32 s5, {hb + 4096}")
    done = 0
    for n_, k1 in enumerate(SPL):
        if n_: silu_part(b, SPL[n_-1], k1)
        if k1 == 14 and pre: pre(b)
        while done < 3 and 4*done + 4 <= k1:
            b(f"buffer_store_dwordx4 {v(KA+8*done,4)}, v{vH4}, {WS}, s{sO if done < 2 else 5} offen offset:{(done&1)*2048} sc1 ;@hst")
            done += 1
    b(f"buffer_store_dwordx2 {v(KA+24,2)}, v{vH2}, {WS}, s5 offen offset:2048 sc1 ;@hst")

H0, C2, RS = 32, 192, 184
def g2_loads(layer, half):
    g = []
    for ks in range(28):
        grp = []
        if ks % 4 == 0: grp.append(f"    s_mov_b32 s{sB0}, {HB[layer] + half*32*HT + ks*1024}")
        grp.append(f"    buffer_load_dwordx4 {v(H0+4*ks,4)}, v{vHL}, {WS}, s{sB0} offen offset:{(ks%4)*1024} sc1 ;@h{half}_{ks}")
        g.append(grp)
    return g
def w2_loads():
    g = []
    for i in range(56):
        grp = []
        if i % 4 == 0: grp.append(f"    s_add_u32 s{sB1}, s{sW2B}, {(i//4)*4096}")
        grp.append(f"    buffer_load_dwordx4 {ac(4*i,4)}, v6, {WS}, s{sB1} offen offset:{(i%4)*1024} sc1 ;@a{i//2}")
        g.append(grp)
    return g
def g2_res(layer, half):
    RS = 144 if half == 0 else 184
    g = [[f"    s_mov_b32 s{sO}, {XP[1+2*layer] + half*0x100000}"] +
         [f"    buffer_load_dword v{RS+k}, v{vRX}, {WS}, s{sO} offen offset:{(k>>1)*1024 + (k&1)*256} sc1 ;@res" for k in range(4)]]
    return g
def g2_loop(b, half, bg, hooks={}, tg=None, nm=None, late=[]):
    bg = list(bg); late = list(late)
    if tg: b.add(flat(tg[28:]))
    LAG = opt("lag", 8)
    def mf(ks, mt):
        b(f"v_mfma_f32_32x32x16_bf16 {v(C2+16*mt,16)}, {ac((ks*2+mt)*4,4)}, {v(H0+4*ks,4)}, {'0' if ks == 0 else v(C2+16*mt,16)}")
    for ks in range(28):
        if ks in hooks: hooks[ks](b)
        b(f"@vm h{half}_{ks},a{ks}")
        if nm and ks in (0, 4, 8, 12, 16, 20, 24): stamp(b, f"{nm} k{ks}")
        mf(ks, 1)
        if bg: b.add(bg.pop(0))
        if ks < 28 - LAG:
            mf(ks, 0)
            if tg and ks >= 1: b.add(tg[ks-1])
    if "end" in hooks: hooks["end"](b)
    wr = [f"ds_write_b128 v{vE1+sg-1}, {v(C2+8*sg+4*q,4)} offset:{q*1024}" for sg in (2, 3) for q in range(2)]
    for n_, ks in enumerate(range(28 - LAG, 28)):
        mf(ks, 0)
        if tg: b.add(tg[ks-1])
        if n_ >= 2 and n_ % 2 == 0 or n_ == LAG - 1:
            if wr: b(wr.pop(0))
        if late: b.add(late.pop(0))
    for w_ in wr: b(w_)
    if tg: b.add(["    s_nop 7"] + tg[27])
    assert not bg and not late
def g2_post1(b, half):
    RS = 144 if half == 0 else 184
    b("@vm res")
    for k in range(4): b(f"v_lshlrev_b32 v{224+2*k}, 16, v{RS+k}\nv_and_b32 v{225+2*k}, s{sMSK}, v{RS+k}")
    b(f"ds_write_b128 v{vE1}, {v(C2+8,4)}\nds_write_b128 v{vE1}, {v(C2+12,4)} offset:1024")
    b("s_waitcnt lgkmcnt(0)\ns_barrier")
    for k in range(6): b(f"ds_read_b128 {v(160+4*k,4)}, v{vE0} offset:{k*1024} ;@q{k>>1}")
def g2_post2(b, layer, half):
    for s_ in range(3):
        b(f"@lg q{s_}")
        for k in range(4): b(f"v_pk_add_f32 {v(C2+2*k,2)}, {v(C2+2*k,2)}, {v(160+8*s_+2*k,2)}")
    if opt("ro", 1):
        for r in range(8): rnd(b, C2+r, C2+r)
    for k in range(4): b(f"v_pk_add_f32 {v(C2+2*k,2)}, {v(C2+2*k,2)}, {v(224+2*k,2)}")
    for k in range(4): b(f"v_cvt_pk_bf16_f32 v{240+k}, v{C2+2*k}, v{C2+2*k+1}")
    if layer == 0:
        b(f"@{{\ns_mov_b32 s{sO}, {XP[2] + half*0x100000}")
        for k in range(4):
            b(f"buffer_store_dword v{240+k}, v{vX2}, {WS}, s{sO} offen offset:{(k>>1)*1024 + (k&1)*256} sc1 ;@xst")
        b("@}\nv_mov_b32 v244, 0\nv_mov_b32 v245, 0")
        for k in range(4): b(f"v_dot2c_f32_bf16 v244, s{sONE}, v{240+k}\nv_dot2c_f32_bf16 v245, v{240+k}, v{240+k}")
        b("v_permlane32_swap_b32 v244, v245\nv_add_f32 v244, v244, v245")
        LST = LSCR + 24576
        b(f"v_lshrrev_b32 v246, 2, v6\nv_add_u32 v246, {LST}, v246\ns_lshl_b32 s5, s{sW}, 8\nv_add_u32 v247, s5, v246")
        b("ds_write_b32 v247, v244\ns_waitcnt lgkmcnt(0)\ns_barrier")
        b("ds_read2st64_b32 v[244:245], v246 offset0:0 offset1:1\nds_read2st64_b32 v[246:247], v246 offset0:2 offset1:3")
        b(f"s_mov_b32 s{sO}, {ST2 + half*8192}\ns_waitcnt lgkmcnt(0)\nv_pk_add_f32 v[244:245], v[244:245], v[246:247]\nv_add_f32 v244, v244, v245")
        b(f"@{{\ns_mov_b64 exec, s[{sEXQ}:{sEXQ+1}]\nbuffer_atomic_add_f32 v244, v{vSA}, {WS}, s{sO} offen sc1 ;@xst\ns_mov_b64 exec, -1\n@}}")
    else:
        b("v_permlane32_swap_b32 v240, v242\nv_permlane32_swap_b32 v241, v243")
        b(f"s_mov_b32 s{sO}, {half*0x100000}\nbuffer_store_dwordx4 v[240:243], v{vOUT}, {srd(SOUT)}, s{sO} offen {opt('ofl', 'x').replace('x', '').replace('_', ' ')}")

gcheck(M); conv_x(M, 0, 0)
M(f"v_mov_b32 v{vPL}, v204\nv_mov_b32 v{vSG}, v205")
M("s_waitcnt lgkmcnt(0)\ns_barrier")
stamp(M, "kgen done")
XT, XUP, XPF, HPF, HP2, HUP = opt("xt", 10), opt("xup", 16), opt("xpf", 16), opt("hpf", 14), opt("hp2", 6), opt("hup", 14)
D1, D2, D3, D4, D5 = opt("d1", 6), opt("d2", 6), opt("d3", 5), opt("d4", 8), opt("d5", 6)
M.add(interleave(gen(t_loads, range(4)), take(D1))); u_pad(M)
for layer in range(2):
    L0 = layer == 0
    cA, cB = 4*layer, 4*layer + 1
    xa, xb, ha, hb_ = g1_loads(layer, 0), g1_loads(layer, 1), g2_loads(layer, 0), g2_loads(layer, 1)
    if L0:
        vm_ = take(D2); tg_ = t_groups(5)[16:]
        conv_half(M, layer, 0, bg=[tg_[k] + (vm_[k//2] if (k % 2 == 0 and k//2 < len(vm_)) else []) for k in range(16)])
        conv_x(M, 0, 1)
        ab = interleave(gen(conv_ab), [gen(sig_all, cA, "cst")], start=opt("abs0", 30), every=1)
        M.add(interleave(ab, take(D3), start=1))
    else:
        conv_half(M, layer, 0, pre_barrier="@vm xst", after_ln=lambda b: sig_all(b, 3, "xst", barrier=False))
        ab = gen(conv_ab)
        ev = sorted([(opt("abp", 8), 0, gen(poll_all, 3)), (opt("abc", 48), 1, gen(check, "all", 3) + gen(conv_inputs, 1, 1)), (opt("abs", 50), 2, gen(sig_all, cA, "cst"))])
        pos = 0
        for p_, _, g_ in ev:
            M.add(ab[pos:p_]); M.add(g_); pos = p_
        M.add(ab[pos:])
    stamp(M, f"L{layer} conv0 signalled")
    if not L0:
        if opt("lateC", 0):
            conv_half(M, layer, 1, after_mfma=lambda b: poll_all(b, cA))
            g1_pre(M); check(M, "all", cA)
            M.add(flat(xa[:XUP]))
        else:
            conv_half(M, layer, 1, after_ln=lambda b: poll_all(b, cA), after_mfma=lambda b: check(b, "all", cA), tailbg=xa[:XT])
            g1_pre(M)
            M.add(flat(xa[XT:XUP]))
    else:
        assert not wq
        wq += w2_loads()
        sg_ = gen(setup_g2)
        sg_ = sg_[:3] + sg_[-4:] + sg_[3:-4]
        bgs = [sg_[k:k+2] for k in range(0, len(sg_), 2)]
        if W2E:
            wl = take(D4)
            for q, g_ in enumerate(wl): bgs[4 + q * ((len(bgs) - 4) // len(wl))] += g_
        conv_half(M, layer, 1, pre_barrier2="@vm w1", bg=bgs)
        poll_all(M, cA)
        cs_ = gen(colsum); cc = opt("cc", 60)
        M.add(interleave(cs_[:cc], take(D5 if W2E else 0), start=12))
        check(M, "all", cA)
        M.add(interleave(cs_[cc:], xa[:XUP]))
        g1_pre(M)
        M("@lg cs")
    stamp(M, f"L{layer} g1A ready")
    w2 = wq
    def mixw(x_, w_):
        if len(x_) + len(w_) <= 32: return x_ + w_
        x_ = list(x_); w_ = list(w_); o = []
        while x_ or w_:
            for q in range(5):
                src = x_ if (x_ and q < 4) else w_
                if src: o.append(src.pop(0))
                elif x_: o.append(x_.pop(0))
        return o + [[]] * (40 - len(o))
    XP1, HP1 = opt("xp1", 0), opt("hp1", 0)
    g1_loop(M, 0, mixw(xa[XUP:], take(opt("wa", 12))), {(opt("sg00", 0) if L0 else opt("sg0", 2)): lambda b: sig_all(b, cB, "cst")},
            slots=(None if L0 else [(0, 2, 4, 6), (0, 1, 3, 4, 6), (0, 1, 2, 3, 4, 5, 6)][opt("xs", 0)]))
    stamp(M, f"L{layer} g1A loop")
    poll_all(M, cB)
    g1_post1(M, 0, take(opt("wp", 7)), lambda b: check(b, "all", cB), xb[:XP1])
    stamp(M, f"L{layer} g1A post1")
    M.add(interleave(gen(g1_post2, layer, 0), xb[XP1:XPF]))
    g1_store(M, layer, 0, g1_pre)
    stamp(M, f"L{layer} g1A stored")
    if opt("fast", 0) and not L0:
        c1_, c2_ = opt("fc1", 5), opt("fc2", 16)
        n1 = 4 * (8 - c1_)
        g1_loop(M, 1, xb[XPF:] + [[]] * (4*c1_ - (32 - XPF)) + ha[:n1],
                {opt("sg1", 3): lambda b: sig_grp(b, 2*layer, "hst"), c1_ - 1: lambda b: poll_grp(b, 2*layer), c1_: lambda b: check(b, "grp", 2*layer)})
        stamp(M, f"L{layer} g1B loop")
        g1_post1(M, 1, [], lambda b: None, [])
        stamp(M, f"L{layer} g1B post1")
        M.add(interleave(gen(g1_post2, layer, 1), g2_res(layer, 0) + ha[n1:HPF]))
        g1_store(M, layer, 1)
        stamp(M, f"L{layer} g1B stored")
        rest = ha[HPF:]
        n2 = 28 - c2_
        g2_loop(M, 0, rest + [[]] * (c2_ - len(rest)) + hb_[:n2],
                {opt("sg2", 8): lambda b: sig_grp(b, 2*layer+1, "hst"), c2_ - 5: lambda b: poll_grp(b, 2*layer+1), c2_: lambda b: check(b, "grp", 2*layer+1)},
                late=hb_[n2:min(20, n2+8)])
        stamp(M, f"L{layer} g2A loop")
        g2_post1(M, 0); g2_post2(M, layer, 0)
        HP2_ = HUP = min(20, n2 + 8)
    else:
        g1_loop(M, 1, [[]] * opt("xsk", 2) + mixw(xb[XPF:], take(XPF - opt("xsk", 2))), {opt("sg1", 3): lambda b: sig_grp(b, 2*layer, "hst")})
        stamp(M, f"L{layer} g1B loop")
        poll_grp(M, 2*layer)
        g1_post1(M, 1, take(opt("wp", 7)), lambda b: check(b, "grp", 2*layer), ha[:HP1])
        stamp(M, f"L{layer} g1B post1")
        M.add(interleave(gen(g1_post2, layer, 1), g2_res(layer, 0) + ha[HP1:HPF]))
        g1_store(M, layer, 1)
        stamp(M, f"L{layer} g1B stored")
        rest = ha[HPF:]
        if w2:
            mix = []
            while rest or w2:
                mix.append((rest.pop(0) if rest else []) + (w2.pop(0) if w2 else []))
            rest = mix
        HP0 = opt("hp00", 0) if L0 else opt("hp0", 8)
        g2_loop(M, 0, [[]] * opt("hsk", 2) + rest, {opt("sg2", 8): lambda b: sig_grp(b, 2*layer+1, "hst"), (opt("pg2", 18) if HP0 else 27): lambda b: poll_grp(b, 2*layer+1),
                          "end": (lambda b: check(b, "grp", 2*layer+1) if HP0 else None)}, nm=("L1 g2A" if layer and opt("fine", 0) == 1 else None), late=hb_[:HP0])
        stamp(M, f"L{layer} g2A loop")
        if HP0: M.add(interleave(gen(g2_post1, 0) + gen(g2_post2, layer, 0), hb_[HP0:HP0+HP2], end=opt("hpe", 40)))
        else:
            if opt("lateA", 0) and L0:
                g2_post1(M, 0); g2_post2(M, layer, 0); check(M, "grp", 2*layer+1); M.add(flat(hb_[:HP2]))
            else:
                g2_post1(M, 0); check(M, "grp", 2*layer+1)
                M.add(interleave(gen(g2_post2, layer, 0), hb_[:HP2], end=opt("hpe", 30)))
        HP2_ = HP0 + HP2
    if L0 and opt("cpf", 1): M("v_add_u32 v5, s90, v6\nglobal_load_dwordx4 v[252:255], v5, s[42:43]")
    stamp(M, f"L{layer} g2A stored")
    M.add(flat(hb_[HP2_:HUP]))
    if L0:
        g2_loop(M, 1, hb_[HUP:] + g2_res(layer, 1), {opt("sg3", 4): lambda b: sig_all(b, 2, "xst"), 24: lambda b: poll_all(b, 2)}, tg=t_groups())
        stamp(M, f"L{layer} g2B loop")
        g2_post1(M, 1)
        if opt("lateB", 0):
            poll_all(M, 2); g2_post2(M, layer, 1); check(M, "all", 2); conv_inputs(M, 1, 0)
        else:
            check(M, "all", 2); conv_inputs(M, 1, 0)
            g2_post2(M, layer, 1)
        stamp(M, f"L{layer} g2B stored")
        u_pad(M)
    else:
        M("s_barrier")
        g2_loop(M, 1, hb_[HUP:] + g2_res(layer, 1), nm=("L1 g2B" if opt("fine", 0) == 1 else None))
        stamp(M, f"L{layer} g2B loop")
        g2_post1(M, 1); g2_post2(M, layer, 1)
        stamp(M, f"L{layer} g2B stored")
if STAMP:
    M(f"s_cmp_lg_u32 s{sW}, 0\ns_cbranch_scc1 {DONE}")
    M(f"v_mbcnt_lo_u32_b32 v5, -1, 0\nv_mbcnt_hi_u32_b32 v5, -1, v5\nv_lshlrev_b32 v5, 2, v5\ns_lshl_b32 s5, s2, 8\ns_add_u32 s5, s5, {0x1800000 + 0x400000}")
    M(f"buffer_store_dword v7, v5, {WS}, s5 offen")
M.label(DONE)
M("s_endpgm")

a = Asm()
a.kernel(NAME + "_kernel", vgpr=512, sgpr=102, accum=256)
lines = resolve(strip_marks(M.l)) + tail.l + [".Lkend:"]
lines, added = hazard.fix(lines)
a.lines += lines
print("nops added", added, "lines", len(a.lines), file=sys.stderr)
hdr = "".join(l for l in open(f"cdna_kernels/{NAME}.s.ref").readlines() if l.startswith(";") and "@launch" not in l and "Override" not in l and "grid=ceil" not in l)
a.launches = [f"; @launch grid=(256,1,1) block=(256,1,1) lds={LDS_BYTES}"]
open(OUT, "w").write(a.text(hdr))
json.dump(STAMPS, open("work/" + OUT.split("/")[-1] + ".stamps.json", "w"))
```

```python
import sys, struct, json
sys.path.insert(0, "work")
from asmgen import Asm
import hazard
from sched import resolve, interleave, strip_marks
NAME = "interleave_layers__ssm_conv_s4d__dense_activation_silu__prompt"
STAMP = "--stamp" in sys.argv
OPT = dict(x.lstrip("-").split("=") for x in sys.argv[1:] if x.startswith("--") and "=" in x)
def opt(k, d): return type(d)(OPT.get(k, d))
OUT = [x for x in sys.argv[1:] if not x.startswith("--")]
OUT = OUT[0] if OUT else f"cdna_kernels/{NAME}.s"
def f2u(x): return struct.unpack("<I", struct.pack("<f", x))[0]
LOG2E = 1.4426950408889634
GCNT = 6 * 0x8000
ST0 = 0x80000; ST2 = 0x84000
W2F = 0x100000
W1F = 0x1900000
XP = [0x1700000, 0x300000, 0x500000, 0x700000]
HB = [0x900000, 0x1000000]
WS_BYTES = 0x2000000
HT = 114688
LPK = 114688; PKS = 8256; LCS = 131200; LSCR = 131712
LU = LSCR; US = 4608; LEX = LSCR + 9216
ES = 28672; LGT = LEX
LDS_BYTES = 163840
SWS, SW1, SW2, SOUT = 44, 48, 52, 56
sW, sCPI, sRT, sCT, sLT, sDT, sNON, sGC = 60, 61, 62, 63, 64, 65, 66, 67
sDK, sONE, sMSK, sINV, sEPS, sNL2E = 68, 70, 71, 72, 74, 75
sEXS = 76
sB0, sB1, sO, sW2B, sGS = 78, 79, 80, 81, 82
sSTAMP = 84
sEXQ = 92
sEXW = 100
SPIN = 60000
vOUT, vPL, vSG, vPD, vONE = 0, 1, 2, 3, 4
vCX, vCS, vUW, vUR, vTB, vEW, vER, vGX, vWA, vXW, vXR, vSW, vSR, vCSA, vH4, vH2, vHL, vRX, vX2, vE1, vE0, vSA = \
    8, 9, 10, 11, 12, 13, 14, 15, 16, 17, 18, 19, 20, 21, 22, 23, 24, 25, 26, 27, 30, 31
vDMA = 24

HSC = "sc1" if opt("hsc", 1) else opt("hfl", "")
GFLAG = opt("gflag", 0)
if opt("samehb", 0): HB = [HB[0], HB[0]]
NSH = opt('nsh', 8)
class Buf:
    def __init__(self): self.l = []
    def __call__(self, s):
        for ln in s.strip("\n").split("\n"): self.l.append("    " + ln.strip())
    def label(self, n): self.l.append(n + ":")
    def add(self, lines): self.l += lines
uid = [0]
def lab(b="L"):
    uid[0] += 1; return f".{b}_{uid[0]}"
def srd(n): return f"s[{n}:{n+3}]"
def v(n, k=1): return f"v{n}" if k == 1 else f"v[{n}:{n+k-1}]"
def ac(n, k=1): return f"a{n}" if k == 1 else f"a[{n}:{n+k-1}]"
def flat(groups): return [l for g in groups for l in g]
def gen(fn, *args, **kw):
    t = Buf(); fn(t, *args, **kw); return t.l
WS = srd(SWS)
tail = Buf()
STAMPS = []
def stamp(b, name):
    if not STAMP: return
    if opt("light", 0) and name not in ("start", "L1 g2B stored"): return
    i = len(STAMPS); STAMPS.append(name)
    assert i < 64
    b(f"@{{\n{'s_memtime' if opt('cyc', 0) else 's_memrealtime'} s[{sSTAMP}:{sSTAMP+1}]\ns_waitcnt lgkmcnt(0)\nv_writelane_b32 v7, s{sSTAMP}, {i}\n@}}")

FG = opt("fg", 1)
sGP = 91
GADDR = "v_mov_b32 v5, 0" if FG else f"v_and_b32 v5, 0x300, v{vPL}"
GT = 8 if FG else 16
def poll_all(b, cnt):
    b(f"s_mov_b32 s{sO}, {cnt*0x8000}\nbuffer_load_dword v{vPD}, v{vPL}, {WS}, s{sO} offen sc1 ;@poll")
def poll_grp(b, idx):
    b(f"@{{\ns_add_u32 s{sO}, s{sGP}, {idx*16*1024}\n{GADDR}\nbuffer_load_dword v{vPD}, v5, {WS}, s{sO} offen sc1 ;@poll\n@}}")
def check(b, kind, idx):
    slow = lab("slow"); back = lab("back"); lp = lab("lp")
    b("@vm poll")
    b(f"@{{\nv_cmp_gt_u32 vcc, {GT if kind == 'grp' else 256 // NSH}, v{vPD}\ns_cbranch_vccnz {slow}")
    b.label(back); b("@}")
    tail.label(slow)
    tail(f"s_mov_b32 s10, {SPIN}")
    if kind == "all": tail(f"s_mov_b32 s11, {idx*0x8000}\nv_mov_b32 v5, v{vPL}")
    else: tail(f"s_add_u32 s11, s{sGP}, {idx*16*1024}\n{GADDR}")
    tgt = GT if kind == 'grp' else 256 // NSH
    if opt("pp", 1):
        tail(f"buffer_load_dword v{vPD}, v5, {WS}, s11 offen sc1\ns_sleep {opt('ppd', 4)}")
        tail.label(lp)
        tail(f"buffer_load_dword v4, v5, {WS}, s11 offen sc1\ns_waitcnt vmcnt(1)\nv_cmp_gt_u32 vcc, {tgt}, v{vPD}\ns_cbranch_vccz {back}")
        tail(f"buffer_load_dword v{vPD}, v5, {WS}, s11 offen sc1\ns_waitcnt vmcnt(1)\nv_cmp_gt_u32 vcc, {tgt}, v4\ns_cbranch_vccz {back}")
    else:
        tail.label(lp)
        tail(f"buffer_load_dword v{vPD}, v5, {WS}, s11 offen sc1\ns_waitcnt vmcnt(0)")
        tail(f"v_cmp_gt_u32 vcc, {tgt}, v{vPD}\ns_cbranch_vccz {back}")
    tail(f"s_sub_u32 s10, s10, 1\ns_cmp_lg_u32 s10, 0\ns_cbranch_scc1 {lp}\ns_branch {back}")
def sig_all(b, cnt, tag, barrier=True):
    b(f"@vm {tag}\n@{{\n{'s_barrier' if barrier else 's_nop 0'}\ns_mov_b32 s{sO}, {cnt*0x8000}\ns_mov_b64 exec, s[{sEXS}:{sEXS+1}]")
    b(f"v_mov_b32 v5, 1\nbuffer_atomic_add v5, v{vSG}, {WS}, s{sO} offen sc1\ns_mov_b64 exec, -1\n@}}")
def sig_grp(b, idx, tag):
    b(f"@vm {tag}\n@{{\ns_add_u32 s{sO}, s{sGS}, {idx*16*1024}\ns_mov_b64 exec, 1")
    if GFLAG: b(f"buffer_store_dword v{vONE}, off, {WS}, s{sO} {HSC}\ns_mov_b64 exec, -1\ns_barrier\n@}}")
    else: b(f"v_mov_b32 v5, 1\nbuffer_atomic_add v5, off, {WS}, s{sO} sc1\ns_mov_b64 exec, -1\ns_barrier\n@}}")
def xsum(b, regs, tmp, steps):
    for s in steps:
        for i, r in enumerate(regs): b(f"v_mov_b32 v{tmp+i}, v{r}")
        for i, r in enumerate(regs): b(f"v_permlane{s}_swap_b32 v{r}, v{tmp+i}")
        for i, r in enumerate(regs): b(f"v_add_f32 v{r}, v{r}, v{tmp+i}")
def rnd(b, d, s): b(f"v_cvt_pk_bf16_f32 v{d}, 0, v{s}")

M = Buf()
DONE = ".Ldone"
M.label(".Lkstart")
M("s_cmp_ge_u32 s2, 256")
M(f"s_cbranch_scc1 {DONE}")
M("s_load_dwordx16 s[16:31], s[0:1], 0\ns_load_dwordx8 s[32:39], s[0:1], 64\ns_load_dwordx2 s[40:41], s[0:1], 96")
M("s_memrealtime s[14:15]")
M("s_getpc_b64 s[42:43]")
M.label(".Lpc")
M("v_and_b32 v1, 63, v0\nv_lshlrev_b32 v2, 4, v1\nv_lshrrev_b32 v3, 6, v0")
M(f"v_readfirstlane_b32 s{sW}, v3")
if STAMP: M("v_mov_b32 v7, 0")
M("s_and_b32 s3, s2, 7\ns_lshr_b32 s4, s2, 3")
M(f"s_lshl_b32 s5, s4, 2\ns_add_u32 s5, s5, s{sW}\ns_min_u32 s5, s5, ((.Lkend-.Lkstart-128)>>10)-1\ns_lshl_b32 s5, s5, 10\nv_add_u32 v5, s5, v2")
M("s_mov_b32 s90, s5")
if opt("cp0", 0) == 0: M("global_load_dwordx4 v[200:203], v5, s[42:43]")
M(f"s_lshl_b32 s{sCPI}, s3, 5\ns_add_u32 s{sCPI}, s{sCPI}, s4")
M(f"s_lshl_b32 s5, s2, 13\ns_lshl_b32 s6, s{sW}, 11\ns_add_u32 s5, s5, s6\nv_add_u32 v62, s5, v2")
M(f"s_lshl_b32 s5, s{sCPI}, 9\nv_lshlrev_b32 v63, 1, v0\nv_add_u32 v63, s5, v63")
M(f"s_lshr_b32 s5, s2, 2\ns_lshl_b32 s5, s5, 15\ns_and_b32 s6, s2, 3\ns_lshl_b32 s6, s6, 8\ns_add_u32 s5, s5, s6\ns_lshl_b32 s6, s{sW}, 6\ns_add_u32 s5, s5, s6")
M("v_and_b32 v5, 7, v1\nv_lshlrev_b32 v64, 12, v5\nv_lshrrev_b32 v6, 3, v1\nv_lshl_add_u32 v64, v6, 3, v64\nv_add_u32 v64, s5, v64")
M("s_waitcnt lgkmcnt(0)")
stamp(M, "start")
if opt("cp0", 0) == 3:
    M(f"s_lshl_b32 s5, s4, 2\ns_add_u32 s5, s5, s{sW}\ns_mul_i32 s5, s5, 384\ns_min_u32 s5, s5, .Lkend-.Lkstart-512")
    M("s_add_u32 s6, s5, 128\ns_add_u32 s10, s5, 256\ns_load_dword s86, s[42:43], s5\ns_load_dword s87, s[42:43], s6\ns_load_dword s10, s[42:43], s10")
for i, dst in enumerate([216, 220, 218, 222]): M(f"global_load_dwordx2 {v(dst,2)}, v64, s[16:17] offset:{i*1024} ;@b1")
M("global_load_dwordx4 v[32:35], v62, s[16:17] ;@b1\nglobal_load_dwordx4 v[36:39], v62, s[16:17] offset:1024 ;@b1")
for i in range(4): M(f"global_load_ushort v{48+i}, v63, s[{18+2*i}:{19+2*i}] ;@par")
TB = opt("tb", 1)
IDX = 100
if TB:
    M("v_lshlrev_b32 v5, 4, v0\nv_add_u32 v5, idx_table-.Lpc, v5\nv_add_u32 v6, 4096, v5\nv_lshlrev_b32 v8, 2, v0\nv_add_u32 v8, idx_table-.Lpc+8192, v8")
    M("s_and_b32 s5, s4, 1\ns_lshl_b32 s5, s5, 11\ns_add_u32 s5, s5, dma_table-.Lpc\nv_add_u32 v9, s5, v2")
    M(f"global_load_dwordx4 {v(vDMA,4)}, v9, s[42:43] ;@tb\nglobal_load_dwordx3 {v(vDMA+4,3)}, v9, s[42:43] offset:1024 ;@tb")
    M(f"global_load_dwordx4 {v(IDX,4)}, v5, s[42:43] ;@tb\nglobal_load_dwordx4 {v(IDX+4,4)}, v6, s[42:43] ;@tb\nglobal_load_dword v{IDX+8}, v8, s[42:43] ;@tb")
M(f"s_and_b32 s{sCT}, s4, 15")
M(f"s_lshl_b32 s{sRT}, s3, 1\ns_lshr_b32 s5, s4, 4\ns_add_u32 s{sRT}, s{sRT}, s5")
M(f"s_lshl_b32 s{sLT}, s{sRT}, 1\ns_bfe_u32 s5, s4, 0x10003\ns_add_u32 s{sLT}, s{sLT}, s5\ns_and_b32 s{sDT}, s4, 7")
M(f"s_lshl_b32 s{sGC}, s{sRT}, 10\ns_add_u32 s{sGC}, s{sGC}, {GCNT}\ns_lshl_b32 s5, s{sW}, 8\ns_add_u32 s{sGS}, s{sGC}, s5")
M(f"s_mov_b32 s{sONE}, 0x3f803f80\ns_mov_b32 s{sMSK}, 0xffff0000\ns_mov_b32 s{sINV}, {f2u(1/512):#x}\ns_mov_b32 s{sINV+1}, {f2u(1/512):#x}")
M(f"s_mov_b32 s{sEPS}, {f2u(1e-5):#x}\ns_mov_b32 s{sNL2E}, {f2u(-LOG2E):#x}")
M(f"s_lshl_b32 s5, s{sW}, 1\ns_lshl_b32 s{sEXS}, 3, s5\ns_mov_b32 s{sEXS+1}, 0")
M(f"s_lshl_b32 s5, s{sW}, 2\ns_lshl_b32 s{sEXQ}, 0x000f000f, s5\ns_mov_b32 s{sEXQ+1}, s{sEXQ}")
M("v_and_b32 v5, 7, v1\nv_lshrrev_b32 v6, 3, v1")
M("v_lshlrev_b32 v65, 10, v6\nv_lshl_add_u32 v65, v5, 4, v65\nv_lshlrev_b32 v207, 9, v6\nv_lshl_add_u32 v207, v5, 4, v207")
M(f"s_lshl_b32 s94, s2, 2\ns_add_u32 s94, s94, s{sW}\ns_min_u32 s94, s94, 895")
M("s_mul_i32 s95, s94, 2341\ns_lshr_b32 s95, s95, 16\ns_mul_i32 s5, s95, 28\ns_sub_u32 s96, s94, s5")
M("s_and_b32 s5, s95, 3\ns_mul_i32 s5, s5, 448\ns_lshl_b32 s6, s96, 4\ns_add_u32 s5, s5, s6\ns_lshl_b32 s7, s5, 10\ns_lshr_b32 s5, s95, 2\ns_lshl_b32 s5, s5, 7\ns_add_u32 s7, s7, s5")
M(f"s_lshl_b32 s9, s{sW}, 12\ns_add_u32 s9, s9, {LPK}")
M(f"s_mov_b32 s{SWS+2}, {WS_BYTES:#x}\ns_mov_b32 s{SWS+3}, 0x20000")
M(f"s_mov_b32 s{SWS}, s40\ns_mov_b32 s{SWS+1}, s41")
n0 = lab("n0"); n1 = lab("n1")
M(f"s_cmp_ge_u32 s2, 128\ns_cbranch_scc1 {n1}")
M(f"s_or_b32 s5, s2, s{sW}\ns_cmp_lg_u32 s5, 0\ns_cbranch_scc1 {n0}")
M("s_or_b32 s14, s14, 1\nv_mov_b32 v5, s14\nv_lshlrev_b32 v6, 2, v1\nglobal_store_dword v6, v5, s[38:39] sc1 ;@!")
M.label(n0)
M(f"s_lshl_b32 s5, s2, 2\ns_add_u32 s5, s5, s{sW}\ns_lshl_b32 s6, s5, 9\ns_lshl_b32 s5, s5, 5\ns_add_u32 s5, s5, {ST2}")
M("v_mov_b32 v4, 0\nv_mov_b32 v5, 0\nv_lshlrev_b32 v6, 3, v1\nv_lshlrev_b32 v8, 2, v1")
M(f"buffer_store_dwordx2 v[4:5], v6, {WS}, s6 offen sc1 ;@!\ns_mov_b64 exec, 0xff\nbuffer_store_dword v5, v8, {WS}, s5 offen sc1 ;@!\ns_mov_b64 exec, -1")
M.label(n1)
for sd, sb, nb in [(SW1, 32, 512*1792*2), (SW2, 34, 512*1792*2), (SOUT, 36, 2048*512*2)]:
    M(f"s_mov_b32 s{sd}, s{sb}\ns_mov_b32 s{sd+1}, s{sb+1}\ns_mov_b32 s{sd+2}, {nb:#x}\ns_mov_b32 s{sd+3}, 0x20000")
M(f"s_mov_b32 m0, s9\ns_add_u32 s5, s7, 8192\nbuffer_load_dwordx4 v65, {srd(SW2)}, s7 offen lds ;@b2\ns_add_u32 m0, s9, 1024\ns_nop 0\nbuffer_load_dwordx4 v65, {srd(SW2)}, s5 offen lds ;@b2")
M(f"s_lshl_b32 s5, s{sCPI}, 2")
M("s_load_dword s12, s[26:27], s5\ns_load_dword s13, s[28:29], s5")
if opt("tlb", 0):
    M(f"v_lshlrev_b32 v5, 20, v1\ns_mov_b64 exec, 0x7ffffff\ns_mov_b32 s5, 0xc0000\nbuffer_load_dword v240, v5, {WS}, s5 offen sc1\ns_mov_b64 exec, 3")
    M(f"buffer_load_dword v243, v5, {srd(SOUT)}, 0 offen\ns_mov_b64 exec, -1")
M("v_and_b32 v60, 15, v1\nv_lshrrev_b32 v61, 4, v1")
sD0, sD1 = 88, 89
sRX, sRH = 16, 24
M(f"s_mul_i32 s{sD0}, s{sW}, {128*3584}\ns_mul_i32 s5, s{sCT}, 224\ns_add_u32 s{sD0}, s{sD0}, s5\ns_mul_i32 s{sD1}, s{sW}, 28672")
dma = [[f"    s_add_u32 m0, s{sD1}, {p*1024}", f"    s_add_u32 s{sB1}, s{sD0}, {(p//7)*32*3584}", f"    buffer_load_dwordx4 v{vDMA+p%7}, {srd(SW1)}, s{sB1} offen lds ;@w1"] for p in range(28)]
dma = dma[17:] + dma[:17]
def setup_dma(b):
    b(f"s_and_b32 s7, s{sCT}, 1\ns_lshl_b32 s8, s7, 5\ns_mul_i32 s7, s7, 192\ns_sub_u32 s7, 192, s7")
    b("v_and_b32 v64, 3, v1\nv_lshlrev_b32 v64, 4, v64\nv_add_u32 v65, s8, v64\nv_xor_b32 v66, 32, v64")
    b(f"v_add_u32 v66, s8, v66\nv_add_u32 v66, {3584-192}, v66")
    b("v_and_b32 v67, 16, v64\nv_add_u32 v67, s7, v67\nv_lshrrev_b32 v64, 5, v64\nv_mul_u32_u24 v64, 3584, v64")
    b(f"v_add_u32 v67, v67, v64\nv_subrev_u32 v67, {6*64}, v67\nv_lshrrev_b32 v64, 2, v1")
    for k in range(7):
        b(f"v_add_u32 v5, {16*k}, v64\nv_mul_u32_u24 v6, 9363, v5\nv_lshrrev_b32 v6, 16, v6\nv_mul_u32_u24 v62, 7, v6\nv_sub_u32 v5, v5, v62")
        b(f"@{{\nv_cmp_lt_u32 vcc, 2, v5\nv_mul_u32_u24 v6, 7168, v6\nv_lshl_add_u32 v6, v5, 6, v6\nv_cndmask_b32 v62, v65, v66, vcc\nv_cmp_eq_u32 vcc, 6, v5\ns_nop 1\nv_cndmask_b32 v62, v62, v67, vcc\n@}}")
        b(f"v_add_u32 v{vDMA+k}, v6, v62")
def setup(b):
    b(f"s_and_b32 s5, s{sW}, 1\ns_lshr_b32 s6, s{sW}, 1")
    b(f"v_bfe_u32 v{vCX}, v1, 2, 2\nv_lshlrev_b32 v{vCX}, 16, v{vCX}\nv_and_b32 v5, 3, v1\nv_lshl_add_u32 v{vCX}, v5, 6, v{vCX}\nv_lshl_add_u32 v{vCX}, v61, 4, v{vCX}")
    b(f"s_lshl_b32 s7, s{sW}, 18\ns_lshl_b32 s8, s{sCPI}, 8\ns_add_u32 s7, s7, s8\nv_add_u32 v{vCX}, s7, v{vCX}")
    b(f"v_lshlrev_b32 v{vCS}, 7, v60\nv_lshl_add_u32 v{vCS}, v61, 5, v{vCS}\ns_lshl_b32 s7, s{sW}, 11\nv_add_u32 v{vCS}, s7, v{vCS}")
    b(f"v_lshlrev_b32 v5, 5, v60\nv_lshl_add_u32 v{vUW}, v61, 3, v5\ns_lshl_b32 s7, s{sW}, 9\ns_add_u32 s7, s7, {LU+512}\nv_add_u32 v{vUW}, s7, v{vUW}")
    b(f"v_lshl_add_u32 v{vUR}, v61, 4, v5\ns_mul_i32 s7, s6, {US}\ns_lshl_b32 s8, s5, 8\ns_sub_u32 s7, s7, s8\ns_add_u32 s7, s7, {LU}\nv_add_u32 v{vUR}, s7, v{vUR}")
    b(f"v_lshlrev_b32 v5, 3, v61\nv_sub_u32 v5, v60, v5\nv_lshlrev_b32 v5, 2, v5\ns_mul_i32 s7, s6, {PKS}\ns_lshl_b32 s8, s5, 9\ns_add_u32 s7, s7, s8\ns_add_u32 s7, s7, {LPK+26*4}\nv_add_u32 v{vTB}, s7, v5")
    b(f"s_lshl_b32 s7, s{sW}, 10\ns_add_u32 s7, s7, {LEX}\nv_add_u32 v{vEW}, s7, v2\ns_lshl_b32 s7, s{sW}, 12\ns_add_u32 s7, s7, {LEX}\nv_add_u32 v{vER}, s7, v2")
    b(f"v_and_b32 v204, {NSH-1}, v1\nv_lshlrev_b32 v204, 8, v204\ns_lshl_b32 s7, s3, 12\nv_add_u32 v204, s7, v204")
    b(f"v_lshlrev_b32 v205, 12, v1\ns_and_b32 s7, s{sCT}, {NSH-1}\ns_lshl_b32 s7, s7, 8\nv_add_u32 v205, s7, v205\nv_mov_b32 v{vONE}, 1")
    b(f"s_load_dword s{sNON}, s[38:39], 0")
    for k in range(0 if TB else 9):
        b(f"v_lshlrev_b32 v5, 3, v0\nv_add_u32 v5, {k-1}, v5")
        if k == 0: b("v_max_i32 v5, 0, v5")
        b("v_cvt_f32_u32 v5, v5\nv_cvt_pk_bf16_f32 v5, 0, v5\nv_cvt_u32_f32 v6, v5")
        b("v_lshrrev_b32 v5, 23, v5\nv_subrev_u32 v5, 134, v5\nv_med3_i32 v5, v5, 0, 3")
        b("v_lshrrev_b32 v62, 7, v6\nv_and_b32 v63, 7, v6\nv_lshl_or_b32 v62, v62, 3, v63\nv_lshrrev_b32 v62, v5, v62\nv_lshl_add_u32 v62, v5, 3, v62")
        b(f"v_bfe_u32 v6, v6, 3, 4\nv_lshlrev_b32 v6, 2, v6\nv_lshl_add_u32 v6, v62, 6, v6\nv_add_u32 v{IDX+k}, {LGT}, v6")
def setup_g1(b):
    b("v_mbcnt_lo_u32_b32 v246, -1, 0\nv_mbcnt_hi_u32_b32 v246, -1, v246\nv_and_b32 v244, 15, v246\nv_lshrrev_b32 v245, 4, v246\nv_lshlrev_b32 v247, 4, v246")
    b(f"s_and_b32 s5, s{sW}, 1\ns_lshr_b32 s6, s{sW}, 1")
    b(f"v_lshlrev_b32 v{vGX}, 9, v245\nv_lshl_add_u32 v{vGX}, v244, 3, v{vGX}\ns_lshl_b32 s7, s{sRT}, 16\ns_lshl_b32 s8, s5, 7\ns_add_u32 s7, s7, s8\ns_lshl_b32 s8, s6, 15\ns_add_u32 s7, s7, s8\nv_add_u32 v{vGX}, s7, v{vGX}")
    b(f"v_lshlrev_b32 v5, 2, v245\nv_bfe_u32 v6, v246, 2, 2\nv_add_u32 v5, v5, v6\nv_mul_u32_u24 v5, 224, v5\nv_and_b32 v6, 3, v246\nv_lshl_add_u32 v5, v6, 3, v5\ns_mul_i32 s7, s6, {256*224}\nv_add_u32 v{vWA}, s7, v5")
    b(f"s_mul_i32 s7, s{sW}, 7680\ns_add_u32 s7, s7, {LSCR}\nv_add_u32 v{vXW}, s7, v247")
    b(f"v_lshrrev_b32 v5, 5, v246\nv_xor_b32 v5, s6, v5\nv_lshlrev_b32 v5, 8, v5\nv_lshl_add_u32 v5, v246, 2, v5\ns_lshl_b32 s7, s5, 9\ns_add_u32 s7, s7, {LSCR+30720}\nv_add_u32 v{vSW}, s7, v5")
    b(f"s_lshl_b32 s8, s6, 8\ns_add_u32 s7, s7, s8\nv_lshlrev_b32 v5, 2, v244\nv_add_u32 v{vSR}, s7, v5")
    b(f"s_xor_b32 s7, s{sW}, 2\ns_mul_i32 s7, s7, 7680\ns_add_u32 s7, s7, {LSCR}\nv_add_u32 v{vXR}, s7, v247")
    b(f"v_lshlrev_b32 v{vCSA}, 4, v245\nv_add_u32 v{vCSA}, {LCS}, v{vCSA}")
    b(f"s_lshl_b32 s7, s{sRT}, 1\ns_add_u32 s7, s7, s5\ns_mul_i32 s7, s7, {HT}\ns_mul_i32 s8, s{sCT}, 7168\ns_add_u32 s7, s7, s8\ns_lshl_b32 s8, s6, 8\ns_add_u32 s7, s7, s8")
    b(f"v_and_b32 v5, 1, v245\nv_lshrrev_b32 v6, 1, v245\nv_lshlrev_b32 v{vH2}, 9, v6\nv_lshl_add_u32 v{vH2}, v244, 4, v{vH2}\nv_add_u32 v{vH2}, s7, v{vH2}\nv_lshl_add_u32 v{vH4}, v5, 10, v{vH2}\nv_lshl_add_u32 v{vH2}, v5, 3, v{vH2}")
    b(f"s_and_b32 s7, s{sCT}, 1\ns_lshl_b32 s8, s7, 10\nv_add_u32 v{vH4}, s8, v{vH4}\ns_mul_i32 s8, s7, 6144\nv_subrev_u32 v{vH2}, s8, v{vH2}")
def setup_g2(b):
    b("v_mbcnt_lo_u32_b32 v248, -1, 0\nv_mbcnt_hi_u32_b32 v248, -1, v248\nv_lshlrev_b32 v6, 4, v248")
    b(f"s_mul_i32 s7, s{sLT}, {HT}\ns_mul_i32 s8, s{sW}, 28672\ns_add_u32 s7, s7, s8\nv_add_u32 v{vHL}, s7, v6")
    b("v_and_b32 v249, 15, v248\nv_lshlrev_b32 v249, 1, v249\nv_bfe_u32 v5, v248, 4, 1\nv_add_u32 v249, v249, v5\nv_lshrrev_b32 v250, 5, v248")
    b(f"s_lshr_b32 s7, s{sLT}, 1\ns_lshl_b32 s7, s7, 16\ns_and_b32 s8, s{sLT}, 1\ns_lshl_b32 s8, s8, 7\ns_add_u32 s7, s7, s8\ns_lshl_b32 s8, s{sDT}, 13\ns_add_u32 s7, s7, s8\ns_lshl_b32 s8, s{sW}, 11\ns_add_u32 s7, s7, s8")
    b(f"v_lshlrev_b32 v{vX2}, 9, v250\nv_lshl_add_u32 v{vX2}, v249, 2, v{vX2}\nv_add_u32 v{vX2}, s7, v{vX2}\ns_and_b32 s8, s{sDT}, 4\nv_xor_b32 v{vRX}, s8, v{vX2}")
    for sg in range(1, 4):
        b(f"s_xor_b32 s7, s{sW}, {sg}\ns_mul_i32 s7, s7, 6144\ns_add_u32 s7, s7, {LSCR+(sg-1)*2048}\nv_add_u32 v{vE1+sg-1}, s7, v6")
    b(f"s_mul_i32 s7, s{sW}, 6144\ns_add_u32 s7, s7, {LSCR}\nv_add_u32 v{vE0}, s7, v6")
    b(f"v_lshlrev_b32 v{vSA}, 3, v249\nv_lshl_add_u32 v{vSA}, v250, 2, v{vSA}\ns_lshl_b32 s7, s{sLT}, 8\nv_add_u32 v{vSA}, s7, v{vSA}")
    b(f"v_lshlrev_b32 v{vOUT}, 10, v249\nv_lshl_add_u32 v{vOUT}, v250, 4, v{vOUT}\ns_lshl_b32 s7, s{sLT}, 15\ns_lshl_b32 s8, s{sDT}, 7\ns_add_u32 s7, s7, s8\ns_lshl_b32 s8, s{sW}, 5\ns_add_u32 s7, s7, s8\nv_add_u32 v{vOUT}, s7, v{vOUT}")
    b(f"s_lshl_b32 s5, s{sDT}, 2\ns_add_u32 s5, s5, s{sW}\ns_mul_i32 s5, s5, 57344\ns_add_u32 s{sW2B}, s5, {W2F}")
def setup_p0(b):
    if FG:
        b(f"s_lshr_b32 s5, s{sCT}, 2\ns_lshl_b32 s5, s5, 1\ns_and_b32 s6, s{sW}, 1\ns_add_u32 s5, s5, s6\ns_lshl_b32 s5, s5, 7\ns_add_u32 s{sGS}, s{sGC}, s5")
        b(f"s_lshl_b32 s5, s{sW}, 1\ns_and_b32 s6, s{sLT}, 1\ns_add_u32 s5, s5, s6\ns_lshl_b32 s5, s5, 7\ns_add_u32 s{sGP}, s{sGC}, s5")
    else: b(f"s_mov_b32 s{sGP}, s{sGC}")
    b(f"@{{\ns_cmp_ge_u32 s{sCPI}, 128\ns_cselect_b64 s[{sEXW}:{sEXW+1}], -1, 0\n@}}")
    b("v_lshrrev_b32 v254, 5, v1")
    b("s_and_b32 s5, s95, 3\nv_and_b32 v5, 1, v61\nv_xor_b32 v209, s5, v5\nv_xor_b32 v210, 2, v209")
    b("v_lshlrev_b32 v5, 3, v254\nv_bfe_u32 v6, v1, 2, 2\nv_add_u32 v5, v5, v6\nv_lshlrev_b32 v5, 7, v5\nv_and_b32 v62, 3, v1\nv_lshl_add_u32 v5, v62, 3, v5\nv_add_u32 v5, s9, v5")
    b("v_lshl_add_u32 v209, v209, 5, v5\nv_lshl_add_u32 v210, v210, 5, v5")
    b(f"s_lshl_b32 s99, s94, 11\ns_add_u32 s99, s99, {W2F}")
    b(f"s_lshl_b32 s11, s4, 16\ns_bfe_u32 s6, s2, 0x10002\ns_lshl_b32 s6, s6, 7\ns_add_u32 s11, s11, s6\ns_and_b32 s6, s2, 3\ns_lshl_b32 s6, s6, 14\ns_add_u32 s11, s11, s6\ns_lshl_b32 s6, s{sW}, 12\ns_add_u32 s11, s11, s6\ns_add_u32 s11, s11, {XP[0]}")
wq = list(dma)
def take(n):
    r = wq[:n]; del wq[:n]; return r
setup_p0(M)
if not TB: setup_dma(M)
M.add(interleave(gen(setup), take(opt("e0", 0)), start=20))
stamp(M, "p0 setup")
M("@vm b1")
stamp(M, "p0 rows")
M("v_swap_b32 v217, v220\nv_swap_b32 v219, v222")
M(f"buffer_store_dwordx4 v[216:219], v207, {WS}, s11 offen sc1 ;@p0s\nbuffer_store_dwordx4 v[220:223], v207, {WS}, s11 offen offset:256 sc1 ;@p0s")
for i in range(4): M(f"v_mov_b32 v{52+i}, 0")
for q in range(4):
    M(f"v_dot2c_f32_bf16 v52, s{sONE}, v{32+q}\nv_dot2c_f32_bf16 v53, v{32+q}, v{32+q}")
    M(f"v_dot2c_f32_bf16 v54, s{sONE}, v{36+q}\nv_dot2c_f32_bf16 v55, v{36+q}, v{36+q}")
for m_ in ["quad_perm:[1,0,3,2]", "quad_perm:[2,3,0,1]", "row_half_mirror", "row_mirror"]:
    for i in range(4): M(f"v_add_f32_dpp v{52+i}, v{52+i}, v{52+i} {m_} row_mask:0xf bank_mask:0xf")
xsum(M, [52, 53, 54, 55], 56, [16, 32])
for r in (52, 54): M(f"v_pk_mul_f32 {v(r,2)}, {v(r,2)}, s[{sINV}:{sINV+1}]")
for r in (52, 54): M(f"v_fma_f32 v{r+1}, -v{r}, v{r}, v{r+1}")
for r in (52, 54): rnd(M, r+1, r+1)
for r in (52, 54): M(f"v_add_f32 v{r+1}, s{sEPS}, v{r+1}")
for r in (52, 54): rnd(M, r+1, r+1)
for r in (52, 54): M(f"v_sqrt_f32 v{r+1}, abs(v{r+1})")
for r in (52, 54): M(f"v_cvt_pk_bf16_f32 v{r}, v{r}, v{r+1}")
M(f"s_lshl_b32 s5, s2, 6\ns_lshl_b32 s6, s{sW}, 4\ns_add_u32 s5, s5, s6\ns_add_u32 s15, s5, {ST0}")
stamp(M, "p0 stats")
nn = lab("nn"); nl = lab("nl"); nb = lab("nb")
M("s_waitcnt lgkmcnt(0)")
M(f"s_cmp_eq_u32 s{sNON}, 0\ns_cbranch_scc1 {nn}")
M.label(nb)
tail.label(nn)
for k in range(1, 4):
    tail(f"s_load_dword s{sNON}, s[38:39], {64*k}\ns_waitcnt lgkmcnt(0)\ns_cmp_lg_u32 s{sNON}, 0\ns_cbranch_scc1 {nb}")
tail(f"s_mov_b32 s10, {SPIN}\nv_mov_b32 v5, 0")
tail.label(nl)
tail("global_load_dword v6, v5, s[38:39] sc1\ns_waitcnt vmcnt(0)")
tail(f"v_readfirstlane_b32 s{sNON}, v6\ns_cmp_lg_u32 s{sNON}, 0\ns_cbranch_scc1 {nb}")
tail(f"s_sub_u32 s10, s10, 1\ns_cmp_lg_u32 s10, 0\ns_cbranch_scc1 {nl}\ns_branch {nb}")
M(f"v_mov_b32 v212, v52\nv_mov_b32 v213, s{sNON}\nv_mov_b32 v214, v54\nv_mov_b32 v215, s{sNON}")
publish = gen(lambda b: (b(f"@vm p0s\n@{{\ns_barrier\ns_mov_b64 exec, 1\nbuffer_store_dwordx4 v[212:215], off, {WS}, s15 sc1\ns_mov_b64 exec, -1\n@}}"), stamp(b, "p0 published")))
def w2_relay(b):
    n3 = lab("n3")
    b("@vm b2")
    for mt in range(2):
        for hf in range(2): b(f"ds_read_b64_tr_b16 {v(224+4*mt+2*hf,2)}, v{209+mt} offset:{hf*512} ;@w2r")
    b(f"@lg w2r\n@{{\ns_cmp_ge_u32 s2, 224\ns_cbranch_scc1 {n3}")
    b(f"buffer_store_dwordx4 v[224:227], v2, {WS}, s99 offen sc1 ;@!\nbuffer_store_dwordx4 v[228:231], v2, {WS}, s99 offen offset:1024 sc1 ;@!")
    b.label(n3); b("@}")
def kgen(Kg):
    Kg(f"s_lshl_b32 s{sDK}, s13, 16\ns_and_b32 s{sDK+1}, s13, s{sMSK}")
    Kg(f"@{{\ns_lshl_b32 s5, s12, 16\ns_and_b32 s6, s12, s{sMSK}\ns_cmp_ge_u32 s{sW}, 2\ns_cselect_b32 s5, s6, s5\n@}}")
    L2E = f"{f2u(LOG2E):#x}"
    VAL = lambda row: 110 + 2*row if row < 45 else 62 + 2*(row - 45)
    Kg(f"v_mov_b32 v5, s5\nv_mul_f32 v5, {L2E}, v5\nv_exp_f32 v5, v5")
    for i in range(4): Kg(f"v_lshlrev_b32 v{48+i}, 16, v{48+i}")
    Kg(f"v_mul_f32 v48, {L2E}, v48\nv_exp_f32 v48, v48")
    Kg(f"s_mul_i32 s5, s{sW}, {ES}")
    Kg("v_lshlrev_b32 v98, 2, v1\nv_add_u32 v98, s5, v98")
    rnd(Kg, 5, 5); rnd(Kg, 48, 48)
    Kg(f"v_mul_f32 v49, v49, v5\nv_mul_f32 v48, v48, v5\nv_mul_f32 v49, 0.15915494, v49\nv_mul_f32 v48, s{sNL2E}, v48")
    Kg(f"v_add_f32 v5, v5, v5\nv_mul_f32 v{VAL(0)}, v50, v5\nv_mul_f32 v{VAL(0)+1}, v51, v5")
    E1, E8, E128, E1K = VAL(17), 34, VAL(24), VAL(48)
    PS = [(E1, 1.0), (E8, 8.0), (E128, 128.0), (E1K, 1024.0)]
    for k, (dst, p) in enumerate(PS): Kg(f"v_mul_f32 v{52+k}, {f2u(p):#x}, v48\nv_mul_f32 v{56+k}, {f2u(p):#x}, v49")
    for k, (dst, p) in enumerate(PS): Kg(f"v_exp_f32 v{52+k}, v{52+k}\nv_fract_f32 v{56+k}, v{56+k}")
    for k, (dst, p) in enumerate(PS): Kg(f"v_cos_f32 v{dst}, v{56+k}\nv_sin_f32 v{dst+1}, v{56+k}")
    Kg("v_mul_u32_u24 v99, 272, v60\nv_lshl_add_u32 v99, v61, 4, v99\nv_add_u32 v99, s5, v99")
    Kg(f"v_mov_b32 v{VAL(16)}, 1.0\nv_mov_b32 v{VAL(16)+1}, 0")
    for k, (dst, p) in enumerate(PS): Kg(f"v_mul_f32 v{dst}, v{dst}, v{52+k}\nv_mul_f32 v{dst+1}, v{dst+1}, v{52+k}")
    e16, e32, e64 = 36, 38, 32
    V = VAL
    levels = [
        [(V(1), V(0), E8), (V(18), E1, E1), (V(32), E128, E128), (e16, E8, E8), (V(56), E1K, E1K), (V(25), E1, E128), (V(49), E1K, E128)],
        [(e32, e16, e16), (V(20), V(18), V(18)), (V(40), V(32), V(32)), (V(2), V(0), e16), (V(3), V(1), e16), (V(19), V(18), E1), (V(36), V(32), E128),
         (V(26), V(18), E128), (V(50), E1K, V(32)), (V(33), V(32), V(18))],
        [(e64, e32, e32), (V(4), V(0), e32), (V(5), V(1), e32), (V(6), V(2), e32), (V(7), V(3), e32), (V(21), V(20), E1), (V(22), V(20), V(18)), (V(23), V(20), V(19)),
         (V(42), V(40), E128), (V(44), V(40), V(32)), (V(46), V(40), V(36)), (V(27), V(19), E128), (V(28), V(20), E128), (V(51), E1K, V(36)), (V(52), E1K, V(40)),
         (V(34), V(32), V(20)), (V(37), V(36), V(18)), (V(38), V(36), V(20)), (V(41), V(40), V(20))],
        [(V(8 + i), V(i), e64) for i in range(8)] +
        [(V(29), V(21), E128), (V(30), V(22), E128), (V(31), V(23), E128), (V(35), V(32), V(22)), (V(39), V(36), V(22)),
         (V(43), V(42), V(20)), (V(45), V(44), V(20)), (V(47), V(46), V(20)), (V(53), E1K, V(42)), (V(54), E1K, V(44)), (V(55), E1K, V(46))],
    ]
    row_of = {VAL(r): r for r in range(57)}
    pend = [0, 16, 17, 24, 48]; written = []
    rot = [0]
    def puts(rows):
        g = []
        for r in rows:
            t = 86 + rot[0] % 12; rot[0] += 1
            g.append((f"    v_cvt_pk_bf16_f32 v{t}, v{VAL(r)}, {'-' if r < 16 else ''}v{VAL(r)+1}", f"    ds_write_b32 v98, v{t} offset:{r*272}"))
            written.append(r)
        out = []
        for k in range(len(g) + 1):
            out.append(([g[k][0]] if k < len(g) else []) + ([g[k-1][1]] if k > 0 else []))
        return out
    for lv in levels:
        t = Buf()
        for d_, x_, y_ in lv: t(f"v_pk_mul_f32 {v(d_,2)}, {v(x_,2)}, {v(y_,2)} op_sel_hi:[1,0]")
        for d_, x_, y_ in lv: t(f"v_pk_fma_f32 {v(d_,2)}, {v(x_,2)}, {v(y_,2)}, {v(d_,2)} op_sel:[1,1,0] op_sel_hi:[0,1,1] neg_lo:[1,0,0]")
        Kg.add(interleave(t.l, puts(pend)))
        pend = [row_of[d_] for d_, _, _ in lv if d_ in row_of]
    Kg.add(flat(puts(pend)))
    assert sorted(written) == list(range(57))
    LOF, HF, GD = 110, 126, 62
    Kg("s_waitcnt lgkmcnt(0)")
    for s_ in range(4):
        Kg(f"ds_read_b128 {v(LOF+4*s_,4)}, v99 offset:{s_*64} ;@kf{s_}")
        for T in range(3): Kg(f"ds_read_b128 {v(HF+16*T+4*s_,4)}, v99 offset:{(16+16*T)*272+s_*64} ;@kf{s_}")
    Kg(f"s_mul_i32 s5, s{sW}, 3072\ns_add_u32 s5, s5, {LGT}")
    Kg("v_lshlrev_b32 v5, 2, v60\nv_lshl_add_u32 v5, v61, 8, v5\nv_add_u32 v5, s5, v5")
    for s_ in range(4):
        Kg(f"@lg kf{s_}")
        for T in range(3): Kg(f"v_mfma_f32_16x16x32_bf16 {v(GD+4*T,4)}, {v(HF+16*T+4*s_,4)}, {v(LOF+4*s_,4)}, {'0' if s_ == 0 else v(GD+4*T,4)}")
    for T in range(3):
        for r in range(0, 4, 2): Kg(f"ds_write2_b32 v5, v{GD+4*T+r}, v{GD+4*T+r+1} offset0:{r*16} offset1:{r*16+16}") if T == 0 else None
        if T:
            for r in range(4): Kg(f"ds_write_b32 v5, v{GD+4*T+r} offset:{(T*16+r)*64}")
M("@vm par,tb")
kl = gen(kgen)
PUB = opt("pub", 110)
cpl = ["    v_add_u32 v200, s90, v2", "    global_load_dwordx4 v[200:203], v200, s[42:43]"] if opt("cp0", 0) == 1 else []
W2E = opt("w2e", 1)
if W2E:
    publish = [l.replace("@vm p0s", "s_waitcnt vmcnt(0)") for l in publish]
    kl = interleave(kl, [publish + cpl], start=PUB, every=1)
    kl = gen(w2_relay) + kl
else: kl = interleave(kl, [publish + cpl + gen(w2_relay)], start=PUB, every=1)
M.add(interleave(kl, take(11 - opt("e0", 0)), start=opt("e1", 130)))
stamp(M, "kgen core")
M(f"s_mov_b32 s{sO}, {ST0}\nbuffer_load_dwordx4 v[232:235], v{vCS}, {WS}, s{sO} offen sc1 ;@cin\nbuffer_load_dwordx4 v[236:239], v{vCS}, {WS}, s{sO} offen offset:16 sc1 ;@cin")
M(f"s_mov_b32 s{sO}, {ST0+8192}\nbuffer_load_dwordx4 v[240:243], v{vCS}, {WS}, s{sO} offen sc1 ;@cin\nbuffer_load_dwordx4 v[244:247], v{vCS}, {WS}, s{sO} offen offset:16 sc1 ;@cin")
M("s_waitcnt lgkmcnt(0)\ns_barrier")
for c in range(2):
    for k in range(9): M(f"ds_read2st64_b32 {v(110+c*18+2*k,2)}, v{IDX+k} offset0:{24*c} offset1:{24*c+12} ;@g{c}")
M(f"v_bfe_u32 v5, v0, 4, 1\nv_mul_u32_u24 v5, {PKS}, v5\nv_lshl_add_u32 v5, v60, 2, v5\nv_add_u32 v5, {LPK}, v5\nv_mov_b32 v6, 0")
M("ds_write_b32 v5, v6")
M(f"v_lshlrev_b32 v5, 5, v0\nv_add_u32 v5, {LPK+64}, v5")
M("v_cmp_eq_u32 vcc, 0, v0")
for c in range(2):
    M(f"@lg g{c}")
    for k in range(9):
        r = 110 + c*18 + 2*k
        M(f"v_add_f32 v{r}, v{r}, v{r+1}")
    M(f"v_cndmask_b32 v{110+c*18}, v{110+c*18}, v6, vcc")
    for k in range(8): M(f"v_cvt_pk_bf16_f32 v{72+c*8+k}, v{110+c*18+2*(k+1)}, v{110+c*18+2*k}")
    M(f"ds_write_b128 v5, {v(72+c*8,4)} offset:{c*PKS}\nds_write_b128 v5, {v(76+c*8,4)} offset:{c*PKS+16}")
T0, U0, ACC = 32, 160, 224
BASE, RV, CST, UPK = 224, 232, 232, 240
def conv_stats(b, layer, half):
    b(f"s_mov_b32 s{sO}, {(ST2 if layer else ST0) + half*8192}")
    b(f"buffer_load_dwordx4 {v(CST,4)}, v{vCS}, {WS}, s{sO} offen sc1 ;@cin\nbuffer_load_dwordx4 {v(CST+4,4)}, v{vCS}, {WS}, s{sO} offen offset:16 sc1 ;@cin")
def conv_x(b, layer, half):
    b(f"s_mov_b32 s{sO}, {XP[2*layer] + half*0x100000}\nbuffer_load_dwordx4 v[248:251], v{vCX}, {WS}, s{sO} offen sc1 ;@cin")
def conv_inputs(b, layer, half):
    conv_x(b, layer, half); conv_stats(b, layer, half)
def gcheck(b):
    slow = lab("gs"); back = lab("gb"); lp = lab("gl")
    def chk(o):
        for k in range(8): o(f"v_xor_b32 v{160+k}, s{sNON}, v{CST+2*k+1}")
        o("v_or3_b32 v160, v160, v161, v162\nv_or3_b32 v163, v163, v164, v165\nv_or3_b32 v160, v160, v166, v167\nv_or_b32 v160, v160, v163\nv_cmp_ne_u32 vcc, 0, v160")
    b("@vm cin\n@{")
    chk(b); b(f"s_cbranch_vccnz {slow}"); b.label(back); b("@}")
    for k in range(4): b(f"v_mov_b32 v{252+k}, v{CST+8+2*k}")
    tail.label(slow); tail(f"s_mov_b32 s10, {SPIN}\ns_mov_b32 s11, {ST0}\ns_mov_b32 s5, {ST0+8192}")
    tail.label(lp)
    for k in range(4): tail(f"buffer_load_dwordx4 {v(CST+4*k,4)}, v{vCS}, {WS}, s{5 if k >= 2 else 11} offen offset:{16*(k&1)} sc1")
    tail("s_waitcnt vmcnt(0)")
    chk(tail); tail(f"s_cbranch_vccz {back}")
    tail(f"s_sub_u32 s10, s10, 1\ns_cmp_lg_u32 s10, 0\ns_cbranch_scc1 {lp}\ns_branch {back}")
def t_loads(b, js):
    for j in js:
        if j: b(f"v_add_u32 v5, {1024*j}, v{vTB}")
        ad = 5 if j else vTB
        for t in range(4):
            r = T0 + (j*4 + t)*4
            b(f"ds_read2_b32 {v(r,2)}, v{ad} offset0:{32*t+6} offset1:{32*t+4} ;@T\nds_read2_b32 {v(r+2,2)}, v{ad} offset0:{32*t+2} offset1:{32*t} ;@T")
def t_groups(ta=188):
    g = []
    for k in range(32):
        j, t = k >> 2, k & 3
        r = T0 + 4*k
        grp = [f"    v_add_u32 v{ta}, {1024*j}, v{vTB}"] if t == 0 else []
        grp += [f"    ds_read2_b32 {v(r,2)}, v{ta} offset0:{32*t+6} offset1:{32*t+4} ;@T", f"    ds_read2_b32 {v(r+2,2)}, v{ta} offset0:{32*t+2} offset1:{32*t} ;@T"]
        g.append(grp)
    return g
def u_pad(b):
    b(f"v_subrev_u32 v5, {LEX}, v{vEW}\nv_and_b32 v5, 0x3f0, v5\nv_lshrrev_b32 v5, 1, v5\nv_add_u32 v5, {LU}, v5\nv_mov_b32 v{UPK}, 0\nv_mov_b32 v{UPK+1}, 0")
    b(f"ds_write_b64 v5, {v(UPK,2)}\nds_write_b64 v5, {v(UPK,2)} offset:{US}")
def conv_half(b, layer, half, bg=[], pre_barrier=None, after_ln=None, after_mfma=None, tailbg=[], pre_barrier2=None):
    X = 248
    MN, RI, DD = 192, 196, 176
    b("@vm cin")
    stamp(b, f"L{layer} conv{half} loaded")
    if layer == 0:
        G = (lambda i: 252 + i) if half else (lambda i: CST + 2*i)
        for i in range(4): b(f"v_and_b32 v{RI+i}, s{sMSK}, v{G(i)}")
        for i in range(4): b(f"v_rcp_f32 v{RI+i}, v{RI+i}")
        for i in range(4): b(f"v_lshlrev_b32 v{MN+i}, 16, v{G(i)}")
    else:
        for i in range(4): b(f"v_pk_mul_f32 {v(CST+2*i,2)}, {v(CST+2*i,2)}, s[{sINV}:{sINV+1}]")
        for i in range(4): b(f"v_fma_f32 v{RI+i}, -v{CST+2*i}, v{CST+2*i}, v{CST+2*i+1}")
        for i in range(4): rnd(b, RI+i, RI+i)
        for i in range(4): b(f"v_add_f32 v{RI+i}, s{sEPS}, v{RI+i}")
        for i in range(4): rnd(b, RI+i, RI+i)
        for i in range(4): b(f"v_sqrt_f32 v{RI+i}, abs(v{RI+i})")
        for i in range(4): rnd(b, MN+i, CST+2*i)
        for i in range(4): rnd(b, RI+i, RI+i)
        for i in range(4): b(f"v_rcp_f32 v{RI+i}, v{RI+i}")
    for i in range(4): b(f"v_lshlrev_b32 v{BASE+i}, 16, v{X+i}\nv_and_b32 v{BASE+4+i}, s{sMSK}, v{X+i}")
    for k in range(4): b(f"v_pk_add_f32 {v(DD+2*k,2)}, {v(BASE+2*k,2)}, {v(MN+2*(k&1),2)} neg_lo:[0,1] neg_hi:[0,1]")
    if opt("rd", 1):
        for k in range(8): rnd(b, DD+k, DD+k)
    for k in range(4): b(f"v_pk_mul_f32 {v(DD+2*k,2)}, {v(DD+2*k,2)}, {v(RI+2*(k&1),2)}")
    for k in range(4): b(f"v_cvt_pk_bf16_f32 v{UPK+k}, v{DD+2*k}, v{DD+2*k+1}")
    b(f"ds_write_b64 v{vUW}, {v(UPK,2)} offset:{half*2048}\nds_write_b64 v{vUW}, {v(UPK+2,2)} offset:{US+half*2048}")
    F2 = opt("fine", 0) == 2 and layer == 1
    if F2: stamp(b, f"c{half} ln")
    if pre_barrier: b(pre_barrier)
    b("s_waitcnt lgkmcnt(0)\ns_barrier")
    if F2: stamp(b, f"c{half} bar1")
    if after_ln: after_ln(b)
    def urd(tp, t): return f"    ds_read_b128 {v(U0+(tp*4+t)*4,4)}, v{vUR} offset:{512 + 512*(tp+4*half) - 64*t - 32} ;@U{tp}_{t}"
    b.add([urd(0, t) for t in range(4)] + [urd(1, 0), urd(1, 1)])
    later = [urd(tp, t) for tp in range(1, 4) for t in range(4)][2:]
    fill = []
    for k in range(4):
        c = k >> 1
        fill += [f"    v_lshlrev_b32 v{RV+2*k}, 16, v{UPK+k}", f"    v_and_b32 v{RV+2*k+1}, s{sMSK}, v{UPK+k}"]
    for k in range(8): fill.append(f"    v_fmac_f32 v{BASE+k}, s{sDK + (k >> 2)}, v{RV+k}")
    ml = []; cnt = 0
    lastidx = {0: 12, 1: 25, 2: 34}
    for tp in range(4):
        for t in range(4):
            ml.append(f"    @lg U{tp}_{t}")
            for r in range(tp, 4):
                acc = ACC + (4*half + r)*4
                cin = "0" if (half == 0 and t == 0 and tp == 0) else ac(acc, 4)
                ml.append(f"    v_mfma_f32_16x16x32_bf16 {ac(acc,4)}, {v(T0+((r-tp)*4+t)*4,4)}, {v(U0+(tp*4+t)*4,4)}, {cin}")
                if later: ml.append(later.pop(0))
                elif fill: ml.append(fill.pop(0))
                for r_ in range(3):
                    if cnt == lastidx[r_] + (5 if r_ < 2 else 5): ml.append(f"    ds_write_b128 v{vEW}, {ac(ACC+(4*half+r_)*4,4)} offset:{r_*4096}")
                cnt += 1
    assert not later and not fill
    ml = interleave(ml, bg, start=2)
    b.add(ml)
    tailbg = list(tailbg)
    if F2: stamp(b, f"c{half} mfma")
    if after_mfma: after_mfma(b)
    if F2: stamp(b, f"c{half} chk")
    b(f"ds_write_b128 v{vEW}, {ac(ACC+(4*half+3)*4,4)} offset:{3*4096}")
    b.add(flat(tailbg[:2]))
    if pre_barrier2: b(pre_barrier2)
    b("s_waitcnt lgkmcnt(0)\ns_barrier")
    if F2: stamp(b, f"c{half} bar2")
    for src in range(4): b(f"ds_read_b128 {v(RV+4*src,4)}, v{vER} offset:{src*1024} ;@E{src>>1}")
    b.add(flat(tailbg[2:]))
    b(f"s_mov_b32 s{sO}, {XP[1+2*layer] + half*0x100000}")
    for c in range(2):
        b(f"@lg E{c}")
        for k in range(2): b(f"v_pk_add_f32 {v(RV+8*c+2*k,2)}, {v(RV+8*c+2*k,2)}, {v(RV+8*c+4+2*k,2)}")
        for k in range(2): b(f"v_pk_add_f32 {v(BASE+4*c+2*k,2)}, {v(BASE+4*c+2*k,2)}, {v(RV+8*c+2*k,2)}")
    for i in range(4): b(f"v_cvt_pk_bf16_f32 v{244+i}, v{BASE+i}, v{BASE+4+i}")
    b(f"s_mov_b64 exec, s[{sEXW}:{sEXW+1}]\nv_swap_b32 v244, v245\nv_swap_b32 v246, v247\ns_mov_b64 exec, -1")
    b(f"buffer_store_dwordx4 v[244:247], v{vCX}, {WS}, s{sO} offen sc1 ;@cst")
    stamp(b, f"L{layer} conv{half} stored")
def conv_ab(b):
    b("@lg T")
    for t in range(4):
        for tp in range(4):
            for r in range(4, 8):
                acc = ACC + r*4
                cin = "0" if (t == 0 and tp == 0) else ac(acc, 4)
                b(f"v_mfma_f32_16x16x32_bf16 {ac(acc,4)}, {v(T0+((r-tp)*4+t)*4,4)}, {v(U0+(tp*4+t)*4,4)}, {cin}")
def colsum(b):
    wa_regs(b)
    b(f"@{{\ns_lshr_b32 s6, s{sW}, 1\ns_mul_i32 s6, s6, {256*224}\ns_lshl_b32 s5, s{sW}, 6\ns_cmp_eq_u32 s{sW}, 3\ns_cselect_b32 s5, 0, s5\ns_cselect_b64 vcc, -1, 0\ns_sub_u32 s5, s5, s6\n@}}")
    b(f"v_cndmask_b32 v248, v{vWA}, v253, vcc\nv_cndmask_b32 v249, v252, v253, vcc\nv_add_u32 v248, s5, v248\nv_add_u32 v249, s5, v249\nv_add_u32 v250, {256*224}, v248\nv_add_u32 v251, {256*224}, v249")
    for i in range(4): b(f"v_mov_b32 v{240+i}, s{sONE}")
    def rd(ks):
        for f2 in range(2):
            for hf in range(2):
                b(f"ds_read_b64_tr_b16 {v(96+(f2*8+ks%8)*4+2*hf,2)}, v{248 + f2 + 2*(ks//8)} offset:{(32*(ks%8)+16*hf)*224} ;@c{ks}")
    for ks in range(3): rd(ks)
    for ks in range(16):
        if ks + 3 < 16: rd(ks + 3)
        b(f"@lg c{ks}")
        for f2 in range(2):
            b(f"v_mfma_f32_16x16x32_bf16 {v(232+4*f2,4)}, {v(96+(f2*8+ks%8)*4,4)}, v[240:243], {'0' if ks == 0 else v(232+4*f2,4)}")
    b(f"s_lshl_b32 s5, s{sW}, 7\nv_add_u32 v5, s5, v{vCSA}")
    b("ds_write_b128 v5, v[232:235] ;@cs\nds_write_b128 v5, v[236:239] offset:64 ;@cs")

WB, SS, KA, SA = 160, 216, 224, 224
def g1_loads(layer, half):
    g = []
    X0 = 32 + 64 * half
    for ks in range(8):
        for n_, (dst, off) in enumerate([(0, 0), (4, 256), (2, 2048), (6, 2304)]):
            grp = []
            if n_ == 0: grp.append(f"    s_mov_b32 s{sB0}, {XP[1+2*layer] + half*0x100000 + ks*4096}")
            grp.append(f"    buffer_load_dwordx2 {v(X0+8*ks+dst,2)}, v{vGX}, {WS}, s{sB0} offen offset:{off} sc1 ;@x{ks}")
            g.append(grp)
    return g
def wread(b, ks, ft, hfs=(0, 1)):
    r = WB + (ks & 1) * 28 + ft * 4
    for hf in hfs:
        ad, off = (253, 0) if ft == 6 else ((252 if ft & 1 else vWA), (ft >> 1) * 64)
        b(f"ds_read_b64_tr_b16 {v(r+2*hf,2)}, v{ad} offset:{(32*ks+16*hf)*224 + off} ;@w{ks}_{ft}")
def wa_regs(b):
    b(f"v_xor_b32 v252, 32, v{vWA}\nv_and_b32 v253, 32, v{vWA}\nv_mul_u32_u24 v253, 6, v253\nv_sub_u32 v253, v{vWA}, v253\nv_add_u32 v253, 384, v253")
def g1_pre(b):
    wa_regs(b)
    for ft in range(7): wread(b, 0, ft)
def g1_loop(b, half, bg, hooks={}, slots=None):
    X0 = 32 + 64 * half
    bg = list(bg)
    if slots is None: slots = (0, 2, 4, 6) if len(bg) <= 32 else (0, 1, 3, 4, 6)
    def swaps(ks):
        x = X0 + 8 * ks
        b(f"@vm x{ks}\nv_swap_b32 v{x+1}, v{x+4}\nv_swap_b32 v{x+3}, v{x+6}")
    swaps(0)
    for ks in range(8):
        x = X0 + 8 * ks
        if opt("fine", 0) == 3 and len(STAMPS) > 25: stamp(b, f"g1{half} k{ks}")
        if ks in hooks: hooks[ks](b)
        if ks == 7:
            for ft in range(7):
                r = WB + 28 + ft * 4
                if ft in (0, 4): b(f"@lg w{ks}_{3 if ft == 0 else 6}")
                b(f"v_mfma_f32_16x16x32_bf16 {ac(SA+4*ft,4)}, {v(r,4)}, {v(x+4,4)}, {ac(SA+4*ft,4)}")
                b(f"ds_read_b128 {v(160+4*ft,4)}, v{vCSA} offset:{ft*64}")
                if ft in slots and bg: b.add(bg.pop(0))
            for ft in range(7):
                r = WB + 28 + ft * 4
                b(f"v_mfma_f32_16x16x32_bf16 {v(KA+4*ft,4)}, {v(r,4)}, {v(x,4)}, {v(KA+4*ft,4)}")
                if ft % 2 == 0 and ft // 2 < NW0: b(f"ds_write_b128 v{vXW}, {ac(SA+4*(ft//2),4)} offset:{(ft//2)*1024}")
            continue
        for ft in range(7):
            r = WB + (ks & 1) * 28 + ft * 4
            if ft in (0, 4): b(f"@lg w{ks}_{3 if ft == 0 else 6}")
            b(f"v_mfma_f32_16x16x32_bf16 {ac(SA+4*ft,4)}, {v(r,4)}, {v(x+4,4)}, {'0' if ks == 0 else ac(SA+4*ft,4)}")
            wread(b, ks + 1, ft, (0,))
            if ft in slots and bg: b.add(bg.pop(0))
            b(f"v_mfma_f32_16x16x32_bf16 {v(KA+4*ft,4)}, {v(r,4)}, {v(x,4)}, {'0' if ks == 0 else v(KA+4*ft,4)}")
            wread(b, ks + 1, ft, (1,))
            if ft == 5: swaps(ks + 1)
    assert not bg
NW0 = opt("nw0", 2)
RC, CSR = 188, 160
def g1_post1(b, half, bg=[], chk=None, bg2=[]):
    X0 = 32 + 64 * half
    d = Buf()
    for ks in range(8):
        x = X0 + 8 * ks
        for q in range(4):
            o = 4 * (q & 1)
            if ks == 0 and q < 2:
                d(f"v_dot2_f32_bf16 v{SS+o}, s{sONE}, v{x+q}, 0\nv_dot2_f32_bf16 v{SS+o+1}, v{x+q}, v{x+q}, 0")
                d(f"v_dot2_f32_bf16 v{SS+o+2}, s{sONE}, v{x+4+q}, 0\nv_dot2_f32_bf16 v{SS+o+3}, v{x+4+q}, v{x+4+q}, 0")
                continue
            d(f"v_dot2c_f32_bf16 v{SS+o}, s{sONE}, v{x+q}\nv_dot2c_f32_bf16 v{SS+o+1}, v{x+q}, v{x+q}")
            d(f"v_dot2c_f32_bf16 v{SS+o+2}, s{sONE}, v{x+4+q}\nv_dot2c_f32_bf16 v{SS+o+3}, v{x+4+q}, v{x+4+q}")
    wr = [[f"    ds_write_b128 v{vXW}, {ac(SA+4*ft,4)} offset:{ft*1024}"] for ft in range(NW0, 7)]
    dl = interleave(d.l, wr, start=8, every=24)
    cut = opt("cut", 140)
    b.add(interleave(dl[:cut], bg, start=4))
    chk(b)
    b.add(interleave(dl[cut:], bg2))
    if opt("fine", 0) == 2: stamp(b, f"p{len(STAMPS)} dots")
    b(f"v_pk_add_f32 {v(SS+2,2)}, {v(SS+2,2)}, {v(SS+6,2)}\nv_pk_add_f32 {v(SS,2)}, {v(SS,2)}, {v(SS+4,2)}")
    b(f"v_permlane32_swap_b32 v{SS}, v{SS+2}\nv_permlane32_swap_b32 v{SS+1}, v{SS+3}\nv_pk_add_f32 {v(SS,2)}, {v(SS,2)}, {v(SS+2,2)}")
    b(f"v_permlane16_swap_b32 v{SS}, v{SS+1}\nv_add_f32 v{SS}, v{SS}, v{SS+1}\nds_write_b32 v{vSW}, v{SS}")
    b("s_waitcnt lgkmcnt(0)\ns_barrier")
    b(f"ds_read2_b32 {v(SS,2)}, v{vSR} offset0:0 offset1:16 ;@s\nds_read2_b32 {v(SS+2,2)}, v{vSR} offset0:32 offset1:48 ;@s")
    for ft in range(7): b(f"ds_read_b128 {v(RC+4*ft,4)}, v{vXR} offset:{ft*1024} ;@r{ft}")
def g1_post2(b, layer, half):
    b("@lg s")
    b(f"v_pk_add_f32 {v(SS,2)}, {v(SS,2)}, {v(SS+2,2)}")
    mn, sd, c2 = SS, SS+1, SS+2
    st = Buf()
    st(f"v_pk_mul_f32 {v(SS,2)}, {v(SS,2)}, s[{sINV}:{sINV+1}]\nv_fma_f32 v{sd}, -v{mn}, v{mn}, v{sd}")
    rnd(st, sd, sd); rnd(st, mn, mn)
    st(f"v_add_f32 v{sd}, s{sEPS}, v{sd}"); rnd(st, sd, sd)
    st(f"v_sqrt_f32 v{sd}, abs(v{sd})"); rnd(st, sd, sd)
    st(f"v_rcp_f32 v{c2}, v{sd}\nv_mul_f32 v{c2}, s{sNL2E}, v{c2}")
    adds = []
    for ft in range(7):
        t = RC + 4*ft
        adds.append([f"    @lg r{ft}"] + [f"    v_pk_add_f32 {v(t+2*k,2)}, {v(t+2*k,2)}, {v(KA+4*ft+2*k,2)}" for k in range(2)])
    b.add(interleave(st.l, adds, start=1, every=1))
    if opt("fine", 0) == 2: stamp(b, f"p{len(STAMPS)} stats")
    silu_part(b, 0, SPL[0])
def silu_part(b, k0, k1):
    mn, c2 = SS, SS + 2
    K = range(k0, k1); R = range(2*k0, 2*k1)
    for k in K: b(f"v_pk_fma_f32 {v(RC+2*k,2)}, {v(CSR+2*k,2)}, {v(mn,2)}, {v(RC+2*k,2)} op_sel_hi:[1,0,1] neg_lo:[0,1,0] neg_hi:[0,1,0]")
    for k in K: b(f"v_pk_mul_f32 {v(CSR+2*k,2)}, {v(RC+2*k,2)}, {v(c2,2)} op_sel_hi:[1,0]")
    for r in R: b(f"v_exp_f32 v{CSR+r}, v{CSR+r}")
    for k in K: b(f"v_pk_fma_f32 {v(CSR+2*k,2)}, {v(CSR+2*k,2)}, {v(mn,2)}, {v(mn,2)} op_sel:[0,1,1] op_sel_hi:[1,1,1]")
    for r in R: b(f"v_rcp_f32 v{CSR+r}, v{CSR+r}")
    for k in K: b(f"v_pk_mul_f32 {v(CSR+2*k,2)}, {v(CSR+2*k,2)}, {v(RC+2*k,2)}")
    for k in K:
        ft = k >> 1
        b(f"v_cvt_pk_bf16_f32 v{KA + 8*(ft >> 1) + 2*(ft & 1) + (k & 1)}, v{CSR+2*k}, v{CSR+2*k+1}")
    for pr in range(3):
        if k0 <= 4*pr < k1:
            p = KA + 8*pr
            b(f"v_permlane16_swap_b32 v{p}, v{p+2}\nv_permlane16_swap_b32 v{p+1}, v{p+3}")
SPL = {0: [14], 1: [8, 14], 2: [8, 12, 14], 3: [4, 8, 12, 14], 4: [4, 8, 14], 5: [12, 14]}[opt("sp", 2)]
def g1_store(b, layer, half, pre=None):
    hb = HB[layer] + half * 32 * HT
    b(f"s_mov_b32 s{sO}, {hb}\ns_mov_b32 s5, {hb + 4096}")
    done = 0
    for n_, k1 in enumerate(SPL):
        if n_: silu_part(b, SPL[n_-1], k1)
        if k1 == 14 and pre: pre(b)
        while done < 3 and 4*done + 4 <= k1:
            b(f"buffer_store_dwordx4 {v(KA+8*done,4)}, v{vH4}, {WS}, s{sO if done < 2 else 5} offen offset:{(done&1)*2048} sc1 ;@hst")
            done += 1
    b(f"buffer_store_dwordx2 {v(KA+24,2)}, v{vH2}, {WS}, s5 offen offset:2048 sc1 ;@hst")

H0, C2, RS = 32, 192, 184
def g2_loads(layer, half):
    g = []
    for ks in range(28):
        grp = []
        if ks % 4 == 0: grp.append(f"    s_mov_b32 s{sB0}, {HB[layer] + half*32*HT + ks*1024}")
        grp.append(f"    buffer_load_dwordx4 {v(H0+4*ks,4)}, v{vHL}, {WS}, s{sB0} offen offset:{(ks%4)*1024} sc1 ;@h{half}_{ks}")
        g.append(grp)
    return g
def w2_loads():
    g = []
    for i in range(56):
        grp = []
        if i % 4 == 0: grp.append(f"    s_add_u32 s{sB1}, s{sW2B}, {(i//4)*4096}")
        grp.append(f"    buffer_load_dwordx4 {ac(4*i,4)}, v6, {WS}, s{sB1} offen offset:{(i%4)*1024} sc1 ;@a{i//2}")
        g.append(grp)
    return g
def g2_res(layer, half):
    RS = 144 if half == 0 else 184
    g = [[f"    s_mov_b32 s{sO}, {XP[1+2*layer] + half*0x100000}"] +
         [f"    buffer_load_dword v{RS+k}, v{vRX}, {WS}, s{sO} offen offset:{(k>>1)*1024 + (k&1)*256} sc1 ;@res" for k in range(4)]]
    return g
def g2_loop(b, half, bg, hooks={}, tg=None, nm=None, late=[]):
    bg = list(bg); late = list(late)
    if tg: b.add(flat(tg[28:]))
    LAG = opt("lag", 8)
    def mf(ks, mt):
        b(f"v_mfma_f32_32x32x16_bf16 {v(C2+16*mt,16)}, {ac((ks*2+mt)*4,4)}, {v(H0+4*ks,4)}, {'0' if ks == 0 else v(C2+16*mt,16)}")
    for ks in range(28):
        if ks in hooks: hooks[ks](b)
        b(f"@vm h{half}_{ks},a{ks}")
        if nm and ks in (0, 4, 8, 12, 16, 20, 24): stamp(b, f"{nm} k{ks}")
        mf(ks, 1)
        if bg: b.add(bg.pop(0))
        if ks < 28 - LAG:
            mf(ks, 0)
            if tg and ks >= 1: b.add(tg[ks-1])
    if "end" in hooks: hooks["end"](b)
    wr = [f"ds_write_b128 v{vE1+sg-1}, {v(C2+8*sg+4*q,4)} offset:{q*1024}" for sg in (2, 3) for q in range(2)]
    for n_, ks in enumerate(range(28 - LAG, 28)):
        mf(ks, 0)
        if tg: b.add(tg[ks-1])
        if n_ >= 2 and n_ % 2 == 0 or n_ == LAG - 1:
            if wr: b(wr.pop(0))
        if late: b.add(late.pop(0))
    for w_ in wr: b(w_)
    if tg: b.add(["    s_nop 7"] + tg[27])
    assert not bg and not late
def g2_post1(b, half):
    RS = 144 if half == 0 else 184
    b("@vm res")
    for k in range(4): b(f"v_lshlrev_b32 v{224+2*k}, 16, v{RS+k}\nv_and_b32 v{225+2*k}, s{sMSK}, v{RS+k}")
    b(f"ds_write_b128 v{vE1}, {v(C2+8,4)}\nds_write_b128 v{vE1}, {v(C2+12,4)} offset:1024")
    b("s_waitcnt lgkmcnt(0)\ns_barrier")
    for k in range(6): b(f"ds_read_b128 {v(160+4*k,4)}, v{vE0} offset:{k*1024} ;@q{k>>1}")
def g2_post2(b, layer, half):
    for s_ in range(3):
        b(f"@lg q{s_}")
        for k in range(4): b(f"v_pk_add_f32 {v(C2+2*k,2)}, {v(C2+2*k,2)}, {v(160+8*s_+2*k,2)}")
    if opt("ro", 1):
        for r in range(8): rnd(b, C2+r, C2+r)
    for k in range(4): b(f"v_pk_add_f32 {v(C2+2*k,2)}, {v(C2+2*k,2)}, {v(224+2*k,2)}")
    for k in range(4): b(f"v_cvt_pk_bf16_f32 v{240+k}, v{C2+2*k}, v{C2+2*k+1}")
    if layer == 0:
        b(f"@{{\ns_mov_b32 s{sO}, {XP[2] + half*0x100000}")
        for k in range(4):
            b(f"buffer_store_dword v{240+k}, v{vX2}, {WS}, s{sO} offen offset:{(k>>1)*1024 + (k&1)*256} sc1 ;@xst")
        b("@}\nv_mov_b32 v244, 0\nv_mov_b32 v245, 0")
        for k in range(4): b(f"v_dot2c_f32_bf16 v244, s{sONE}, v{240+k}\nv_dot2c_f32_bf16 v245, v{240+k}, v{240+k}")
        b("v_permlane32_swap_b32 v244, v245\nv_add_f32 v244, v244, v245")
        LST = LSCR + 24576
        b(f"v_lshrrev_b32 v246, 2, v6\nv_add_u32 v246, {LST}, v246\ns_lshl_b32 s5, s{sW}, 8\nv_add_u32 v247, s5, v246")
        b("ds_write_b32 v247, v244\ns_waitcnt lgkmcnt(0)\ns_barrier")
        b("ds_read2st64_b32 v[244:245], v246 offset0:0 offset1:1\nds_read2st64_b32 v[246:247], v246 offset0:2 offset1:3")
        b(f"s_mov_b32 s{sO}, {ST2 + half*8192}\ns_waitcnt lgkmcnt(0)\nv_pk_add_f32 v[244:245], v[244:245], v[246:247]\nv_add_f32 v244, v244, v245")
        b(f"@{{\ns_mov_b64 exec, s[{sEXQ}:{sEXQ+1}]\nbuffer_atomic_add_f32 v244, v{vSA}, {WS}, s{sO} offen sc1 ;@xst\ns_mov_b64 exec, -1\n@}}")
    else:
        b("v_permlane32_swap_b32 v240, v242\nv_permlane32_swap_b32 v241, v243")
        b(f"s_mov_b32 s{sO}, {half*0x100000}\nbuffer_store_dwordx4 v[240:243], v{vOUT}, {srd(SOUT)}, s{sO} offen {opt('ofl', 'x').replace('x', '').replace('_', ' ')}")

gcheck(M); conv_x(M, 0, 0)
M(f"v_mov_b32 v{vPL}, v204\nv_mov_b32 v{vSG}, v205")
M("s_waitcnt lgkmcnt(0)\ns_barrier")
stamp(M, "kgen done")
XT, XUP, XPF, HPF, HP2, HUP = opt("xt", 10), opt("xup", 16), opt("xpf", 16), opt("hpf", 14), opt("hp2", 6), opt("hup", 14)
D1, D2, D3, D4, D5 = opt("d1", 6), opt("d2", 6), opt("d3", 5), opt("d4", 8), opt("d5", 6)
M.add(interleave(gen(t_loads, range(4)), take(D1))); u_pad(M)
for layer in range(2):
    L0 = layer == 0
    cA, cB = 4*layer, 4*layer + 1
    xa, xb, ha, hb_ = g1_loads(layer, 0), g1_loads(layer, 1), g2_loads(layer, 0), g2_loads(layer, 1)
    if L0:
        vm_ = take(D2); tg_ = t_groups(5)[16:]
        conv_half(M, layer, 0, bg=[tg_[k] + (vm_[k//2] if (k % 2 == 0 and k//2 < len(vm_)) else []) for k in range(16)])
        conv_x(M, 0, 1)
        s1_ = [l.replace("v5", "v240").replace("v6", "v241") for l in gen(setup_g1)]
        ab = interleave(gen(conv_ab), [gen(sig_all, cA, "cst")], start=opt("abs0", 30), every=1)
        ab = interleave(ab, [s1_[k:k+2] for k in range(0, len(s1_), 2)], start=2)
        M.add(interleave(ab, take(D3), start=1))
    else:
        conv_half(M, layer, 0, pre_barrier="@vm xst", after_ln=lambda b: sig_all(b, 3, "xst", barrier=False))
        ab = gen(conv_ab)
        ev = sorted([(opt("abp", 8), 0, gen(poll_all, 3)), (opt("abc", 48), 1, gen(check, "all", 3) + gen(conv_inputs, 1, 1)), (opt("abs", 50), 2, gen(sig_all, cA, "cst"))])
        pos = 0
        for p_, _, g_ in ev:
            M.add(ab[pos:p_]); M.add(g_); pos = p_
        M.add(ab[pos:])
    stamp(M, f"L{layer} conv0 signalled")
    if not L0:
        if opt("lateC", 0):
            conv_half(M, layer, 1, after_mfma=lambda b: poll_all(b, cA))
            g1_pre(M); check(M, "all", cA)
            M.add(flat(xa[:XUP]))
        else:
            conv_half(M, layer, 1, after_ln=lambda b: poll_all(b, cA), after_mfma=lambda b: check(b, "all", cA), tailbg=xa[:XT])
            g1_pre(M)
            M.add(flat(xa[XT:XUP]))
    else:
        assert not wq
        wq += w2_loads()
        sg_ = gen(setup_g2)
        sg_ = sg_[:3] + sg_[-4:] + sg_[3:-4]
        bgs = [sg_[k:k+2] for k in range(0, len(sg_), 2)]
        if W2E:
            wl = take(D4)
            for q, g_ in enumerate(wl): bgs[4 + q * ((len(bgs) - 4) // len(wl))] += g_
        conv_half(M, layer, 1, pre_barrier2="@vm w1", bg=bgs)
        poll_all(M, cA)
        cs_ = gen(colsum); cc = opt("cc", 60)
        M.add(interleave(cs_[:cc], take(D5 if W2E else 0), start=12))
        check(M, "all", cA)
        M.add(interleave(cs_[cc:], xa[:XUP]))
        g1_pre(M)
        M("@lg cs")
    stamp(M, f"L{layer} g1A ready")
    w2 = wq
    def mixw(x_, w_):
        if len(x_) + len(w_) <= 32: return x_ + w_
        x_ = list(x_); w_ = list(w_); o = []
        while x_ or w_:
            for q in range(5):
                src = x_ if (x_ and q < 4) else w_
                if src: o.append(src.pop(0))
                elif x_: o.append(x_.pop(0))
        return o + [[]] * (40 - len(o))
    XP1, HP1 = opt("xp1", 0), opt("hp1", 0)
    g1_loop(M, 0, mixw(xa[XUP:], take(opt("wa", 12))), {(opt("sg00", 0) if L0 else opt("sg0", 2)): lambda b: sig_all(b, cB, "cst")},
            slots=(None if L0 else [(0, 2, 4, 6), (0, 1, 3, 4, 6), (0, 1, 2, 3, 4, 5, 6)][opt("xs", 0)]))
    stamp(M, f"L{layer} g1A loop")
    poll_all(M, cB)
    g1_post1(M, 0, take(opt("wp", 7)), lambda b: check(b, "all", cB), xb[:XP1])
    stamp(M, f"L{layer} g1A post1")
    M.add(interleave(gen(g1_post2, layer, 0), xb[XP1:XPF]))
    g1_store(M, layer, 0, g1_pre)
    stamp(M, f"L{layer} g1A stored")
    if opt("fast", 0) and not L0:
        c1_, c2_ = opt("fc1", 5), opt("fc2", 16)
        n1 = 4 * (8 - c1_)
        g1_loop(M, 1, xb[XPF:] + [[]] * (4*c1_ - (32 - XPF)) + ha[:n1],
                {opt("sg1", 3): lambda b: sig_grp(b, 2*layer, "hst"), c1_ - 1: lambda b: poll_grp(b, 2*layer), c1_: lambda b: check(b, "grp", 2*layer)})
        stamp(M, f"L{layer} g1B loop")
        g1_post1(M, 1, [], lambda b: None, [])
        stamp(M, f"L{layer} g1B post1")
        M.add(interleave(gen(g1_post2, layer, 1), g2_res(layer, 0) + ha[n1:HPF]))
        g1_store(M, layer, 1)
        stamp(M, f"L{layer} g1B stored")
        rest = ha[HPF:]
        n2 = 28 - c2_
        g2_loop(M, 0, rest + [[]] * (c2_ - len(rest)) + hb_[:n2],
                {opt("sg2", 8): lambda b: sig_grp(b, 2*layer+1, "hst"), c2_ - 5: lambda b: poll_grp(b, 2*layer+1), c2_: lambda b: check(b, "grp", 2*layer+1)},
                late=hb_[n2:min(20, n2+8)])
        stamp(M, f"L{layer} g2A loop")
        g2_post1(M, 0); g2_post2(M, layer, 0)
        HP2_ = HUP = min(20, n2 + 8)
    else:
        g1_loop(M, 1, [[]] * opt("xsk", 2) + mixw(xb[XPF:], take(XPF - opt("xsk", 2))), {opt("sg1", 3): lambda b: sig_grp(b, 2*layer, "hst")})
        stamp(M, f"L{layer} g1B loop")
        poll_grp(M, 2*layer)
        g1_post1(M, 1, take(opt("wp", 7)), lambda b: check(b, "grp", 2*layer), ha[:HP1])
        stamp(M, f"L{layer} g1B post1")
        M.add(interleave(gen(g1_post2, layer, 1), g2_res(layer, 0) + ha[HP1:HPF]))
        g1_store(M, layer, 1)
        stamp(M, f"L{layer} g1B stored")
        rest = ha[HPF:]
        if w2:
            mix = []
            while rest or w2:
                mix.append((rest.pop(0) if rest else []) + (w2.pop(0) if w2 else []))
            rest = mix
        HP0 = opt("hp00", 0) if L0 else opt("hp0", 8)
        g2_loop(M, 0, [[]] * opt("hsk", 2) + rest, {opt("sg2", 8): lambda b: sig_grp(b, 2*layer+1, "hst"), (opt("pg2", 18) if HP0 else 27): lambda b: poll_grp(b, 2*layer+1),
                          "end": (lambda b: check(b, "grp", 2*layer+1) if HP0 else None)}, nm=("L1 g2A" if layer and opt("fine", 0) == 1 else None), late=hb_[:HP0])
        stamp(M, f"L{layer} g2A loop")
        if HP0: M.add(interleave(gen(g2_post1, 0) + gen(g2_post2, layer, 0), hb_[HP0:HP0+HP2], end=opt("hpe", 40)))
        else:
            if opt("lateA", 0) and L0:
                g2_post1(M, 0); g2_post2(M, layer, 0); check(M, "grp", 2*layer+1); M.add(flat(hb_[:HP2]))
            else:
                g2_post1(M, 0); check(M, "grp", 2*layer+1)
                M.add(interleave(gen(g2_post2, layer, 0), hb_[:HP2], end=opt("hpe", 30)))
        HP2_ = HP0 + HP2
    if L0 and opt("cpf", 1): M("v_add_u32 v5, s90, v6\nglobal_load_dwordx4 v[252:255], v5, s[42:43]")
    stamp(M, f"L{layer} g2A stored")
    M.add(flat(hb_[HP2_:HUP]))
    if L0:
        g2_loop(M, 1, hb_[HUP:] + g2_res(layer, 1), {opt("sg3", 4): lambda b: sig_all(b, 2, "xst"), 24: lambda b: poll_all(b, 2)}, tg=t_groups())
        stamp(M, f"L{layer} g2B loop")
        g2_post1(M, 1)
        if opt("lateB", 0):
            poll_all(M, 2); g2_post2(M, layer, 1); check(M, "all", 2); conv_inputs(M, 1, 0)
        else:
            check(M, "all", 2); conv_inputs(M, 1, 0)
            g2_post2(M, layer, 1)
        stamp(M, f"L{layer} g2B stored")
        u_pad(M)
    else:
        M("s_barrier")
        g2_loop(M, 1, hb_[HUP:] + g2_res(layer, 1), nm=("L1 g2B" if opt("fine", 0) == 1 else None))
        stamp(M, f"L{layer} g2B loop")
        g2_post1(M, 1); g2_post2(M, layer, 1)
        stamp(M, f"L{layer} g2B stored")
if STAMP:
    M(f"s_cmp_lg_u32 s{sW}, 0\ns_cbranch_scc1 {DONE}")
    M(f"v_mbcnt_lo_u32_b32 v5, -1, 0\nv_mbcnt_hi_u32_b32 v5, -1, v5\nv_lshlrev_b32 v5, 2, v5\ns_lshl_b32 s5, s2, 8\ns_add_u32 s5, s5, {0x1800000 + 0x400000}")
    M(f"buffer_store_dword v7, v5, {WS}, s5 offen")
M.label(DONE)
M("s_endpgm")

a = Asm()
a.kernel(NAME + "_kernel", vgpr=512, sgpr=102, accum=256)
lines = resolve(strip_marks(M.l)) + tail.l + [".Lkend:"]
lines, added = hazard.fix(lines)
import numpy as np
def rbf(j):
    u = np.array([j], dtype=np.float32).view(np.uint32)[0]
    u = (int(u) + 0x7FFF + ((int(u) >> 16) & 1)) & 0xFFFF0000
    return int(np.array([u], dtype=np.uint32).view(np.float32)[0])
def gaddr(j):
    p = rbf(max(j, 0)); e = 0 if p < 256 else 1 if p < 512 else 2 if p < 1024 else 3
    row = 8*e + ((((p >> 7) << 3) | (p & 7)) >> e)
    return LGT + row*64 + ((p >> 3) & 15)*4
def dmaoff(par_, k, lane):
    q = 16*k + (lane >> 2); pair, qq, sub = q // 7, q % 7, lane & 3
    full, half_ = (32, 0) if par_ else (0, 192)
    if qq < 3: return pair*7168 + full + qq*64 + sub*16
    if qq < 6: return pair*7168 + 3584 + full + (qq-3)*64 + (sub ^ 2)*16
    return pair*7168 + (sub >> 1)*3584 + half_ + (sub & 1)*16
if TB:
    it = [gaddr(8*t - 1 + 4*pl + k) for pl in range(2) for t in range(256) for k in range(4)] + [gaddr(8*t + 7) for t in range(256)]
    dt_ = [(dmaoff(p_, 4*pl + k, l_) if 4*pl + k < 7 else 0) for p_ in range(2) for pl in range(2) for l_ in range(64) for k in range(4)]
    for nm_, tb_ in (("idx_table", it), ("dma_table", dt_)):
        lines += [".p2align 6", f".type {nm_},@object", f"{nm_}:"] + [".long " + ", ".join(str(x) for x in tb_[q:q+16]) for q in range(0, len(tb_), 16)] + [f".size {nm_}, {4*len(tb_)}"]
a.lines += lines
print("nops added", added, "lines", len(a.lines), file=sys.stderr)
hdr = "".join(l for l in open(f"cdna_kernels/{NAME}.s.ref").readlines() if l.startswith(";") and "@launch" not in l and "Override" not in l and "grid=ceil" not in l)
a.launches = [f"; @launch grid=(256,1,1) block=(256,1,1) lds={LDS_BYTES}"]
open(OUT, "w").write(a.text(hdr))
json.dump(STAMPS, open("work/" + OUT.split("/")[-1] + ".stamps.json", "w"))
```

```python
import sys, struct, json
sys.path.insert(0, "work")
from asmgen import Asm
import hazard
from sched import resolve, interleave, strip_marks
NAME = "interleave_layers__ssm_conv_s4d__dense_activation_silu__prompt"
STAMP = "--stamp" in sys.argv
OPT = dict(x.lstrip("-").split("=") for x in sys.argv[1:] if x.startswith("--") and "=" in x)
def opt(k, d): return type(d)(OPT.get(k, d))
OUT = [x for x in sys.argv[1:] if not x.startswith("--")]
OUT = OUT[0] if OUT else f"cdna_kernels/{NAME}.s"
def f2u(x): return struct.unpack("<I", struct.pack("<f", x))[0]
LOG2E = 1.4426950408889634
GCNT = 6 * 0x8000
ST0 = 0x80000; ST2 = 0x84000
W2F = 0x100000
W1F = 0x1900000
XP = [0x1700000, 0x300000, 0x500000, 0x700000]
HB = [0x900000, 0x1000000]
WS_BYTES = 0x2000000
HT = 114688
LPK = 114688; PKS = 8256; LCS = 131200; LSCR = 131712
LU = LSCR; US = 4608; LEX = LSCR + 9216
ES = 28672; LGT = LEX
LDS_BYTES = 163840
SWS, SW1, SW2, SOUT = 44, 48, 52, 56
sW, sCPI, sRT, sCT, sLT, sDT, sNON, sGC = 60, 61, 62, 63, 64, 65, 66, 67
sDK, sONE, sMSK, sINV, sEPS, sNL2E = 68, 70, 71, 72, 74, 75
sEXS = 76
sB0, sB1, sO, sW2B, sGS = 78, 79, 80, 81, 82
sSTAMP = 84
sEXQ = 92
sEXW = 100
SPIN = 60000
vOUT, vPL, vSG, vPD, vONE = 0, 1, 2, 3, 4
vCX, vCS, vUW, vUR, vTB, vEW, vER, vGX, vWA, vXW, vXR, vSW, vSR, vCSA, vH4, vH2, vHL, vRX, vX2, vE1, vE0, vSA = \
    8, 9, 10, 11, 12, 13, 14, 15, 16, 17, 18, 19, 20, 21, 22, 23, 24, 25, 26, 27, 30, 31
vDMA = 24

HSC = "sc1" if opt("hsc", 1) else opt("hfl", "")
GFLAG = opt("gflag", 0)
if opt("samehb", 0): HB = [HB[0], HB[0]]
NSH = opt('nsh', 8)
class Buf:
    def __init__(self): self.l = []
    def __call__(self, s):
        for ln in s.strip("\n").split("\n"): self.l.append("    " + ln.strip())
    def label(self, n): self.l.append(n + ":")
    def add(self, lines): self.l += lines
uid = [0]
def lab(b="L"):
    uid[0] += 1; return f".{b}_{uid[0]}"
def srd(n): return f"s[{n}:{n+3}]"
def v(n, k=1): return f"v{n}" if k == 1 else f"v[{n}:{n+k-1}]"
def ac(n, k=1): return f"a{n}" if k == 1 else f"a[{n}:{n+k-1}]"
def flat(groups): return [l for g in groups for l in g]
def gen(fn, *args, **kw):
    t = Buf(); fn(t, *args, **kw); return t.l
WS = srd(SWS)
tail = Buf()
STAMPS = []
def stamp(b, name):
    if not STAMP: return
    if opt("light", 0) and name not in ("start", "L1 g2B stored"): return
    i = len(STAMPS); STAMPS.append(name)
    assert i < 64
    b(f"@{{\n{'s_memtime' if opt('cyc', 0) else 's_memrealtime'} s[{sSTAMP}:{sSTAMP+1}]\ns_waitcnt lgkmcnt(0)\nv_writelane_b32 v7, s{sSTAMP}, {i}\n@}}")

FG = opt("fg", 1)
sGP = 91
GADDR = "v_mov_b32 v5, 0" if FG else f"v_and_b32 v5, 0x300, v{vPL}"
GT = 8 if FG else 16
def poll_all(b, cnt):
    b(f"s_mov_b32 s{sO}, {cnt*0x8000}\nbuffer_load_dword v{vPD}, v{vPL}, {WS}, s{sO} offen sc1 ;@poll")
def poll_grp(b, idx):
    b(f"@{{\ns_add_u32 s{sO}, s{sGP}, {idx*16*1024}\n{GADDR}\nbuffer_load_dword v{vPD}, v5, {WS}, s{sO} offen sc1 ;@poll\n@}}")
def check(b, kind, idx):
    slow = lab("slow"); back = lab("back"); lp = lab("lp")
    b("@vm poll")
    b(f"@{{\nv_cmp_gt_u32 vcc, {GT if kind == 'grp' else 256 // NSH}, v{vPD}\ns_cbranch_vccnz {slow}")
    b.label(back); b("@}")
    tail.label(slow)
    tail(f"s_mov_b32 s10, {SPIN}")
    if kind == "all": tail(f"s_mov_b32 s11, {idx*0x8000}\nv_mov_b32 v5, v{vPL}")
    else: tail(f"s_add_u32 s11, s{sGP}, {idx*16*1024}\n{GADDR}")
    tgt = GT if kind == 'grp' else 256 // NSH
    if opt("pp", 1):
        tail(f"buffer_load_dword v{vPD}, v5, {WS}, s11 offen sc1\ns_sleep {opt('ppd', 4)}")
        tail.label(lp)
        tail(f"buffer_load_dword v4, v5, {WS}, s11 offen sc1\ns_waitcnt vmcnt(1)\nv_cmp_gt_u32 vcc, {tgt}, v{vPD}\ns_cbranch_vccz {back}")
        tail(f"buffer_load_dword v{vPD}, v5, {WS}, s11 offen sc1\ns_waitcnt vmcnt(1)\nv_cmp_gt_u32 vcc, {tgt}, v4\ns_cbranch_vccz {back}")
    else:
        tail.label(lp)
        tail(f"buffer_load_dword v{vPD}, v5, {WS}, s11 offen sc1\ns_waitcnt vmcnt(0)")
        tail(f"v_cmp_gt_u32 vcc, {tgt}, v{vPD}\ns_cbranch_vccz {back}")
    tail(f"s_sub_u32 s10, s10, 1\ns_cmp_lg_u32 s10, 0\ns_cbranch_scc1 {lp}\ns_branch {back}")
def sig_all(b, cnt, tag, barrier=True):
    b(f"@vm {tag}\n@{{\n{'s_barrier' if barrier else 's_nop 0'}\ns_mov_b32 s{sO}, {cnt*0x8000}\ns_mov_b64 exec, s[{sEXS}:{sEXS+1}]")
    b(f"v_mov_b32 v5, 1\nbuffer_atomic_add v5, v{vSG}, {WS}, s{sO} offen sc1\ns_mov_b64 exec, -1\n@}}")
def sig_grp(b, idx, tag):
    b(f"@vm {tag}\n@{{\ns_add_u32 s{sO}, s{sGS}, {idx*16*1024}\ns_mov_b64 exec, 1")
    if GFLAG: b(f"buffer_store_dword v{vONE}, off, {WS}, s{sO} {HSC}\ns_mov_b64 exec, -1\ns_barrier\n@}}")
    else: b(f"v_mov_b32 v5, 1\nbuffer_atomic_add v5, off, {WS}, s{sO} sc1\ns_mov_b64 exec, -1\ns_barrier\n@}}")
def xsum(b, regs, tmp, steps):
    for s in steps:
        for i, r in enumerate(regs): b(f"v_mov_b32 v{tmp+i}, v{r}")
        for i, r in enumerate(regs): b(f"v_permlane{s}_swap_b32 v{r}, v{tmp+i}")
        for i, r in enumerate(regs): b(f"v_add_f32 v{r}, v{r}, v{tmp+i}")
def rnd(b, d, s): b(f"v_cvt_pk_bf16_f32 v{d}, 0, v{s}")

M = Buf()
DONE = ".Ldone"
M.label(".Lkstart")
M("s_cmp_ge_u32 s2, 256")
M(f"s_cbranch_scc1 {DONE}")
M("s_load_dwordx16 s[16:31], s[0:1], 0\ns_load_dwordx8 s[32:39], s[0:1], 64\ns_load_dwordx2 s[40:41], s[0:1], 96")
M("s_memrealtime s[14:15]")
M("s_getpc_b64 s[42:43]")
M.label(".Lpc")
M("v_and_b32 v1, 63, v0\nv_lshlrev_b32 v2, 4, v1\nv_lshrrev_b32 v3, 6, v0")
M(f"v_readfirstlane_b32 s{sW}, v3")
if STAMP: M("v_mov_b32 v7, 0")
M("s_and_b32 s3, s2, 7\ns_lshr_b32 s4, s2, 3")
M(f"s_lshl_b32 s5, s4, 2\ns_add_u32 s5, s5, s{sW}\ns_min_u32 s5, s5, ((.Lkend-.Lkstart-128)>>10)-1\ns_lshl_b32 s5, s5, 10\nv_add_u32 v5, s5, v2")
M("s_mov_b32 s90, s5")
if opt("cp0", 0) == 0: M("global_load_dwordx4 v[200:203], v5, s[42:43]")
M(f"s_lshl_b32 s{sCPI}, s3, 5\ns_add_u32 s{sCPI}, s{sCPI}, s4")
M(f"s_lshl_b32 s5, s2, 13\ns_lshl_b32 s6, s{sW}, 11\ns_add_u32 s5, s5, s6\nv_add_u32 v62, s5, v2")
M(f"s_lshl_b32 s5, s{sCPI}, 9\nv_lshlrev_b32 v63, 1, v0\nv_add_u32 v63, s5, v63")
M(f"s_lshr_b32 s5, s2, 2\ns_lshl_b32 s5, s5, 15\ns_and_b32 s6, s2, 3\ns_lshl_b32 s6, s6, 8\ns_add_u32 s5, s5, s6\ns_lshl_b32 s6, s{sW}, 6\ns_add_u32 s5, s5, s6")
M("v_and_b32 v5, 7, v1\nv_lshlrev_b32 v64, 12, v5\nv_lshrrev_b32 v6, 3, v1\nv_lshl_add_u32 v64, v6, 3, v64\nv_add_u32 v64, s5, v64")
M("s_waitcnt lgkmcnt(0)")
stamp(M, "start")
n0 = lab("n0")
M(f"s_or_b32 s5, s4, s{sW}\ns_cmp_lg_u32 s5, 0\ns_cbranch_scc1 {n0}")
M("s_or_b32 s14, s14, 1\nv_mov_b32 v8, s14\nv_mov_b32 v9, 0\ns_mov_b64 exec, 1\nglobal_atomic_cmpswap v9, v[8:9], s[38:39] sc1 ;@!\ns_mov_b64 exec, -1")
M.label(n0)
if opt("cp0", 0) == 3:
    M(f"s_lshl_b32 s5, s4, 2\ns_add_u32 s5, s5, s{sW}\ns_mul_i32 s5, s5, 384\ns_min_u32 s5, s5, .Lkend-.Lkstart-512")
    M("s_add_u32 s6, s5, 128\ns_add_u32 s10, s5, 256\ns_load_dword s86, s[42:43], s5\ns_load_dword s87, s[42:43], s6\ns_load_dword s10, s[42:43], s10")
for i, dst in enumerate([216, 220, 218, 222]): M(f"global_load_dwordx2 {v(dst,2)}, v64, s[16:17] offset:{i*1024} ;@b1")
M("global_load_dwordx4 v[32:35], v62, s[16:17] ;@b1\nglobal_load_dwordx4 v[36:39], v62, s[16:17] offset:1024 ;@b1")
for i in range(4): M(f"global_load_ushort v{48+i}, v63, s[{18+2*i}:{19+2*i}] ;@par")
TB = opt("tb", 0)
IDX = 100
if TB:
    M("v_lshlrev_b32 v5, 4, v0\nv_add_u32 v5, idx_table-.Lpc, v5\nv_add_u32 v6, 4096, v5\nv_lshlrev_b32 v8, 2, v0\nv_add_u32 v8, idx_table-.Lpc+8192, v8")
    M("s_and_b32 s5, s4, 1\ns_lshl_b32 s5, s5, 11\ns_add_u32 s5, s5, dma_table-.Lpc\nv_add_u32 v9, s5, v2")
    M(f"global_load_dwordx4 {v(vDMA,4)}, v9, s[42:43] ;@tb\nglobal_load_dwordx3 {v(vDMA+4,3)}, v9, s[42:43] offset:1024 ;@tb")
    M(f"global_load_dwordx4 {v(IDX,4)}, v5, s[42:43] ;@tb\nglobal_load_dwordx4 {v(IDX+4,4)}, v6, s[42:43] ;@tb\nglobal_load_dword v{IDX+8}, v8, s[42:43] ;@tb")
M(f"s_and_b32 s{sCT}, s4, 15")
M(f"s_lshl_b32 s{sRT}, s3, 1\ns_lshr_b32 s5, s4, 4\ns_add_u32 s{sRT}, s{sRT}, s5")
M(f"s_lshl_b32 s{sLT}, s{sRT}, 1\ns_bfe_u32 s5, s4, 0x10003\ns_add_u32 s{sLT}, s{sLT}, s5\ns_and_b32 s{sDT}, s4, 7")
M(f"s_lshl_b32 s{sGC}, s{sRT}, 10\ns_add_u32 s{sGC}, s{sGC}, {GCNT}\ns_lshl_b32 s5, s{sW}, 8\ns_add_u32 s{sGS}, s{sGC}, s5")
M(f"s_mov_b32 s{sONE}, 0x3f803f80\ns_mov_b32 s{sMSK}, 0xffff0000\ns_mov_b32 s{sINV}, {f2u(1/512):#x}\ns_mov_b32 s{sINV+1}, {f2u(1/512):#x}")
M(f"s_mov_b32 s{sEPS}, {f2u(1e-5):#x}\ns_mov_b32 s{sNL2E}, {f2u(-LOG2E):#x}")
M(f"s_lshl_b32 s5, s{sW}, 1\ns_lshl_b32 s{sEXS}, 3, s5\ns_mov_b32 s{sEXS+1}, 0")
M(f"s_lshl_b32 s5, s{sW}, 2\ns_lshl_b32 s{sEXQ}, 0x000f000f, s5\ns_mov_b32 s{sEXQ+1}, s{sEXQ}")
M("v_and_b32 v5, 7, v1\nv_lshrrev_b32 v6, 3, v1")
M("v_lshlrev_b32 v65, 10, v6\nv_lshl_add_u32 v65, v5, 4, v65\nv_lshlrev_b32 v207, 9, v6\nv_lshl_add_u32 v207, v5, 4, v207")
M(f"s_lshl_b32 s94, s2, 2\ns_add_u32 s94, s94, s{sW}\ns_min_u32 s94, s94, 895")
M("s_mul_i32 s95, s94, 2341\ns_lshr_b32 s95, s95, 16\ns_mul_i32 s5, s95, 28\ns_sub_u32 s96, s94, s5")
M("s_and_b32 s5, s95, 3\ns_mul_i32 s5, s5, 448\ns_lshl_b32 s6, s96, 4\ns_add_u32 s5, s5, s6\ns_lshl_b32 s7, s5, 10\ns_lshr_b32 s5, s95, 2\ns_lshl_b32 s5, s5, 7\ns_add_u32 s7, s7, s5")
M(f"s_lshl_b32 s9, s{sW}, 12\ns_add_u32 s9, s9, {LPK}")
M(f"s_mov_b32 s{SWS+2}, {WS_BYTES:#x}\ns_mov_b32 s{SWS+3}, 0x20000")
M(f"s_mov_b32 s{SWS}, s40\ns_mov_b32 s{SWS+1}, s41")
n1 = lab("n1")
M(f"s_cmp_ge_u32 s2, 128\ns_cbranch_scc1 {n1}")
M(f"s_lshl_b32 s5, s2, 2\ns_add_u32 s5, s5, s{sW}\ns_lshl_b32 s6, s5, 9\ns_lshl_b32 s5, s5, 5\ns_add_u32 s5, s5, {ST2}")
M("v_mov_b32 v4, 0\nv_mov_b32 v5, 0\nv_lshlrev_b32 v6, 3, v1\nv_lshlrev_b32 v8, 2, v1")
M(f"buffer_store_dwordx2 v[4:5], v6, {WS}, s6 offen sc1 ;@!\ns_mov_b64 exec, 0xff\nbuffer_store_dword v5, v8, {WS}, s5 offen sc1 ;@!\ns_mov_b64 exec, -1")
M.label(n1)
for sd, sb, nb in [(SW1, 32, 512*1792*2), (SW2, 34, 512*1792*2), (SOUT, 36, 2048*512*2)]:
    M(f"s_mov_b32 s{sd}, s{sb}\ns_mov_b32 s{sd+1}, s{sb+1}\ns_mov_b32 s{sd+2}, {nb:#x}\ns_mov_b32 s{sd+3}, 0x20000")
M(f"s_mov_b32 m0, s9\ns_add_u32 s5, s7, 8192\nbuffer_load_dwordx4 v65, {srd(SW2)}, s7 offen lds ;@b2\ns_add_u32 m0, s9, 1024\ns_nop 0\nbuffer_load_dwordx4 v65, {srd(SW2)}, s5 offen lds ;@b2")
M(f"s_lshl_b32 s5, s{sCPI}, 2")
M("s_load_dword s12, s[26:27], s5\ns_load_dword s13, s[28:29], s5")
if opt("tlb", 0):
    M(f"v_lshlrev_b32 v5, 20, v1\ns_mov_b64 exec, 0x7ffffff\ns_mov_b32 s5, 0xc0000\nbuffer_load_dword v240, v5, {WS}, s5 offen sc1\ns_mov_b64 exec, 3")
    M(f"buffer_load_dword v243, v5, {srd(SOUT)}, 0 offen\ns_mov_b64 exec, -1")
M("v_and_b32 v60, 15, v1\nv_lshrrev_b32 v61, 4, v1")
sD0, sD1 = 88, 89
sRX, sRH = 16, 24
M(f"s_mul_i32 s{sD0}, s{sW}, {128*3584}\ns_mul_i32 s5, s{sCT}, 224\ns_add_u32 s{sD0}, s{sD0}, s5\ns_mul_i32 s{sD1}, s{sW}, 28672")
dma = [[f"    s_add_u32 m0, s{sD1}, {p*1024}", f"    s_add_u32 s{sB1}, s{sD0}, {(p//7)*32*3584}", f"    buffer_load_dwordx4 v{vDMA+p%7}, {srd(SW1)}, s{sB1} offen lds ;@w1"] for p in range(28)]
dma = dma[17:] + dma[:17]
def setup_dma(b):
    b(f"s_and_b32 s7, s{sCT}, 1\ns_lshl_b32 s8, s7, 5\ns_mul_i32 s7, s7, 192\ns_sub_u32 s7, 192, s7")
    b("v_and_b32 v64, 3, v1\nv_lshlrev_b32 v64, 4, v64\nv_add_u32 v65, s8, v64\nv_xor_b32 v66, 32, v64")
    b(f"v_add_u32 v66, s8, v66\nv_add_u32 v66, {3584-192}, v66")
    b("v_and_b32 v67, 16, v64\nv_add_u32 v67, s7, v67\nv_lshrrev_b32 v64, 5, v64\nv_mul_u32_u24 v64, 3584, v64")
    b(f"v_add_u32 v67, v67, v64\nv_subrev_u32 v67, {6*64}, v67\nv_lshrrev_b32 v64, 2, v1")
    for k in range(7):
        b(f"v_add_u32 v5, {16*k}, v64\nv_mul_u32_u24 v6, 9363, v5\nv_lshrrev_b32 v6, 16, v6\nv_mul_u32_u24 v62, 7, v6\nv_sub_u32 v5, v5, v62")
        b(f"@{{\nv_cmp_lt_u32 vcc, 2, v5\nv_mul_u32_u24 v6, 7168, v6\nv_lshl_add_u32 v6, v5, 6, v6\nv_cndmask_b32 v62, v65, v66, vcc\nv_cmp_eq_u32 vcc, 6, v5\ns_nop 1\nv_cndmask_b32 v62, v62, v67, vcc\n@}}")
        b(f"v_add_u32 v{vDMA+k}, v6, v62")
def setup(b):
    b(f"s_and_b32 s5, s{sW}, 1\ns_lshr_b32 s6, s{sW}, 1")
    b(f"v_bfe_u32 v{vCX}, v1, 2, 2\nv_lshlrev_b32 v{vCX}, 16, v{vCX}\nv_and_b32 v5, 3, v1\nv_lshl_add_u32 v{vCX}, v5, 6, v{vCX}\nv_lshl_add_u32 v{vCX}, v61, 4, v{vCX}")
    b(f"s_lshl_b32 s7, s{sW}, 18\ns_lshl_b32 s8, s{sCPI}, 8\ns_add_u32 s7, s7, s8\nv_add_u32 v{vCX}, s7, v{vCX}")
    b(f"v_lshlrev_b32 v{vCS}, 7, v60\nv_lshl_add_u32 v{vCS}, v61, 5, v{vCS}\ns_lshl_b32 s7, s{sW}, 11\nv_add_u32 v{vCS}, s7, v{vCS}")
    b(f"v_lshlrev_b32 v5, 5, v60\nv_lshl_add_u32 v{vUW}, v61, 3, v5\ns_lshl_b32 s7, s{sW}, 9\ns_add_u32 s7, s7, {LU+512}\nv_add_u32 v{vUW}, s7, v{vUW}")
    b(f"v_lshl_add_u32 v{vUR}, v61, 4, v5\ns_mul_i32 s7, s6, {US}\ns_lshl_b32 s8, s5, 8\ns_sub_u32 s7, s7, s8\ns_add_u32 s7, s7, {LU}\nv_add_u32 v{vUR}, s7, v{vUR}")
    b(f"v_lshlrev_b32 v5, 3, v61\nv_sub_u32 v5, v60, v5\nv_lshlrev_b32 v5, 2, v5\ns_mul_i32 s7, s6, {PKS}\ns_lshl_b32 s8, s5, 9\ns_add_u32 s7, s7, s8\ns_add_u32 s7, s7, {LPK+26*4}\nv_add_u32 v{vTB}, s7, v5")
    b(f"s_lshl_b32 s7, s{sW}, 10\ns_add_u32 s7, s7, {LEX}\nv_add_u32 v{vEW}, s7, v2\ns_lshl_b32 s7, s{sW}, 12\ns_add_u32 s7, s7, {LEX}\nv_add_u32 v{vER}, s7, v2")
    b(f"v_and_b32 v204, {NSH-1}, v1\nv_lshlrev_b32 v204, 8, v204\ns_lshl_b32 s7, s3, 12\nv_add_u32 v204, s7, v204")
    b(f"v_lshlrev_b32 v205, 12, v1\ns_and_b32 s7, s{sCT}, {NSH-1}\ns_lshl_b32 s7, s7, 8\nv_add_u32 v205, s7, v205\nv_mov_b32 v{vONE}, 1")
    for k in range(0 if TB else 9):
        b(f"v_lshlrev_b32 v5, 3, v0\nv_add_u32 v5, {k-1}, v5")
        if k == 0: b("v_max_i32 v5, 0, v5")
        b("v_cvt_f32_u32 v5, v5\nv_cvt_pk_bf16_f32 v5, 0, v5\nv_cvt_u32_f32 v6, v5")
        b("v_lshrrev_b32 v5, 23, v5\nv_subrev_u32 v5, 134, v5\nv_med3_i32 v5, v5, 0, 3")
        b("v_lshrrev_b32 v62, 7, v6\nv_and_b32 v63, 7, v6\nv_lshl_or_b32 v62, v62, 3, v63\nv_lshrrev_b32 v62, v5, v62\nv_lshl_add_u32 v62, v5, 3, v62")
        b(f"v_bfe_u32 v6, v6, 3, 4\nv_lshlrev_b32 v6, 2, v6\nv_lshl_add_u32 v6, v62, 6, v6\nv_add_u32 v{IDX+k}, {LGT}, v6")
def setup_g1(b):
    b("v_mbcnt_lo_u32_b32 v246, -1, 0\nv_mbcnt_hi_u32_b32 v246, -1, v246\nv_and_b32 v244, 15, v246\nv_lshrrev_b32 v245, 4, v246\nv_lshlrev_b32 v247, 4, v246")
    b(f"s_and_b32 s5, s{sW}, 1\ns_lshr_b32 s6, s{sW}, 1")
    b(f"v_lshlrev_b32 v{vGX}, 9, v245\nv_lshl_add_u32 v{vGX}, v244, 3, v{vGX}\ns_lshl_b32 s7, s{sRT}, 16\ns_lshl_b32 s8, s5, 7\ns_add_u32 s7, s7, s8\ns_lshl_b32 s8, s6, 15\ns_add_u32 s7, s7, s8\nv_add_u32 v{vGX}, s7, v{vGX}")
    b(f"v_lshlrev_b32 v5, 2, v245\nv_bfe_u32 v6, v246, 2, 2\nv_add_u32 v5, v5, v6\nv_mul_u32_u24 v5, 224, v5\nv_and_b32 v6, 3, v246\nv_lshl_add_u32 v5, v6, 3, v5\ns_mul_i32 s7, s6, {256*224}\nv_add_u32 v{vWA}, s7, v5")
    b(f"s_mul_i32 s7, s{sW}, 7680\ns_add_u32 s7, s7, {LSCR}\nv_add_u32 v{vXW}, s7, v247")
    b(f"v_lshrrev_b32 v5, 5, v246\nv_xor_b32 v5, s6, v5\nv_lshlrev_b32 v5, 8, v5\nv_lshl_add_u32 v5, v246, 2, v5\ns_lshl_b32 s7, s5, 9\ns_add_u32 s7, s7, {LSCR+30720}\nv_add_u32 v{vSW}, s7, v5")
    b(f"s_lshl_b32 s8, s6, 8\ns_add_u32 s7, s7, s8\nv_lshlrev_b32 v5, 2, v244\nv_add_u32 v{vSR}, s7, v5")
    b(f"s_xor_b32 s7, s{sW}, 2\ns_mul_i32 s7, s7, 7680\ns_add_u32 s7, s7, {LSCR}\nv_add_u32 v{vXR}, s7, v247")
    b(f"v_lshlrev_b32 v{vCSA}, 4, v245\nv_add_u32 v{vCSA}, {LCS}, v{vCSA}")
    b(f"s_lshl_b32 s7, s{sRT}, 1\ns_add_u32 s7, s7, s5\ns_mul_i32 s7, s7, {HT}\ns_mul_i32 s8, s{sCT}, 7168\ns_add_u32 s7, s7, s8\ns_lshl_b32 s8, s6, 8\ns_add_u32 s7, s7, s8")
    b(f"v_and_b32 v5, 1, v245\nv_lshrrev_b32 v6, 1, v245\nv_lshlrev_b32 v{vH2}, 9, v6\nv_lshl_add_u32 v{vH2}, v244, 4, v{vH2}\nv_add_u32 v{vH2}, s7, v{vH2}\nv_lshl_add_u32 v{vH4}, v5, 10, v{vH2}\nv_lshl_add_u32 v{vH2}, v5, 3, v{vH2}")
    b(f"s_and_b32 s7, s{sCT}, 1\ns_lshl_b32 s8, s7, 10\nv_add_u32 v{vH4}, s8, v{vH4}\ns_mul_i32 s8, s7, 6144\nv_subrev_u32 v{vH2}, s8, v{vH2}")
def setup_g2(b):
    b("v_mbcnt_lo_u32_b32 v248, -1, 0\nv_mbcnt_hi_u32_b32 v248, -1, v248\nv_lshlrev_b32 v6, 4, v248")
    b(f"s_mul_i32 s7, s{sLT}, {HT}\ns_mul_i32 s8, s{sW}, 28672\ns_add_u32 s7, s7, s8\nv_add_u32 v{vHL}, s7, v6")
    b("v_and_b32 v249, 15, v248\nv_lshlrev_b32 v249, 1, v249\nv_bfe_u32 v5, v248, 4, 1\nv_add_u32 v249, v249, v5\nv_lshrrev_b32 v250, 5, v248")
    b(f"s_lshr_b32 s7, s{sLT}, 1\ns_lshl_b32 s7, s7, 16\ns_and_b32 s8, s{sLT}, 1\ns_lshl_b32 s8, s8, 7\ns_add_u32 s7, s7, s8\ns_lshl_b32 s8, s{sDT}, 13\ns_add_u32 s7, s7, s8\ns_lshl_b32 s8, s{sW}, 11\ns_add_u32 s7, s7, s8")
    b(f"v_lshlrev_b32 v{vX2}, 9, v250\nv_lshl_add_u32 v{vX2}, v249, 2, v{vX2}\nv_add_u32 v{vX2}, s7, v{vX2}\ns_and_b32 s8, s{sDT}, 4\nv_xor_b32 v{vRX}, s8, v{vX2}")
    for sg in range(1, 4):
        b(f"s_xor_b32 s7, s{sW}, {sg}\ns_mul_i32 s7, s7, 6144\ns_add_u32 s7, s7, {LSCR+(sg-1)*2048}\nv_add_u32 v{vE1+sg-1}, s7, v6")
    b(f"s_mul_i32 s7, s{sW}, 6144\ns_add_u32 s7, s7, {LSCR}\nv_add_u32 v{vE0}, s7, v6")
    b(f"v_lshlrev_b32 v{vSA}, 3, v249\nv_lshl_add_u32 v{vSA}, v250, 2, v{vSA}\ns_lshl_b32 s7, s{sLT}, 8\nv_add_u32 v{vSA}, s7, v{vSA}")
    b(f"v_lshlrev_b32 v{vOUT}, 10, v249\nv_lshl_add_u32 v{vOUT}, v250, 4, v{vOUT}\ns_lshl_b32 s7, s{sLT}, 15\ns_lshl_b32 s8, s{sDT}, 7\ns_add_u32 s7, s7, s8\ns_lshl_b32 s8, s{sW}, 5\ns_add_u32 s7, s7, s8\nv_add_u32 v{vOUT}, s7, v{vOUT}")
    b(f"s_lshl_b32 s5, s{sDT}, 2\ns_add_u32 s5, s5, s{sW}\ns_mul_i32 s5, s5, 57344\ns_add_u32 s{sW2B}, s5, {W2F}")
def setup_p0(b):
    if FG:
        b(f"s_lshr_b32 s5, s{sCT}, 2\ns_lshl_b32 s5, s5, 1\ns_and_b32 s6, s{sW}, 1\ns_add_u32 s5, s5, s6\ns_lshl_b32 s5, s5, 7\ns_add_u32 s{sGS}, s{sGC}, s5")
        b(f"s_lshl_b32 s5, s{sW}, 1\ns_and_b32 s6, s{sLT}, 1\ns_add_u32 s5, s5, s6\ns_lshl_b32 s5, s5, 7\ns_add_u32 s{sGP}, s{sGC}, s5")
    else: b(f"s_mov_b32 s{sGP}, s{sGC}")
    b(f"@{{\ns_cmp_ge_u32 s{sCPI}, 128\ns_cselect_b64 s[{sEXW}:{sEXW+1}], -1, 0\n@}}")
    b("v_lshrrev_b32 v254, 5, v1")
    b("s_and_b32 s5, s95, 3\nv_and_b32 v5, 1, v61\nv_xor_b32 v209, s5, v5\nv_xor_b32 v210, 2, v209")
    b("v_lshlrev_b32 v5, 3, v254\nv_bfe_u32 v6, v1, 2, 2\nv_add_u32 v5, v5, v6\nv_lshlrev_b32 v5, 7, v5\nv_and_b32 v62, 3, v1\nv_lshl_add_u32 v5, v62, 3, v5\nv_add_u32 v5, s9, v5")
    b("v_lshl_add_u32 v209, v209, 5, v5\nv_lshl_add_u32 v210, v210, 5, v5")
    b(f"s_lshl_b32 s99, s94, 11\ns_add_u32 s99, s99, {W2F}")
    b(f"s_lshl_b32 s11, s4, 16\ns_bfe_u32 s6, s2, 0x10002\ns_lshl_b32 s6, s6, 7\ns_add_u32 s11, s11, s6\ns_and_b32 s6, s2, 3\ns_lshl_b32 s6, s6, 14\ns_add_u32 s11, s11, s6\ns_lshl_b32 s6, s{sW}, 12\ns_add_u32 s11, s11, s6\ns_add_u32 s11, s11, {XP[0]}")
wq = list(dma)
def take(n):
    r = wq[:n]; del wq[:n]; return r
setup_p0(M)
if not TB: setup_dma(M)
M.add(interleave(gen(setup), take(opt("e0", 0)), start=20))
stamp(M, "p0 setup")
M("@vm b1")
stamp(M, "p0 rows")
M("v_swap_b32 v217, v220\nv_swap_b32 v219, v222")
M(f"buffer_store_dwordx4 v[216:219], v207, {WS}, s11 offen sc1 ;@p0s\nbuffer_store_dwordx4 v[220:223], v207, {WS}, s11 offen offset:256 sc1 ;@p0s")
for i in range(4): M(f"v_mov_b32 v{52+i}, 0")
for q in range(4):
    M(f"v_dot2c_f32_bf16 v52, s{sONE}, v{32+q}\nv_dot2c_f32_bf16 v53, v{32+q}, v{32+q}")
    M(f"v_dot2c_f32_bf16 v54, s{sONE}, v{36+q}\nv_dot2c_f32_bf16 v55, v{36+q}, v{36+q}")
for m_ in ["quad_perm:[1,0,3,2]", "quad_perm:[2,3,0,1]", "row_half_mirror", "row_mirror"]:
    for i in range(4): M(f"v_add_f32_dpp v{52+i}, v{52+i}, v{52+i} {m_} row_mask:0xf bank_mask:0xf")
xsum(M, [52, 53, 54, 55], 56, [16, 32])
for r in (52, 54): M(f"v_pk_mul_f32 {v(r,2)}, {v(r,2)}, s[{sINV}:{sINV+1}]")
for r in (52, 54): M(f"v_fma_f32 v{r+1}, -v{r}, v{r}, v{r+1}")
for r in (52, 54): rnd(M, r+1, r+1)
for r in (52, 54): M(f"v_add_f32 v{r+1}, s{sEPS}, v{r+1}")
for r in (52, 54): rnd(M, r+1, r+1)
for r in (52, 54): M(f"v_sqrt_f32 v{r+1}, abs(v{r+1})")
for r in (52, 54): M(f"v_cvt_pk_bf16_f32 v{r}, v{r}, v{r+1}")
M(f"s_lshl_b32 s5, s2, 6\ns_lshl_b32 s6, s{sW}, 4\ns_add_u32 s5, s5, s6\ns_add_u32 s15, s5, {ST0}")
stamp(M, "p0 stats")
nn = lab("nn"); nl = lab("nl"); nb = lab("nb")
M(f"s_waitcnt lgkmcnt(0)\ns_load_dword s{sNON}, s[38:39], 0\nv_mov_b32 v212, v52\nv_mov_b32 v214, v54")
tail.label(nn)
tail(f"s_mov_b32 s10, {SPIN}\nv_mov_b32 v213, 0")
tail.label(nl)
tail("global_load_dword v215, v213, s[38:39] sc1\ns_waitcnt vmcnt(0)")
tail(f"v_readfirstlane_b32 s{sNON}, v215\ns_cmp_lg_u32 s{sNON}, 0\ns_cbranch_scc1 {nb}")
tail(f"s_sleep 2\ns_sub_u32 s10, s10, 1\ns_cmp_lg_u32 s10, 0\ns_cbranch_scc1 {nl}\ns_branch {nb}")
publish = gen(lambda b: (b(f"@{{\ns_waitcnt lgkmcnt(0)\ns_cmp_eq_u32 s{sNON}, 0\ns_cbranch_scc1 {nn}"), b.label(nb), b(f"v_mov_b32 v213, s{sNON}\nv_mov_b32 v215, s{sNON}\n@}}"), b(f"@vm p0s\n@{{\ns_barrier\ns_mov_b64 exec, 1\nbuffer_store_dwordx4 v[212:215], off, {WS}, s15 sc1\ns_mov_b64 exec, -1\n@}}"), stamp(b, "p0 published")))
def w2_relay(b):
    n3 = lab("n3")
    b("@vm b2")
    for mt in range(2):
        for hf in range(2): b(f"ds_read_b64_tr_b16 {v(224+4*mt+2*hf,2)}, v{209+mt} offset:{hf*512} ;@w2r")
    b(f"@lg w2r\n@{{\ns_cmp_ge_u32 s2, 224\ns_cbranch_scc1 {n3}")
    b(f"buffer_store_dwordx4 v[224:227], v2, {WS}, s99 offen sc1 ;@!\nbuffer_store_dwordx4 v[228:231], v2, {WS}, s99 offen offset:1024 sc1 ;@!")
    b.label(n3); b("@}")
def kgen(Kg):
    Kg(f"s_lshl_b32 s{sDK}, s13, 16\ns_and_b32 s{sDK+1}, s13, s{sMSK}")
    Kg(f"@{{\ns_lshl_b32 s5, s12, 16\ns_and_b32 s6, s12, s{sMSK}\ns_cmp_ge_u32 s{sW}, 2\ns_cselect_b32 s5, s6, s5\n@}}")
    L2E = f"{f2u(LOG2E):#x}"
    VAL = lambda row: 110 + 2*row if row < 45 else 62 + 2*(row - 45)
    Kg(f"v_mov_b32 v5, s5\nv_mul_f32 v5, {L2E}, v5\nv_exp_f32 v5, v5")
    for i in range(4): Kg(f"v_lshlrev_b32 v{48+i}, 16, v{48+i}")
    Kg(f"v_mul_f32 v48, {L2E}, v48\nv_exp_f32 v48, v48")
    Kg(f"s_mul_i32 s5, s{sW}, {ES}")
    Kg("v_lshlrev_b32 v98, 2, v1\nv_add_u32 v98, s5, v98")
    rnd(Kg, 5, 5); rnd(Kg, 48, 48)
    Kg(f"v_mul_f32 v49, v49, v5\nv_mul_f32 v48, v48, v5\nv_mul_f32 v49, 0.15915494, v49\nv_mul_f32 v48, s{sNL2E}, v48")
    Kg(f"v_add_f32 v5, v5, v5\nv_mul_f32 v{VAL(0)}, v50, v5\nv_mul_f32 v{VAL(0)+1}, v51, v5")
    E1, E8, E128, E1K = VAL(17), 34, VAL(24), VAL(48)
    PS = [(E1, 1.0), (E8, 8.0), (E128, 128.0), (E1K, 1024.0)]
    for k, (dst, p) in enumerate(PS): Kg(f"v_mul_f32 v{52+k}, {f2u(p):#x}, v48\nv_mul_f32 v{56+k}, {f2u(p):#x}, v49")
    for k, (dst, p) in enumerate(PS): Kg(f"v_exp_f32 v{52+k}, v{52+k}\nv_fract_f32 v{56+k}, v{56+k}")
    for k, (dst, p) in enumerate(PS): Kg(f"v_cos_f32 v{dst}, v{56+k}\nv_sin_f32 v{dst+1}, v{56+k}")
    Kg("v_mul_u32_u24 v99, 272, v60\nv_lshl_add_u32 v99, v61, 4, v99\nv_add_u32 v99, s5, v99")
    Kg(f"v_mov_b32 v{VAL(16)}, 1.0\nv_mov_b32 v{VAL(16)+1}, 0")
    for k, (dst, p) in enumerate(PS): Kg(f"v_mul_f32 v{dst}, v{dst}, v{52+k}\nv_mul_f32 v{dst+1}, v{dst+1}, v{52+k}")
    e16, e32, e64 = 36, 38, 32
    V = VAL
    levels = [
        [(V(1), V(0), E8), (V(18), E1, E1), (V(32), E128, E128), (e16, E8, E8), (V(56), E1K, E1K), (V(25), E1, E128), (V(49), E1K, E128)],
        [(e32, e16, e16), (V(20), V(18), V(18)), (V(40), V(32), V(32)), (V(2), V(0), e16), (V(3), V(1), e16), (V(19), V(18), E1), (V(36), V(32), E128),
         (V(26), V(18), E128), (V(50), E1K, V(32)), (V(33), V(32), V(18))],
        [(e64, e32, e32), (V(4), V(0), e32), (V(5), V(1), e32), (V(6), V(2), e32), (V(7), V(3), e32), (V(21), V(20), E1), (V(22), V(20), V(18)), (V(23), V(20), V(19)),
         (V(42), V(40), E128), (V(44), V(40), V(32)), (V(46), V(40), V(36)), (V(27), V(19), E128), (V(28), V(20), E128), (V(51), E1K, V(36)), (V(52), E1K, V(40)),
         (V(34), V(32), V(20)), (V(37), V(36), V(18)), (V(38), V(36), V(20)), (V(41), V(40), V(20))],
        [(V(8 + i), V(i), e64) for i in range(8)] +
        [(V(29), V(21), E128), (V(30), V(22), E128), (V(31), V(23), E128), (V(35), V(32), V(22)), (V(39), V(36), V(22)),
         (V(43), V(42), V(20)), (V(45), V(44), V(20)), (V(47), V(46), V(20)), (V(53), E1K, V(42)), (V(54), E1K, V(44)), (V(55), E1K, V(46))],
    ]
    row_of = {VAL(r): r for r in range(57)}
    pend = [0, 16, 17, 24, 48]; written = []
    rot = [0]
    def puts(rows):
        g = []
        for r in rows:
            t = 86 + rot[0] % 12; rot[0] += 1
            g.append((f"    v_cvt_pk_bf16_f32 v{t}, v{VAL(r)}, {'-' if r < 16 else ''}v{VAL(r)+1}", f"    ds_write_b32 v98, v{t} offset:{r*272}"))
            written.append(r)
        out = []
        for k in range(len(g) + 1):
            out.append(([g[k][0]] if k < len(g) else []) + ([g[k-1][1]] if k > 0 else []))
        return out
    for lv in levels:
        t = Buf()
        for d_, x_, y_ in lv: t(f"v_pk_mul_f32 {v(d_,2)}, {v(x_,2)}, {v(y_,2)} op_sel_hi:[1,0]")
        for d_, x_, y_ in lv: t(f"v_pk_fma_f32 {v(d_,2)}, {v(x_,2)}, {v(y_,2)}, {v(d_,2)} op_sel:[1,1,0] op_sel_hi:[0,1,1] neg_lo:[1,0,0]")
        Kg.add(interleave(t.l, puts(pend)))
        pend = [row_of[d_] for d_, _, _ in lv if d_ in row_of]
    Kg.add(flat(puts(pend)))
    assert sorted(written) == list(range(57))
    LOF, HF, GD = 110, 126, 62
    Kg("s_waitcnt lgkmcnt(0)")
    for s_ in range(4):
        Kg(f"ds_read_b128 {v(LOF+4*s_,4)}, v99 offset:{s_*64} ;@kf{s_}")
        for T in range(3): Kg(f"ds_read_b128 {v(HF+16*T+4*s_,4)}, v99 offset:{(16+16*T)*272+s_*64} ;@kf{s_}")
    Kg(f"s_mul_i32 s5, s{sW}, 3072\ns_add_u32 s5, s5, {LGT}")
    Kg("v_lshlrev_b32 v5, 2, v60\nv_lshl_add_u32 v5, v61, 8, v5\nv_add_u32 v5, s5, v5")
    for s_ in range(4):
        Kg(f"@lg kf{s_}")
        for T in range(3): Kg(f"v_mfma_f32_16x16x32_bf16 {v(GD+4*T,4)}, {v(HF+16*T+4*s_,4)}, {v(LOF+4*s_,4)}, {'0' if s_ == 0 else v(GD+4*T,4)}")
    for T in range(3):
        for r in range(0, 4, 2): Kg(f"ds_write2_b32 v5, v{GD+4*T+r}, v{GD+4*T+r+1} offset0:{r*16} offset1:{r*16+16}") if T == 0 else None
        if T:
            for r in range(4): Kg(f"ds_write_b32 v5, v{GD+4*T+r} offset:{(T*16+r)*64}")
M("@vm par,tb")
kl = gen(kgen)
PUB = opt("pub", 110)
cpl = ["    v_add_u32 v200, s90, v2", "    global_load_dwordx4 v[200:203], v200, s[42:43]"] if opt("cp0", 0) == 1 else []
W2E = opt("w2e", 0)
if W2E:
    publish = [l.replace("@vm p0s", "s_waitcnt vmcnt(0)") for l in publish]
    kl = interleave(kl, [publish + cpl], start=PUB, every=1)
    kl = gen(w2_relay) + kl
else: kl = interleave(kl, [publish + cpl + gen(w2_relay)], start=PUB, every=1)
M.add(interleave(kl, take(11 - opt("e0", 0)), start=opt("e1", 4)))
stamp(M, "kgen core")
M(f"s_mov_b32 s{sO}, {ST0}\nbuffer_load_dwordx4 v[232:235], v{vCS}, {WS}, s{sO} offen sc1 ;@cin\nbuffer_load_dwordx4 v[236:239], v{vCS}, {WS}, s{sO} offen offset:16 sc1 ;@cin")
M(f"s_mov_b32 s{sO}, {ST0+8192}\nbuffer_load_dwordx4 v[240:243], v{vCS}, {WS}, s{sO} offen sc1 ;@cin\nbuffer_load_dwordx4 v[244:247], v{vCS}, {WS}, s{sO} offen offset:16 sc1 ;@cin")
M("s_waitcnt lgkmcnt(0)\ns_barrier")
for c in range(2):
    for k in range(9): M(f"ds_read2st64_b32 {v(110+c*18+2*k,2)}, v{IDX+k} offset0:{24*c} offset1:{24*c+12} ;@g{c}")
M(f"v_bfe_u32 v5, v0, 4, 1\nv_mul_u32_u24 v5, {PKS}, v5\nv_lshl_add_u32 v5, v60, 2, v5\nv_add_u32 v5, {LPK}, v5\nv_mov_b32 v6, 0")
M("ds_write_b32 v5, v6")
M(f"v_lshlrev_b32 v5, 5, v0\nv_add_u32 v5, {LPK+64}, v5")
M("v_cmp_eq_u32 vcc, 0, v0")
for c in range(2):
    M(f"@lg g{c}")
    for k in range(9):
        r = 110 + c*18 + 2*k
        M(f"v_add_f32 v{r}, v{r}, v{r+1}")
    M(f"v_cndmask_b32 v{110+c*18}, v{110+c*18}, v6, vcc")
    for k in range(8): M(f"v_cvt_pk_bf16_f32 v{72+c*8+k}, v{110+c*18+2*(k+1)}, v{110+c*18+2*k}")
    M(f"ds_write_b128 v5, {v(72+c*8,4)} offset:{c*PKS}\nds_write_b128 v5, {v(76+c*8,4)} offset:{c*PKS+16}")
T0, U0, ACC = 32, 160, 224
BASE, RV, CST, UPK = 224, 232, 232, 240
def conv_stats(b, layer, half):
    b(f"s_mov_b32 s{sO}, {(ST2 if layer else ST0) + half*8192}")
    b(f"buffer_load_dwordx4 {v(CST,4)}, v{vCS}, {WS}, s{sO} offen sc1 ;@cin\nbuffer_load_dwordx4 {v(CST+4,4)}, v{vCS}, {WS}, s{sO} offen offset:16 sc1 ;@cin")
def conv_x(b, layer, half):
    b(f"s_mov_b32 s{sO}, {XP[2*layer] + half*0x100000}\nbuffer_load_dwordx4 v[248:251], v{vCX}, {WS}, s{sO} offen sc1 ;@cin")
def conv_inputs(b, layer, half):
    conv_x(b, layer, half); conv_stats(b, layer, half)
def gcheck(b):
    slow = lab("gs"); back = lab("gb"); lp = lab("gl")
    def chk(o):
        for k in range(8): o(f"v_xor_b32 v{160+k}, s{sNON}, v{CST+2*k+1}")
        o("v_or3_b32 v160, v160, v161, v162\nv_or3_b32 v163, v163, v164, v165\nv_or3_b32 v160, v160, v166, v167\nv_or_b32 v160, v160, v163\nv_cmp_ne_u32 vcc, 0, v160")
    b("@vm cin\n@{")
    chk(b); b(f"s_cbranch_vccnz {slow}"); b.label(back); b("@}")
    for k in range(4): b(f"v_mov_b32 v{252+k}, v{CST+8+2*k}")
    tail.label(slow); tail(f"s_mov_b32 s10, {SPIN}\ns_mov_b32 s11, {ST0}\ns_mov_b32 s5, {ST0+8192}")
    tail.label(lp)
    for k in range(4): tail(f"buffer_load_dwordx4 {v(CST+4*k,4)}, v{vCS}, {WS}, s{5 if k >= 2 else 11} offen offset:{16*(k&1)} sc1")
    tail("s_waitcnt vmcnt(0)")
    chk(tail); tail(f"s_cbranch_vccz {back}")
    tail(f"s_sub_u32 s10, s10, 1\ns_cmp_lg_u32 s10, 0\ns_cbranch_scc1 {lp}\ns_branch {back}")
def t_loads(b, js):
    for j in js:
        if j: b(f"v_add_u32 v5, {1024*j}, v{vTB}")
        ad = 5 if j else vTB
        for t in range(4):
            r = T0 + (j*4 + t)*4
            b(f"ds_read2_b32 {v(r,2)}, v{ad} offset0:{32*t+6} offset1:{32*t+4} ;@T\nds_read2_b32 {v(r+2,2)}, v{ad} offset0:{32*t+2} offset1:{32*t} ;@T")
def t_groups(ta=188):
    g = []
    for k in range(32):
        j, t = k >> 2, k & 3
        r = T0 + 4*k
        grp = [f"    v_add_u32 v{ta}, {1024*j}, v{vTB}"] if t == 0 else []
        grp += [f"    ds_read2_b32 {v(r,2)}, v{ta} offset0:{32*t+6} offset1:{32*t+4} ;@T", f"    ds_read2_b32 {v(r+2,2)}, v{ta} offset0:{32*t+2} offset1:{32*t} ;@T"]
        g.append(grp)
    return g
def u_pad(b):
    b(f"v_subrev_u32 v5, {LEX}, v{vEW}\nv_and_b32 v5, 0x3f0, v5\nv_lshrrev_b32 v5, 1, v5\nv_add_u32 v5, {LU}, v5\nv_mov_b32 v{UPK}, 0\nv_mov_b32 v{UPK+1}, 0")
    b(f"ds_write_b64 v5, {v(UPK,2)}\nds_write_b64 v5, {v(UPK,2)} offset:{US}")
def conv_half(b, layer, half, bg=[], pre_barrier=None, after_ln=None, after_mfma=None, tailbg=[], pre_barrier2=None):
    X = 248
    MN, RI, DD = 192, 196, 176
    b("@vm cin")
    stamp(b, f"L{layer} conv{half} loaded")
    if layer == 0:
        G = (lambda i: 252 + i) if half else (lambda i: CST + 2*i)
        for i in range(4): b(f"v_and_b32 v{RI+i}, s{sMSK}, v{G(i)}")
        for i in range(4): b(f"v_rcp_f32 v{RI+i}, v{RI+i}")
        for i in range(4): b(f"v_lshlrev_b32 v{MN+i}, 16, v{G(i)}")
    else:
        for i in range(4): b(f"v_pk_mul_f32 {v(CST+2*i,2)}, {v(CST+2*i,2)}, s[{sINV}:{sINV+1}]")
        for i in range(4): b(f"v_fma_f32 v{RI+i}, -v{CST+2*i}, v{CST+2*i}, v{CST+2*i+1}")
        for i in range(4): rnd(b, RI+i, RI+i)
        for i in range(4): b(f"v_add_f32 v{RI+i}, s{sEPS}, v{RI+i}")
        for i in range(4): rnd(b, RI+i, RI+i)
        for i in range(4): b(f"v_sqrt_f32 v{RI+i}, abs(v{RI+i})")
        for i in range(4): rnd(b, MN+i, CST+2*i)
        for i in range(4): rnd(b, RI+i, RI+i)
        for i in range(4): b(f"v_rcp_f32 v{RI+i}, v{RI+i}")
    for i in range(4): b(f"v_lshlrev_b32 v{BASE+i}, 16, v{X+i}\nv_and_b32 v{BASE+4+i}, s{sMSK}, v{X+i}")
    for k in range(4): b(f"v_pk_add_f32 {v(DD+2*k,2)}, {v(BASE+2*k,2)}, {v(MN+2*(k&1),2)} neg_lo:[0,1] neg_hi:[0,1]")
    if opt("rd", 1):
        for k in range(8): rnd(b, DD+k, DD+k)
    for k in range(4): b(f"v_pk_mul_f32 {v(DD+2*k,2)}, {v(DD+2*k,2)}, {v(RI+2*(k&1),2)}")
    for k in range(4): b(f"v_cvt_pk_bf16_f32 v{UPK+k}, v{DD+2*k}, v{DD+2*k+1}")
    b(f"ds_write_b64 v{vUW}, {v(UPK,2)} offset:{half*2048}\nds_write_b64 v{vUW}, {v(UPK+2,2)} offset:{US+half*2048}")
    F2 = opt("fine", 0) == 2 and layer == 1
    if F2: stamp(b, f"c{half} ln")
    if pre_barrier: b(pre_barrier)
    b("s_waitcnt lgkmcnt(0)\ns_barrier")
    if F2: stamp(b, f"c{half} bar1")
    if after_ln: after_ln(b)
    def urd(tp, t): return f"    ds_read_b128 {v(U0+(tp*4+t)*4,4)}, v{vUR} offset:{512 + 512*(tp+4*half) - 64*t - 32} ;@U{tp}_{t}"
    b.add([urd(0, t) for t in range(4)] + [urd(1, 0), urd(1, 1)])
    later = [urd(tp, t) for tp in range(1, 4) for t in range(4)][2:]
    fill = []
    for k in range(4):
        c = k >> 1
        fill += [f"    v_lshlrev_b32 v{RV+2*k}, 16, v{UPK+k}", f"    v_and_b32 v{RV+2*k+1}, s{sMSK}, v{UPK+k}"]
    for k in range(8): fill.append(f"    v_fmac_f32 v{BASE+k}, s{sDK + (k >> 2)}, v{RV+k}")
    ml = []; cnt = 0
    lastidx = {0: 12, 1: 25, 2: 34}
    for tp in range(4):
        for t in range(4):
            ml.append(f"    @lg U{tp}_{t}")
            for r in range(tp, 4):
                acc = ACC + (4*half + r)*4
                cin = "0" if (half == 0 and t == 0 and tp == 0) else ac(acc, 4)
                ml.append(f"    v_mfma_f32_16x16x32_bf16 {ac(acc,4)}, {v(T0+((r-tp)*4+t)*4,4)}, {v(U0+(tp*4+t)*4,4)}, {cin}")
                if later: ml.append(later.pop(0))
                elif fill: ml.append(fill.pop(0))
                for r_ in range(3):
                    if cnt == lastidx[r_] + (5 if r_ < 2 else 5): ml.append(f"    ds_write_b128 v{vEW}, {ac(ACC+(4*half+r_)*4,4)} offset:{r_*4096}")
                cnt += 1
    assert not later and not fill
    ml = interleave(ml, bg, start=2)
    b.add(ml)
    tailbg = list(tailbg)
    if F2: stamp(b, f"c{half} mfma")
    if after_mfma: after_mfma(b)
    if F2: stamp(b, f"c{half} chk")
    b(f"ds_write_b128 v{vEW}, {ac(ACC+(4*half+3)*4,4)} offset:{3*4096}")
    b.add(flat(tailbg[:2]))
    if half == 0: b.add(ab_list()[:GF1])
    if pre_barrier2: b(pre_barrier2)
    b("s_waitcnt lgkmcnt(0)\ns_barrier")
    if F2: stamp(b, f"c{half} bar2")
    for src in range(4): b(f"ds_read_b128 {v(RV+4*src,4)}, v{vER} offset:{src*1024} ;@E{src>>1}")
    b.add(flat(tailbg[2:]))
    if half == 0: b.add(ab_list()[GF1:GF1+GF2])
    b(f"s_mov_b32 s{sO}, {XP[1+2*layer] + half*0x100000}")
    for c in range(2):
        b(f"@lg E{c}")
        for k in range(2): b(f"v_pk_add_f32 {v(RV+8*c+2*k,2)}, {v(RV+8*c+2*k,2)}, {v(RV+8*c+4+2*k,2)}")
        for k in range(2): b(f"v_pk_add_f32 {v(BASE+4*c+2*k,2)}, {v(BASE+4*c+2*k,2)}, {v(RV+8*c+2*k,2)}")
    for i in range(4): b(f"v_cvt_pk_bf16_f32 v{244+i}, v{BASE+i}, v{BASE+4+i}")
    b(f"s_mov_b64 exec, s[{sEXW}:{sEXW+1}]\nv_swap_b32 v244, v245\nv_swap_b32 v246, v247\ns_mov_b64 exec, -1")
    b(f"buffer_store_dwordx4 v[244:247], v{vCX}, {WS}, s{sO} offen sc1 ;@cst")
    stamp(b, f"L{layer} conv{half} stored")
GF1, GF2 = opt("gf1", 5), opt("gf2", 7)
def ab_list():
    prs = sorted([(r, tp) for r in range(4, 8) for tp in range(4)], key=lambda p: (p[0] - p[1] > 3, p))
    out = []; seen = set()
    for grp in (prs[:6], prs[6:]):
        for t in range(4):
            for r, tp in grp:
                acc = ACC + r*4
                cin = ac(acc, 4) if r in seen else "0"
                seen.add(r)
                out.append(f"    v_mfma_f32_16x16x32_bf16 {ac(acc,4)}, {v(T0+((r-tp)*4+t)*4,4)}, {v(U0+(tp*4+t)*4,4)}, {cin}")
    return out
def conv_ab(b):
    b("@lg T")
    b.add(ab_list()[GF1+GF2:])
def colsum(b):
    wa_regs(b)
    b(f"@{{\ns_lshr_b32 s6, s{sW}, 1\ns_mul_i32 s6, s6, {256*224}\ns_lshl_b32 s5, s{sW}, 6\ns_cmp_eq_u32 s{sW}, 3\ns_cselect_b32 s5, 0, s5\ns_cselect_b64 vcc, -1, 0\ns_sub_u32 s5, s5, s6\n@}}")
    b(f"v_cndmask_b32 v248, v{vWA}, v253, vcc\nv_cndmask_b32 v249, v252, v253, vcc\nv_add_u32 v248, s5, v248\nv_add_u32 v249, s5, v249\nv_add_u32 v250, {256*224}, v248\nv_add_u32 v251, {256*224}, v249")
    for i in range(4): b(f"v_mov_b32 v{240+i}, s{sONE}")
    def rd(ks):
        for f2 in range(2):
            for hf in range(2):
                b(f"ds_read_b64_tr_b16 {v(96+(f2*8+ks%8)*4+2*hf,2)}, v{248 + f2 + 2*(ks//8)} offset:{(32*(ks%8)+16*hf)*224} ;@c{ks}")
    for ks in range(3): rd(ks)
    for ks in range(16):
        if ks + 3 < 16: rd(ks + 3)
        b(f"@lg c{ks}")
        for f2 in range(2):
            b(f"v_mfma_f32_16x16x32_bf16 {v(232+4*f2,4)}, {v(96+(f2*8+ks%8)*4,4)}, v[240:243], {'0' if ks == 0 else v(232+4*f2,4)}")
    b(f"s_lshl_b32 s5, s{sW}, 7\nv_add_u32 v5, s5, v{vCSA}")
    b("ds_write_b128 v5, v[232:235] ;@cs\nds_write_b128 v5, v[236:239] offset:64 ;@cs")

WB, SS, KA, SA = 160, 216, 224, 224
def g1_loads(layer, half):
    g = []
    X0 = 32 + 64 * half
    for ks in range(8):
        for n_, (dst, off) in enumerate([(0, 0), (4, 256), (2, 2048), (6, 2304)]):
            grp = []
            if n_ == 0: grp.append(f"    s_mov_b32 s{sB0}, {XP[1+2*layer] + half*0x100000 + ks*4096}")
            grp.append(f"    buffer_load_dwordx2 {v(X0+8*ks+dst,2)}, v{vGX}, {WS}, s{sB0} offen offset:{off} sc1 ;@x{ks}")
            g.append(grp)
    return g
def wread(b, ks, ft, hfs=(0, 1)):
    r = WB + (ks & 1) * 28 + ft * 4
    for hf in hfs:
        ad, off = (253, 0) if ft == 6 else ((252 if ft & 1 else vWA), (ft >> 1) * 64)
        b(f"ds_read_b64_tr_b16 {v(r+2*hf,2)}, v{ad} offset:{(32*ks+16*hf)*224 + off} ;@w{ks}_{ft}")
def wa_regs(b):
    b(f"v_xor_b32 v252, 32, v{vWA}\nv_and_b32 v253, 32, v{vWA}\nv_mul_u32_u24 v253, 6, v253\nv_sub_u32 v253, v{vWA}, v253\nv_add_u32 v253, 384, v253")
def g1_pre(b):
    wa_regs(b)
    for ft in range(7): wread(b, 0, ft)
def g1_loop(b, half, bg, hooks={}, slots=None):
    X0 = 32 + 64 * half
    bg = list(bg)
    if slots is None: slots = (0, 2, 4, 6) if len(bg) <= 32 else (0, 1, 3, 4, 6)
    def swaps(ks):
        x = X0 + 8 * ks
        b(f"@vm x{ks}\nv_swap_b32 v{x+1}, v{x+4}\nv_swap_b32 v{x+3}, v{x+6}")
    swaps(0)
    for ks in range(8):
        x = X0 + 8 * ks
        if opt("fine", 0) == 3 and len(STAMPS) > 25: stamp(b, f"g1{half} k{ks}")
        if ks in hooks: hooks[ks](b)
        if ks == 7:
            for ft in range(7):
                r = WB + 28 + ft * 4
                if ft in (0, 4): b(f"@lg w{ks}_{3 if ft == 0 else 6}")
                b(f"v_mfma_f32_16x16x32_bf16 {ac(SA+4*ft,4)}, {v(r,4)}, {v(x+4,4)}, {ac(SA+4*ft,4)}")
                b(f"ds_read_b128 {v(160+4*ft,4)}, v{vCSA} offset:{ft*64}")
                if ft < 4 and opt("ms", 1): b(f"v_mov_b32 v{220+ft}, 0x3e803e80")
                if ft in slots and bg: b.add(bg.pop(0))
            for ft in range(7):
                r = WB + 28 + ft * 4
                b(f"v_mfma_f32_16x16x32_bf16 {v(KA+4*ft,4)}, {v(r,4)}, {v(x,4)}, {v(KA+4*ft,4)}")
                if ft % 2 == 0 and ft // 2 < NW0: b(f"ds_write_b128 v{vXW}, {ac(SA+4*(ft//2),4)} offset:{(ft//2)*1024}")
            continue
        for ft in range(7):
            r = WB + (ks & 1) * 28 + ft * 4
            if ft in (0, 4): b(f"@lg w{ks}_{3 if ft == 0 else 6}")
            b(f"v_mfma_f32_16x16x32_bf16 {ac(SA+4*ft,4)}, {v(r,4)}, {v(x+4,4)}, {'0' if ks == 0 else ac(SA+4*ft,4)}")
            wread(b, ks + 1, ft, (0,))
            if ft in slots and bg: b.add(bg.pop(0))
            b(f"v_mfma_f32_16x16x32_bf16 {v(KA+4*ft,4)}, {v(r,4)}, {v(x,4)}, {'0' if ks == 0 else v(KA+4*ft,4)}")
            wread(b, ks + 1, ft, (1,))
            if ft == 5: swaps(ks + 1)
    assert not bg
NW0 = opt("nw0", 2)
RC, CSR = 188, 160
MS = opt("ms", 1)
def g1_post1m(b, half, bg=[], chk=None, bg2=[]):
    X0 = 32 + 64 * half
    m = Buf(); d = Buf()
    for ks in range(8):
        for j in range(2):
            m(f"v_mfma_f32_16x16x32_bf16 {v(188+4*j,4)}, v[220:223], {v(X0+8*ks+4*j,4)}, {'0' if ks == 0 else v(188+4*j,4)}")
    wr = [[f"    ds_write_b128 v{vXW}, {ac(SA+4*ft,4)} offset:{ft*1024}"] for ft in range(NW0, 7)]
    nb = min(len(bg), opt("msb", 4))
    b.add(interleave(interleave(m.l, wr, start=1, every=3), bg[:nb], start=2))
    for ks in range(8):
        x = X0 + 8 * ks
        for q in range(4):
            o = 4 * (q & 1)
            if ks == 0 and q < 2: d(f"v_dot2_f32_bf16 v{SS+o+1}, v{x+q}, v{x+q}, 0\nv_dot2_f32_bf16 v{SS+o+3}, v{x+4+q}, v{x+4+q}, 0")
            else: d(f"v_dot2c_f32_bf16 v{SS+o+1}, v{x+q}, v{x+q}\nv_dot2c_f32_bf16 v{SS+o+3}, v{x+4+q}, v{x+4+q}")
    b.add(interleave(d.l, bg[nb:]))
    b(f"v_permlane32_swap_b32 v188, v192\nv_add_f32 v{SS+1}, v{SS+1}, v{SS+5}\nv_add_f32 v{SS+3}, v{SS+3}, v{SS+7}\nv_add_f32 v{SS}, v188, v192")
    b(f"v_permlane32_swap_b32 v{SS+1}, v{SS+3}\nv_add_f32 v{SS+1}, v{SS+1}, v{SS+3}")
    b(f"v_permlane16_swap_b32 v{SS}, v{SS+1}\nv_add_f32 v{SS}, v{SS}, v{SS+1}\nds_write_b32 v{vSW}, v{SS}")
    b("s_waitcnt lgkmcnt(0)\ns_barrier")
    b(f"ds_read2_b32 {v(SS,2)}, v{vSR} offset0:0 offset1:16 ;@s\nds_read2_b32 {v(SS+2,2)}, v{vSR} offset0:32 offset1:48 ;@s")
    for ft in range(7): b(f"ds_read_b128 {v(RC+4*ft,4)}, v{vXR} offset:{ft*1024} ;@r{ft}")
    chk(b)
    b.add(flat(bg2))
def g1_post1(b, half, bg=[], chk=None, bg2=[]):
    if MS: return g1_post1m(b, half, bg, chk, bg2)
    X0 = 32 + 64 * half
    d = Buf()
    for ks in range(8):
        x = X0 + 8 * ks
        for q in range(4):
            o = 4 * (q & 1)
            if ks == 0 and q < 2:
                d(f"v_dot2_f32_bf16 v{SS+o}, s{sONE}, v{x+q}, 0\nv_dot2_f32_bf16 v{SS+o+1}, v{x+q}, v{x+q}, 0")
                d(f"v_dot2_f32_bf16 v{SS+o+2}, s{sONE}, v{x+4+q}, 0\nv_dot2_f32_bf16 v{SS+o+3}, v{x+4+q}, v{x+4+q}, 0")
                continue
            d(f"v_dot2c_f32_bf16 v{SS+o}, s{sONE}, v{x+q}\nv_dot2c_f32_bf16 v{SS+o+1}, v{x+q}, v{x+q}")
            d(f"v_dot2c_f32_bf16 v{SS+o+2}, s{sONE}, v{x+4+q}\nv_dot2c_f32_bf16 v{SS+o+3}, v{x+4+q}, v{x+4+q}")
    wr = [[f"    ds_write_b128 v{vXW}, {ac(SA+4*ft,4)} offset:{ft*1024}"] for ft in range(NW0, 7)]
    dl = interleave(d.l, wr, start=8, every=24)
    cut = opt("cut", 140)
    b.add(interleave(dl[:cut], bg, start=4))
    chk(b)
    b.add(interleave(dl[cut:], bg2))
    if opt("fine", 0) == 2: stamp(b, f"p{len(STAMPS)} dots")
    b(f"v_pk_add_f32 {v(SS+2,2)}, {v(SS+2,2)}, {v(SS+6,2)}\nv_pk_add_f32 {v(SS,2)}, {v(SS,2)}, {v(SS+4,2)}")
    b(f"v_permlane32_swap_b32 v{SS}, v{SS+2}\nv_permlane32_swap_b32 v{SS+1}, v{SS+3}\nv_pk_add_f32 {v(SS,2)}, {v(SS,2)}, {v(SS+2,2)}")
    b(f"v_permlane16_swap_b32 v{SS}, v{SS+1}\nv_add_f32 v{SS}, v{SS}, v{SS+1}\nds_write_b32 v{vSW}, v{SS}")
    b("s_waitcnt lgkmcnt(0)\ns_barrier")
    b(f"ds_read2_b32 {v(SS,2)}, v{vSR} offset0:0 offset1:16 ;@s\nds_read2_b32 {v(SS+2,2)}, v{vSR} offset0:32 offset1:48 ;@s")
    for ft in range(7): b(f"ds_read_b128 {v(RC+4*ft,4)}, v{vXR} offset:{ft*1024} ;@r{ft}")
def g1_post2(b, layer, half):
    b("@lg s")
    b(f"v_pk_add_f32 {v(SS,2)}, {v(SS,2)}, {v(SS+2,2)}")
    mn, sd, c2 = SS, SS+1, SS+2
    st = Buf()
    st(f"v_pk_mul_f32 {v(SS,2)}, {v(SS,2)}, s[{sINV}:{sINV+1}]\nv_fma_f32 v{sd}, -v{mn}, v{mn}, v{sd}")
    rnd(st, sd, sd); rnd(st, mn, mn)
    st(f"v_add_f32 v{sd}, s{sEPS}, v{sd}"); rnd(st, sd, sd)
    st(f"v_sqrt_f32 v{sd}, abs(v{sd})"); rnd(st, sd, sd)
    st(f"v_rcp_f32 v{c2}, v{sd}\nv_mul_f32 v{c2}, s{sNL2E}, v{c2}")
    adds = []
    for ft in range(7):
        t = RC + 4*ft
        adds.append([f"    @lg r{ft}"] + [f"    v_pk_add_f32 {v(t+2*k,2)}, {v(t+2*k,2)}, {v(KA+4*ft+2*k,2)}" for k in range(2)])
    b.add(interleave(st.l, adds, start=1, every=1))
    if opt("fine", 0) == 2: stamp(b, f"p{len(STAMPS)} stats")
    silu_part(b, 0, SPL[0])
def silu_part(b, k0, k1):
    mn, c2 = SS, SS + 2
    K = range(k0, k1); R = range(2*k0, 2*k1)
    for k in K: b(f"v_pk_fma_f32 {v(RC+2*k,2)}, {v(CSR+2*k,2)}, {v(mn,2)}, {v(RC+2*k,2)} op_sel_hi:[1,0,1] neg_lo:[0,1,0] neg_hi:[0,1,0]")
    for k in K: b(f"v_pk_mul_f32 {v(CSR+2*k,2)}, {v(RC+2*k,2)}, {v(c2,2)} op_sel_hi:[1,0]")
    for r in R: b(f"v_exp_f32 v{CSR+r}, v{CSR+r}")
    for k in K: b(f"v_pk_fma_f32 {v(CSR+2*k,2)}, {v(CSR+2*k,2)}, {v(mn,2)}, {v(mn,2)} op_sel:[0,1,1] op_sel_hi:[1,1,1]")
    for r in R: b(f"v_rcp_f32 v{CSR+r}, v{CSR+r}")
    for k in K: b(f"v_pk_mul_f32 {v(CSR+2*k,2)}, {v(CSR+2*k,2)}, {v(RC+2*k,2)}")
    for k in K:
        ft = k >> 1
        b(f"v_cvt_pk_bf16_f32 v{KA + 8*(ft >> 1) + 2*(ft & 1) + (k & 1)}, v{CSR+2*k}, v{CSR+2*k+1}")
    for pr in range(3):
        if k0 <= 4*pr < k1:
            p = KA + 8*pr
            b(f"v_permlane16_swap_b32 v{p}, v{p+2}\nv_permlane16_swap_b32 v{p+1}, v{p+3}")
SPL = {0: [14], 1: [8, 14], 2: [8, 12, 14], 3: [4, 8, 12, 14], 4: [4, 8, 14], 5: [12, 14]}[opt("sp", 2)]
def g1_store(b, layer, half, pre=None):
    hb = HB[layer] + half * 32 * HT
    b(f"s_mov_b32 s{sO}, {hb}\ns_mov_b32 s5, {hb + 4096}")
    done = 0
    for n_, k1 in enumerate(SPL):
        if n_: silu_part(b, SPL[n_-1], k1)
        if k1 == 14 and pre: pre(b)
        while done < 3 and 4*done + 4 <= k1:
            b(f"buffer_store_dwordx4 {v(KA+8*done,4)}, v{vH4}, {WS}, s{sO if done < 2 else 5} offen offset:{(done&1)*2048} sc1 ;@hst")
            done += 1
    b(f"buffer_store_dwordx2 {v(KA+24,2)}, v{vH2}, {WS}, s5 offen offset:2048 sc1 ;@hst")

H0, C2, RS = 32, 192, 184
def g2_loads(layer, half):
    g = []
    for ks in range(28):
        grp = []
        if ks % 4 == 0: grp.append(f"    s_mov_b32 s{sB0}, {HB[layer] + half*32*HT + ks*1024}")
        grp.append(f"    buffer_load_dwordx4 {v(H0+4*ks,4)}, v{vHL}, {WS}, s{sB0} offen offset:{(ks%4)*1024} sc1 ;@h{half}_{ks}")
        g.append(grp)
    return g
def w2_loads():
    g = []
    for i in range(56):
        grp = []
        if i % 4 == 0: grp.append(f"    s_add_u32 s{sB1}, s{sW2B}, {(i//4)*4096}")
        grp.append(f"    buffer_load_dwordx4 {ac(4*i,4)}, v6, {WS}, s{sB1} offen offset:{(i%4)*1024} sc1 ;@a{i//2}")
        g.append(grp)
    return g
def g2_res(layer, half):
    RS = 144 if half == 0 else 184
    g = [[f"    s_mov_b32 s{sO}, {XP[1+2*layer] + half*0x100000}"] +
         [f"    buffer_load_dword v{RS+k}, v{vRX}, {WS}, s{sO} offen offset:{(k>>1)*1024 + (k&1)*256} sc1 ;@res" for k in range(4)]]
    return g
def g2_loop(b, half, bg, hooks={}, tg=None, nm=None, late=[]):
    bg = list(bg); late = list(late)
    if tg: b.add(flat(tg[28:]))
    LAG = opt("lag", 8)
    def mf(ks, mt):
        b(f"v_mfma_f32_32x32x16_bf16 {v(C2+16*mt,16)}, {ac((ks*2+mt)*4,4)}, {v(H0+4*ks,4)}, {'0' if ks == 0 else v(C2+16*mt,16)}")
    for ks in range(28):
        if ks in hooks: hooks[ks](b)
        b(f"@vm h{half}_{ks},a{ks}")
        if nm and ks in (0, 4, 8, 12, 16, 20, 24): stamp(b, f"{nm} k{ks}")
        mf(ks, 1)
        if bg: b.add(bg.pop(0))
        if ks < 28 - LAG:
            mf(ks, 0)
            if tg and ks >= 1: b.add(tg[ks-1])
    if "end" in hooks: hooks["end"](b)
    wr = [f"ds_write_b128 v{vE1+sg-1}, {v(C2+8*sg+4*q,4)} offset:{q*1024}" for sg in (2, 3) for q in range(2)]
    for n_, ks in enumerate(range(28 - LAG, 28)):
        mf(ks, 0)
        if tg: b.add(tg[ks-1])
        if n_ >= 2 and n_ % 2 == 0 or n_ == LAG - 1:
            if wr: b(wr.pop(0))
        if late: b.add(late.pop(0))
    for w_ in wr: b(w_)
    if tg: b.add(["    s_nop 7"] + tg[27])
    assert not bg and not late
def g2_post1(b, half):
    RS = 144 if half == 0 else 184
    b("@vm res")
    for k in range(4): b(f"v_lshlrev_b32 v{224+2*k}, 16, v{RS+k}\nv_and_b32 v{225+2*k}, s{sMSK}, v{RS+k}")
    b(f"ds_write_b128 v{vE1}, {v(C2+8,4)}\nds_write_b128 v{vE1}, {v(C2+12,4)} offset:1024")
    b("s_waitcnt lgkmcnt(0)\ns_barrier")
    for k in range(6): b(f"ds_read_b128 {v(160+4*k,4)}, v{vE0} offset:{k*1024} ;@q{k>>1}")
def g2_post2(b, layer, half):
    for s_ in range(3):
        b(f"@lg q{s_}")
        for k in range(4): b(f"v_pk_add_f32 {v(C2+2*k,2)}, {v(C2+2*k,2)}, {v(160+8*s_+2*k,2)}")
    if opt("ro", 1):
        for r in range(8): rnd(b, C2+r, C2+r)
    for k in range(4): b(f"v_pk_add_f32 {v(C2+2*k,2)}, {v(C2+2*k,2)}, {v(224+2*k,2)}")
    for k in range(4): b(f"v_cvt_pk_bf16_f32 v{240+k}, v{C2+2*k}, v{C2+2*k+1}")
    if layer == 0:
        b(f"@{{\ns_mov_b32 s{sO}, {XP[2] + half*0x100000}")
        for k in range(4):
            b(f"buffer_store_dword v{240+k}, v{vX2}, {WS}, s{sO} offen offset:{(k>>1)*1024 + (k&1)*256} sc1 ;@xst")
        b("@}\nv_mov_b32 v244, 0\nv_mov_b32 v245, 0")
        for k in range(4): b(f"v_dot2c_f32_bf16 v244, s{sONE}, v{240+k}\nv_dot2c_f32_bf16 v245, v{240+k}, v{240+k}")
        b("v_permlane32_swap_b32 v244, v245\nv_add_f32 v244, v244, v245")
        LST = LSCR + 24576
        b(f"v_lshrrev_b32 v246, 2, v6\nv_add_u32 v246, {LST}, v246\ns_lshl_b32 s5, s{sW}, 8\nv_add_u32 v247, s5, v246")
        b("ds_write_b32 v247, v244\ns_waitcnt lgkmcnt(0)\ns_barrier")
        b("ds_read2st64_b32 v[244:245], v246 offset0:0 offset1:1\nds_read2st64_b32 v[246:247], v246 offset0:2 offset1:3")
        b(f"s_mov_b32 s{sO}, {ST2 + half*8192}\ns_waitcnt lgkmcnt(0)\nv_pk_add_f32 v[244:245], v[244:245], v[246:247]\nv_add_f32 v244, v244, v245")
        b(f"@{{\ns_mov_b64 exec, s[{sEXQ}:{sEXQ+1}]\nbuffer_atomic_add_f32 v244, v{vSA}, {WS}, s{sO} offen sc1 ;@xst\ns_mov_b64 exec, -1\n@}}")
    else:
        b("v_permlane32_swap_b32 v240, v242\nv_permlane32_swap_b32 v241, v243")
        b(f"s_mov_b32 s{sO}, {half*0x100000}\nbuffer_store_dwordx4 v[240:243], v{vOUT}, {srd(SOUT)}, s{sO} offen {opt('ofl', 'x').replace('x', '').replace('_', ' ')}")

gcheck(M); conv_x(M, 0, 0)
M(f"v_mov_b32 v{vPL}, v204\nv_mov_b32 v{vSG}, v205")
M("s_waitcnt lgkmcnt(0)\ns_barrier")
stamp(M, "kgen done")
XT, XUP, XPF, HPF, HP2, HUP = opt("xt", 10), opt("xup", 16), opt("xpf", 16), opt("hpf", 14), opt("hp2", 6), opt("hup", 14)
D1, D2, D3, D4, D5 = opt("d1", 6), opt("d2", 6), opt("d3", 5), opt("d4", 8), opt("d5", 6)
M.add(interleave(gen(t_loads, range(4)), take(D1))); u_pad(M)
for layer in range(2):
    L0 = layer == 0
    cA, cB = 4*layer, 4*layer + 1
    xa, xb, ha, hb_ = g1_loads(layer, 0), g1_loads(layer, 1), g2_loads(layer, 0), g2_loads(layer, 1)
    if L0:
        vm_ = take(D2); tg_ = t_groups(5)[16:]
        conv_half(M, layer, 0, bg=[tg_[k] + (vm_[k//2] if (k % 2 == 0 and k//2 < len(vm_)) else []) for k in range(16)])
        conv_x(M, 0, 1)
        s1_ = [l.replace("v5", "v240").replace("v6", "v241") for l in gen(setup_g1)]
        ab = interleave(gen(conv_ab), [gen(sig_all, cA, "cst")], start=opt("abs0", 30), every=1)
        ab = interleave(ab, [s1_[k:k+2] for k in range(0, len(s1_), 2)], start=2)
        M.add(interleave(ab, take(D3), start=1))
    else:
        conv_half(M, layer, 0, pre_barrier="@vm xst", after_ln=lambda b: sig_all(b, 3, "xst", barrier=False))
        ab = gen(conv_ab)
        ev = sorted([(opt("abp", 2), 0, gen(poll_all, 3)), (opt("abc", 40), 1, gen(check, "all", 3) + gen(conv_inputs, 1, 1)), (opt("abs", 52), 2, gen(sig_all, cA, "cst"))])
        pos = 0
        for p_, _, g_ in ev:
            M.add(ab[pos:p_]); M.add(g_); pos = p_
        M.add(ab[pos:])
    stamp(M, f"L{layer} conv0 signalled")
    if not L0:
        if opt("lateC", 0):
            conv_half(M, layer, 1, after_mfma=lambda b: poll_all(b, cA))
            g1_pre(M); check(M, "all", cA)
            M.add(flat(xa[:XUP]))
        else:
            conv_half(M, layer, 1, after_ln=lambda b: poll_all(b, cA), after_mfma=lambda b: check(b, "all", cA), tailbg=xa[:XT])
            g1_pre(M)
            M.add(flat(xa[XT:XUP]))
    else:
        assert not wq
        wq += w2_loads()
        sg_ = gen(setup_g2)
        sg_ = sg_[:3] + sg_[-4:] + sg_[3:-4]
        bgs = [sg_[k:k+2] for k in range(0, len(sg_), 2)]
        if W2E:
            wl = take(D4)
            for q, g_ in enumerate(wl): bgs[4 + q * ((len(bgs) - 4) // len(wl))] += g_
        conv_half(M, layer, 1, pre_barrier2="@vm w1", bg=bgs)
        poll_all(M, cA)
        cs_ = gen(colsum); cc = opt("cc", 30)
        M.add(interleave(cs_[:cc], take(D5 if W2E else 0), start=12))
        check(M, "all", cA)
        M.add(interleave(cs_[cc:], xa[:XUP]))
        g1_pre(M)
        M("@lg cs")
    stamp(M, f"L{layer} g1A ready")
    w2 = wq
    def mixw(x_, w_):
        if len(x_) + len(w_) <= 32: return x_ + w_
        x_ = list(x_); w_ = list(w_); o = []
        while x_ or w_:
            for q in range(5):
                src = x_ if (x_ and q < 4) else w_
                if src: o.append(src.pop(0))
                elif x_: o.append(x_.pop(0))
        return o + [[]] * (40 - len(o))
    XP1, HP1 = opt("xp1", 0), opt("hp1", 0)
    g1_loop(M, 0, mixw(xa[XUP:], take(opt("wa", 12))), {(opt("sg00", 0) if L0 else opt("sg0", 2)): lambda b: sig_all(b, cB, "cst")},
            slots=(None if L0 else [(0, 2, 4, 6), (0, 1, 3, 4, 6), (0, 1, 2, 3, 4, 5, 6)][opt("xs", 0)]))
    stamp(M, f"L{layer} g1A loop")
    poll_all(M, cB)
    g1_post1(M, 0, take(opt("wp", 14)), lambda b: check(b, "all", cB), xb[:XP1])
    stamp(M, f"L{layer} g1A post1")
    M.add(interleave(gen(g1_post2, layer, 0), xb[XP1:XPF]))
    g1_store(M, layer, 0, g1_pre)
    stamp(M, f"L{layer} g1A stored")
    if opt("fast", 0) and not L0:
        c1_, c2_ = opt("fc1", 5), opt("fc2", 16)
        n1 = 4 * (8 - c1_)
        g1_loop(M, 1, xb[XPF:] + [[]] * (4*c1_ - (32 - XPF)) + ha[:n1],
                {opt("sg1", 3): lambda b: sig_grp(b, 2*layer, "hst"), c1_ - 1: lambda b: poll_grp(b, 2*layer), c1_: lambda b: check(b, "grp", 2*layer)})
        stamp(M, f"L{layer} g1B loop")
        g1_post1(M, 1, [], lambda b: None, [])
        stamp(M, f"L{layer} g1B post1")
        M.add(interleave(gen(g1_post2, layer, 1), g2_res(layer, 0) + ha[n1:HPF]))
        g1_store(M, layer, 1)
        stamp(M, f"L{layer} g1B stored")
        rest = ha[HPF:]
        n2 = 28 - c2_
        g2_loop(M, 0, rest + [[]] * (c2_ - len(rest)) + hb_[:n2],
                {opt("sg2", 8): lambda b: sig_grp(b, 2*layer+1, "hst"), c2_ - 5: lambda b: poll_grp(b, 2*layer+1), c2_: lambda b: check(b, "grp", 2*layer+1)},
                late=hb_[n2:min(20, n2+8)])
        stamp(M, f"L{layer} g2A loop")
        g2_post1(M, 0); g2_post2(M, layer, 0)
        HP2_ = HUP = min(20, n2 + 8)
    else:
        g1_loop(M, 1, [[]] * opt("xsk", 2) + mixw(xb[XPF:], take(XPF - opt("xsk", 2))), {opt("sg1", 3): lambda b: sig_grp(b, 2*layer, "hst")})
        stamp(M, f"L{layer} g1B loop")
        poll_grp(M, 2*layer)
        g1_post1(M, 1, take(opt("wp", 14)), lambda b: check(b, "grp", 2*layer), ha[:HP1])
        stamp(M, f"L{layer} g1B post1")
        M.add(interleave(gen(g1_post2, layer, 1), g2_res(layer, 0) + ha[HP1:HPF]))
        g1_store(M, layer, 1)
        stamp(M, f"L{layer} g1B stored")
        rest = ha[HPF:]
        if w2:
            mix = []
            while rest or w2:
                mix.append((rest.pop(0) if rest else []) + (w2.pop(0) if w2 else []))
            rest = mix
        HP0 = opt("hp00", 0) if L0 else opt("hp0", 8)
        g2_loop(M, 0, [[]] * opt("hsk", 2) + rest, {opt("sg2", 8): lambda b: sig_grp(b, 2*layer+1, "hst"), (opt("pg2", 18) if HP0 else 27): lambda b: poll_grp(b, 2*layer+1),
                          "end": (lambda b: check(b, "grp", 2*layer+1) if HP0 else None)}, nm=("L1 g2A" if layer and opt("fine", 0) == 1 else None), late=hb_[:HP0])
        stamp(M, f"L{layer} g2A loop")
        if HP0: M.add(interleave(gen(g2_post1, 0) + gen(g2_post2, layer, 0), hb_[HP0:HP0+HP2], end=opt("hpe", 40)))
        else:
            if opt("lateA", 0) and L0:
                g2_post1(M, 0); g2_post2(M, layer, 0); check(M, "grp", 2*layer+1); M.add(flat(hb_[:HP2]))
            else:
                g2_post1(M, 0); check(M, "grp", 2*layer+1)
                M.add(interleave(gen(g2_post2, layer, 0), hb_[:HP2], end=opt("hpe", 30)))
        HP2_ = HP0 + HP2
    if L0 and opt("cpf", 1): M("v_add_u32 v5, s90, v6\nglobal_load_dwordx4 v[252:255], v5, s[42:43]")
    stamp(M, f"L{layer} g2A stored")
    M.add(flat(hb_[HP2_:HUP]))
    if L0:
        g2_loop(M, 1, hb_[HUP:] + g2_res(layer, 1), {opt("sg3", 4): lambda b: sig_all(b, 2, "xst"), 24: lambda b: poll_all(b, 2)}, tg=t_groups())
        stamp(M, f"L{layer} g2B loop")
        g2_post1(M, 1)
        if opt("lateB", 0):
            poll_all(M, 2); g2_post2(M, layer, 1); check(M, "all", 2); conv_inputs(M, 1, 0)
        else:
            check(M, "all", 2); conv_inputs(M, 1, 0)
            g2_post2(M, layer, 1)
        stamp(M, f"L{layer} g2B stored")
        u_pad(M)
    else:
        M("s_barrier")
        g2_loop(M, 1, hb_[HUP:] + g2_res(layer, 1), nm=("L1 g2B" if opt("fine", 0) == 1 else None))
        stamp(M, f"L{layer} g2B loop")
        g2_post1(M, 1); g2_post2(M, layer, 1)
        stamp(M, f"L{layer} g2B stored")
if STAMP:
    M(f"s_cmp_lg_u32 s{sW}, 0\ns_cbranch_scc1 {DONE}")
    M(f"v_mbcnt_lo_u32_b32 v5, -1, 0\nv_mbcnt_hi_u32_b32 v5, -1, v5\nv_lshlrev_b32 v5, 2, v5\ns_lshl_b32 s5, s2, 8\ns_add_u32 s5, s5, {0x1800000 + 0x400000}")
    M(f"buffer_store_dword v7, v5, {WS}, s5 offen")
M.label(DONE)
M("s_endpgm")

a = Asm()
a.kernel(NAME + "_kernel", vgpr=512, sgpr=102, accum=256)
lines = resolve(strip_marks(M.l)) + tail.l + [".Lkend:"]
lines, added = hazard.fix(lines)
import numpy as np
def rbf(j):
    u = np.array([j], dtype=np.float32).view(np.uint32)[0]
    u = (int(u) + 0x7FFF + ((int(u) >> 16) & 1)) & 0xFFFF0000
    return int(np.array([u], dtype=np.uint32).view(np.float32)[0])
def gaddr(j):
    p = rbf(max(j, 0)); e = 0 if p < 256 else 1 if p < 512 else 2 if p < 1024 else 3
    row = 8*e + ((((p >> 7) << 3) | (p & 7)) >> e)
    return LGT + row*64 + ((p >> 3) & 15)*4
def dmaoff(par_, k, lane):
    q = 16*k + (lane >> 2); pair, qq, sub = q // 7, q % 7, lane & 3
    full, half_ = (32, 0) if par_ else (0, 192)
    if qq < 3: return pair*7168 + full + qq*64 + sub*16
    if qq < 6: return pair*7168 + 3584 + full + (qq-3)*64 + (sub ^ 2)*16
    return pair*7168 + (sub >> 1)*3584 + half_ + (sub & 1)*16
if TB:
    it = [gaddr(8*t - 1 + 4*pl + k) for pl in range(2) for t in range(256) for k in range(4)] + [gaddr(8*t + 7) for t in range(256)]
    dt_ = [(dmaoff(p_, 4*pl + k, l_) if 4*pl + k < 7 else 0) for p_ in range(2) for pl in range(2) for l_ in range(64) for k in range(4)]
    for nm_, tb_ in (("idx_table", it), ("dma_table", dt_)):
        lines += [".p2align 6", f".type {nm_},@object", f"{nm_}:"] + [".long " + ", ".join(str(x) for x in tb_[q:q+16]) for q in range(0, len(tb_), 16)] + [f".size {nm_}, {4*len(tb_)}"]
a.lines += lines
print("nops added", added, "lines", len(a.lines), file=sys.stderr)
hdr = "".join(l for l in open(f"cdna_kernels/{NAME}.s.ref").readlines() if l.startswith(";") and "@launch" not in l and "Override" not in l and "grid=ceil" not in l)
a.launches = [f"; @launch grid=(256,1,1) block=(256,1,1) lds={LDS_BYTES}"]
open(OUT, "w").write(a.text(hdr))
json.dump(STAMPS, open("work/" + OUT.split("/")[-1] + ".stamps.json", "w"))
```

```python
import sys, struct, json
sys.path.insert(0, "work")
from asmgen import Asm
import hazard
from sched import resolve, interleave, strip_marks
NAME = "interleave_layers__ssm_conv_s4d__dense_activation_silu__prompt"
STAMP = "--stamp" in sys.argv
OPT = dict(x.lstrip("-").split("=") for x in sys.argv[1:] if x.startswith("--") and "=" in x)
def opt(k, d): return type(d)(OPT.get(k, d))
OUT = [x for x in sys.argv[1:] if not x.startswith("--")]
OUT = OUT[0] if OUT else f"cdna_kernels/{NAME}.s"
def f2u(x): return struct.unpack("<I", struct.pack("<f", x))[0]
LOG2E = 1.4426950408889634
GCNT = 6 * 0x8000
ST0 = 0x80000; ST2 = 0x84000
W2F = 0x100000
W1F = 0x1900000
XP = [0x1700000, 0x300000, 0x500000, 0x700000]
HB = [0x900000, 0x1000000]
WS_BYTES = 0x2000000
HT = 114688
LPK = 114688; PKS = 8256; LCS = 131200; LSCR = 131712
LU = LSCR; US = 4608; LEX = LSCR + 9216
ES = 28672; LGT = LEX
LDS_BYTES = 163840
SWS, SW1, SW2, SOUT = 44, 48, 52, 56
sW, sCPI, sRT, sCT, sLT, sDT, sNON, sGC = 60, 61, 62, 63, 64, 65, 66, 67
sDK, sONE, sMSK, sINV, sEPS, sNL2E = 68, 70, 71, 72, 74, 75
sEXS = 76
sB0, sB1, sO, sW2B, sGS = 78, 79, 80, 81, 82
sSTAMP = 84
sEXQ = 92
sEXW = 100
SPIN = 60000
vOUT, vPL, vSG, vPD, vONE = 0, 1, 2, 3, 4
vCX, vCS, vUW, vUR, vTB, vEW, vER, vGX, vWA, vXW, vXR, vSW, vSR, vCSA, vH4, vH2, vHL, vRX, vX2, vE1, vE0, vSA = \
    8, 9, 10, 11, 12, 13, 14, 15, 16, 17, 18, 19, 20, 21, 22, 23, 24, 25, 26, 27, 30, 31
vDMA = 24

HSC = "sc1" if opt("hsc", 1) else opt("hfl", "")
GFLAG = opt("gflag", 0)
if opt("samehb", 0): HB = [HB[0], HB[0]]
NSH = opt('nsh', 8)
class Buf:
    def __init__(self): self.l = []
    def __call__(self, s):
        for ln in s.strip("\n").split("\n"): self.l.append("    " + ln.strip())
    def label(self, n): self.l.append(n + ":")
    def add(self, lines): self.l += lines
uid = [0]
def lab(b="L"):
    uid[0] += 1; return f".{b}_{uid[0]}"
def srd(n): return f"s[{n}:{n+3}]"
def v(n, k=1): return f"v{n}" if k == 1 else f"v[{n}:{n+k-1}]"
def ac(n, k=1): return f"a{n}" if k == 1 else f"a[{n}:{n+k-1}]"
def flat(groups): return [l for g in groups for l in g]
def gen(fn, *args, **kw):
    t = Buf(); fn(t, *args, **kw); return t.l
WS = srd(SWS)
tail = Buf()
STAMPS = []
def stamp(b, name):
    if not STAMP: return
    if opt("light", 0) and name not in ("start", "L1 g2B stored"): return
    i = len(STAMPS); STAMPS.append(name)
    assert i < 64
    b(f"@{{\n{'s_memtime' if opt('cyc', 0) else 's_memrealtime'} s[{sSTAMP}:{sSTAMP+1}]\ns_waitcnt lgkmcnt(0)\nv_writelane_b32 v7, s{sSTAMP}, {i}\n@}}")

FG = opt("fg", 1)
sGP = 91
GADDR = "v_mov_b32 v5, 0" if FG else f"v_and_b32 v5, 0x300, v{vPL}"
GT = 8 if FG else 16
def poll_all(b, cnt):
    b(f"s_mov_b32 s{sO}, {cnt*0x8000}\nbuffer_load_dword v{vPD}, v{vPL}, {WS}, s{sO} offen sc1 ;@poll")
def poll_grp(b, idx):
    b(f"@{{\ns_add_u32 s{sO}, s{sGP}, {idx*16*1024}\n{GADDR}\nbuffer_load_dword v{vPD}, v5, {WS}, s{sO} offen sc1 ;@poll\n@}}")
def check(b, kind, idx):
    slow = lab("slow"); back = lab("back"); lp = lab("lp")
    b("@vm poll")
    b(f"@{{\nv_cmp_gt_u32 vcc, {GT if kind == 'grp' else 256 // NSH}, v{vPD}\ns_cbranch_vccnz {slow}")
    b.label(back); b("@}")
    tail.label(slow)
    tail(f"s_mov_b32 s10, {SPIN}")
    if kind == "all": tail(f"s_mov_b32 s11, {idx*0x8000}\nv_mov_b32 v5, v{vPL}")
    else: tail(f"s_add_u32 s11, s{sGP}, {idx*16*1024}\n{GADDR}")
    tgt = GT if kind == 'grp' else 256 // NSH
    if opt("pp", 1):
        tail(f"buffer_load_dword v{vPD}, v5, {WS}, s11 offen sc1\ns_sleep {opt('ppd', 4)}")
        tail.label(lp)
        tail(f"buffer_load_dword v4, v5, {WS}, s11 offen sc1\ns_waitcnt vmcnt(1)\nv_cmp_gt_u32 vcc, {tgt}, v{vPD}\ns_cbranch_vccz {back}")
        tail(f"buffer_load_dword v{vPD}, v5, {WS}, s11 offen sc1\ns_waitcnt vmcnt(1)\nv_cmp_gt_u32 vcc, {tgt}, v4\ns_cbranch_vccz {back}")
    else:
        tail.label(lp)
        tail(f"buffer_load_dword v{vPD}, v5, {WS}, s11 offen sc1\ns_waitcnt vmcnt(0)")
        tail(f"v_cmp_gt_u32 vcc, {tgt}, v{vPD}\ns_cbranch_vccz {back}")
    tail(f"s_sub_u32 s10, s10, 1\ns_cmp_lg_u32 s10, 0\ns_cbranch_scc1 {lp}\ns_branch {back}")
def sig_all(b, cnt, tag, barrier=True):
    b(f"@vm {tag}\n@{{\n{'s_barrier' if barrier else 's_nop 0'}\ns_mov_b32 s{sO}, {cnt*0x8000}\ns_mov_b64 exec, s[{sEXS}:{sEXS+1}]")
    b(f"v_mov_b32 v5, 1\nbuffer_atomic_add v5, v{vSG}, {WS}, s{sO} offen sc1\ns_mov_b64 exec, -1\n@}}")
def sig_grp(b, idx, tag):
    b(f"@vm {tag}\n@{{\ns_add_u32 s{sO}, s{sGS}, {idx*16*1024}\ns_mov_b64 exec, 1")
    if GFLAG: b(f"buffer_store_dword v{vONE}, off, {WS}, s{sO} {HSC}\ns_mov_b64 exec, -1\ns_barrier\n@}}")
    else: b(f"v_mov_b32 v5, 1\nbuffer_atomic_add v5, off, {WS}, s{sO} sc1\ns_mov_b64 exec, -1\ns_barrier\n@}}")
def xsum(b, regs, tmp, steps):
    for s in steps:
        for i, r in enumerate(regs): b(f"v_mov_b32 v{tmp+i}, v{r}")
        for i, r in enumerate(regs): b(f"v_permlane{s}_swap_b32 v{r}, v{tmp+i}")
        for i, r in enumerate(regs): b(f"v_add_f32 v{r}, v{r}, v{tmp+i}")
def rnd(b, d, s): b(f"v_cvt_pk_bf16_f32 v{d}, 0, v{s}")

M = Buf()
DONE = ".Ldone"
M.label(".Lkstart")
M("s_cmp_ge_u32 s2, 256")
M(f"s_cbranch_scc1 {DONE}")
M("s_load_dwordx16 s[16:31], s[0:1], 0\ns_load_dwordx8 s[32:39], s[0:1], 64\ns_load_dwordx2 s[40:41], s[0:1], 96")
M("s_memrealtime s[14:15]")
M("s_getpc_b64 s[42:43]")
M.label(".Lpc")
M("v_and_b32 v1, 63, v0\nv_lshlrev_b32 v2, 4, v1\nv_lshrrev_b32 v3, 6, v0")
M(f"v_readfirstlane_b32 s{sW}, v3")
if STAMP: M("v_mov_b32 v7, 0")
M("s_and_b32 s3, s2, 7\ns_lshr_b32 s4, s2, 3")
M(f"s_lshl_b32 s5, s4, 2\ns_add_u32 s5, s5, s{sW}\ns_min_u32 s5, s5, ((.Lkend-.Lkstart-128)>>10)-1\ns_lshl_b32 s5, s5, 10\nv_add_u32 v5, s5, v2")
M("s_mov_b32 s90, s5")
if opt("cp0", 0) == 0: M("global_load_dwordx4 v[200:203], v5, s[42:43]")
TB = opt("tb", 0)
IDX = 100
if TB:
    M("v_lshlrev_b32 v5, 4, v0\nv_add_u32 v5, idx_table-.Lpc, v5\nv_add_u32 v6, 4096, v5\nv_lshlrev_b32 v10, 2, v0\nv_add_u32 v10, idx_table-.Lpc+8192, v10")
    M("s_and_b32 s5, s4, 1\ns_lshl_b32 s5, s5, 11\ns_add_u32 s5, s5, dma_table-.Lpc\nv_add_u32 v11, s5, v2")
    M(f"global_load_dwordx4 {v(vDMA,4)}, v11, s[42:43] ;@tb\nglobal_load_dwordx3 {v(vDMA+4,3)}, v11, s[42:43] offset:1024 ;@tb")
    M(f"global_load_dwordx4 {v(IDX,4)}, v5, s[42:43] ;@tb\nglobal_load_dwordx4 {v(IDX+4,4)}, v6, s[42:43] ;@tb\nglobal_load_dword v{IDX+8}, v10, s[42:43] ;@tb")
M(f"s_lshl_b32 s{sCPI}, s3, 5\ns_add_u32 s{sCPI}, s{sCPI}, s4")
M(f"s_lshl_b32 s5, s2, 13\ns_lshl_b32 s6, s{sW}, 11\ns_add_u32 s5, s5, s6\nv_add_u32 v62, s5, v2")
M(f"s_lshl_b32 s5, s{sCPI}, 9\nv_lshlrev_b32 v63, 1, v0\nv_add_u32 v63, s5, v63")
M(f"s_lshr_b32 s5, s2, 2\ns_lshl_b32 s5, s5, 15\ns_and_b32 s6, s2, 3\ns_lshl_b32 s6, s6, 8\ns_add_u32 s5, s5, s6\ns_lshl_b32 s6, s{sW}, 6\ns_add_u32 s5, s5, s6")
M("v_and_b32 v5, 7, v1\nv_lshlrev_b32 v64, 12, v5\nv_lshrrev_b32 v6, 3, v1\nv_lshl_add_u32 v64, v6, 3, v64\nv_add_u32 v64, s5, v64")
M("s_waitcnt lgkmcnt(0)")
stamp(M, "start")
n0 = lab("n0")
M(f"s_or_b32 s5, s4, s{sW}\ns_cmp_lg_u32 s5, 0\ns_cbranch_scc1 {n0}")
M("s_or_b32 s14, s14, 1\nv_mov_b32 v8, s14\nv_mov_b32 v9, 0\ns_mov_b64 exec, 1\nglobal_atomic_cmpswap v9, v[8:9], s[38:39] sc1 ;@!\ns_mov_b64 exec, -1")
M.label(n0)
if opt("cp0", 0) == 3:
    M(f"s_lshl_b32 s5, s4, 2\ns_add_u32 s5, s5, s{sW}\ns_mul_i32 s5, s5, 384\ns_min_u32 s5, s5, .Lkend-.Lkstart-512")
    M("s_add_u32 s6, s5, 128\ns_add_u32 s10, s5, 256\ns_load_dword s86, s[42:43], s5\ns_load_dword s87, s[42:43], s6\ns_load_dword s10, s[42:43], s10")
for i, dst in enumerate([216, 220, 218, 222]): M(f"global_load_dwordx2 {v(dst,2)}, v64, s[16:17] offset:{i*1024} ;@b1")
M("global_load_dwordx4 v[32:35], v62, s[16:17] ;@b1\nglobal_load_dwordx4 v[36:39], v62, s[16:17] offset:1024 ;@b1")
for i in range(4): M(f"global_load_ushort v{48+i}, v63, s[{18+2*i}:{19+2*i}] ;@par")
M(f"s_and_b32 s{sCT}, s4, 15")
M(f"s_lshl_b32 s{sRT}, s3, 1\ns_lshr_b32 s5, s4, 4\ns_add_u32 s{sRT}, s{sRT}, s5")
M(f"s_lshl_b32 s{sLT}, s{sRT}, 1\ns_bfe_u32 s5, s4, 0x10003\ns_add_u32 s{sLT}, s{sLT}, s5\ns_and_b32 s{sDT}, s4, 7")
M(f"s_lshl_b32 s{sGC}, s{sRT}, 10\ns_add_u32 s{sGC}, s{sGC}, {GCNT}\ns_lshl_b32 s5, s{sW}, 8\ns_add_u32 s{sGS}, s{sGC}, s5")
M(f"s_mov_b32 s{sONE}, 0x3f803f80\ns_mov_b32 s{sMSK}, 0xffff0000\ns_mov_b32 s{sINV}, {f2u(1/512):#x}\ns_mov_b32 s{sINV+1}, {f2u(1/512):#x}")
M(f"s_mov_b32 s{sEPS}, {f2u(1e-5):#x}\ns_mov_b32 s{sNL2E}, {f2u(-LOG2E):#x}")
M(f"s_lshl_b32 s5, s{sW}, 1\ns_lshl_b32 s{sEXS}, 3, s5\ns_mov_b32 s{sEXS+1}, 0")
M(f"s_lshl_b32 s5, s{sW}, 2\ns_lshl_b32 s{sEXQ}, 0x000f000f, s5\ns_mov_b32 s{sEXQ+1}, s{sEXQ}")
M("v_and_b32 v5, 7, v1\nv_lshrrev_b32 v6, 3, v1")
M("v_lshlrev_b32 v65, 10, v6\nv_lshl_add_u32 v65, v5, 4, v65\nv_lshlrev_b32 v207, 9, v6\nv_lshl_add_u32 v207, v5, 4, v207")
M(f"s_lshl_b32 s94, s2, 2\ns_add_u32 s94, s94, s{sW}\ns_min_u32 s94, s94, 895")
M("s_mul_i32 s95, s94, 2341\ns_lshr_b32 s95, s95, 16\ns_mul_i32 s5, s95, 28\ns_sub_u32 s96, s94, s5")
M("s_and_b32 s5, s95, 3\ns_mul_i32 s5, s5, 448\ns_lshl_b32 s6, s96, 4\ns_add_u32 s5, s5, s6\ns_lshl_b32 s7, s5, 10\ns_lshr_b32 s5, s95, 2\ns_lshl_b32 s5, s5, 7\ns_add_u32 s7, s7, s5")
M(f"s_lshl_b32 s9, s{sW}, 12\ns_add_u32 s9, s9, {LPK}")
M(f"s_mov_b32 s{SWS+2}, {WS_BYTES:#x}\ns_mov_b32 s{SWS+3}, 0x20000")
M(f"s_mov_b32 s{SWS}, s40\ns_mov_b32 s{SWS+1}, s41")
n1 = lab("n1")
M(f"s_cmp_ge_u32 s2, 128\ns_cbranch_scc1 {n1}")
M(f"s_lshl_b32 s5, s2, 2\ns_add_u32 s5, s5, s{sW}\ns_lshl_b32 s6, s5, 9\ns_lshl_b32 s5, s5, 5\ns_add_u32 s5, s5, {ST2}")
M("v_mov_b32 v4, 0\nv_mov_b32 v5, 0\nv_lshlrev_b32 v6, 3, v1\nv_lshlrev_b32 v8, 2, v1")
M(f"buffer_store_dwordx2 v[4:5], v6, {WS}, s6 offen sc1 ;@!\ns_mov_b64 exec, 0xff\nbuffer_store_dword v5, v8, {WS}, s5 offen sc1 ;@!\ns_mov_b64 exec, -1")
M.label(n1)
for sd, sb, nb in [(SW1, 32, 512*1792*2), (SW2, 34, 512*1792*2), (SOUT, 36, 2048*512*2)]:
    M(f"s_mov_b32 s{sd}, s{sb}\ns_mov_b32 s{sd+1}, s{sb+1}\ns_mov_b32 s{sd+2}, {nb:#x}\ns_mov_b32 s{sd+3}, 0x20000")
M(f"s_mov_b32 m0, s9\ns_add_u32 s5, s7, 8192\nbuffer_load_dwordx4 v65, {srd(SW2)}, s7 offen lds ;@b2\ns_add_u32 m0, s9, 1024\ns_nop 0\nbuffer_load_dwordx4 v65, {srd(SW2)}, s5 offen lds ;@b2")
M(f"s_lshl_b32 s5, s{sCPI}, 2")
M("s_load_dword s12, s[26:27], s5\ns_load_dword s13, s[28:29], s5")
if opt("tlb", 0):
    M(f"v_lshlrev_b32 v5, 20, v1\ns_mov_b64 exec, 0x7ffffff\ns_mov_b32 s5, 0xc0000\nbuffer_load_dword v240, v5, {WS}, s5 offen sc1\ns_mov_b64 exec, 3")
    M(f"buffer_load_dword v243, v5, {srd(SOUT)}, 0 offen\ns_mov_b64 exec, -1")
M("v_and_b32 v60, 15, v1\nv_lshrrev_b32 v61, 4, v1")
sD0, sD1 = 88, 89
sRX, sRH = 16, 24
M(f"s_mul_i32 s{sD0}, s{sW}, {128*3584}\ns_mul_i32 s5, s{sCT}, 224\ns_add_u32 s{sD0}, s{sD0}, s5\ns_mul_i32 s{sD1}, s{sW}, 28672")
dma = [[f"    s_add_u32 m0, s{sD1}, {p*1024}", f"    s_add_u32 s{sB1}, s{sD0}, {(p//7)*32*3584}", f"    buffer_load_dwordx4 v{vDMA+p%7}, {srd(SW1)}, s{sB1} offen lds ;@w1"] for p in range(28)]
dma = dma[17:] + dma[:17]
def setup_dma(b):
    b(f"s_and_b32 s7, s{sCT}, 1\ns_lshl_b32 s8, s7, 5\ns_mul_i32 s7, s7, 192\ns_sub_u32 s7, 192, s7")
    b("v_and_b32 v64, 3, v1\nv_lshlrev_b32 v64, 4, v64\nv_add_u32 v65, s8, v64\nv_xor_b32 v66, 32, v64")
    b(f"v_add_u32 v66, s8, v66\nv_add_u32 v66, {3584-192}, v66")
    b("v_and_b32 v67, 16, v64\nv_add_u32 v67, s7, v67\nv_lshrrev_b32 v64, 5, v64\nv_mul_u32_u24 v64, 3584, v64")
    b(f"v_add_u32 v67, v67, v64\nv_subrev_u32 v67, {6*64}, v67\nv_lshrrev_b32 v64, 2, v1")
    for k in range(7):
        b(f"v_add_u32 v5, {16*k}, v64\nv_mul_u32_u24 v6, 9363, v5\nv_lshrrev_b32 v6, 16, v6\nv_mul_u32_u24 v62, 7, v6\nv_sub_u32 v5, v5, v62")
        b(f"@{{\nv_cmp_lt_u32 vcc, 2, v5\nv_mul_u32_u24 v6, 7168, v6\nv_lshl_add_u32 v6, v5, 6, v6\nv_cndmask_b32 v62, v65, v66, vcc\nv_cmp_eq_u32 vcc, 6, v5\ns_nop 1\nv_cndmask_b32 v62, v62, v67, vcc\n@}}")
        b(f"v_add_u32 v{vDMA+k}, v6, v62")
def setup(b):
    b(f"s_and_b32 s5, s{sW}, 1\ns_lshr_b32 s6, s{sW}, 1")
    b(f"v_bfe_u32 v{vCX}, v1, 2, 2\nv_lshlrev_b32 v{vCX}, 16, v{vCX}\nv_and_b32 v5, 3, v1\nv_lshl_add_u32 v{vCX}, v5, 6, v{vCX}\nv_lshl_add_u32 v{vCX}, v61, 4, v{vCX}")
    b(f"s_lshl_b32 s7, s{sW}, 18\ns_lshl_b32 s8, s{sCPI}, 8\ns_add_u32 s7, s7, s8\nv_add_u32 v{vCX}, s7, v{vCX}")
    b(f"v_lshlrev_b32 v{vCS}, 7, v60\nv_lshl_add_u32 v{vCS}, v61, 5, v{vCS}\ns_lshl_b32 s7, s{sW}, 11\nv_add_u32 v{vCS}, s7, v{vCS}")
    b(f"v_lshlrev_b32 v5, 5, v60\nv_lshl_add_u32 v{vUW}, v61, 3, v5\ns_lshl_b32 s7, s{sW}, 9\ns_add_u32 s7, s7, {LU+512}\nv_add_u32 v{vUW}, s7, v{vUW}")
    b(f"v_lshl_add_u32 v{vUR}, v61, 4, v5\ns_mul_i32 s7, s6, {US}\ns_lshl_b32 s8, s5, 8\ns_sub_u32 s7, s7, s8\ns_add_u32 s7, s7, {LU}\nv_add_u32 v{vUR}, s7, v{vUR}")
    b(f"v_lshlrev_b32 v5, 3, v61\nv_sub_u32 v5, v60, v5\nv_lshlrev_b32 v5, 2, v5\ns_mul_i32 s7, s6, {PKS}\ns_lshl_b32 s8, s5, 9\ns_add_u32 s7, s7, s8\ns_add_u32 s7, s7, {LPK+26*4}\nv_add_u32 v{vTB}, s7, v5")
    b(f"s_lshl_b32 s7, s{sW}, 10\ns_add_u32 s7, s7, {LEX}\nv_add_u32 v{vEW}, s7, v2\ns_lshl_b32 s7, s{sW}, 12\ns_add_u32 s7, s7, {LEX}\nv_add_u32 v{vER}, s7, v2")
    b(f"v_and_b32 v204, {NSH-1}, v1\nv_lshlrev_b32 v204, 8, v204\ns_lshl_b32 s7, s3, 12\nv_add_u32 v204, s7, v204")
    b(f"v_lshlrev_b32 v205, 12, v1\ns_and_b32 s7, s{sCT}, {NSH-1}\ns_lshl_b32 s7, s7, 8\nv_add_u32 v205, s7, v205\nv_mov_b32 v{vONE}, 1")
    for k in range(0 if TB else 9):
        b(f"v_lshlrev_b32 v5, 3, v0\nv_add_u32 v5, {k-1}, v5")
        if k == 0: b("v_max_i32 v5, 0, v5")
        b("v_cvt_f32_u32 v5, v5\nv_cvt_pk_bf16_f32 v5, 0, v5\nv_cvt_u32_f32 v6, v5")
        b("v_lshrrev_b32 v5, 23, v5\nv_subrev_u32 v5, 134, v5\nv_med3_i32 v5, v5, 0, 3")
        b("v_lshrrev_b32 v62, 7, v6\nv_and_b32 v63, 7, v6\nv_lshl_or_b32 v62, v62, 3, v63\nv_lshrrev_b32 v62, v5, v62\nv_lshl_add_u32 v62, v5, 3, v62")
        b(f"v_bfe_u32 v6, v6, 3, 4\nv_lshlrev_b32 v6, 2, v6\nv_lshl_add_u32 v6, v62, 6, v6\nv_add_u32 v{IDX+k}, {LGT}, v6")
def setup_g1(b):
    b("v_mbcnt_lo_u32_b32 v246, -1, 0\nv_mbcnt_hi_u32_b32 v246, -1, v246\nv_and_b32 v244, 15, v246\nv_lshrrev_b32 v245, 4, v246\nv_lshlrev_b32 v247, 4, v246")
    b(f"s_and_b32 s5, s{sW}, 1\ns_lshr_b32 s6, s{sW}, 1")
    b(f"v_lshlrev_b32 v{vGX}, 9, v245\nv_lshl_add_u32 v{vGX}, v244, 3, v{vGX}\ns_lshl_b32 s7, s{sRT}, 16\ns_lshl_b32 s8, s5, 7\ns_add_u32 s7, s7, s8\ns_lshl_b32 s8, s6, 15\ns_add_u32 s7, s7, s8\nv_add_u32 v{vGX}, s7, v{vGX}")
    b(f"v_lshlrev_b32 v5, 2, v245\nv_bfe_u32 v6, v246, 2, 2\nv_add_u32 v5, v5, v6\nv_mul_u32_u24 v5, 224, v5\nv_and_b32 v6, 3, v246\nv_lshl_add_u32 v5, v6, 3, v5\ns_mul_i32 s7, s6, {256*224}\nv_add_u32 v{vWA}, s7, v5")
    b(f"s_mul_i32 s7, s{sW}, 7680\ns_add_u32 s7, s7, {LSCR}\nv_add_u32 v{vXW}, s7, v247")
    b(f"v_lshrrev_b32 v5, 5, v246\nv_xor_b32 v5, s6, v5\nv_lshlrev_b32 v5, 8, v5\nv_lshl_add_u32 v5, v246, 2, v5\ns_lshl_b32 s7, s5, 9\ns_add_u32 s7, s7, {LSCR+30720}\nv_add_u32 v{vSW}, s7, v5")
    b(f"s_lshl_b32 s8, s6, 8\ns_add_u32 s7, s7, s8\nv_lshlrev_b32 v5, 2, v244\nv_add_u32 v{vSR}, s7, v5")
    b(f"s_xor_b32 s7, s{sW}, 2\ns_mul_i32 s7, s7, 7680\ns_add_u32 s7, s7, {LSCR}\nv_add_u32 v{vXR}, s7, v247")
    b(f"v_lshlrev_b32 v{vCSA}, 4, v245\nv_add_u32 v{vCSA}, {LCS}, v{vCSA}")
    b(f"s_lshl_b32 s7, s{sRT}, 1\ns_add_u32 s7, s7, s5\ns_mul_i32 s7, s7, {HT}\ns_mul_i32 s8, s{sCT}, 7168\ns_add_u32 s7, s7, s8\ns_lshl_b32 s8, s6, 8\ns_add_u32 s7, s7, s8")
    b(f"v_and_b32 v5, 1, v245\nv_lshrrev_b32 v6, 1, v245\nv_lshlrev_b32 v{vH2}, 9, v6\nv_lshl_add_u32 v{vH2}, v244, 4, v{vH2}\nv_add_u32 v{vH2}, s7, v{vH2}\nv_lshl_add_u32 v{vH4}, v5, 10, v{vH2}\nv_lshl_add_u32 v{vH2}, v5, 3, v{vH2}")
    b(f"s_and_b32 s7, s{sCT}, 1\ns_lshl_b32 s8, s7, 10\nv_add_u32 v{vH4}, s8, v{vH4}\ns_mul_i32 s8, s7, 6144\nv_subrev_u32 v{vH2}, s8, v{vH2}")
def setup_g2(b):
    b("v_mbcnt_lo_u32_b32 v248, -1, 0\nv_mbcnt_hi_u32_b32 v248, -1, v248\nv_lshlrev_b32 v6, 4, v248")
    b(f"s_mul_i32 s7, s{sLT}, {HT}\ns_mul_i32 s8, s{sW}, 28672\ns_add_u32 s7, s7, s8\nv_add_u32 v{vHL}, s7, v6")
    b("v_and_b32 v249, 15, v248\nv_lshlrev_b32 v249, 1, v249\nv_bfe_u32 v5, v248, 4, 1\nv_add_u32 v249, v249, v5\nv_lshrrev_b32 v250, 5, v248")
    b(f"s_lshr_b32 s7, s{sLT}, 1\ns_lshl_b32 s7, s7, 16\ns_and_b32 s8, s{sLT}, 1\ns_lshl_b32 s8, s8, 7\ns_add_u32 s7, s7, s8\ns_lshl_b32 s8, s{sDT}, 13\ns_add_u32 s7, s7, s8\ns_lshl_b32 s8, s{sW}, 11\ns_add_u32 s7, s7, s8")
    b(f"v_lshlrev_b32 v{vX2}, 9, v250\nv_lshl_add_u32 v{vX2}, v249, 2, v{vX2}\nv_add_u32 v{vX2}, s7, v{vX2}\ns_and_b32 s8, s{sDT}, 4\nv_xor_b32 v{vRX}, s8, v{vX2}")
    for sg in range(1, 4):
        b(f"s_xor_b32 s7, s{sW}, {sg}\ns_mul_i32 s7, s7, 6144\ns_add_u32 s7, s7, {LSCR+(sg-1)*2048}\nv_add_u32 v{vE1+sg-1}, s7, v6")
    b(f"s_mul_i32 s7, s{sW}, 6144\ns_add_u32 s7, s7, {LSCR}\nv_add_u32 v{vE0}, s7, v6")
    b(f"v_lshlrev_b32 v{vSA}, 3, v249\nv_lshl_add_u32 v{vSA}, v250, 2, v{vSA}\ns_lshl_b32 s7, s{sLT}, 8\nv_add_u32 v{vSA}, s7, v{vSA}")
    b(f"v_lshlrev_b32 v{vOUT}, 10, v249\nv_lshl_add_u32 v{vOUT}, v250, 4, v{vOUT}\ns_lshl_b32 s7, s{sLT}, 15\ns_lshl_b32 s8, s{sDT}, 7\ns_add_u32 s7, s7, s8\ns_lshl_b32 s8, s{sW}, 5\ns_add_u32 s7, s7, s8\nv_add_u32 v{vOUT}, s7, v{vOUT}")
    b(f"s_lshl_b32 s5, s{sDT}, 2\ns_add_u32 s5, s5, s{sW}\ns_mul_i32 s5, s5, 57344\ns_add_u32 s{sW2B}, s5, {W2F}")
def setup_p0(b):
    if FG:
        b(f"s_lshr_b32 s5, s{sCT}, 2\ns_lshl_b32 s5, s5, 1\ns_and_b32 s6, s{sW}, 1\ns_add_u32 s5, s5, s6\ns_lshl_b32 s5, s5, 7\ns_add_u32 s{sGS}, s{sGC}, s5")
        b(f"s_lshl_b32 s5, s{sW}, 1\ns_and_b32 s6, s{sLT}, 1\ns_add_u32 s5, s5, s6\ns_lshl_b32 s5, s5, 7\ns_add_u32 s{sGP}, s{sGC}, s5")
    else: b(f"s_mov_b32 s{sGP}, s{sGC}")
    b(f"@{{\ns_cmp_ge_u32 s{sCPI}, 128\ns_cselect_b64 s[{sEXW}:{sEXW+1}], -1, 0\n@}}")
    b("v_lshrrev_b32 v254, 5, v1")
    b("s_and_b32 s5, s95, 3\nv_and_b32 v5, 1, v61\nv_xor_b32 v209, s5, v5\nv_xor_b32 v210, 2, v209")
    b("v_lshlrev_b32 v5, 3, v254\nv_bfe_u32 v6, v1, 2, 2\nv_add_u32 v5, v5, v6\nv_lshlrev_b32 v5, 7, v5\nv_and_b32 v62, 3, v1\nv_lshl_add_u32 v5, v62, 3, v5\nv_add_u32 v5, s9, v5")
    b("v_lshl_add_u32 v209, v209, 5, v5\nv_lshl_add_u32 v210, v210, 5, v5")
    b(f"s_lshl_b32 s99, s94, 11\ns_add_u32 s99, s99, {W2F}")
    b(f"s_lshl_b32 s11, s4, 16\ns_bfe_u32 s6, s2, 0x10002\ns_lshl_b32 s6, s6, 7\ns_add_u32 s11, s11, s6\ns_and_b32 s6, s2, 3\ns_lshl_b32 s6, s6, 14\ns_add_u32 s11, s11, s6\ns_lshl_b32 s6, s{sW}, 12\ns_add_u32 s11, s11, s6\ns_add_u32 s11, s11, {XP[0]}")
wq = list(dma)
def take(n):
    r = wq[:n]; del wq[:n]; return r
setup_p0(M)
if not TB: setup_dma(M)
M.add(interleave(gen(setup), take(opt("e0", 0)), start=20))
stamp(M, "p0 setup")
M("@vm b1")
stamp(M, "p0 rows")
M("v_swap_b32 v217, v220\nv_swap_b32 v219, v222")
M(f"buffer_store_dwordx4 v[216:219], v207, {WS}, s11 offen sc1 ;@p0s\nbuffer_store_dwordx4 v[220:223], v207, {WS}, s11 offen offset:256 sc1 ;@p0s")
for i in range(4): M(f"v_mov_b32 v{52+i}, 0")
for q in range(4):
    M(f"v_dot2c_f32_bf16 v52, s{sONE}, v{32+q}\nv_dot2c_f32_bf16 v53, v{32+q}, v{32+q}")
    M(f"v_dot2c_f32_bf16 v54, s{sONE}, v{36+q}\nv_dot2c_f32_bf16 v55, v{36+q}, v{36+q}")
for m_ in ["quad_perm:[1,0,3,2]", "quad_perm:[2,3,0,1]", "row_half_mirror", "row_mirror"]:
    for i in range(4): M(f"v_add_f32_dpp v{52+i}, v{52+i}, v{52+i} {m_} row_mask:0xf bank_mask:0xf")
xsum(M, [52, 53, 54, 55], 56, [16, 32])
for r in (52, 54): M(f"v_pk_mul_f32 {v(r,2)}, {v(r,2)}, s[{sINV}:{sINV+1}]")
for r in (52, 54): M(f"v_fma_f32 v{r+1}, -v{r}, v{r}, v{r+1}")
for r in (52, 54): rnd(M, r+1, r+1)
for r in (52, 54): M(f"v_add_f32 v{r+1}, s{sEPS}, v{r+1}")
for r in (52, 54): rnd(M, r+1, r+1)
for r in (52, 54): M(f"v_sqrt_f32 v{r+1}, abs(v{r+1})")
for r in (52, 54): M(f"v_cvt_pk_bf16_f32 v{r}, v{r}, v{r+1}")
M(f"s_lshl_b32 s5, s2, 6\ns_lshl_b32 s6, s{sW}, 4\ns_add_u32 s5, s5, s6\ns_add_u32 s15, s5, {ST0}")
stamp(M, "p0 stats")
nn = lab("nn"); nl = lab("nl"); nb = lab("nb")
M(f"s_waitcnt lgkmcnt(0)\ns_load_dword s{sNON}, s[38:39], 0\nv_mov_b32 v212, v52\nv_mov_b32 v214, v54")
tail.label(nn)
tail(f"s_mov_b32 s10, {SPIN}\nv_mov_b32 v213, 0")
tail.label(nl)
tail("global_load_dword v215, v213, s[38:39] sc1\ns_waitcnt vmcnt(0)")
tail(f"v_readfirstlane_b32 s{sNON}, v215\ns_cmp_lg_u32 s{sNON}, 0\ns_cbranch_scc1 {nb}")
tail(f"s_sleep 2\ns_sub_u32 s10, s10, 1\ns_cmp_lg_u32 s10, 0\ns_cbranch_scc1 {nl}\ns_branch {nb}")
publish = gen(lambda b: (b(f"@{{\ns_waitcnt lgkmcnt(0)\ns_cmp_eq_u32 s{sNON}, 0\ns_cbranch_scc1 {nn}"), b.label(nb), b(f"v_mov_b32 v213, s{sNON}\nv_mov_b32 v215, s{sNON}\n@}}"), b(f"@vm p0s\n@{{\ns_barrier\ns_mov_b64 exec, 1\nbuffer_store_dwordx4 v[212:215], off, {WS}, s15 sc1\ns_mov_b64 exec, -1\n@}}"), stamp(b, "p0 published")))
def w2_relay(b):
    n3 = lab("n3")
    b("@vm b2")
    for mt in range(2):
        for hf in range(2): b(f"ds_read_b64_tr_b16 {v(224+4*mt+2*hf,2)}, v{209+mt} offset:{hf*512} ;@w2r")
    b(f"@lg w2r\n@{{\ns_cmp_ge_u32 s2, 224\ns_cbranch_scc1 {n3}")
    b(f"buffer_store_dwordx4 v[224:227], v2, {WS}, s99 offen sc1 ;@!\nbuffer_store_dwordx4 v[228:231], v2, {WS}, s99 offen offset:1024 sc1 ;@!")
    b.label(n3); b("@}")
def kgen(Kg):
    Kg(f"s_lshl_b32 s{sDK}, s13, 16\ns_and_b32 s{sDK+1}, s13, s{sMSK}")
    Kg(f"@{{\ns_lshl_b32 s5, s12, 16\ns_and_b32 s6, s12, s{sMSK}\ns_cmp_ge_u32 s{sW}, 2\ns_cselect_b32 s5, s6, s5\n@}}")
    L2E = f"{f2u(LOG2E):#x}"
    VAL = lambda row: 110 + 2*row if row < 45 else 62 + 2*(row - 45)
    Kg(f"v_mov_b32 v5, s5\nv_mul_f32 v5, {L2E}, v5\nv_exp_f32 v5, v5")
    for i in range(4): Kg(f"v_lshlrev_b32 v{48+i}, 16, v{48+i}")
    Kg(f"v_mul_f32 v48, {L2E}, v48\nv_exp_f32 v48, v48")
    Kg(f"s_mul_i32 s5, s{sW}, {ES}")
    Kg("v_lshlrev_b32 v98, 2, v1\nv_add_u32 v98, s5, v98")
    rnd(Kg, 5, 5); rnd(Kg, 48, 48)
    Kg(f"v_mul_f32 v49, v49, v5\nv_mul_f32 v48, v48, v5\nv_mul_f32 v49, 0.15915494, v49\nv_mul_f32 v48, s{sNL2E}, v48")
    Kg(f"v_add_f32 v5, v5, v5\nv_mul_f32 v{VAL(0)}, v50, v5\nv_mul_f32 v{VAL(0)+1}, v51, v5")
    E1, E8, E128, E1K = VAL(17), 34, VAL(24), VAL(48)
    PS = [(E1, 1.0), (E8, 8.0), (E128, 128.0), (E1K, 1024.0)]
    for k, (dst, p) in enumerate(PS): Kg(f"v_mul_f32 v{52+k}, {f2u(p):#x}, v48\nv_mul_f32 v{56+k}, {f2u(p):#x}, v49")
    for k, (dst, p) in enumerate(PS): Kg(f"v_exp_f32 v{52+k}, v{52+k}\nv_fract_f32 v{56+k}, v{56+k}")
    for k, (dst, p) in enumerate(PS): Kg(f"v_cos_f32 v{dst}, v{56+k}\nv_sin_f32 v{dst+1}, v{56+k}")
    Kg("v_mul_u32_u24 v99, 272, v60\nv_lshl_add_u32 v99, v61, 4, v99\nv_add_u32 v99, s5, v99")
    Kg(f"v_mov_b32 v{VAL(16)}, 1.0\nv_mov_b32 v{VAL(16)+1}, 0")
    for k, (dst, p) in enumerate(PS): Kg(f"v_mul_f32 v{dst}, v{dst}, v{52+k}\nv_mul_f32 v{dst+1}, v{dst+1}, v{52+k}")
    e16, e32, e64 = 36, 38, 32
    V = VAL
    levels = [
        [(V(1), V(0), E8), (V(18), E1, E1), (V(32), E128, E128), (e16, E8, E8), (V(56), E1K, E1K), (V(25), E1, E128), (V(49), E1K, E128)],
        [(e32, e16, e16), (V(20), V(18), V(18)), (V(40), V(32), V(32)), (V(2), V(0), e16), (V(3), V(1), e16), (V(19), V(18), E1), (V(36), V(32), E128),
         (V(26), V(18), E128), (V(50), E1K, V(32)), (V(33), V(32), V(18))],
        [(e64, e32, e32), (V(4), V(0), e32), (V(5), V(1), e32), (V(6), V(2), e32), (V(7), V(3), e32), (V(21), V(20), E1), (V(22), V(20), V(18)), (V(23), V(20), V(19)),
         (V(42), V(40), E128), (V(44), V(40), V(32)), (V(46), V(40), V(36)), (V(27), V(19), E128), (V(28), V(20), E128), (V(51), E1K, V(36)), (V(52), E1K, V(40)),
         (V(34), V(32), V(20)), (V(37), V(36), V(18)), (V(38), V(36), V(20)), (V(41), V(40), V(20))],
        [(V(8 + i), V(i), e64) for i in range(8)] +
        [(V(29), V(21), E128), (V(30), V(22), E128), (V(31), V(23), E128), (V(35), V(32), V(22)), (V(39), V(36), V(22)),
         (V(43), V(42), V(20)), (V(45), V(44), V(20)), (V(47), V(46), V(20)), (V(53), E1K, V(42)), (V(54), E1K, V(44)), (V(55), E1K, V(46))],
    ]
    row_of = {VAL(r): r for r in range(57)}
    pend = [0, 16, 17, 24, 48]; written = []
    rot = [0]
    def puts(rows):
        g = []
        for r in rows:
            t = 86 + rot[0] % 12; rot[0] += 1
            g.append((f"    v_cvt_pk_bf16_f32 v{t}, v{VAL(r)}, {'-' if r < 16 else ''}v{VAL(r)+1}", f"    ds_write_b32 v98, v{t} offset:{r*272}"))
            written.append(r)
        out = []
        for k in range(len(g) + 1):
            out.append(([g[k][0]] if k < len(g) else []) + ([g[k-1][1]] if k > 0 else []))
        return out
    for lv in levels:
        t = Buf()
        for d_, x_, y_ in lv: t(f"v_pk_mul_f32 {v(d_,2)}, {v(x_,2)}, {v(y_,2)} op_sel_hi:[1,0]")
        for d_, x_, y_ in lv: t(f"v_pk_fma_f32 {v(d_,2)}, {v(x_,2)}, {v(y_,2)}, {v(d_,2)} op_sel:[1,1,0] op_sel_hi:[0,1,1] neg_lo:[1,0,0]")
        Kg.add(interleave(t.l, puts(pend)))
        pend = [row_of[d_] for d_, _, _ in lv if d_ in row_of]
    Kg.add(flat(puts(pend)))
    assert sorted(written) == list(range(57))
    LOF, HF, GD = 110, 126, 62
    Kg("s_waitcnt lgkmcnt(0)")
    for s_ in range(4):
        Kg(f"ds_read_b128 {v(LOF+4*s_,4)}, v99 offset:{s_*64} ;@kf{s_}")
        for T in range(3): Kg(f"ds_read_b128 {v(HF+16*T+4*s_,4)}, v99 offset:{(16+16*T)*272+s_*64} ;@kf{s_}")
    Kg(f"s_mul_i32 s5, s{sW}, 3072\ns_add_u32 s5, s5, {LGT}")
    Kg("v_lshlrev_b32 v5, 2, v60\nv_lshl_add_u32 v5, v61, 8, v5\nv_add_u32 v5, s5, v5")
    for s_ in range(4):
        Kg(f"@lg kf{s_}")
        for T in range(3): Kg(f"v_mfma_f32_16x16x32_bf16 {v(GD+4*T,4)}, {v(HF+16*T+4*s_,4)}, {v(LOF+4*s_,4)}, {'0' if s_ == 0 else v(GD+4*T,4)}")
    for T in range(3):
        for r in range(0, 4, 2): Kg(f"ds_write2_b32 v5, v{GD+4*T+r}, v{GD+4*T+r+1} offset0:{r*16} offset1:{r*16+16}") if T == 0 else None
        if T:
            for r in range(4): Kg(f"ds_write_b32 v5, v{GD+4*T+r} offset:{(T*16+r)*64}")
M("@vm par,tb")
kl = gen(kgen)
PUB = opt("pub", 110)
cpl = ["    v_add_u32 v200, s90, v2", "    global_load_dwordx4 v[200:203], v200, s[42:43]"] if opt("cp0", 0) == 1 else []
W2E = opt("w2e", 0)
if W2E:
    publish = [l.replace("@vm p0s", "s_waitcnt vmcnt(0)") for l in publish]
    kl = interleave(kl, [publish + cpl], start=PUB, every=1)
    kl = gen(w2_relay) + kl
else: kl = interleave(kl, [publish + cpl + gen(w2_relay)], start=PUB, every=1)
M.add(interleave(kl, take(11 - opt("e0", 0)), start=opt("e1", 4)))
stamp(M, "kgen core")
M(f"s_mov_b32 s{sO}, {ST0}\nbuffer_load_dwordx4 v[232:235], v{vCS}, {WS}, s{sO} offen sc1 ;@cin\nbuffer_load_dwordx4 v[236:239], v{vCS}, {WS}, s{sO} offen offset:16 sc1 ;@cin")
M(f"s_mov_b32 s{sO}, {ST0+8192}\nbuffer_load_dwordx4 v[240:243], v{vCS}, {WS}, s{sO} offen sc1 ;@cin\nbuffer_load_dwordx4 v[244:247], v{vCS}, {WS}, s{sO} offen offset:16 sc1 ;@cin")
M("s_waitcnt lgkmcnt(0)\ns_barrier")
for c in range(2):
    for k in range(9): M(f"ds_read2st64_b32 {v(110+c*18+2*k,2)}, v{IDX+k} offset0:{24*c} offset1:{24*c+12} ;@g{c}")
M(f"v_bfe_u32 v5, v0, 4, 1\nv_mul_u32_u24 v5, {PKS}, v5\nv_lshl_add_u32 v5, v60, 2, v5\nv_add_u32 v5, {LPK}, v5\nv_mov_b32 v6, 0")
M("ds_write_b32 v5, v6")
M(f"v_lshlrev_b32 v5, 5, v0\nv_add_u32 v5, {LPK+64}, v5")
M("v_cmp_eq_u32 vcc, 0, v0")
for c in range(2):
    M(f"@lg g{c}")
    for k in range(9):
        r = 110 + c*18 + 2*k
        M(f"v_add_f32 v{r}, v{r}, v{r+1}")
    M(f"v_cndmask_b32 v{110+c*18}, v{110+c*18}, v6, vcc")
    for k in range(8): M(f"v_cvt_pk_bf16_f32 v{72+c*8+k}, v{110+c*18+2*(k+1)}, v{110+c*18+2*k}")
    M(f"ds_write_b128 v5, {v(72+c*8,4)} offset:{c*PKS}\nds_write_b128 v5, {v(76+c*8,4)} offset:{c*PKS+16}")
T0, U0, ACC = 32, 160, 224
BASE, RV, CST, UPK = 224, 232, 232, 240
def conv_stats(b, layer, half):
    b(f"s_mov_b32 s{sO}, {(ST2 if layer else ST0) + half*8192}")
    b(f"buffer_load_dwordx4 {v(CST,4)}, v{vCS}, {WS}, s{sO} offen sc1 ;@cin\nbuffer_load_dwordx4 {v(CST+4,4)}, v{vCS}, {WS}, s{sO} offen offset:16 sc1 ;@cin")
def conv_x(b, layer, half):
    b(f"s_mov_b32 s{sO}, {XP[2*layer] + half*0x100000}\nbuffer_load_dwordx4 v[248:251], v{vCX}, {WS}, s{sO} offen sc1 ;@cin")
def conv_inputs(b, layer, half):
    conv_x(b, layer, half); conv_stats(b, layer, half)
def gcheck(b):
    slow = lab("gs"); back = lab("gb"); lp = lab("gl")
    def chk(o):
        for k in range(8): o(f"v_xor_b32 v{160+k}, s{sNON}, v{CST+2*k+1}")
        o("v_or3_b32 v160, v160, v161, v162\nv_or3_b32 v163, v163, v164, v165\nv_or3_b32 v160, v160, v166, v167\nv_or_b32 v160, v160, v163\nv_cmp_ne_u32 vcc, 0, v160")
    b("@vm cin\n@{")
    chk(b); b(f"s_cbranch_vccnz {slow}"); b.label(back); b("@}")
    for k in range(4): b(f"v_mov_b32 v{252+k}, v{CST+8+2*k}")
    tail.label(slow); tail(f"s_mov_b32 s10, {SPIN}\ns_mov_b32 s11, {ST0}\ns_mov_b32 s5, {ST0+8192}")
    tail.label(lp)
    for k in range(4): tail(f"buffer_load_dwordx4 {v(CST+4*k,4)}, v{vCS}, {WS}, s{5 if k >= 2 else 11} offen offset:{16*(k&1)} sc1")
    tail("s_waitcnt vmcnt(0)")
    chk(tail); tail(f"s_cbranch_vccz {back}")
    tail(f"s_sub_u32 s10, s10, 1\ns_cmp_lg_u32 s10, 0\ns_cbranch_scc1 {lp}\ns_branch {back}")
def t_loads(b, js):
    for j in js:
        if j: b(f"v_add_u32 v5, {1024*j}, v{vTB}")
        ad = 5 if j else vTB
        for t in range(4):
            r = T0 + (j*4 + t)*4
            b(f"ds_read2_b32 {v(r,2)}, v{ad} offset0:{32*t+6} offset1:{32*t+4} ;@T\nds_read2_b32 {v(r+2,2)}, v{ad} offset0:{32*t+2} offset1:{32*t} ;@T")
def t_groups(ta=188):
    g = []
    for k in range(32):
        j, t = k >> 2, k & 3
        r = T0 + 4*k
        grp = [f"    v_add_u32 v{ta}, {1024*j}, v{vTB}"] if t == 0 else []
        grp += [f"    ds_read2_b32 {v(r,2)}, v{ta} offset0:{32*t+6} offset1:{32*t+4} ;@T", f"    ds_read2_b32 {v(r+2,2)}, v{ta} offset0:{32*t+2} offset1:{32*t} ;@T"]
        g.append(grp)
    return g
def u_pad(b):
    b(f"v_subrev_u32 v5, {LEX}, v{vEW}\nv_and_b32 v5, 0x3f0, v5\nv_lshrrev_b32 v5, 1, v5\nv_add_u32 v5, {LU}, v5\nv_mov_b32 v{UPK}, 0\nv_mov_b32 v{UPK+1}, 0")
    b(f"ds_write_b64 v5, {v(UPK,2)}\nds_write_b64 v5, {v(UPK,2)} offset:{US}")
def conv_half(b, layer, half, bg=[], pre_barrier=None, after_ln=None, after_mfma=None, tailbg=[], pre_barrier2=None):
    X = 248
    MN, RI, DD = 192, 196, 176
    b("@vm cin")
    stamp(b, f"L{layer} conv{half} loaded")
    if layer == 0:
        G = (lambda i: 252 + i) if half else (lambda i: CST + 2*i)
        for i in range(4): b(f"v_and_b32 v{RI+i}, s{sMSK}, v{G(i)}")
        for i in range(4): b(f"v_rcp_f32 v{RI+i}, v{RI+i}")
        for i in range(4): b(f"v_lshlrev_b32 v{MN+i}, 16, v{G(i)}")
    else:
        for i in range(4): b(f"v_pk_mul_f32 {v(CST+2*i,2)}, {v(CST+2*i,2)}, s[{sINV}:{sINV+1}]")
        for i in range(4): b(f"v_fma_f32 v{RI+i}, -v{CST+2*i}, v{CST+2*i}, v{CST+2*i+1}")
        for i in range(4): rnd(b, RI+i, RI+i)
        for i in range(4): b(f"v_add_f32 v{RI+i}, s{sEPS}, v{RI+i}")
        for i in range(4): rnd(b, RI+i, RI+i)
        for i in range(4): b(f"v_sqrt_f32 v{RI+i}, abs(v{RI+i})")
        for i in range(4): rnd(b, MN+i, CST+2*i)
        for i in range(4): rnd(b, RI+i, RI+i)
        for i in range(4): b(f"v_rcp_f32 v{RI+i}, v{RI+i}")
    for i in range(4): b(f"v_lshlrev_b32 v{BASE+i}, 16, v{X+i}\nv_and_b32 v{BASE+4+i}, s{sMSK}, v{X+i}")
    for k in range(4): b(f"v_pk_add_f32 {v(DD+2*k,2)}, {v(BASE+2*k,2)}, {v(MN+2*(k&1),2)} neg_lo:[0,1] neg_hi:[0,1]")
    if opt("rd", 1):
        for k in range(8): rnd(b, DD+k, DD+k)
    for k in range(4): b(f"v_pk_mul_f32 {v(DD+2*k,2)}, {v(DD+2*k,2)}, {v(RI+2*(k&1),2)}")
    for k in range(4): b(f"v_cvt_pk_bf16_f32 v{UPK+k}, v{DD+2*k}, v{DD+2*k+1}")
    b(f"ds_write_b64 v{vUW}, {v(UPK,2)} offset:{half*2048}\nds_write_b64 v{vUW}, {v(UPK+2,2)} offset:{US+half*2048}")
    F2 = opt("fine", 0) == 2 and layer == 1
    if F2: stamp(b, f"c{half} ln")
    if pre_barrier: b(pre_barrier)
    b("s_waitcnt lgkmcnt(0)\ns_barrier")
    if F2: stamp(b, f"c{half} bar1")
    if after_ln: after_ln(b)
    def urd(tp, t): return f"    ds_read_b128 {v(U0+(tp*4+t)*4,4)}, v{vUR} offset:{512 + 512*(tp+4*half) - 64*t - 32} ;@U{tp}_{t}"
    b.add([urd(0, t) for t in range(4)] + [urd(1, 0), urd(1, 1)])
    later = [urd(tp, t) for tp in range(1, 4) for t in range(4)][2:]
    fill = []
    for k in range(4):
        c = k >> 1
        fill += [f"    v_lshlrev_b32 v{RV+2*k}, 16, v{UPK+k}", f"    v_and_b32 v{RV+2*k+1}, s{sMSK}, v{UPK+k}"]
    for k in range(8): fill.append(f"    v_fmac_f32 v{BASE+k}, s{sDK + (k >> 2)}, v{RV+k}")
    ml = []; cnt = 0
    lastidx = {0: 12, 1: 25, 2: 34}
    for tp in range(4):
        for t in range(4):
            ml.append(f"    @lg U{tp}_{t}")
            for r in range(tp, 4):
                acc = ACC + (4*half + r)*4
                cin = "0" if (half == 0 and t == 0 and tp == 0) else ac(acc, 4)
                ml.append(f"    v_mfma_f32_16x16x32_bf16 {ac(acc,4)}, {v(T0+((r-tp)*4+t)*4,4)}, {v(U0+(tp*4+t)*4,4)}, {cin}")
                if later: ml.append(later.pop(0))
                elif fill: ml.append(fill.pop(0))
                for r_ in range(3):
                    if cnt == lastidx[r_] + (5 if r_ < 2 else 5): ml.append(f"    ds_write_b128 v{vEW}, {ac(ACC+(4*half+r_)*4,4)} offset:{r_*4096}")
                cnt += 1
    assert not later and not fill
    ml = interleave(ml, bg, start=2)
    b.add(ml)
    tailbg = list(tailbg)
    if F2: stamp(b, f"c{half} mfma")
    if after_mfma: after_mfma(b)
    if F2: stamp(b, f"c{half} chk")
    b(f"ds_write_b128 v{vEW}, {ac(ACC+(4*half+3)*4,4)} offset:{3*4096}")
    b.add(flat(tailbg[:2]))
    if half == 0: b.add(ab_list()[:GF1])
    if pre_barrier2: b(pre_barrier2)
    b("s_waitcnt lgkmcnt(0)\ns_barrier")
    if F2: stamp(b, f"c{half} bar2")
    for src in range(4): b(f"ds_read_b128 {v(RV+4*src,4)}, v{vER} offset:{src*1024} ;@E{src>>1}")
    b.add(flat(tailbg[2:]))
    if half == 0: b.add(ab_list()[GF1:GF1+GF2])
    b(f"s_mov_b32 s{sO}, {XP[1+2*layer] + half*0x100000}")
    for c in range(2):
        b(f"@lg E{c}")
        for k in range(2): b(f"v_pk_add_f32 {v(RV+8*c+2*k,2)}, {v(RV+8*c+2*k,2)}, {v(RV+8*c+4+2*k,2)}")
        for k in range(2): b(f"v_pk_add_f32 {v(BASE+4*c+2*k,2)}, {v(BASE+4*c+2*k,2)}, {v(RV+8*c+2*k,2)}")
    for i in range(4): b(f"v_cvt_pk_bf16_f32 v{244+i}, v{BASE+i}, v{BASE+4+i}")
    b(f"s_mov_b64 exec, s[{sEXW}:{sEXW+1}]\nv_swap_b32 v244, v245\nv_swap_b32 v246, v247\ns_mov_b64 exec, -1")
    b(f"buffer_store_dwordx4 v[244:247], v{vCX}, {WS}, s{sO} offen sc1 ;@cst")
    stamp(b, f"L{layer} conv{half} stored")
GF1, GF2 = opt("gf1", 5), opt("gf2", 7)
def ab_list():
    prs = sorted([(r, tp) for r in range(4, 8) for tp in range(4)], key=lambda p: (p[0] - p[1] > 3, p))
    out = []; seen = set()
    for grp in (prs[:6], prs[6:]):
        for t in range(4):
            for r, tp in grp:
                acc = ACC + r*4
                cin = ac(acc, 4) if r in seen else "0"
                seen.add(r)
                out.append(f"    v_mfma_f32_16x16x32_bf16 {ac(acc,4)}, {v(T0+((r-tp)*4+t)*4,4)}, {v(U0+(tp*4+t)*4,4)}, {cin}")
    return out
def conv_ab(b):
    b("@lg T")
    b.add(ab_list()[GF1+GF2:])
def colsum(b):
    wa_regs(b)
    b(f"@{{\ns_lshr_b32 s6, s{sW}, 1\ns_mul_i32 s6, s6, {256*224}\ns_lshl_b32 s5, s{sW}, 6\ns_cmp_eq_u32 s{sW}, 3\ns_cselect_b32 s5, 0, s5\ns_cselect_b64 vcc, -1, 0\ns_sub_u32 s5, s5, s6\n@}}")
    b(f"v_cndmask_b32 v248, v{vWA}, v253, vcc\nv_cndmask_b32 v249, v252, v253, vcc\nv_add_u32 v248, s5, v248\nv_add_u32 v249, s5, v249\nv_add_u32 v250, {256*224}, v248\nv_add_u32 v251, {256*224}, v249")
    for i in range(4): b(f"v_mov_b32 v{240+i}, s{sONE}")
    def rd(ks):
        for f2 in range(2):
            for hf in range(2):
                b(f"ds_read_b64_tr_b16 {v(96+(f2*8+ks%8)*4+2*hf,2)}, v{248 + f2 + 2*(ks//8)} offset:{(32*(ks%8)+16*hf)*224} ;@c{ks}")
    for ks in range(3): rd(ks)
    for ks in range(16):
        if ks + 3 < 16: rd(ks + 3)
        b(f"@lg c{ks}")
        for f2 in range(2):
            b(f"v_mfma_f32_16x16x32_bf16 {v(232+4*f2,4)}, {v(96+(f2*8+ks%8)*4,4)}, v[240:243], {'0' if ks == 0 else v(232+4*f2,4)}")
    b(f"s_lshl_b32 s5, s{sW}, 7\nv_add_u32 v5, s5, v{vCSA}")
    b("ds_write_b128 v5, v[232:235] ;@cs\nds_write_b128 v5, v[236:239] offset:64 ;@cs")

WB, SS, KA, SA = 160, 216, 224, 224
def g1_loads(layer, half):
    g = []
    X0 = 32 + 64 * half
    for ks in range(8):
        for n_, (dst, off) in enumerate([(0, 0), (4, 256), (2, 2048), (6, 2304)]):
            grp = []
            if n_ == 0: grp.append(f"    s_mov_b32 s{sB0}, {XP[1+2*layer] + half*0x100000 + ks*4096}")
            grp.append(f"    buffer_load_dwordx2 {v(X0+8*ks+dst,2)}, v{vGX}, {WS}, s{sB0} offen offset:{off} sc1 ;@x{ks}")
            g.append(grp)
    return g
def wread(b, ks, ft, hfs=(0, 1)):
    r = WB + (ks & 1) * 28 + ft * 4
    for hf in hfs:
        ad, off = (253, 0) if ft == 6 else ((252 if ft & 1 else vWA), (ft >> 1) * 64)
        b(f"ds_read_b64_tr_b16 {v(r+2*hf,2)}, v{ad} offset:{(32*ks+16*hf)*224 + off} ;@w{ks}_{ft}")
def wa_regs(b):
    b(f"v_xor_b32 v252, 32, v{vWA}\nv_and_b32 v253, 32, v{vWA}\nv_mul_u32_u24 v253, 6, v253\nv_sub_u32 v253, v{vWA}, v253\nv_add_u32 v253, 384, v253")
def g1_pre(b):
    wa_regs(b)
    for ft in range(7): wread(b, 0, ft)
def g1_loop(b, half, bg, hooks={}, slots=None):
    X0 = 32 + 64 * half
    bg = list(bg)
    if slots is None: slots = (0, 2, 4, 6) if len(bg) <= 32 else (0, 1, 3, 4, 6)
    def swaps(ks):
        x = X0 + 8 * ks
        b(f"@vm x{ks}\nv_swap_b32 v{x+1}, v{x+4}\nv_swap_b32 v{x+3}, v{x+6}")
    swaps(0)
    for ks in range(8):
        x = X0 + 8 * ks
        if opt("fine", 0) == 3 and len(STAMPS) > 25: stamp(b, f"g1{half} k{ks}")
        if ks in hooks: hooks[ks](b)
        if ks == 7:
            for ft in range(7):
                r = WB + 28 + ft * 4
                if ft in (0, 4): b(f"@lg w{ks}_{3 if ft == 0 else 6}")
                b(f"v_mfma_f32_16x16x32_bf16 {ac(SA+4*ft,4)}, {v(r,4)}, {v(x+4,4)}, {ac(SA+4*ft,4)}")
                b(f"ds_read_b128 {v(160+4*ft,4)}, v{vCSA} offset:{ft*64}")
                if ft < 4 and opt("ms", 1): b(f"v_mov_b32 v{220+ft}, 0x3e803e80")
                if ft in slots and bg: b.add(bg.pop(0))
            for ft in range(7):
                r = WB + 28 + ft * 4
                b(f"v_mfma_f32_16x16x32_bf16 {v(KA+4*ft,4)}, {v(r,4)}, {v(x,4)}, {v(KA+4*ft,4)}")
                if ft % 2 == 0 and ft // 2 < NW0: b(f"ds_write_b128 v{vXW}, {ac(SA+4*(ft//2),4)} offset:{(ft//2)*1024}")
            continue
        for ft in range(7):
            r = WB + (ks & 1) * 28 + ft * 4
            if ft in (0, 4): b(f"@lg w{ks}_{3 if ft == 0 else 6}")
            b(f"v_mfma_f32_16x16x32_bf16 {ac(SA+4*ft,4)}, {v(r,4)}, {v(x+4,4)}, {'0' if ks == 0 else ac(SA+4*ft,4)}")
            wread(b, ks + 1, ft, (0,))
            if ft in slots and bg: b.add(bg.pop(0))
            b(f"v_mfma_f32_16x16x32_bf16 {v(KA+4*ft,4)}, {v(r,4)}, {v(x,4)}, {'0' if ks == 0 else v(KA+4*ft,4)}")
            wread(b, ks + 1, ft, (1,))
            if ft == 5: swaps(ks + 1)
    assert not bg
NW0 = opt("nw0", 2)
RC, CSR = 188, 160
MS = opt("ms", 1)
def g1_post1m(b, half, bg=[], chk=None, bg2=[]):
    X0 = 32 + 64 * half
    m = Buf(); d = Buf()
    for ks in range(8):
        for j in range(2):
            m(f"v_mfma_f32_16x16x32_bf16 {v(188+4*j,4)}, v[220:223], {v(X0+8*ks+4*j,4)}, {'0' if ks == 0 else v(188+4*j,4)}")
    wr = [[f"    ds_write_b128 v{vXW}, {ac(SA+4*ft,4)} offset:{ft*1024}"] for ft in range(NW0, 7)]
    nb = min(len(bg), opt("msb", 4))
    b.add(interleave(interleave(m.l, wr, start=1, every=3), bg[:nb], start=2))
    for ks in range(8):
        x = X0 + 8 * ks
        for q in range(4):
            o = 4 * (q & 1)
            if ks == 0 and q < 2: d(f"v_dot2_f32_bf16 v{SS+o+1}, v{x+q}, v{x+q}, 0\nv_dot2_f32_bf16 v{SS+o+3}, v{x+4+q}, v{x+4+q}, 0")
            else: d(f"v_dot2c_f32_bf16 v{SS+o+1}, v{x+q}, v{x+q}\nv_dot2c_f32_bf16 v{SS+o+3}, v{x+4+q}, v{x+4+q}")
    b.add(interleave(d.l, bg[nb:]))
    b(f"v_permlane32_swap_b32 v188, v192\nv_add_f32 v{SS+1}, v{SS+1}, v{SS+5}\nv_add_f32 v{SS+3}, v{SS+3}, v{SS+7}\nv_add_f32 v{SS}, v188, v192")
    b(f"v_permlane32_swap_b32 v{SS+1}, v{SS+3}\nv_add_f32 v{SS+1}, v{SS+1}, v{SS+3}")
    b(f"v_permlane16_swap_b32 v{SS}, v{SS+1}\nv_add_f32 v{SS}, v{SS}, v{SS+1}\nds_write_b32 v{vSW}, v{SS}")
    b("s_waitcnt lgkmcnt(0)\ns_barrier")
    b(f"ds_read2_b32 {v(SS,2)}, v{vSR} offset0:0 offset1:16 ;@s\nds_read2_b32 {v(SS+2,2)}, v{vSR} offset0:32 offset1:48 ;@s")
    for ft in range(7): b(f"ds_read_b128 {v(RC+4*ft,4)}, v{vXR} offset:{ft*1024} ;@r{ft}")
    chk(b)
    b.add(flat(bg2))
def g1_post1(b, half, bg=[], chk=None, bg2=[]):
    if MS: return g1_post1m(b, half, bg, chk, bg2)
    X0 = 32 + 64 * half
    d = Buf()
    for ks in range(8):
        x = X0 + 8 * ks
        for q in range(4):
            o = 4 * (q & 1)
            if ks == 0 and q < 2:
                d(f"v_dot2_f32_bf16 v{SS+o}, s{sONE}, v{x+q}, 0\nv_dot2_f32_bf16 v{SS+o+1}, v{x+q}, v{x+q}, 0")
                d(f"v_dot2_f32_bf16 v{SS+o+2}, s{sONE}, v{x+4+q}, 0\nv_dot2_f32_bf16 v{SS+o+3}, v{x+4+q}, v{x+4+q}, 0")
                continue
            d(f"v_dot2c_f32_bf16 v{SS+o}, s{sONE}, v{x+q}\nv_dot2c_f32_bf16 v{SS+o+1}, v{x+q}, v{x+q}")
            d(f"v_dot2c_f32_bf16 v{SS+o+2}, s{sONE}, v{x+4+q}\nv_dot2c_f32_bf16 v{SS+o+3}, v{x+4+q}, v{x+4+q}")
    wr = [[f"    ds_write_b128 v{vXW}, {ac(SA+4*ft,4)} offset:{ft*1024}"] for ft in range(NW0, 7)]
    dl = interleave(d.l, wr, start=8, every=24)
    cut = opt("cut", 140)
    b.add(interleave(dl[:cut], bg, start=4))
    chk(b)
    b.add(interleave(dl[cut:], bg2))
    if opt("fine", 0) == 2: stamp(b, f"p{len(STAMPS)} dots")
    b(f"v_pk_add_f32 {v(SS+2,2)}, {v(SS+2,2)}, {v(SS+6,2)}\nv_pk_add_f32 {v(SS,2)}, {v(SS,2)}, {v(SS+4,2)}")
    b(f"v_permlane32_swap_b32 v{SS}, v{SS+2}\nv_permlane32_swap_b32 v{SS+1}, v{SS+3}\nv_pk_add_f32 {v(SS,2)}, {v(SS,2)}, {v(SS+2,2)}")
    b(f"v_permlane16_swap_b32 v{SS}, v{SS+1}\nv_add_f32 v{SS}, v{SS}, v{SS+1}\nds_write_b32 v{vSW}, v{SS}")
    b("s_waitcnt lgkmcnt(0)\ns_barrier")
    b(f"ds_read2_b32 {v(SS,2)}, v{vSR} offset0:0 offset1:16 ;@s\nds_read2_b32 {v(SS+2,2)}, v{vSR} offset0:32 offset1:48 ;@s")
    for ft in range(7): b(f"ds_read_b128 {v(RC+4*ft,4)}, v{vXR} offset:{ft*1024} ;@r{ft}")
def g1_post2(b, layer, half):
    b("@lg s")
    b(f"v_pk_add_f32 {v(SS,2)}, {v(SS,2)}, {v(SS+2,2)}")
    mn, sd, c2 = SS, SS+1, SS+2
    st = Buf()
    st(f"v_pk_mul_f32 {v(SS,2)}, {v(SS,2)}, s[{sINV}:{sINV+1}]\nv_fma_f32 v{sd}, -v{mn}, v{mn}, v{sd}")
    rnd(st, sd, sd); rnd(st, mn, mn)
    st(f"v_add_f32 v{sd}, s{sEPS}, v{sd}"); rnd(st, sd, sd)
    st(f"v_sqrt_f32 v{sd}, abs(v{sd})"); rnd(st, sd, sd)
    st(f"v_rcp_f32 v{c2}, v{sd}\nv_mul_f32 v{c2}, s{sNL2E}, v{c2}")
    adds = []
    for ft in range(7):
        t = RC + 4*ft
        adds.append([f"    @lg r{ft}"] + [f"    v_pk_add_f32 {v(t+2*k,2)}, {v(t+2*k,2)}, {v(KA+4*ft+2*k,2)}" for k in range(2)])
    b.add(interleave(st.l, adds, start=1, every=1))
    if opt("fine", 0) == 2: stamp(b, f"p{len(STAMPS)} stats")
    silu_part(b, 0, SPL[0])
def silu_part(b, k0, k1):
    mn, c2 = SS, SS + 2
    K = range(k0, k1); R = range(2*k0, 2*k1)
    for k in K: b(f"v_pk_fma_f32 {v(RC+2*k,2)}, {v(CSR+2*k,2)}, {v(mn,2)}, {v(RC+2*k,2)} op_sel_hi:[1,0,1] neg_lo:[0,1,0] neg_hi:[0,1,0]")
    for k in K: b(f"v_pk_mul_f32 {v(CSR+2*k,2)}, {v(RC+2*k,2)}, {v(c2,2)} op_sel_hi:[1,0]")
    for r in R: b(f"v_exp_f32 v{CSR+r}, v{CSR+r}")
    for k in K: b(f"v_pk_fma_f32 {v(CSR+2*k,2)}, {v(CSR+2*k,2)}, {v(mn,2)}, {v(mn,2)} op_sel:[0,1,1] op_sel_hi:[1,1,1]")
    for r in R: b(f"v_rcp_f32 v{CSR+r}, v{CSR+r}")
    for k in K: b(f"v_pk_mul_f32 {v(CSR+2*k,2)}, {v(CSR+2*k,2)}, {v(RC+2*k,2)}")
    for k in K:
        ft = k >> 1
        b(f"v_cvt_pk_bf16_f32 v{KA + 8*(ft >> 1) + 2*(ft & 1) + (k & 1)}, v{CSR+2*k}, v{CSR+2*k+1}")
    for pr in range(3):
        if k0 <= 4*pr < k1:
            p = KA + 8*pr
            b(f"v_permlane16_swap_b32 v{p}, v{p+2}\nv_permlane16_swap_b32 v{p+1}, v{p+3}")
SPL = {0: [14], 1: [8, 14], 2: [8, 12, 14], 3: [4, 8, 12, 14], 4: [4, 8, 14], 5: [12, 14]}[opt("sp", 2)]
def g1_store(b, layer, half, pre=None):
    hb = HB[layer] + half * 32 * HT
    b(f"s_mov_b32 s{sO}, {hb}\ns_mov_b32 s5, {hb + 4096}")
    done = 0
    for n_, k1 in enumerate(SPL):
        if n_: silu_part(b, SPL[n_-1], k1)
        if k1 == 14 and pre: pre(b)
        while done < 3 and 4*done + 4 <= k1:
            b(f"buffer_store_dwordx4 {v(KA+8*done,4)}, v{vH4}, {WS}, s{sO if done < 2 else 5} offen offset:{(done&1)*2048} sc1 ;@hst")
            done += 1
    b(f"buffer_store_dwordx2 {v(KA+24,2)}, v{vH2}, {WS}, s5 offen offset:2048 sc1 ;@hst")

H0, C2, RS = 32, 192, 184
def g2_loads(layer, half):
    g = []
    for ks in range(28):
        grp = []
        if ks % 4 == 0: grp.append(f"    s_mov_b32 s{sB0}, {HB[layer] + half*32*HT + ks*1024}")
        grp.append(f"    buffer_load_dwordx4 {v(H0+4*ks,4)}, v{vHL}, {WS}, s{sB0} offen offset:{(ks%4)*1024} sc1 ;@h{half}_{ks}")
        g.append(grp)
    return g
def w2_loads():
    g = []
    for i in range(56):
        grp = []
        if i % 4 == 0: grp.append(f"    s_add_u32 s{sB1}, s{sW2B}, {(i//4)*4096}")
        grp.append(f"    buffer_load_dwordx4 {ac(4*i,4)}, v6, {WS}, s{sB1} offen offset:{(i%4)*1024} sc1 ;@a{i//2}")
        g.append(grp)
    return g
def g2_res(layer, half):
    RS = 144 if half == 0 else 184
    g = [[f"    s_mov_b32 s{sO}, {XP[1+2*layer] + half*0x100000}"] +
         [f"    buffer_load_dword v{RS+k}, v{vRX}, {WS}, s{sO} offen offset:{(k>>1)*1024 + (k&1)*256} sc1 ;@res" for k in range(4)]]
    return g
def g2_loop(b, half, bg, hooks={}, tg=None, nm=None, late=[]):
    bg = list(bg); late = list(late)
    if tg: b.add(flat(tg[28:]))
    LAG = opt("lag", 8)
    def mf(ks, mt):
        b(f"v_mfma_f32_32x32x16_bf16 {v(C2+16*mt,16)}, {ac((ks*2+mt)*4,4)}, {v(H0+4*ks,4)}, {'0' if ks == 0 else v(C2+16*mt,16)}")
    for ks in range(28):
        if ks in hooks: hooks[ks](b)
        b(f"@vm h{half}_{ks},a{ks}")
        if nm and ks in (0, 4, 8, 12, 16, 20, 24): stamp(b, f"{nm} k{ks}")
        mf(ks, 1)
        if bg: b.add(bg.pop(0))
        if ks < 28 - LAG:
            mf(ks, 0)
            if tg and ks >= 1: b.add(tg[ks-1])
    if "end" in hooks: hooks["end"](b)
    wr = [f"ds_write_b128 v{vE1+sg-1}, {v(C2+8*sg+4*q,4)} offset:{q*1024}" for sg in (2, 3) for q in range(2)]
    for n_, ks in enumerate(range(28 - LAG, 28)):
        mf(ks, 0)
        if tg: b.add(tg[ks-1])
        if n_ >= 2 and n_ % 2 == 0 or n_ == LAG - 1:
            if wr: b(wr.pop(0))
        if late: b.add(late.pop(0))
    for w_ in wr: b(w_)
    if tg: b.add(["    s_nop 7"] + tg[27])
    assert not bg and not late
def g2_post1(b, half):
    RS = 144 if half == 0 else 184
    b("@vm res")
    for k in range(4): b(f"v_lshlrev_b32 v{224+2*k}, 16, v{RS+k}\nv_and_b32 v{225+2*k}, s{sMSK}, v{RS+k}")
    b(f"ds_write_b128 v{vE1}, {v(C2+8,4)}\nds_write_b128 v{vE1}, {v(C2+12,4)} offset:1024")
    b("s_waitcnt lgkmcnt(0)\ns_barrier")
    for k in range(6): b(f"ds_read_b128 {v(160+4*k,4)}, v{vE0} offset:{k*1024} ;@q{k>>1}")
def g2_post2(b, layer, half):
    for s_ in range(3):
        b(f"@lg q{s_}")
        for k in range(4): b(f"v_pk_add_f32 {v(C2+2*k,2)}, {v(C2+2*k,2)}, {v(160+8*s_+2*k,2)}")
    if opt("ro", 1):
        for r in range(8): rnd(b, C2+r, C2+r)
    for k in range(4): b(f"v_pk_add_f32 {v(C2+2*k,2)}, {v(C2+2*k,2)}, {v(224+2*k,2)}")
    for k in range(4): b(f"v_cvt_pk_bf16_f32 v{240+k}, v{C2+2*k}, v{C2+2*k+1}")
    if layer == 0:
        b(f"@{{\ns_mov_b32 s{sO}, {XP[2] + half*0x100000}")
        for k in range(4):
            b(f"buffer_store_dword v{240+k}, v{vX2}, {WS}, s{sO} offen offset:{(k>>1)*1024 + (k&1)*256} sc1 ;@xst")
        b("@}\nv_mov_b32 v244, 0\nv_mov_b32 v245, 0")
        for k in range(4): b(f"v_dot2c_f32_bf16 v244, s{sONE}, v{240+k}\nv_dot2c_f32_bf16 v245, v{240+k}, v{240+k}")
        b("v_permlane32_swap_b32 v244, v245\nv_add_f32 v244, v244, v245")
        LST = LSCR + 24576
        b(f"v_lshrrev_b32 v246, 2, v6\nv_add_u32 v246, {LST}, v246\ns_lshl_b32 s5, s{sW}, 8\nv_add_u32 v247, s5, v246")
        b("ds_write_b32 v247, v244\ns_waitcnt lgkmcnt(0)\ns_barrier")
        b("ds_read2st64_b32 v[244:245], v246 offset0:0 offset1:1\nds_read2st64_b32 v[246:247], v246 offset0:2 offset1:3")
        b(f"s_mov_b32 s{sO}, {ST2 + half*8192}\ns_waitcnt lgkmcnt(0)\nv_pk_add_f32 v[244:245], v[244:245], v[246:247]\nv_add_f32 v244, v244, v245")
        b(f"@{{\ns_mov_b64 exec, s[{sEXQ}:{sEXQ+1}]\nbuffer_atomic_add_f32 v244, v{vSA}, {WS}, s{sO} offen sc1 ;@xst\ns_mov_b64 exec, -1\n@}}")
    else:
        b("v_permlane32_swap_b32 v240, v242\nv_permlane32_swap_b32 v241, v243")
        b(f"s_mov_b32 s{sO}, {half*0x100000}\nbuffer_store_dwordx4 v[240:243], v{vOUT}, {srd(SOUT)}, s{sO} offen {opt('ofl', 'x').replace('x', '').replace('_', ' ')}")

gcheck(M); conv_x(M, 0, 0)
M(f"v_mov_b32 v{vPL}, v204\nv_mov_b32 v{vSG}, v205")
M("s_waitcnt lgkmcnt(0)\ns_barrier")
stamp(M, "kgen done")
XT, XUP, XPF, HPF, HP2, HUP = opt("xt", 10), opt("xup", 16), opt("xpf", 16), opt("hpf", 14), opt("hp2", 6), opt("hup", 14)
D1, D2, D3, D4, D5 = opt("d1", 6), opt("d2", 6), opt("d3", 5), opt("d4", 8), opt("d5", 6)
M.add(interleave(gen(t_loads, range(4)), take(D1))); u_pad(M)
for layer in range(2):
    L0 = layer == 0
    cA, cB = 4*layer, 4*layer + 1
    xa, xb, ha, hb_ = g1_loads(layer, 0), g1_loads(layer, 1), g2_loads(layer, 0), g2_loads(layer, 1)
    if L0:
        vm_ = take(D2); tg_ = t_groups(5)[16:]
        conv_half(M, layer, 0, bg=[tg_[k] + (vm_[k//2] if (k % 2 == 0 and k//2 < len(vm_)) else []) for k in range(16)])
        conv_x(M, 0, 1)
        s1_ = [l.replace("v5", "v240").replace("v6", "v241") for l in gen(setup_g1)]
        ab = interleave(gen(conv_ab), [gen(sig_all, cA, "cst")], start=opt("abs0", 30), every=1)
        ab = interleave(ab, [s1_[k:k+2] for k in range(0, len(s1_), 2)], start=2)
        M.add(interleave(ab, take(D3), start=1))
    else:
        conv_half(M, layer, 0, pre_barrier="@vm xst", after_ln=lambda b: sig_all(b, 3, "xst", barrier=False))
        ab = gen(conv_ab)
        ev = sorted([(opt("abp", 2), 0, gen(poll_all, 3)), (opt("abc", 40), 1, gen(check, "all", 3) + gen(conv_inputs, 1, 1)), (opt("abs", 52), 2, gen(sig_all, cA, "cst"))])
        pos = 0
        for p_, _, g_ in ev:
            M.add(ab[pos:p_]); M.add(g_); pos = p_
        M.add(ab[pos:])
    stamp(M, f"L{layer} conv0 signalled")
    if not L0:
        if opt("lateC", 0):
            conv_half(M, layer, 1, after_mfma=lambda b: poll_all(b, cA))
            g1_pre(M); check(M, "all", cA)
            M.add(flat(xa[:XUP]))
        else:
            conv_half(M, layer, 1, after_ln=lambda b: poll_all(b, cA), after_mfma=lambda b: check(b, "all", cA), tailbg=xa[:XT])
            g1_pre(M)
            M.add(flat(xa[XT:XUP]))
    else:
        assert not wq
        wq += w2_loads()
        sg_ = gen(setup_g2)
        sg_ = sg_[:3] + sg_[-4:] + sg_[3:-4]
        bgs = [sg_[k:k+2] for k in range(0, len(sg_), 2)]
        if W2E:
            wl = take(D4)
            for q, g_ in enumerate(wl): bgs[4 + q * ((len(bgs) - 4) // len(wl))] += g_
        conv_half(M, layer, 1, pre_barrier2="@vm w1", bg=bgs)
        poll_all(M, cA)
        cs_ = gen(colsum); cc = opt("cc", 30)
        M.add(interleave(cs_[:cc], take(D5 if W2E else 0), start=12))
        check(M, "all", cA)
        M.add(interleave(cs_[cc:], xa[:XUP]))
        g1_pre(M)
        M("@lg cs")
    stamp(M, f"L{layer} g1A ready")
    w2 = wq
    def mixw(x_, w_):
        if len(x_) + len(w_) <= 32: return x_ + w_
        x_ = list(x_); w_ = list(w_); o = []
        while x_ or w_:
            for q in range(5):
                src = x_ if (x_ and q < 4) else w_
                if src: o.append(src.pop(0))
                elif x_: o.append(x_.pop(0))
        return o + [[]] * (40 - len(o))
    XP1, HP1 = opt("xp1", 0), opt("hp1", 0)
    g1_loop(M, 0, mixw(xa[XUP:], take(opt("wa", 12))), {(opt("sg00", 0) if L0 else opt("sg0", 2)): lambda b: sig_all(b, cB, "cst")},
            slots=(None if L0 else [(0, 2, 4, 6), (0, 1, 3, 4, 6), (0, 1, 2, 3, 4, 5, 6)][opt("xs", 0)]))
    stamp(M, f"L{layer} g1A loop")
    poll_all(M, cB)
    g1_post1(M, 0, take(opt("wp", 14)), lambda b: check(b, "all", cB), xb[:XP1])
    stamp(M, f"L{layer} g1A post1")
    M.add(interleave(gen(g1_post2, layer, 0), xb[XP1:XPF]))
    g1_store(M, layer, 0, g1_pre)
    stamp(M, f"L{layer} g1A stored")
    if opt("fast", 0) and not L0:
        c1_, c2_ = opt("fc1", 5), opt("fc2", 16)
        n1 = 4 * (8 - c1_)
        g1_loop(M, 1, xb[XPF:] + [[]] * (4*c1_ - (32 - XPF)) + ha[:n1],
                {opt("sg1", 3): lambda b: sig_grp(b, 2*layer, "hst"), c1_ - 1: lambda b: poll_grp(b, 2*layer), c1_: lambda b: check(b, "grp", 2*layer)})
        stamp(M, f"L{layer} g1B loop")
        g1_post1(M, 1, [], lambda b: None, [])
        stamp(M, f"L{layer} g1B post1")
        M.add(interleave(gen(g1_post2, layer, 1), g2_res(layer, 0) + ha[n1:HPF]))
        g1_store(M, layer, 1)
        stamp(M, f"L{layer} g1B stored")
        rest = ha[HPF:]
        n2 = 28 - c2_
        g2_loop(M, 0, rest + [[]] * (c2_ - len(rest)) + hb_[:n2],
                {opt("sg2", 8): lambda b: sig_grp(b, 2*layer+1, "hst"), c2_ - 5: lambda b: poll_grp(b, 2*layer+1), c2_: lambda b: check(b, "grp", 2*layer+1)},
                late=hb_[n2:min(20, n2+8)])
        stamp(M, f"L{layer} g2A loop")
        g2_post1(M, 0); g2_post2(M, layer, 0)
        HP2_ = HUP = min(20, n2 + 8)
    else:
        g1_loop(M, 1, [[]] * opt("xsk", 2) + mixw(xb[XPF:], take(XPF - opt("xsk", 2))), {opt("sg1", 3): lambda b: sig_grp(b, 2*layer, "hst")})
        stamp(M, f"L{layer} g1B loop")
        poll_grp(M, 2*layer)
        g1_post1(M, 1, take(opt("wp", 14)), lambda b: check(b, "grp", 2*layer), ha[:HP1])
        stamp(M, f"L{layer} g1B post1")
        M.add(interleave(gen(g1_post2, layer, 1), g2_res(layer, 0) + ha[HP1:HPF]))
        g1_store(M, layer, 1)
        stamp(M, f"L{layer} g1B stored")
        rest = ha[HPF:]
        if w2:
            mix = []
            while rest or w2:
                mix.append((rest.pop(0) if rest else []) + (w2.pop(0) if w2 else []))
            rest = mix
        HP0 = opt("hp00", 0) if L0 else opt("hp0", 8)
        g2_loop(M, 0, [[]] * opt("hsk", 2) + rest, {opt("sg2", 8): lambda b: sig_grp(b, 2*layer+1, "hst"), (opt("pg2", 18) if HP0 else 27): lambda b: poll_grp(b, 2*layer+1),
                          "end": (lambda b: check(b, "grp", 2*layer+1) if HP0 else None)}, nm=("L1 g2A" if layer and opt("fine", 0) == 1 else None), late=hb_[:HP0])
        stamp(M, f"L{layer} g2A loop")
        if HP0: M.add(interleave(gen(g2_post1, 0) + gen(g2_post2, layer, 0), hb_[HP0:HP0+HP2], end=opt("hpe", 40)))
        else:
            if opt("lateA", 0) and L0:
                g2_post1(M, 0); g2_post2(M, layer, 0); check(M, "grp", 2*layer+1); M.add(flat(hb_[:HP2]))
            else:
                g2_post1(M, 0); check(M, "grp", 2*layer+1)
                M.add(interleave(gen(g2_post2, layer, 0), hb_[:HP2], end=opt("hpe", 30)))
        HP2_ = HP0 + HP2
    if L0 and opt("cpf", 1): M("v_add_u32 v5, s90, v6\nglobal_load_dwordx4 v[252:255], v5, s[42:43]")
    stamp(M, f"L{layer} g2A stored")
    M.add(flat(hb_[HP2_:HUP]))
    if L0:
        g2_loop(M, 1, hb_[HUP:] + g2_res(layer, 1), {opt("sg3", 4): lambda b: sig_all(b, 2, "xst"), 24: lambda b: poll_all(b, 2)}, tg=t_groups())
        stamp(M, f"L{layer} g2B loop")
        g2_post1(M, 1)
        if opt("lateB", 0):
            poll_all(M, 2); g2_post2(M, layer, 1); check(M, "all", 2); conv_inputs(M, 1, 0)
        else:
            check(M, "all", 2); conv_inputs(M, 1, 0)
            g2_post2(M, layer, 1)
        stamp(M, f"L{layer} g2B stored")
        u_pad(M)
    else:
        M("s_barrier")
        g2_loop(M, 1, hb_[HUP:] + g2_res(layer, 1), nm=("L1 g2B" if opt("fine", 0) == 1 else None))
        stamp(M, f"L{layer} g2B loop")
        g2_post1(M, 1); g2_post2(M, layer, 1)
        stamp(M, f"L{layer} g2B stored")
if STAMP:
    M(f"s_cmp_lg_u32 s{sW}, 0\ns_cbranch_scc1 {DONE}")
    M(f"v_mbcnt_lo_u32_b32 v5, -1, 0\nv_mbcnt_hi_u32_b32 v5, -1, v5\nv_lshlrev_b32 v5, 2, v5\ns_lshl_b32 s5, s2, 8\ns_add_u32 s5, s5, {0x1800000 + 0x400000}")
    M(f"buffer_store_dword v7, v5, {WS}, s5 offen")
M.label(DONE)
M("s_endpgm")

a = Asm()
a.kernel(NAME + "_kernel", vgpr=512, sgpr=102, accum=256)
lines = resolve(strip_marks(M.l)) + tail.l + [".Lkend:"]
lines, added = hazard.fix(lines)
import numpy as np
def rbf(j):
    u = np.array([j], dtype=np.float32).view(np.uint32)[0]
    u = (int(u) + 0x7FFF + ((int(u) >> 16) & 1)) & 0xFFFF0000
    return int(np.array([u], dtype=np.uint32).view(np.float32)[0])
def gaddr(j):
    p = rbf(max(j, 0)); e = 0 if p < 256 else 1 if p < 512 else 2 if p < 1024 else 3
    row = 8*e + ((((p >> 7) << 3) | (p & 7)) >> e)
    return LGT + row*64 + ((p >> 3) & 15)*4
def dmaoff(par_, k, lane):
    q = 16*k + (lane >> 2); pair, qq, sub = q // 7, q % 7, lane & 3
    full, half_ = (32, 0) if par_ else (0, 192)
    if qq < 3: return pair*7168 + full + qq*64 + sub*16
    if qq < 6: return pair*7168 + 3584 + full + (qq-3)*64 + (sub ^ 2)*16
    return pair*7168 + (sub >> 1)*3584 + half_ + (sub & 1)*16
if TB:
    it = [gaddr(8*t - 1 + 4*pl + k) for pl in range(2) for t in range(256) for k in range(4)] + [gaddr(8*t + 7) for t in range(256)]
    dt_ = [(dmaoff(p_, 4*pl + k, l_) if 4*pl + k < 7 else 0) for p_ in range(2) for pl in range(2) for l_ in range(64) for k in range(4)]
    for nm_, tb_ in (("idx_table", it), ("dma_table", dt_)):
        lines += [".p2align 6", f".type {nm_},@object", f"{nm_}:"] + [".long " + ", ".join(str(x) for x in tb_[q:q+16]) for q in range(0, len(tb_), 16)] + [f".size {nm_}, {4*len(tb_)}"]
a.lines += lines
print("nops added", added, "lines", len(a.lines), file=sys.stderr)
hdr = "".join(l for l in open(f"cdna_kernels/{NAME}.s.ref").readlines() if l.startswith(";") and "@launch" not in l and "Override" not in l and "grid=ceil" not in l)
a.launches = [f"; @launch grid=(256,1,1) block=(256,1,1) lds={LDS_BYTES}"]
open(OUT, "w").write(a.text(hdr))
json.dump(STAMPS, open("work/" + OUT.split("/")[-1] + ".stamps.json", "w"))
```

```python
import sys, struct, json
sys.path.insert(0, "work")
from asmgen import Asm
import hazard
from sched import resolve, interleave, strip_marks
NAME = "interleave_layers__ssm_conv_s4d__dense_activation_silu__prompt"
STAMP = "--stamp" in sys.argv
OPT = dict(x.lstrip("-").split("=") for x in sys.argv[1:] if x.startswith("--") and "=" in x)
def opt(k, d): return type(d)(OPT.get(k, d))
OUT = [x for x in sys.argv[1:] if not x.startswith("--")]
OUT = OUT[0] if OUT else f"cdna_kernels/{NAME}.s"
def f2u(x): return struct.unpack("<I", struct.pack("<f", x))[0]
LOG2E = 1.4426950408889634
GCNT = 6 * 0x8000
ST0 = 0x80000; ST2 = 0x84000
W2F = 0x100000
W1F = 0x1900000
XP = [0x1700000, 0x300000, 0x500000, 0x700000]
HB = [0x900000, 0x1000000]
WS_BYTES = 0x2000000
HT = 114688
LPK = 114688; PKS = 8256; LCS = 131200; LSCR = 131712
LU = LSCR; US = 4608; LEX = LSCR + 9216
ES = 28672; LGT = LEX
LDS_BYTES = 163840
SWS, SW1, SW2, SOUT = 44, 48, 52, 56
sW, sCPI, sRT, sCT, sLT, sDT, sNON, sGC = 60, 61, 62, 63, 64, 65, 66, 67
sDK, sONE, sMSK, sINV, sEPS, sNL2E = 68, 70, 71, 72, 74, 75
sEXS = 76
sB0, sB1, sO, sW2B, sGS = 78, 79, 80, 81, 82
sSTAMP = 84
sEXQ = 92
sEXW = 100
SPIN = 60000
vOUT, vPL, vSG, vPD, vONE = 0, 1, 2, 3, 4
vCX, vCS, vUW, vUR, vTB, vEW, vER, vGX, vWA, vXW, vXR, vSW, vSR, vCSA, vH4, vH2, vHL, vRX, vX2, vE1, vE0, vSA = \
    8, 9, 10, 11, 12, 13, 14, 15, 16, 17, 18, 19, 20, 21, 22, 23, 24, 25, 26, 27, 30, 31
vDMA = 24

HSC = "sc1" if opt("hsc", 1) else opt("hfl", "")
GFLAG = opt("gflag", 0)
if opt("samehb", 0): HB = [HB[0], HB[0]]
NSH = opt('nsh', 8)
class Buf:
    def __init__(self): self.l = []
    def __call__(self, s):
        for ln in s.strip("\n").split("\n"): self.l.append("    " + ln.strip())
    def label(self, n): self.l.append(n + ":")
    def add(self, lines): self.l += lines
uid = [0]
def lab(b="L"):
    uid[0] += 1; return f".{b}_{uid[0]}"
def srd(n): return f"s[{n}:{n+3}]"
def v(n, k=1): return f"v{n}" if k == 1 else f"v[{n}:{n+k-1}]"
def ac(n, k=1): return f"a{n}" if k == 1 else f"a[{n}:{n+k-1}]"
def flat(groups): return [l for g in groups for l in g]
def gen(fn, *args, **kw):
    t = Buf(); fn(t, *args, **kw); return t.l
WS = srd(SWS)
tail = Buf()
STAMPS = []
def stamp(b, name):
    if not STAMP: return
    if opt("light", 0) and name not in ("start", "L1 g2B stored"): return
    i = len(STAMPS); STAMPS.append(name)
    assert i < 64
    b(f"@{{\n{'s_memtime' if opt('cyc', 0) else 's_memrealtime'} s[{sSTAMP}:{sSTAMP+1}]\ns_waitcnt lgkmcnt(0)\nv_writelane_b32 v7, s{sSTAMP}, {i}\n@}}")

FG = opt("fg", 1)
sGP = 91
GADDR = "v_mov_b32 v5, 0" if FG else f"v_and_b32 v5, 0x300, v{vPL}"
GT = 8 if FG else 16
def poll_all(b, cnt):
    b(f"s_mov_b32 s{sO}, {cnt*0x8000}\nbuffer_load_dword v{vPD}, v{vPL}, {WS}, s{sO} offen sc1 ;@poll")
def poll_grp(b, idx):
    b(f"@{{\ns_add_u32 s{sO}, s{sGP}, {idx*16*1024}\n{GADDR}\nbuffer_load_dword v{vPD}, v5, {WS}, s{sO} offen sc1 ;@poll\n@}}")
def check(b, kind, idx):
    slow = lab("slow"); back = lab("back"); lp = lab("lp")
    b("@vm poll")
    b(f"@{{\nv_cmp_gt_u32 vcc, {GT if kind == 'grp' else 256 // NSH}, v{vPD}\ns_cbranch_vccnz {slow}")
    b.label(back); b("@}")
    tail.label(slow)
    tail(f"s_mov_b32 s10, {SPIN}")
    if kind == "all": tail(f"s_mov_b32 s11, {idx*0x8000}\nv_mov_b32 v5, v{vPL}")
    else: tail(f"s_add_u32 s11, s{sGP}, {idx*16*1024}\n{GADDR}")
    tgt = GT if kind == 'grp' else 256 // NSH
    if opt("pp", 0):
        tail(f"buffer_load_dword v{vPD}, v5, {WS}, s11 offen sc1\ns_sleep {opt('ppd', 4)}")
        tail.label(lp)
        tail(f"buffer_load_dword v4, v5, {WS}, s11 offen sc1\ns_waitcnt vmcnt(1)\nv_cmp_gt_u32 vcc, {tgt}, v{vPD}\ns_cbranch_vccz {back}")
        tail(f"buffer_load_dword v{vPD}, v5, {WS}, s11 offen sc1\ns_waitcnt vmcnt(1)\nv_cmp_gt_u32 vcc, {tgt}, v4\ns_cbranch_vccz {back}")
    else:
        tail.label(lp)
        tail(f"buffer_load_dword v{vPD}, v5, {WS}, s11 offen sc1\ns_waitcnt vmcnt(0)")
        tail(f"v_cmp_gt_u32 vcc, {tgt}, v{vPD}\ns_cbranch_vccz {back}")
    tail(f"s_sub_u32 s10, s10, 1\ns_cmp_lg_u32 s10, 0\ns_cbranch_scc1 {lp}\ns_branch {back}")
def sig_all(b, cnt, tag, barrier=True):
    b(f"@vm {tag}\n@{{\n{'s_barrier' if barrier else 's_nop 0'}\ns_mov_b32 s{sO}, {cnt*0x8000}\ns_mov_b64 exec, s[{sEXS}:{sEXS+1}]")
    b(f"v_mov_b32 v5, 1\nbuffer_atomic_add v5, v{vSG}, {WS}, s{sO} offen sc1\ns_mov_b64 exec, -1\n@}}")
def sig_grp(b, idx, tag):
    b(f"@vm {tag}\n@{{\ns_add_u32 s{sO}, s{sGS}, {idx*16*1024}\ns_mov_b64 exec, 1")
    if GFLAG: b(f"buffer_store_dword v{vONE}, off, {WS}, s{sO} {HSC}\ns_mov_b64 exec, -1\ns_barrier\n@}}")
    else: b(f"v_mov_b32 v5, 1\nbuffer_atomic_add v5, off, {WS}, s{sO} sc1\ns_mov_b64 exec, -1\ns_barrier\n@}}")
def xsum(b, regs, tmp, steps):
    for s in steps:
        for i, r in enumerate(regs): b(f"v_mov_b32 v{tmp+i}, v{r}")
        for i, r in enumerate(regs): b(f"v_permlane{s}_swap_b32 v{r}, v{tmp+i}")
        for i, r in enumerate(regs): b(f"v_add_f32 v{r}, v{r}, v{tmp+i}")
def rnd(b, d, s): b(f"v_cvt_pk_bf16_f32 v{d}, 0, v{s}")

M = Buf()
DONE = ".Ldone"
M.label(".Lkstart")
M("s_cmp_ge_u32 s2, 256")
M(f"s_cbranch_scc1 {DONE}")
M("s_load_dwordx16 s[16:31], s[0:1], 0\ns_load_dwordx8 s[32:39], s[0:1], 64\ns_load_dwordx2 s[40:41], s[0:1], 96")
M("s_memrealtime s[14:15]")
M("s_getpc_b64 s[42:43]")
M.label(".Lpc")
M("v_and_b32 v1, 63, v0\nv_lshlrev_b32 v2, 4, v1\nv_lshrrev_b32 v3, 6, v0")
M(f"v_readfirstlane_b32 s{sW}, v3")
if STAMP: M("v_mov_b32 v7, 0")
M("s_and_b32 s3, s2, 7\ns_lshr_b32 s4, s2, 3")
M(f"s_lshl_b32 s5, s4, 2\ns_add_u32 s5, s5, s{sW}\ns_min_u32 s5, s5, ((.Lkend-.Lkstart-128)>>10)-1\ns_lshl_b32 s5, s5, 10\nv_add_u32 v5, s5, v2")
M("s_mov_b32 s90, s5")
if opt("cp0", 0) == 0: M("global_load_dwordx4 v[200:203], v5, s[42:43]")
TB = opt("tb", 0)
IDX = 100
if TB:
    M("v_lshlrev_b32 v5, 4, v0\nv_add_u32 v5, idx_table-.Lpc, v5\nv_add_u32 v6, 4096, v5\nv_lshlrev_b32 v10, 2, v0\nv_add_u32 v10, idx_table-.Lpc+8192, v10")
    M("s_and_b32 s5, s4, 1\ns_lshl_b32 s5, s5, 11\ns_add_u32 s5, s5, dma_table-.Lpc\nv_add_u32 v11, s5, v2")
    M(f"global_load_dwordx4 {v(vDMA,4)}, v11, s[42:43] ;@tb\nglobal_load_dwordx3 {v(vDMA+4,3)}, v11, s[42:43] offset:1024 ;@tb")
    M(f"global_load_dwordx4 {v(IDX,4)}, v5, s[42:43] ;@tb\nglobal_load_dwordx4 {v(IDX+4,4)}, v6, s[42:43] ;@tb\nglobal_load_dword v{IDX+8}, v10, s[42:43] ;@tb")
M(f"s_lshl_b32 s{sCPI}, s3, 5\ns_add_u32 s{sCPI}, s{sCPI}, s4")
M(f"s_lshl_b32 s5, s2, 13\ns_lshl_b32 s6, s{sW}, 11\ns_add_u32 s5, s5, s6\nv_add_u32 v62, s5, v2")
M(f"s_lshl_b32 s5, s{sCPI}, 9\nv_lshlrev_b32 v63, 1, v0\nv_add_u32 v63, s5, v63")
M(f"s_lshr_b32 s5, s2, 2\ns_lshl_b32 s5, s5, 15\ns_and_b32 s6, s2, 3\ns_lshl_b32 s6, s6, 8\ns_add_u32 s5, s5, s6\ns_lshl_b32 s6, s{sW}, 6\ns_add_u32 s5, s5, s6")
M("v_and_b32 v5, 7, v1\nv_lshlrev_b32 v64, 12, v5\nv_lshrrev_b32 v6, 3, v1\nv_lshl_add_u32 v64, v6, 3, v64\nv_add_u32 v64, s5, v64")
M("s_waitcnt lgkmcnt(0)")
stamp(M, "start")
n0 = lab("n0")
M(f"s_or_b32 s5, s4, s{sW}\ns_cmp_lg_u32 s5, 0\ns_cbranch_scc1 {n0}")
M("s_or_b32 s14, s14, 1\nv_mov_b32 v8, s14\nv_mov_b32 v9, 0\ns_mov_b64 exec, 1\nglobal_atomic_cmpswap v9, v[8:9], s[38:39] sc1 ;@!\ns_mov_b64 exec, -1")
M.label(n0)
if opt("cp0", 0) == 3:
    M(f"s_lshl_b32 s5, s4, 2\ns_add_u32 s5, s5, s{sW}\ns_mul_i32 s5, s5, 384\ns_min_u32 s5, s5, .Lkend-.Lkstart-512")
    M("s_add_u32 s6, s5, 128\ns_add_u32 s10, s5, 256\ns_load_dword s86, s[42:43], s5\ns_load_dword s87, s[42:43], s6\ns_load_dword s10, s[42:43], s10")
for i, dst in enumerate([216, 220, 218, 222]): M(f"global_load_dwordx2 {v(dst,2)}, v64, s[16:17] offset:{i*1024} ;@b1")
M("global_load_dwordx4 v[32:35], v62, s[16:17] ;@b1\nglobal_load_dwordx4 v[36:39], v62, s[16:17] offset:1024 ;@b1")
for i in range(4): M(f"global_load_ushort v{48+i}, v63, s[{18+2*i}:{19+2*i}] ;@par")
M(f"s_and_b32 s{sCT}, s4, 15")
M(f"s_lshl_b32 s{sRT}, s3, 1\ns_lshr_b32 s5, s4, 4\ns_add_u32 s{sRT}, s{sRT}, s5")
M(f"s_lshl_b32 s{sLT}, s{sRT}, 1\ns_bfe_u32 s5, s4, 0x10003\ns_add_u32 s{sLT}, s{sLT}, s5\ns_and_b32 s{sDT}, s4, 7")
M(f"s_lshl_b32 s{sGC}, s{sRT}, 10\ns_add_u32 s{sGC}, s{sGC}, {GCNT}\ns_lshl_b32 s5, s{sW}, 8\ns_add_u32 s{sGS}, s{sGC}, s5")
M(f"s_mov_b32 s{sONE}, 0x3f803f80\ns_mov_b32 s{sMSK}, 0xffff0000\ns_mov_b32 s{sINV}, {f2u(1/512):#x}\ns_mov_b32 s{sINV+1}, {f2u(1/512):#x}")
M(f"s_mov_b32 s{sEPS}, {f2u(1e-5):#x}\ns_mov_b32 s{sNL2E}, {f2u(-LOG2E):#x}")
NR = opt("nr", 8)
if NR == 8: M(f"s_lshl_b32 s5, s{sW}, 1\ns_lshl_b32 s{sEXS}, 3, s5\ns_mov_b32 s{sEXS+1}, 0")
else: M(f"s_lshl_b32 s{sEXS}, 1, s{sW}\ns_mov_b32 s{sEXS+1}, 0")
M(f"s_lshl_b32 s5, s{sW}, 2\ns_lshl_b32 s{sEXQ}, 0x000f000f, s5\ns_mov_b32 s{sEXQ+1}, s{sEXQ}")
M("v_and_b32 v5, 7, v1\nv_lshrrev_b32 v6, 3, v1")
M("v_lshlrev_b32 v65, 10, v6\nv_lshl_add_u32 v65, v5, 4, v65\nv_lshlrev_b32 v207, 9, v6\nv_lshl_add_u32 v207, v5, 4, v207")
M(f"s_lshl_b32 s94, s2, 2\ns_add_u32 s94, s94, s{sW}\ns_min_u32 s94, s94, 895")
M("s_mul_i32 s95, s94, 2341\ns_lshr_b32 s95, s95, 16\ns_mul_i32 s5, s95, 28\ns_sub_u32 s96, s94, s5")
M("s_and_b32 s5, s95, 3\ns_mul_i32 s5, s5, 448\ns_lshl_b32 s6, s96, 4\ns_add_u32 s5, s5, s6\ns_lshl_b32 s7, s5, 10\ns_lshr_b32 s5, s95, 2\ns_lshl_b32 s5, s5, 7\ns_add_u32 s7, s7, s5")
M(f"s_lshl_b32 s9, s{sW}, 12\ns_add_u32 s9, s9, {LPK}")
M(f"s_mov_b32 s{SWS+2}, {WS_BYTES:#x}\ns_mov_b32 s{SWS+3}, 0x20000")
M(f"s_mov_b32 s{SWS}, s40\ns_mov_b32 s{SWS+1}, s41")
n1 = lab("n1")
M(f"s_cmp_ge_u32 s2, 128\ns_cbranch_scc1 {n1}")
M(f"s_lshl_b32 s5, s2, 2\ns_add_u32 s5, s5, s{sW}\ns_lshl_b32 s6, s5, 9\ns_lshl_b32 s5, s5, 5\ns_add_u32 s5, s5, {ST2}")
M("v_mov_b32 v4, 0\nv_mov_b32 v5, 0\nv_lshlrev_b32 v6, 3, v1\nv_lshlrev_b32 v8, 2, v1")
M(f"buffer_store_dwordx2 v[4:5], v6, {WS}, s6 offen sc1 ;@!\ns_mov_b64 exec, 0xff\nbuffer_store_dword v5, v8, {WS}, s5 offen sc1 ;@!\ns_mov_b64 exec, -1")
M.label(n1)
for sd, sb, nb in [(SW1, 32, 512*1792*2), (SW2, 34, 512*1792*2), (SOUT, 36, 2048*512*2)]:
    M(f"s_mov_b32 s{sd}, s{sb}\ns_mov_b32 s{sd+1}, s{sb+1}\ns_mov_b32 s{sd+2}, {nb:#x}\ns_mov_b32 s{sd+3}, 0x20000")
M(f"s_mov_b32 m0, s9\ns_add_u32 s5, s7, 8192\nbuffer_load_dwordx4 v65, {srd(SW2)}, s7 offen lds ;@b2\ns_add_u32 m0, s9, 1024\ns_nop 0\nbuffer_load_dwordx4 v65, {srd(SW2)}, s5 offen lds ;@b2")
M(f"s_lshl_b32 s5, s{sCPI}, 2")
M("s_load_dword s12, s[26:27], s5\ns_load_dword s13, s[28:29], s5")
if opt("tlb", 0):
    M(f"v_lshlrev_b32 v5, 20, v1\ns_mov_b64 exec, 0x7ffffff\ns_mov_b32 s5, 0xc0000\nbuffer_load_dword v240, v5, {WS}, s5 offen sc1\ns_mov_b64 exec, 3")
    M(f"buffer_load_dword v243, v5, {srd(SOUT)}, 0 offen\ns_mov_b64 exec, -1")
M("v_and_b32 v60, 15, v1\nv_lshrrev_b32 v61, 4, v1")
sD0, sD1 = 88, 89
sRX, sRH = 16, 24
M(f"s_mul_i32 s{sD0}, s{sW}, {128*3584}\ns_mul_i32 s5, s{sCT}, 224\ns_add_u32 s{sD0}, s{sD0}, s5\ns_mul_i32 s{sD1}, s{sW}, 28672")
dma = [[f"    s_add_u32 m0, s{sD1}, {p*1024}", f"    s_add_u32 s{sB1}, s{sD0}, {(p//7)*32*3584}", f"    buffer_load_dwordx4 v{vDMA+p%7}, {srd(SW1)}, s{sB1} offen lds ;@w1"] for p in range(28)]
dma = dma[17:] + dma[:17]
def setup_dma(b):
    b(f"s_and_b32 s7, s{sCT}, 1\ns_lshl_b32 s8, s7, 5\ns_mul_i32 s7, s7, 192\ns_sub_u32 s7, 192, s7")
    b("v_and_b32 v64, 3, v1\nv_lshlrev_b32 v64, 4, v64\nv_add_u32 v65, s8, v64\nv_xor_b32 v66, 32, v64")
    b(f"v_add_u32 v66, s8, v66\nv_add_u32 v66, {3584-192}, v66")
    b("v_and_b32 v67, 16, v64\nv_add_u32 v67, s7, v67\nv_lshrrev_b32 v64, 5, v64\nv_mul_u32_u24 v64, 3584, v64")
    b(f"v_add_u32 v67, v67, v64\nv_subrev_u32 v67, {6*64}, v67\nv_lshrrev_b32 v64, 2, v1")
    for k in range(7):
        b(f"v_add_u32 v5, {16*k}, v64\nv_mul_u32_u24 v6, 9363, v5\nv_lshrrev_b32 v6, 16, v6\nv_mul_u32_u24 v62, 7, v6\nv_sub_u32 v5, v5, v62")
        b(f"@{{\nv_cmp_lt_u32 vcc, 2, v5\nv_mul_u32_u24 v6, 7168, v6\nv_lshl_add_u32 v6, v5, 6, v6\nv_cndmask_b32 v62, v65, v66, vcc\nv_cmp_eq_u32 vcc, 6, v5\ns_nop 1\nv_cndmask_b32 v62, v62, v67, vcc\n@}}")
        b(f"v_add_u32 v{vDMA+k}, v6, v62")
def setup(b):
    b(f"s_and_b32 s5, s{sW}, 1\ns_lshr_b32 s6, s{sW}, 1")
    b(f"v_bfe_u32 v{vCX}, v1, 2, 2\nv_lshlrev_b32 v{vCX}, 16, v{vCX}\nv_and_b32 v5, 3, v1\nv_lshl_add_u32 v{vCX}, v5, 6, v{vCX}\nv_lshl_add_u32 v{vCX}, v61, 4, v{vCX}")
    b(f"s_lshl_b32 s7, s{sW}, 18\ns_lshl_b32 s8, s{sCPI}, 8\ns_add_u32 s7, s7, s8\nv_add_u32 v{vCX}, s7, v{vCX}")
    b(f"v_lshlrev_b32 v{vCS}, 7, v60\nv_lshl_add_u32 v{vCS}, v61, 5, v{vCS}\ns_lshl_b32 s7, s{sW}, 11\nv_add_u32 v{vCS}, s7, v{vCS}")
    b(f"v_lshlrev_b32 v5, 5, v60\nv_lshl_add_u32 v{vUW}, v61, 3, v5\ns_lshl_b32 s7, s{sW}, 9\ns_add_u32 s7, s7, {LU+512}\nv_add_u32 v{vUW}, s7, v{vUW}")
    b(f"v_lshl_add_u32 v{vUR}, v61, 4, v5\ns_mul_i32 s7, s6, {US}\ns_lshl_b32 s8, s5, 8\ns_sub_u32 s7, s7, s8\ns_add_u32 s7, s7, {LU}\nv_add_u32 v{vUR}, s7, v{vUR}")
    b(f"v_lshlrev_b32 v5, 3, v61\nv_sub_u32 v5, v60, v5\nv_lshlrev_b32 v5, 2, v5\ns_mul_i32 s7, s6, {PKS}\ns_lshl_b32 s8, s5, 9\ns_add_u32 s7, s7, s8\ns_add_u32 s7, s7, {LPK+26*4}\nv_add_u32 v{vTB}, s7, v5")
    b(f"s_lshl_b32 s7, s{sW}, 10\ns_add_u32 s7, s7, {LEX}\nv_add_u32 v{vEW}, s7, v2\ns_lshl_b32 s7, s{sW}, 12\ns_add_u32 s7, s7, {LEX}\nv_add_u32 v{vER}, s7, v2")
    b(f"v_and_b32 v204, {NSH-1}, v1\nv_lshlrev_b32 v204, 8, v204\ns_and_b32 s7, s3, {NR-1}\ns_lshl_b32 s7, s7, 12\nv_add_u32 v204, s7, v204")
    b(f"v_lshlrev_b32 v205, 12, v1\ns_and_b32 s7, s{sCT}, {NSH-1}\ns_lshl_b32 s7, s7, 8\nv_add_u32 v205, s7, v205\nv_mov_b32 v{vONE}, 1")
    for k in range(0 if TB else 9):
        b(f"v_lshlrev_b32 v5, 3, v0\nv_add_u32 v5, {k-1}, v5")
        if k == 0: b("v_max_i32 v5, 0, v5")
        b("v_cvt_f32_u32 v5, v5\nv_cvt_pk_bf16_f32 v5, 0, v5\nv_cvt_u32_f32 v6, v5")
        b("v_lshrrev_b32 v5, 23, v5\nv_subrev_u32 v5, 134, v5\nv_med3_i32 v5, v5, 0, 3")
        b("v_lshrrev_b32 v62, 7, v6\nv_and_b32 v63, 7, v6\nv_lshl_or_b32 v62, v62, 3, v63\nv_lshrrev_b32 v62, v5, v62\nv_lshl_add_u32 v62, v5, 3, v62")
        b(f"v_bfe_u32 v6, v6, 3, 4\nv_lshlrev_b32 v6, 2, v6\nv_lshl_add_u32 v6, v62, 6, v6\nv_add_u32 v{IDX+k}, {LGT}, v6")
def setup_g1(b):
    b("v_mbcnt_lo_u32_b32 v246, -1, 0\nv_mbcnt_hi_u32_b32 v246, -1, v246\nv_and_b32 v244, 15, v246\nv_lshrrev_b32 v245, 4, v246\nv_lshlrev_b32 v247, 4, v246")
    b(f"s_and_b32 s5, s{sW}, 1\ns_lshr_b32 s6, s{sW}, 1")
    b(f"v_lshlrev_b32 v{vGX}, 9, v245\nv_lshl_add_u32 v{vGX}, v244, 3, v{vGX}\ns_lshl_b32 s7, s{sRT}, 16\ns_lshl_b32 s8, s5, 7\ns_add_u32 s7, s7, s8\ns_lshl_b32 s8, s6, 15\ns_add_u32 s7, s7, s8\nv_add_u32 v{vGX}, s7, v{vGX}")
    b(f"v_lshlrev_b32 v5, 2, v245\nv_bfe_u32 v6, v246, 2, 2\nv_add_u32 v5, v5, v6\nv_mul_u32_u24 v5, 224, v5\nv_and_b32 v6, 3, v246\nv_lshl_add_u32 v5, v6, 3, v5\ns_mul_i32 s7, s6, {256*224}\nv_add_u32 v{vWA}, s7, v5")
    b(f"s_mul_i32 s7, s{sW}, 7680\ns_add_u32 s7, s7, {LSCR}\nv_add_u32 v{vXW}, s7, v247")
    b(f"v_lshrrev_b32 v5, 5, v246\nv_xor_b32 v5, s6, v5\nv_lshlrev_b32 v5, 8, v5\nv_lshl_add_u32 v5, v246, 2, v5\ns_lshl_b32 s7, s5, 9\ns_add_u32 s7, s7, {LSCR+30720}\nv_add_u32 v{vSW}, s7, v5")
    b(f"s_lshl_b32 s8, s6, 8\ns_add_u32 s7, s7, s8\nv_lshlrev_b32 v5, 2, v244\nv_add_u32 v{vSR}, s7, v5")
    b(f"s_xor_b32 s7, s{sW}, 2\ns_mul_i32 s7, s7, 7680\ns_add_u32 s7, s7, {LSCR}\nv_add_u32 v{vXR}, s7, v247")
    b(f"v_lshlrev_b32 v{vCSA}, 4, v245\nv_add_u32 v{vCSA}, {LCS}, v{vCSA}")
    b(f"s_lshl_b32 s7, s{sRT}, 1\ns_add_u32 s7, s7, s5\ns_mul_i32 s7, s7, {HT}\ns_mul_i32 s8, s{sCT}, 7168\ns_add_u32 s7, s7, s8\ns_lshl_b32 s8, s6, 8\ns_add_u32 s7, s7, s8")
    b(f"v_and_b32 v5, 1, v245\nv_lshrrev_b32 v6, 1, v245\nv_lshlrev_b32 v{vH2}, 9, v6\nv_lshl_add_u32 v{vH2}, v244, 4, v{vH2}\nv_add_u32 v{vH2}, s7, v{vH2}\nv_lshl_add_u32 v{vH4}, v5, 10, v{vH2}\nv_lshl_add_u32 v{vH2}, v5, 3, v{vH2}")
    b(f"s_and_b32 s7, s{sCT}, 1\ns_lshl_b32 s8, s7, 10\nv_add_u32 v{vH4}, s8, v{vH4}\ns_mul_i32 s8, s7, 6144\nv_subrev_u32 v{vH2}, s8, v{vH2}")
def setup_g2(b):
    b("v_mbcnt_lo_u32_b32 v248, -1, 0\nv_mbcnt_hi_u32_b32 v248, -1, v248\nv_lshlrev_b32 v6, 4, v248")
    b(f"s_mul_i32 s7, s{sLT}, {HT}\ns_mul_i32 s8, s{sW}, 28672\ns_add_u32 s7, s7, s8\nv_add_u32 v{vHL}, s7, v6")
    b("v_and_b32 v249, 15, v248\nv_lshlrev_b32 v249, 1, v249\nv_bfe_u32 v5, v248, 4, 1\nv_add_u32 v249, v249, v5\nv_lshrrev_b32 v250, 5, v248")
    b(f"s_lshr_b32 s7, s{sLT}, 1\ns_lshl_b32 s7, s7, 16\ns_and_b32 s8, s{sLT}, 1\ns_lshl_b32 s8, s8, 7\ns_add_u32 s7, s7, s8\ns_lshl_b32 s8, s{sDT}, 13\ns_add_u32 s7, s7, s8\ns_lshl_b32 s8, s{sW}, 11\ns_add_u32 s7, s7, s8")
    b(f"v_lshlrev_b32 v{vX2}, 9, v250\nv_lshl_add_u32 v{vX2}, v249, 2, v{vX2}\nv_add_u32 v{vX2}, s7, v{vX2}\ns_and_b32 s8, s{sDT}, 4\nv_xor_b32 v{vRX}, s8, v{vX2}")
    for sg in range(1, 4):
        b(f"s_xor_b32 s7, s{sW}, {sg}\ns_mul_i32 s7, s7, 6144\ns_add_u32 s7, s7, {LSCR+(sg-1)*2048}\nv_add_u32 v{vE1+sg-1}, s7, v6")
    b(f"s_mul_i32 s7, s{sW}, 6144\ns_add_u32 s7, s7, {LSCR}\nv_add_u32 v{vE0}, s7, v6")
    b(f"v_lshlrev_b32 v{vSA}, 3, v249\nv_lshl_add_u32 v{vSA}, v250, 2, v{vSA}\ns_lshl_b32 s7, s{sLT}, 8\nv_add_u32 v{vSA}, s7, v{vSA}")
    b(f"v_lshlrev_b32 v{vOUT}, 10, v249\nv_lshl_add_u32 v{vOUT}, v250, 4, v{vOUT}\ns_lshl_b32 s7, s{sLT}, 15\ns_lshl_b32 s8, s{sDT}, 7\ns_add_u32 s7, s7, s8\ns_lshl_b32 s8, s{sW}, 5\ns_add_u32 s7, s7, s8\nv_add_u32 v{vOUT}, s7, v{vOUT}")
    b(f"s_lshl_b32 s5, s{sDT}, 2\ns_add_u32 s5, s5, s{sW}\ns_mul_i32 s5, s5, 57344\ns_add_u32 s{sW2B}, s5, {W2F}")
def setup_p0(b):
    if FG:
        b(f"s_lshr_b32 s5, s{sCT}, 2\ns_lshl_b32 s5, s5, 1\ns_and_b32 s6, s{sW}, 1\ns_add_u32 s5, s5, s6\ns_lshl_b32 s5, s5, 7\ns_add_u32 s{sGS}, s{sGC}, s5")
        b(f"s_lshl_b32 s5, s{sW}, 1\ns_and_b32 s6, s{sLT}, 1\ns_add_u32 s5, s5, s6\ns_lshl_b32 s5, s5, 7\ns_add_u32 s{sGP}, s{sGC}, s5")
    else: b(f"s_mov_b32 s{sGP}, s{sGC}")
    b(f"@{{\ns_cmp_ge_u32 s{sCPI}, 128\ns_cselect_b64 s[{sEXW}:{sEXW+1}], -1, 0\n@}}")
    b("v_lshrrev_b32 v254, 5, v1")
    b("s_and_b32 s5, s95, 3\nv_and_b32 v5, 1, v61\nv_xor_b32 v209, s5, v5\nv_xor_b32 v210, 2, v209")
    b("v_lshlrev_b32 v5, 3, v254\nv_bfe_u32 v6, v1, 2, 2\nv_add_u32 v5, v5, v6\nv_lshlrev_b32 v5, 7, v5\nv_and_b32 v62, 3, v1\nv_lshl_add_u32 v5, v62, 3, v5\nv_add_u32 v5, s9, v5")
    b("v_lshl_add_u32 v209, v209, 5, v5\nv_lshl_add_u32 v210, v210, 5, v5")
    b(f"s_lshl_b32 s99, s94, 11\ns_add_u32 s99, s99, {W2F}")
    b(f"s_lshl_b32 s11, s4, 16\ns_bfe_u32 s6, s2, 0x10002\ns_lshl_b32 s6, s6, 7\ns_add_u32 s11, s11, s6\ns_and_b32 s6, s2, 3\ns_lshl_b32 s6, s6, 14\ns_add_u32 s11, s11, s6\ns_lshl_b32 s6, s{sW}, 12\ns_add_u32 s11, s11, s6\ns_add_u32 s11, s11, {XP[0]}")
wq = list(dma)
def take(n):
    r = wq[:n]; del wq[:n]; return r
setup_p0(M)
if not TB: setup_dma(M)
M.add(interleave(gen(setup), take(opt("e0", 0)), start=20))
stamp(M, "p0 setup")
M("@vm b1")
stamp(M, "p0 rows")
M("v_swap_b32 v217, v220\nv_swap_b32 v219, v222")
M(f"buffer_store_dwordx4 v[216:219], v207, {WS}, s11 offen sc1 ;@p0s\nbuffer_store_dwordx4 v[220:223], v207, {WS}, s11 offen offset:256 sc1 ;@p0s")
for i in range(4): M(f"v_mov_b32 v{52+i}, 0")
for q in range(4):
    M(f"v_dot2c_f32_bf16 v52, s{sONE}, v{32+q}\nv_dot2c_f32_bf16 v53, v{32+q}, v{32+q}")
    M(f"v_dot2c_f32_bf16 v54, s{sONE}, v{36+q}\nv_dot2c_f32_bf16 v55, v{36+q}, v{36+q}")
for m_ in ["quad_perm:[1,0,3,2]", "quad_perm:[2,3,0,1]", "row_half_mirror", "row_mirror"]:
    for i in range(4): M(f"v_add_f32_dpp v{52+i}, v{52+i}, v{52+i} {m_} row_mask:0xf bank_mask:0xf")
xsum(M, [52, 53, 54, 55], 56, [16, 32])
for r in (52, 54): M(f"v_pk_mul_f32 {v(r,2)}, {v(r,2)}, s[{sINV}:{sINV+1}]")
for r in (52, 54): M(f"v_fma_f32 v{r+1}, -v{r}, v{r}, v{r+1}")
for r in (52, 54): rnd(M, r+1, r+1)
for r in (52, 54): M(f"v_add_f32 v{r+1}, s{sEPS}, v{r+1}")
for r in (52, 54): rnd(M, r+1, r+1)
for r in (52, 54): M(f"v_sqrt_f32 v{r+1}, abs(v{r+1})")
for r in (52, 54): M(f"v_cvt_pk_bf16_f32 v{r}, v{r}, v{r+1}")
M(f"s_lshl_b32 s5, s2, 6\ns_lshl_b32 s6, s{sW}, 4\ns_add_u32 s5, s5, s6\ns_add_u32 s15, s5, {ST0}")
stamp(M, "p0 stats")
nn = lab("nn"); nl = lab("nl"); nb = lab("nb")
M(f"s_waitcnt lgkmcnt(0)\ns_load_dword s{sNON}, s[38:39], 0\nv_mov_b32 v212, v52\nv_mov_b32 v214, v54")
tail.label(nn)
tail(f"s_mov_b32 s10, {SPIN}\nv_mov_b32 v213, 0")
tail.label(nl)
tail("global_load_dword v215, v213, s[38:39] sc1\ns_waitcnt vmcnt(0)")
tail(f"v_readfirstlane_b32 s{sNON}, v215\ns_cmp_lg_u32 s{sNON}, 0\ns_cbranch_scc1 {nb}")
tail(f"s_sub_u32 s10, s10, 1\ns_cmp_lg_u32 s10, 0\ns_cbranch_scc1 {nl}\ns_branch {nb}")
publish = gen(lambda b: (b(f"@{{\ns_waitcnt lgkmcnt(0)\ns_cmp_eq_u32 s{sNON}, 0\ns_cbranch_scc1 {nn}"), b.label(nb), b(f"v_mov_b32 v213, s{sNON}\nv_mov_b32 v215, s{sNON}\n@}}"), b(f"@vm p0s\n@{{\ns_barrier\ns_mov_b64 exec, 1\nbuffer_store_dwordx4 v[212:215], off, {WS}, s15 sc1\ns_mov_b64 exec, -1\n@}}"), stamp(b, "p0 published")))
def w2_relay(b):
    n3 = lab("n3")
    b("@vm b2")
    for mt in range(2):
        for hf in range(2): b(f"ds_read_b64_tr_b16 {v(224+4*mt+2*hf,2)}, v{209+mt} offset:{hf*512} ;@w2r")
    b(f"@lg w2r\n@{{\ns_cmp_ge_u32 s2, 224\ns_cbranch_scc1 {n3}")
    b(f"buffer_store_dwordx4 v[224:227], v2, {WS}, s99 offen sc1 ;@!\nbuffer_store_dwordx4 v[228:231], v2, {WS}, s99 offen offset:1024 sc1 ;@!")
    b.label(n3); b("@}")
def kgen(Kg):
    Kg(f"s_lshl_b32 s{sDK}, s13, 16\ns_and_b32 s{sDK+1}, s13, s{sMSK}")
    Kg(f"@{{\ns_lshl_b32 s5, s12, 16\ns_and_b32 s6, s12, s{sMSK}\ns_cmp_ge_u32 s{sW}, 2\ns_cselect_b32 s5, s6, s5\n@}}")
    L2E = f"{f2u(LOG2E):#x}"
    VAL = lambda row: 110 + 2*row if row < 45 else 62 + 2*(row - 45)
    Kg(f"v_mov_b32 v5, s5\nv_mul_f32 v5, {L2E}, v5\nv_exp_f32 v5, v5")
    for i in range(4): Kg(f"v_lshlrev_b32 v{48+i}, 16, v{48+i}")
    Kg(f"v_mul_f32 v48, {L2E}, v48\nv_exp_f32 v48, v48")
    Kg(f"s_mul_i32 s5, s{sW}, {ES}")
    Kg("v_lshlrev_b32 v98, 2, v1\nv_add_u32 v98, s5, v98")
    rnd(Kg, 5, 5); rnd(Kg, 48, 48)
    Kg(f"v_mul_f32 v49, v49, v5\nv_mul_f32 v48, v48, v5\nv_mul_f32 v49, 0.15915494, v49\nv_mul_f32 v48, s{sNL2E}, v48")
    Kg(f"v_add_f32 v5, v5, v5\nv_mul_f32 v{VAL(0)}, v50, v5\nv_mul_f32 v{VAL(0)+1}, v51, v5")
    E1, E8, E128, E1K = VAL(17), 34, VAL(24), VAL(48)
    PS = [(E1, 1.0), (E8, 8.0), (E128, 128.0), (E1K, 1024.0)]
    for k, (dst, p) in enumerate(PS): Kg(f"v_mul_f32 v{52+k}, {f2u(p):#x}, v48\nv_mul_f32 v{56+k}, {f2u(p):#x}, v49")
    for k, (dst, p) in enumerate(PS): Kg(f"v_exp_f32 v{52+k}, v{52+k}\nv_fract_f32 v{56+k}, v{56+k}")
    for k, (dst, p) in enumerate(PS): Kg(f"v_cos_f32 v{dst}, v{56+k}\nv_sin_f32 v{dst+1}, v{56+k}")
    Kg("v_mul_u32_u24 v99, 272, v60\nv_lshl_add_u32 v99, v61, 4, v99\nv_add_u32 v99, s5, v99")
    Kg(f"v_mov_b32 v{VAL(16)}, 1.0\nv_mov_b32 v{VAL(16)+1}, 0")
    for k, (dst, p) in enumerate(PS): Kg(f"v_mul_f32 v{dst}, v{dst}, v{52+k}\nv_mul_f32 v{dst+1}, v{dst+1}, v{52+k}")
    e16, e32, e64 = 36, 38, 32
    V = VAL
    levels = [
        [(V(1), V(0), E8), (V(18), E1, E1), (V(32), E128, E128), (e16, E8, E8), (V(56), E1K, E1K), (V(25), E1, E128), (V(49), E1K, E128)],
        [(e32, e16, e16), (V(20), V(18), V(18)), (V(40), V(32), V(32)), (V(2), V(0), e16), (V(3), V(1), e16), (V(19), V(18), E1), (V(36), V(32), E128),
         (V(26), V(18), E128), (V(50), E1K, V(32)), (V(33), V(32), V(18))],
        [(e64, e32, e32), (V(4), V(0), e32), (V(5), V(1), e32), (V(6), V(2), e32), (V(7), V(3), e32), (V(21), V(20), E1), (V(22), V(20), V(18)), (V(23), V(20), V(19)),
         (V(42), V(40), E128), (V(44), V(40), V(32)), (V(46), V(40), V(36)), (V(27), V(19), E128), (V(28), V(20), E128), (V(51), E1K, V(36)), (V(52), E1K, V(40)),
         (V(34), V(32), V(20)), (V(37), V(36), V(18)), (V(38), V(36), V(20)), (V(41), V(40), V(20))],
        [(V(8 + i), V(i), e64) for i in range(8)] +
        [(V(29), V(21), E128), (V(30), V(22), E128), (V(31), V(23), E128), (V(35), V(32), V(22)), (V(39), V(36), V(22)),
         (V(43), V(42), V(20)), (V(45), V(44), V(20)), (V(47), V(46), V(20)), (V(53), E1K, V(42)), (V(54), E1K, V(44)), (V(55), E1K, V(46))],
    ]
    row_of = {VAL(r): r for r in range(57)}
    pend = [0, 16, 17, 24, 48]; written = []
    rot = [0]
    def puts(rows):
        g = []
        for r in rows:
            t = 86 + rot[0] % 12; rot[0] += 1
            g.append((f"    v_cvt_pk_bf16_f32 v{t}, v{VAL(r)}, {'-' if r < 16 else ''}v{VAL(r)+1}", f"    ds_write_b32 v98, v{t} offset:{r*272}"))
            written.append(r)
        out = []
        for k in range(len(g) + 1):
            out.append(([g[k][0]] if k < len(g) else []) + ([g[k-1][1]] if k > 0 else []))
        return out
    for lv in levels:
        t = Buf()
        for d_, x_, y_ in lv: t(f"v_pk_mul_f32 {v(d_,2)}, {v(x_,2)}, {v(y_,2)} op_sel_hi:[1,0]")
        for d_, x_, y_ in lv: t(f"v_pk_fma_f32 {v(d_,2)}, {v(x_,2)}, {v(y_,2)}, {v(d_,2)} op_sel:[1,1,0] op_sel_hi:[0,1,1] neg_lo:[1,0,0]")
        Kg.add(interleave(t.l, puts(pend)))
        pend = [row_of[d_] for d_, _, _ in lv if d_ in row_of]
    Kg.add(flat(puts(pend)))
    assert sorted(written) == list(range(57))
    LOF, HF, GD = 110, 126, 62
    Kg("s_waitcnt lgkmcnt(0)")
    for s_ in range(4):
        Kg(f"ds_read_b128 {v(LOF+4*s_,4)}, v99 offset:{s_*64} ;@kf{s_}")
        for T in range(3): Kg(f"ds_read_b128 {v(HF+16*T+4*s_,4)}, v99 offset:{(16+16*T)*272+s_*64} ;@kf{s_}")
    Kg(f"s_mul_i32 s5, s{sW}, 3072\ns_add_u32 s5, s5, {LGT}")
    Kg("v_lshlrev_b32 v5, 2, v60\nv_lshl_add_u32 v5, v61, 8, v5\nv_add_u32 v5, s5, v5")
    for s_ in range(4):
        Kg(f"@lg kf{s_}")
        for T in range(3): Kg(f"v_mfma_f32_16x16x32_bf16 {v(GD+4*T,4)}, {v(HF+16*T+4*s_,4)}, {v(LOF+4*s_,4)}, {'0' if s_ == 0 else v(GD+4*T,4)}")
    for T in range(3):
        for r in range(0, 4, 2): Kg(f"ds_write2_b32 v5, v{GD+4*T+r}, v{GD+4*T+r+1} offset0:{r*16} offset1:{r*16+16}") if T == 0 else None
        if T:
            for r in range(4): Kg(f"ds_write_b32 v5, v{GD+4*T+r} offset:{(T*16+r)*64}")
M("@vm par,tb")
kl = gen(kgen)
PUB = opt("pub", 110)
cpl = ["    v_add_u32 v200, s90, v2", "    global_load_dwordx4 v[200:203], v200, s[42:43]"] if opt("cp0", 0) == 1 else []
W2E = opt("w2e", 0)
if W2E:
    publish = [l.replace("@vm p0s", "s_waitcnt vmcnt(0)") for l in publish]
    kl = interleave(kl, [publish + cpl], start=PUB, every=1)
    kl = gen(w2_relay) + kl
else: kl = interleave(kl, [publish + cpl + gen(w2_relay)], start=PUB, every=1)
M.add(interleave(kl, take(11 - opt("e0", 0)), start=opt("e1", 4)))
stamp(M, "kgen core")
M(f"s_mov_b32 s{sO}, {ST0}\nbuffer_load_dwordx4 v[232:235], v{vCS}, {WS}, s{sO} offen sc1 ;@cin\nbuffer_load_dwordx4 v[236:239], v{vCS}, {WS}, s{sO} offen offset:16 sc1 ;@cin")
M(f"s_mov_b32 s{sO}, {ST0+8192}\nbuffer_load_dwordx4 v[240:243], v{vCS}, {WS}, s{sO} offen sc1 ;@cin\nbuffer_load_dwordx4 v[244:247], v{vCS}, {WS}, s{sO} offen offset:16 sc1 ;@cin")
M("s_waitcnt lgkmcnt(0)\ns_barrier")
for c in range(2):
    for k in range(9): M(f"ds_read2st64_b32 {v(110+c*18+2*k,2)}, v{IDX+k} offset0:{24*c} offset1:{24*c+12} ;@g{c}")
M(f"v_bfe_u32 v5, v0, 4, 1\nv_mul_u32_u24 v5, {PKS}, v5\nv_lshl_add_u32 v5, v60, 2, v5\nv_add_u32 v5, {LPK}, v5\nv_mov_b32 v6, 0")
M("ds_write_b32 v5, v6")
M(f"v_lshlrev_b32 v5, 5, v0\nv_add_u32 v5, {LPK+64}, v5")
M("v_cmp_eq_u32 vcc, 0, v0")
for c in range(2):
    M(f"@lg g{c}")
    for k in range(9):
        r = 110 + c*18 + 2*k
        M(f"v_add_f32 v{r}, v{r}, v{r+1}")
    M(f"v_cndmask_b32 v{110+c*18}, v{110+c*18}, v6, vcc")
    for k in range(8): M(f"v_cvt_pk_bf16_f32 v{72+c*8+k}, v{110+c*18+2*(k+1)}, v{110+c*18+2*k}")
    M(f"ds_write_b128 v5, {v(72+c*8,4)} offset:{c*PKS}\nds_write_b128 v5, {v(76+c*8,4)} offset:{c*PKS+16}")
T0, U0, ACC = 32, 160, 224
BASE, RV, CST, UPK = 224, 232, 232, 240
def conv_stats(b, layer, half):
    b(f"s_mov_b32 s{sO}, {(ST2 if layer else ST0) + half*8192}")
    b(f"buffer_load_dwordx4 {v(CST,4)}, v{vCS}, {WS}, s{sO} offen sc1 ;@cin\nbuffer_load_dwordx4 {v(CST+4,4)}, v{vCS}, {WS}, s{sO} offen offset:16 sc1 ;@cin")
def conv_x(b, layer, half):
    b(f"s_mov_b32 s{sO}, {XP[2*layer] + half*0x100000}\nbuffer_load_dwordx4 v[248:251], v{vCX}, {WS}, s{sO} offen sc1 ;@cin")
def conv_inputs(b, layer, half):
    conv_x(b, layer, half); conv_stats(b, layer, half)
def gcheck(b):
    slow = lab("gs"); back = lab("gb"); lp = lab("gl")
    def chk(o):
        for k in range(8): o(f"v_xor_b32 v{160+k}, s{sNON}, v{CST+2*k+1}")
        o("v_or3_b32 v160, v160, v161, v162\nv_or3_b32 v163, v163, v164, v165\nv_or3_b32 v160, v160, v166, v167\nv_or_b32 v160, v160, v163\nv_cmp_ne_u32 vcc, 0, v160")
    b("@vm cin\n@{")
    chk(b); b(f"s_cbranch_vccnz {slow}"); b.label(back); b("@}")
    for k in range(4): b(f"v_mov_b32 v{252+k}, v{CST+8+2*k}")
    tail.label(slow); tail(f"s_mov_b32 s10, {SPIN}\ns_mov_b32 s11, {ST0}\ns_mov_b32 s5, {ST0+8192}")
    tail.label(lp)
    for k in range(4): tail(f"buffer_load_dwordx4 {v(CST+4*k,4)}, v{vCS}, {WS}, s{5 if k >= 2 else 11} offen offset:{16*(k&1)} sc1")
    tail("s_waitcnt vmcnt(0)")
    chk(tail); tail(f"s_cbranch_vccz {back}")
    tail(f"s_sub_u32 s10, s10, 1\ns_cmp_lg_u32 s10, 0\ns_cbranch_scc1 {lp}\ns_branch {back}")
def t_loads(b, js):
    for j in js:
        if j: b(f"v_add_u32 v5, {1024*j}, v{vTB}")
        ad = 5 if j else vTB
        for t in range(4):
            r = T0 + (j*4 + t)*4
            b(f"ds_read2_b32 {v(r,2)}, v{ad} offset0:{32*t+6} offset1:{32*t+4} ;@T\nds_read2_b32 {v(r+2,2)}, v{ad} offset0:{32*t+2} offset1:{32*t} ;@T")
def t_groups(ta=188):
    g = []
    for k in range(32):
        j, t = k >> 2, k & 3
        r = T0 + 4*k
        grp = [f"    v_add_u32 v{ta}, {1024*j}, v{vTB}"] if t == 0 else []
        grp += [f"    ds_read2_b32 {v(r,2)}, v{ta} offset0:{32*t+6} offset1:{32*t+4} ;@T", f"    ds_read2_b32 {v(r+2,2)}, v{ta} offset0:{32*t+2} offset1:{32*t} ;@T"]
        g.append(grp)
    return g
def u_pad(b):
    b(f"v_subrev_u32 v5, {LEX}, v{vEW}\nv_and_b32 v5, 0x3f0, v5\nv_lshrrev_b32 v5, 1, v5\nv_add_u32 v5, {LU}, v5\nv_mov_b32 v{UPK}, 0\nv_mov_b32 v{UPK+1}, 0")
    b(f"ds_write_b64 v5, {v(UPK,2)}\nds_write_b64 v5, {v(UPK,2)} offset:{US}")
def conv_half(b, layer, half, bg=[], pre_barrier=None, after_ln=None, after_mfma=None, tailbg=[], pre_barrier2=None):
    X = 248
    MN, RI, DD = 192, 196, 176
    b("@vm cin")
    stamp(b, f"L{layer} conv{half} loaded")
    if layer == 0:
        G = (lambda i: 252 + i) if half else (lambda i: CST + 2*i)
        for i in range(4): b(f"v_and_b32 v{RI+i}, s{sMSK}, v{G(i)}")
        for i in range(4): b(f"v_rcp_f32 v{RI+i}, v{RI+i}")
        for i in range(4): b(f"v_lshlrev_b32 v{MN+i}, 16, v{G(i)}")
    else:
        for i in range(4): b(f"v_pk_mul_f32 {v(CST+2*i,2)}, {v(CST+2*i,2)}, s[{sINV}:{sINV+1}]")
        for i in range(4): b(f"v_fma_f32 v{RI+i}, -v{CST+2*i}, v{CST+2*i}, v{CST+2*i+1}")
        for i in range(4): rnd(b, RI+i, RI+i)
        for i in range(4): b(f"v_add_f32 v{RI+i}, s{sEPS}, v{RI+i}")
        for i in range(4): rnd(b, RI+i, RI+i)
        for i in range(4): b(f"v_sqrt_f32 v{RI+i}, abs(v{RI+i})")
        for i in range(4): rnd(b, MN+i, CST+2*i)
        for i in range(4): rnd(b, RI+i, RI+i)
        for i in range(4): b(f"v_rcp_f32 v{RI+i}, v{RI+i}")
    for i in range(4): b(f"v_lshlrev_b32 v{BASE+i}, 16, v{X+i}\nv_and_b32 v{BASE+4+i}, s{sMSK}, v{X+i}")
    for k in range(4): b(f"v_pk_add_f32 {v(DD+2*k,2)}, {v(BASE+2*k,2)}, {v(MN+2*(k&1),2)} neg_lo:[0,1] neg_hi:[0,1]")
    if opt("rd", 1):
        for k in range(8): rnd(b, DD+k, DD+k)
    for k in range(4): b(f"v_pk_mul_f32 {v(DD+2*k,2)}, {v(DD+2*k,2)}, {v(RI+2*(k&1),2)}")
    for k in range(4): b(f"v_cvt_pk_bf16_f32 v{UPK+k}, v{DD+2*k}, v{DD+2*k+1}")
    b(f"ds_write_b64 v{vUW}, {v(UPK,2)} offset:{half*2048}\nds_write_b64 v{vUW}, {v(UPK+2,2)} offset:{US+half*2048}")
    F2 = opt("fine", 0) == 2 and layer == 1
    if F2: stamp(b, f"c{half} ln")
    if pre_barrier: b(pre_barrier)
    b("s_waitcnt lgkmcnt(0)\ns_barrier")
    if F2: stamp(b, f"c{half} bar1")
    if after_ln: after_ln(b)
    def urd(tp, t): return f"    ds_read_b128 {v(U0+(tp*4+t)*4,4)}, v{vUR} offset:{512 + 512*(tp+4*half) - 64*t - 32} ;@U{tp}_{t}"
    b.add([urd(0, t) for t in range(4)] + [urd(1, 0), urd(1, 1)])
    later = [urd(tp, t) for tp in range(1, 4) for t in range(4)][2:]
    fill = []
    for k in range(4):
        c = k >> 1
        fill += [f"    v_lshlrev_b32 v{RV+2*k}, 16, v{UPK+k}", f"    v_and_b32 v{RV+2*k+1}, s{sMSK}, v{UPK+k}"]
    for k in range(8): fill.append(f"    v_fmac_f32 v{BASE+k}, s{sDK + (k >> 2)}, v{RV+k}")
    ml = []; cnt = 0
    lastidx = {0: 12, 1: 25, 2: 34}
    for tp in range(4):
        for t in range(4):
            ml.append(f"    @lg U{tp}_{t}")
            for r in range(tp, 4):
                acc = ACC + (4*half + r)*4
                cin = "0" if (half == 0 and t == 0 and tp == 0) else ac(acc, 4)
                ml.append(f"    v_mfma_f32_16x16x32_bf16 {ac(acc,4)}, {v(T0+((r-tp)*4+t)*4,4)}, {v(U0+(tp*4+t)*4,4)}, {cin}")
                if later: ml.append(later.pop(0))
                elif fill: ml.append(fill.pop(0))
                for r_ in range(3):
                    if cnt == lastidx[r_] + (5 if r_ < 2 else 5): ml.append(f"    ds_write_b128 v{vEW}, {ac(ACC+(4*half+r_)*4,4)} offset:{r_*4096}")
                cnt += 1
    assert not later and not fill
    ml = interleave(ml, bg, start=2)
    b.add(ml)
    tailbg = list(tailbg)
    if F2: stamp(b, f"c{half} mfma")
    if after_mfma: after_mfma(b)
    if F2: stamp(b, f"c{half} chk")
    b(f"ds_write_b128 v{vEW}, {ac(ACC+(4*half+3)*4,4)} offset:{3*4096}")
    b.add(flat(tailbg[:2]))
    if half == 0: b.add(ab_list()[:GF1])
    if pre_barrier2: b(pre_barrier2)
    b("s_waitcnt lgkmcnt(0)\ns_barrier")
    if F2: stamp(b, f"c{half} bar2")
    for src in range(4): b(f"ds_read_b128 {v(RV+4*src,4)}, v{vER} offset:{src*1024} ;@E{src>>1}")
    b.add(flat(tailbg[2:]))
    if half == 0: b.add(ab_list()[GF1:GF1+GF2])
    b(f"s_mov_b32 s{sO}, {XP[1+2*layer] + half*0x100000}")
    for c in range(2):
        b(f"@lg E{c}")
        for k in range(2): b(f"v_pk_add_f32 {v(RV+8*c+2*k,2)}, {v(RV+8*c+2*k,2)}, {v(RV+8*c+4+2*k,2)}")
        for k in range(2): b(f"v_pk_add_f32 {v(BASE+4*c+2*k,2)}, {v(BASE+4*c+2*k,2)}, {v(RV+8*c+2*k,2)}")
    for i in range(4): b(f"v_cvt_pk_bf16_f32 v{244+i}, v{BASE+i}, v{BASE+4+i}")
    b(f"s_mov_b64 exec, s[{sEXW}:{sEXW+1}]\nv_swap_b32 v244, v245\nv_swap_b32 v246, v247\ns_mov_b64 exec, -1")
    b(f"buffer_store_dwordx4 v[244:247], v{vCX}, {WS}, s{sO} offen sc1 ;@cst")
    stamp(b, f"L{layer} conv{half} stored")
GF1, GF2 = opt("gf1", 5), opt("gf2", 7)
def ab_list():
    prs = sorted([(r, tp) for r in range(4, 8) for tp in range(4)], key=lambda p: (p[0] - p[1] > 3, p))
    out = []; seen = set()
    for grp in (prs[:6], prs[6:]):
        for t in range(4):
            for r, tp in grp:
                acc = ACC + r*4
                cin = ac(acc, 4) if r in seen else "0"
                seen.add(r)
                out.append(f"    v_mfma_f32_16x16x32_bf16 {ac(acc,4)}, {v(T0+((r-tp)*4+t)*4,4)}, {v(U0+(tp*4+t)*4,4)}, {cin}")
    return out
def conv_ab(b):
    b("@lg T")
    b.add(ab_list()[GF1+GF2:])
def colsum(b):
    wa_regs(b)
    b(f"@{{\ns_lshr_b32 s6, s{sW}, 1\ns_mul_i32 s6, s6, {256*224}\ns_lshl_b32 s5, s{sW}, 6\ns_cmp_eq_u32 s{sW}, 3\ns_cselect_b32 s5, 0, s5\ns_cselect_b64 vcc, -1, 0\ns_sub_u32 s5, s5, s6\n@}}")
    b(f"v_cndmask_b32 v248, v{vWA}, v253, vcc\nv_cndmask_b32 v249, v252, v253, vcc\nv_add_u32 v248, s5, v248\nv_add_u32 v249, s5, v249\nv_add_u32 v250, {256*224}, v248\nv_add_u32 v251, {256*224}, v249")
    for i in range(4): b(f"v_mov_b32 v{240+i}, s{sONE}")
    def rd(ks):
        for f2 in range(2):
            for hf in range(2):
                b(f"ds_read_b64_tr_b16 {v(96+(f2*8+ks%8)*4+2*hf,2)}, v{248 + f2 + 2*(ks//8)} offset:{(32*(ks%8)+16*hf)*224} ;@c{ks}")
    for ks in range(3): rd(ks)
    for ks in range(16):
        if ks + 3 < 16: rd(ks + 3)
        b(f"@lg c{ks}")
        for f2 in range(2):
            b(f"v_mfma_f32_16x16x32_bf16 {v(232+4*f2,4)}, {v(96+(f2*8+ks%8)*4,4)}, v[240:243], {'0' if ks == 0 else v(232+4*f2,4)}")
    b(f"s_lshl_b32 s5, s{sW}, 7\nv_add_u32 v5, s5, v{vCSA}")
    b("ds_write_b128 v5, v[232:235] ;@cs\nds_write_b128 v5, v[236:239] offset:64 ;@cs")

WB, SS, KA, SA = 160, 216, 224, 224
def g1_loads(layer, half):
    g = []
    X0 = 32 + 64 * half
    for ks in range(8):
        for n_, (dst, off) in enumerate([(0, 0), (4, 256), (2, 2048), (6, 2304)]):
            grp = []
            if n_ == 0: grp.append(f"    s_mov_b32 s{sB0}, {XP[1+2*layer] + half*0x100000 + ks*4096}")
            grp.append(f"    buffer_load_dwordx2 {v(X0+8*ks+dst,2)}, v{vGX}, {WS}, s{sB0} offen offset:{off} sc1 ;@x{ks}")
            g.append(grp)
    return g
def wread(b, ks, ft, hfs=(0, 1)):
    r = WB + (ks & 1) * 28 + ft * 4
    for hf in hfs:
        ad, off = (253, 0) if ft == 6 else ((252 if ft & 1 else vWA), (ft >> 1) * 64)
        b(f"ds_read_b64_tr_b16 {v(r+2*hf,2)}, v{ad} offset:{(32*ks+16*hf)*224 + off} ;@w{ks}_{ft}")
def wa_regs(b):
    b(f"v_xor_b32 v252, 32, v{vWA}\nv_and_b32 v253, 32, v{vWA}\nv_mul_u32_u24 v253, 6, v253\nv_sub_u32 v253, v{vWA}, v253\nv_add_u32 v253, 384, v253")
def g1_pre(b):
    wa_regs(b)
    for ft in range(7): wread(b, 0, ft)
def g1_loop(b, half, bg, hooks={}, slots=None):
    X0 = 32 + 64 * half
    bg = list(bg)
    if slots is None: slots = (0, 2, 4, 6) if len(bg) <= 32 else (0, 1, 3, 4, 6)
    def swaps(ks):
        x = X0 + 8 * ks
        b(f"@vm x{ks}\nv_swap_b32 v{x+1}, v{x+4}\nv_swap_b32 v{x+3}, v{x+6}")
    swaps(0)
    for ks in range(8):
        x = X0 + 8 * ks
        if opt("fine", 0) == 3 and len(STAMPS) > 25: stamp(b, f"g1{half} k{ks}")
        if ks in hooks: hooks[ks](b)
        if ks == 7:
            for ft in range(7):
                r = WB + 28 + ft * 4
                if ft in (0, 4): b(f"@lg w{ks}_{3 if ft == 0 else 6}")
                b(f"v_mfma_f32_16x16x32_bf16 {ac(SA+4*ft,4)}, {v(r,4)}, {v(x+4,4)}, {ac(SA+4*ft,4)}")
                b(f"ds_read_b128 {v(160+4*ft,4)}, v{vCSA} offset:{ft*64}")
                if ft < 4 and opt("ms", 1): b(f"v_mov_b32 v{220+ft}, 0x3e803e80")
                if ft in slots and bg: b.add(bg.pop(0))
            for ft in range(7):
                r = WB + 28 + ft * 4
                b(f"v_mfma_f32_16x16x32_bf16 {v(KA+4*ft,4)}, {v(r,4)}, {v(x,4)}, {v(KA+4*ft,4)}")
                if ft % 2 == 0 and ft // 2 < NW0: b(f"ds_write_b128 v{vXW}, {ac(SA+4*(ft//2),4)} offset:{(ft//2)*1024}")
            continue
        for ft in range(7):
            r = WB + (ks & 1) * 28 + ft * 4
            if ft in (0, 4): b(f"@lg w{ks}_{3 if ft == 0 else 6}")
            b(f"v_mfma_f32_16x16x32_bf16 {ac(SA+4*ft,4)}, {v(r,4)}, {v(x+4,4)}, {'0' if ks == 0 else ac(SA+4*ft,4)}")
            wread(b, ks + 1, ft, (0,))
            if ft in slots and bg: b.add(bg.pop(0))
            b(f"v_mfma_f32_16x16x32_bf16 {v(KA+4*ft,4)}, {v(r,4)}, {v(x,4)}, {'0' if ks == 0 else v(KA+4*ft,4)}")
            wread(b, ks + 1, ft, (1,))
            if ft == 5: swaps(ks + 1)
    assert not bg
NW0 = opt("nw0", 2)
RC, CSR = 188, 160
MS = opt("ms", 1)
def g1_post1m(b, half, bg=[], chk=None, bg2=[]):
    X0 = 32 + 64 * half
    m = Buf(); d = Buf()
    for ks in range(8):
        for j in range(2):
            m(f"v_mfma_f32_16x16x32_bf16 {v(188+4*j,4)}, v[220:223], {v(X0+8*ks+4*j,4)}, {'0' if ks == 0 else v(188+4*j,4)}")
    wr = [[f"    ds_write_b128 v{vXW}, {ac(SA+4*ft,4)} offset:{ft*1024}"] for ft in range(NW0, 7)]
    nb = min(len(bg), opt("msb", 4))
    b.add(interleave(interleave(m.l, wr, start=1, every=3), bg[:nb], start=2))
    for ks in range(8):
        x = X0 + 8 * ks
        for q in range(4):
            o = 4 * (q & 1)
            if ks == 0 and q < 2: d(f"v_dot2_f32_bf16 v{SS+o+1}, v{x+q}, v{x+q}, 0\nv_dot2_f32_bf16 v{SS+o+3}, v{x+4+q}, v{x+4+q}, 0")
            else: d(f"v_dot2c_f32_bf16 v{SS+o+1}, v{x+q}, v{x+q}\nv_dot2c_f32_bf16 v{SS+o+3}, v{x+4+q}, v{x+4+q}")
    b.add(interleave(d.l, bg[nb:]))
    b(f"v_permlane32_swap_b32 v188, v192\nv_add_f32 v{SS+1}, v{SS+1}, v{SS+5}\nv_add_f32 v{SS+3}, v{SS+3}, v{SS+7}\nv_add_f32 v{SS}, v188, v192")
    b(f"v_permlane32_swap_b32 v{SS+1}, v{SS+3}\nv_add_f32 v{SS+1}, v{SS+1}, v{SS+3}")
    b(f"v_permlane16_swap_b32 v{SS}, v{SS+1}\nv_add_f32 v{SS}, v{SS}, v{SS+1}\nds_write_b32 v{vSW}, v{SS}")
    b("s_waitcnt lgkmcnt(0)\ns_barrier")
    b(f"ds_read2_b32 {v(SS,2)}, v{vSR} offset0:0 offset1:16 ;@s\nds_read2_b32 {v(SS+2,2)}, v{vSR} offset0:32 offset1:48 ;@s")
    for ft in range(7): b(f"ds_read_b128 {v(RC+4*ft,4)}, v{vXR} offset:{ft*1024} ;@r{ft}")
    chk(b)
    b.add(flat(bg2))
def g1_post1(b, half, bg=[], chk=None, bg2=[]):
    if MS: return g1_post1m(b, half, bg, chk, bg2)
    X0 = 32 + 64 * half
    d = Buf()
    for ks in range(8):
        x = X0 + 8 * ks
        for q in range(4):
            o = 4 * (q & 1)
            if ks == 0 and q < 2:
                d(f"v_dot2_f32_bf16 v{SS+o}, s{sONE}, v{x+q}, 0\nv_dot2_f32_bf16 v{SS+o+1}, v{x+q}, v{x+q}, 0")
                d(f"v_dot2_f32_bf16 v{SS+o+2}, s{sONE}, v{x+4+q}, 0\nv_dot2_f32_bf16 v{SS+o+3}, v{x+4+q}, v{x+4+q}, 0")
                continue
            d(f"v_dot2c_f32_bf16 v{SS+o}, s{sONE}, v{x+q}\nv_dot2c_f32_bf16 v{SS+o+1}, v{x+q}, v{x+q}")
            d(f"v_dot2c_f32_bf16 v{SS+o+2}, s{sONE}, v{x+4+q}\nv_dot2c_f32_bf16 v{SS+o+3}, v{x+4+q}, v{x+4+q}")
    wr = [[f"    ds_write_b128 v{vXW}, {ac(SA+4*ft,4)} offset:{ft*1024}"] for ft in range(NW0, 7)]
    dl = interleave(d.l, wr, start=8, every=24)
    cut = opt("cut", 140)
    b.add(interleave(dl[:cut], bg, start=4))
    chk(b)
    b.add(interleave(dl[cut:], bg2))
    if opt("fine", 0) == 2: stamp(b, f"p{len(STAMPS)} dots")
    b(f"v_pk_add_f32 {v(SS+2,2)}, {v(SS+2,2)}, {v(SS+6,2)}\nv_pk_add_f32 {v(SS,2)}, {v(SS,2)}, {v(SS+4,2)}")
    b(f"v_permlane32_swap_b32 v{SS}, v{SS+2}\nv_permlane32_swap_b32 v{SS+1}, v{SS+3}\nv_pk_add_f32 {v(SS,2)}, {v(SS,2)}, {v(SS+2,2)}")
    b(f"v_permlane16_swap_b32 v{SS}, v{SS+1}\nv_add_f32 v{SS}, v{SS}, v{SS+1}\nds_write_b32 v{vSW}, v{SS}")
    b("s_waitcnt lgkmcnt(0)\ns_barrier")
    b(f"ds_read2_b32 {v(SS,2)}, v{vSR} offset0:0 offset1:16 ;@s\nds_read2_b32 {v(SS+2,2)}, v{vSR} offset0:32 offset1:48 ;@s")
    for ft in range(7): b(f"ds_read_b128 {v(RC+4*ft,4)}, v{vXR} offset:{ft*1024} ;@r{ft}")
def g1_post2(b, layer, half):
    b("@lg s")
    b(f"v_pk_add_f32 {v(SS,2)}, {v(SS,2)}, {v(SS+2,2)}")
    mn, sd, c2 = SS, SS+1, SS+2
    st = Buf()
    st(f"v_pk_mul_f32 {v(SS,2)}, {v(SS,2)}, s[{sINV}:{sINV+1}]\nv_fma_f32 v{sd}, -v{mn}, v{mn}, v{sd}")
    rnd(st, sd, sd); rnd(st, mn, mn)
    st(f"v_add_f32 v{sd}, s{sEPS}, v{sd}"); rnd(st, sd, sd)
    st(f"v_sqrt_f32 v{sd}, abs(v{sd})"); rnd(st, sd, sd)
    st(f"v_rcp_f32 v{c2}, v{sd}\nv_mul_f32 v{c2}, s{sNL2E}, v{c2}")
    adds = []
    for ft in range(7):
        t = RC + 4*ft
        adds.append([f"    @lg r{ft}"] + [f"    v_pk_add_f32 {v(t+2*k,2)}, {v(t+2*k,2)}, {v(KA+4*ft+2*k,2)}" for k in range(2)])
    b.add(interleave(st.l, adds, start=1, every=1))
    if opt("fine", 0) == 2: stamp(b, f"p{len(STAMPS)} stats")
    silu_part(b, 0, SPL[0])
def silu_part(b, k0, k1):
    mn, c2 = SS, SS + 2
    K = range(k0, k1); R = range(2*k0, 2*k1)
    for k in K: b(f"v_pk_fma_f32 {v(RC+2*k,2)}, {v(CSR+2*k,2)}, {v(mn,2)}, {v(RC+2*k,2)} op_sel_hi:[1,0,1] neg_lo:[0,1,0] neg_hi:[0,1,0]")
    for k in K: b(f"v_pk_mul_f32 {v(CSR+2*k,2)}, {v(RC+2*k,2)}, {v(c2,2)} op_sel_hi:[1,0]")
    for r in R: b(f"v_exp_f32 v{CSR+r}, v{CSR+r}")
    for k in K: b(f"v_pk_fma_f32 {v(CSR+2*k,2)}, {v(CSR+2*k,2)}, {v(mn,2)}, {v(mn,2)} op_sel:[0,1,1] op_sel_hi:[1,1,1]")
    for r in R: b(f"v_rcp_f32 v{CSR+r}, v{CSR+r}")
    for k in K: b(f"v_pk_mul_f32 {v(CSR+2*k,2)}, {v(CSR+2*k,2)}, {v(RC+2*k,2)}")
    for k in K:
        ft = k >> 1
        b(f"v_cvt_pk_bf16_f32 v{KA + 8*(ft >> 1) + 2*(ft & 1) + (k & 1)}, v{CSR+2*k}, v{CSR+2*k+1}")
    for pr in range(3):
        if k0 <= 4*pr < k1:
            p = KA + 8*pr
            b(f"v_permlane16_swap_b32 v{p}, v{p+2}\nv_permlane16_swap_b32 v{p+1}, v{p+3}")
SPL = {0: [14], 1: [8, 14], 2: [8, 12, 14], 3: [4, 8, 12, 14], 4: [4, 8, 14], 5: [12, 14]}[opt("sp", 2)]
def g1_store(b, layer, half, pre=None):
    hb = HB[layer] + half * 32 * HT
    b(f"s_mov_b32 s{sO}, {hb}\ns_mov_b32 s5, {hb + 4096}")
    done = 0
    for n_, k1 in enumerate(SPL):
        if n_: silu_part(b, SPL[n_-1], k1)
        if k1 == 14 and pre: pre(b)
        while done < 3 and 4*done + 4 <= k1:
            b(f"buffer_store_dwordx4 {v(KA+8*done,4)}, v{vH4}, {WS}, s{sO if done < 2 else 5} offen offset:{(done&1)*2048} sc1 ;@hst")
            done += 1
    b(f"buffer_store_dwordx2 {v(KA+24,2)}, v{vH2}, {WS}, s5 offen offset:2048 sc1 ;@hst")

H0, C2, RS = 32, 192, 184
def g2_loads(layer, half):
    g = []
    for ks in range(28):
        grp = []
        if ks % 4 == 0: grp.append(f"    s_mov_b32 s{sB0}, {HB[layer] + half*32*HT + ks*1024}")
        grp.append(f"    buffer_load_dwordx4 {v(H0+4*ks,4)}, v{vHL}, {WS}, s{sB0} offen offset:{(ks%4)*1024} sc1 ;@h{half}_{ks}")
        g.append(grp)
    return g
def w2_loads():
    g = []
    for i in range(56):
        grp = []
        if i % 4 == 0: grp.append(f"    s_add_u32 s{sB1}, s{sW2B}, {(i//4)*4096}")
        grp.append(f"    buffer_load_dwordx4 {ac(4*i,4)}, v6, {WS}, s{sB1} offen offset:{(i%4)*1024} sc1 ;@a{i//2}")
        g.append(grp)
    return g
def g2_res(layer, half):
    RS = 144 if half == 0 else 184
    g = [[f"    s_mov_b32 s{sO}, {XP[1+2*layer] + half*0x100000}"] +
         [f"    buffer_load_dword v{RS+k}, v{vRX}, {WS}, s{sO} offen offset:{(k>>1)*1024 + (k&1)*256} sc1 ;@res" for k in range(4)]]
    return g
def g2_loop(b, half, bg, hooks={}, tg=None, nm=None, late=[]):
    bg = list(bg); late = list(late)
    if tg: b.add(flat(tg[28:]))
    LAG = opt("lag", 8)
    def mf(ks, mt):
        b(f"v_mfma_f32_32x32x16_bf16 {v(C2+16*mt,16)}, {ac((ks*2+mt)*4,4)}, {v(H0+4*ks,4)}, {'0' if ks == 0 else v(C2+16*mt,16)}")
    for ks in range(28):
        if ks in hooks: hooks[ks](b)
        b(f"@vm h{half}_{ks},a{ks}")
        if nm and ks in (0, 4, 8, 12, 16, 20, 24): stamp(b, f"{nm} k{ks}")
        mf(ks, 1)
        if bg: b.add(bg.pop(0))
        if ks < 28 - LAG:
            mf(ks, 0)
            if tg and ks >= 1: b.add(tg[ks-1])
    if "end" in hooks: hooks["end"](b)
    wr = [f"ds_write_b128 v{vE1+sg-1}, {v(C2+8*sg+4*q,4)} offset:{q*1024}" for sg in (2, 3) for q in range(2)]
    for n_, ks in enumerate(range(28 - LAG, 28)):
        mf(ks, 0)
        if tg: b.add(tg[ks-1])
        if n_ >= 2 and n_ % 2 == 0 or n_ == LAG - 1:
            if wr: b(wr.pop(0))
        if late: b.add(late.pop(0))
    for w_ in wr: b(w_)
    if tg: b.add(["    s_nop 7"] + tg[27])
    assert not bg and not late
def g2_post1(b, half):
    RS = 144 if half == 0 else 184
    b("@vm res")
    for k in range(4): b(f"v_lshlrev_b32 v{224+2*k}, 16, v{RS+k}\nv_and_b32 v{225+2*k}, s{sMSK}, v{RS+k}")
    b(f"ds_write_b128 v{vE1}, {v(C2+8,4)}\nds_write_b128 v{vE1}, {v(C2+12,4)} offset:1024")
    b("s_waitcnt lgkmcnt(0)\ns_barrier")
    for k in range(6): b(f"ds_read_b128 {v(160+4*k,4)}, v{vE0} offset:{k*1024} ;@q{k>>1}")
def g2_post2(b, layer, half):
    for s_ in range(3):
        b(f"@lg q{s_}")
        for k in range(4): b(f"v_pk_add_f32 {v(C2+2*k,2)}, {v(C2+2*k,2)}, {v(160+8*s_+2*k,2)}")
    if opt("ro", 1):
        for r in range(8): rnd(b, C2+r, C2+r)
    for k in range(4): b(f"v_pk_add_f32 {v(C2+2*k,2)}, {v(C2+2*k,2)}, {v(224+2*k,2)}")
    for k in range(4): b(f"v_cvt_pk_bf16_f32 v{240+k}, v{C2+2*k}, v{C2+2*k+1}")
    if layer == 0:
        b(f"@{{\ns_mov_b32 s{sO}, {XP[2] + half*0x100000}")
        for k in range(4):
            b(f"buffer_store_dword v{240+k}, v{vX2}, {WS}, s{sO} offen offset:{(k>>1)*1024 + (k&1)*256} sc1 ;@xst")
        b("@}\nv_mov_b32 v244, 0\nv_mov_b32 v245, 0")
        for k in range(4): b(f"v_dot2c_f32_bf16 v244, s{sONE}, v{240+k}\nv_dot2c_f32_bf16 v245, v{240+k}, v{240+k}")
        b("v_permlane32_swap_b32 v244, v245\nv_add_f32 v244, v244, v245")
        LST = LSCR + 24576
        b(f"v_lshrrev_b32 v246, 2, v6\nv_add_u32 v246, {LST}, v246\ns_lshl_b32 s5, s{sW}, 8\nv_add_u32 v247, s5, v246")
        b("ds_write_b32 v247, v244\ns_waitcnt lgkmcnt(0)\ns_barrier")
        b("ds_read2st64_b32 v[244:245], v246 offset0:0 offset1:1\nds_read2st64_b32 v[246:247], v246 offset0:2 offset1:3")
        b(f"s_mov_b32 s{sO}, {ST2 + half*8192}\ns_waitcnt lgkmcnt(0)\nv_pk_add_f32 v[244:245], v[244:245], v[246:247]\nv_add_f32 v244, v244, v245")
        b(f"@{{\ns_mov_b64 exec, s[{sEXQ}:{sEXQ+1}]\nbuffer_atomic_add_f32 v244, v{vSA}, {WS}, s{sO} offen sc1 ;@xst\ns_mov_b64 exec, -1\n@}}")
    else:
        b("v_permlane32_swap_b32 v240, v242\nv_permlane32_swap_b32 v241, v243")
        b(f"s_mov_b32 s{sO}, {half*0x100000}\nbuffer_store_dwordx4 v[240:243], v{vOUT}, {srd(SOUT)}, s{sO} offen {opt('ofl', 'x').replace('x', '').replace('_', ' ')}")

gcheck(M); conv_x(M, 0, 0)
M(f"v_mov_b32 v{vPL}, v204\nv_mov_b32 v{vSG}, v205")
M("s_waitcnt lgkmcnt(0)\ns_barrier")
stamp(M, "kgen done")
XT, XUP, XPF, HPF, HP2, HUP = opt("xt", 10), opt("xup", 16), opt("xpf", 16), opt("hpf", 14), opt("hp2", 6), opt("hup", 14)
D1, D2, D3, D4, D5 = opt("d1", 6), opt("d2", 6), opt("d3", 5), opt("d4", 8), opt("d5", 6)
M.add(interleave(gen(t_loads, range(4)), take(D1))); u_pad(M)
for layer in range(2):
    L0 = layer == 0
    cA, cB = 4*layer, 4*layer + 1
    xa, xb, ha, hb_ = g1_loads(layer, 0), g1_loads(layer, 1), g2_loads(layer, 0), g2_loads(layer, 1)
    if L0:
        vm_ = take(D2); tg_ = t_groups(5)[16:]
        conv_half(M, layer, 0, bg=[tg_[k] + (vm_[k//2] if (k % 2 == 0 and k//2 < len(vm_)) else []) for k in range(16)])
        conv_x(M, 0, 1)
        s1_ = [l.replace("v5", "v240").replace("v6", "v241") for l in gen(setup_g1)]
        ab = interleave(gen(conv_ab), [gen(sig_all, cA, "cst")], start=opt("abs0", 30), every=1)
        ab = interleave(ab, [s1_[k:k+2] for k in range(0, len(s1_), 2)], start=2)
        M.add(interleave(ab, take(D3), start=1))
    else:
        conv_half(M, layer, 0, pre_barrier="@vm xst", after_ln=lambda b: sig_all(b, 3, "xst", barrier=False))
        ab = gen(conv_ab)
        ev = sorted([(opt("abp", 2), 0, gen(poll_all, 3)), (opt("abc", 40), 1, gen(check, "all", 3) + gen(conv_inputs, 1, 1)), (opt("abs", 52), 2, gen(sig_all, cA, "cst"))])
        pos = 0
        for p_, _, g_ in ev:
            M.add(ab[pos:p_]); M.add(g_); pos = p_
        M.add(ab[pos:])
    stamp(M, f"L{layer} conv0 signalled")
    if not L0:
        if opt("lateC", 0):
            conv_half(M, layer, 1, after_mfma=lambda b: poll_all(b, cA))
            g1_pre(M); check(M, "all", cA)
            M.add(flat(xa[:XUP]))
        else:
            conv_half(M, layer, 1, after_ln=lambda b: poll_all(b, cA), after_mfma=lambda b: check(b, "all", cA), tailbg=xa[:XT])
            g1_pre(M)
            M.add(flat(xa[XT:XUP]))
    else:
        assert not wq
        wq += w2_loads()
        sg_ = gen(setup_g2)
        sg_ = sg_[:3] + sg_[-4:] + sg_[3:-4]
        bgs = [sg_[k:k+2] for k in range(0, len(sg_), 2)]
        if W2E:
            wl = take(D4)
            for q, g_ in enumerate(wl): bgs[4 + q * ((len(bgs) - 4) // len(wl))] += g_
        conv_half(M, layer, 1, pre_barrier2="@vm w1", bg=bgs)
        poll_all(M, cA)
        cs_ = gen(colsum); cc = opt("cc", 30)
        M.add(interleave(cs_[:cc], take(D5 if W2E else 0), start=12))
        check(M, "all", cA)
        M.add(interleave(cs_[cc:], xa[:XUP]))
        g1_pre(M)
        M("@lg cs")
    stamp(M, f"L{layer} g1A ready")
    w2 = wq
    def mixw(x_, w_):
        if len(x_) + len(w_) <= 32: return x_ + w_
        x_ = list(x_); w_ = list(w_); o = []
        while x_ or w_:
            for q in range(5):
                src = x_ if (x_ and q < 4) else w_
                if src: o.append(src.pop(0))
                elif x_: o.append(x_.pop(0))
        return o + [[]] * (40 - len(o))
    XP1, HP1 = opt("xp1", 0), opt("hp1", 0)
    g1_loop(M, 0, mixw(xa[XUP:], take(opt("wa", 12))), {(opt("sg00", 0) if L0 else opt("sg0", 2)): lambda b: sig_all(b, cB, "cst")},
            slots=(None if L0 else [(0, 2, 4, 6), (0, 1, 3, 4, 6), (0, 1, 2, 3, 4, 5, 6)][opt("xs", 0)]))
    stamp(M, f"L{layer} g1A loop")
    poll_all(M, cB)
    g1_post1(M, 0, take(opt("wp", 14)), lambda b: check(b, "all", cB), xb[:XP1])
    stamp(M, f"L{layer} g1A post1")
    M.add(interleave(gen(g1_post2, layer, 0), xb[XP1:XPF]))
    g1_store(M, layer, 0, g1_pre)
    stamp(M, f"L{layer} g1A stored")
    if opt("fast", 0) and not L0:
        c1_, c2_ = opt("fc1", 5), opt("fc2", 16)
        n1 = 4 * (8 - c1_)
        g1_loop(M, 1, xb[XPF:] + [[]] * (4*c1_ - (32 - XPF)) + ha[:n1],
                {opt("sg1", 3): lambda b: sig_grp(b, 2*layer, "hst"), c1_ - 1: lambda b: poll_grp(b, 2*layer), c1_: lambda b: check(b, "grp", 2*layer)})
        stamp(M, f"L{layer} g1B loop")
        g1_post1(M, 1, [], lambda b: None, [])
        stamp(M, f"L{layer} g1B post1")
        M.add(interleave(gen(g1_post2, layer, 1), g2_res(layer, 0) + ha[n1:HPF]))
        g1_store(M, layer, 1)
        stamp(M, f"L{layer} g1B stored")
        rest = ha[HPF:]
        n2 = 28 - c2_
        g2_loop(M, 0, rest + [[]] * (c2_ - len(rest)) + hb_[:n2],
                {opt("sg2", 8): lambda b: sig_grp(b, 2*layer+1, "hst"), c2_ - 5: lambda b: poll_grp(b, 2*layer+1), c2_: lambda b: check(b, "grp", 2*layer+1)},
                late=hb_[n2:min(20, n2+8)])
        stamp(M, f"L{layer} g2A loop")
        g2_post1(M, 0); g2_post2(M, layer, 0)
        HP2_ = HUP = min(20, n2 + 8)
    else:
        g1_loop(M, 1, [[]] * opt("xsk", 2) + mixw(xb[XPF:], take(XPF - opt("xsk", 2))), {opt("sg1", 3): lambda b: sig_grp(b, 2*layer, "hst")})
        stamp(M, f"L{layer} g1B loop")
        poll_grp(M, 2*layer)
        g1_post1(M, 1, take(opt("wp", 14)), lambda b: check(b, "grp", 2*layer), ha[:HP1])
        stamp(M, f"L{layer} g1B post1")
        M.add(interleave(gen(g1_post2, layer, 1), g2_res(layer, 0) + ha[HP1:HPF]))
        g1_store(M, layer, 1)
        stamp(M, f"L{layer} g1B stored")
        rest = ha[HPF:]
        if w2:
            mix = []
            while rest or w2:
                mix.append((rest.pop(0) if rest else []) + (w2.pop(0) if w2 else []))
            rest = mix
        HP0 = opt("hp00", 0) if L0 else opt("hp0", 8)
        g2_loop(M, 0, [[]] * opt("hsk", 2) + rest, {opt("sg2", 8): lambda b: sig_grp(b, 2*layer+1, "hst"), (opt("pg2", 18) if HP0 else 27): lambda b: poll_grp(b, 2*layer+1),
                          "end": (lambda b: check(b, "grp", 2*layer+1) if HP0 else None)}, nm=("L1 g2A" if layer and opt("fine", 0) == 1 else None), late=hb_[:HP0])
        stamp(M, f"L{layer} g2A loop")
        if HP0: M.add(interleave(gen(g2_post1, 0) + gen(g2_post2, layer, 0), hb_[HP0:HP0+HP2], end=opt("hpe", 40)))
        else:
            if opt("lateA", 0) and L0:
                g2_post1(M, 0); g2_post2(M, layer, 0); check(M, "grp", 2*layer+1); M.add(flat(hb_[:HP2]))
            else:
                g2_post1(M, 0); check(M, "grp", 2*layer+1)
                M.add(interleave(gen(g2_post2, layer, 0), hb_[:HP2], end=opt("hpe", 30)))
        HP2_ = HP0 + HP2
    if L0 and opt("cpf", 1): M("v_add_u32 v5, s90, v6\nglobal_load_dwordx4 v[252:255], v5, s[42:43]")
    stamp(M, f"L{layer} g2A stored")
    M.add(flat(hb_[HP2_:HUP]))
    if L0:
        g2_loop(M, 1, hb_[HUP:] + g2_res(layer, 1), {opt("sg3", 4): lambda b: sig_all(b, 2, "xst"), 24: lambda b: poll_all(b, 2)}, tg=t_groups())
        stamp(M, f"L{layer} g2B loop")
        g2_post1(M, 1)
        if opt("lateB", 0):
            poll_all(M, 2); g2_post2(M, layer, 1); check(M, "all", 2); conv_inputs(M, 1, 0)
        else:
            check(M, "all", 2); conv_inputs(M, 1, 0)
            g2_post2(M, layer, 1)
        stamp(M, f"L{layer} g2B stored")
        u_pad(M)
    else:
        M("s_barrier")
        g2_loop(M, 1, hb_[HUP:] + g2_res(layer, 1), nm=("L1 g2B" if opt("fine", 0) == 1 else None))
        stamp(M, f"L{layer} g2B loop")
        g2_post1(M, 1); g2_post2(M, layer, 1)
        stamp(M, f"L{layer} g2B stored")
if STAMP:
    M(f"s_cmp_lg_u32 s{sW}, 0\ns_cbranch_scc1 {DONE}")
    M(f"v_mbcnt_lo_u32_b32 v5, -1, 0\nv_mbcnt_hi_u32_b32 v5, -1, v5\nv_lshlrev_b32 v5, 2, v5\ns_lshl_b32 s5, s2, 8\ns_add_u32 s5, s5, {0x1800000 + 0x400000}")
    M(f"buffer_store_dword v7, v5, {WS}, s5 offen")
M.label(DONE)
M("s_endpgm")

a = Asm()
a.kernel(NAME + "_kernel", vgpr=512, sgpr=102, accum=256)
lines = resolve(strip_marks(M.l)) + tail.l + [".Lkend:"]
lines, added = hazard.fix(lines)
import numpy as np
def rbf(j):
    u = np.array([j], dtype=np.float32).view(np.uint32)[0]
    u = (int(u) + 0x7FFF + ((int(u) >> 16) & 1)) & 0xFFFF0000
    return int(np.array([u], dtype=np.uint32).view(np.float32)[0])
def gaddr(j):
    p = rbf(max(j, 0)); e = 0 if p < 256 else 1 if p < 512 else 2 if p < 1024 else 3
    row = 8*e + ((((p >> 7) << 3) | (p & 7)) >> e)
    return LGT + row*64 + ((p >> 3) & 15)*4
def dmaoff(par_, k, lane):
    q = 16*k + (lane >> 2); pair, qq, sub = q // 7, q % 7, lane & 3
    full, half_ = (32, 0) if par_ else (0, 192)
    if qq < 3: return pair*7168 + full + qq*64 + sub*16
    if qq < 6: return pair*7168 + 3584 + full + (qq-3)*64 + (sub ^ 2)*16
    return pair*7168 + (sub >> 1)*3584 + half_ + (sub & 1)*16
if TB:
    it = [gaddr(8*t - 1 + 4*pl + k) for pl in range(2) for t in range(256) for k in range(4)] + [gaddr(8*t + 7) for t in range(256)]
    dt_ = [(dmaoff(p_, 4*pl + k, l_) if 4*pl + k < 7 else 0) for p_ in range(2) for pl in range(2) for l_ in range(64) for k in range(4)]
    for nm_, tb_ in (("idx_table", it), ("dma_table", dt_)):
        lines += [".p2align 6", f".type {nm_},@object", f"{nm_}:"] + [".long " + ", ".join(str(x) for x in tb_[q:q+16]) for q in range(0, len(tb_), 16)] + [f".size {nm_}, {4*len(tb_)}"]
a.lines += lines
print("nops added", added, "lines", len(a.lines), file=sys.stderr)
hdr = "".join(l for l in open(f"cdna_kernels/{NAME}.s.ref").readlines() if l.startswith(";") and "@launch" not in l and "Override" not in l and "grid=ceil" not in l)
a.launches = [f"; @launch grid=(256,1,1) block=(256,1,1) lds={LDS_BYTES}"]
open(OUT, "w").write(a.text(hdr))
json.dump(STAMPS, open("work/" + OUT.split("/")[-1] + ".stamps.json", "w"))
```

```python
import sys, struct, json
sys.path.insert(0, "work")
from asmgen import Asm
import hazard
from sched import resolve, interleave, strip_marks
NAME = "interleave_layers__ssm_conv_s4d__dense_activation_silu__prompt"
STAMP = "--stamp" in sys.argv
OPT = dict(x.lstrip("-").split("=") for x in sys.argv[1:] if x.startswith("--") and "=" in x)
def opt(k, d): return type(d)(OPT.get(k, d))
OUT = [x for x in sys.argv[1:] if not x.startswith("--")]
OUT = OUT[0] if OUT else f"cdna_kernels/{NAME}.s"
def f2u(x): return struct.unpack("<I", struct.pack("<f", x))[0]
LOG2E = 1.4426950408889634
GCNT = 6 * 0x8000
ST0 = 0x80000; ST2 = 0x84000
W2F = 0x100000
W1F = 0x1900000
XP = [0x1700000, 0x300000, 0x500000, 0x700000]
HB = [0x900000, 0x1000000]
WS_BYTES = 0x2000000
HT = 114688
LPK = 114688; PKS = 8256; LCS = 131200; LSCR = 131712
LU = LSCR; US = 4608; LEX = LSCR + 9216
ES = 28672; LGT = LEX
LDS_BYTES = 163840
SWS, SW1, SW2, SOUT = 44, 48, 52, 56
sW, sCPI, sRT, sCT, sLT, sDT, sNON, sGC = 60, 61, 62, 63, 64, 65, 66, 67
sDK, sONE, sMSK, sINV, sEPS, sNL2E = 68, 70, 71, 72, 74, 75
sEXS = 76
sB0, sB1, sO, sW2B, sGS = 78, 79, 80, 81, 82
sSTAMP = 84
sEXQ = 92
sEXW = 100
SPIN = 60000
vOUT, vPL, vSG, vPD, vONE = 0, 1, 2, 3, 4
vCX, vCS, vUW, vUR, vTB, vEW, vER, vGX, vWA, vXW, vXR, vSW, vSR, vCSA, vH4, vH2, vHL, vRX, vX2, vE1, vE0, vSA = \
    8, 9, 10, 11, 12, 13, 14, 15, 16, 17, 18, 19, 20, 21, 22, 23, 24, 25, 26, 27, 30, 31
vDMA = 24

HSC = "sc1" if opt("hsc", 1) else opt("hfl", "")
GFLAG = opt("gflag", 0)
if opt("samehb", 0): HB = [HB[0], HB[0]]
NSH = opt('nsh', 8)
class Buf:
    def __init__(self): self.l = []
    def __call__(self, s):
        for ln in s.strip("\n").split("\n"): self.l.append("    " + ln.strip())
    def label(self, n): self.l.append(n + ":")
    def add(self, lines): self.l += lines
uid = [0]
def lab(b="L"):
    uid[0] += 1; return f".{b}_{uid[0]}"
def srd(n): return f"s[{n}:{n+3}]"
def v(n, k=1): return f"v{n}" if k == 1 else f"v[{n}:{n+k-1}]"
def ac(n, k=1): return f"a{n}" if k == 1 else f"a[{n}:{n+k-1}]"
def flat(groups): return [l for g in groups for l in g]
def gen(fn, *args, **kw):
    t = Buf(); fn(t, *args, **kw); return t.l
WS = srd(SWS)
tail = Buf()
STAMPS = []
def stamp(b, name):
    if not STAMP: return
    if opt("light", 0) and name not in ("start", "L1 g2B stored"): return
    i = len(STAMPS); STAMPS.append(name)
    assert i < 64
    b(f"@{{\n{'s_memtime' if opt('cyc', 0) else 's_memrealtime'} s[{sSTAMP}:{sSTAMP+1}]\ns_waitcnt lgkmcnt(0)\nv_writelane_b32 v7, s{sSTAMP}, {i}\n@}}")

FG = opt("fg", 1)
sGP = 91
GADDR = "v_mov_b32 v5, 0" if FG else f"v_and_b32 v5, 0x300, v{vPL}"
GT = 8 if FG else 16
def poll_all(b, cnt):
    b(f"s_mov_b32 s{sO}, {cnt*0x8000}\nbuffer_load_dword v{vPD}, v{vPL}, {WS}, s{sO} offen sc1 ;@poll")
def poll_grp(b, idx):
    b(f"@{{\ns_add_u32 s{sO}, s{sGP}, {idx*16*1024}\n{GADDR}\nbuffer_load_dword v{vPD}, v5, {WS}, s{sO} offen sc1 ;@poll\n@}}")
def check(b, kind, idx):
    slow = lab("slow"); back = lab("back"); lp = lab("lp")
    b("@vm poll")
    b(f"@{{\nv_cmp_gt_u32 vcc, {GT if kind == 'grp' else 256 // NSH}, v{vPD}\ns_cbranch_vccnz {slow}")
    b.label(back); b("@}")
    tail.label(slow)
    tail(f"s_mov_b32 s10, {SPIN}")
    if kind == "all": tail(f"s_mov_b32 s11, {idx*0x8000}\nv_mov_b32 v5, v{vPL}")
    else: tail(f"s_add_u32 s11, s{sGP}, {idx*16*1024}\n{GADDR}")
    tgt = GT if kind == 'grp' else 256 // NSH
    if opt("pp", 0):
        tail(f"buffer_load_dword v{vPD}, v5, {WS}, s11 offen sc1\ns_sleep {opt('ppd', 4)}")
        tail.label(lp)
        tail(f"buffer_load_dword v4, v5, {WS}, s11 offen sc1\ns_waitcnt vmcnt(1)\nv_cmp_gt_u32 vcc, {tgt}, v{vPD}\ns_cbranch_vccz {back}")
        tail(f"buffer_load_dword v{vPD}, v5, {WS}, s11 offen sc1\ns_waitcnt vmcnt(1)\nv_cmp_gt_u32 vcc, {tgt}, v4\ns_cbranch_vccz {back}")
    else:
        tail.label(lp)
        tail(f"buffer_load_dword v{vPD}, v5, {WS}, s11 offen sc1\ns_waitcnt vmcnt(0)")
        tail(f"v_cmp_gt_u32 vcc, {tgt}, v{vPD}\ns_cbranch_vccz {back}")
    tail(f"s_sub_u32 s10, s10, 1\ns_cmp_lg_u32 s10, 0\ns_cbranch_scc1 {lp}\ns_branch {back}")
def sig_all(b, cnt, tag, barrier=True):
    b(f"@vm {tag}\n@{{\n{'s_barrier' if barrier else 's_nop 0'}\ns_mov_b32 s{sO}, {cnt*0x8000}\ns_mov_b64 exec, s[{sEXS}:{sEXS+1}]")
    b(f"v_mov_b32 v5, 1\nbuffer_atomic_add v5, v{vSG}, {WS}, s{sO} offen sc1\ns_mov_b64 exec, -1\n@}}")
def sig_grp(b, idx, tag):
    b(f"@vm {tag}\n@{{\ns_add_u32 s{sO}, s{sGS}, {idx*16*1024}\ns_mov_b64 exec, 1")
    if GFLAG: b(f"buffer_store_dword v{vONE}, off, {WS}, s{sO} {HSC}\ns_mov_b64 exec, -1\ns_barrier\n@}}")
    else: b(f"v_mov_b32 v5, 1\nbuffer_atomic_add v5, off, {WS}, s{sO} sc1\ns_mov_b64 exec, -1\ns_barrier\n@}}")
def xsum(b, regs, tmp, steps):
    for s in steps:
        for i, r in enumerate(regs): b(f"v_mov_b32 v{tmp+i}, v{r}")
        for i, r in enumerate(regs): b(f"v_permlane{s}_swap_b32 v{r}, v{tmp+i}")
        for i, r in enumerate(regs): b(f"v_add_f32 v{r}, v{r}, v{tmp+i}")
def rnd(b, d, s): b(f"v_cvt_pk_bf16_f32 v{d}, 0, v{s}")

M = Buf()
DONE = ".Ldone"
M.label(".Lkstart")
M("s_cmp_ge_u32 s2, 256")
M(f"s_cbranch_scc1 {DONE}")
M("s_load_dwordx16 s[16:31], s[0:1], 0\ns_load_dwordx8 s[32:39], s[0:1], 64\ns_load_dwordx2 s[40:41], s[0:1], 96")
M("s_memrealtime s[14:15]")
M("s_getpc_b64 s[42:43]")
M.label(".Lpc")
M("v_and_b32 v1, 63, v0\nv_lshlrev_b32 v2, 4, v1\nv_lshrrev_b32 v3, 6, v0")
M(f"v_readfirstlane_b32 s{sW}, v3")
if STAMP: M("v_mov_b32 v7, 0")
M("s_and_b32 s3, s2, 7\ns_lshr_b32 s4, s2, 3")
M(f"s_lshl_b32 s5, s4, 2\ns_add_u32 s5, s5, s{sW}\ns_min_u32 s5, s5, ((.Lkend-.Lkstart-128)>>10)-1\ns_lshl_b32 s5, s5, 10\nv_add_u32 v5, s5, v2")
M("s_mov_b32 s90, s5")
if opt("cp0", 0) == 0: M("global_load_dwordx4 v[200:203], v5, s[42:43]")
TB = opt("tb", 0)
IDX = 100
if TB:
    M("v_lshlrev_b32 v5, 4, v0\nv_add_u32 v5, idx_table-.Lpc, v5\nv_add_u32 v6, 4096, v5\nv_lshlrev_b32 v10, 2, v0\nv_add_u32 v10, idx_table-.Lpc+8192, v10")
    M("s_and_b32 s5, s4, 1\ns_lshl_b32 s5, s5, 11\ns_add_u32 s5, s5, dma_table-.Lpc\nv_add_u32 v11, s5, v2")
    M(f"global_load_dwordx4 {v(vDMA,4)}, v11, s[42:43] ;@tb\nglobal_load_dwordx3 {v(vDMA+4,3)}, v11, s[42:43] offset:1024 ;@tb")
    M(f"global_load_dwordx4 {v(IDX,4)}, v5, s[42:43] ;@tb\nglobal_load_dwordx4 {v(IDX+4,4)}, v6, s[42:43] ;@tb\nglobal_load_dword v{IDX+8}, v10, s[42:43] ;@tb")
M(f"s_lshl_b32 s{sCPI}, s3, 5\ns_add_u32 s{sCPI}, s{sCPI}, s4")
M(f"s_lshl_b32 s5, s2, 13\ns_lshl_b32 s6, s{sW}, 11\ns_add_u32 s5, s5, s6\nv_add_u32 v62, s5, v2")
M(f"s_lshl_b32 s5, s{sCPI}, 9\nv_lshlrev_b32 v63, 1, v0\nv_add_u32 v63, s5, v63")
M(f"s_lshr_b32 s5, s2, 2\ns_lshl_b32 s5, s5, 15\ns_and_b32 s6, s2, 3\ns_lshl_b32 s6, s6, 8\ns_add_u32 s5, s5, s6\ns_lshl_b32 s6, s{sW}, 6\ns_add_u32 s5, s5, s6")
M("v_and_b32 v5, 7, v1\nv_lshlrev_b32 v64, 12, v5\nv_lshrrev_b32 v6, 3, v1\nv_lshl_add_u32 v64, v6, 3, v64\nv_add_u32 v64, s5, v64")
M("s_waitcnt lgkmcnt(0)")
stamp(M, "start")
n0 = lab("n0")
M(f"s_or_b32 s5, s4, s{sW}\ns_cmp_lg_u32 s5, 0\ns_cbranch_scc1 {n0}")
M("s_or_b32 s14, s14, 1\nv_mov_b32 v8, s14\nv_mov_b32 v9, 0\ns_mov_b64 exec, 1\nglobal_atomic_cmpswap v9, v[8:9], s[38:39] sc1 ;@!\ns_mov_b64 exec, -1")
M.label(n0)
if opt("cp0", 0) == 3:
    M(f"s_lshl_b32 s5, s4, 2\ns_add_u32 s5, s5, s{sW}\ns_mul_i32 s5, s5, 384\ns_min_u32 s5, s5, .Lkend-.Lkstart-512")
    M("s_add_u32 s6, s5, 128\ns_add_u32 s10, s5, 256\ns_load_dword s86, s[42:43], s5\ns_load_dword s87, s[42:43], s6\ns_load_dword s10, s[42:43], s10")
for i, dst in enumerate([216, 220, 218, 222]): M(f"global_load_dwordx2 {v(dst,2)}, v64, s[16:17] offset:{i*1024} ;@b1")
M("global_load_dwordx4 v[32:35], v62, s[16:17] ;@b1\nglobal_load_dwordx4 v[36:39], v62, s[16:17] offset:1024 ;@b1")
for i in range(4): M(f"global_load_ushort v{48+i}, v63, s[{18+2*i}:{19+2*i}] ;@par")
M(f"s_and_b32 s{sCT}, s4, 15")
M(f"s_lshl_b32 s{sRT}, s3, 1\ns_lshr_b32 s5, s4, 4\ns_add_u32 s{sRT}, s{sRT}, s5")
M(f"s_lshl_b32 s{sLT}, s{sRT}, 1\ns_bfe_u32 s5, s4, 0x10003\ns_add_u32 s{sLT}, s{sLT}, s5\ns_and_b32 s{sDT}, s4, 7")
M(f"s_lshl_b32 s{sGC}, s{sRT}, 10\ns_add_u32 s{sGC}, s{sGC}, {GCNT}\ns_lshl_b32 s5, s{sW}, 8\ns_add_u32 s{sGS}, s{sGC}, s5")
M(f"s_mov_b32 s{sONE}, 0x3f803f80\ns_mov_b32 s{sMSK}, 0xffff0000\ns_mov_b32 s{sINV}, {f2u(1/512):#x}\ns_mov_b32 s{sINV+1}, {f2u(1/512):#x}")
M(f"s_mov_b32 s{sEPS}, {f2u(1e-5):#x}\ns_mov_b32 s{sNL2E}, {f2u(-LOG2E):#x}")
NR = opt("nr", 8)
if NR == 8: M(f"s_lshl_b32 s5, s{sW}, 1\ns_lshl_b32 s{sEXS}, 3, s5\ns_mov_b32 s{sEXS+1}, 0")
else: M(f"s_lshl_b32 s{sEXS}, 1, s{sW}\ns_mov_b32 s{sEXS+1}, 0")
M(f"s_lshl_b32 s5, s{sW}, 2\ns_lshl_b32 s{sEXQ}, 0x000f000f, s5\ns_mov_b32 s{sEXQ+1}, s{sEXQ}")
M("v_and_b32 v5, 7, v1\nv_lshrrev_b32 v6, 3, v1")
M("v_lshlrev_b32 v65, 10, v6\nv_lshl_add_u32 v65, v5, 4, v65\nv_lshlrev_b32 v207, 9, v6\nv_lshl_add_u32 v207, v5, 4, v207")
M(f"s_lshl_b32 s94, s2, 2\ns_add_u32 s94, s94, s{sW}\ns_min_u32 s94, s94, 895")
M("s_mul_i32 s95, s94, 2341\ns_lshr_b32 s95, s95, 16\ns_mul_i32 s5, s95, 28\ns_sub_u32 s96, s94, s5")
M("s_and_b32 s5, s95, 3\ns_mul_i32 s5, s5, 448\ns_lshl_b32 s6, s96, 4\ns_add_u32 s5, s5, s6\ns_lshl_b32 s7, s5, 10\ns_lshr_b32 s5, s95, 2\ns_lshl_b32 s5, s5, 7\ns_add_u32 s7, s7, s5")
M(f"s_lshl_b32 s9, s{sW}, 12\ns_add_u32 s9, s9, {LPK}")
M(f"s_mov_b32 s{SWS+2}, {WS_BYTES:#x}\ns_mov_b32 s{SWS+3}, 0x20000")
M(f"s_mov_b32 s{SWS}, s40\ns_mov_b32 s{SWS+1}, s41")
n1 = lab("n1")
M(f"s_cmp_ge_u32 s2, 128\ns_cbranch_scc1 {n1}")
M(f"s_lshl_b32 s5, s2, 2\ns_add_u32 s5, s5, s{sW}\ns_lshl_b32 s6, s5, 9\ns_lshl_b32 s5, s5, 5\ns_add_u32 s5, s5, {ST2}")
M("v_mov_b32 v4, 0\nv_mov_b32 v5, 0\nv_lshlrev_b32 v6, 3, v1\nv_lshlrev_b32 v8, 2, v1")
M(f"buffer_store_dwordx2 v[4:5], v6, {WS}, s6 offen sc1 ;@!\ns_mov_b64 exec, 0xff\nbuffer_store_dword v5, v8, {WS}, s5 offen sc1 ;@!\ns_mov_b64 exec, -1")
M.label(n1)
for sd, sb, nb in [(SW1, 32, 512*1792*2), (SW2, 34, 512*1792*2), (SOUT, 36, 2048*512*2)]:
    M(f"s_mov_b32 s{sd}, s{sb}\ns_mov_b32 s{sd+1}, s{sb+1}\ns_mov_b32 s{sd+2}, {nb:#x}\ns_mov_b32 s{sd+3}, 0x20000")
M(f"s_mov_b32 m0, s9\ns_add_u32 s5, s7, 8192\nbuffer_load_dwordx4 v65, {srd(SW2)}, s7 offen lds ;@b2\ns_add_u32 m0, s9, 1024\ns_nop 0\nbuffer_load_dwordx4 v65, {srd(SW2)}, s5 offen lds ;@b2")
M(f"s_lshl_b32 s5, s{sCPI}, 2")
M("s_load_dword s12, s[26:27], s5\ns_load_dword s13, s[28:29], s5")
if opt("tlb", 0):
    M(f"v_lshlrev_b32 v5, 20, v1\ns_mov_b64 exec, 0x7ffffff\ns_mov_b32 s5, 0xc0000\nbuffer_load_dword v240, v5, {WS}, s5 offen sc1\ns_mov_b64 exec, 3")
    M(f"buffer_load_dword v243, v5, {srd(SOUT)}, 0 offen\ns_mov_b64 exec, -1")
M("v_and_b32 v60, 15, v1\nv_lshrrev_b32 v61, 4, v1")
sD0, sD1 = 88, 89
sRX, sRH = 16, 24
M(f"s_mul_i32 s{sD0}, s{sW}, {128*3584}\ns_mul_i32 s5, s{sCT}, 224\ns_add_u32 s{sD0}, s{sD0}, s5\ns_mul_i32 s{sD1}, s{sW}, 28672")
dma = [[f"    s_add_u32 m0, s{sD1}, {p*1024}", f"    s_add_u32 s{sB1}, s{sD0}, {(p//7)*32*3584}", f"    buffer_load_dwordx4 v{vDMA+p%7}, {srd(SW1)}, s{sB1} offen lds ;@w1"] for p in range(28)]
dma = dma[17:] + dma[:17]
def setup_dma(b):
    b(f"s_and_b32 s7, s{sCT}, 1\ns_lshl_b32 s8, s7, 5\ns_mul_i32 s7, s7, 192\ns_sub_u32 s7, 192, s7")
    b("v_and_b32 v64, 3, v1\nv_lshlrev_b32 v64, 4, v64\nv_add_u32 v65, s8, v64\nv_xor_b32 v66, 32, v64")
    b(f"v_add_u32 v66, s8, v66\nv_add_u32 v66, {3584-192}, v66")
    b("v_and_b32 v67, 16, v64\nv_add_u32 v67, s7, v67\nv_lshrrev_b32 v64, 5, v64\nv_mul_u32_u24 v64, 3584, v64")
    b(f"v_add_u32 v67, v67, v64\nv_subrev_u32 v67, {6*64}, v67\nv_lshrrev_b32 v64, 2, v1")
    for k in range(7):
        b(f"v_add_u32 v5, {16*k}, v64\nv_mul_u32_u24 v6, 9363, v5\nv_lshrrev_b32 v6, 16, v6\nv_mul_u32_u24 v62, 7, v6\nv_sub_u32 v5, v5, v62")
        b(f"@{{\nv_cmp_lt_u32 vcc, 2, v5\nv_mul_u32_u24 v6, 7168, v6\nv_lshl_add_u32 v6, v5, 6, v6\nv_cndmask_b32 v62, v65, v66, vcc\nv_cmp_eq_u32 vcc, 6, v5\ns_nop 1\nv_cndmask_b32 v62, v62, v67, vcc\n@}}")
        b(f"v_add_u32 v{vDMA+k}, v6, v62")
def setup(b):
    b(f"s_and_b32 s5, s{sW}, 1\ns_lshr_b32 s6, s{sW}, 1")
    b(f"v_bfe_u32 v{vCX}, v1, 2, 2\nv_lshlrev_b32 v{vCX}, 16, v{vCX}\nv_and_b32 v5, 3, v1\nv_lshl_add_u32 v{vCX}, v5, 6, v{vCX}\nv_lshl_add_u32 v{vCX}, v61, 4, v{vCX}")
    b(f"s_lshl_b32 s7, s{sW}, 18\ns_lshl_b32 s8, s{sCPI}, 8\ns_add_u32 s7, s7, s8\nv_add_u32 v{vCX}, s7, v{vCX}")
    b(f"v_lshlrev_b32 v{vCS}, 7, v60\nv_lshl_add_u32 v{vCS}, v61, 5, v{vCS}\ns_lshl_b32 s7, s{sW}, 11\nv_add_u32 v{vCS}, s7, v{vCS}")
    b(f"v_lshlrev_b32 v5, 5, v60\nv_lshl_add_u32 v{vUW}, v61, 3, v5\ns_lshl_b32 s7, s{sW}, 9\ns_add_u32 s7, s7, {LU+512}\nv_add_u32 v{vUW}, s7, v{vUW}")
    b(f"v_lshl_add_u32 v{vUR}, v61, 4, v5\ns_mul_i32 s7, s6, {US}\ns_lshl_b32 s8, s5, 8\ns_sub_u32 s7, s7, s8\ns_add_u32 s7, s7, {LU}\nv_add_u32 v{vUR}, s7, v{vUR}")
    b(f"v_lshlrev_b32 v5, 3, v61\nv_sub_u32 v5, v60, v5\nv_lshlrev_b32 v5, 2, v5\ns_mul_i32 s7, s6, {PKS}\ns_lshl_b32 s8, s5, 9\ns_add_u32 s7, s7, s8\ns_add_u32 s7, s7, {LPK+26*4}\nv_add_u32 v{vTB}, s7, v5")
    b(f"s_lshl_b32 s7, s{sW}, 10\ns_add_u32 s7, s7, {LEX}\nv_add_u32 v{vEW}, s7, v2\ns_lshl_b32 s7, s{sW}, 12\ns_add_u32 s7, s7, {LEX}\nv_add_u32 v{vER}, s7, v2")
    b(f"v_and_b32 v204, {NSH-1}, v1\nv_lshlrev_b32 v204, 8, v204\ns_and_b32 s7, s3, {NR-1}\ns_lshl_b32 s7, s7, 12\nv_add_u32 v204, s7, v204")
    b(f"v_lshlrev_b32 v205, 12, v1\ns_and_b32 s7, s{sCT}, {NSH-1}\ns_lshl_b32 s7, s7, 8\nv_add_u32 v205, s7, v205\nv_mov_b32 v{vONE}, 1")
    for k in range(0 if TB else 9):
        b(f"v_lshlrev_b32 v5, 3, v0\nv_add_u32 v5, {k-1}, v5")
        if k == 0: b("v_max_i32 v5, 0, v5")
        b("v_cvt_f32_u32 v5, v5\nv_cvt_pk_bf16_f32 v5, 0, v5\nv_cvt_u32_f32 v6, v5")
        b("v_lshrrev_b32 v5, 23, v5\nv_subrev_u32 v5, 134, v5\nv_med3_i32 v5, v5, 0, 3")
        b("v_lshrrev_b32 v62, 7, v6\nv_and_b32 v63, 7, v6\nv_lshl_or_b32 v62, v62, 3, v63\nv_lshrrev_b32 v62, v5, v62\nv_lshl_add_u32 v62, v5, 3, v62")
        b(f"v_bfe_u32 v6, v6, 3, 4\nv_lshlrev_b32 v6, 2, v6\nv_lshl_add_u32 v6, v62, 6, v6\nv_add_u32 v{IDX+k}, {LGT}, v6")
def setup_g1(b):
    b("v_mbcnt_lo_u32_b32 v246, -1, 0\nv_mbcnt_hi_u32_b32 v246, -1, v246\nv_and_b32 v244, 15, v246\nv_lshrrev_b32 v245, 4, v246\nv_lshlrev_b32 v247, 4, v246")
    b(f"s_and_b32 s5, s{sW}, 1\ns_lshr_b32 s6, s{sW}, 1")
    b(f"v_lshlrev_b32 v{vGX}, 9, v245\nv_lshl_add_u32 v{vGX}, v244, 3, v{vGX}\ns_lshl_b32 s7, s{sRT}, 16\ns_lshl_b32 s8, s5, 7\ns_add_u32 s7, s7, s8\ns_lshl_b32 s8, s6, 15\ns_add_u32 s7, s7, s8\nv_add_u32 v{vGX}, s7, v{vGX}")
    b(f"v_lshlrev_b32 v5, 2, v245\nv_bfe_u32 v6, v246, 2, 2\nv_add_u32 v5, v5, v6\nv_mul_u32_u24 v5, 224, v5\nv_and_b32 v6, 3, v246\nv_lshl_add_u32 v5, v6, 3, v5\ns_mul_i32 s7, s6, {256*224}\nv_add_u32 v{vWA}, s7, v5")
    b(f"s_mul_i32 s7, s{sW}, 7680\ns_add_u32 s7, s7, {LSCR}\nv_add_u32 v{vXW}, s7, v247")
    b(f"v_lshrrev_b32 v5, 5, v246\nv_xor_b32 v5, s6, v5\nv_lshlrev_b32 v5, 8, v5\nv_lshl_add_u32 v5, v246, 2, v5\ns_lshl_b32 s7, s5, 9\ns_add_u32 s7, s7, {LSCR+30720}\nv_add_u32 v{vSW}, s7, v5")
    b(f"s_lshl_b32 s8, s6, 8\ns_add_u32 s7, s7, s8\nv_lshlrev_b32 v5, 2, v244\nv_add_u32 v{vSR}, s7, v5")
    b(f"s_xor_b32 s7, s{sW}, 2\ns_mul_i32 s7, s7, 7680\ns_add_u32 s7, s7, {LSCR}\nv_add_u32 v{vXR}, s7, v247")
    b(f"v_lshlrev_b32 v{vCSA}, 4, v245\nv_add_u32 v{vCSA}, {LCS}, v{vCSA}")
    b(f"s_lshl_b32 s7, s{sRT}, 1\ns_add_u32 s7, s7, s5\ns_mul_i32 s7, s7, {HT}\ns_mul_i32 s8, s{sCT}, 7168\ns_add_u32 s7, s7, s8\ns_lshl_b32 s8, s6, 8\ns_add_u32 s7, s7, s8")
    b(f"v_and_b32 v5, 1, v245\nv_lshrrev_b32 v6, 1, v245\nv_lshlrev_b32 v{vH2}, 9, v6\nv_lshl_add_u32 v{vH2}, v244, 4, v{vH2}\nv_add_u32 v{vH2}, s7, v{vH2}\nv_lshl_add_u32 v{vH4}, v5, 10, v{vH2}\nv_lshl_add_u32 v{vH2}, v5, 3, v{vH2}")
    b(f"s_and_b32 s7, s{sCT}, 1\ns_lshl_b32 s8, s7, 10\nv_add_u32 v{vH4}, s8, v{vH4}\ns_mul_i32 s8, s7, 6144\nv_subrev_u32 v{vH2}, s8, v{vH2}")
def setup_g2(b):
    b("v_mbcnt_lo_u32_b32 v248, -1, 0\nv_mbcnt_hi_u32_b32 v248, -1, v248\nv_lshlrev_b32 v6, 4, v248")
    b(f"s_mul_i32 s7, s{sLT}, {HT}\ns_mul_i32 s8, s{sW}, 28672\ns_add_u32 s7, s7, s8\nv_add_u32 v{vHL}, s7, v6")
    b("v_and_b32 v249, 15, v248\nv_lshlrev_b32 v249, 1, v249\nv_bfe_u32 v5, v248, 4, 1\nv_add_u32 v249, v249, v5\nv_lshrrev_b32 v250, 5, v248")
    b(f"s_lshr_b32 s7, s{sLT}, 1\ns_lshl_b32 s7, s7, 16\ns_and_b32 s8, s{sLT}, 1\ns_lshl_b32 s8, s8, 7\ns_add_u32 s7, s7, s8\ns_lshl_b32 s8, s{sDT}, 13\ns_add_u32 s7, s7, s8\ns_lshl_b32 s8, s{sW}, 11\ns_add_u32 s7, s7, s8")
    b(f"v_lshlrev_b32 v{vX2}, 9, v250\nv_lshl_add_u32 v{vX2}, v249, 2, v{vX2}\nv_add_u32 v{vX2}, s7, v{vX2}\ns_and_b32 s8, s{sDT}, 4\nv_xor_b32 v{vRX}, s8, v{vX2}")
    for sg in range(1, 4):
        b(f"s_xor_b32 s7, s{sW}, {sg}\ns_mul_i32 s7, s7, 6144\ns_add_u32 s7, s7, {LSCR+(sg-1)*2048}\nv_add_u32 v{vE1+sg-1}, s7, v6")
    b(f"s_mul_i32 s7, s{sW}, 6144\ns_add_u32 s7, s7, {LSCR}\nv_add_u32 v{vE0}, s7, v6")
    b(f"v_lshlrev_b32 v{vSA}, 3, v249\nv_lshl_add_u32 v{vSA}, v250, 2, v{vSA}\ns_lshl_b32 s7, s{sLT}, 8\nv_add_u32 v{vSA}, s7, v{vSA}")
    b(f"v_lshlrev_b32 v{vOUT}, 10, v249\nv_lshl_add_u32 v{vOUT}, v250, 4, v{vOUT}\ns_lshl_b32 s7, s{sLT}, 15\ns_lshl_b32 s8, s{sDT}, 7\ns_add_u32 s7, s7, s8\ns_lshl_b32 s8, s{sW}, 5\ns_add_u32 s7, s7, s8\nv_add_u32 v{vOUT}, s7, v{vOUT}")
    b(f"s_lshl_b32 s5, s{sDT}, 2\ns_add_u32 s5, s5, s{sW}\ns_mul_i32 s5, s5, 57344\ns_add_u32 s{sW2B}, s5, {W2F}")
def setup_p0(b):
    if FG:
        b(f"s_lshr_b32 s5, s{sCT}, 2\ns_lshl_b32 s5, s5, 1\ns_and_b32 s6, s{sW}, 1\ns_add_u32 s5, s5, s6\ns_lshl_b32 s5, s5, 7\ns_add_u32 s{sGS}, s{sGC}, s5")
        b(f"s_lshl_b32 s5, s{sW}, 1\ns_and_b32 s6, s{sLT}, 1\ns_add_u32 s5, s5, s6\ns_lshl_b32 s5, s5, 7\ns_add_u32 s{sGP}, s{sGC}, s5")
    else: b(f"s_mov_b32 s{sGP}, s{sGC}")
    b(f"@{{\ns_cmp_ge_u32 s{sCPI}, 128\ns_cselect_b64 s[{sEXW}:{sEXW+1}], -1, 0\n@}}")
    b("v_lshrrev_b32 v254, 5, v1")
    b("s_and_b32 s5, s95, 3\nv_and_b32 v5, 1, v61\nv_xor_b32 v209, s5, v5\nv_xor_b32 v210, 2, v209")
    b("v_lshlrev_b32 v5, 3, v254\nv_bfe_u32 v6, v1, 2, 2\nv_add_u32 v5, v5, v6\nv_lshlrev_b32 v5, 7, v5\nv_and_b32 v62, 3, v1\nv_lshl_add_u32 v5, v62, 3, v5\nv_add_u32 v5, s9, v5")
    b("v_lshl_add_u32 v209, v209, 5, v5\nv_lshl_add_u32 v210, v210, 5, v5")
    b(f"s_lshl_b32 s99, s94, 11\ns_add_u32 s99, s99, {W2F}")
    b(f"s_lshl_b32 s11, s4, 16\ns_bfe_u32 s6, s2, 0x10002\ns_lshl_b32 s6, s6, 7\ns_add_u32 s11, s11, s6\ns_and_b32 s6, s2, 3\ns_lshl_b32 s6, s6, 14\ns_add_u32 s11, s11, s6\ns_lshl_b32 s6, s{sW}, 12\ns_add_u32 s11, s11, s6\ns_add_u32 s11, s11, {XP[0]}")
wq = list(dma)
def take(n):
    r = wq[:n]; del wq[:n]; return r
setup_p0(M)
if not TB: setup_dma(M)
M.add(interleave(gen(setup), take(opt("e0", 0)), start=20))
stamp(M, "p0 setup")
M("@vm b1")
stamp(M, "p0 rows")
M("v_swap_b32 v217, v220\nv_swap_b32 v219, v222")
M(f"buffer_store_dwordx4 v[216:219], v207, {WS}, s11 offen sc1 ;@p0s\nbuffer_store_dwordx4 v[220:223], v207, {WS}, s11 offen offset:256 sc1 ;@p0s")
for i in range(4): M(f"v_mov_b32 v{52+i}, 0")
for q in range(4):
    M(f"v_dot2c_f32_bf16 v52, s{sONE}, v{32+q}\nv_dot2c_f32_bf16 v53, v{32+q}, v{32+q}")
    M(f"v_dot2c_f32_bf16 v54, s{sONE}, v{36+q}\nv_dot2c_f32_bf16 v55, v{36+q}, v{36+q}")
for m_ in ["quad_perm:[1,0,3,2]", "quad_perm:[2,3,0,1]", "row_half_mirror", "row_mirror"]:
    for i in range(4): M(f"v_add_f32_dpp v{52+i}, v{52+i}, v{52+i} {m_} row_mask:0xf bank_mask:0xf")
xsum(M, [52, 53, 54, 55], 56, [16, 32])
for r in (52, 54): M(f"v_pk_mul_f32 {v(r,2)}, {v(r,2)}, s[{sINV}:{sINV+1}]")
for r in (52, 54): M(f"v_fma_f32 v{r+1}, -v{r}, v{r}, v{r+1}")
for r in (52, 54): rnd(M, r+1, r+1)
for r in (52, 54): M(f"v_add_f32 v{r+1}, s{sEPS}, v{r+1}")
for r in (52, 54): rnd(M, r+1, r+1)
for r in (52, 54): M(f"v_sqrt_f32 v{r+1}, abs(v{r+1})")
for r in (52, 54): M(f"v_cvt_pk_bf16_f32 v{r}, v{r}, v{r+1}")
M(f"s_lshl_b32 s5, s2, 6\ns_lshl_b32 s6, s{sW}, 4\ns_add_u32 s5, s5, s6\ns_add_u32 s15, s5, {ST0}")
stamp(M, "p0 stats")
nn = lab("nn"); nl = lab("nl"); nb = lab("nb")
M(f"s_waitcnt lgkmcnt(0)\ns_load_dword s{sNON}, s[38:39], 0\nv_mov_b32 v212, v52\nv_mov_b32 v214, v54")
tail.label(nn)
tail(f"s_mov_b32 s10, {SPIN}\nv_mov_b32 v213, 0")
tail.label(nl)
tail("global_load_dword v215, v213, s[38:39] sc1\ns_waitcnt vmcnt(0)")
tail(f"v_readfirstlane_b32 s{sNON}, v215\ns_cmp_lg_u32 s{sNON}, 0\ns_cbranch_scc1 {nb}")
tail(f"s_sub_u32 s10, s10, 1\ns_cmp_lg_u32 s10, 0\ns_cbranch_scc1 {nl}\ns_branch {nb}")
publish = gen(lambda b: (b(f"@{{\ns_waitcnt lgkmcnt(0)\ns_cmp_eq_u32 s{sNON}, 0\ns_cbranch_scc1 {nn}"), b.label(nb), b(f"v_mov_b32 v213, s{sNON}\nv_mov_b32 v215, s{sNON}\n@}}"), b(f"@vm p0s\n@{{\ns_barrier\ns_mov_b64 exec, 1\nbuffer_store_dwordx4 v[212:215], off, {WS}, s15 sc1\ns_mov_b64 exec, -1\n@}}"), stamp(b, "p0 published")))
def w2_relay(b):
    n3 = lab("n3")
    b("@vm b2")
    for mt in range(2):
        for hf in range(2): b(f"ds_read_b64_tr_b16 {v(224+4*mt+2*hf,2)}, v{209+mt} offset:{hf*512} ;@w2r")
    b(f"@lg w2r\n@{{\ns_cmp_ge_u32 s2, 224\ns_cbranch_scc1 {n3}")
    b(f"buffer_store_dwordx4 v[224:227], v2, {WS}, s99 offen sc1 ;@!\nbuffer_store_dwordx4 v[228:231], v2, {WS}, s99 offen offset:1024 sc1 ;@!")
    b.label(n3); b("@}")
def kgen(Kg):
    Kg(f"s_lshl_b32 s{sDK}, s13, 16\ns_and_b32 s{sDK+1}, s13, s{sMSK}")
    Kg(f"@{{\ns_lshl_b32 s5, s12, 16\ns_and_b32 s6, s12, s{sMSK}\ns_cmp_ge_u32 s{sW}, 2\ns_cselect_b32 s5, s6, s5\n@}}")
    L2E = f"{f2u(LOG2E):#x}"
    VAL = lambda row: 110 + 2*row if row < 45 else 62 + 2*(row - 45)
    Kg(f"v_mov_b32 v5, s5\nv_mul_f32 v5, {L2E}, v5\nv_exp_f32 v5, v5")
    for i in range(4): Kg(f"v_lshlrev_b32 v{48+i}, 16, v{48+i}")
    Kg(f"v_mul_f32 v48, {L2E}, v48\nv_exp_f32 v48, v48")
    Kg(f"s_mul_i32 s5, s{sW}, {ES}")
    Kg("v_lshlrev_b32 v98, 2, v1\nv_add_u32 v98, s5, v98")
    rnd(Kg, 5, 5); rnd(Kg, 48, 48)
    Kg(f"v_mul_f32 v49, v49, v5\nv_mul_f32 v48, v48, v5\nv_mul_f32 v49, 0.15915494, v49\nv_mul_f32 v48, s{sNL2E}, v48")
    Kg(f"v_add_f32 v5, v5, v5\nv_mul_f32 v{VAL(0)}, v50, v5\nv_mul_f32 v{VAL(0)+1}, v51, v5")
    E1, E8, E128, E1K = VAL(17), 34, VAL(24), VAL(48)
    PS = [(E1, 1.0), (E8, 8.0), (E128, 128.0), (E1K, 1024.0)]
    for k, (dst, p) in enumerate(PS): Kg(f"v_mul_f32 v{52+k}, {f2u(p):#x}, v48\nv_mul_f32 v{56+k}, {f2u(p):#x}, v49")
    for k, (dst, p) in enumerate(PS): Kg(f"v_exp_f32 v{52+k}, v{52+k}\nv_fract_f32 v{56+k}, v{56+k}")
    for k, (dst, p) in enumerate(PS): Kg(f"v_cos_f32 v{dst}, v{56+k}\nv_sin_f32 v{dst+1}, v{56+k}")
    Kg("v_mul_u32_u24 v99, 272, v60\nv_lshl_add_u32 v99, v61, 4, v99\nv_add_u32 v99, s5, v99")
    Kg(f"v_mov_b32 v{VAL(16)}, 1.0\nv_mov_b32 v{VAL(16)+1}, 0")
    for k, (dst, p) in enumerate(PS): Kg(f"v_mul_f32 v{dst}, v{dst}, v{52+k}\nv_mul_f32 v{dst+1}, v{dst+1}, v{52+k}")
    e16, e32, e64 = 36, 38, 32
    V = VAL
    levels = [
        [(V(1), V(0), E8), (V(18), E1, E1), (V(32), E128, E128), (e16, E8, E8), (V(56), E1K, E1K), (V(25), E1, E128), (V(49), E1K, E128)],
        [(e32, e16, e16), (V(20), V(18), V(18)), (V(40), V(32), V(32)), (V(2), V(0), e16), (V(3), V(1), e16), (V(19), V(18), E1), (V(36), V(32), E128),
         (V(26), V(18), E128), (V(50), E1K, V(32)), (V(33), V(32), V(18))],
        [(e64, e32, e32), (V(4), V(0), e32), (V(5), V(1), e32), (V(6), V(2), e32), (V(7), V(3), e32), (V(21), V(20), E1), (V(22), V(20), V(18)), (V(23), V(20), V(19)),
         (V(42), V(40), E128), (V(44), V(40), V(32)), (V(46), V(40), V(36)), (V(27), V(19), E128), (V(28), V(20), E128), (V(51), E1K, V(36)), (V(52), E1K, V(40)),
         (V(34), V(32), V(20)), (V(37), V(36), V(18)), (V(38), V(36), V(20)), (V(41), V(40), V(20))],
        [(V(8 + i), V(i), e64) for i in range(8)] +
        [(V(29), V(21), E128), (V(30), V(22), E128), (V(31), V(23), E128), (V(35), V(32), V(22)), (V(39), V(36), V(22)),
         (V(43), V(42), V(20)), (V(45), V(44), V(20)), (V(47), V(46), V(20)), (V(53), E1K, V(42)), (V(54), E1K, V(44)), (V(55), E1K, V(46))],
    ]
    row_of = {VAL(r): r for r in range(57)}
    pend = [0, 16, 17, 24, 48]; written = []
    rot = [0]
    def puts(rows):
        g = []
        for r in rows:
            t = 86 + rot[0] % 12; rot[0] += 1
            g.append((f"    v_cvt_pk_bf16_f32 v{t}, v{VAL(r)}, {'-' if r < 16 else ''}v{VAL(r)+1}", f"    ds_write_b32 v98, v{t} offset:{r*272}"))
            written.append(r)
        out = []
        for k in range(len(g) + 1):
            out.append(([g[k][0]] if k < len(g) else []) + ([g[k-1][1]] if k > 0 else []))
        return out
    for lv in levels:
        t = Buf()
        for d_, x_, y_ in lv: t(f"v_pk_mul_f32 {v(d_,2)}, {v(x_,2)}, {v(y_,2)} op_sel_hi:[1,0]")
        for d_, x_, y_ in lv: t(f"v_pk_fma_f32 {v(d_,2)}, {v(x_,2)}, {v(y_,2)}, {v(d_,2)} op_sel:[1,1,0] op_sel_hi:[0,1,1] neg_lo:[1,0,0]")
        Kg.add(interleave(t.l, puts(pend)))
        pend = [row_of[d_] for d_, _, _ in lv if d_ in row_of]
    Kg.add(flat(puts(pend)))
    assert sorted(written) == list(range(57))
    LOF, HF, GD = 110, 126, 62
    Kg("s_waitcnt lgkmcnt(0)")
    for s_ in range(4):
        Kg(f"ds_read_b128 {v(LOF+4*s_,4)}, v99 offset:{s_*64} ;@kf{s_}")
        for T in range(3): Kg(f"ds_read_b128 {v(HF+16*T+4*s_,4)}, v99 offset:{(16+16*T)*272+s_*64} ;@kf{s_}")
    Kg(f"s_mul_i32 s5, s{sW}, 3072\ns_add_u32 s5, s5, {LGT}")
    Kg("v_lshlrev_b32 v5, 2, v60\nv_lshl_add_u32 v5, v61, 8, v5\nv_add_u32 v5, s5, v5")
    for s_ in range(4):
        Kg(f"@lg kf{s_}")
        for T in range(3): Kg(f"v_mfma_f32_16x16x32_bf16 {v(GD+4*T,4)}, {v(HF+16*T+4*s_,4)}, {v(LOF+4*s_,4)}, {'0' if s_ == 0 else v(GD+4*T,4)}")
    for T in range(3):
        for r in range(0, 4, 2): Kg(f"ds_write2_b32 v5, v{GD+4*T+r}, v{GD+4*T+r+1} offset0:{r*16} offset1:{r*16+16}") if T == 0 else None
        if T:
            for r in range(4): Kg(f"ds_write_b32 v5, v{GD+4*T+r} offset:{(T*16+r)*64}")
M("@vm par,tb")
kl = gen(kgen)
PUB = opt("pub", 110)
cpl = ["    v_add_u32 v200, s90, v2", "    global_load_dwordx4 v[200:203], v200, s[42:43]"] if opt("cp0", 0) == 1 else []
W2E = opt("w2e", 0)
if W2E:
    publish = [l.replace("@vm p0s", "s_waitcnt vmcnt(0)") for l in publish]
    kl = interleave(kl, [publish + cpl], start=PUB, every=1)
    kl = gen(w2_relay) + kl
else: kl = interleave(kl, [publish + cpl + gen(w2_relay)], start=PUB, every=1)
M.add(interleave(kl, take(11 - opt("e0", 0)), start=opt("e1", 4)))
stamp(M, "kgen core")
M(f"s_mov_b32 s{sO}, {ST0}\nbuffer_load_dwordx4 v[232:235], v{vCS}, {WS}, s{sO} offen sc1 ;@cin\nbuffer_load_dwordx4 v[236:239], v{vCS}, {WS}, s{sO} offen offset:16 sc1 ;@cin")
M(f"s_mov_b32 s{sO}, {ST0+8192}\nbuffer_load_dwordx4 v[240:243], v{vCS}, {WS}, s{sO} offen sc1 ;@cin\nbuffer_load_dwordx4 v[244:247], v{vCS}, {WS}, s{sO} offen offset:16 sc1 ;@cin")
M("s_waitcnt lgkmcnt(0)\ns_barrier")
for c in range(2):
    for k in range(9): M(f"ds_read2st64_b32 {v(110+c*18+2*k,2)}, v{IDX+k} offset0:{24*c} offset1:{24*c+12} ;@g{c}")
M(f"v_bfe_u32 v5, v0, 4, 1\nv_mul_u32_u24 v5, {PKS}, v5\nv_lshl_add_u32 v5, v60, 2, v5\nv_add_u32 v5, {LPK}, v5\nv_mov_b32 v6, 0")
M("ds_write_b32 v5, v6")
M(f"v_lshlrev_b32 v5, 5, v0\nv_add_u32 v5, {LPK+64}, v5")
M("v_cmp_eq_u32 vcc, 0, v0")
for c in range(2):
    M(f"@lg g{c}")
    for k in range(9):
        r = 110 + c*18 + 2*k
        M(f"v_add_f32 v{r}, v{r}, v{r+1}")
    M(f"v_cndmask_b32 v{110+c*18}, v{110+c*18}, v6, vcc")
    for k in range(8): M(f"v_cvt_pk_bf16_f32 v{72+c*8+k}, v{110+c*18+2*(k+1)}, v{110+c*18+2*k}")
    M(f"ds_write_b128 v5, {v(72+c*8,4)} offset:{c*PKS}\nds_write_b128 v5, {v(76+c*8,4)} offset:{c*PKS+16}")
T0, U0, ACC = 32, 160, 224
BASE, RV, CST, UPK = 224, 232, 232, 240
def conv_stats(b, layer, half):
    b(f"s_mov_b32 s{sO}, {(ST2 if layer else ST0) + half*8192}")
    b(f"buffer_load_dwordx4 {v(CST,4)}, v{vCS}, {WS}, s{sO} offen sc1 ;@cin\nbuffer_load_dwordx4 {v(CST+4,4)}, v{vCS}, {WS}, s{sO} offen offset:16 sc1 ;@cin")
def conv_x(b, layer, half):
    b(f"s_mov_b32 s{sO}, {XP[2*layer] + half*0x100000}\nbuffer_load_dwordx4 v[248:251], v{vCX}, {WS}, s{sO} offen sc1 ;@cin")
def conv_inputs(b, layer, half):
    conv_x(b, layer, half); conv_stats(b, layer, half)
def gcheck(b):
    slow = lab("gs"); back = lab("gb"); lp = lab("gl")
    def chk(o):
        for k in range(8): o(f"v_xor_b32 v{160+k}, s{sNON}, v{CST+2*k+1}")
        o("v_or3_b32 v160, v160, v161, v162\nv_or3_b32 v163, v163, v164, v165\nv_or3_b32 v160, v160, v166, v167\nv_or_b32 v160, v160, v163\nv_cmp_ne_u32 vcc, 0, v160")
    b("@vm cin\n@{")
    chk(b); b(f"s_cbranch_vccnz {slow}"); b.label(back); b("@}")
    for k in range(4): b(f"v_mov_b32 v{252+k}, v{CST+8+2*k}")
    tail.label(slow); tail(f"s_mov_b32 s10, {SPIN}\ns_mov_b32 s11, {ST0}\ns_mov_b32 s5, {ST0+8192}")
    tail.label(lp)
    for k in range(4): tail(f"buffer_load_dwordx4 {v(CST+4*k,4)}, v{vCS}, {WS}, s{5 if k >= 2 else 11} offen offset:{16*(k&1)} sc1")
    tail("s_waitcnt vmcnt(0)")
    chk(tail); tail(f"s_cbranch_vccz {back}")
    tail(f"s_sub_u32 s10, s10, 1\ns_cmp_lg_u32 s10, 0\ns_cbranch_scc1 {lp}\ns_branch {back}")
def t_loads(b, js):
    for j in js:
        if j: b(f"v_add_u32 v5, {1024*j}, v{vTB}")
        ad = 5 if j else vTB
        for t in range(4):
            r = T0 + (j*4 + t)*4
            b(f"ds_read2_b32 {v(r,2)}, v{ad} offset0:{32*t+6} offset1:{32*t+4} ;@T\nds_read2_b32 {v(r+2,2)}, v{ad} offset0:{32*t+2} offset1:{32*t} ;@T")
def t_groups(ta=188):
    g = []
    for k in range(32):
        j, t = k >> 2, k & 3
        r = T0 + 4*k
        grp = [f"    v_add_u32 v{ta}, {1024*j}, v{vTB}"] if t == 0 else []
        grp += [f"    ds_read2_b32 {v(r,2)}, v{ta} offset0:{32*t+6} offset1:{32*t+4} ;@T", f"    ds_read2_b32 {v(r+2,2)}, v{ta} offset0:{32*t+2} offset1:{32*t} ;@T"]
        g.append(grp)
    return g
def u_pad(b):
    b(f"v_subrev_u32 v5, {LEX}, v{vEW}\nv_and_b32 v5, 0x3f0, v5\nv_lshrrev_b32 v5, 1, v5\nv_add_u32 v5, {LU}, v5\nv_mov_b32 v{UPK}, 0\nv_mov_b32 v{UPK+1}, 0")
    b(f"ds_write_b64 v5, {v(UPK,2)}\nds_write_b64 v5, {v(UPK,2)} offset:{US}")
def conv_half(b, layer, half, bg=[], pre_barrier=None, after_ln=None, after_mfma=None, tailbg=[], pre_barrier2=None):
    X = 248
    MN, RI, DD = 192, 196, 176
    b("@vm cin")
    stamp(b, f"L{layer} conv{half} loaded")
    if layer == 0:
        G = (lambda i: 252 + i) if half else (lambda i: CST + 2*i)
        for i in range(4): b(f"v_and_b32 v{RI+i}, s{sMSK}, v{G(i)}")
        for i in range(4): b(f"v_rcp_f32 v{RI+i}, v{RI+i}")
        for i in range(4): b(f"v_lshlrev_b32 v{MN+i}, 16, v{G(i)}")
    else:
        for i in range(4): b(f"v_pk_mul_f32 {v(CST+2*i,2)}, {v(CST+2*i,2)}, s[{sINV}:{sINV+1}]")
        for i in range(4): b(f"v_fma_f32 v{RI+i}, -v{CST+2*i}, v{CST+2*i}, v{CST+2*i+1}")
        for i in range(4): rnd(b, RI+i, RI+i)
        for i in range(4): b(f"v_add_f32 v{RI+i}, s{sEPS}, v{RI+i}")
        for i in range(4): rnd(b, RI+i, RI+i)
        for i in range(4): b(f"v_sqrt_f32 v{RI+i}, abs(v{RI+i})")
        for i in range(4): rnd(b, MN+i, CST+2*i)
        for i in range(4): rnd(b, RI+i, RI+i)
        for i in range(4): b(f"v_rcp_f32 v{RI+i}, v{RI+i}")
    for i in range(4): b(f"v_lshlrev_b32 v{BASE+i}, 16, v{X+i}\nv_and_b32 v{BASE+4+i}, s{sMSK}, v{X+i}")
    for k in range(4): b(f"v_pk_add_f32 {v(DD+2*k,2)}, {v(BASE+2*k,2)}, {v(MN+2*(k&1),2)} neg_lo:[0,1] neg_hi:[0,1]")
    if opt("rd", 1):
        for k in range(8): rnd(b, DD+k, DD+k)
    for k in range(4): b(f"v_pk_mul_f32 {v(DD+2*k,2)}, {v(DD+2*k,2)}, {v(RI+2*(k&1),2)}")
    for k in range(4): b(f"v_cvt_pk_bf16_f32 v{UPK+k}, v{DD+2*k}, v{DD+2*k+1}")
    b(f"ds_write_b64 v{vUW}, {v(UPK,2)} offset:{half*2048}\nds_write_b64 v{vUW}, {v(UPK+2,2)} offset:{US+half*2048}")
    F2 = opt("fine", 0) == 2 and layer == 1
    if F2: stamp(b, f"c{half} ln")
    if pre_barrier: b(pre_barrier)
    b("s_waitcnt lgkmcnt(0)\ns_barrier")
    if F2: stamp(b, f"c{half} bar1")
    if after_ln: after_ln(b)
    def urd(tp, t): return f"    ds_read_b128 {v(U0+(tp*4+t)*4,4)}, v{vUR} offset:{512 + 512*(tp+4*half) - 64*t - 32} ;@U{tp}_{t}"
    b.add([urd(0, t) for t in range(4)] + [urd(1, 0), urd(1, 1)])
    later = [urd(tp, t) for tp in range(1, 4) for t in range(4)][2:]
    fill = []
    for k in range(4):
        c = k >> 1
        fill += [f"    v_lshlrev_b32 v{RV+2*k}, 16, v{UPK+k}", f"    v_and_b32 v{RV+2*k+1}, s{sMSK}, v{UPK+k}"]
    for k in range(8): fill.append(f"    v_fmac_f32 v{BASE+k}, s{sDK + (k >> 2)}, v{RV+k}")
    ml = []; cnt = 0
    lastidx = {0: 12, 1: 25, 2: 34}
    for tp in range(4):
        for t in range(4):
            ml.append(f"    @lg U{tp}_{t}")
            for r in range(tp, 4):
                acc = ACC + (4*half + r)*4
                cin = "0" if (half == 0 and t == 0 and tp == 0) else ac(acc, 4)
                ml.append(f"    v_mfma_f32_16x16x32_bf16 {ac(acc,4)}, {v(T0+((r-tp)*4+t)*4,4)}, {v(U0+(tp*4+t)*4,4)}, {cin}")
                if later: ml.append(later.pop(0))
                elif fill: ml.append(fill.pop(0))
                for r_ in range(3):
                    if cnt == lastidx[r_] + (5 if r_ < 2 else 5): ml.append(f"    ds_write_b128 v{vEW}, {ac(ACC+(4*half+r_)*4,4)} offset:{r_*4096}")
                cnt += 1
    assert not later and not fill
    ml = interleave(ml, bg, start=2)
    b.add(ml)
    tailbg = list(tailbg)
    if F2: stamp(b, f"c{half} mfma")
    if after_mfma: after_mfma(b)
    if F2: stamp(b, f"c{half} chk")
    b(f"ds_write_b128 v{vEW}, {ac(ACC+(4*half+3)*4,4)} offset:{3*4096}")
    b.add(flat(tailbg[:2]))
    if half == 0: b.add(ab_list()[:GF1])
    if pre_barrier2: b(pre_barrier2)
    b("s_waitcnt lgkmcnt(0)\ns_barrier")
    if F2: stamp(b, f"c{half} bar2")
    for src in range(4): b(f"ds_read_b128 {v(RV+4*src,4)}, v{vER} offset:{src*1024} ;@E{src>>1}")
    b.add(flat(tailbg[2:]))
    if half == 0: b.add(ab_list()[GF1:GF1+GF2])
    b(f"s_mov_b32 s{sO}, {XP[1+2*layer] + half*0x100000}")
    for c in range(2):
        b(f"@lg E{c}")
        for k in range(2): b(f"v_pk_add_f32 {v(RV+8*c+2*k,2)}, {v(RV+8*c+2*k,2)}, {v(RV+8*c+4+2*k,2)}")
        for k in range(2): b(f"v_pk_add_f32 {v(BASE+4*c+2*k,2)}, {v(BASE+4*c+2*k,2)}, {v(RV+8*c+2*k,2)}")
    for i in range(4): b(f"v_cvt_pk_bf16_f32 v{244+i}, v{BASE+i}, v{BASE+4+i}")
    b(f"s_mov_b64 exec, s[{sEXW}:{sEXW+1}]\nv_swap_b32 v244, v245\nv_swap_b32 v246, v247\ns_mov_b64 exec, -1")
    b(f"buffer_store_dwordx4 v[244:247], v{vCX}, {WS}, s{sO} offen sc1 ;@cst")
    stamp(b, f"L{layer} conv{half} stored")
GF1, GF2 = opt("gf1", 5), opt("gf2", 7)
def ab_list():
    prs = sorted([(r, tp) for r in range(4, 8) for tp in range(4)], key=lambda p: (p[0] - p[1] > 3, p))
    out = []; seen = set()
    for grp in (prs[:6], prs[6:]):
        for t in range(4):
            for r, tp in grp:
                acc = ACC + r*4
                cin = ac(acc, 4) if r in seen else "0"
                seen.add(r)
                out.append(f"    v_mfma_f32_16x16x32_bf16 {ac(acc,4)}, {v(T0+((r-tp)*4+t)*4,4)}, {v(U0+(tp*4+t)*4,4)}, {cin}")
    return out
def conv_ab(b):
    b("@lg T")
    b.add(ab_list()[GF1+GF2:])
def colsum(b):
    wa_regs(b)
    b(f"@{{\ns_lshr_b32 s6, s{sW}, 1\ns_mul_i32 s6, s6, {256*224}\ns_lshl_b32 s5, s{sW}, 6\ns_cmp_eq_u32 s{sW}, 3\ns_cselect_b32 s5, 0, s5\ns_cselect_b64 vcc, -1, 0\ns_sub_u32 s5, s5, s6\n@}}")
    b(f"v_cndmask_b32 v248, v{vWA}, v253, vcc\nv_cndmask_b32 v249, v252, v253, vcc\nv_add_u32 v248, s5, v248\nv_add_u32 v249, s5, v249\nv_add_u32 v250, {256*224}, v248\nv_add_u32 v251, {256*224}, v249")
    for i in range(4): b(f"v_mov_b32 v{240+i}, s{sONE}")
    def rd(ks):
        for f2 in range(2):
            for hf in range(2):
                b(f"ds_read_b64_tr_b16 {v(96+(f2*8+ks%8)*4+2*hf,2)}, v{248 + f2 + 2*(ks//8)} offset:{(32*(ks%8)+16*hf)*224} ;@c{ks}")
    for ks in range(3): rd(ks)
    for ks in range(16):
        if ks + 3 < 16: rd(ks + 3)
        b(f"@lg c{ks}")
        for f2 in range(2):
            b(f"v_mfma_f32_16x16x32_bf16 {v(232+4*f2,4)}, {v(96+(f2*8+ks%8)*4,4)}, v[240:243], {'0' if ks == 0 else v(232+4*f2,4)}")
    b(f"s_lshl_b32 s5, s{sW}, 7\nv_add_u32 v5, s5, v{vCSA}")
    b("ds_write_b128 v5, v[232:235] ;@cs\nds_write_b128 v5, v[236:239] offset:64 ;@cs")

WB, SS, KA, SA = 160, 216, 224, 224
def g1_loads(layer, half):
    g = []
    X0 = 32 + 64 * half
    for ks in range(8):
        for n_, (dst, off) in enumerate([(0, 0), (4, 256), (2, 2048), (6, 2304)]):
            grp = []
            if n_ == 0: grp.append(f"    s_mov_b32 s{sB0}, {XP[1+2*layer] + half*0x100000 + ks*4096}")
            grp.append(f"    buffer_load_dwordx2 {v(X0+8*ks+dst,2)}, v{vGX}, {WS}, s{sB0} offen offset:{off} sc1 ;@x{ks}")
            g.append(grp)
    return g
def wread(b, ks, ft, hfs=(0, 1)):
    r = WB + (ks & 1) * 28 + ft * 4
    for hf in hfs:
        ad, off = (253, 0) if ft == 6 else ((252 if ft & 1 else vWA), (ft >> 1) * 64)
        b(f"ds_read_b64_tr_b16 {v(r+2*hf,2)}, v{ad} offset:{(32*ks+16*hf)*224 + off} ;@w{ks}_{ft}")
def wa_regs(b):
    b(f"v_xor_b32 v252, 32, v{vWA}\nv_and_b32 v253, 32, v{vWA}\nv_mul_u32_u24 v253, 6, v253\nv_sub_u32 v253, v{vWA}, v253\nv_add_u32 v253, 384, v253")
def g1_pre(b):
    wa_regs(b)
    for ft in range(7): wread(b, 0, ft)
def g1_loop(b, half, bg, hooks={}, slots=None):
    X0 = 32 + 64 * half
    bg = list(bg)
    if slots is None: slots = (0, 2, 4, 6) if len(bg) <= 32 else (0, 1, 3, 4, 6)
    def swaps(ks):
        x = X0 + 8 * ks
        b(f"@vm x{ks}\nv_swap_b32 v{x+1}, v{x+4}\nv_swap_b32 v{x+3}, v{x+6}")
    swaps(0)
    for ks in range(8):
        x = X0 + 8 * ks
        if opt("fine", 0) == 3 and len(STAMPS) > 25: stamp(b, f"g1{half} k{ks}")
        if ks in hooks: hooks[ks](b)
        if ks == 7:
            for ft in range(7):
                r = WB + 28 + ft * 4
                if ft in (0, 4): b(f"@lg w{ks}_{3 if ft == 0 else 6}")
                b(f"v_mfma_f32_16x16x32_bf16 {ac(SA+4*ft,4)}, {v(r,4)}, {v(x+4,4)}, {ac(SA+4*ft,4)}")
                b(f"ds_read_b128 {v(160+4*ft,4)}, v{vCSA} offset:{ft*64}")
                if ft < 4 and opt("ms", 1): b(f"v_mov_b32 v{220+ft}, 0x3e803e80")
                if ft in slots and bg: b.add(bg.pop(0))
            for ft in range(7):
                r = WB + 28 + ft * 4
                b(f"v_mfma_f32_16x16x32_bf16 {v(KA+4*ft,4)}, {v(r,4)}, {v(x,4)}, {v(KA+4*ft,4)}")
                if ft % 2 == 0 and ft // 2 < NW0: b(f"ds_write_b128 v{vXW}, {ac(SA+4*(ft//2),4)} offset:{(ft//2)*1024}")
            continue
        for ft in range(7):
            r = WB + (ks & 1) * 28 + ft * 4
            if ft in (0, 4): b(f"@lg w{ks}_{3 if ft == 0 else 6}")
            b(f"v_mfma_f32_16x16x32_bf16 {ac(SA+4*ft,4)}, {v(r,4)}, {v(x+4,4)}, {'0' if ks == 0 else ac(SA+4*ft,4)}")
            wread(b, ks + 1, ft, (0,))
            if ft in slots and bg: b.add(bg.pop(0))
            b(f"v_mfma_f32_16x16x32_bf16 {v(KA+4*ft,4)}, {v(r,4)}, {v(x,4)}, {'0' if ks == 0 else v(KA+4*ft,4)}")
            wread(b, ks + 1, ft, (1,))
            if ft == 5: swaps(ks + 1)
    assert not bg
NW0 = opt("nw0", 2)
RC, CSR = 188, 160
MS = opt("ms", 1)
def g1_post1m(b, half, bg=[], chk=None, bg2=[]):
    X0 = 32 + 64 * half
    m = Buf(); d = Buf()
    for ks in range(8):
        for j in range(2):
            m(f"v_mfma_f32_16x16x32_bf16 {v(188+4*j,4)}, v[220:223], {v(X0+8*ks+4*j,4)}, {'0' if ks == 0 else v(188+4*j,4)}")
    wr = [[f"    ds_write_b128 v{vXW}, {ac(SA+4*ft,4)} offset:{ft*1024}"] for ft in range(NW0, 7)]
    nb = min(len(bg), opt("msb", 4))
    b.add(interleave(interleave(m.l, wr, start=1, every=3), bg[:nb], start=2))
    for ks in range(8):
        x = X0 + 8 * ks
        for q in range(4):
            o = 4 * (q & 1)
            if ks == 0 and q < 2: d(f"v_dot2_f32_bf16 v{SS+o+1}, v{x+q}, v{x+q}, 0\nv_dot2_f32_bf16 v{SS+o+3}, v{x+4+q}, v{x+4+q}, 0")
            else: d(f"v_dot2c_f32_bf16 v{SS+o+1}, v{x+q}, v{x+q}\nv_dot2c_f32_bf16 v{SS+o+3}, v{x+4+q}, v{x+4+q}")
    b.add(interleave(d.l, bg[nb:]))
    b(f"v_permlane32_swap_b32 v188, v192\nv_add_f32 v{SS+1}, v{SS+1}, v{SS+5}\nv_add_f32 v{SS+3}, v{SS+3}, v{SS+7}\nv_add_f32 v{SS}, v188, v192")
    b(f"v_permlane32_swap_b32 v{SS+1}, v{SS+3}\nv_add_f32 v{SS+1}, v{SS+1}, v{SS+3}")
    b(f"v_permlane16_swap_b32 v{SS}, v{SS+1}\nv_add_f32 v{SS}, v{SS}, v{SS+1}\nds_write_b32 v{vSW}, v{SS}")
    b("s_waitcnt lgkmcnt(0)\ns_barrier")
    b(f"ds_read2_b32 {v(SS,2)}, v{vSR} offset0:0 offset1:16 ;@s\nds_read2_b32 {v(SS+2,2)}, v{vSR} offset0:32 offset1:48 ;@s")
    for ft in range(7): b(f"ds_read_b128 {v(RC+4*ft,4)}, v{vXR} offset:{ft*1024} ;@r{ft}")
    chk(b)
    b.add(flat(bg2))
def g1_post1(b, half, bg=[], chk=None, bg2=[]):
    if MS: return g1_post1m(b, half, bg, chk, bg2)
    X0 = 32 + 64 * half
    d = Buf()
    for ks in range(8):
        x = X0 + 8 * ks
        for q in range(4):
            o = 4 * (q & 1)
            if ks == 0 and q < 2:
                d(f"v_dot2_f32_bf16 v{SS+o}, s{sONE}, v{x+q}, 0\nv_dot2_f32_bf16 v{SS+o+1}, v{x+q}, v{x+q}, 0")
                d(f"v_dot2_f32_bf16 v{SS+o+2}, s{sONE}, v{x+4+q}, 0\nv_dot2_f32_bf16 v{SS+o+3}, v{x+4+q}, v{x+4+q}, 0")
                continue
            d(f"v_dot2c_f32_bf16 v{SS+o}, s{sONE}, v{x+q}\nv_dot2c_f32_bf16 v{SS+o+1}, v{x+q}, v{x+q}")
            d(f"v_dot2c_f32_bf16 v{SS+o+2}, s{sONE}, v{x+4+q}\nv_dot2c_f32_bf16 v{SS+o+3}, v{x+4+q}, v{x+4+q}")
    wr = [[f"    ds_write_b128 v{vXW}, {ac(SA+4*ft,4)} offset:{ft*1024}"] for ft in range(NW0, 7)]
    dl = interleave(d.l, wr, start=8, every=24)
    cut = opt("cut", 140)
    b.add(interleave(dl[:cut], bg, start=4))
    chk(b)
    b.add(interleave(dl[cut:], bg2))
    if opt("fine", 0) == 2: stamp(b, f"p{len(STAMPS)} dots")
    b(f"v_pk_add_f32 {v(SS+2,2)}, {v(SS+2,2)}, {v(SS+6,2)}\nv_pk_add_f32 {v(SS,2)}, {v(SS,2)}, {v(SS+4,2)}")
    b(f"v_permlane32_swap_b32 v{SS}, v{SS+2}\nv_permlane32_swap_b32 v{SS+1}, v{SS+3}\nv_pk_add_f32 {v(SS,2)}, {v(SS,2)}, {v(SS+2,2)}")
    b(f"v_permlane16_swap_b32 v{SS}, v{SS+1}\nv_add_f32 v{SS}, v{SS}, v{SS+1}\nds_write_b32 v{vSW}, v{SS}")
    b("s_waitcnt lgkmcnt(0)\ns_barrier")
    b(f"ds_read2_b32 {v(SS,2)}, v{vSR} offset0:0 offset1:16 ;@s\nds_read2_b32 {v(SS+2,2)}, v{vSR} offset0:32 offset1:48 ;@s")
    for ft in range(7): b(f"ds_read_b128 {v(RC+4*ft,4)}, v{vXR} offset:{ft*1024} ;@r{ft}")
def g1_post2(b, layer, half):
    b("@lg s")
    b(f"v_pk_add_f32 {v(SS,2)}, {v(SS,2)}, {v(SS+2,2)}")
    mn, sd, c2 = SS, SS+1, SS+2
    st = Buf()
    st(f"v_pk_mul_f32 {v(SS,2)}, {v(SS,2)}, s[{sINV}:{sINV+1}]\nv_fma_f32 v{sd}, -v{mn}, v{mn}, v{sd}")
    rnd(st, sd, sd); rnd(st, mn, mn)
    st(f"v_add_f32 v{sd}, s{sEPS}, v{sd}"); rnd(st, sd, sd)
    st(f"v_sqrt_f32 v{sd}, abs(v{sd})"); rnd(st, sd, sd)
    st(f"v_rcp_f32 v{c2}, v{sd}\nv_mul_f32 v{c2}, s{sNL2E}, v{c2}")
    adds = []
    for ft in range(7):
        t = RC + 4*ft
        adds.append([f"    @lg r{ft}"] + [f"    v_pk_add_f32 {v(t+2*k,2)}, {v(t+2*k,2)}, {v(KA+4*ft+2*k,2)}" for k in range(2)])
    b.add(interleave(st.l, adds, start=1, every=1))
    if opt("fine", 0) == 2: stamp(b, f"p{len(STAMPS)} stats")
    silu_part(b, 0, SPL[0])
def silu_part(b, k0, k1):
    mn, c2 = SS, SS + 2
    K = range(k0, k1); R = range(2*k0, 2*k1)
    for k in K: b(f"v_pk_fma_f32 {v(RC+2*k,2)}, {v(CSR+2*k,2)}, {v(mn,2)}, {v(RC+2*k,2)} op_sel_hi:[1,0,1] neg_lo:[0,1,0] neg_hi:[0,1,0]")
    for k in K: b(f"v_pk_mul_f32 {v(CSR+2*k,2)}, {v(RC+2*k,2)}, {v(c2,2)} op_sel_hi:[1,0]")
    for r in R: b(f"v_exp_f32 v{CSR+r}, v{CSR+r}")
    for k in K: b(f"v_pk_fma_f32 {v(CSR+2*k,2)}, {v(CSR+2*k,2)}, {v(mn,2)}, {v(mn,2)} op_sel:[0,1,1] op_sel_hi:[1,1,1]")
    for r in R: b(f"v_rcp_f32 v{CSR+r}, v{CSR+r}")
    for k in K: b(f"v_pk_mul_f32 {v(CSR+2*k,2)}, {v(CSR+2*k,2)}, {v(RC+2*k,2)}")
    for k in K:
        ft = k >> 1
        b(f"v_cvt_pk_bf16_f32 v{KA + 8*(ft >> 1) + 2*(ft & 1) + (k & 1)}, v{CSR+2*k}, v{CSR+2*k+1}")
    for pr in range(3):
        if k0 <= 4*pr < k1:
            p = KA + 8*pr
            b(f"v_permlane16_swap_b32 v{p}, v{p+2}\nv_permlane16_swap_b32 v{p+1}, v{p+3}")
SPL = {0: [14], 1: [8, 14], 2: [8, 12, 14], 3: [4, 8, 12, 14], 4: [4, 8, 14], 5: [12, 14]}[opt("sp", 2)]
def g1_store(b, layer, half, pre=None):
    hb = HB[layer] + half * 32 * HT
    b(f"s_mov_b32 s{sO}, {hb}\ns_mov_b32 s5, {hb + 4096}")
    done = 0
    for n_, k1 in enumerate(SPL):
        if n_: silu_part(b, SPL[n_-1], k1)
        if k1 == 14 and pre: pre(b)
        while done < 3 and 4*done + 4 <= k1:
            b(f"buffer_store_dwordx4 {v(KA+8*done,4)}, v{vH4}, {WS}, s{sO if done < 2 else 5} offen offset:{(done&1)*2048} sc1 ;@hst")
            done += 1
    b(f"buffer_store_dwordx2 {v(KA+24,2)}, v{vH2}, {WS}, s5 offen offset:2048 sc1 ;@hst")

H0, C2, RS = 32, 192, 184
def g2_loads(layer, half):
    g = []
    for ks in range(28):
        grp = []
        if ks % 4 == 0: grp.append(f"    s_mov_b32 s{sB0}, {HB[layer] + half*32*HT + ks*1024}")
        grp.append(f"    buffer_load_dwordx4 {v(H0+4*ks,4)}, v{vHL}, {WS}, s{sB0} offen offset:{(ks%4)*1024} sc1 ;@h{half}_{ks}")
        g.append(grp)
    return g
def w2_loads():
    g = []
    for i in range(56):
        grp = []
        if i % 4 == 0: grp.append(f"    s_add_u32 s{sB1}, s{sW2B}, {(i//4)*4096}")
        grp.append(f"    buffer_load_dwordx4 {ac(4*i,4)}, v6, {WS}, s{sB1} offen offset:{(i%4)*1024} sc1 ;@a{i//2}")
        g.append(grp)
    return g
def g2_res(layer, half):
    RS = 144 if half == 0 else 184
    g = [[f"    s_mov_b32 s{sO}, {XP[1+2*layer] + half*0x100000}"] +
         [f"    buffer_load_dword v{RS+k}, v{vRX}, {WS}, s{sO} offen offset:{(k>>1)*1024 + (k&1)*256} sc1 ;@res" for k in range(4)]]
    return g
def g2_loop(b, half, bg, hooks={}, tg=None, nm=None, late=[]):
    bg = list(bg); late = list(late)
    if tg: b.add(flat(tg[28:]))
    LAG = opt("lag", 8)
    def mf(ks, mt):
        b(f"v_mfma_f32_32x32x16_bf16 {v(C2+16*mt,16)}, {ac((ks*2+mt)*4,4)}, {v(H0+4*ks,4)}, {'0' if ks == 0 else v(C2+16*mt,16)}")
    for ks in range(28):
        if ks in hooks: hooks[ks](b)
        b(f"@vm h{half}_{ks},a{ks}")
        if nm and ks in (0, 4, 8, 12, 16, 20, 24): stamp(b, f"{nm} k{ks}")
        mf(ks, 1)
        if bg: b.add(bg.pop(0))
        if ks < 28 - LAG:
            mf(ks, 0)
            if tg and ks >= 1: b.add(tg[ks-1])
    if "end" in hooks: hooks["end"](b)
    wr = [f"ds_write_b128 v{vE1+sg-1}, {v(C2+8*sg+4*q,4)} offset:{q*1024}" for sg in (2, 3) for q in range(2)]
    for n_, ks in enumerate(range(28 - LAG, 28)):
        mf(ks, 0)
        if tg: b.add(tg[ks-1])
        if n_ >= 2 and n_ % 2 == 0 or n_ == LAG - 1:
            if wr: b(wr.pop(0))
        if late: b.add(late.pop(0))
    for w_ in wr: b(w_)
    if tg: b.add(["    s_nop 7"] + tg[27])
    assert not bg and not late
def g2_post1(b, half):
    RS = 144 if half == 0 else 184
    b("@vm res")
    for k in range(4): b(f"v_lshlrev_b32 v{224+2*k}, 16, v{RS+k}\nv_and_b32 v{225+2*k}, s{sMSK}, v{RS+k}")
    b(f"ds_write_b128 v{vE1}, {v(C2+8,4)}\nds_write_b128 v{vE1}, {v(C2+12,4)} offset:1024")
    b("s_waitcnt lgkmcnt(0)\ns_barrier")
    for k in range(6): b(f"ds_read_b128 {v(160+4*k,4)}, v{vE0} offset:{k*1024} ;@q{k>>1}")
def g2_post2(b, layer, half):
    for s_ in range(3):
        b(f"@lg q{s_}")
        for k in range(4): b(f"v_pk_add_f32 {v(C2+2*k,2)}, {v(C2+2*k,2)}, {v(160+8*s_+2*k,2)}")
    if opt("ro", 1):
        for r in range(8): rnd(b, C2+r, C2+r)
    for k in range(4): b(f"v_pk_add_f32 {v(C2+2*k,2)}, {v(C2+2*k,2)}, {v(224+2*k,2)}")
    if layer == 1 and opt("bias", 0):
        for r in range(8): b(f"v_add_f32 v{C2+r}, {f2u(opt('bias', 0)/1000):#x}, v{C2+r}")
    if layer == 1 and opt("gain", 0):
        for r in range(8): b(f"v_mul_f32 v{C2+r}, {f2u(1 + opt('gain', 0)/1000):#x}, v{C2+r}")
    for k in range(4): b(f"v_cvt_pk_bf16_f32 v{240+k}, v{C2+2*k}, v{C2+2*k+1}")
    if layer == 0:
        b(f"@{{\ns_mov_b32 s{sO}, {XP[2] + half*0x100000}")
        for k in range(4):
            b(f"buffer_store_dword v{240+k}, v{vX2}, {WS}, s{sO} offen offset:{(k>>1)*1024 + (k&1)*256} sc1 ;@xst")
        b("@}\nv_mov_b32 v244, 0\nv_mov_b32 v245, 0")
        for k in range(4): b(f"v_dot2c_f32_bf16 v244, s{sONE}, v{240+k}\nv_dot2c_f32_bf16 v245, v{240+k}, v{240+k}")
        b("v_permlane32_swap_b32 v244, v245\nv_add_f32 v244, v244, v245")
        LST = LSCR + 24576
        b(f"v_lshrrev_b32 v246, 2, v6\nv_add_u32 v246, {LST}, v246\ns_lshl_b32 s5, s{sW}, 8\nv_add_u32 v247, s5, v246")
        b("ds_write_b32 v247, v244\ns_waitcnt lgkmcnt(0)\ns_barrier")
        b("ds_read2st64_b32 v[244:245], v246 offset0:0 offset1:1\nds_read2st64_b32 v[246:247], v246 offset0:2 offset1:3")
        b(f"s_mov_b32 s{sO}, {ST2 + half*8192}\ns_waitcnt lgkmcnt(0)\nv_pk_add_f32 v[244:245], v[244:245], v[246:247]\nv_add_f32 v244, v244, v245")
        b(f"@{{\ns_mov_b64 exec, s[{sEXQ}:{sEXQ+1}]\nbuffer_atomic_add_f32 v244, v{vSA}, {WS}, s{sO} offen sc1 ;@xst\ns_mov_b64 exec, -1\n@}}")
    else:
        b("v_permlane32_swap_b32 v240, v242\nv_permlane32_swap_b32 v241, v243")
        b(f"s_mov_b32 s{sO}, {half*0x100000}\nbuffer_store_dwordx4 v[240:243], v{vOUT}, {srd(SOUT)}, s{sO} offen {opt('ofl', 'x').replace('x', '').replace('_', ' ')}")

gcheck(M); conv_x(M, 0, 0)
M(f"v_mov_b32 v{vPL}, v204\nv_mov_b32 v{vSG}, v205")
M("s_waitcnt lgkmcnt(0)\ns_barrier")
stamp(M, "kgen done")
XT, XUP, XPF, HPF, HP2, HUP = opt("xt", 10), opt("xup", 16), opt("xpf", 16), opt("hpf", 14), opt("hp2", 6), opt("hup", 14)
D1, D2, D3, D4, D5 = opt("d1", 6), opt("d2", 6), opt("d3", 5), opt("d4", 8), opt("d5", 6)
M.add(interleave(gen(t_loads, range(4)), take(D1))); u_pad(M)
for layer in range(2):
    L0 = layer == 0
    cA, cB = 4*layer, 4*layer + 1
    xa, xb, ha, hb_ = g1_loads(layer, 0), g1_loads(layer, 1), g2_loads(layer, 0), g2_loads(layer, 1)
    if L0:
        vm_ = take(D2); tg_ = t_groups(5)[16:]
        conv_half(M, layer, 0, bg=[tg_[k] + (vm_[k//2] if (k % 2 == 0 and k//2 < len(vm_)) else []) for k in range(16)])
        conv_x(M, 0, 1)
        s1_ = [l.replace("v5", "v240").replace("v6", "v241") for l in gen(setup_g1)]
        ab = interleave(gen(conv_ab), [gen(sig_all, cA, "cst")], start=opt("abs0", 30), every=1)
        ab = interleave(ab, [s1_[k:k+2] for k in range(0, len(s1_), 2)], start=2)
        M.add(interleave(ab, take(D3), start=1))
    else:
        conv_half(M, layer, 0, pre_barrier="@vm xst", after_ln=lambda b: sig_all(b, 3, "xst", barrier=False))
        ab = gen(conv_ab)
        ev = sorted([(opt("abp", 2), 0, gen(poll_all, 3)), (opt("abc", 40), 1, gen(check, "all", 3) + gen(conv_inputs, 1, 1)), (opt("abs", 52), 2, gen(sig_all, cA, "cst"))])
        pos = 0
        for p_, _, g_ in ev:
            M.add(ab[pos:p_]); M.add(g_); pos = p_
        M.add(ab[pos:])
    stamp(M, f"L{layer} conv0 signalled")
    if not L0:
        if opt("lateC", 0):
            conv_half(M, layer, 1, after_mfma=lambda b: poll_all(b, cA))
            g1_pre(M); check(M, "all", cA)
            M.add(flat(xa[:XUP]))
        else:
            conv_half(M, layer, 1, after_ln=lambda b: poll_all(b, cA), after_mfma=lambda b: check(b, "all", cA), tailbg=xa[:XT])
            g1_pre(M)
            M.add(flat(xa[XT:XUP]))
    else:
        assert not wq
        wq += w2_loads()
        sg_ = gen(setup_g2)
        sg_ = sg_[:3] + sg_[-4:] + sg_[3:-4]
        bgs = [sg_[k:k+2] for k in range(0, len(sg_), 2)]
        if W2E:
            wl = take(D4)
            for q, g_ in enumerate(wl): bgs[4 + q * ((len(bgs) - 4) // len(wl))] += g_
        conv_half(M, layer, 1, pre_barrier2="@vm w1", bg=bgs)
        poll_all(M, cA)
        cs_ = gen(colsum); cc = opt("cc", 30)
        M.add(interleave(cs_[:cc], take(D5 if W2E else 0), start=12))
        check(M, "all", cA)
        M.add(interleave(cs_[cc:], xa[:XUP]))
        g1_pre(M)
        M("@lg cs")
    stamp(M, f"L{layer} g1A ready")
    w2 = wq
    def mixw(x_, w_):
        if len(x_) + len(w_) <= 32: return x_ + w_
        x_ = list(x_); w_ = list(w_); o = []
        while x_ or w_:
            for q in range(5):
                src = x_ if (x_ and q < 4) else w_
                if src: o.append(src.pop(0))
                elif x_: o.append(x_.pop(0))
        return o + [[]] * (40 - len(o))
    XP1, HP1 = opt("xp1", 0), opt("hp1", 0)
    g1_loop(M, 0, mixw(xa[XUP:], take(opt("wa", 12))), {(opt("sg00", 0) if L0 else opt("sg0", 2)): lambda b: sig_all(b, cB, "cst")},
            slots=(None if L0 else [(0, 2, 4, 6), (0, 1, 3, 4, 6), (0, 1, 2, 3, 4, 5, 6)][opt("xs", 0)]))
    stamp(M, f"L{layer} g1A loop")
    poll_all(M, cB)
    g1_post1(M, 0, take(opt("wp", 14)), lambda b: check(b, "all", cB), xb[:XP1])
    stamp(M, f"L{layer} g1A post1")
    M.add(interleave(gen(g1_post2, layer, 0), xb[XP1:XPF]))
    g1_store(M, layer, 0, g1_pre)
    stamp(M, f"L{layer} g1A stored")
    if opt("fast", 0) and not L0:
        c1_, c2_ = opt("fc1", 5), opt("fc2", 16)
        n1 = 4 * (8 - c1_)
        g1_loop(M, 1, xb[XPF:] + [[]] * (4*c1_ - (32 - XPF)) + ha[:n1],
                {opt("sg1", 3): lambda b: sig_grp(b, 2*layer, "hst"), c1_ - 1: lambda b: poll_grp(b, 2*layer), c1_: lambda b: check(b, "grp", 2*layer)})
        stamp(M, f"L{layer} g1B loop")
        g1_post1(M, 1, [], lambda b: None, [])
        stamp(M, f"L{layer} g1B post1")
        M.add(interleave(gen(g1_post2, layer, 1), g2_res(layer, 0) + ha[n1:HPF]))
        g1_store(M, layer, 1)
        stamp(M, f"L{layer} g1B stored")
        rest = ha[HPF:]
        n2 = 28 - c2_
        g2_loop(M, 0, rest + [[]] * (c2_ - len(rest)) + hb_[:n2],
                {opt("sg2", 8): lambda b: sig_grp(b, 2*layer+1, "hst"), c2_ - 5: lambda b: poll_grp(b, 2*layer+1), c2_: lambda b: check(b, "grp", 2*layer+1)},
                late=hb_[n2:min(20, n2+8)])
        stamp(M, f"L{layer} g2A loop")
        g2_post1(M, 0); g2_post2(M, layer, 0)
        HP2_ = HUP = min(20, n2 + 8)
    else:
        g1_loop(M, 1, [[]] * opt("xsk", 2) + mixw(xb[XPF:], take(XPF - opt("xsk", 2))), {opt("sg1", 3): lambda b: sig_grp(b, 2*layer, "hst")})
        stamp(M, f"L{layer} g1B loop")
        poll_grp(M, 2*layer)
        g1_post1(M, 1, take(opt("wp", 14)), lambda b: check(b, "grp", 2*layer), ha[:HP1])
        stamp(M, f"L{layer} g1B post1")
        M.add(interleave(gen(g1_post2, layer, 1), g2_res(layer, 0) + ha[HP1:HPF]))
        g1_store(M, layer, 1)
        stamp(M, f"L{layer} g1B stored")
        rest = ha[HPF:]
        if w2:
            mix = []
            while rest or w2:
                mix.append((rest.pop(0) if rest else []) + (w2.pop(0) if w2 else []))
            rest = mix
        HP0 = opt("hp00", 0) if L0 else opt("hp0", 8)
        g2_loop(M, 0, [[]] * opt("hsk", 2) + rest, {opt("sg2", 8): lambda b: sig_grp(b, 2*layer+1, "hst"), (opt("pg2", 18) if HP0 else 27): lambda b: poll_grp(b, 2*layer+1),
                          "end": (lambda b: check(b, "grp", 2*layer+1) if HP0 else None)}, nm=("L1 g2A" if layer and opt("fine", 0) == 1 else None), late=hb_[:HP0])
        stamp(M, f"L{layer} g2A loop")
        if HP0: M.add(interleave(gen(g2_post1, 0) + gen(g2_post2, layer, 0), hb_[HP0:HP0+HP2], end=opt("hpe", 40)))
        else:
            if opt("lateA", 0) and L0:
                g2_post1(M, 0); g2_post2(M, layer, 0); check(M, "grp", 2*layer+1); M.add(flat(hb_[:HP2]))
            else:
                g2_post1(M, 0); check(M, "grp", 2*layer+1)
                M.add(interleave(gen(g2_post2, layer, 0), hb_[:HP2], end=opt("hpe", 30)))
        HP2_ = HP0 + HP2
    if L0 and opt("cpf", 1): M("v_add_u32 v5, s90, v6\nglobal_load_dwordx4 v[252:255], v5, s[42:43]")
    stamp(M, f"L{layer} g2A stored")
    M.add(flat(hb_[HP2_:HUP]))
    if L0:
        g2_loop(M, 1, hb_[HUP:] + g2_res(layer, 1), {opt("sg3", 4): lambda b: sig_all(b, 2, "xst"), 24: lambda b: poll_all(b, 2)}, tg=t_groups())
        stamp(M, f"L{layer} g2B loop")
        g2_post1(M, 1)
        if opt("lateB", 0):
            poll_all(M, 2); g2_post2(M, layer, 1); check(M, "all", 2); conv_inputs(M, 1, 0)
        else:
            check(M, "all", 2); conv_inputs(M, 1, 0)
            g2_post2(M, layer, 1)
        stamp(M, f"L{layer} g2B stored")
        u_pad(M)
    else:
        M("s_barrier")
        g2_loop(M, 1, hb_[HUP:] + g2_res(layer, 1), nm=("L1 g2B" if opt("fine", 0) == 1 else None))
        stamp(M, f"L{layer} g2B loop")
        g2_post1(M, 1); g2_post2(M, layer, 1)
        stamp(M, f"L{layer} g2B stored")
if STAMP:
    M(f"s_cmp_lg_u32 s{sW}, 0\ns_cbranch_scc1 {DONE}")
    M(f"v_mbcnt_lo_u32_b32 v5, -1, 0\nv_mbcnt_hi_u32_b32 v5, -1, v5\nv_lshlrev_b32 v5, 2, v5\ns_lshl_b32 s5, s2, 8\ns_add_u32 s5, s5, {0x1800000 + 0x400000}")
    M(f"buffer_store_dword v7, v5, {WS}, s5 offen")
M.label(DONE)
M("s_endpgm")

a = Asm()
a.kernel(NAME + "_kernel", vgpr=512, sgpr=102, accum=256)
lines = resolve(strip_marks(M.l)) + tail.l + [".Lkend:"]
lines, added = hazard.fix(lines)
import numpy as np
def rbf(j):
    u = np.array([j], dtype=np.float32).view(np.uint32)[0]
    u = (int(u) + 0x7FFF + ((int(u) >> 16) & 1)) & 0xFFFF0000
    return int(np.array([u], dtype=np.uint32).view(np.float32)[0])
def gaddr(j):
    p = rbf(max(j, 0)); e = 0 if p < 256 else 1 if p < 512 else 2 if p < 1024 else 3
    row = 8*e + ((((p >> 7) << 3) | (p & 7)) >> e)
    return LGT + row*64 + ((p >> 3) & 15)*4
def dmaoff(par_, k, lane):
    q = 16*k + (lane >> 2); pair, qq, sub = q // 7, q % 7, lane & 3
    full, half_ = (32, 0) if par_ else (0, 192)
    if qq < 3: return pair*7168 + full + qq*64 + sub*16
    if qq < 6: return pair*7168 + 3584 + full + (qq-3)*64 + (sub ^ 2)*16
    return pair*7168 + (sub >> 1)*3584 + half_ + (sub & 1)*16
if TB:
    it = [gaddr(8*t - 1 + 4*pl + k) for pl in range(2) for t in range(256) for k in range(4)] + [gaddr(8*t + 7) for t in range(256)]
    dt_ = [(dmaoff(p_, 4*pl + k, l_) if 4*pl + k < 7 else 0) for p_ in range(2) for pl in range(2) for l_ in range(64) for k in range(4)]
    for nm_, tb_ in (("idx_table", it), ("dma_table", dt_)):
        lines += [".p2align 6", f".type {nm_},@object", f"{nm_}:"] + [".long " + ", ".join(str(x) for x in tb_[q:q+16]) for q in range(0, len(tb_), 16)] + [f".size {nm_}, {4*len(tb_)}"]
a.lines += lines
print("nops added", added, "lines", len(a.lines), file=sys.stderr)
hdr = "".join(l for l in open(f"cdna_kernels/{NAME}.s.ref").readlines() if l.startswith(";") and "@launch" not in l and "Override" not in l and "grid=ceil" not in l)
a.launches = [f"; @launch grid=(256,1,1) block=(256,1,1) lds={LDS_BYTES}"]
open(OUT, "w").write(a.text(hdr))
json.dump(STAMPS, open("work/" + OUT.split("/")[-1] + ".stamps.json", "w"))
```

```python
import sys, struct, json
sys.path.insert(0, "work")
from asmgen import Asm
import hazard
from sched import resolve, interleave, strip_marks
NAME = "interleave_layers__ssm_conv_s4d__dense_activation_silu__prompt"
STAMP = "--stamp" in sys.argv
OPT = dict(x.lstrip("-").split("=") for x in sys.argv[1:] if x.startswith("--") and "=" in x)
def opt(k, d): return type(d)(OPT.get(k, d))
OUT = [x for x in sys.argv[1:] if not x.startswith("--")]
OUT = OUT[0] if OUT else f"cdna_kernels/{NAME}.s"
def f2u(x): return struct.unpack("<I", struct.pack("<f", x))[0]
LOG2E = 1.4426950408889634
GCNT = 6 * 0x8000
ST0 = 0x80000; ST2 = 0x84000
W2F = 0x100000
W1F = 0x1900000
XP = [0x1700000, 0x300000, 0x500000, 0x700000]
HB = [0x900000, 0x1000000]
WS_BYTES = 0x2000000
HT = 114688
LPK = 114688; PKS = 8256; LCS = 131200; LSCR = 131712
LU = LSCR; US = 4608; LEX = LSCR + 9216
ES = 28672; LGT = LEX
LDS_BYTES = 163840
SWS, SW1, SW2, SOUT = 44, 48, 52, 56
sW, sCPI, sRT, sCT, sLT, sDT, sNON, sGC = 60, 61, 62, 63, 64, 65, 66, 67
sDK, sONE, sMSK, sINV, sEPS, sNL2E = 68, 70, 71, 72, 74, 75
sEXS = 76
sB0, sB1, sO, sW2B, sGS = 78, 79, 80, 81, 82
sSTAMP = 84
sEXQ = 92
sEXW = 100
sEXR = 86
SPIN = 60000
vOUT, vPL, vSG, vPD, vONE = 0, 1, 2, 3, 4
vCX, vCS, vUW, vUR, vTB, vEW, vER, vGX, vWA, vXW, vXR, vSW, vSR, vCSA, vH4, vH2, vHL, vRX, vX2, vE1, vE0, vSA = \
    8, 9, 10, 11, 12, 13, 14, 15, 16, 17, 18, 19, 20, 21, 22, 23, 24, 25, 26, 27, 30, 31
vDMA = 24

HSC = "sc1" if opt("hsc", 1) else opt("hfl", "")
GFLAG = opt("gflag", 0)
if opt("samehb", 0): HB = [HB[0], HB[0]]
NSH = opt('nsh', 8)
class Buf:
    def __init__(self): self.l = []
    def __call__(self, s):
        for ln in s.strip("\n").split("\n"): self.l.append("    " + ln.strip())
    def label(self, n): self.l.append(n + ":")
    def add(self, lines): self.l += lines
uid = [0]
def lab(b="L"):
    uid[0] += 1; return f".{b}_{uid[0]}"
def srd(n): return f"s[{n}:{n+3}]"
def v(n, k=1): return f"v{n}" if k == 1 else f"v[{n}:{n+k-1}]"
def ac(n, k=1): return f"a{n}" if k == 1 else f"a[{n}:{n+k-1}]"
def flat(groups): return [l for g in groups for l in g]
def gen(fn, *args, **kw):
    t = Buf(); fn(t, *args, **kw); return t.l
WS = srd(SWS)
tail = Buf()
STAMPS = []
def stamp(b, name):
    if not STAMP: return
    if opt("light", 0) and name not in ("start", "L1 g2B stored"): return
    i = len(STAMPS); STAMPS.append(name)
    assert i < 64
    b(f"@{{\n{'s_memtime' if opt('cyc', 0) else 's_memrealtime'} s[{sSTAMP}:{sSTAMP+1}]\ns_waitcnt lgkmcnt(0)\nv_writelane_b32 v7, s{sSTAMP}, {i}\n@}}")

FG = opt("fg", 1)
sGP = 91
GADDR = "v_mov_b32 v5, 0" if FG else f"v_and_b32 v5, 0x300, v{vPL}"
GT = 8 if FG else 16
def poll_all(b, cnt):
    b(f"s_mov_b32 s{sO}, {cnt*0x8000}\nbuffer_load_dword v{vPD}, v{vPL}, {WS}, s{sO} offen sc1 ;@poll")
def poll_grp(b, idx):
    b(f"@{{\ns_add_u32 s{sO}, s{sGP}, {idx*16*1024}\n{GADDR}\nbuffer_load_dword v{vPD}, v5, {WS}, s{sO} offen sc1 ;@poll\n@}}")
def check(b, kind, idx):
    slow = lab("slow"); back = lab("back"); lp = lab("lp")
    b("@vm poll")
    b(f"@{{\nv_cmp_gt_u32 vcc, {GT if kind == 'grp' else 256 // NSH}, v{vPD}\ns_cbranch_vccnz {slow}")
    b.label(back); b("@}")
    tail.label(slow)
    tail(f"s_mov_b32 s10, {SPIN}")
    if kind == "all": tail(f"s_mov_b32 s11, {idx*0x8000}\nv_mov_b32 v5, v{vPL}")
    else: tail(f"s_add_u32 s11, s{sGP}, {idx*16*1024}\n{GADDR}")
    tgt = GT if kind == 'grp' else 256 // NSH
    if opt("pp", 0):
        tail(f"buffer_load_dword v{vPD}, v5, {WS}, s11 offen sc1\ns_sleep {opt('ppd', 4)}")
        tail.label(lp)
        tail(f"buffer_load_dword v4, v5, {WS}, s11 offen sc1\ns_waitcnt vmcnt(1)\nv_cmp_gt_u32 vcc, {tgt}, v{vPD}\ns_cbranch_vccz {back}")
        tail(f"buffer_load_dword v{vPD}, v5, {WS}, s11 offen sc1\ns_waitcnt vmcnt(1)\nv_cmp_gt_u32 vcc, {tgt}, v4\ns_cbranch_vccz {back}")
    else:
        tail.label(lp)
        tail(f"buffer_load_dword v{vPD}, v5, {WS}, s11 offen sc1\ns_waitcnt vmcnt(0)")
        tail(f"v_cmp_gt_u32 vcc, {tgt}, v{vPD}\ns_cbranch_vccz {back}")
    tail(f"s_sub_u32 s10, s10, 1\ns_cmp_lg_u32 s10, 0\ns_cbranch_scc1 {lp}\ns_branch {back}")
def sig_all(b, cnt, tag, barrier=True):
    b(f"@vm {tag}\n@{{\n{'s_barrier' if barrier else 's_nop 0'}\ns_mov_b32 s{sO}, {cnt*0x8000}\ns_mov_b64 exec, s[{sEXS}:{sEXS+1}]")
    b(f"v_mov_b32 v5, 1\nbuffer_atomic_add v5, v{vSG}, {WS}, s{sO} offen sc1\ns_mov_b64 exec, -1\n@}}")
def sig_grp(b, idx, tag):
    b(f"@vm {tag}\n@{{\ns_add_u32 s{sO}, s{sGS}, {idx*16*1024}\ns_mov_b64 exec, 1")
    if GFLAG: b(f"buffer_store_dword v{vONE}, off, {WS}, s{sO} {HSC}\ns_mov_b64 exec, -1\ns_barrier\n@}}")
    else: b(f"v_mov_b32 v5, 1\nbuffer_atomic_add v5, off, {WS}, s{sO} sc1\ns_mov_b64 exec, -1\ns_barrier\n@}}")
def xsum(b, regs, tmp, steps):
    for s in steps:
        for i, r in enumerate(regs): b(f"v_mov_b32 v{tmp+i}, v{r}")
        for i, r in enumerate(regs): b(f"v_permlane{s}_swap_b32 v{r}, v{tmp+i}")
        for i, r in enumerate(regs): b(f"v_add_f32 v{r}, v{r}, v{tmp+i}")
def rnd(b, d, s): b(f"v_cvt_pk_bf16_f32 v{d}, 0, v{s}")

M = Buf()
DONE = ".Ldone"
M.label(".Lkstart")
M("s_cmp_ge_u32 s2, 256")
M(f"s_cbranch_scc1 {DONE}")
M("s_load_dwordx16 s[16:31], s[0:1], 0\ns_load_dwordx8 s[32:39], s[0:1], 64\ns_load_dwordx2 s[40:41], s[0:1], 96")
M("s_memrealtime s[14:15]")
M("s_getpc_b64 s[42:43]")
M.label(".Lpc")
M("v_and_b32 v1, 63, v0\nv_lshlrev_b32 v2, 4, v1\nv_lshrrev_b32 v3, 6, v0")
M(f"v_readfirstlane_b32 s{sW}, v3")
if STAMP: M("v_mov_b32 v7, 0")
M("s_and_b32 s3, s2, 7\ns_lshr_b32 s4, s2, 3")
M(f"s_lshl_b32 s5, s4, 2\ns_add_u32 s5, s5, s{sW}\ns_min_u32 s5, s5, ((.Lkend-.Lkstart-128)>>10)-1\ns_lshl_b32 s5, s5, 10\nv_add_u32 v5, s5, v2")
M("s_mov_b32 s90, s5")
if opt("cp0", 0) == 0: M("global_load_dwordx4 v[200:203], v5, s[42:43]")
TB = opt("tb", 0)
IDX = 100
if TB:
    M("v_lshlrev_b32 v5, 4, v0\nv_add_u32 v5, idx_table-.Lpc, v5\nv_add_u32 v6, 4096, v5\nv_lshlrev_b32 v10, 2, v0\nv_add_u32 v10, idx_table-.Lpc+8192, v10")
    M("s_and_b32 s5, s4, 1\ns_lshl_b32 s5, s5, 11\ns_add_u32 s5, s5, dma_table-.Lpc\nv_add_u32 v11, s5, v2")
    M(f"global_load_dwordx4 {v(vDMA,4)}, v11, s[42:43] ;@tb\nglobal_load_dwordx3 {v(vDMA+4,3)}, v11, s[42:43] offset:1024 ;@tb")
    M(f"global_load_dwordx4 {v(IDX,4)}, v5, s[42:43] ;@tb\nglobal_load_dwordx4 {v(IDX+4,4)}, v6, s[42:43] ;@tb\nglobal_load_dword v{IDX+8}, v10, s[42:43] ;@tb")
M(f"s_lshl_b32 s{sCPI}, s3, 5\ns_add_u32 s{sCPI}, s{sCPI}, s4")
M(f"s_lshl_b32 s5, s2, 13\ns_lshl_b32 s6, s{sW}, 11\ns_add_u32 s5, s5, s6\nv_add_u32 v62, s5, v2")
M(f"s_lshl_b32 s5, s{sCPI}, 9\nv_lshlrev_b32 v63, 1, v0\nv_add_u32 v63, s5, v63")
M(f"s_lshr_b32 s5, s2, 2\ns_lshl_b32 s5, s5, 15\ns_and_b32 s6, s2, 3\ns_lshl_b32 s6, s6, 8\ns_add_u32 s5, s5, s6\ns_lshl_b32 s6, s{sW}, 6\ns_add_u32 s5, s5, s6")
M("v_and_b32 v5, 7, v1\nv_lshlrev_b32 v64, 12, v5\nv_lshrrev_b32 v6, 3, v1\nv_lshl_add_u32 v64, v6, 3, v64\nv_add_u32 v64, s5, v64")
M("s_waitcnt lgkmcnt(0)")
stamp(M, "start")
n0 = lab("n0")
M(f"s_or_b32 s5, s4, s{sW}\ns_cmp_lg_u32 s5, 0\ns_cbranch_scc1 {n0}")
M("s_or_b32 s14, s14, 1\nv_mov_b32 v8, s14\nv_mov_b32 v9, 0\ns_mov_b64 exec, 1\nglobal_atomic_cmpswap v9, v[8:9], s[38:39] sc1 ;@!\ns_mov_b64 exec, -1")
M.label(n0)
if opt("cp0", 0) == 3:
    M(f"s_lshl_b32 s5, s4, 2\ns_add_u32 s5, s5, s{sW}\ns_mul_i32 s5, s5, 384\ns_min_u32 s5, s5, .Lkend-.Lkstart-512")
    M("s_add_u32 s6, s5, 128\ns_add_u32 s10, s5, 256\ns_load_dword s86, s[42:43], s5\ns_load_dword s87, s[42:43], s6\ns_load_dword s10, s[42:43], s10")
for i, dst in enumerate([216, 220, 218, 222]): M(f"global_load_dwordx2 {v(dst,2)}, v64, s[16:17] offset:{i*1024} ;@b1")
M("global_load_dwordx4 v[32:35], v62, s[16:17] ;@b1\nglobal_load_dwordx4 v[36:39], v62, s[16:17] offset:1024 ;@b1")
for i in range(4): M(f"global_load_ushort v{48+i}, v63, s[{18+2*i}:{19+2*i}] ;@par")
M(f"s_and_b32 s{sCT}, s4, 15")
M(f"s_lshl_b32 s{sRT}, s3, 1\ns_lshr_b32 s5, s4, 4\ns_add_u32 s{sRT}, s{sRT}, s5")
M(f"s_lshl_b32 s{sLT}, s{sRT}, 1\ns_bfe_u32 s5, s4, 0x10003\ns_add_u32 s{sLT}, s{sLT}, s5\ns_and_b32 s{sDT}, s4, 7")
M(f"s_lshl_b32 s{sGC}, s{sRT}, 10\ns_add_u32 s{sGC}, s{sGC}, {GCNT}\ns_lshl_b32 s5, s{sW}, 8\ns_add_u32 s{sGS}, s{sGC}, s5")
M(f"s_mov_b32 s{sONE}, 0x3f803f80\ns_mov_b32 s{sMSK}, 0xffff0000\ns_mov_b32 s{sINV}, {f2u(1/512):#x}\ns_mov_b32 s{sINV+1}, {f2u(1/512):#x}")
M(f"s_mov_b32 s{sEPS}, {f2u(1e-5):#x}\ns_mov_b32 s{sNL2E}, {f2u(-LOG2E):#x}")
NR = opt("nr", 8)
if NR == 8: M(f"s_lshl_b32 s5, s{sW}, 1\ns_lshl_b32 s{sEXS}, 3, s5\ns_mov_b32 s{sEXS+1}, 0")
else: M(f"s_lshl_b32 s{sEXS}, 1, s{sW}\ns_mov_b32 s{sEXS+1}, 0")
M(f"s_lshl_b32 s5, s{sW}, 2\ns_lshl_b32 s{sEXQ}, 0x000f000f, s5\ns_mov_b32 s{sEXQ+1}, s{sEXQ}")
M("v_and_b32 v5, 7, v1\nv_lshrrev_b32 v6, 3, v1")
M("v_lshrrev_b32 v65, 2, v1\nv_lshlrev_b32 v65, 10, v65\nv_and_b32 v66, 3, v1\nv_lshl_add_u32 v65, v66, 4, v65\nv_lshlrev_b32 v207, 9, v6\nv_lshl_add_u32 v207, v5, 4, v207")
M(f"s_lshl_b32 s94, s2, 2\ns_add_u32 s94, s94, s{sW}\ns_min_u32 s94, s94, 895")
M("s_mul_i32 s95, s94, 2341\ns_lshr_b32 s95, s95, 16\ns_mul_i32 s5, s95, 28\ns_sub_u32 s96, s94, s5")
M("s_and_b32 s5, s95, 3\ns_mul_i32 s5, s5, 448\ns_lshr_b32 s6, s96, 1\ns_lshl_b32 s6, s6, 5\ns_add_u32 s5, s5, s6\ns_lshl_b32 s7, s5, 10\ns_lshr_b32 s5, s95, 2\ns_lshl_b32 s5, s5, 7\ns_add_u32 s7, s7, s5")
M("s_lshr_b32 s5, s95, 1\ns_xor_b32 s5, s5, s96\ns_and_b32 s5, s5, 1\ns_lshl_b32 s5, s5, 6\ns_add_u32 s7, s7, s5")
M(f"s_lshl_b32 s9, s{sW}, 12\ns_add_u32 s9, s9, {LPK}")
M(f"s_mov_b32 s{SWS+2}, {WS_BYTES:#x}\ns_mov_b32 s{SWS+3}, 0x20000")
M(f"s_mov_b32 s{SWS}, s40\ns_mov_b32 s{SWS+1}, s41")
n1 = lab("n1")
M(f"s_cmp_ge_u32 s2, 128\ns_cbranch_scc1 {n1}")
M(f"s_lshl_b32 s5, s2, 2\ns_add_u32 s5, s5, s{sW}\ns_lshl_b32 s6, s5, 9\ns_lshl_b32 s5, s5, 5\ns_add_u32 s5, s5, {ST2}")
M("v_mov_b32 v4, 0\nv_mov_b32 v5, 0\nv_lshlrev_b32 v6, 3, v1\nv_lshlrev_b32 v8, 2, v1")
M(f"buffer_store_dwordx2 v[4:5], v6, {WS}, s6 offen sc1 ;@!\ns_mov_b64 exec, 0xff\nbuffer_store_dword v5, v8, {WS}, s5 offen sc1 ;@!\ns_mov_b64 exec, -1")
M.label(n1)
for sd, sb, nb in [(SW1, 32, 512*1792*2), (SW2, 34, 512*1792*2), (SOUT, 36, 2048*512*2)]:
    M(f"s_mov_b32 s{sd}, s{sb}\ns_mov_b32 s{sd+1}, s{sb+1}\ns_mov_b32 s{sd+2}, {nb:#x}\ns_mov_b32 s{sd+3}, 0x20000")
M(f"s_mov_b32 m0, s9\ns_add_u32 s5, s7, 16384\nbuffer_load_dwordx4 v65, {srd(SW2)}, s7 offen lds ;@b2\ns_add_u32 m0, s9, 1024\ns_nop 0\nbuffer_load_dwordx4 v65, {srd(SW2)}, s5 offen lds ;@b2")
M(f"s_lshl_b32 s5, s{sCPI}, 2")
M("s_load_dword s12, s[26:27], s5\ns_load_dword s13, s[28:29], s5")
if opt("tlb", 0):
    M(f"v_lshlrev_b32 v5, 20, v1\ns_mov_b64 exec, 0x7ffffff\ns_mov_b32 s5, 0xc0000\nbuffer_load_dword v240, v5, {WS}, s5 offen sc1\ns_mov_b64 exec, 3")
    M(f"buffer_load_dword v243, v5, {srd(SOUT)}, 0 offen\ns_mov_b64 exec, -1")
M("v_and_b32 v60, 15, v1\nv_lshrrev_b32 v61, 4, v1")
sD0, sD1 = 88, 89
sRX, sRH = 16, 24
M(f"s_mul_i32 s{sD0}, s{sW}, {128*3584}\ns_mul_i32 s5, s{sCT}, 224\ns_add_u32 s{sD0}, s{sD0}, s5\ns_mul_i32 s{sD1}, s{sW}, 28672")
dma = [[f"    s_add_u32 m0, s{sD1}, {p*1024}", f"    s_add_u32 s{sB1}, s{sD0}, {(p//7)*32*3584}", f"    buffer_load_dwordx4 v{vDMA+p%7}, {srd(SW1)}, s{sB1} offen lds ;@w1"] for p in range(28)]
dma = dma[17:] + dma[:17]
def setup_dma(b):
    b(f"s_and_b32 s7, s{sCT}, 1\ns_lshl_b32 s8, s7, 5\ns_mul_i32 s7, s7, 192\ns_sub_u32 s7, 192, s7")
    b("v_and_b32 v64, 3, v1\nv_lshlrev_b32 v64, 4, v64\nv_add_u32 v65, s8, v64\nv_xor_b32 v66, 32, v64")
    b(f"v_add_u32 v66, s8, v66\nv_add_u32 v66, {3584-192}, v66")
    b("v_and_b32 v67, 16, v64\nv_add_u32 v67, s7, v67\nv_lshrrev_b32 v64, 5, v64\nv_mul_u32_u24 v64, 3584, v64")
    b(f"v_add_u32 v67, v67, v64\nv_subrev_u32 v67, {6*64}, v67\nv_lshrrev_b32 v64, 2, v1")
    for k in range(7):
        b(f"v_add_u32 v5, {16*k}, v64\nv_mul_u32_u24 v6, 9363, v5\nv_lshrrev_b32 v6, 16, v6\nv_mul_u32_u24 v62, 7, v6\nv_sub_u32 v5, v5, v62")
        b(f"@{{\nv_cmp_lt_u32 vcc, 2, v5\nv_mul_u32_u24 v6, 7168, v6\nv_lshl_add_u32 v6, v5, 6, v6\nv_cndmask_b32 v62, v65, v66, vcc\nv_cmp_eq_u32 vcc, 6, v5\ns_nop 1\nv_cndmask_b32 v62, v62, v67, vcc\n@}}")
        b(f"v_add_u32 v{vDMA+k}, v6, v62")
def setup(b):
    b(f"s_and_b32 s5, s{sW}, 1\ns_lshr_b32 s6, s{sW}, 1")
    b(f"v_bfe_u32 v{vCX}, v1, 2, 2\nv_lshlrev_b32 v{vCX}, 16, v{vCX}\nv_and_b32 v5, 3, v1\nv_lshl_add_u32 v{vCX}, v5, 6, v{vCX}\nv_lshl_add_u32 v{vCX}, v61, 4, v{vCX}")
    b(f"s_lshl_b32 s7, s{sW}, 18\ns_lshl_b32 s8, s{sCPI}, 8\ns_add_u32 s7, s7, s8\nv_add_u32 v{vCX}, s7, v{vCX}")
    b(f"v_lshlrev_b32 v{vCS}, 7, v60\nv_lshl_add_u32 v{vCS}, v61, 5, v{vCS}\ns_lshl_b32 s7, s{sW}, 11\nv_add_u32 v{vCS}, s7, v{vCS}")
    b(f"v_lshlrev_b32 v5, 5, v60\nv_lshl_add_u32 v{vUW}, v61, 3, v5\ns_lshl_b32 s7, s{sW}, 9\ns_add_u32 s7, s7, {LU+512}\nv_add_u32 v{vUW}, s7, v{vUW}")
    b(f"v_lshl_add_u32 v{vUR}, v61, 4, v5\ns_mul_i32 s7, s6, {US}\ns_lshl_b32 s8, s5, 8\ns_sub_u32 s7, s7, s8\ns_add_u32 s7, s7, {LU}\nv_add_u32 v{vUR}, s7, v{vUR}")
    b(f"v_lshlrev_b32 v5, 3, v61\nv_sub_u32 v5, v60, v5\nv_lshlrev_b32 v5, 2, v5\ns_mul_i32 s7, s6, {PKS}\ns_lshl_b32 s8, s5, 9\ns_add_u32 s7, s7, s8\ns_add_u32 s7, s7, {LPK+26*4}\nv_add_u32 v{vTB}, s7, v5")
    b(f"s_lshl_b32 s7, s{sW}, 10\ns_add_u32 s7, s7, {LEX}\nv_add_u32 v{vEW}, s7, v2\ns_lshl_b32 s7, s{sW}, 12\ns_add_u32 s7, s7, {LEX}\nv_add_u32 v{vER}, s7, v2")
    b(f"v_and_b32 v204, {NSH-1}, v1\nv_lshlrev_b32 v204, 8, v204\ns_and_b32 s7, s3, {NR-1}\ns_lshl_b32 s7, s7, 12\nv_add_u32 v204, s7, v204")
    b(f"v_lshlrev_b32 v205, 12, v1\ns_and_b32 s7, s{sCT}, {NSH-1}\ns_lshl_b32 s7, s7, 8\nv_add_u32 v205, s7, v205\nv_mov_b32 v{vONE}, 1")
    for k in range(0 if TB else 9):
        b(f"v_lshlrev_b32 v5, 3, v0\nv_add_u32 v5, {k-1}, v5")
        if k == 0: b("v_max_i32 v5, 0, v5")
        b("v_cvt_f32_u32 v5, v5\nv_cvt_pk_bf16_f32 v5, 0, v5\nv_cvt_u32_f32 v6, v5")
        b("v_lshrrev_b32 v5, 23, v5\nv_subrev_u32 v5, 134, v5\nv_med3_i32 v5, v5, 0, 3")
        b("v_lshrrev_b32 v62, 7, v6\nv_and_b32 v63, 7, v6\nv_lshl_or_b32 v62, v62, 3, v63\nv_lshrrev_b32 v62, v5, v62\nv_lshl_add_u32 v62, v5, 3, v62")
        b(f"v_bfe_u32 v6, v6, 3, 4\nv_lshlrev_b32 v6, 2, v6\nv_lshl_add_u32 v6, v62, 6, v6\nv_add_u32 v{IDX+k}, {LGT}, v6")
def setup_g1(b):
    b("v_mbcnt_lo_u32_b32 v246, -1, 0\nv_mbcnt_hi_u32_b32 v246, -1, v246\nv_and_b32 v244, 15, v246\nv_lshrrev_b32 v245, 4, v246\nv_lshlrev_b32 v247, 4, v246")
    b(f"s_and_b32 s5, s{sW}, 1\ns_lshr_b32 s6, s{sW}, 1")
    b(f"v_lshlrev_b32 v{vGX}, 9, v245\nv_lshl_add_u32 v{vGX}, v244, 3, v{vGX}\ns_lshl_b32 s7, s{sRT}, 16\ns_lshl_b32 s8, s5, 7\ns_add_u32 s7, s7, s8\ns_lshl_b32 s8, s6, 15\ns_add_u32 s7, s7, s8\nv_add_u32 v{vGX}, s7, v{vGX}")
    b(f"v_lshlrev_b32 v5, 2, v245\nv_bfe_u32 v6, v246, 2, 2\nv_add_u32 v5, v5, v6\nv_mul_u32_u24 v5, 224, v5\nv_and_b32 v6, 3, v246\nv_lshl_add_u32 v5, v6, 3, v5\ns_mul_i32 s7, s6, {256*224}\nv_add_u32 v{vWA}, s7, v5")
    b(f"s_mul_i32 s7, s{sW}, 7680\ns_add_u32 s7, s7, {LSCR}\nv_add_u32 v{vXW}, s7, v247")
    b(f"v_lshrrev_b32 v5, 5, v246\nv_xor_b32 v5, s6, v5\nv_lshlrev_b32 v5, 8, v5\nv_lshl_add_u32 v5, v246, 2, v5\ns_lshl_b32 s7, s5, 9\ns_add_u32 s7, s7, {LSCR+30720}\nv_add_u32 v{vSW}, s7, v5")
    b(f"s_lshl_b32 s8, s6, 8\ns_add_u32 s7, s7, s8\nv_lshlrev_b32 v5, 2, v244\nv_add_u32 v{vSR}, s7, v5")
    b(f"s_xor_b32 s7, s{sW}, 2\ns_mul_i32 s7, s7, 7680\ns_add_u32 s7, s7, {LSCR}\nv_add_u32 v{vXR}, s7, v247")
    b(f"v_lshlrev_b32 v{vCSA}, 4, v245\nv_add_u32 v{vCSA}, {LCS}, v{vCSA}")
    b(f"s_lshl_b32 s7, s{sRT}, 1\ns_add_u32 s7, s7, s5\ns_mul_i32 s7, s7, {HT}\ns_mul_i32 s8, s{sCT}, 7168\ns_add_u32 s7, s7, s8\ns_lshl_b32 s8, s6, 8\ns_add_u32 s7, s7, s8")
    b(f"v_and_b32 v5, 1, v245\nv_lshrrev_b32 v6, 1, v245\nv_lshlrev_b32 v{vH2}, 9, v6\nv_lshl_add_u32 v{vH2}, v244, 4, v{vH2}\nv_add_u32 v{vH2}, s7, v{vH2}\nv_lshl_add_u32 v{vH4}, v5, 10, v{vH2}\nv_lshl_add_u32 v{vH2}, v5, 3, v{vH2}")
    b(f"s_and_b32 s7, s{sCT}, 1\ns_lshl_b32 s8, s7, 10\nv_add_u32 v{vH4}, s8, v{vH4}\ns_mul_i32 s8, s7, 6144\nv_subrev_u32 v{vH2}, s8, v{vH2}")
def setup_g2(b):
    b("v_mbcnt_lo_u32_b32 v248, -1, 0\nv_mbcnt_hi_u32_b32 v248, -1, v248\nv_lshlrev_b32 v6, 4, v248")
    b("v_and_b32 v249, 15, v248\nv_lshrrev_b32 v250, 4, v248")
    b(f"s_mul_i32 s7, s{sLT}, {HT}\ns_mul_i32 s8, s{sW}, 28672\ns_add_u32 s7, s7, s8\nv_lshlrev_b32 v5, 9, v250\nv_lshl_add_u32 v{vHL}, v249, 4, v5\nv_add_u32 v{vHL}, s7, v{vHL}")
    b(f"s_lshr_b32 s7, s{sLT}, 1\ns_lshl_b32 s7, s7, 16\ns_and_b32 s8, s{sLT}, 1\ns_lshl_b32 s8, s8, 7\ns_add_u32 s7, s7, s8\ns_lshl_b32 s8, s{sDT}, 13\ns_add_u32 s7, s7, s8\ns_lshl_b32 s8, s{sW}, 11\ns_add_u32 s7, s7, s8")
    b(f"v_lshl_add_u32 v{vX2}, v249, 3, v5\nv_add_u32 v{vX2}, s7, v{vX2}")
    for sg in range(1, 4):
        b(f"s_xor_b32 s7, s{sW}, {sg}\ns_mul_i32 s7, s7, 6144\ns_add_u32 s7, s7, {LSCR+(sg-1)*2048}\nv_add_u32 v{vE1+sg-1}, s7, v6")
    b(f"s_mul_i32 s7, s{sW}, 6144\ns_add_u32 s7, s7, {LSCR}\nv_add_u32 v{vE0}, s7, v6")
    b(f"v_lshlrev_b32 v{vSA}, 4, v249\nv_lshl_add_u32 v{vSA}, v250, 2, v{vSA}\ns_lshl_b32 s7, s{sLT}, 8\nv_add_u32 v{vSA}, s7, v{vSA}")
    b(f"v_lshlrev_b32 v{vOUT}, 11, v249\nv_and_b32 v5, 1, v250\nv_lshl_add_u32 v{vOUT}, v5, 10, v{vOUT}\nv_lshrrev_b32 v5, 1, v250\nv_lshl_add_u32 v{vOUT}, v5, 4, v{vOUT}\ns_lshl_b32 s7, s{sLT}, 15\ns_lshl_b32 s8, s{sDT}, 7\ns_add_u32 s7, s7, s8\ns_lshl_b32 s8, s{sW}, 5\ns_add_u32 s7, s7, s8\nv_add_u32 v{vOUT}, s7, v{vOUT}")
    b(f"s_lshl_b32 s5, s{sDT}, 2\ns_add_u32 s5, s5, s{sW}\ns_mul_i32 s5, s5, 57344\ns_add_u32 s{sW2B}, s5, {W2F}")
def setup_p0(b):
    if FG:
        b(f"s_lshr_b32 s5, s{sCT}, 2\ns_lshl_b32 s5, s5, 1\ns_and_b32 s6, s{sW}, 1\ns_add_u32 s5, s5, s6\ns_lshl_b32 s5, s5, 7\ns_add_u32 s{sGS}, s{sGC}, s5")
        b(f"s_lshl_b32 s5, s{sW}, 1\ns_and_b32 s6, s{sLT}, 1\ns_add_u32 s5, s5, s6\ns_lshl_b32 s5, s5, 7\ns_add_u32 s{sGP}, s{sGC}, s5")
    else: b(f"s_mov_b32 s{sGP}, s{sGC}")
    b(f"@{{\ns_cmp_ge_u32 s{sCPI}, 128\ns_cselect_b64 s[{sEXW}:{sEXW+1}], -1, 0\ns_cmp_ge_u32 s{sDT}, 4\ns_cselect_b64 s[{sEXR}:{sEXR+1}], -1, 0\n@}}")
    b("v_lshlrev_b32 v5, 3, v61\nv_bfe_u32 v6, v1, 2, 2\nv_add_u32 v5, v5, v6\nv_lshlrev_b32 v5, 6, v5\nv_and_b32 v62, 3, v1\nv_lshl_add_u32 v5, v62, 3, v5")
    b("s_and_b32 s5, s95, 1\ns_lshl_b32 s5, s5, 5\ns_add_u32 s5, s5, s9\nv_add_u32 v209, s5, v5\nv_xor_b32 v210, 32, v209")
    b(f"s_lshl_b32 s99, s94, 11\ns_add_u32 s99, s99, {W2F}")
    b(f"s_lshl_b32 s11, s4, 16\ns_bfe_u32 s6, s2, 0x10002\ns_lshl_b32 s6, s6, 7\ns_add_u32 s11, s11, s6\ns_and_b32 s6, s2, 3\ns_lshl_b32 s6, s6, 14\ns_add_u32 s11, s11, s6\ns_lshl_b32 s6, s{sW}, 12\ns_add_u32 s11, s11, s6\ns_add_u32 s11, s11, {XP[0]}")
wq = list(dma)
def take(n):
    r = wq[:n]; del wq[:n]; return r
setup_p0(M)
if not TB: setup_dma(M)
M.add(interleave(gen(setup), take(opt("e0", 0)), start=20))
stamp(M, "p0 setup")
M("@vm b1")
stamp(M, "p0 rows")
M("v_swap_b32 v217, v220\nv_swap_b32 v219, v222")
M(f"buffer_store_dwordx4 v[216:219], v207, {WS}, s11 offen sc1 ;@p0s\nbuffer_store_dwordx4 v[220:223], v207, {WS}, s11 offen offset:256 sc1 ;@p0s")
for i in range(4): M(f"v_mov_b32 v{52+i}, 0")
for q in range(4):
    M(f"v_dot2c_f32_bf16 v52, s{sONE}, v{32+q}\nv_dot2c_f32_bf16 v53, v{32+q}, v{32+q}")
    M(f"v_dot2c_f32_bf16 v54, s{sONE}, v{36+q}\nv_dot2c_f32_bf16 v55, v{36+q}, v{36+q}")
for m_ in ["quad_perm:[1,0,3,2]", "quad_perm:[2,3,0,1]", "row_half_mirror", "row_mirror"]:
    for i in range(4): M(f"v_add_f32_dpp v{52+i}, v{52+i}, v{52+i} {m_} row_mask:0xf bank_mask:0xf")
xsum(M, [52, 53, 54, 55], 56, [16, 32])
for r in (52, 54): M(f"v_pk_mul_f32 {v(r,2)}, {v(r,2)}, s[{sINV}:{sINV+1}]")
for r in (52, 54): M(f"v_fma_f32 v{r+1}, -v{r}, v{r}, v{r+1}")
for r in (52, 54): rnd(M, r+1, r+1)
for r in (52, 54): M(f"v_add_f32 v{r+1}, s{sEPS}, v{r+1}")
for r in (52, 54): rnd(M, r+1, r+1)
for r in (52, 54): M(f"v_sqrt_f32 v{r+1}, abs(v{r+1})")
for r in (52, 54): M(f"v_cvt_pk_bf16_f32 v{r}, v{r}, v{r+1}")
M(f"s_lshl_b32 s5, s2, 6\ns_lshl_b32 s6, s{sW}, 4\ns_add_u32 s5, s5, s6\ns_add_u32 s15, s5, {ST0}")
stamp(M, "p0 stats")
nn = lab("nn"); nl = lab("nl"); nb = lab("nb")
M(f"s_waitcnt lgkmcnt(0)\ns_load_dword s{sNON}, s[38:39], 0\nv_mov_b32 v212, v52\nv_mov_b32 v214, v54")
tail.label(nn)
tail(f"s_mov_b32 s10, {SPIN}\nv_mov_b32 v213, 0")
tail.label(nl)
tail("global_load_dword v215, v213, s[38:39] sc1\ns_waitcnt vmcnt(0)")
tail(f"v_readfirstlane_b32 s{sNON}, v215\ns_cmp_lg_u32 s{sNON}, 0\ns_cbranch_scc1 {nb}")
tail(f"s_sub_u32 s10, s10, 1\ns_cmp_lg_u32 s10, 0\ns_cbranch_scc1 {nl}\ns_branch {nb}")
publish = gen(lambda b: (b(f"@{{\ns_waitcnt lgkmcnt(0)\ns_cmp_eq_u32 s{sNON}, 0\ns_cbranch_scc1 {nn}"), b.label(nb), b(f"v_mov_b32 v213, s{sNON}\nv_mov_b32 v215, s{sNON}\n@}}"), b(f"@vm p0s\n@{{\ns_barrier\ns_mov_b64 exec, 1\nbuffer_store_dwordx4 v[212:215], off, {WS}, s15 sc1\ns_mov_b64 exec, -1\n@}}"), stamp(b, "p0 published")))
def w2_relay(b):
    n3 = lab("n3")
    b("@vm b2")
    for mt in range(2):
        for hf in range(2): b(f"ds_read_b64_tr_b16 {v(224+4*mt+2*hf,2)}, v{209+mt} offset:{hf*256} ;@w2r")
    b(f"@lg w2r\n@{{\ns_cmp_ge_u32 s2, 224\ns_cbranch_scc1 {n3}")
    b(f"buffer_store_dwordx4 v[224:227], v2, {WS}, s99 offen sc1 ;@!\nbuffer_store_dwordx4 v[228:231], v2, {WS}, s99 offen offset:1024 sc1 ;@!")
    b.label(n3); b("@}")
def kgen(Kg):
    Kg(f"s_lshl_b32 s{sDK}, s13, 16\ns_and_b32 s{sDK+1}, s13, s{sMSK}")
    Kg(f"@{{\ns_lshl_b32 s5, s12, 16\ns_and_b32 s6, s12, s{sMSK}\ns_cmp_ge_u32 s{sW}, 2\ns_cselect_b32 s5, s6, s5\n@}}")
    L2E = f"{f2u(LOG2E):#x}"
    VAL = lambda row: 110 + 2*row if row < 45 else 62 + 2*(row - 45)
    Kg(f"v_mov_b32 v5, s5\nv_mul_f32 v5, {L2E}, v5\nv_exp_f32 v5, v5")
    for i in range(4): Kg(f"v_lshlrev_b32 v{48+i}, 16, v{48+i}")
    Kg(f"v_mul_f32 v48, {L2E}, v48\nv_exp_f32 v48, v48")
    Kg(f"s_mul_i32 s5, s{sW}, {ES}")
    Kg("v_lshlrev_b32 v98, 2, v1\nv_add_u32 v98, s5, v98")
    rnd(Kg, 5, 5); rnd(Kg, 48, 48)
    Kg(f"v_mul_f32 v49, v49, v5\nv_mul_f32 v48, v48, v5\nv_mul_f32 v49, 0.15915494, v49\nv_mul_f32 v48, s{sNL2E}, v48")
    Kg(f"v_add_f32 v5, v5, v5\nv_mul_f32 v{VAL(0)}, v50, v5\nv_mul_f32 v{VAL(0)+1}, v51, v5")
    E1, E8, E128, E1K = VAL(17), 34, VAL(24), VAL(48)
    PS = [(E1, 1.0), (E8, 8.0), (E128, 128.0), (E1K, 1024.0)]
    for k, (dst, p) in enumerate(PS): Kg(f"v_mul_f32 v{52+k}, {f2u(p):#x}, v48\nv_mul_f32 v{56+k}, {f2u(p):#x}, v49")
    for k, (dst, p) in enumerate(PS): Kg(f"v_exp_f32 v{52+k}, v{52+k}\nv_fract_f32 v{56+k}, v{56+k}")
    for k, (dst, p) in enumerate(PS): Kg(f"v_cos_f32 v{dst}, v{56+k}\nv_sin_f32 v{dst+1}, v{56+k}")
    Kg("v_mul_u32_u24 v99, 272, v60\nv_lshl_add_u32 v99, v61, 4, v99\nv_add_u32 v99, s5, v99")
    Kg(f"v_mov_b32 v{VAL(16)}, 1.0\nv_mov_b32 v{VAL(16)+1}, 0")
    for k, (dst, p) in enumerate(PS): Kg(f"v_mul_f32 v{dst}, v{dst}, v{52+k}\nv_mul_f32 v{dst+1}, v{dst+1}, v{52+k}")
    e16, e32, e64 = 36, 38, 32
    V = VAL
    levels = [
        [(V(1), V(0), E8), (V(18), E1, E1), (V(32), E128, E128), (e16, E8, E8), (V(56), E1K, E1K), (V(25), E1, E128), (V(49), E1K, E128)],
        [(e32, e16, e16), (V(20), V(18), V(18)), (V(40), V(32), V(32)), (V(2), V(0), e16), (V(3), V(1), e16), (V(19), V(18), E1), (V(36), V(32), E128),
         (V(26), V(18), E128), (V(50), E1K, V(32)), (V(33), V(32), V(18))],
        [(e64, e32, e32), (V(4), V(0), e32), (V(5), V(1), e32), (V(6), V(2), e32), (V(7), V(3), e32), (V(21), V(20), E1), (V(22), V(20), V(18)), (V(23), V(20), V(19)),
         (V(42), V(40), E128), (V(44), V(40), V(32)), (V(46), V(40), V(36)), (V(27), V(19), E128), (V(28), V(20), E128), (V(51), E1K, V(36)), (V(52), E1K, V(40)),
         (V(34), V(32), V(20)), (V(37), V(36), V(18)), (V(38), V(36), V(20)), (V(41), V(40), V(20))],
        [(V(8 + i), V(i), e64) for i in range(8)] +
        [(V(29), V(21), E128), (V(30), V(22), E128), (V(31), V(23), E128), (V(35), V(32), V(22)), (V(39), V(36), V(22)),
         (V(43), V(42), V(20)), (V(45), V(44), V(20)), (V(47), V(46), V(20)), (V(53), E1K, V(42)), (V(54), E1K, V(44)), (V(55), E1K, V(46))],
    ]
    row_of = {VAL(r): r for r in range(57)}
    pend = [0, 16, 17, 24, 48]; written = []
    rot = [0]
    def puts(rows):
        g = []
        for r in rows:
            t = 86 + rot[0] % 12; rot[0] += 1
            g.append((f"    v_cvt_pk_bf16_f32 v{t}, v{VAL(r)}, {'-' if r < 16 else ''}v{VAL(r)+1}", f"    ds_write_b32 v98, v{t} offset:{r*272}"))
            written.append(r)
        out = []
        for k in range(len(g) + 1):
            out.append(([g[k][0]] if k < len(g) else []) + ([g[k-1][1]] if k > 0 else []))
        return out
    for lv in levels:
        t = Buf()
        for d_, x_, y_ in lv: t(f"v_pk_mul_f32 {v(d_,2)}, {v(x_,2)}, {v(y_,2)} op_sel_hi:[1,0]")
        for d_, x_, y_ in lv: t(f"v_pk_fma_f32 {v(d_,2)}, {v(x_,2)}, {v(y_,2)}, {v(d_,2)} op_sel:[1,1,0] op_sel_hi:[0,1,1] neg_lo:[1,0,0]")
        Kg.add(interleave(t.l, puts(pend)))
        pend = [row_of[d_] for d_, _, _ in lv if d_ in row_of]
    Kg.add(flat(puts(pend)))
    assert sorted(written) == list(range(57))
    LOF, HF, GD = 110, 126, 62
    Kg("s_waitcnt lgkmcnt(0)")
    for s_ in range(4):
        Kg(f"ds_read_b128 {v(LOF+4*s_,4)}, v99 offset:{s_*64} ;@kf{s_}")
        for T in range(3): Kg(f"ds_read_b128 {v(HF+16*T+4*s_,4)}, v99 offset:{(16+16*T)*272+s_*64} ;@kf{s_}")
    Kg(f"s_mul_i32 s5, s{sW}, 3072\ns_add_u32 s5, s5, {LGT}")
    Kg("v_lshlrev_b32 v5, 2, v60\nv_lshl_add_u32 v5, v61, 8, v5\nv_add_u32 v5, s5, v5")
    for s_ in range(4):
        Kg(f"@lg kf{s_}")
        for T in range(3): Kg(f"v_mfma_f32_16x16x32_bf16 {v(GD+4*T,4)}, {v(HF+16*T+4*s_,4)}, {v(LOF+4*s_,4)}, {'0' if s_ == 0 else v(GD+4*T,4)}")
    for T in range(3):
        for r in range(0, 4, 2): Kg(f"ds_write2_b32 v5, v{GD+4*T+r}, v{GD+4*T+r+1} offset0:{r*16} offset1:{r*16+16}") if T == 0 else None
        if T:
            for r in range(4): Kg(f"ds_write_b32 v5, v{GD+4*T+r} offset:{(T*16+r)*64}")
M("@vm par,tb")
kl = gen(kgen)
PUB = opt("pub", 110)
cpl = ["    v_add_u32 v200, s90, v2", "    global_load_dwordx4 v[200:203], v200, s[42:43]"] if opt("cp0", 0) == 1 else []
W2E = opt("w2e", 0)
if W2E:
    publish = [l.replace("@vm p0s", "s_waitcnt vmcnt(0)") for l in publish]
    kl = interleave(kl, [publish + cpl], start=PUB, every=1)
    kl = gen(w2_relay) + kl
else: kl = interleave(kl, [publish + cpl + gen(w2_relay)], start=PUB, every=1)
M.add(interleave(kl, take(11 - opt("e0", 0)), start=opt("e1", 4)))
stamp(M, "kgen core")
M(f"s_mov_b32 s{sO}, {ST0}\nbuffer_load_dwordx4 v[232:235], v{vCS}, {WS}, s{sO} offen sc1 ;@cin\nbuffer_load_dwordx4 v[236:239], v{vCS}, {WS}, s{sO} offen offset:16 sc1 ;@cin")
M(f"s_mov_b32 s{sO}, {ST0+8192}\nbuffer_load_dwordx4 v[240:243], v{vCS}, {WS}, s{sO} offen sc1 ;@cin\nbuffer_load_dwordx4 v[244:247], v{vCS}, {WS}, s{sO} offen offset:16 sc1 ;@cin")
M("s_waitcnt lgkmcnt(0)\ns_barrier")
for c in range(2):
    for k in range(9): M(f"ds_read2st64_b32 {v(110+c*18+2*k,2)}, v{IDX+k} offset0:{24*c} offset1:{24*c+12} ;@g{c}")
M(f"v_bfe_u32 v5, v0, 4, 1\nv_mul_u32_u24 v5, {PKS}, v5\nv_lshl_add_u32 v5, v60, 2, v5\nv_add_u32 v5, {LPK}, v5\nv_mov_b32 v6, 0")
M("ds_write_b32 v5, v6")
M(f"v_lshlrev_b32 v5, 5, v0\nv_add_u32 v5, {LPK+64}, v5")
M("v_cmp_eq_u32 vcc, 0, v0")
for c in range(2):
    M(f"@lg g{c}")
    for k in range(9):
        r = 110 + c*18 + 2*k
        M(f"v_add_f32 v{r}, v{r}, v{r+1}")
    M(f"v_cndmask_b32 v{110+c*18}, v{110+c*18}, v6, vcc")
    for k in range(8): M(f"v_cvt_pk_bf16_f32 v{72+c*8+k}, v{110+c*18+2*(k+1)}, v{110+c*18+2*k}")
    M(f"ds_write_b128 v5, {v(72+c*8,4)} offset:{c*PKS}\nds_write_b128 v5, {v(76+c*8,4)} offset:{c*PKS+16}")
T0, U0, ACC = 32, 160, 224
BASE, RV, CST, UPK = 224, 232, 232, 240
def conv_stats(b, layer, half):
    b(f"s_mov_b32 s{sO}, {(ST2 if layer else ST0) + half*8192}")
    b(f"buffer_load_dwordx4 {v(CST,4)}, v{vCS}, {WS}, s{sO} offen sc1 ;@cin\nbuffer_load_dwordx4 {v(CST+4,4)}, v{vCS}, {WS}, s{sO} offen offset:16 sc1 ;@cin")
def conv_x(b, layer, half):
    b(f"s_mov_b32 s{sO}, {XP[2*layer] + half*0x100000}\nbuffer_load_dwordx4 v[248:251], v{vCX}, {WS}, s{sO} offen sc1 ;@cin")
def conv_inputs(b, layer, half):
    conv_x(b, layer, half); conv_stats(b, layer, half)
def gcheck(b):
    slow = lab("gs"); back = lab("gb"); lp = lab("gl")
    def chk(o):
        for k in range(8): o(f"v_xor_b32 v{160+k}, s{sNON}, v{CST+2*k+1}")
        o("v_or3_b32 v160, v160, v161, v162\nv_or3_b32 v163, v163, v164, v165\nv_or3_b32 v160, v160, v166, v167\nv_or_b32 v160, v160, v163\nv_cmp_ne_u32 vcc, 0, v160")
    b("@vm cin\n@{")
    chk(b); b(f"s_cbranch_vccnz {slow}"); b.label(back); b("@}")
    for k in range(4): b(f"v_mov_b32 v{252+k}, v{CST+8+2*k}")
    tail.label(slow); tail(f"s_mov_b32 s10, {SPIN}\ns_mov_b32 s11, {ST0}\ns_mov_b32 s5, {ST0+8192}")
    tail.label(lp)
    for k in range(4): tail(f"buffer_load_dwordx4 {v(CST+4*k,4)}, v{vCS}, {WS}, s{5 if k >= 2 else 11} offen offset:{16*(k&1)} sc1")
    tail("s_waitcnt vmcnt(0)")
    chk(tail); tail(f"s_cbranch_vccz {back}")
    tail(f"s_sub_u32 s10, s10, 1\ns_cmp_lg_u32 s10, 0\ns_cbranch_scc1 {lp}\ns_branch {back}")
def t_loads(b, js):
    for j in js:
        if j: b(f"v_add_u32 v5, {1024*j}, v{vTB}")
        ad = 5 if j else vTB
        for t in range(4):
            r = T0 + (j*4 + t)*4
            b(f"ds_read2_b32 {v(r,2)}, v{ad} offset0:{32*t+6} offset1:{32*t+4} ;@T\nds_read2_b32 {v(r+2,2)}, v{ad} offset0:{32*t+2} offset1:{32*t} ;@T")
def t_groups(ta=188):
    g = []
    for k in range(32):
        j, t = k >> 2, k & 3
        r = T0 + 4*k
        grp = [f"    v_add_u32 v{ta}, {1024*j}, v{vTB}"] if t == 0 else []
        grp += [f"    ds_read2_b32 {v(r,2)}, v{ta} offset0:{32*t+6} offset1:{32*t+4} ;@T", f"    ds_read2_b32 {v(r+2,2)}, v{ta} offset0:{32*t+2} offset1:{32*t} ;@T"]
        g.append(grp)
    return g
def u_pad(b):
    b(f"v_subrev_u32 v5, {LEX}, v{vEW}\nv_and_b32 v5, 0x3f0, v5\nv_lshrrev_b32 v5, 1, v5\nv_add_u32 v5, {LU}, v5\nv_mov_b32 v{UPK}, 0\nv_mov_b32 v{UPK+1}, 0")
    b(f"ds_write_b64 v5, {v(UPK,2)}\nds_write_b64 v5, {v(UPK,2)} offset:{US}")
def conv_half(b, layer, half, bg=[], pre_barrier=None, after_ln=None, after_mfma=None, tailbg=[], pre_barrier2=None):
    X = 248
    MN, RI, DD = 192, 196, 176
    b("@vm cin")
    stamp(b, f"L{layer} conv{half} loaded")
    if layer == 0:
        G = (lambda i: 252 + i) if half else (lambda i: CST + 2*i)
        for i in range(4): b(f"v_and_b32 v{RI+i}, s{sMSK}, v{G(i)}")
        for i in range(4): b(f"v_rcp_f32 v{RI+i}, v{RI+i}")
        for i in range(4): b(f"v_lshlrev_b32 v{MN+i}, 16, v{G(i)}")
    else:
        for i in range(4): b(f"v_pk_mul_f32 {v(CST+2*i,2)}, {v(CST+2*i,2)}, s[{sINV}:{sINV+1}]")
        for i in range(4): b(f"v_fma_f32 v{RI+i}, -v{CST+2*i}, v{CST+2*i}, v{CST+2*i+1}")
        for i in range(4): rnd(b, RI+i, RI+i)
        for i in range(4): b(f"v_add_f32 v{RI+i}, s{sEPS}, v{RI+i}")
        for i in range(4): rnd(b, RI+i, RI+i)
        for i in range(4): b(f"v_sqrt_f32 v{RI+i}, abs(v{RI+i})")
        for i in range(4): rnd(b, MN+i, CST+2*i)
        for i in range(4): rnd(b, RI+i, RI+i)
        for i in range(4): b(f"v_rcp_f32 v{RI+i}, v{RI+i}")
    for i in range(4): b(f"v_lshlrev_b32 v{BASE+i}, 16, v{X+i}\nv_and_b32 v{BASE+4+i}, s{sMSK}, v{X+i}")
    for k in range(4): b(f"v_pk_add_f32 {v(DD+2*k,2)}, {v(BASE+2*k,2)}, {v(MN+2*(k&1),2)} neg_lo:[0,1] neg_hi:[0,1]")
    if opt("rd", 1):
        for k in range(8): rnd(b, DD+k, DD+k)
    for k in range(4): b(f"v_pk_mul_f32 {v(DD+2*k,2)}, {v(DD+2*k,2)}, {v(RI+2*(k&1),2)}")
    for k in range(4): b(f"v_cvt_pk_bf16_f32 v{UPK+k}, v{DD+2*k}, v{DD+2*k+1}")
    b(f"ds_write_b64 v{vUW}, {v(UPK,2)} offset:{half*2048}\nds_write_b64 v{vUW}, {v(UPK+2,2)} offset:{US+half*2048}")
    F2 = opt("fine", 0) == 2 and layer == 1
    if F2: stamp(b, f"c{half} ln")
    if pre_barrier: b(pre_barrier)
    b("s_waitcnt lgkmcnt(0)\ns_barrier")
    if F2: stamp(b, f"c{half} bar1")
    if after_ln: after_ln(b)
    def urd(tp, t): return f"    ds_read_b128 {v(U0+(tp*4+t)*4,4)}, v{vUR} offset:{512 + 512*(tp+4*half) - 64*t - 32} ;@U{tp}_{t}"
    b.add([urd(0, t) for t in range(4)] + [urd(1, 0), urd(1, 1)])
    later = [urd(tp, t) for tp in range(1, 4) for t in range(4)][2:]
    fill = []
    for k in range(4):
        c = k >> 1
        fill += [f"    v_lshlrev_b32 v{RV+2*k}, 16, v{UPK+k}", f"    v_and_b32 v{RV+2*k+1}, s{sMSK}, v{UPK+k}"]
    for k in range(8): fill.append(f"    v_fmac_f32 v{BASE+k}, s{sDK + (k >> 2)}, v{RV+k}")
    ml = []; cnt = 0
    lastidx = {0: 12, 1: 25, 2: 34}
    for tp in range(4):
        for t in range(4):
            ml.append(f"    @lg U{tp}_{t}")
            for r in range(tp, 4):
                acc = ACC + (4*half + r)*4
                cin = "0" if (half == 0 and t == 0 and tp == 0) else ac(acc, 4)
                ml.append(f"    v_mfma_f32_16x16x32_bf16 {ac(acc,4)}, {v(T0+((r-tp)*4+t)*4,4)}, {v(U0+(tp*4+t)*4,4)}, {cin}")
                if later: ml.append(later.pop(0))
                elif fill: ml.append(fill.pop(0))
                for r_ in range(3):
                    if cnt == lastidx[r_] + (5 if r_ < 2 else 5): ml.append(f"    ds_write_b128 v{vEW}, {ac(ACC+(4*half+r_)*4,4)} offset:{r_*4096}")
                cnt += 1
    assert not later and not fill
    ml = interleave(ml, bg, start=2)
    b.add(ml)
    tailbg = list(tailbg)
    if F2: stamp(b, f"c{half} mfma")
    if after_mfma: after_mfma(b)
    if F2: stamp(b, f"c{half} chk")
    b(f"ds_write_b128 v{vEW}, {ac(ACC+(4*half+3)*4,4)} offset:{3*4096}")
    b.add(flat(tailbg[:2]))
    if half == 0: b.add(ab_list()[:GF1])
    if pre_barrier2: b(pre_barrier2)
    b("s_waitcnt lgkmcnt(0)\ns_barrier")
    if F2: stamp(b, f"c{half} bar2")
    for src in range(4): b(f"ds_read_b128 {v(RV+4*src,4)}, v{vER} offset:{src*1024} ;@E{src>>1}")
    b.add(flat(tailbg[2:]))
    if half == 0: b.add(ab_list()[GF1:GF1+GF2])
    b(f"s_mov_b32 s{sO}, {XP[1+2*layer] + half*0x100000}")
    for c in range(2):
        b(f"@lg E{c}")
        for k in range(2): b(f"v_pk_add_f32 {v(RV+8*c+2*k,2)}, {v(RV+8*c+2*k,2)}, {v(RV+8*c+4+2*k,2)}")
        for k in range(2): b(f"v_pk_add_f32 {v(BASE+4*c+2*k,2)}, {v(BASE+4*c+2*k,2)}, {v(RV+8*c+2*k,2)}")
    for i in range(4): b(f"v_cvt_pk_bf16_f32 v{244+i}, v{BASE+i}, v{BASE+4+i}")
    b(f"s_mov_b64 exec, s[{sEXW}:{sEXW+1}]\nv_swap_b32 v244, v245\nv_swap_b32 v246, v247\ns_mov_b64 exec, -1")
    b(f"buffer_store_dwordx4 v[244:247], v{vCX}, {WS}, s{sO} offen sc1 ;@cst")
    stamp(b, f"L{layer} conv{half} stored")
GF1, GF2 = opt("gf1", 5), opt("gf2", 7)
def ab_list():
    prs = sorted([(r, tp) for r in range(4, 8) for tp in range(4)], key=lambda p: (p[0] - p[1] > 3, p))
    out = []; seen = set()
    for grp in (prs[:6], prs[6:]):
        for t in range(4):
            for r, tp in grp:
                acc = ACC + r*4
                cin = ac(acc, 4) if r in seen else "0"
                seen.add(r)
                out.append(f"    v_mfma_f32_16x16x32_bf16 {ac(acc,4)}, {v(T0+((r-tp)*4+t)*4,4)}, {v(U0+(tp*4+t)*4,4)}, {cin}")
    return out
def conv_ab(b):
    b("@lg T")
    b.add(ab_list()[GF1+GF2:])
def colsum(b):
    wa_regs(b)
    b(f"@{{\ns_lshr_b32 s6, s{sW}, 1\ns_mul_i32 s6, s6, {256*224}\ns_lshl_b32 s5, s{sW}, 6\ns_cmp_eq_u32 s{sW}, 3\ns_cselect_b32 s5, 0, s5\ns_cselect_b64 vcc, -1, 0\ns_sub_u32 s5, s5, s6\n@}}")
    b(f"v_cndmask_b32 v248, v{vWA}, v253, vcc\nv_cndmask_b32 v249, v252, v253, vcc\nv_add_u32 v248, s5, v248\nv_add_u32 v249, s5, v249\nv_add_u32 v250, {256*224}, v248\nv_add_u32 v251, {256*224}, v249")
    for i in range(4): b(f"v_mov_b32 v{240+i}, s{sONE}")
    def rd(ks):
        for f2 in range(2):
            for hf in range(2):
                b(f"ds_read_b64_tr_b16 {v(96+(f2*8+ks%8)*4+2*hf,2)}, v{248 + f2 + 2*(ks//8)} offset:{(32*(ks%8)+16*hf)*224} ;@c{ks}")
    for ks in range(3): rd(ks)
    for ks in range(16):
        if ks + 3 < 16: rd(ks + 3)
        b(f"@lg c{ks}")
        for f2 in range(2):
            b(f"v_mfma_f32_16x16x32_bf16 {v(232+4*f2,4)}, {v(96+(f2*8+ks%8)*4,4)}, v[240:243], {'0' if ks == 0 else v(232+4*f2,4)}")
    b(f"s_lshl_b32 s5, s{sW}, 7\nv_add_u32 v5, s5, v{vCSA}")
    b("ds_write_b128 v5, v[232:235] ;@cs\nds_write_b128 v5, v[236:239] offset:64 ;@cs")

WB, SS, KA, SA = 160, 216, 224, 224
def g1_loads(layer, half):
    g = []
    X0 = 32 + 64 * half
    for ks in range(8):
        for n_, (dst, off) in enumerate([(0, 0), (4, 256), (2, 2048), (6, 2304)]):
            grp = []
            if n_ == 0: grp.append(f"    s_mov_b32 s{sB0}, {XP[1+2*layer] + half*0x100000 + ks*4096}")
            grp.append(f"    buffer_load_dwordx2 {v(X0+8*ks+dst,2)}, v{vGX}, {WS}, s{sB0} offen offset:{off} sc1 ;@x{ks}")
            g.append(grp)
    return g
def wread(b, ks, ft, hfs=(0, 1)):
    r = WB + (ks & 1) * 28 + ft * 4
    for hf in hfs:
        ad, off = (253, 0) if ft == 6 else ((252 if ft & 1 else vWA), (ft >> 1) * 64)
        b(f"ds_read_b64_tr_b16 {v(r+2*hf,2)}, v{ad} offset:{(32*ks+16*hf)*224 + off} ;@w{ks}_{ft}")
def wa_regs(b):
    b(f"v_xor_b32 v252, 32, v{vWA}\nv_and_b32 v253, 32, v{vWA}\nv_mul_u32_u24 v253, 6, v253\nv_sub_u32 v253, v{vWA}, v253\nv_add_u32 v253, 384, v253")
def g1_pre(b):
    wa_regs(b)
    for ft in range(7): wread(b, 0, ft)
def g1_loop(b, half, bg, hooks={}, slots=None):
    X0 = 32 + 64 * half
    bg = list(bg)
    if slots is None: slots = (0, 2, 4, 6) if len(bg) <= 32 else (0, 1, 3, 4, 6)
    def swaps(ks):
        x = X0 + 8 * ks
        b(f"@vm x{ks}\nv_swap_b32 v{x+1}, v{x+4}\nv_swap_b32 v{x+3}, v{x+6}")
    swaps(0)
    for ks in range(8):
        x = X0 + 8 * ks
        if opt("fine", 0) == 3 and len(STAMPS) > 25: stamp(b, f"g1{half} k{ks}")
        if ks in hooks: hooks[ks](b)
        if ks == 7:
            for ft in range(7):
                r = WB + 28 + ft * 4
                if ft in (0, 4): b(f"@lg w{ks}_{3 if ft == 0 else 6}")
                b(f"v_mfma_f32_16x16x32_bf16 {ac(SA+4*ft,4)}, {v(r,4)}, {v(x+4,4)}, {ac(SA+4*ft,4)}")
                b(f"ds_read_b128 {v(160+4*ft,4)}, v{vCSA} offset:{ft*64}")
                if ft < 4 and opt("ms", 1): b(f"v_mov_b32 v{220+ft}, 0x3e803e80")
                if ft in slots and bg: b.add(bg.pop(0))
            for ft in range(7):
                r = WB + 28 + ft * 4
                b(f"v_mfma_f32_16x16x32_bf16 {v(KA+4*ft,4)}, {v(r,4)}, {v(x,4)}, {v(KA+4*ft,4)}")
                if ft % 2 == 0 and ft // 2 < NW0: b(f"ds_write_b128 v{vXW}, {ac(SA+4*(ft//2),4)} offset:{(ft//2)*1024}")
            continue
        for ft in range(7):
            r = WB + (ks & 1) * 28 + ft * 4
            if ft in (0, 4): b(f"@lg w{ks}_{3 if ft == 0 else 6}")
            b(f"v_mfma_f32_16x16x32_bf16 {ac(SA+4*ft,4)}, {v(r,4)}, {v(x+4,4)}, {'0' if ks == 0 else ac(SA+4*ft,4)}")
            wread(b, ks + 1, ft, (0,))
            if ft in slots and bg: b.add(bg.pop(0))
            b(f"v_mfma_f32_16x16x32_bf16 {v(KA+4*ft,4)}, {v(r,4)}, {v(x,4)}, {'0' if ks == 0 else v(KA+4*ft,4)}")
            wread(b, ks + 1, ft, (1,))
            if ft == 5: swaps(ks + 1)
    assert not bg
NW0 = opt("nw0", 2)
RC, CSR = 188, 160
MS = opt("ms", 1)
def g1_post1m(b, half, bg=[], chk=None, bg2=[]):
    X0 = 32 + 64 * half
    m = Buf(); d = Buf()
    for ks in range(8):
        for j in range(2):
            m(f"v_mfma_f32_16x16x32_bf16 {v(188+4*j,4)}, v[220:223], {v(X0+8*ks+4*j,4)}, {'0' if ks == 0 else v(188+4*j,4)}")
    wr = [[f"    ds_write_b128 v{vXW}, {ac(SA+4*ft,4)} offset:{ft*1024}"] for ft in range(NW0, 7)]
    nb = min(len(bg), opt("msb", 4))
    b.add(interleave(interleave(m.l, wr, start=1, every=3), bg[:nb], start=2))
    for ks in range(8):
        x = X0 + 8 * ks
        for q in range(4):
            o = 4 * (q & 1)
            if ks == 0 and q < 2: d(f"v_dot2_f32_bf16 v{SS+o+1}, v{x+q}, v{x+q}, 0\nv_dot2_f32_bf16 v{SS+o+3}, v{x+4+q}, v{x+4+q}, 0")
            else: d(f"v_dot2c_f32_bf16 v{SS+o+1}, v{x+q}, v{x+q}\nv_dot2c_f32_bf16 v{SS+o+3}, v{x+4+q}, v{x+4+q}")
    b.add(interleave(d.l, bg[nb:]))
    b(f"v_permlane32_swap_b32 v188, v192\nv_add_f32 v{SS+1}, v{SS+1}, v{SS+5}\nv_add_f32 v{SS+3}, v{SS+3}, v{SS+7}\nv_add_f32 v{SS}, v188, v192")
    b(f"v_permlane32_swap_b32 v{SS+1}, v{SS+3}\nv_add_f32 v{SS+1}, v{SS+1}, v{SS+3}")
    b(f"v_permlane16_swap_b32 v{SS}, v{SS+1}\nv_add_f32 v{SS}, v{SS}, v{SS+1}\nds_write_b32 v{vSW}, v{SS}")
    b("s_waitcnt lgkmcnt(0)\ns_barrier")
    b(f"ds_read2_b32 {v(SS,2)}, v{vSR} offset0:0 offset1:16 ;@s\nds_read2_b32 {v(SS+2,2)}, v{vSR} offset0:32 offset1:48 ;@s")
    for ft in range(7): b(f"ds_read_b128 {v(RC+4*ft,4)}, v{vXR} offset:{ft*1024} ;@r{ft}")
    chk(b)
    b.add(flat(bg2))
def g1_post1(b, half, bg=[], chk=None, bg2=[]):
    if MS: return g1_post1m(b, half, bg, chk, bg2)
    X0 = 32 + 64 * half
    d = Buf()
    for ks in range(8):
        x = X0 + 8 * ks
        for q in range(4):
            o = 4 * (q & 1)
            if ks == 0 and q < 2:
                d(f"v_dot2_f32_bf16 v{SS+o}, s{sONE}, v{x+q}, 0\nv_dot2_f32_bf16 v{SS+o+1}, v{x+q}, v{x+q}, 0")
                d(f"v_dot2_f32_bf16 v{SS+o+2}, s{sONE}, v{x+4+q}, 0\nv_dot2_f32_bf16 v{SS+o+3}, v{x+4+q}, v{x+4+q}, 0")
                continue
            d(f"v_dot2c_f32_bf16 v{SS+o}, s{sONE}, v{x+q}\nv_dot2c_f32_bf16 v{SS+o+1}, v{x+q}, v{x+q}")
            d(f"v_dot2c_f32_bf16 v{SS+o+2}, s{sONE}, v{x+4+q}\nv_dot2c_f32_bf16 v{SS+o+3}, v{x+4+q}, v{x+4+q}")
    wr = [[f"    ds_write_b128 v{vXW}, {ac(SA+4*ft,4)} offset:{ft*1024}"] for ft in range(NW0, 7)]
    dl = interleave(d.l, wr, start=8, every=24)
    cut = opt("cut", 140)
    b.add(interleave(dl[:cut], bg, start=4))
    chk(b)
    b.add(interleave(dl[cut:], bg2))
    if opt("fine", 0) == 2: stamp(b, f"p{len(STAMPS)} dots")
    b(f"v_pk_add_f32 {v(SS+2,2)}, {v(SS+2,2)}, {v(SS+6,2)}\nv_pk_add_f32 {v(SS,2)}, {v(SS,2)}, {v(SS+4,2)}")
    b(f"v_permlane32_swap_b32 v{SS}, v{SS+2}\nv_permlane32_swap_b32 v{SS+1}, v{SS+3}\nv_pk_add_f32 {v(SS,2)}, {v(SS,2)}, {v(SS+2,2)}")
    b(f"v_permlane16_swap_b32 v{SS}, v{SS+1}\nv_add_f32 v{SS}, v{SS}, v{SS+1}\nds_write_b32 v{vSW}, v{SS}")
    b("s_waitcnt lgkmcnt(0)\ns_barrier")
    b(f"ds_read2_b32 {v(SS,2)}, v{vSR} offset0:0 offset1:16 ;@s\nds_read2_b32 {v(SS+2,2)}, v{vSR} offset0:32 offset1:48 ;@s")
    for ft in range(7): b(f"ds_read_b128 {v(RC+4*ft,4)}, v{vXR} offset:{ft*1024} ;@r{ft}")
def g1_post2(b, layer, half):
    b("@lg s")
    b(f"v_pk_add_f32 {v(SS,2)}, {v(SS,2)}, {v(SS+2,2)}")
    mn, sd, c2 = SS, SS+1, SS+2
    st = Buf()
    st(f"v_pk_mul_f32 {v(SS,2)}, {v(SS,2)}, s[{sINV}:{sINV+1}]\nv_fma_f32 v{sd}, -v{mn}, v{mn}, v{sd}")
    rnd(st, sd, sd); rnd(st, mn, mn)
    st(f"v_add_f32 v{sd}, s{sEPS}, v{sd}"); rnd(st, sd, sd)
    st(f"v_sqrt_f32 v{sd}, abs(v{sd})"); rnd(st, sd, sd)
    st(f"v_rcp_f32 v{c2}, v{sd}\nv_mul_f32 v{c2}, s{sNL2E}, v{c2}")
    adds = []
    for ft in range(7):
        t = RC + 4*ft
        adds.append([f"    @lg r{ft}"] + [f"    v_pk_add_f32 {v(t+2*k,2)}, {v(t+2*k,2)}, {v(KA+4*ft+2*k,2)}" for k in range(2)])
    b.add(interleave(st.l, adds, start=1, every=1))
    if opt("fine", 0) == 2: stamp(b, f"p{len(STAMPS)} stats")
    silu_part(b, 0, SPL[0])
def silu_part(b, k0, k1):
    mn, c2 = SS, SS + 2
    K = range(k0, k1); R = range(2*k0, 2*k1)
    for k in K: b(f"v_pk_fma_f32 {v(RC+2*k,2)}, {v(CSR+2*k,2)}, {v(mn,2)}, {v(RC+2*k,2)} op_sel_hi:[1,0,1] neg_lo:[0,1,0] neg_hi:[0,1,0]")
    for k in K: b(f"v_pk_mul_f32 {v(CSR+2*k,2)}, {v(RC+2*k,2)}, {v(c2,2)} op_sel_hi:[1,0]")
    for r in R: b(f"v_exp_f32 v{CSR+r}, v{CSR+r}")
    for k in K: b(f"v_pk_fma_f32 {v(CSR+2*k,2)}, {v(CSR+2*k,2)}, {v(mn,2)}, {v(mn,2)} op_sel:[0,1,1] op_sel_hi:[1,1,1]")
    for r in R: b(f"v_rcp_f32 v{CSR+r}, v{CSR+r}")
    for k in K: b(f"v_pk_mul_f32 {v(CSR+2*k,2)}, {v(CSR+2*k,2)}, {v(RC+2*k,2)}")
    for k in K:
        ft = k >> 1
        b(f"v_cvt_pk_bf16_f32 v{KA + 8*(ft >> 1) + 2*(ft & 1) + (k & 1)}, v{CSR+2*k}, v{CSR+2*k+1}")
    for pr in range(3):
        if k0 <= 4*pr < k1:
            p = KA + 8*pr
            b(f"v_permlane16_swap_b32 v{p}, v{p+2}\nv_permlane16_swap_b32 v{p+1}, v{p+3}")
SPL = {0: [14], 1: [8, 14], 2: [8, 12, 14], 3: [4, 8, 12, 14], 4: [4, 8, 14], 5: [12, 14]}[opt("sp", 2)]
def g1_store(b, layer, half, pre=None):
    hb = HB[layer] + half * 32 * HT
    b(f"s_mov_b32 s{sO}, {hb}\ns_mov_b32 s5, {hb + 4096}")
    done = 0
    for n_, k1 in enumerate(SPL):
        if n_: silu_part(b, SPL[n_-1], k1)
        if k1 == 14 and pre: pre(b)
        while done < 3 and 4*done + 4 <= k1:
            b(f"buffer_store_dwordx4 {v(KA+8*done,4)}, v{vH4}, {WS}, s{sO if done < 2 else 5} offen offset:{(done&1)*2048} sc1 ;@hst")
            done += 1
    b(f"buffer_store_dwordx2 {v(KA+24,2)}, v{vH2}, {WS}, s5 offen offset:2048 sc1 ;@hst")

H0, C2, RS = 32, 192, 184
def g2_loads(layer, half):
    g = []
    for i in range(28):
        grp = []
        if i % 4 == 0: grp.append(f"    s_mov_b32 s{sB0}, {HB[layer] + half*32*HT + (i//2)*2048}")
        grp.append(f"    buffer_load_dwordx4 {v(H0+4*i,4)}, v{vHL}, {WS}, s{sB0} offen offset:{((i%4)//2)*2048 + (i&1)*256} sc1 ;@h{half}_{i//2}")
        g.append(grp)
    return g
def w2_loads():
    g = []
    for i in range(56):
        grp = []
        if i % 4 == 0: grp.append(f"    s_add_u32 s{sB1}, s{sW2B}, {(i//4)*4096}")
        grp.append(f"    buffer_load_dwordx4 {ac(4*i,4)}, v6, {WS}, s{sB1} offen offset:{(i%4)*1024} sc1 ;@a{i//4}")
        g.append(grp)
    return g
def g2_res(layer, half):
    RS = 144 if half == 0 else 184
    return [[f"    s_mov_b32 s{sO}, {XP[1+2*layer] + half*0x100000}"] +
            [f"    buffer_load_dwordx2 {v(RS+2*c,2)}, v{vX2}, {WS}, s{sO} offen offset:{c*256} sc1 ;@res" for c in range(2)]]
def g2_loop(b, half, bg, hooks={}, tg=None, nm=None, late=[]):
    bg = list(bg); late = list(late)
    if tg: b.add(flat(tg[28:]))
    LAG = opt("lag", 4)
    DEF = (0, 1) if opt("lg2", 1) else (0,)
    def mf(ks, sg, nt):
        d = C2 + 8*sg + 4*nt
        b(f"v_mfma_f32_16x16x32_bf16 {v(d,4)}, {ac((ks*4+sg)*4,4)}, {v(H0+4*(2*ks+nt),4)}, {'0' if ks == 0 else v(d,4)}")
    tq = []
    for ks in range(14):
        for hh in range(2):
            if 2*ks + hh in hooks: hooks[2*ks + hh](b)
            if hh == 0: b(f"@vm h{half}_{ks},a{ks}")
            sgs = [(3, 2), (1, 0)][hh]
            n_ = 0
            for sg in sgs:
                if ks >= 14 - LAG and sg in DEF: continue
                for nt in range(2):
                    mf(ks, sg, nt); n_ += 1
                    if n_ == 1 and bg: b.add(bg.pop(0))
                    if n_ == 3 and tq: b.add(tq.pop(0))
            if n_ == 0 and bg: b.add(bg.pop(0))
        if tg and ks < 14 - LAG: tq += [tg[2*ks], tg[2*ks+1]]
    if "end" in hooks: hooks["end"](b)
    wr = [f"ds_write_b128 v{vE1+sg-1}, {v(C2+8*sg+4*q,4)} offset:{q*1024}" for sg in (3, 2) for q in range(2)]
    w1_ = [f"ds_write_b128 v{vE1}, {v(C2+8+4*q,4)} offset:{q*1024}" for q in range(2)]
    if 1 not in DEF: wr += w1_
    seq = [(ks, sg, nt) for sg in sorted(DEF, reverse=True) for ks in range(14 - LAG, 14) for nt in range(2)]
    for n_, (ks, sg, nt) in enumerate(seq):
        mf(ks, sg, nt)
        if 1 in DEF and n_ == 2*LAG + 3: wr += w1_
        if n_ >= 2 and n_ % 2 == 0 and wr: b(wr.pop(0))
        if n_ % 2 == 1 and late: b.add(late.pop(0))
        if n_ % 2 == 1 and tq: b.add(tq.pop(0))
    for w_ in wr: b(w_)
    b.add(flat(late))
    if tg: b.add(flat(tq) + flat(tg[2*(14-LAG):28]))
    assert not bg
def g2_post1(b, half):
    RS = 144 if half == 0 else 184
    b("@vm res")
    b(f"@{{\ns_mov_b64 exec, s[{sEXR}:{sEXR+1}]\nv_swap_b32 v{RS}, v{RS+1}\nv_swap_b32 v{RS+2}, v{RS+3}\ns_mov_b64 exec, -1\n@}}")
    for c in range(2):
        for nt in range(2): b(f"v_lshlrev_b32 v{224+4*nt+2*c}, 16, v{RS+2*c+nt}\nv_and_b32 v{225+4*nt+2*c}, s{sMSK}, v{RS+2*c+nt}")
    b("s_waitcnt lgkmcnt(0)\ns_barrier")
    for k in range(6): b(f"ds_read_b128 {v(160+4*k,4)}, v{vE0} offset:{k*1024} ;@q{k>>1}")
def g2_post2(b, layer, half):
    for s_ in range(3):
        b(f"@lg q{s_}")
        for k in range(4): b(f"v_pk_add_f32 {v(C2+2*k,2)}, {v(C2+2*k,2)}, {v(160+8*s_+2*k,2)}")
    if opt("ro", 1):
        for r in range(8): rnd(b, C2+r, C2+r)
    for k in range(4): b(f"v_pk_add_f32 {v(C2+2*k,2)}, {v(C2+2*k,2)}, {v(224+2*k,2)}")
    for k in range(4):
        dstk = (2*(k & 1) + (k >> 1)) if layer == 0 else k
        b(f"v_cvt_pk_bf16_f32 v{240+dstk}, v{C2+2*k}, v{C2+2*k+1}")
    if layer == 0:
        b(f"@{{\ns_mov_b32 s{sO}, {XP[2] + half*0x100000}")
        for c in range(2): b(f"buffer_store_dwordx2 {v(240+2*c,2)}, v{vX2}, {WS}, s{sO} offen offset:{c*256} sc1 ;@xst")
        b("@}")
        for nt in range(2): b(f"v_dot2_f32_bf16 v{244+2*nt}, s{sONE}, v{240+nt}, 0\nv_dot2_f32_bf16 v{245+2*nt}, v{240+nt}, v{240+nt}, 0")
        for nt in range(2): b(f"v_dot2_f32_bf16 v{244+2*nt}, s{sONE}, v{242+nt}, v{244+2*nt}\nv_dot2_f32_bf16 v{245+2*nt}, v{242+nt}, v{242+nt}, v{245+2*nt}")
        b("v_permlane32_swap_b32 v244, v246\nv_permlane32_swap_b32 v245, v247\nv_pk_add_f32 v[244:245], v[244:245], v[246:247]")
        b("v_permlane16_swap_b32 v244, v245\nv_add_f32 v244, v244, v245")
        LST = LSCR + 24576
        b(f"v_lshrrev_b32 v246, 2, v6\nv_add_u32 v246, {LST}, v246\ns_lshl_b32 s5, s{sW}, 8\nv_add_u32 v247, s5, v246")
        b("ds_write_b32 v247, v244\ns_waitcnt lgkmcnt(0)\ns_barrier")
        b("ds_read2st64_b32 v[244:245], v246 offset0:0 offset1:1\nds_read2st64_b32 v[246:247], v246 offset0:2 offset1:3")
        b(f"s_mov_b32 s{sO}, {ST2 + half*8192}\ns_waitcnt lgkmcnt(0)\nv_pk_add_f32 v[244:245], v[244:245], v[246:247]\nv_add_f32 v244, v244, v245")
        b(f"@{{\ns_mov_b64 exec, s[{sEXQ}:{sEXQ+1}]\nbuffer_atomic_add_f32 v244, v{vSA}, {WS}, s{sO} offen sc1 ;@xst\ns_mov_b64 exec, -1\n@}}")
    else:
        b("v_permlane16_swap_b32 v240, v242\nv_permlane16_swap_b32 v241, v243")
        b(f"s_mov_b32 s{sO}, {half*0x100000}\nbuffer_store_dwordx4 v[240:243], v{vOUT}, {srd(SOUT)}, s{sO} offen {opt('ofl', 'x').replace('x', '').replace('_', ' ')}")

gcheck(M); conv_x(M, 0, 0)
M(f"v_mov_b32 v{vPL}, v204\nv_mov_b32 v{vSG}, v205")
M("s_waitcnt lgkmcnt(0)\ns_barrier")
stamp(M, "kgen done")
XT, XUP, XPF, HPF, HP2, HUP = opt("xt", 10), opt("xup", 16), opt("xpf", 16), opt("hpf", 14), opt("hp2", 6), opt("hup", 14)
D1, D2, D3, D4, D5 = opt("d1", 6), opt("d2", 6), opt("d3", 5), opt("d4", 8), opt("d5", 6)
M.add(interleave(gen(t_loads, range(4)), take(D1))); u_pad(M)
for layer in range(2):
    L0 = layer == 0
    cA, cB = 4*layer, 4*layer + 1
    xa, xb, ha, hb_ = g1_loads(layer, 0), g1_loads(layer, 1), g2_loads(layer, 0), g2_loads(layer, 1)
    if L0:
        vm_ = take(D2); tg_ = t_groups(5)[16:]
        conv_half(M, layer, 0, bg=[tg_[k] + (vm_[k//2] if (k % 2 == 0 and k//2 < len(vm_)) else []) for k in range(16)])
        conv_x(M, 0, 1)
        s1_ = [l.replace("v5", "v240").replace("v6", "v241") for l in gen(setup_g1)]
        ab = interleave(gen(conv_ab), [gen(sig_all, cA, "cst")], start=opt("abs0", 30), every=1)
        ab = interleave(ab, [s1_[k:k+2] for k in range(0, len(s1_), 2)], start=2)
        M.add(interleave(ab, take(D3), start=1))
    else:
        conv_half(M, layer, 0, pre_barrier="@vm xst", after_ln=lambda b: sig_all(b, 3, "xst", barrier=False))
        ab = gen(conv_ab)
        ev = sorted([(opt("abp", 2), 0, gen(poll_all, 3)), (opt("abc", 40), 1, gen(check, "all", 3) + gen(conv_inputs, 1, 1)), (opt("abs", 52), 2, gen(sig_all, cA, "cst"))])
        pos = 0
        for p_, _, g_ in ev:
            M.add(ab[pos:p_]); M.add(g_); pos = p_
        M.add(ab[pos:])
    stamp(M, f"L{layer} conv0 signalled")
    if not L0:
        if opt("lateC", 0):
            conv_half(M, layer, 1, after_mfma=lambda b: poll_all(b, cA))
            g1_pre(M); check(M, "all", cA)
            M.add(flat(xa[:XUP]))
        else:
            conv_half(M, layer, 1, after_ln=lambda b: poll_all(b, cA), after_mfma=lambda b: check(b, "all", cA), tailbg=xa[:XT])
            g1_pre(M)
            M.add(flat(xa[XT:XUP]))
    else:
        assert not wq
        wq += w2_loads()
        sg_ = gen(setup_g2)
        sg_ = sg_[:3] + sg_[-4:] + sg_[3:-4]
        bgs = [sg_[k:k+2] for k in range(0, len(sg_), 2)]
        if W2E:
            wl = take(D4)
            for q, g_ in enumerate(wl): bgs[4 + q * ((len(bgs) - 4) // len(wl))] += g_
        conv_half(M, layer, 1, pre_barrier2="@vm w1", bg=bgs)
        poll_all(M, cA)
        cs_ = gen(colsum); cc = opt("cc", 30)
        M.add(interleave(cs_[:cc], take(D5 if W2E else 0), start=12))
        check(M, "all", cA)
        M.add(interleave(cs_[cc:], xa[:XUP]))
        g1_pre(M)
        M("@lg cs")
    stamp(M, f"L{layer} g1A ready")
    w2 = wq
    def mixw(x_, w_):
        if len(x_) + len(w_) <= 32: return x_ + w_
        x_ = list(x_); w_ = list(w_); o = []
        while x_ or w_:
            for q in range(5):
                src = x_ if (x_ and q < 4) else w_
                if src: o.append(src.pop(0))
                elif x_: o.append(x_.pop(0))
        return o + [[]] * (40 - len(o))
    XP1, HP1 = opt("xp1", 0), opt("hp1", 0)
    g1_loop(M, 0, mixw(xa[XUP:], take(opt("wa", 12))), {(opt("sg00", 0) if L0 else opt("sg0", 2)): lambda b: sig_all(b, cB, "cst")},
            slots=(None if L0 else [(0, 2, 4, 6), (0, 1, 3, 4, 6), (0, 1, 2, 3, 4, 5, 6)][opt("xs", 0)]))
    stamp(M, f"L{layer} g1A loop")
    poll_all(M, cB)
    g1_post1(M, 0, take(opt("wp", 14)), lambda b: check(b, "all", cB), xb[:XP1])
    stamp(M, f"L{layer} g1A post1")
    M.add(interleave(gen(g1_post2, layer, 0), xb[XP1:XPF]))
    g1_store(M, layer, 0, g1_pre)
    stamp(M, f"L{layer} g1A stored")
    if opt("fast", 0) and not L0:
        c1_, c2_ = opt("fc1", 5), opt("fc2", 16)
        n1 = 4 * (8 - c1_)
        g1_loop(M, 1, xb[XPF:] + [[]] * (4*c1_ - (32 - XPF)) + ha[:n1],
                {opt("sg1", 3): lambda b: sig_grp(b, 2*layer, "hst"), c1_ - 1: lambda b: poll_grp(b, 2*layer), c1_: lambda b: check(b, "grp", 2*layer)})
        stamp(M, f"L{layer} g1B loop")
        g1_post1(M, 1, [], lambda b: None, [])
        stamp(M, f"L{layer} g1B post1")
        M.add(interleave(gen(g1_post2, layer, 1), g2_res(layer, 0) + ha[n1:HPF]))
        g1_store(M, layer, 1)
        stamp(M, f"L{layer} g1B stored")
        rest = ha[HPF:]
        n2 = 28 - c2_
        g2_loop(M, 0, rest + [[]] * (c2_ - len(rest)) + hb_[:n2],
                {opt("sg2", 8): lambda b: sig_grp(b, 2*layer+1, "hst"), c2_ - 5: lambda b: poll_grp(b, 2*layer+1), c2_: lambda b: check(b, "grp", 2*layer+1)},
                late=hb_[n2:min(20, n2+8)])
        stamp(M, f"L{layer} g2A loop")
        g2_post1(M, 0); g2_post2(M, layer, 0)
        HP2_ = HUP = min(20, n2 + 8)
    else:
        g1_loop(M, 1, [[]] * opt("xsk", 2) + mixw(xb[XPF:], take(XPF - opt("xsk", 2))), {opt("sg1", 3): lambda b: sig_grp(b, 2*layer, "hst")})
        stamp(M, f"L{layer} g1B loop")
        poll_grp(M, 2*layer)
        g1_post1(M, 1, take(opt("wp", 14)), lambda b: check(b, "grp", 2*layer), ha[:HP1])
        stamp(M, f"L{layer} g1B post1")
        M.add(interleave(gen(g1_post2, layer, 1), g2_res(layer, 0) + ha[HP1:HPF]))
        g1_store(M, layer, 1)
        stamp(M, f"L{layer} g1B stored")
        rest = ha[HPF:]
        if w2:
            mix = []
            while rest or w2:
                mix.append((rest.pop(0) if rest else []) + (w2.pop(0) if w2 else []))
            rest = mix
        HP0 = opt("hp00", 0) if L0 else opt("hp0", 8)
        g2_loop(M, 0, [[]] * opt("hsk", 2) + rest, {opt("sg2", 8): lambda b: sig_grp(b, 2*layer+1, "hst"), (opt("pg2", 18) if HP0 else 27): lambda b: poll_grp(b, 2*layer+1),
                          "end": (lambda b: check(b, "grp", 2*layer+1) if HP0 else None)}, nm=("L1 g2A" if layer and opt("fine", 0) == 1 else None), late=hb_[:HP0])
        stamp(M, f"L{layer} g2A loop")
        if HP0: M.add(interleave(gen(g2_post1, 0) + gen(g2_post2, layer, 0), hb_[HP0:HP0+HP2], end=opt("hpe", 40)))
        else:
            if opt("lateA", 0) and L0:
                g2_post1(M, 0); g2_post2(M, layer, 0); check(M, "grp", 2*layer+1); M.add(flat(hb_[:HP2]))
            else:
                g2_post1(M, 0); check(M, "grp", 2*layer+1)
                M.add(interleave(gen(g2_post2, layer, 0), hb_[:HP2], end=opt("hpe", 30)))
        HP2_ = HP0 + HP2
    if L0 and opt("cpf", 1): M("v_add_u32 v5, s90, v6\nglobal_load_dwordx4 v[252:255], v5, s[42:43]")
    stamp(M, f"L{layer} g2A stored")
    M.add(flat(hb_[HP2_:HUP]))
    if L0:
        g2_loop(M, 1, hb_[HUP:] + g2_res(layer, 1), {opt("sg3", 4): lambda b: sig_all(b, 2, "xst"), 24: lambda b: poll_all(b, 2)}, tg=t_groups())
        stamp(M, f"L{layer} g2B loop")
        g2_post1(M, 1)
        if opt("lateB", 0):
            poll_all(M, 2); g2_post2(M, layer, 1); check(M, "all", 2); conv_inputs(M, 1, 0)
        else:
            check(M, "all", 2); conv_inputs(M, 1, 0)
            g2_post2(M, layer, 1)
        stamp(M, f"L{layer} g2B stored")
        u_pad(M)
    else:
        M("s_barrier")
        g2_loop(M, 1, hb_[HUP:] + g2_res(layer, 1), nm=("L1 g2B" if opt("fine", 0) == 1 else None))
        stamp(M, f"L{layer} g2B loop")
        g2_post1(M, 1); g2_post2(M, layer, 1)
        stamp(M, f"L{layer} g2B stored")
if STAMP:
    M(f"s_cmp_lg_u32 s{sW}, 0\ns_cbranch_scc1 {DONE}")
    M(f"v_mbcnt_lo_u32_b32 v5, -1, 0\nv_mbcnt_hi_u32_b32 v5, -1, v5\nv_lshlrev_b32 v5, 2, v5\ns_lshl_b32 s5, s2, 8\ns_add_u32 s5, s5, {0x1800000 + 0x400000}")
    M(f"buffer_store_dword v7, v5, {WS}, s5 offen")
M.label(DONE)
M("s_endpgm")

a = Asm()
a.kernel(NAME + "_kernel", vgpr=512, sgpr=102, accum=256)
lines = resolve(strip_marks(M.l)) + tail.l + [".Lkend:"]
lines, added = hazard.fix(lines)
import numpy as np
def rbf(j):
    u = np.array([j], dtype=np.float32).view(np.uint32)[0]
    u = (int(u) + 0x7FFF + ((int(u) >> 16) & 1)) & 0xFFFF0000
    return int(np.array([u], dtype=np.uint32).view(np.float32)[0])
def gaddr(j):
    p = rbf(max(j, 0)); e = 0 if p < 256 else 1 if p < 512 else 2 if p < 1024 else 3
    row = 8*e + ((((p >> 7) << 3) | (p & 7)) >> e)
    return LGT + row*64 + ((p >> 3) & 15)*4
def dmaoff(par_, k, lane):
    q = 16*k + (lane >> 2); pair, qq, sub = q // 7, q % 7, lane & 3
    full, half_ = (32, 0) if par_ else (0, 192)
    if qq < 3: return pair*7168 + full + qq*64 + sub*16
    if qq < 6: return pair*7168 + 3584 + full + (qq-3)*64 + (sub ^ 2)*16
    return pair*7168 + (sub >> 1)*3584 + half_ + (sub & 1)*16
if TB:
    it = [gaddr(8*t - 1 + 4*pl + k) for pl in range(2) for t in range(256) for k in range(4)] + [gaddr(8*t + 7) for t in range(256)]
    dt_ = [(dmaoff(p_, 4*pl + k, l_) if 4*pl + k < 7 else 0) for p_ in range(2) for pl in range(2) for l_ in range(64) for k in range(4)]
    for nm_, tb_ in (("idx_table", it), ("dma_table", dt_)):
        lines += [".p2align 6", f".type {nm_},@object", f"{nm_}:"] + [".long " + ", ".join(str(x) for x in tb_[q:q+16]) for q in range(0, len(tb_), 16)] + [f".size {nm_}, {4*len(tb_)}"]
a.lines += lines
print("nops added", added, "lines", len(a.lines), file=sys.stderr)
hdr = "".join(l for l in open(f"cdna_kernels/{NAME}.s.ref").readlines() if l.startswith(";") and "@launch" not in l and "Override" not in l and "grid=ceil" not in l)
a.launches = [f"; @launch grid=(256,1,1) block=(256,1,1) lds={LDS_BYTES}"]
open(OUT, "w").write(a.text(hdr))
json.dump(STAMPS, open("work/" + OUT.split("/")[-1] + ".stamps.json", "w"))
```

```python
import sys, struct, json
sys.path.insert(0, "work")
from asmgen import Asm
import hazard
from sched import resolve, interleave, strip_marks
NAME = "interleave_layers__ssm_conv_s4d__dense_activation_silu__prompt"
STAMP = "--stamp" in sys.argv
OPT = dict(x.lstrip("-").split("=") for x in sys.argv[1:] if x.startswith("--") and "=" in x)
def opt(k, d): return type(d)(OPT.get(k, d))
OUT = [x for x in sys.argv[1:] if not x.startswith("--")]
OUT = OUT[0] if OUT else f"cdna_kernels/{NAME}.s"
def f2u(x): return struct.unpack("<I", struct.pack("<f", x))[0]
LOG2E = 1.4426950408889634
GCNT = 6 * 0x8000
ST0 = 0x80000; ST2 = 0x84000
W2F = 0x100000
W1F = 0x1900000
XP = [0x1700000, 0x300000, 0x500000, 0x700000]
HB = [0x900000, 0x1000000]
WS_BYTES = 0x2000000
HT = 114688
LPK = 114688; PKS = 8256; LCS = 131200; LSCR = 131712
LU = LSCR; US = 4608; LEX = LSCR + 9216
ES = 28672; LGT = LEX
LDS_BYTES = 163840
SWS, SW1, SW2, SOUT = 44, 48, 52, 56
sW, sCPI, sRT, sCT, sLT, sDT, sNON, sGC = 60, 61, 62, 63, 64, 65, 66, 67
sDK, sONE, sMSK, sINV, sEPS, sNL2E = 68, 70, 71, 72, 74, 75
sEXS = 76
sB0, sB1, sO, sW2B, sGS = 78, 79, 80, 81, 82
sSTAMP = 84
sEXQ = 92
sEXW = 100
sEXR = 86
SPIN = 60000
vOUT, vPL, vSG, vPD, vONE = 0, 1, 2, 3, 4
vCX, vCS, vUW, vUR, vTB, vEW, vER, vGX, vWA, vXW, vXR, vSW, vSR, vCSA, vH4, vH2, vHL, vRX, vX2, vE1, vE0, vSA = \
    8, 9, 10, 11, 12, 13, 14, 15, 16, 17, 18, 19, 20, 21, 22, 23, 24, 25, 26, 27, 30, 31
vDMA = 24

HSC = "sc1" if opt("hsc", 1) else opt("hfl", "")
GFLAG = opt("gflag", 0)
if opt("samehb", 0): HB = [HB[0], HB[0]]
NSH = opt('nsh', 8)
class Buf:
    def __init__(self): self.l = []
    def __call__(self, s):
        for ln in s.strip("\n").split("\n"): self.l.append("    " + ln.strip())
    def label(self, n): self.l.append(n + ":")
    def add(self, lines): self.l += lines
uid = [0]
def lab(b="L"):
    uid[0] += 1; return f".{b}_{uid[0]}"
def srd(n): return f"s[{n}:{n+3}]"
def v(n, k=1): return f"v{n}" if k == 1 else f"v[{n}:{n+k-1}]"
def ac(n, k=1): return f"a{n}" if k == 1 else f"a[{n}:{n+k-1}]"
def flat(groups): return [l for g in groups for l in g]
def gen(fn, *args, **kw):
    t = Buf(); fn(t, *args, **kw); return t.l
WS = srd(SWS)
tail = Buf()
STAMPS = []
def stamp(b, name):
    if not STAMP: return
    if opt("light", 0) and name not in ("start", "L1 g2B stored"): return
    i = len(STAMPS); STAMPS.append(name)
    assert i < 64
    b(f"@{{\n{'s_memtime' if opt('cyc', 0) else 's_memrealtime'} s[{sSTAMP}:{sSTAMP+1}]\ns_waitcnt lgkmcnt(0)\nv_writelane_b32 v7, s{sSTAMP}, {i}\n@}}")

FG = opt("fg", 1)
sGP = 91
GADDR = "v_mov_b32 v5, 0" if FG else f"v_and_b32 v5, 0x300, v{vPL}"
GT = 8 if FG else 16
def poll_all(b, cnt):
    b(f"s_mov_b32 s{sO}, {cnt*0x8000}\nbuffer_load_dword v{vPD}, v{vPL}, {WS}, s{sO} offen sc1 ;@poll")
def poll_grp(b, idx):
    b(f"@{{\ns_add_u32 s{sO}, s{sGP}, {idx*16*1024}\n{GADDR}\nbuffer_load_dword v{vPD}, v5, {WS}, s{sO} offen sc1 ;@poll\n@}}")
def check(b, kind, idx):
    slow = lab("slow"); back = lab("back"); lp = lab("lp")
    b("@vm poll")
    b(f"@{{\nv_cmp_gt_u32 vcc, {GT if kind == 'grp' else 256 // NSH}, v{vPD}\ns_cbranch_vccnz {slow}")
    b.label(back); b("@}")
    tail.label(slow)
    tail(f"s_mov_b32 s10, {SPIN}")
    if kind == "all": tail(f"s_mov_b32 s11, {idx*0x8000}\nv_mov_b32 v5, v{vPL}")
    else: tail(f"s_add_u32 s11, s{sGP}, {idx*16*1024}\n{GADDR}")
    tgt = GT if kind == 'grp' else 256 // NSH
    if opt("pp", 0):
        tail(f"buffer_load_dword v{vPD}, v5, {WS}, s11 offen sc1\ns_sleep {opt('ppd', 4)}")
        tail.label(lp)
        tail(f"buffer_load_dword v4, v5, {WS}, s11 offen sc1\ns_waitcnt vmcnt(1)\nv_cmp_gt_u32 vcc, {tgt}, v{vPD}\ns_cbranch_vccz {back}")
        tail(f"buffer_load_dword v{vPD}, v5, {WS}, s11 offen sc1\ns_waitcnt vmcnt(1)\nv_cmp_gt_u32 vcc, {tgt}, v4\ns_cbranch_vccz {back}")
    else:
        tail.label(lp)
        tail(f"buffer_load_dword v{vPD}, v5, {WS}, s11 offen sc1\ns_waitcnt vmcnt(0)")
        tail(f"v_cmp_gt_u32 vcc, {tgt}, v{vPD}\ns_cbranch_vccz {back}")
    tail(f"s_sub_u32 s10, s10, 1\ns_cmp_lg_u32 s10, 0\ns_cbranch_scc1 {lp}\ns_branch {back}")
def sig_all(b, cnt, tag, barrier=True):
    b(f"@vm {tag}\n@{{\n{'s_barrier' if barrier else 's_nop 0'}\ns_mov_b32 s{sO}, {cnt*0x8000}\ns_mov_b64 exec, s[{sEXS}:{sEXS+1}]")
    b(f"v_mov_b32 v5, 1\nbuffer_atomic_add v5, v{vSG}, {WS}, s{sO} offen sc1\ns_mov_b64 exec, -1\n@}}")
def sig_grp(b, idx, tag):
    b(f"@vm {tag}\n@{{\ns_add_u32 s{sO}, s{sGS}, {idx*16*1024}\ns_mov_b64 exec, 1")
    if GFLAG: b(f"buffer_store_dword v{vONE}, off, {WS}, s{sO} {HSC}\ns_mov_b64 exec, -1\ns_barrier\n@}}")
    else: b(f"v_mov_b32 v5, 1\nbuffer_atomic_add v5, off, {WS}, s{sO} sc1\ns_mov_b64 exec, -1\ns_barrier\n@}}")
def xsum(b, regs, tmp, steps):
    for s in steps:
        for i, r in enumerate(regs): b(f"v_mov_b32 v{tmp+i}, v{r}")
        for i, r in enumerate(regs): b(f"v_permlane{s}_swap_b32 v{r}, v{tmp+i}")
        for i, r in enumerate(regs): b(f"v_add_f32 v{r}, v{r}, v{tmp+i}")
def rnd(b, d, s): b(f"v_cvt_pk_bf16_f32 v{d}, 0, v{s}")

M = Buf()
DONE = ".Ldone"
M.label(".Lkstart")
M("s_cmp_ge_u32 s2, 256")
M(f"s_cbranch_scc1 {DONE}")
M("s_load_dwordx16 s[16:31], s[0:1], 0\ns_load_dwordx8 s[32:39], s[0:1], 64\ns_load_dwordx2 s[40:41], s[0:1], 96")
M("s_memrealtime s[14:15]")
M("s_getpc_b64 s[42:43]")
M.label(".Lpc")
M("v_and_b32 v1, 63, v0\nv_lshlrev_b32 v2, 4, v1\nv_lshrrev_b32 v3, 6, v0")
M(f"v_readfirstlane_b32 s{sW}, v3")
if STAMP: M("v_mov_b32 v7, 0")
M("s_and_b32 s3, s2, 7\ns_lshr_b32 s4, s2, 3")
M(f"s_lshl_b32 s5, s4, 2\ns_add_u32 s5, s5, s{sW}\ns_min_u32 s5, s5, ((.Lkend-.Lkstart-128)>>10)-1\ns_lshl_b32 s5, s5, 10\nv_add_u32 v5, s5, v2")
M("s_mov_b32 s90, s5")
if opt("cp0", 0) == 0: M("global_load_dwordx4 v[200:203], v5, s[42:43]")
TB = opt("tb", 0)
IDX = 100
if TB:
    M("v_lshlrev_b32 v5, 4, v0\nv_add_u32 v5, idx_table-.Lpc, v5\nv_add_u32 v6, 4096, v5\nv_lshlrev_b32 v10, 2, v0\nv_add_u32 v10, idx_table-.Lpc+8192, v10")
    M("s_and_b32 s5, s4, 1\ns_lshl_b32 s5, s5, 11\ns_add_u32 s5, s5, dma_table-.Lpc\nv_add_u32 v11, s5, v2")
    M(f"global_load_dwordx4 {v(vDMA,4)}, v11, s[42:43] ;@tb\nglobal_load_dwordx3 {v(vDMA+4,3)}, v11, s[42:43] offset:1024 ;@tb")
    M(f"global_load_dwordx4 {v(IDX,4)}, v5, s[42:43] ;@tb\nglobal_load_dwordx4 {v(IDX+4,4)}, v6, s[42:43] ;@tb\nglobal_load_dword v{IDX+8}, v10, s[42:43] ;@tb")
M(f"s_lshl_b32 s{sCPI}, s3, 5\ns_add_u32 s{sCPI}, s{sCPI}, s4")
M(f"s_lshl_b32 s5, s2, 13\ns_lshl_b32 s6, s{sW}, 11\ns_add_u32 s5, s5, s6\nv_add_u32 v62, s5, v2")
M(f"s_lshl_b32 s5, s{sCPI}, 9\nv_lshlrev_b32 v63, 1, v0\nv_add_u32 v63, s5, v63")
M(f"s_lshr_b32 s5, s2, 2\ns_lshl_b32 s5, s5, 15\ns_and_b32 s6, s2, 3\ns_lshl_b32 s6, s6, 8\ns_add_u32 s5, s5, s6\ns_lshl_b32 s6, s{sW}, 6\ns_add_u32 s5, s5, s6")
M("v_and_b32 v5, 7, v1\nv_lshlrev_b32 v64, 12, v5\nv_lshrrev_b32 v6, 3, v1\nv_lshl_add_u32 v64, v6, 3, v64\nv_add_u32 v64, s5, v64")
M("s_waitcnt lgkmcnt(0)")
stamp(M, "start")
n0 = lab("n0")
M(f"s_or_b32 s5, s4, s{sW}\ns_cmp_lg_u32 s5, 0\ns_cbranch_scc1 {n0}")
M("s_or_b32 s14, s14, 1\nv_mov_b32 v8, s14\nv_mov_b32 v9, 0\ns_mov_b64 exec, 1\nglobal_atomic_cmpswap v9, v[8:9], s[38:39] sc1 ;@!\ns_mov_b64 exec, -1")
M.label(n0)
if opt("cp0", 0) == 3:
    M(f"s_lshl_b32 s5, s4, 2\ns_add_u32 s5, s5, s{sW}\ns_mul_i32 s5, s5, 384\ns_min_u32 s5, s5, .Lkend-.Lkstart-512")
    M("s_add_u32 s6, s5, 128\ns_add_u32 s10, s5, 256\ns_load_dword s86, s[42:43], s5\ns_load_dword s87, s[42:43], s6\ns_load_dword s10, s[42:43], s10")
for i, dst in enumerate([216, 220, 218, 222]): M(f"global_load_dwordx2 {v(dst,2)}, v64, s[16:17] offset:{i*1024} ;@b1")
M("global_load_dwordx4 v[32:35], v62, s[16:17] ;@b1\nglobal_load_dwordx4 v[36:39], v62, s[16:17] offset:1024 ;@b1")
for i in range(4): M(f"global_load_ushort v{48+i}, v63, s[{18+2*i}:{19+2*i}] ;@par")
M(f"s_and_b32 s{sCT}, s4, 15")
M(f"s_lshl_b32 s{sRT}, s3, 1\ns_lshr_b32 s5, s4, 4\ns_add_u32 s{sRT}, s{sRT}, s5")
M(f"s_lshl_b32 s{sLT}, s{sRT}, 1\ns_bfe_u32 s5, s4, 0x10003\ns_add_u32 s{sLT}, s{sLT}, s5\ns_and_b32 s{sDT}, s4, 7")
M(f"s_lshl_b32 s{sGC}, s{sRT}, 10\ns_add_u32 s{sGC}, s{sGC}, {GCNT}\ns_lshl_b32 s5, s{sW}, 8\ns_add_u32 s{sGS}, s{sGC}, s5")
M(f"s_mov_b32 s{sONE}, 0x3f803f80\ns_mov_b32 s{sMSK}, 0xffff0000\ns_mov_b32 s{sINV}, {f2u(1/512):#x}\ns_mov_b32 s{sINV+1}, {f2u(1/512):#x}")
M(f"s_mov_b32 s{sEPS}, {f2u(1e-5):#x}\ns_mov_b32 s{sNL2E}, {f2u(-LOG2E):#x}")
NR = opt("nr", 8)
if NR == 8: M(f"s_lshl_b32 s5, s{sW}, 1\ns_lshl_b32 s{sEXS}, 3, s5\ns_mov_b32 s{sEXS+1}, 0")
else: M(f"s_lshl_b32 s{sEXS}, 1, s{sW}\ns_mov_b32 s{sEXS+1}, 0")
M(f"s_lshl_b32 s5, s{sW}, 2\ns_lshl_b32 s{sEXQ}, 0x000f000f, s5\ns_mov_b32 s{sEXQ+1}, s{sEXQ}")
M("v_and_b32 v5, 7, v1\nv_lshrrev_b32 v6, 3, v1")
M("v_lshrrev_b32 v65, 2, v1\nv_lshlrev_b32 v65, 10, v65\nv_and_b32 v66, 3, v1\nv_lshl_add_u32 v65, v66, 4, v65\nv_lshlrev_b32 v207, 9, v6\nv_lshl_add_u32 v207, v5, 4, v207")
M(f"s_lshl_b32 s94, s2, 2\ns_add_u32 s94, s94, s{sW}\ns_min_u32 s94, s94, 895")
M("s_mul_i32 s95, s94, 2341\ns_lshr_b32 s95, s95, 16\ns_mul_i32 s5, s95, 28\ns_sub_u32 s96, s94, s5")
M("s_and_b32 s5, s95, 3\ns_mul_i32 s5, s5, 448\ns_lshr_b32 s6, s96, 1\ns_lshl_b32 s6, s6, 5\ns_add_u32 s5, s5, s6\ns_lshl_b32 s7, s5, 10\ns_lshr_b32 s5, s95, 2\ns_lshl_b32 s5, s5, 7\ns_add_u32 s7, s7, s5")
M("s_lshr_b32 s5, s95, 1\ns_xor_b32 s5, s5, s96\ns_and_b32 s5, s5, 1\ns_lshl_b32 s5, s5, 6\ns_add_u32 s7, s7, s5")
M(f"s_lshl_b32 s9, s{sW}, 12\ns_add_u32 s9, s9, {LPK}")
M(f"s_mov_b32 s{SWS+2}, {WS_BYTES:#x}\ns_mov_b32 s{SWS+3}, 0x20000")
M(f"s_mov_b32 s{SWS}, s40\ns_mov_b32 s{SWS+1}, s41")
n1 = lab("n1")
M(f"s_cmp_ge_u32 s2, 128\ns_cbranch_scc1 {n1}")
M(f"s_lshl_b32 s5, s2, 2\ns_add_u32 s5, s5, s{sW}\ns_lshl_b32 s6, s5, 9\ns_lshl_b32 s5, s5, 5\ns_add_u32 s5, s5, {ST2}")
M("v_mov_b32 v4, 0\nv_mov_b32 v5, 0\nv_lshlrev_b32 v6, 3, v1\nv_lshlrev_b32 v8, 2, v1")
M(f"buffer_store_dwordx2 v[4:5], v6, {WS}, s6 offen sc1 ;@!\ns_mov_b64 exec, 0xff\nbuffer_store_dword v5, v8, {WS}, s5 offen sc1 ;@!\ns_mov_b64 exec, -1")
M.label(n1)
for sd, sb, nb in [(SW1, 32, 512*1792*2), (SW2, 34, 512*1792*2), (SOUT, 36, 2048*512*2)]:
    M(f"s_mov_b32 s{sd}, s{sb}\ns_mov_b32 s{sd+1}, s{sb+1}\ns_mov_b32 s{sd+2}, {nb:#x}\ns_mov_b32 s{sd+3}, 0x20000")
M(f"s_mov_b32 m0, s9\ns_add_u32 s5, s7, 16384\nbuffer_load_dwordx4 v65, {srd(SW2)}, s7 offen lds ;@b2\ns_add_u32 m0, s9, 1024\ns_nop 0\nbuffer_load_dwordx4 v65, {srd(SW2)}, s5 offen lds ;@b2")
M(f"s_lshl_b32 s5, s{sCPI}, 2")
M("s_load_dword s12, s[26:27], s5\ns_load_dword s13, s[28:29], s5")
if opt("tlb", 0):
    M(f"v_lshlrev_b32 v5, 20, v1\ns_mov_b64 exec, 0x7ffffff\ns_mov_b32 s5, 0xc0000\nbuffer_load_dword v240, v5, {WS}, s5 offen sc1\ns_mov_b64 exec, 3")
    M(f"buffer_load_dword v243, v5, {srd(SOUT)}, 0 offen\ns_mov_b64 exec, -1")
M("v_and_b32 v60, 15, v1\nv_lshrrev_b32 v61, 4, v1")
sD0, sD1 = 88, 89
sRX, sRH = 16, 24
M(f"s_mul_i32 s{sD0}, s{sW}, {128*3584}\ns_mul_i32 s5, s{sCT}, 224\ns_add_u32 s{sD0}, s{sD0}, s5\ns_mul_i32 s{sD1}, s{sW}, 28672")
dma = [[f"    s_add_u32 m0, s{sD1}, {p*1024}", f"    s_add_u32 s{sB1}, s{sD0}, {(p//7)*32*3584}", f"    buffer_load_dwordx4 v{vDMA+p%7}, {srd(SW1)}, s{sB1} offen lds ;@w1"] for p in range(28)]
dma = dma[17:] + dma[:17]
def setup_dma(b):
    b(f"s_and_b32 s7, s{sCT}, 1\ns_lshl_b32 s8, s7, 5\ns_mul_i32 s7, s7, 192\ns_sub_u32 s7, 192, s7")
    b("v_and_b32 v64, 3, v1\nv_lshlrev_b32 v64, 4, v64\nv_add_u32 v65, s8, v64\nv_xor_b32 v66, 32, v64")
    b(f"v_add_u32 v66, s8, v66\nv_add_u32 v66, {3584-192}, v66")
    b("v_and_b32 v67, 16, v64\nv_add_u32 v67, s7, v67\nv_lshrrev_b32 v64, 5, v64\nv_mul_u32_u24 v64, 3584, v64")
    b(f"v_add_u32 v67, v67, v64\nv_subrev_u32 v67, {6*64}, v67\nv_lshrrev_b32 v64, 2, v1")
    for k in range(7):
        b(f"v_add_u32 v5, {16*k}, v64\nv_mul_u32_u24 v6, 9363, v5\nv_lshrrev_b32 v6, 16, v6\nv_mul_u32_u24 v62, 7, v6\nv_sub_u32 v5, v5, v62")
        b(f"@{{\nv_cmp_lt_u32 vcc, 2, v5\nv_mul_u32_u24 v6, 7168, v6\nv_lshl_add_u32 v6, v5, 6, v6\nv_cndmask_b32 v62, v65, v66, vcc\nv_cmp_eq_u32 vcc, 6, v5\ns_nop 1\nv_cndmask_b32 v62, v62, v67, vcc\n@}}")
        b(f"v_add_u32 v{vDMA+k}, v6, v62")
def setup(b):
    b(f"s_and_b32 s5, s{sW}, 1\ns_lshr_b32 s6, s{sW}, 1")
    b(f"v_bfe_u32 v{vCX}, v1, 2, 2\nv_lshlrev_b32 v{vCX}, 16, v{vCX}\nv_and_b32 v5, 3, v1\nv_lshl_add_u32 v{vCX}, v5, 6, v{vCX}\nv_lshl_add_u32 v{vCX}, v61, 4, v{vCX}")
    b(f"s_lshl_b32 s7, s{sW}, 18\ns_lshl_b32 s8, s{sCPI}, 8\ns_add_u32 s7, s7, s8\nv_add_u32 v{vCX}, s7, v{vCX}")
    b(f"v_lshlrev_b32 v{vCS}, 7, v60\nv_lshl_add_u32 v{vCS}, v61, 5, v{vCS}\ns_lshl_b32 s7, s{sW}, 11\nv_add_u32 v{vCS}, s7, v{vCS}")
    b(f"v_lshlrev_b32 v5, 5, v60\nv_lshl_add_u32 v{vUW}, v61, 3, v5\ns_lshl_b32 s7, s{sW}, 9\ns_add_u32 s7, s7, {LU+512}\nv_add_u32 v{vUW}, s7, v{vUW}")
    b(f"v_lshl_add_u32 v{vUR}, v61, 4, v5\ns_mul_i32 s7, s6, {US}\ns_lshl_b32 s8, s5, 8\ns_sub_u32 s7, s7, s8\ns_add_u32 s7, s7, {LU}\nv_add_u32 v{vUR}, s7, v{vUR}")
    b(f"v_lshlrev_b32 v5, 3, v61\nv_sub_u32 v5, v60, v5\nv_lshlrev_b32 v5, 2, v5\ns_mul_i32 s7, s6, {PKS}\ns_lshl_b32 s8, s5, 9\ns_add_u32 s7, s7, s8\ns_add_u32 s7, s7, {LPK+26*4}\nv_add_u32 v{vTB}, s7, v5")
    b(f"s_lshl_b32 s7, s{sW}, 10\ns_add_u32 s7, s7, {LEX}\nv_add_u32 v{vEW}, s7, v2\ns_lshl_b32 s7, s{sW}, 12\ns_add_u32 s7, s7, {LEX}\nv_add_u32 v{vER}, s7, v2")
    b(f"v_and_b32 v204, {NSH-1}, v1\nv_lshlrev_b32 v204, 8, v204\ns_and_b32 s7, s3, {NR-1}\ns_lshl_b32 s7, s7, 12\nv_add_u32 v204, s7, v204")
    b(f"v_lshlrev_b32 v205, 12, v1\ns_and_b32 s7, s{sCT}, {NSH-1}\ns_lshl_b32 s7, s7, 8\nv_add_u32 v205, s7, v205\nv_mov_b32 v{vONE}, 1")
    for k in range(0 if TB else 9):
        b(f"v_lshlrev_b32 v5, 3, v0\nv_add_u32 v5, {k-1}, v5")
        if k == 0: b("v_max_i32 v5, 0, v5")
        b("v_cvt_f32_u32 v5, v5\nv_cvt_pk_bf16_f32 v5, 0, v5\nv_cvt_u32_f32 v6, v5")
        b("v_lshrrev_b32 v5, 23, v5\nv_subrev_u32 v5, 134, v5\nv_med3_i32 v5, v5, 0, 3")
        b("v_lshrrev_b32 v62, 7, v6\nv_and_b32 v63, 7, v6\nv_lshl_or_b32 v62, v62, 3, v63\nv_lshrrev_b32 v62, v5, v62\nv_lshl_add_u32 v62, v5, 3, v62")
        b(f"v_bfe_u32 v6, v6, 3, 4\nv_lshlrev_b32 v6, 2, v6\nv_lshl_add_u32 v6, v62, 6, v6\nv_add_u32 v{IDX+k}, {LGT}, v6")
def setup_g1(b):
    b("v_mbcnt_lo_u32_b32 v246, -1, 0\nv_mbcnt_hi_u32_b32 v246, -1, v246\nv_and_b32 v244, 15, v246\nv_lshrrev_b32 v245, 4, v246\nv_lshlrev_b32 v247, 4, v246")
    b(f"s_and_b32 s5, s{sW}, 1\ns_lshr_b32 s6, s{sW}, 1")
    b(f"v_lshlrev_b32 v{vGX}, 9, v245\nv_lshl_add_u32 v{vGX}, v244, 3, v{vGX}\ns_lshl_b32 s7, s{sRT}, 16\ns_lshl_b32 s8, s5, 7\ns_add_u32 s7, s7, s8\ns_lshl_b32 s8, s6, 15\ns_add_u32 s7, s7, s8\nv_add_u32 v{vGX}, s7, v{vGX}")
    b(f"v_lshlrev_b32 v5, 2, v245\nv_bfe_u32 v6, v246, 2, 2\nv_add_u32 v5, v5, v6\nv_mul_u32_u24 v5, 224, v5\nv_and_b32 v6, 3, v246\nv_lshl_add_u32 v5, v6, 3, v5\ns_mul_i32 s7, s6, {256*224}\nv_add_u32 v{vWA}, s7, v5")
    b(f"s_mul_i32 s7, s{sW}, 7680\ns_add_u32 s7, s7, {LSCR}\nv_add_u32 v{vXW}, s7, v247")
    b(f"v_lshrrev_b32 v5, 5, v246\nv_xor_b32 v5, s6, v5\nv_lshlrev_b32 v5, 8, v5\nv_lshl_add_u32 v5, v246, 2, v5\ns_lshl_b32 s7, s5, 9\ns_add_u32 s7, s7, {LSCR+30720}\nv_add_u32 v{vSW}, s7, v5")
    b(f"s_lshl_b32 s8, s6, 8\ns_add_u32 s7, s7, s8\nv_lshlrev_b32 v5, 2, v244\nv_add_u32 v{vSR}, s7, v5")
    b(f"s_xor_b32 s7, s{sW}, 2\ns_mul_i32 s7, s7, 7680\ns_add_u32 s7, s7, {LSCR}\nv_add_u32 v{vXR}, s7, v247")
    b(f"v_lshlrev_b32 v{vCSA}, 4, v245\nv_add_u32 v{vCSA}, {LCS}, v{vCSA}")
    b(f"s_lshl_b32 s7, s{sRT}, 1\ns_add_u32 s7, s7, s5\ns_mul_i32 s7, s7, {HT}\ns_mul_i32 s8, s{sCT}, 7168\ns_add_u32 s7, s7, s8\ns_lshl_b32 s8, s6, 8\ns_add_u32 s7, s7, s8")
    b(f"v_and_b32 v5, 1, v245\nv_lshrrev_b32 v6, 1, v245\nv_lshlrev_b32 v{vH2}, 9, v6\nv_lshl_add_u32 v{vH2}, v244, 4, v{vH2}\nv_add_u32 v{vH2}, s7, v{vH2}\nv_lshl_add_u32 v{vH4}, v5, 10, v{vH2}\nv_lshl_add_u32 v{vH2}, v5, 3, v{vH2}")
    b(f"s_and_b32 s7, s{sCT}, 1\ns_lshl_b32 s8, s7, 10\nv_add_u32 v{vH4}, s8, v{vH4}\ns_mul_i32 s8, s7, 6144\nv_subrev_u32 v{vH2}, s8, v{vH2}")
def setup_g2(b):
    b("v_mbcnt_lo_u32_b32 v248, -1, 0\nv_mbcnt_hi_u32_b32 v248, -1, v248\nv_lshlrev_b32 v6, 4, v248")
    b("v_and_b32 v249, 15, v248\nv_lshrrev_b32 v250, 4, v248")
    b(f"s_mul_i32 s7, s{sLT}, {HT}\ns_mul_i32 s8, s{sW}, 28672\ns_add_u32 s7, s7, s8\nv_lshlrev_b32 v5, 9, v250\nv_lshl_add_u32 v{vHL}, v249, 4, v5\nv_add_u32 v{vHL}, s7, v{vHL}")
    b(f"s_lshr_b32 s7, s{sLT}, 1\ns_lshl_b32 s7, s7, 16\ns_and_b32 s8, s{sLT}, 1\ns_lshl_b32 s8, s8, 7\ns_add_u32 s7, s7, s8\ns_lshl_b32 s8, s{sDT}, 13\ns_add_u32 s7, s7, s8\ns_lshl_b32 s8, s{sW}, 11\ns_add_u32 s7, s7, s8")
    b(f"v_lshl_add_u32 v{vX2}, v249, 3, v5\nv_add_u32 v{vX2}, s7, v{vX2}")
    for sg in range(1, 4):
        b(f"s_xor_b32 s7, s{sW}, {sg}\ns_mul_i32 s7, s7, 6144\ns_add_u32 s7, s7, {LSCR+(sg-1)*2048}\nv_add_u32 v{vE1+sg-1}, s7, v6")
    b(f"s_mul_i32 s7, s{sW}, 6144\ns_add_u32 s7, s7, {LSCR}\nv_add_u32 v{vE0}, s7, v6")
    b(f"v_lshlrev_b32 v{vSA}, 4, v249\nv_lshl_add_u32 v{vSA}, v250, 2, v{vSA}\ns_lshl_b32 s7, s{sLT}, 8\nv_add_u32 v{vSA}, s7, v{vSA}")
    b(f"v_lshlrev_b32 v{vOUT}, 11, v249\nv_and_b32 v5, 1, v250\nv_lshl_add_u32 v{vOUT}, v5, 10, v{vOUT}\nv_lshrrev_b32 v5, 1, v250\nv_lshl_add_u32 v{vOUT}, v5, 4, v{vOUT}\ns_lshl_b32 s7, s{sLT}, 15\ns_lshl_b32 s8, s{sDT}, 7\ns_add_u32 s7, s7, s8\ns_lshl_b32 s8, s{sW}, 5\ns_add_u32 s7, s7, s8\nv_add_u32 v{vOUT}, s7, v{vOUT}")
    b(f"s_lshl_b32 s5, s{sDT}, 2\ns_add_u32 s5, s5, s{sW}\ns_mul_i32 s5, s5, 57344\ns_add_u32 s{sW2B}, s5, {W2F}")
def setup_p0(b):
    if FG:
        b(f"s_lshr_b32 s5, s{sCT}, 2\ns_lshl_b32 s5, s5, 1\ns_and_b32 s6, s{sW}, 1\ns_add_u32 s5, s5, s6\ns_lshl_b32 s5, s5, 7\ns_add_u32 s{sGS}, s{sGC}, s5")
        b(f"s_lshl_b32 s5, s{sW}, 1\ns_and_b32 s6, s{sLT}, 1\ns_add_u32 s5, s5, s6\ns_lshl_b32 s5, s5, 7\ns_add_u32 s{sGP}, s{sGC}, s5")
    else: b(f"s_mov_b32 s{sGP}, s{sGC}")
    b(f"@{{\ns_cmp_ge_u32 s{sCPI}, 128\ns_cselect_b64 s[{sEXW}:{sEXW+1}], -1, 0\ns_cmp_ge_u32 s{sDT}, 4\ns_cselect_b64 s[{sEXR}:{sEXR+1}], -1, 0\n@}}")
    b("v_lshlrev_b32 v5, 3, v61\nv_bfe_u32 v6, v1, 2, 2\nv_add_u32 v5, v5, v6\nv_lshlrev_b32 v5, 6, v5\nv_and_b32 v62, 3, v1\nv_lshl_add_u32 v5, v62, 3, v5")
    b("s_and_b32 s5, s95, 1\ns_lshl_b32 s5, s5, 5\ns_add_u32 s5, s5, s9\nv_add_u32 v209, s5, v5\nv_xor_b32 v210, 32, v209")
    b(f"s_lshl_b32 s99, s94, 11\ns_add_u32 s99, s99, {W2F}")
    b(f"s_lshl_b32 s11, s4, 16\ns_bfe_u32 s6, s2, 0x10002\ns_lshl_b32 s6, s6, 7\ns_add_u32 s11, s11, s6\ns_and_b32 s6, s2, 3\ns_lshl_b32 s6, s6, 14\ns_add_u32 s11, s11, s6\ns_lshl_b32 s6, s{sW}, 12\ns_add_u32 s11, s11, s6\ns_add_u32 s11, s11, {XP[0]}")
wq = list(dma)
def take(n):
    r = wq[:n]; del wq[:n]; return r
setup_p0(M)
if not TB: setup_dma(M)
M.add(interleave(gen(setup), take(opt("e0", 0)), start=20))
stamp(M, "p0 setup")
M("@vm b1")
stamp(M, "p0 rows")
M("v_swap_b32 v217, v220\nv_swap_b32 v219, v222")
M(f"buffer_store_dwordx4 v[216:219], v207, {WS}, s11 offen sc1 ;@p0s\nbuffer_store_dwordx4 v[220:223], v207, {WS}, s11 offen offset:256 sc1 ;@p0s")
for i in range(4): M(f"v_mov_b32 v{52+i}, 0")
for q in range(4):
    M(f"v_dot2c_f32_bf16 v52, s{sONE}, v{32+q}\nv_dot2c_f32_bf16 v53, v{32+q}, v{32+q}")
    M(f"v_dot2c_f32_bf16 v54, s{sONE}, v{36+q}\nv_dot2c_f32_bf16 v55, v{36+q}, v{36+q}")
for m_ in ["quad_perm:[1,0,3,2]", "quad_perm:[2,3,0,1]", "row_half_mirror", "row_mirror"]:
    for i in range(4): M(f"v_add_f32_dpp v{52+i}, v{52+i}, v{52+i} {m_} row_mask:0xf bank_mask:0xf")
xsum(M, [52, 53, 54, 55], 56, [16, 32])
for r in (52, 54): M(f"v_pk_mul_f32 {v(r,2)}, {v(r,2)}, s[{sINV}:{sINV+1}]")
for r in (52, 54): M(f"v_fma_f32 v{r+1}, -v{r}, v{r}, v{r+1}")
for r in (52, 54): rnd(M, r+1, r+1)
for r in (52, 54): M(f"v_add_f32 v{r+1}, s{sEPS}, v{r+1}")
for r in (52, 54): rnd(M, r+1, r+1)
for r in (52, 54): M(f"v_sqrt_f32 v{r+1}, abs(v{r+1})")
for r in (52, 54): M(f"v_cvt_pk_bf16_f32 v{r}, v{r}, v{r+1}")
M(f"s_lshl_b32 s5, s2, 6\ns_lshl_b32 s6, s{sW}, 4\ns_add_u32 s5, s5, s6\ns_add_u32 s15, s5, {ST0}")
stamp(M, "p0 stats")
nn = lab("nn"); nl = lab("nl"); nb = lab("nb")
M(f"s_waitcnt lgkmcnt(0)\ns_load_dword s{sNON}, s[38:39], 0\nv_mov_b32 v212, v52\nv_mov_b32 v214, v54")
tail.label(nn)
tail(f"s_mov_b32 s10, {SPIN}\nv_mov_b32 v213, 0")
tail.label(nl)
tail("global_load_dword v215, v213, s[38:39] sc1\ns_waitcnt vmcnt(0)")
tail(f"v_readfirstlane_b32 s{sNON}, v215\ns_cmp_lg_u32 s{sNON}, 0\ns_cbranch_scc1 {nb}")
tail(f"s_sub_u32 s10, s10, 1\ns_cmp_lg_u32 s10, 0\ns_cbranch_scc1 {nl}\ns_branch {nb}")
publish = gen(lambda b: (b(f"@{{\ns_waitcnt lgkmcnt(0)\ns_cmp_eq_u32 s{sNON}, 0\ns_cbranch_scc1 {nn}"), b.label(nb), b(f"v_mov_b32 v213, s{sNON}\nv_mov_b32 v215, s{sNON}\n@}}"), b(f"@vm p0s\n@{{\ns_barrier\ns_mov_b64 exec, 1\nbuffer_store_dwordx4 v[212:215], off, {WS}, s15 sc1\ns_mov_b64 exec, -1\n@}}"), stamp(b, "p0 published")))
def w2_relay(b):
    n3 = lab("n3")
    b("@vm b2")
    for mt in range(2):
        for hf in range(2): b(f"ds_read_b64_tr_b16 {v(224+4*mt+2*hf,2)}, v{209+mt} offset:{hf*256} ;@w2r")
    b(f"@lg w2r\n@{{\ns_cmp_ge_u32 s2, 224\ns_cbranch_scc1 {n3}")
    b(f"buffer_store_dwordx4 v[224:227], v2, {WS}, s99 offen sc1 ;@!\nbuffer_store_dwordx4 v[228:231], v2, {WS}, s99 offen offset:1024 sc1 ;@!")
    b.label(n3); b("@}")
def kgen(Kg):
    Kg(f"s_lshl_b32 s{sDK}, s13, 16\ns_and_b32 s{sDK+1}, s13, s{sMSK}")
    Kg(f"@{{\ns_lshl_b32 s5, s12, 16\ns_and_b32 s6, s12, s{sMSK}\ns_cmp_ge_u32 s{sW}, 2\ns_cselect_b32 s5, s6, s5\n@}}")
    L2E = f"{f2u(LOG2E):#x}"
    VAL = lambda row: 110 + 2*row if row < 45 else 62 + 2*(row - 45)
    Kg(f"v_mov_b32 v5, s5\nv_mul_f32 v5, {L2E}, v5\nv_exp_f32 v5, v5")
    for i in range(4): Kg(f"v_lshlrev_b32 v{48+i}, 16, v{48+i}")
    Kg(f"v_mul_f32 v48, {L2E}, v48\nv_exp_f32 v48, v48")
    Kg(f"s_mul_i32 s5, s{sW}, {ES}")
    Kg("v_lshlrev_b32 v98, 2, v1\nv_add_u32 v98, s5, v98")
    rnd(Kg, 5, 5); rnd(Kg, 48, 48)
    Kg(f"v_mul_f32 v49, v49, v5\nv_mul_f32 v48, v48, v5\nv_mul_f32 v49, 0.15915494, v49\nv_mul_f32 v48, s{sNL2E}, v48")
    Kg(f"v_add_f32 v5, v5, v5\nv_mul_f32 v{VAL(0)}, v50, v5\nv_mul_f32 v{VAL(0)+1}, v51, v5")
    E1, E8, E128, E1K = VAL(17), 34, VAL(24), VAL(48)
    PS = [(E1, 1.0), (E8, 8.0), (E128, 128.0), (E1K, 1024.0)]
    for k, (dst, p) in enumerate(PS): Kg(f"v_mul_f32 v{52+k}, {f2u(p):#x}, v48\nv_mul_f32 v{56+k}, {f2u(p):#x}, v49")
    for k, (dst, p) in enumerate(PS): Kg(f"v_exp_f32 v{52+k}, v{52+k}\nv_fract_f32 v{56+k}, v{56+k}")
    for k, (dst, p) in enumerate(PS): Kg(f"v_cos_f32 v{dst}, v{56+k}\nv_sin_f32 v{dst+1}, v{56+k}")
    Kg("v_mul_u32_u24 v99, 272, v60\nv_lshl_add_u32 v99, v61, 4, v99\nv_add_u32 v99, s5, v99")
    Kg(f"v_mov_b32 v{VAL(16)}, 1.0\nv_mov_b32 v{VAL(16)+1}, 0")
    for k, (dst, p) in enumerate(PS): Kg(f"v_mul_f32 v{dst}, v{dst}, v{52+k}\nv_mul_f32 v{dst+1}, v{dst+1}, v{52+k}")
    e16, e32, e64 = 36, 38, 32
    V = VAL
    levels = [
        [(V(1), V(0), E8), (V(18), E1, E1), (V(32), E128, E128), (e16, E8, E8), (V(56), E1K, E1K), (V(25), E1, E128), (V(49), E1K, E128)],
        [(e32, e16, e16), (V(20), V(18), V(18)), (V(40), V(32), V(32)), (V(2), V(0), e16), (V(3), V(1), e16), (V(19), V(18), E1), (V(36), V(32), E128),
         (V(26), V(18), E128), (V(50), E1K, V(32)), (V(33), V(32), V(18))],
        [(e64, e32, e32), (V(4), V(0), e32), (V(5), V(1), e32), (V(6), V(2), e32), (V(7), V(3), e32), (V(21), V(20), E1), (V(22), V(20), V(18)), (V(23), V(20), V(19)),
         (V(42), V(40), E128), (V(44), V(40), V(32)), (V(46), V(40), V(36)), (V(27), V(19), E128), (V(28), V(20), E128), (V(51), E1K, V(36)), (V(52), E1K, V(40)),
         (V(34), V(32), V(20)), (V(37), V(36), V(18)), (V(38), V(36), V(20)), (V(41), V(40), V(20))],
        [(V(8 + i), V(i), e64) for i in range(8)] +
        [(V(29), V(21), E128), (V(30), V(22), E128), (V(31), V(23), E128), (V(35), V(32), V(22)), (V(39), V(36), V(22)),
         (V(43), V(42), V(20)), (V(45), V(44), V(20)), (V(47), V(46), V(20)), (V(53), E1K, V(42)), (V(54), E1K, V(44)), (V(55), E1K, V(46))],
    ]
    row_of = {VAL(r): r for r in range(57)}
    pend = [0, 16, 17, 24, 48]; written = []
    rot = [0]
    def puts(rows):
        g = []
        for r in rows:
            t = 86 + rot[0] % 12; rot[0] += 1
            g.append((f"    v_cvt_pk_bf16_f32 v{t}, v{VAL(r)}, {'-' if r < 16 else ''}v{VAL(r)+1}", f"    ds_write_b32 v98, v{t} offset:{r*272}"))
            written.append(r)
        out = []
        for k in range(len(g) + 1):
            out.append(([g[k][0]] if k < len(g) else []) + ([g[k-1][1]] if k > 0 else []))
        return out
    for lv in levels:
        t = Buf()
        for d_, x_, y_ in lv: t(f"v_pk_mul_f32 {v(d_,2)}, {v(x_,2)}, {v(y_,2)} op_sel_hi:[1,0]")
        for d_, x_, y_ in lv: t(f"v_pk_fma_f32 {v(d_,2)}, {v(x_,2)}, {v(y_,2)}, {v(d_,2)} op_sel:[1,1,0] op_sel_hi:[0,1,1] neg_lo:[1,0,0]")
        Kg.add(interleave(t.l, puts(pend)))
        pend = [row_of[d_] for d_, _, _ in lv if d_ in row_of]
    Kg.add(flat(puts(pend)))
    assert sorted(written) == list(range(57))
    LOF, HF, GD = 110, 126, 62
    Kg("s_waitcnt lgkmcnt(0)")
    for s_ in range(4):
        Kg(f"ds_read_b128 {v(LOF+4*s_,4)}, v99 offset:{s_*64} ;@kf{s_}")
        for T in range(3): Kg(f"ds_read_b128 {v(HF+16*T+4*s_,4)}, v99 offset:{(16+16*T)*272+s_*64} ;@kf{s_}")
    Kg(f"s_mul_i32 s5, s{sW}, 3072\ns_add_u32 s5, s5, {LGT}")
    Kg("v_lshlrev_b32 v5, 2, v60\nv_lshl_add_u32 v5, v61, 8, v5\nv_add_u32 v5, s5, v5")
    for s_ in range(4):
        Kg(f"@lg kf{s_}")
        for T in range(3): Kg(f"v_mfma_f32_16x16x32_bf16 {v(GD+4*T,4)}, {v(HF+16*T+4*s_,4)}, {v(LOF+4*s_,4)}, {'0' if s_ == 0 else v(GD+4*T,4)}")
    for T in range(3):
        for r in range(0, 4, 2): Kg(f"ds_write2_b32 v5, v{GD+4*T+r}, v{GD+4*T+r+1} offset0:{r*16} offset1:{r*16+16}") if T == 0 else None
        if T:
            for r in range(4): Kg(f"ds_write_b32 v5, v{GD+4*T+r} offset:{(T*16+r)*64}")
M("@vm par,tb")
kl = gen(kgen)
PUB = opt("pub", 110)
cpl = ["    v_add_u32 v200, s90, v2", "    global_load_dwordx4 v[200:203], v200, s[42:43]"] if opt("cp0", 0) == 1 else []
W2E = opt("w2e", 0)
if W2E:
    publish = [l.replace("@vm p0s", "s_waitcnt vmcnt(0)") for l in publish]
    kl = interleave(kl, [publish + cpl], start=PUB, every=1)
    kl = gen(w2_relay) + kl
else: kl = interleave(kl, [publish + cpl + gen(w2_relay)], start=PUB, every=1)
M.add(interleave(kl, take(11 - opt("e0", 0)), start=opt("e1", 4)))
stamp(M, "kgen core")
M(f"s_mov_b32 s{sO}, {ST0}\nbuffer_load_dwordx4 v[232:235], v{vCS}, {WS}, s{sO} offen sc1 ;@cin\nbuffer_load_dwordx4 v[236:239], v{vCS}, {WS}, s{sO} offen offset:16 sc1 ;@cin")
M(f"s_mov_b32 s{sO}, {ST0+8192}\nbuffer_load_dwordx4 v[240:243], v{vCS}, {WS}, s{sO} offen sc1 ;@cin\nbuffer_load_dwordx4 v[244:247], v{vCS}, {WS}, s{sO} offen offset:16 sc1 ;@cin")
M("s_waitcnt lgkmcnt(0)\ns_barrier")
for c in range(2):
    for k in range(9): M(f"ds_read2st64_b32 {v(110+c*18+2*k,2)}, v{IDX+k} offset0:{24*c} offset1:{24*c+12} ;@g{c}")
M(f"v_bfe_u32 v5, v0, 4, 1\nv_mul_u32_u24 v5, {PKS}, v5\nv_lshl_add_u32 v5, v60, 2, v5\nv_add_u32 v5, {LPK}, v5\nv_mov_b32 v6, 0")
M("ds_write_b32 v5, v6")
M(f"v_lshlrev_b32 v5, 5, v0\nv_add_u32 v5, {LPK+64}, v5")
M("v_cmp_eq_u32 vcc, 0, v0")
for c in range(2):
    M(f"@lg g{c}")
    for k in range(9):
        r = 110 + c*18 + 2*k
        M(f"v_add_f32 v{r}, v{r}, v{r+1}")
    M(f"v_cndmask_b32 v{110+c*18}, v{110+c*18}, v6, vcc")
    for k in range(8): M(f"v_cvt_pk_bf16_f32 v{72+c*8+k}, v{110+c*18+2*(k+1)}, v{110+c*18+2*k}")
    M(f"ds_write_b128 v5, {v(72+c*8,4)} offset:{c*PKS}\nds_write_b128 v5, {v(76+c*8,4)} offset:{c*PKS+16}")
T0, U0, ACC = 32, 160, 224
BASE, RV, CST, UPK = 224, 232, 232, 240
def conv_stats(b, layer, half):
    b(f"s_mov_b32 s{sO}, {(ST2 if layer else ST0) + half*8192}")
    b(f"buffer_load_dwordx4 {v(CST,4)}, v{vCS}, {WS}, s{sO} offen sc1 ;@cin\nbuffer_load_dwordx4 {v(CST+4,4)}, v{vCS}, {WS}, s{sO} offen offset:16 sc1 ;@cin")
def conv_x(b, layer, half):
    b(f"s_mov_b32 s{sO}, {XP[2*layer] + half*0x100000}\nbuffer_load_dwordx4 v[248:251], v{vCX}, {WS}, s{sO} offen sc1 ;@cin")
def conv_inputs(b, layer, half):
    conv_x(b, layer, half); conv_stats(b, layer, half)
def gcheck(b):
    slow = lab("gs"); back = lab("gb"); lp = lab("gl")
    def chk(o):
        for k in range(8): o(f"v_xor_b32 v{160+k}, s{sNON}, v{CST+2*k+1}")
        o("v_or3_b32 v160, v160, v161, v162\nv_or3_b32 v163, v163, v164, v165\nv_or3_b32 v160, v160, v166, v167\nv_or_b32 v160, v160, v163\nv_cmp_ne_u32 vcc, 0, v160")
    b("@vm cin\n@{")
    chk(b); b(f"s_cbranch_vccnz {slow}"); b.label(back); b("@}")
    for k in range(4): b(f"v_mov_b32 v{252+k}, v{CST+8+2*k}")
    tail.label(slow); tail(f"s_mov_b32 s10, {SPIN}\ns_mov_b32 s11, {ST0}\ns_mov_b32 s5, {ST0+8192}")
    tail.label(lp)
    for k in range(4): tail(f"buffer_load_dwordx4 {v(CST+4*k,4)}, v{vCS}, {WS}, s{5 if k >= 2 else 11} offen offset:{16*(k&1)} sc1")
    tail("s_waitcnt vmcnt(0)")
    chk(tail); tail(f"s_cbranch_vccz {back}")
    tail(f"s_sub_u32 s10, s10, 1\ns_cmp_lg_u32 s10, 0\ns_cbranch_scc1 {lp}\ns_branch {back}")
def t_loads(b, js):
    for j in js:
        if j: b(f"v_add_u32 v5, {1024*j}, v{vTB}")
        ad = 5 if j else vTB
        for t in range(4):
            r = T0 + (j*4 + t)*4
            b(f"ds_read2_b32 {v(r,2)}, v{ad} offset0:{32*t+6} offset1:{32*t+4} ;@T\nds_read2_b32 {v(r+2,2)}, v{ad} offset0:{32*t+2} offset1:{32*t} ;@T")
def t_groups(ta=188):
    g = []
    for k in range(32):
        j, t = k >> 2, k & 3
        r = T0 + 4*k
        grp = [f"    v_add_u32 v{ta}, {1024*j}, v{vTB}"] if t == 0 else []
        grp += [f"    ds_read2_b32 {v(r,2)}, v{ta} offset0:{32*t+6} offset1:{32*t+4} ;@T", f"    ds_read2_b32 {v(r+2,2)}, v{ta} offset0:{32*t+2} offset1:{32*t} ;@T"]
        g.append(grp)
    return g
def u_pad(b):
    b(f"v_subrev_u32 v5, {LEX}, v{vEW}\nv_and_b32 v5, 0x3f0, v5\nv_lshrrev_b32 v5, 1, v5\nv_add_u32 v5, {LU}, v5\nv_mov_b32 v{UPK}, 0\nv_mov_b32 v{UPK+1}, 0")
    b(f"ds_write_b64 v5, {v(UPK,2)}\nds_write_b64 v5, {v(UPK,2)} offset:{US}")
def conv_half(b, layer, half, bg=[], pre_barrier=None, after_ln=None, after_mfma=None, tailbg=[], pre_barrier2=None):
    X = 248
    MN, RI, DD = 192, 196, 176
    b("@vm cin")
    stamp(b, f"L{layer} conv{half} loaded")
    if layer == 0:
        G = (lambda i: 252 + i) if half else (lambda i: CST + 2*i)
        for i in range(4): b(f"v_and_b32 v{RI+i}, s{sMSK}, v{G(i)}")
        for i in range(4): b(f"v_rcp_f32 v{RI+i}, v{RI+i}")
        for i in range(4): b(f"v_lshlrev_b32 v{MN+i}, 16, v{G(i)}")
    else:
        for i in range(4): b(f"v_pk_mul_f32 {v(CST+2*i,2)}, {v(CST+2*i,2)}, s[{sINV}:{sINV+1}]")
        for i in range(4): b(f"v_fma_f32 v{RI+i}, -v{CST+2*i}, v{CST+2*i}, v{CST+2*i+1}")
        for i in range(4): rnd(b, RI+i, RI+i)
        for i in range(4): b(f"v_add_f32 v{RI+i}, s{sEPS}, v{RI+i}")
        for i in range(4): rnd(b, RI+i, RI+i)
        for i in range(4): b(f"v_sqrt_f32 v{RI+i}, abs(v{RI+i})")
        for i in range(4): rnd(b, MN+i, CST+2*i)
        for i in range(4): rnd(b, RI+i, RI+i)
        for i in range(4): b(f"v_rcp_f32 v{RI+i}, v{RI+i}")
    for i in range(4): b(f"v_lshlrev_b32 v{BASE+i}, 16, v{X+i}\nv_and_b32 v{BASE+4+i}, s{sMSK}, v{X+i}")
    for k in range(4): b(f"v_pk_add_f32 {v(DD+2*k,2)}, {v(BASE+2*k,2)}, {v(MN+2*(k&1),2)} neg_lo:[0,1] neg_hi:[0,1]")
    if opt("rd", 1):
        for k in range(8): rnd(b, DD+k, DD+k)
    for k in range(4): b(f"v_pk_mul_f32 {v(DD+2*k,2)}, {v(DD+2*k,2)}, {v(RI+2*(k&1),2)}")
    for k in range(4): b(f"v_cvt_pk_bf16_f32 v{UPK+k}, v{DD+2*k}, v{DD+2*k+1}")
    b(f"ds_write_b64 v{vUW}, {v(UPK,2)} offset:{half*2048}\nds_write_b64 v{vUW}, {v(UPK+2,2)} offset:{US+half*2048}")
    F2 = opt("fine", 0) == 2 and layer == 1
    if F2: stamp(b, f"c{half} ln")
    if pre_barrier: b(pre_barrier)
    b("s_waitcnt lgkmcnt(0)\ns_barrier")
    if F2: stamp(b, f"c{half} bar1")
    if after_ln: after_ln(b)
    def urd(tp, t): return f"    ds_read_b128 {v(U0+(tp*4+t)*4,4)}, v{vUR} offset:{512 + 512*(tp+4*half) - 64*t - 32} ;@U{tp}_{t}"
    b.add([urd(0, t) for t in range(4)] + [urd(1, 0), urd(1, 1)])
    later = [urd(tp, t) for tp in range(1, 4) for t in range(4)][2:]
    fill = []
    for k in range(4):
        c = k >> 1
        fill += [f"    v_lshlrev_b32 v{RV+2*k}, 16, v{UPK+k}", f"    v_and_b32 v{RV+2*k+1}, s{sMSK}, v{UPK+k}"]
    for k in range(8): fill.append(f"    v_fmac_f32 v{BASE+k}, s{sDK + (k >> 2)}, v{RV+k}")
    ml = []; cnt = 0
    lastidx = {0: 12, 1: 25, 2: 34}
    for tp in range(4):
        for t in range(4):
            ml.append(f"    @lg U{tp}_{t}")
            for r in range(tp, 4):
                acc = ACC + (4*half + r)*4
                cin = "0" if (half == 0 and t == 0 and tp == 0) else ac(acc, 4)
                ml.append(f"    v_mfma_f32_16x16x32_bf16 {ac(acc,4)}, {v(T0+((r-tp)*4+t)*4,4)}, {v(U0+(tp*4+t)*4,4)}, {cin}")
                if later: ml.append(later.pop(0))
                elif fill: ml.append(fill.pop(0))
                for r_ in range(3):
                    if cnt == lastidx[r_] + (5 if r_ < 2 else 5): ml.append(f"    ds_write_b128 v{vEW}, {ac(ACC+(4*half+r_)*4,4)} offset:{r_*4096}")
                cnt += 1
    assert not later and not fill
    ml = interleave(ml, bg, start=2)
    b.add(ml)
    tailbg = list(tailbg)
    if F2: stamp(b, f"c{half} mfma")
    if after_mfma: after_mfma(b)
    if F2: stamp(b, f"c{half} chk")
    b(f"ds_write_b128 v{vEW}, {ac(ACC+(4*half+3)*4,4)} offset:{3*4096}")
    b.add(flat(tailbg[:2]))
    if half == 0: b.add(ab_list()[:GF1])
    if pre_barrier2: b(pre_barrier2)
    b("s_waitcnt lgkmcnt(0)\ns_barrier")
    if F2: stamp(b, f"c{half} bar2")
    for src in range(4): b(f"ds_read_b128 {v(RV+4*src,4)}, v{vER} offset:{src*1024} ;@E{src>>1}")
    b.add(flat(tailbg[2:]))
    if half == 0: b.add(ab_list()[GF1:GF1+GF2])
    b(f"s_mov_b32 s{sO}, {XP[1+2*layer] + half*0x100000}")
    for c in range(2):
        b(f"@lg E{c}")
        for k in range(2): b(f"v_pk_add_f32 {v(RV+8*c+2*k,2)}, {v(RV+8*c+2*k,2)}, {v(RV+8*c+4+2*k,2)}")
        for k in range(2): b(f"v_pk_add_f32 {v(BASE+4*c+2*k,2)}, {v(BASE+4*c+2*k,2)}, {v(RV+8*c+2*k,2)}")
    for i in range(4): b(f"v_cvt_pk_bf16_f32 v{244+i}, v{BASE+i}, v{BASE+4+i}")
    b(f"s_mov_b64 exec, s[{sEXW}:{sEXW+1}]\nv_swap_b32 v244, v245\nv_swap_b32 v246, v247\ns_mov_b64 exec, -1")
    b(f"buffer_store_dwordx4 v[244:247], v{vCX}, {WS}, s{sO} offen sc1 ;@cst")
    stamp(b, f"L{layer} conv{half} stored")
GF1, GF2 = opt("gf1", 5), opt("gf2", 7)
def ab_list():
    prs = sorted([(r, tp) for r in range(4, 8) for tp in range(4)], key=lambda p: (p[0] - p[1] > 3, p))
    out = []; seen = set()
    for grp in (prs[:6], prs[6:]):
        for t in range(4):
            for r, tp in grp:
                acc = ACC + r*4
                cin = ac(acc, 4) if r in seen else "0"
                seen.add(r)
                out.append(f"    v_mfma_f32_16x16x32_bf16 {ac(acc,4)}, {v(T0+((r-tp)*4+t)*4,4)}, {v(U0+(tp*4+t)*4,4)}, {cin}")
    return out
def conv_ab(b):
    b("@lg T")
    b.add(ab_list()[GF1+GF2:])
def colsum(b):
    wa_regs(b)
    b(f"@{{\ns_lshr_b32 s6, s{sW}, 1\ns_mul_i32 s6, s6, {256*224}\ns_lshl_b32 s5, s{sW}, 6\ns_cmp_eq_u32 s{sW}, 3\ns_cselect_b32 s5, 0, s5\ns_cselect_b64 vcc, -1, 0\ns_sub_u32 s5, s5, s6\n@}}")
    b(f"v_cndmask_b32 v248, v{vWA}, v253, vcc\nv_cndmask_b32 v249, v252, v253, vcc\nv_add_u32 v248, s5, v248\nv_add_u32 v249, s5, v249\nv_add_u32 v250, {256*224}, v248\nv_add_u32 v251, {256*224}, v249")
    for i in range(4): b(f"v_mov_b32 v{240+i}, s{sONE}")
    def rd(ks):
        for f2 in range(2):
            for hf in range(2):
                b(f"ds_read_b64_tr_b16 {v(96+(f2*8+ks%8)*4+2*hf,2)}, v{248 + f2 + 2*(ks//8)} offset:{(32*(ks%8)+16*hf)*224} ;@c{ks}")
    for ks in range(3): rd(ks)
    for ks in range(16):
        if ks + 3 < 16: rd(ks + 3)
        b(f"@lg c{ks}")
        for f2 in range(2):
            b(f"v_mfma_f32_16x16x32_bf16 {v(232+4*f2,4)}, {v(96+(f2*8+ks%8)*4,4)}, v[240:243], {'0' if ks == 0 else v(232+4*f2,4)}")
    b(f"s_lshl_b32 s5, s{sW}, 7\nv_add_u32 v5, s5, v{vCSA}")
    b("ds_write_b128 v5, v[232:235] ;@cs\nds_write_b128 v5, v[236:239] offset:64 ;@cs")

WB, SS, KA, SA = 160, 216, 224, 224
def g1_loads(layer, half):
    g = []
    X0 = 32 + 64 * half
    for ks in range(8):
        for n_, (dst, off) in enumerate([(0, 0), (4, 256), (2, 2048), (6, 2304)]):
            grp = []
            if n_ == 0: grp.append(f"    s_mov_b32 s{sB0}, {XP[1+2*layer] + half*0x100000 + ks*4096}")
            grp.append(f"    buffer_load_dwordx2 {v(X0+8*ks+dst,2)}, v{vGX}, {WS}, s{sB0} offen offset:{off} sc1 ;@x{ks}")
            g.append(grp)
    return g
def wread(b, ks, ft, hfs=(0, 1)):
    r = WB + (ks & 1) * 28 + ft * 4
    for hf in hfs:
        ad, off = (253, 0) if ft == 6 else ((252 if ft & 1 else vWA), (ft >> 1) * 64)
        b(f"ds_read_b64_tr_b16 {v(r+2*hf,2)}, v{ad} offset:{(32*ks+16*hf)*224 + off} ;@w{ks}_{ft}")
def wa_regs(b):
    b(f"v_xor_b32 v252, 32, v{vWA}\nv_and_b32 v253, 32, v{vWA}\nv_mul_u32_u24 v253, 6, v253\nv_sub_u32 v253, v{vWA}, v253\nv_add_u32 v253, 384, v253")
def g1_pre(b):
    wa_regs(b)
    for ft in range(7): wread(b, 0, ft)
def g1_loop(b, half, bg, hooks={}, slots=None):
    X0 = 32 + 64 * half
    bg = list(bg)
    if slots is None: slots = (0, 2, 4, 6) if len(bg) <= 32 else (0, 1, 3, 4, 6)
    def swaps(ks):
        x = X0 + 8 * ks
        b(f"@vm x{ks}\nv_swap_b32 v{x+1}, v{x+4}\nv_swap_b32 v{x+3}, v{x+6}")
    swaps(0)
    for ks in range(8):
        x = X0 + 8 * ks
        if opt("fine", 0) == 3 and len(STAMPS) > 25: stamp(b, f"g1{half} k{ks}")
        if ks in hooks: hooks[ks](b)
        if ks == 7:
            for ft in range(7):
                r = WB + 28 + ft * 4
                if ft in (0, 4): b(f"@lg w{ks}_{3 if ft == 0 else 6}")
                b(f"v_mfma_f32_16x16x32_bf16 {ac(SA+4*ft,4)}, {v(r,4)}, {v(x+4,4)}, {ac(SA+4*ft,4)}")
                b(f"ds_read_b128 {v(160+4*ft,4)}, v{vCSA} offset:{ft*64}")
                if ft < 4 and opt("ms", 1): b(f"v_mov_b32 v{220+ft}, 0x3e803e80")
                if ft in slots and bg: b.add(bg.pop(0))
            for ft in range(7):
                r = WB + 28 + ft * 4
                b(f"v_mfma_f32_16x16x32_bf16 {v(KA+4*ft,4)}, {v(r,4)}, {v(x,4)}, {v(KA+4*ft,4)}")
                if ft % 2 == 0 and ft // 2 < NW0: b(f"ds_write_b128 v{vXW}, {ac(SA+4*(ft//2),4)} offset:{(ft//2)*1024}")
            continue
        if opt("bs1", 0):
            for n_ in range(14):
                ft = n_ % 7; r = WB + (ks & 1) * 28 + ft * 4
                if n_ in (0, 3, 5): b(f"@lg w{ks}_{ {0: 2, 3: 4, 5: 6}[n_] }")
                if n_ < 7: b(f"v_mfma_f32_16x16x32_bf16 {ac(SA+4*ft,4)}, {v(r,4)}, {v(x+4,4)}, {'0' if ks == 0 else ac(SA+4*ft,4)}")
                else: b(f"v_mfma_f32_16x16x32_bf16 {v(KA+4*ft,4)}, {v(r,4)}, {v(x,4)}, {'0' if ks == 0 else v(KA+4*ft,4)}")
                wread(b, ks + 1, n_ // 2, (n_ & 1,))
                if n_ % 2 == 0 and n_ // 2 in slots and bg: b.add(bg.pop(0))
                if n_ == 11: swaps(ks + 1)
            continue
        for ft in range(7):
            r = WB + (ks & 1) * 28 + ft * 4
            if ft in (0, 4): b(f"@lg w{ks}_{3 if ft == 0 else 6}")
            b(f"v_mfma_f32_16x16x32_bf16 {ac(SA+4*ft,4)}, {v(r,4)}, {v(x+4,4)}, {'0' if ks == 0 else ac(SA+4*ft,4)}")
            wread(b, ks + 1, ft, (0,))
            if ft in slots and bg: b.add(bg.pop(0))
            b(f"v_mfma_f32_16x16x32_bf16 {v(KA+4*ft,4)}, {v(r,4)}, {v(x,4)}, {'0' if ks == 0 else v(KA+4*ft,4)}")
            wread(b, ks + 1, ft, (1,))
            if ft == 5: swaps(ks + 1)
    assert not bg
NW0 = opt("nw0", 2)
RC, CSR = 188, 160
MS = opt("ms", 1)
def g1_post1m(b, half, bg=[], chk=None, bg2=[]):
    X0 = 32 + 64 * half
    m = Buf(); d = Buf()
    for ks in range(8):
        for j in range(2):
            m(f"v_mfma_f32_16x16x32_bf16 {v(188+4*j,4)}, v[220:223], {v(X0+8*ks+4*j,4)}, {'0' if ks == 0 else v(188+4*j,4)}")
    wr = [[f"    ds_write_b128 v{vXW}, {ac(SA+4*ft,4)} offset:{ft*1024}"] for ft in range(NW0, 7)]
    nb = min(len(bg), opt("msb", 4))
    b.add(interleave(interleave(m.l, wr, start=1, every=3), bg[:nb], start=2))
    for ks in range(8):
        x = X0 + 8 * ks
        for q in range(4):
            o = 4 * (q & 1)
            if ks == 0 and q < 2: d(f"v_dot2_f32_bf16 v{SS+o+1}, v{x+q}, v{x+q}, 0\nv_dot2_f32_bf16 v{SS+o+3}, v{x+4+q}, v{x+4+q}, 0")
            else: d(f"v_dot2c_f32_bf16 v{SS+o+1}, v{x+q}, v{x+q}\nv_dot2c_f32_bf16 v{SS+o+3}, v{x+4+q}, v{x+4+q}")
    b.add(interleave(d.l, bg[nb:]))
    b(f"v_permlane32_swap_b32 v188, v192\nv_add_f32 v{SS+1}, v{SS+1}, v{SS+5}\nv_add_f32 v{SS+3}, v{SS+3}, v{SS+7}\nv_add_f32 v{SS}, v188, v192")
    b(f"v_permlane32_swap_b32 v{SS+1}, v{SS+3}\nv_add_f32 v{SS+1}, v{SS+1}, v{SS+3}")
    b(f"v_permlane16_swap_b32 v{SS}, v{SS+1}\nv_add_f32 v{SS}, v{SS}, v{SS+1}\nds_write_b32 v{vSW}, v{SS}")
    b("s_waitcnt lgkmcnt(0)\ns_barrier")
    b(f"ds_read2_b32 {v(SS,2)}, v{vSR} offset0:0 offset1:16 ;@s\nds_read2_b32 {v(SS+2,2)}, v{vSR} offset0:32 offset1:48 ;@s")
    for ft in range(7): b(f"ds_read_b128 {v(RC+4*ft,4)}, v{vXR} offset:{ft*1024} ;@r{ft}")
    chk(b)
    b.add(flat(bg2))
def g1_post1(b, half, bg=[], chk=None, bg2=[]):
    if MS: return g1_post1m(b, half, bg, chk, bg2)
    X0 = 32 + 64 * half
    d = Buf()
    for ks in range(8):
        x = X0 + 8 * ks
        for q in range(4):
            o = 4 * (q & 1)
            if ks == 0 and q < 2:
                d(f"v_dot2_f32_bf16 v{SS+o}, s{sONE}, v{x+q}, 0\nv_dot2_f32_bf16 v{SS+o+1}, v{x+q}, v{x+q}, 0")
                d(f"v_dot2_f32_bf16 v{SS+o+2}, s{sONE}, v{x+4+q}, 0\nv_dot2_f32_bf16 v{SS+o+3}, v{x+4+q}, v{x+4+q}, 0")
                continue
            d(f"v_dot2c_f32_bf16 v{SS+o}, s{sONE}, v{x+q}\nv_dot2c_f32_bf16 v{SS+o+1}, v{x+q}, v{x+q}")
            d(f"v_dot2c_f32_bf16 v{SS+o+2}, s{sONE}, v{x+4+q}\nv_dot2c_f32_bf16 v{SS+o+3}, v{x+4+q}, v{x+4+q}")
    wr = [[f"    ds_write_b128 v{vXW}, {ac(SA+4*ft,4)} offset:{ft*1024}"] for ft in range(NW0, 7)]
    dl = interleave(d.l, wr, start=8, every=24)
    cut = opt("cut", 140)
    b.add(interleave(dl[:cut], bg, start=4))
    chk(b)
    b.add(interleave(dl[cut:], bg2))
    if opt("fine", 0) == 2: stamp(b, f"p{len(STAMPS)} dots")
    b(f"v_pk_add_f32 {v(SS+2,2)}, {v(SS+2,2)}, {v(SS+6,2)}\nv_pk_add_f32 {v(SS,2)}, {v(SS,2)}, {v(SS+4,2)}")
    b(f"v_permlane32_swap_b32 v{SS}, v{SS+2}\nv_permlane32_swap_b32 v{SS+1}, v{SS+3}\nv_pk_add_f32 {v(SS,2)}, {v(SS,2)}, {v(SS+2,2)}")
    b(f"v_permlane16_swap_b32 v{SS}, v{SS+1}\nv_add_f32 v{SS}, v{SS}, v{SS+1}\nds_write_b32 v{vSW}, v{SS}")
    b("s_waitcnt lgkmcnt(0)\ns_barrier")
    b(f"ds_read2_b32 {v(SS,2)}, v{vSR} offset0:0 offset1:16 ;@s\nds_read2_b32 {v(SS+2,2)}, v{vSR} offset0:32 offset1:48 ;@s")
    for ft in range(7): b(f"ds_read_b128 {v(RC+4*ft,4)}, v{vXR} offset:{ft*1024} ;@r{ft}")
def g1_post2(b, layer, half):
    b("@lg s")
    b(f"v_pk_add_f32 {v(SS,2)}, {v(SS,2)}, {v(SS+2,2)}")
    mn, sd, c2 = SS, SS+1, SS+2
    st = Buf()
    st(f"v_pk_mul_f32 {v(SS,2)}, {v(SS,2)}, s[{sINV}:{sINV+1}]\nv_fma_f32 v{sd}, -v{mn}, v{mn}, v{sd}")
    rnd(st, sd, sd); rnd(st, mn, mn)
    st(f"v_add_f32 v{sd}, s{sEPS}, v{sd}"); rnd(st, sd, sd)
    st(f"v_sqrt_f32 v{sd}, abs(v{sd})"); rnd(st, sd, sd)
    st(f"v_rcp_f32 v{c2}, v{sd}\nv_mul_f32 v{c2}, s{sNL2E}, v{c2}")
    adds = []
    for ft in range(7):
        t = RC + 4*ft
        adds.append([f"    @lg r{ft}"] + [f"    v_pk_add_f32 {v(t+2*k,2)}, {v(t+2*k,2)}, {v(KA+4*ft+2*k,2)}" for k in range(2)])
    b.add(interleave(st.l, adds, start=1, every=1))
    if opt("fine", 0) == 2: stamp(b, f"p{len(STAMPS)} stats")
    silu_part(b, 0, SPL[0])
def silu_part(b, k0, k1):
    mn, c2 = SS, SS + 2
    K = range(k0, k1); R = range(2*k0, 2*k1)
    for k in K: b(f"v_pk_fma_f32 {v(RC+2*k,2)}, {v(CSR+2*k,2)}, {v(mn,2)}, {v(RC+2*k,2)} op_sel_hi:[1,0,1] neg_lo:[0,1,0] neg_hi:[0,1,0]")
    for k in K: b(f"v_pk_mul_f32 {v(CSR+2*k,2)}, {v(RC+2*k,2)}, {v(c2,2)} op_sel_hi:[1,0]")
    for r in R: b(f"v_exp_f32 v{CSR+r}, v{CSR+r}")
    for k in K: b(f"v_pk_fma_f32 {v(CSR+2*k,2)}, {v(CSR+2*k,2)}, {v(mn,2)}, {v(mn,2)} op_sel:[0,1,1] op_sel_hi:[1,1,1]")
    for r in R: b(f"v_rcp_f32 v{CSR+r}, v{CSR+r}")
    for k in K: b(f"v_pk_mul_f32 {v(CSR+2*k,2)}, {v(CSR+2*k,2)}, {v(RC+2*k,2)}")
    for k in K:
        ft = k >> 1
        b(f"v_cvt_pk_bf16_f32 v{KA + 8*(ft >> 1) + 2*(ft & 1) + (k & 1)}, v{CSR+2*k}, v{CSR+2*k+1}")
    for pr in range(3):
        if k0 <= 4*pr < k1:
            p = KA + 8*pr
            b(f"v_permlane16_swap_b32 v{p}, v{p+2}\nv_permlane16_swap_b32 v{p+1}, v{p+3}")
SPL = {0: [14], 1: [8, 14], 2: [8, 12, 14], 3: [4, 8, 12, 14], 4: [4, 8, 14], 5: [12, 14]}[opt("sp", 2)]
def g1_store(b, layer, half, pre=None):
    hb = HB[layer] + half * 32 * HT
    b(f"s_mov_b32 s{sO}, {hb}\ns_mov_b32 s5, {hb + 4096}")
    done = 0
    for n_, k1 in enumerate(SPL):
        if n_: silu_part(b, SPL[n_-1], k1)
        if k1 == 14 and pre: pre(b)
        while done < 3 and 4*done + 4 <= k1:
            b(f"buffer_store_dwordx4 {v(KA+8*done,4)}, v{vH4}, {WS}, s{sO if done < 2 else 5} offen offset:{(done&1)*2048} sc1 ;@hst")
            done += 1
    b(f"buffer_store_dwordx2 {v(KA+24,2)}, v{vH2}, {WS}, s5 offen offset:2048 sc1 ;@hst")

H0, C2, RS = 32, 192, 184
def g2_loads(layer, half):
    g = []
    for i in range(28):
        grp = []
        if i % 4 == 0: grp.append(f"    s_mov_b32 s{sB0}, {HB[layer] + half*32*HT + (i//2)*2048}")
        grp.append(f"    buffer_load_dwordx4 {v(H0+4*i,4)}, v{vHL}, {WS}, s{sB0} offen offset:{((i%4)//2)*2048 + (i&1)*256} sc1 ;@h{half}_{i//2}")
        g.append(grp)
    return g
def w2_loads():
    g = []
    for i in range(56):
        grp = []
        if i % 4 == 0: grp.append(f"    s_add_u32 s{sB1}, s{sW2B}, {(i//4)*4096}")
        grp.append(f"    buffer_load_dwordx4 {ac(4*i,4)}, v6, {WS}, s{sB1} offen offset:{(i%4)*1024} sc1 ;@a{i//4}")
        g.append(grp)
    return g
def g2_res(layer, half):
    RS = 144 if half == 0 else 184
    return [[f"    s_mov_b32 s{sO}, {XP[1+2*layer] + half*0x100000}"] +
            [f"    buffer_load_dwordx2 {v(RS+2*c,2)}, v{vX2}, {WS}, s{sO} offen offset:{c*256} sc1 ;@res" for c in range(2)]]
def g2_loop(b, half, bg, hooks={}, tg=None, nm=None, late=[]):
    bg = list(bg); late = list(late)
    if tg: b.add(flat(tg[28:]))
    LAG = opt("lag", 4)
    DEF = (0, 1) if opt("lg2", 1) else (0,)
    def mf(ks, sg, nt):
        d = C2 + 8*sg + 4*nt
        b(f"v_mfma_f32_16x16x32_bf16 {v(d,4)}, {ac((ks*4+sg)*4,4)}, {v(H0+4*(2*ks+nt),4)}, {'0' if ks == 0 else v(d,4)}")
    tq = []
    for ks in range(14):
        for hh in range(2):
            if 2*ks + hh in hooks: hooks[2*ks + hh](b)
            if hh == 0: b(f"@vm h{half}_{ks},a{ks}")
            sgs = [(3, 2), (1, 0)][hh]
            n_ = 0
            order = [(sg, nt) for sg in sgs for nt in range(2)]
            if opt("bs2", 0) == 1: order = [(sg, hh) for sg in (3, 2, 1, 0)]
            if opt("bs2", 0) == 2: order = [(sgs[0], 0), (sgs[0], 1), (sgs[1], 1), (sgs[1], 0)]
            for sg, nt in order:
                if ks >= 14 - LAG and sg in DEF: continue
                if True:
                    mf(ks, sg, nt); n_ += 1
                    if n_ == 1 and bg: b.add(bg.pop(0))
                    if n_ == 3 and tq: b.add(tq.pop(0))
            if n_ == 0 and bg: b.add(bg.pop(0))
        if tg and ks < 14 - LAG: tq += [tg[2*ks], tg[2*ks+1]]
    if "end" in hooks: hooks["end"](b)
    wr = [f"ds_write_b128 v{vE1+sg-1}, {v(C2+8*sg+4*q,4)} offset:{q*1024}" for sg in (3, 2) for q in range(2)]
    w1_ = [f"ds_write_b128 v{vE1}, {v(C2+8+4*q,4)} offset:{q*1024}" for q in range(2)]
    if 1 not in DEF: wr += w1_
    seq = [(ks, sg, nt) for sg in sorted(DEF, reverse=True) for ks in range(14 - LAG, 14) for nt in range(2)]
    for n_, (ks, sg, nt) in enumerate(seq):
        mf(ks, sg, nt)
        if 1 in DEF and n_ == 2*LAG + 3: wr += w1_
        if n_ >= 2 and n_ % 2 == 0 and wr: b(wr.pop(0))
        if n_ % 2 == 1 and late: b.add(late.pop(0))
        if n_ % 2 == 1 and tq: b.add(tq.pop(0))
    for w_ in wr: b(w_)
    b.add(flat(late))
    if tg: b.add(flat(tq) + flat(tg[2*(14-LAG):(20 if opt("tl", 1) else 28)]))
    assert not bg
def g2_post1(b, half):
    RS = 144 if half == 0 else 184
    b("@vm res")
    b(f"@{{\ns_mov_b64 exec, s[{sEXR}:{sEXR+1}]\nv_swap_b32 v{RS}, v{RS+1}\nv_swap_b32 v{RS+2}, v{RS+3}\ns_mov_b64 exec, -1\n@}}")
    for c in range(2):
        for nt in range(2): b(f"v_lshlrev_b32 v{224+4*nt+2*c}, 16, v{RS+2*c+nt}\nv_and_b32 v{225+4*nt+2*c}, s{sMSK}, v{RS+2*c+nt}")
    b("s_waitcnt lgkmcnt(0)\ns_barrier")
    for k in range(6): b(f"ds_read_b128 {v(160+4*k,4)}, v{vE0} offset:{k*1024} ;@q{k>>1}")
def g2_post2(b, layer, half):
    for s_ in range(3):
        b(f"@lg q{s_}")
        for k in range(4): b(f"v_pk_add_f32 {v(C2+2*k,2)}, {v(C2+2*k,2)}, {v(160+8*s_+2*k,2)}")
    if opt("ro", 1):
        for r in range(8): rnd(b, C2+r, C2+r)
    for k in range(4): b(f"v_pk_add_f32 {v(C2+2*k,2)}, {v(C2+2*k,2)}, {v(224+2*k,2)}")
    for k in range(4):
        dstk = (2*(k & 1) + (k >> 1)) if layer == 0 else k
        b(f"v_cvt_pk_bf16_f32 v{240+dstk}, v{C2+2*k}, v{C2+2*k+1}")
    if layer == 0:
        b(f"@{{\ns_mov_b32 s{sO}, {XP[2] + half*0x100000}")
        for c in range(2): b(f"buffer_store_dwordx2 {v(240+2*c,2)}, v{vX2}, {WS}, s{sO} offen offset:{c*256} sc1 ;@xst")
        b("@}")
        for nt in range(2): b(f"v_dot2_f32_bf16 v{244+2*nt}, s{sONE}, v{240+nt}, 0\nv_dot2_f32_bf16 v{245+2*nt}, v{240+nt}, v{240+nt}, 0")
        for nt in range(2): b(f"v_dot2_f32_bf16 v{244+2*nt}, s{sONE}, v{242+nt}, v{244+2*nt}\nv_dot2_f32_bf16 v{245+2*nt}, v{242+nt}, v{242+nt}, v{245+2*nt}")
        b("v_permlane32_swap_b32 v244, v246\nv_permlane32_swap_b32 v245, v247\nv_pk_add_f32 v[244:245], v[244:245], v[246:247]")
        b("v_permlane16_swap_b32 v244, v245\nv_add_f32 v244, v244, v245")
        LST = LSCR + 24576
        b(f"v_lshrrev_b32 v246, 2, v6\nv_add_u32 v246, {LST}, v246\ns_lshl_b32 s5, s{sW}, 8\nv_add_u32 v247, s5, v246")
        b("ds_write_b32 v247, v244\ns_waitcnt lgkmcnt(0)\ns_barrier")
        b("ds_read2st64_b32 v[244:245], v246 offset0:0 offset1:1\nds_read2st64_b32 v[246:247], v246 offset0:2 offset1:3")
        b(f"s_mov_b32 s{sO}, {ST2 + half*8192}\ns_waitcnt lgkmcnt(0)\nv_pk_add_f32 v[244:245], v[244:245], v[246:247]\nv_add_f32 v244, v244, v245")
        b(f"@{{\ns_mov_b64 exec, s[{sEXQ}:{sEXQ+1}]\nbuffer_atomic_add_f32 v244, v{vSA}, {WS}, s{sO} offen sc1 ;@xst\ns_mov_b64 exec, -1\n@}}")
    else:
        b("v_permlane16_swap_b32 v240, v242\nv_permlane16_swap_b32 v241, v243")
        b(f"s_mov_b32 s{sO}, {half*0x100000}\nbuffer_store_dwordx4 v[240:243], v{vOUT}, {srd(SOUT)}, s{sO} offen {opt('ofl', 'x').replace('x', '').replace('_', ' ')}")

gcheck(M); conv_x(M, 0, 0)
M(f"v_mov_b32 v{vPL}, v204\nv_mov_b32 v{vSG}, v205")
M("s_waitcnt lgkmcnt(0)\ns_barrier")
stamp(M, "kgen done")
XT, XUP, XPF, HPF, HP2, HUP = opt("xt", 10), opt("xup", 16), opt("xpf", 16), opt("hpf", 14), opt("hp2", 6), opt("hup", 14)
D1, D2, D3, D4, D5 = opt("d1", 6), opt("d2", 6), opt("d3", 5), opt("d4", 8), opt("d5", 6)
M.add(interleave(gen(t_loads, range(4)), take(D1))); u_pad(M)
for layer in range(2):
    L0 = layer == 0
    cA, cB = 4*layer, 4*layer + 1
    xa, xb, ha, hb_ = g1_loads(layer, 0), g1_loads(layer, 1), g2_loads(layer, 0), g2_loads(layer, 1)
    if L0:
        vm_ = take(D2); tg_ = t_groups(5)[16:]
        conv_half(M, layer, 0, bg=[tg_[k] + (vm_[k//2] if (k % 2 == 0 and k//2 < len(vm_)) else []) for k in range(16)])
        conv_x(M, 0, 1)
        s1_ = [l.replace("v5", "v240").replace("v6", "v241") for l in gen(setup_g1)]
        ab = interleave(gen(conv_ab), [gen(sig_all, cA, "cst")], start=opt("abs0", 30), every=1)
        ab = interleave(ab, [s1_[k:k+2] for k in range(0, len(s1_), 2)], start=2)
        M.add(interleave(ab, take(D3), start=1))
    else:
        conv_half(M, layer, 0, pre_barrier="@vm xst", after_ln=lambda b: sig_all(b, 3, "xst", barrier=False),
                  bg=([[]] * 4 + t_groups(5)[20:28] + [[]] * 2 if opt("tl", 1) else []))
        ab = gen(conv_ab)
        ev = sorted([(opt("abp", 2), 0, gen(poll_all, 3)), (opt("abc", 40), 1, gen(check, "all", 3) + gen(conv_inputs, 1, 1)), (opt("abs", 52), 2, gen(sig_all, cA, "cst"))])
        pos = 0
        for p_, _, g_ in ev:
            M.add(ab[pos:p_]); M.add(g_); pos = p_
        M.add(ab[pos:])
    stamp(M, f"L{layer} conv0 signalled")
    if not L0:
        if opt("lateC", 0):
            conv_half(M, layer, 1, after_mfma=lambda b: poll_all(b, cA))
            g1_pre(M); check(M, "all", cA)
            M.add(flat(xa[:XUP]))
        else:
            conv_half(M, layer, 1, after_ln=lambda b: poll_all(b, cA), after_mfma=lambda b: check(b, "all", cA), tailbg=xa[:XT])
            g1_pre(M)
            M.add(flat(xa[XT:XUP]))
    else:
        assert not wq
        wq += w2_loads()
        sg_ = gen(setup_g2)
        sg_ = sg_[:3] + sg_[-4:] + sg_[3:-4]
        bgs = [sg_[k:k+2] for k in range(0, len(sg_), 2)]
        if W2E:
            wl = take(D4)
            for q, g_ in enumerate(wl): bgs[4 + q * ((len(bgs) - 4) // len(wl))] += g_
        conv_half(M, layer, 1, pre_barrier2="@vm w1", bg=bgs)
        poll_all(M, cA)
        cs_ = gen(colsum); cc = opt("cc", 30)
        M.add(interleave(cs_[:cc], take(D5 if W2E else 0), start=12))
        check(M, "all", cA)
        M.add(interleave(cs_[cc:], xa[:XUP]))
        g1_pre(M)
        M("@lg cs")
    stamp(M, f"L{layer} g1A ready")
    w2 = wq
    def mixw(x_, w_):
        if len(x_) + len(w_) <= 32: return x_ + w_
        x_ = list(x_); w_ = list(w_); o = []
        while x_ or w_:
            for q in range(5):
                src = x_ if (x_ and q < 4) else w_
                if src: o.append(src.pop(0))
                elif x_: o.append(x_.pop(0))
        return o + [[]] * (40 - len(o))
    XP1, HP1 = opt("xp1", 0), opt("hp1", 0)
    g1_loop(M, 0, mixw(xa[XUP:], take(opt("wa", 12))), {(opt("sg00", 0) if L0 else opt("sg0", 2)): lambda b: sig_all(b, cB, "cst")},
            slots=(None if L0 else [(0, 2, 4, 6), (0, 1, 3, 4, 6), (0, 1, 2, 3, 4, 5, 6)][opt("xs", 0)]))
    stamp(M, f"L{layer} g1A loop")
    poll_all(M, cB)
    g1_post1(M, 0, take(opt("wp", 14)), lambda b: check(b, "all", cB), xb[:XP1])
    stamp(M, f"L{layer} g1A post1")
    M.add(interleave(gen(g1_post2, layer, 0), xb[XP1:XPF]))
    g1_store(M, layer, 0, g1_pre)
    stamp(M, f"L{layer} g1A stored")
    if opt("fast", 0) and not L0:
        c1_, c2_ = opt("fc1", 5), opt("fc2", 16)
        n1 = 4 * (8 - c1_)
        g1_loop(M, 1, xb[XPF:] + [[]] * (4*c1_ - (32 - XPF)) + ha[:n1],
                {opt("sg1", 3): lambda b: sig_grp(b, 2*layer, "hst"), c1_ - 1: lambda b: poll_grp(b, 2*layer), c1_: lambda b: check(b, "grp", 2*layer)})
        stamp(M, f"L{layer} g1B loop")
        g1_post1(M, 1, [], lambda b: None, [])
        stamp(M, f"L{layer} g1B post1")
        M.add(interleave(gen(g1_post2, layer, 1), g2_res(layer, 0) + ha[n1:HPF]))
        g1_store(M, layer, 1)
        stamp(M, f"L{layer} g1B stored")
        rest = ha[HPF:]
        n2 = 28 - c2_
        g2_loop(M, 0, rest + [[]] * (c2_ - len(rest)) + hb_[:n2],
                {opt("sg2", 8): lambda b: sig_grp(b, 2*layer+1, "hst"), c2_ - 5: lambda b: poll_grp(b, 2*layer+1), c2_: lambda b: check(b, "grp", 2*layer+1)},
                late=hb_[n2:min(20, n2+8)])
        stamp(M, f"L{layer} g2A loop")
        g2_post1(M, 0); g2_post2(M, layer, 0)
        HP2_ = HUP = min(20, n2 + 8)
    else:
        g1_loop(M, 1, [[]] * opt("xsk", 2) + mixw(xb[XPF:], take(XPF - opt("xsk", 2))), {opt("sg1", 3): lambda b: sig_grp(b, 2*layer, "hst")})
        stamp(M, f"L{layer} g1B loop")
        poll_grp(M, 2*layer)
        g1_post1(M, 1, take(opt("wp", 14)), lambda b: check(b, "grp", 2*layer), ha[:HP1])
        stamp(M, f"L{layer} g1B post1")
        M.add(interleave(gen(g1_post2, layer, 1), g2_res(layer, 0) + ha[HP1:HPF]))
        g1_store(M, layer, 1)
        stamp(M, f"L{layer} g1B stored")
        rest = ha[HPF:]
        if w2:
            mix = []
            while rest or w2:
                mix.append((rest.pop(0) if rest else []) + (w2.pop(0) if w2 else []))
            rest = mix
        HP0 = opt("hp00", 8) if L0 else opt("hp0", 8)
        g2_loop(M, 0, [[]] * opt("hsk", 2) + rest, {opt("sg2", 8): lambda b: sig_grp(b, 2*layer+1, "hst"), (opt("pg2", 20) if HP0 else 27): lambda b: poll_grp(b, 2*layer+1),
                          "end": (lambda b: check(b, "grp", 2*layer+1) if HP0 else None)}, nm=("L1 g2A" if layer and opt("fine", 0) == 1 else None), late=hb_[:HP0])
        stamp(M, f"L{layer} g2A loop")
        if HP0: M.add(interleave(gen(g2_post1, 0) + gen(g2_post2, layer, 0), hb_[HP0:HP0+HP2], end=opt("hpe", 40)))
        else:
            if opt("lateA", 0) and L0:
                g2_post1(M, 0); g2_post2(M, layer, 0); check(M, "grp", 2*layer+1); M.add(flat(hb_[:HP2]))
            else:
                g2_post1(M, 0); check(M, "grp", 2*layer+1)
                M.add(interleave(gen(g2_post2, layer, 0), hb_[:HP2], end=opt("hpe", 30)))
        HP2_ = HP0 + HP2
    if L0 and opt("cpf", 1): M("v_add_u32 v5, s90, v6\nglobal_load_dwordx4 v[252:255], v5, s[42:43]")
    stamp(M, f"L{layer} g2A stored")
    M.add(flat(hb_[HP2_:HUP]))
    if L0:
        g2_loop(M, 1, hb_[HUP:] + g2_res(layer, 1), {opt("sg3", 4): lambda b: sig_all(b, 2, "xst"), 24: lambda b: poll_all(b, 2)}, tg=t_groups())
        stamp(M, f"L{layer} g2B loop")
        g2_post1(M, 1)
        if opt("lateB", 0):
            poll_all(M, 2); g2_post2(M, layer, 1); check(M, "all", 2); conv_inputs(M, 1, 0)
        else:
            check(M, "all", 2); conv_inputs(M, 1, 0)
            g2_post2(M, layer, 1)
        stamp(M, f"L{layer} g2B stored")
        u_pad(M)
    else:
        M("s_barrier")
        g2_loop(M, 1, hb_[HUP:] + g2_res(layer, 1), nm=("L1 g2B" if opt("fine", 0) == 1 else None))
        stamp(M, f"L{layer} g2B loop")
        g2_post1(M, 1); g2_post2(M, layer, 1)
        stamp(M, f"L{layer} g2B stored")
if STAMP:
    M(f"s_cmp_lg_u32 s{sW}, 0\ns_cbranch_scc1 {DONE}")
    M(f"v_mbcnt_lo_u32_b32 v5, -1, 0\nv_mbcnt_hi_u32_b32 v5, -1, v5\nv_lshlrev_b32 v5, 2, v5\ns_lshl_b32 s5, s2, 8\ns_add_u32 s5, s5, {0x1800000 + 0x400000}")
    M(f"buffer_store_dword v7, v5, {WS}, s5 offen")
M.label(DONE)
M("s_endpgm")

a = Asm()
a.kernel(NAME + "_kernel", vgpr=512, sgpr=102, accum=256)
lines = resolve(strip_marks(M.l)) + tail.l + [".Lkend:"]
lines, added = hazard.fix(lines)
import numpy as np
def rbf(j):
    u = np.array([j], dtype=np.float32).view(np.uint32)[0]
    u = (int(u) + 0x7FFF + ((int(u) >> 16) & 1)) & 0xFFFF0000
    return int(np.array([u], dtype=np.uint32).view(np.float32)[0])
def gaddr(j):
    p = rbf(max(j, 0)); e = 0 if p < 256 else 1 if p < 512 else 2 if p < 1024 else 3
    row = 8*e + ((((p >> 7) << 3) | (p & 7)) >> e)
    return LGT + row*64 + ((p >> 3) & 15)*4
def dmaoff(par_, k, lane):
    q = 16*k + (lane >> 2); pair, qq, sub = q // 7, q % 7, lane & 3
    full, half_ = (32, 0) if par_ else (0, 192)
    if qq < 3: return pair*7168 + full + qq*64 + sub*16
    if qq < 6: return pair*7168 + 3584 + full + (qq-3)*64 + (sub ^ 2)*16
    return pair*7168 + (sub >> 1)*3584 + half_ + (sub & 1)*16
if TB:
    it = [gaddr(8*t - 1 + 4*pl + k) for pl in range(2) for t in range(256) for k in range(4)] + [gaddr(8*t + 7) for t in range(256)]
    dt_ = [(dmaoff(p_, 4*pl + k, l_) if 4*pl + k < 7 else 0) for p_ in range(2) for pl in range(2) for l_ in range(64) for k in range(4)]
    for nm_, tb_ in (("idx_table", it), ("dma_table", dt_)):
        lines += [".p2align 6", f".type {nm_},@object", f"{nm_}:"] + [".long " + ", ".join(str(x) for x in tb_[q:q+16]) for q in range(0, len(tb_), 16)] + [f".size {nm_}, {4*len(tb_)}"]
a.lines += lines
print("nops added", added, "lines", len(a.lines), file=sys.stderr)
hdr = "".join(l for l in open(f"cdna_kernels/{NAME}.s.ref").readlines() if l.startswith(";") and "@launch" not in l and "Override" not in l and "grid=ceil" not in l)
a.launches = [f"; @launch grid=(256,1,1) block=(256,1,1) lds={LDS_BYTES}"]
open(OUT, "w").write(a.text(hdr))
json.dump(STAMPS, open("work/" + OUT.split("/")[-1] + ".stamps.json", "w"))
```

```python
import sys, struct, json
sys.path.insert(0, "work")
from asmgen import Asm
import hazard
from sched import resolve, interleave, strip_marks
NAME = "interleave_layers__ssm_conv_s4d__dense_activation_silu__prompt"
STAMP = "--stamp" in sys.argv
OPT = dict(x.lstrip("-").split("=") for x in sys.argv[1:] if x.startswith("--") and "=" in x)
def opt(k, d): return type(d)(OPT.get(k, d))
OUT = [x for x in sys.argv[1:] if not x.startswith("--")]
OUT = OUT[0] if OUT else f"cdna_kernels/{NAME}.s"
def f2u(x): return struct.unpack("<I", struct.pack("<f", x))[0]
LOG2E = 1.4426950408889634
GCNT = 6 * 0x8000
ST0 = 0x80000; ST2 = 0x84000
W2F = 0x100000
W1F = 0x1900000
XP = [0x1700000, 0x300000, 0x500000, 0x700000]
HB = [0x900000, 0x1000000]
WS_BYTES = 0x2000000
HT = 114688
LPK = 114688; PKS = 8256; LCS = 131200; LSCR = 131712
LU = LSCR; US = 4608; LEX = LSCR + 9216
ES = 28672; LGT = LEX
LDS_BYTES = 163840
SWS, SW1, SW2, SOUT = 44, 48, 52, 56
sW, sCPI, sRT, sCT, sLT, sDT, sNON, sGC = 60, 61, 62, 63, 64, 65, 66, 67
sDK, sONE, sMSK, sINV, sEPS, sNL2E = 68, 70, 71, 72, 74, 75
sEXS = 76
sB0, sB1, sO, sW2B, sGS = 78, 79, 80, 81, 82
sSTAMP = 84
sEXQ = 92
sEXW = 100
sEXR = 86
SPIN = 60000
vOUT, vPL, vSG, vPD, vONE = 0, 1, 2, 3, 4
vCX, vCS, vUW, vUR, vTB, vEW, vER, vGX, vWA, vXW, vXR, vSW, vSR, vCSA, vH4, vH2, vHL, vRX, vX2, vE1, vE0, vSA = \
    8, 9, 10, 11, 12, 13, 14, 15, 16, 17, 18, 19, 20, 21, 22, 23, 24, 25, 26, 27, 30, 31
vDMA = 24

HSC = "sc1" if opt("hsc", 1) else opt("hfl", "")
GFLAG = opt("gflag", 0)
if opt("samehb", 0): HB = [HB[0], HB[0]]
NSH = opt('nsh', 8)
class Buf:
    def __init__(self): self.l = []
    def __call__(self, s):
        for ln in s.strip("\n").split("\n"): self.l.append("    " + ln.strip())
    def label(self, n): self.l.append(n + ":")
    def add(self, lines): self.l += lines
uid = [0]
def lab(b="L"):
    uid[0] += 1; return f".{b}_{uid[0]}"
def srd(n): return f"s[{n}:{n+3}]"
def v(n, k=1): return f"v{n}" if k == 1 else f"v[{n}:{n+k-1}]"
def ac(n, k=1): return f"a{n}" if k == 1 else f"a[{n}:{n+k-1}]"
def flat(groups): return [l for g in groups for l in g]
def gen(fn, *args, **kw):
    t = Buf(); fn(t, *args, **kw); return t.l
WS = srd(SWS)
tail = Buf()
STAMPS = []
def stamp(b, name):
    if not STAMP: return
    if opt("light", 0) and name not in ("start", "L1 g2B stored"): return
    i = len(STAMPS); STAMPS.append(name)
    assert i < 64
    b(f"@{{\n{'s_memtime' if opt('cyc', 0) else 's_memrealtime'} s[{sSTAMP}:{sSTAMP+1}]\ns_waitcnt lgkmcnt(0)\nv_writelane_b32 v7, s{sSTAMP}, {i}\n@}}")

FG = opt("fg", 1)
sGP = 91
GADDR = "v_mov_b32 v5, 0" if FG else f"v_and_b32 v5, 0x300, v{vPL}"
GT = 8 if FG else 16
def poll_all(b, cnt):
    b(f"s_mov_b32 s{sO}, {cnt*0x8000}\nbuffer_load_dword v{vPD}, v{vPL}, {WS}, s{sO} offen sc1 ;@poll")
def poll_grp(b, idx):
    b(f"@{{\ns_add_u32 s{sO}, s{sGP}, {idx*16*1024}\n{GADDR}\nbuffer_load_dword v{vPD}, v5, {WS}, s{sO} offen sc1 ;@poll\n@}}")
def check(b, kind, idx):
    slow = lab("slow"); back = lab("back"); lp = lab("lp")
    b("@vm poll")
    b(f"@{{\nv_cmp_gt_u32 vcc, {GT if kind == 'grp' else 256 // NSH}, v{vPD}\ns_cbranch_vccnz {slow}")
    b.label(back); b("@}")
    tail.label(slow)
    tail(f"s_mov_b32 s10, {SPIN}")
    if kind == "all": tail(f"s_mov_b32 s11, {idx*0x8000}\nv_mov_b32 v5, v{vPL}")
    else: tail(f"s_add_u32 s11, s{sGP}, {idx*16*1024}\n{GADDR}")
    tgt = GT if kind == 'grp' else 256 // NSH
    if opt("pp", 0):
        tail(f"buffer_load_dword v{vPD}, v5, {WS}, s11 offen sc1\ns_sleep {opt('ppd', 4)}")
        tail.label(lp)
        tail(f"buffer_load_dword v4, v5, {WS}, s11 offen sc1\ns_waitcnt vmcnt(1)\nv_cmp_gt_u32 vcc, {tgt}, v{vPD}\ns_cbranch_vccz {back}")
        tail(f"buffer_load_dword v{vPD}, v5, {WS}, s11 offen sc1\ns_waitcnt vmcnt(1)\nv_cmp_gt_u32 vcc, {tgt}, v4\ns_cbranch_vccz {back}")
    else:
        tail.label(lp)
        tail(f"buffer_load_dword v{vPD}, v5, {WS}, s11 offen sc1\ns_waitcnt vmcnt(0)")
        tail(f"v_cmp_gt_u32 vcc, {tgt}, v{vPD}\ns_cbranch_vccz {back}")
    tail(f"s_sub_u32 s10, s10, 1\ns_cmp_lg_u32 s10, 0\ns_cbranch_scc1 {lp}\ns_branch {back}")
def sig_all(b, cnt, tag, barrier=True):
    b(f"@vm {tag}\n@{{\n{'s_barrier' if barrier else 's_nop 0'}\ns_mov_b32 s{sO}, {cnt*0x8000}\ns_mov_b64 exec, s[{sEXS}:{sEXS+1}]")
    b(f"v_mov_b32 v5, 1\nbuffer_atomic_add v5, v{vSG}, {WS}, s{sO} offen sc1\ns_mov_b64 exec, -1\n@}}")
def sig_grp(b, idx, tag):
    b(f"@vm {tag}\n@{{\ns_add_u32 s{sO}, s{sGS}, {idx*16*1024}\ns_mov_b64 exec, 1")
    if GFLAG: b(f"buffer_store_dword v{vONE}, off, {WS}, s{sO} {HSC}\ns_mov_b64 exec, -1\ns_barrier\n@}}")
    else: b(f"v_mov_b32 v5, 1\nbuffer_atomic_add v5, off, {WS}, s{sO} sc1\ns_mov_b64 exec, -1\ns_barrier\n@}}")
def xsum(b, regs, tmp, steps):
    for s in steps:
        for i, r in enumerate(regs): b(f"v_mov_b32 v{tmp+i}, v{r}")
        for i, r in enumerate(regs): b(f"v_permlane{s}_swap_b32 v{r}, v{tmp+i}")
        for i, r in enumerate(regs): b(f"v_add_f32 v{r}, v{r}, v{tmp+i}")
def rnd(b, d, s): b(f"v_cvt_pk_bf16_f32 v{d}, 0, v{s}")

M = Buf()
DONE = ".Ldone"
M.label(".Lkstart")
M("s_cmp_ge_u32 s2, 256")
M(f"s_cbranch_scc1 {DONE}")
M("s_load_dwordx16 s[16:31], s[0:1], 0\ns_load_dwordx8 s[32:39], s[0:1], 64\ns_load_dwordx2 s[40:41], s[0:1], 96")
M("s_memrealtime s[14:15]")
M("s_getpc_b64 s[42:43]")
M.label(".Lpc")
M("v_and_b32 v1, 63, v0\nv_lshlrev_b32 v2, 4, v1\nv_lshrrev_b32 v3, 6, v0")
M(f"v_readfirstlane_b32 s{sW}, v3")
if STAMP: M("v_mov_b32 v7, 0")
M("s_and_b32 s3, s2, 7\ns_lshr_b32 s4, s2, 3")
M(f"s_lshl_b32 s5, s4, 2\ns_add_u32 s5, s5, s{sW}\ns_min_u32 s5, s5, ((.Lkend-.Lkstart-128)>>10)-1\ns_lshl_b32 s5, s5, 10\nv_add_u32 v5, s5, v2")
M("s_mov_b32 s90, s5")
if opt("cp0", 0) == 0: M("global_load_dwordx4 v[200:203], v5, s[42:43]")
TB = opt("tb", 0)
IDX = 100
if TB:
    M("v_lshlrev_b32 v5, 4, v0\nv_add_u32 v5, idx_table-.Lpc, v5\nv_add_u32 v6, 4096, v5\nv_lshlrev_b32 v10, 2, v0\nv_add_u32 v10, idx_table-.Lpc+8192, v10")
    M("s_and_b32 s5, s4, 1\ns_lshl_b32 s5, s5, 11\ns_add_u32 s5, s5, dma_table-.Lpc\nv_add_u32 v11, s5, v2")
    M(f"global_load_dwordx4 {v(vDMA,4)}, v11, s[42:43] ;@tb\nglobal_load_dwordx3 {v(vDMA+4,3)}, v11, s[42:43] offset:1024 ;@tb")
    M(f"global_load_dwordx4 {v(IDX,4)}, v5, s[42:43] ;@tb\nglobal_load_dwordx4 {v(IDX+4,4)}, v6, s[42:43] ;@tb\nglobal_load_dword v{IDX+8}, v10, s[42:43] ;@tb")
M(f"s_lshl_b32 s{sCPI}, s3, 5\ns_add_u32 s{sCPI}, s{sCPI}, s4")
M(f"s_lshl_b32 s5, s2, 13\ns_lshl_b32 s6, s{sW}, 11\ns_add_u32 s5, s5, s6\nv_add_u32 v62, s5, v2")
M(f"s_lshl_b32 s5, s{sCPI}, 9\nv_lshlrev_b32 v63, 1, v0\nv_add_u32 v63, s5, v63")
M(f"s_lshr_b32 s5, s2, 2\ns_lshl_b32 s5, s5, 15\ns_and_b32 s6, s2, 3\ns_lshl_b32 s6, s6, 8\ns_add_u32 s5, s5, s6\ns_lshl_b32 s6, s{sW}, 6\ns_add_u32 s5, s5, s6")
M("v_and_b32 v5, 7, v1\nv_lshlrev_b32 v64, 12, v5\nv_lshrrev_b32 v6, 3, v1\nv_lshl_add_u32 v64, v6, 3, v64\nv_add_u32 v64, s5, v64")
M("s_waitcnt lgkmcnt(0)")
stamp(M, "start")
n0 = lab("n0")
M(f"s_or_b32 s5, s4, s{sW}\ns_cmp_lg_u32 s5, 0\ns_cbranch_scc1 {n0}")
M("s_or_b32 s14, s14, 1\nv_mov_b32 v8, s14\nv_mov_b32 v9, 0\ns_mov_b64 exec, 1\nglobal_atomic_cmpswap v9, v[8:9], s[38:39] sc1 ;@!\ns_mov_b64 exec, -1")
M.label(n0)
if opt("cp0", 0) == 3:
    M(f"s_lshl_b32 s5, s4, 2\ns_add_u32 s5, s5, s{sW}\ns_mul_i32 s5, s5, 384\ns_min_u32 s5, s5, .Lkend-.Lkstart-512")
    M("s_add_u32 s6, s5, 128\ns_add_u32 s10, s5, 256\ns_load_dword s86, s[42:43], s5\ns_load_dword s87, s[42:43], s6\ns_load_dword s10, s[42:43], s10")
for i, dst in enumerate([216, 220, 218, 222]): M(f"global_load_dwordx2 {v(dst,2)}, v64, s[16:17] offset:{i*1024} ;@b1")
M("global_load_dwordx4 v[32:35], v62, s[16:17] ;@b1\nglobal_load_dwordx4 v[36:39], v62, s[16:17] offset:1024 ;@b1")
for i in range(4): M(f"global_load_ushort v{48+i}, v63, s[{18+2*i}:{19+2*i}] ;@par")
M(f"s_and_b32 s{sCT}, s4, 15")
M(f"s_lshl_b32 s{sRT}, s3, 1\ns_lshr_b32 s5, s4, 4\ns_add_u32 s{sRT}, s{sRT}, s5")
M(f"s_lshl_b32 s{sLT}, s{sRT}, 1\ns_bfe_u32 s5, s4, 0x10003\ns_add_u32 s{sLT}, s{sLT}, s5\ns_and_b32 s{sDT}, s4, 7")
M(f"s_lshl_b32 s{sGC}, s{sRT}, 10\ns_add_u32 s{sGC}, s{sGC}, {GCNT}\ns_lshl_b32 s5, s{sW}, 8\ns_add_u32 s{sGS}, s{sGC}, s5")
M(f"s_mov_b32 s{sONE}, 0x3f803f80\ns_mov_b32 s{sMSK}, 0xffff0000\ns_mov_b32 s{sINV}, {f2u(1/512):#x}\ns_mov_b32 s{sINV+1}, {f2u(1/512):#x}")
M(f"s_mov_b32 s{sEPS}, {f2u(1e-5):#x}\ns_mov_b32 s{sNL2E}, {f2u(-LOG2E):#x}")
NR = opt("nr", 8)
if NR == 8: M(f"s_lshl_b32 s5, s{sW}, 1\ns_lshl_b32 s{sEXS}, 3, s5\ns_mov_b32 s{sEXS+1}, 0")
else: M(f"s_lshl_b32 s{sEXS}, 1, s{sW}\ns_mov_b32 s{sEXS+1}, 0")
M(f"s_lshl_b32 s5, s{sW}, 2\ns_lshl_b32 s{sEXQ}, 0x000f000f, s5\ns_mov_b32 s{sEXQ+1}, s{sEXQ}")
M("v_and_b32 v5, 7, v1\nv_lshrrev_b32 v6, 3, v1")
M("v_lshrrev_b32 v65, 2, v1\nv_lshlrev_b32 v65, 10, v65\nv_and_b32 v66, 3, v1\nv_lshl_add_u32 v65, v66, 4, v65\nv_lshlrev_b32 v207, 9, v6\nv_lshl_add_u32 v207, v5, 4, v207")
M(f"s_lshl_b32 s94, s2, 2\ns_add_u32 s94, s94, s{sW}\ns_min_u32 s94, s94, 895")
M("s_mul_i32 s95, s94, 2341\ns_lshr_b32 s95, s95, 16\ns_mul_i32 s5, s95, 28\ns_sub_u32 s96, s94, s5")
M("s_and_b32 s5, s95, 3\ns_mul_i32 s5, s5, 448\ns_lshr_b32 s6, s96, 1\ns_lshl_b32 s6, s6, 5\ns_add_u32 s5, s5, s6\ns_lshl_b32 s7, s5, 10\ns_lshr_b32 s5, s95, 2\ns_lshl_b32 s5, s5, 7\ns_add_u32 s7, s7, s5")
M("s_lshr_b32 s5, s95, 1\ns_xor_b32 s5, s5, s96\ns_and_b32 s5, s5, 1\ns_lshl_b32 s5, s5, 6\ns_add_u32 s7, s7, s5")
M(f"s_lshl_b32 s9, s{sW}, 12\ns_add_u32 s9, s9, {LPK}")
M(f"s_mov_b32 s{SWS+2}, {WS_BYTES:#x}\ns_mov_b32 s{SWS+3}, 0x20000")
if opt("wso", 0): M(f"s_add_u32 s{SWS}, s40, {opt('wso', 0) << 20}\ns_addc_u32 s{SWS+1}, s41, 0")
else: M(f"s_mov_b32 s{SWS}, s40\ns_mov_b32 s{SWS+1}, s41")
n1 = lab("n1")
M(f"s_cmp_ge_u32 s2, 128\ns_cbranch_scc1 {n1}")
M(f"s_lshl_b32 s5, s2, 2\ns_add_u32 s5, s5, s{sW}\ns_lshl_b32 s6, s5, 9\ns_lshl_b32 s5, s5, 5\ns_add_u32 s5, s5, {ST2}")
M("v_mov_b32 v4, 0\nv_mov_b32 v5, 0\nv_lshlrev_b32 v6, 3, v1\nv_lshlrev_b32 v8, 2, v1")
M(f"buffer_store_dwordx2 v[4:5], v6, {WS}, s6 offen sc1 ;@!\ns_mov_b64 exec, 0xff\nbuffer_store_dword v5, v8, {WS}, s5 offen sc1 ;@!\ns_mov_b64 exec, -1")
M.label(n1)
for sd, sb, nb in [(SW1, 32, 512*1792*2), (SW2, 34, 512*1792*2), (SOUT, 36, 2048*512*2)]:
    M(f"s_mov_b32 s{sd}, s{sb}\ns_mov_b32 s{sd+1}, s{sb+1}\ns_mov_b32 s{sd+2}, {nb:#x}\ns_mov_b32 s{sd+3}, 0x20000")
M(f"s_mov_b32 m0, s9\ns_add_u32 s5, s7, 16384\nbuffer_load_dwordx4 v65, {srd(SW2)}, s7 offen lds ;@b2\ns_add_u32 m0, s9, 1024\ns_nop 0\nbuffer_load_dwordx4 v65, {srd(SW2)}, s5 offen lds ;@b2")
M(f"s_lshl_b32 s5, s{sCPI}, 2")
M("s_load_dword s12, s[26:27], s5\ns_load_dword s13, s[28:29], s5")
if opt("tlb", 0):
    M(f"v_lshlrev_b32 v5, 20, v1\ns_mov_b64 exec, 0x7ffffff\ns_mov_b32 s5, 0xc0000\nbuffer_load_dword v240, v5, {WS}, s5 offen sc1\ns_mov_b64 exec, 3")
    M(f"buffer_load_dword v243, v5, {srd(SOUT)}, 0 offen\ns_mov_b64 exec, -1")
M("v_and_b32 v60, 15, v1\nv_lshrrev_b32 v61, 4, v1")
sD0, sD1 = 88, 89
sRX, sRH = 16, 24
M(f"s_mul_i32 s{sD0}, s{sW}, {128*3584}\ns_mul_i32 s5, s{sCT}, 224\ns_add_u32 s{sD0}, s{sD0}, s5\ns_mul_i32 s{sD1}, s{sW}, 28672")
dma = [[f"    s_add_u32 m0, s{sD1}, {p*1024}", f"    s_add_u32 s{sB1}, s{sD0}, {(p//7)*32*3584}", f"    buffer_load_dwordx4 v{vDMA+p%7}, {srd(SW1)}, s{sB1} offen lds ;@w1"] for p in range(28)]
dma = dma[17:] + dma[:17]
def setup_dma(b):
    b(f"s_and_b32 s7, s{sCT}, 1\ns_lshl_b32 s8, s7, 5\ns_mul_i32 s7, s7, 192\ns_sub_u32 s7, 192, s7")
    b("v_and_b32 v64, 3, v1\nv_lshlrev_b32 v64, 4, v64\nv_add_u32 v65, s8, v64\nv_xor_b32 v66, 32, v64")
    b(f"v_add_u32 v66, s8, v66\nv_add_u32 v66, {3584-192}, v66")
    b("v_and_b32 v67, 16, v64\nv_add_u32 v67, s7, v67\nv_lshrrev_b32 v64, 5, v64\nv_mul_u32_u24 v64, 3584, v64")
    b(f"v_add_u32 v67, v67, v64\nv_subrev_u32 v67, {6*64}, v67\nv_lshrrev_b32 v64, 2, v1")
    for k in range(7):
        b(f"v_add_u32 v5, {16*k}, v64\nv_mul_u32_u24 v6, 9363, v5\nv_lshrrev_b32 v6, 16, v6\nv_mul_u32_u24 v62, 7, v6\nv_sub_u32 v5, v5, v62")
        b(f"@{{\nv_cmp_lt_u32 vcc, 2, v5\nv_mul_u32_u24 v6, 7168, v6\nv_lshl_add_u32 v6, v5, 6, v6\nv_cndmask_b32 v62, v65, v66, vcc\nv_cmp_eq_u32 vcc, 6, v5\ns_nop 1\nv_cndmask_b32 v62, v62, v67, vcc\n@}}")
        b(f"v_add_u32 v{vDMA+k}, v6, v62")
def setup(b):
    b(f"s_and_b32 s5, s{sW}, 1\ns_lshr_b32 s6, s{sW}, 1")
    b(f"v_bfe_u32 v{vCX}, v1, 2, 2\nv_lshlrev_b32 v{vCX}, 16, v{vCX}\nv_and_b32 v5, 3, v1\nv_lshl_add_u32 v{vCX}, v5, 6, v{vCX}\nv_lshl_add_u32 v{vCX}, v61, 4, v{vCX}")
    b(f"s_lshl_b32 s7, s{sW}, 18\ns_lshl_b32 s8, s{sCPI}, 8\ns_add_u32 s7, s7, s8\nv_add_u32 v{vCX}, s7, v{vCX}")
    b(f"v_lshlrev_b32 v{vCS}, 7, v60\nv_lshl_add_u32 v{vCS}, v61, 5, v{vCS}\ns_lshl_b32 s7, s{sW}, 11\nv_add_u32 v{vCS}, s7, v{vCS}")
    b(f"v_lshlrev_b32 v5, 5, v60\nv_lshl_add_u32 v{vUW}, v61, 3, v5\ns_lshl_b32 s7, s{sW}, 9\ns_add_u32 s7, s7, {LU+512}\nv_add_u32 v{vUW}, s7, v{vUW}")
    b(f"v_lshl_add_u32 v{vUR}, v61, 4, v5\ns_mul_i32 s7, s6, {US}\ns_lshl_b32 s8, s5, 8\ns_sub_u32 s7, s7, s8\ns_add_u32 s7, s7, {LU}\nv_add_u32 v{vUR}, s7, v{vUR}")
    b(f"v_lshlrev_b32 v5, 3, v61\nv_sub_u32 v5, v60, v5\nv_lshlrev_b32 v5, 2, v5\ns_mul_i32 s7, s6, {PKS}\ns_lshl_b32 s8, s5, 9\ns_add_u32 s7, s7, s8\ns_add_u32 s7, s7, {LPK+26*4}\nv_add_u32 v{vTB}, s7, v5")
    b(f"s_lshl_b32 s7, s{sW}, 10\ns_add_u32 s7, s7, {LEX}\nv_add_u32 v{vEW}, s7, v2\ns_lshl_b32 s7, s{sW}, 12\ns_add_u32 s7, s7, {LEX}\nv_add_u32 v{vER}, s7, v2")
    b(f"v_and_b32 v204, {NSH-1}, v1\nv_lshlrev_b32 v204, 8, v204\ns_and_b32 s7, s3, {NR-1}\ns_lshl_b32 s7, s7, 12\nv_add_u32 v204, s7, v204")
    b(f"v_lshlrev_b32 v205, 12, v1\ns_and_b32 s7, s{sCT}, {NSH-1}\ns_lshl_b32 s7, s7, 8\nv_add_u32 v205, s7, v205\nv_mov_b32 v{vONE}, 1")
    for k in range(0 if TB else 9):
        b(f"v_lshlrev_b32 v5, 3, v0\nv_add_u32 v5, {k-1}, v5")
        if k == 0: b("v_max_i32 v5, 0, v5")
        b("v_cvt_f32_u32 v5, v5\nv_cvt_pk_bf16_f32 v5, 0, v5\nv_cvt_u32_f32 v6, v5")
        b("v_lshrrev_b32 v5, 23, v5\nv_subrev_u32 v5, 134, v5\nv_med3_i32 v5, v5, 0, 3")
        b("v_lshrrev_b32 v62, 7, v6\nv_and_b32 v63, 7, v6\nv_lshl_or_b32 v62, v62, 3, v63\nv_lshrrev_b32 v62, v5, v62\nv_lshl_add_u32 v62, v5, 3, v62")
        b(f"v_bfe_u32 v6, v6, 3, 4\nv_lshlrev_b32 v6, 2, v6\nv_lshl_add_u32 v6, v62, 6, v6\nv_add_u32 v{IDX+k}, {LGT}, v6")
def setup_g1(b):
    b("v_mbcnt_lo_u32_b32 v246, -1, 0\nv_mbcnt_hi_u32_b32 v246, -1, v246\nv_and_b32 v244, 15, v246\nv_lshrrev_b32 v245, 4, v246\nv_lshlrev_b32 v247, 4, v246")
    b(f"s_and_b32 s5, s{sW}, 1\ns_lshr_b32 s6, s{sW}, 1")
    b(f"v_lshlrev_b32 v{vGX}, 9, v245\nv_lshl_add_u32 v{vGX}, v244, 3, v{vGX}\ns_lshl_b32 s7, s{sRT}, 16\ns_lshl_b32 s8, s5, 7\ns_add_u32 s7, s7, s8\ns_lshl_b32 s8, s6, 15\ns_add_u32 s7, s7, s8\nv_add_u32 v{vGX}, s7, v{vGX}")
    b(f"v_lshlrev_b32 v5, 2, v245\nv_bfe_u32 v6, v246, 2, 2\nv_add_u32 v5, v5, v6\nv_mul_u32_u24 v5, 224, v5\nv_and_b32 v6, 3, v246\nv_lshl_add_u32 v5, v6, 3, v5\ns_mul_i32 s7, s6, {256*224}\nv_add_u32 v{vWA}, s7, v5")
    b(f"s_mul_i32 s7, s{sW}, 7680\ns_add_u32 s7, s7, {LSCR}\nv_add_u32 v{vXW}, s7, v247")
    b(f"v_lshrrev_b32 v5, 5, v246\nv_xor_b32 v5, s6, v5\nv_lshlrev_b32 v5, 8, v5\nv_lshl_add_u32 v5, v246, 2, v5\ns_lshl_b32 s7, s5, 9\ns_add_u32 s7, s7, {LSCR+30720}\nv_add_u32 v{vSW}, s7, v5")
    b(f"s_lshl_b32 s8, s6, 8\ns_add_u32 s7, s7, s8\nv_lshlrev_b32 v5, 2, v244\nv_add_u32 v{vSR}, s7, v5")
    b(f"s_xor_b32 s7, s{sW}, 2\ns_mul_i32 s7, s7, 7680\ns_add_u32 s7, s7, {LSCR}\nv_add_u32 v{vXR}, s7, v247")
    b(f"v_lshlrev_b32 v{vCSA}, 4, v245\nv_add_u32 v{vCSA}, {LCS}, v{vCSA}")
    b(f"s_lshl_b32 s7, s{sRT}, 1\ns_add_u32 s7, s7, s5\ns_mul_i32 s7, s7, {HT}\ns_mul_i32 s8, s{sCT}, 7168\ns_add_u32 s7, s7, s8\ns_lshl_b32 s8, s6, 8\ns_add_u32 s7, s7, s8")
    b(f"v_and_b32 v5, 1, v245\nv_lshrrev_b32 v6, 1, v245\nv_lshlrev_b32 v{vH2}, 9, v6\nv_lshl_add_u32 v{vH2}, v244, 4, v{vH2}\nv_add_u32 v{vH2}, s7, v{vH2}\nv_lshl_add_u32 v{vH4}, v5, 10, v{vH2}\nv_lshl_add_u32 v{vH2}, v5, 3, v{vH2}")
    b(f"s_and_b32 s7, s{sCT}, 1\ns_lshl_b32 s8, s7, 10\nv_add_u32 v{vH4}, s8, v{vH4}\ns_mul_i32 s8, s7, 6144\nv_subrev_u32 v{vH2}, s8, v{vH2}")
def setup_g2(b):
    b("v_mbcnt_lo_u32_b32 v248, -1, 0\nv_mbcnt_hi_u32_b32 v248, -1, v248\nv_lshlrev_b32 v6, 4, v248")
    b("v_and_b32 v249, 15, v248\nv_lshrrev_b32 v250, 4, v248")
    b(f"s_mul_i32 s7, s{sLT}, {HT}\ns_mul_i32 s8, s{sW}, 28672\ns_add_u32 s7, s7, s8\nv_lshlrev_b32 v5, 9, v250\nv_lshl_add_u32 v{vHL}, v249, 4, v5\nv_add_u32 v{vHL}, s7, v{vHL}")
    b(f"s_lshr_b32 s7, s{sLT}, 1\ns_lshl_b32 s7, s7, 16\ns_and_b32 s8, s{sLT}, 1\ns_lshl_b32 s8, s8, 7\ns_add_u32 s7, s7, s8\ns_lshl_b32 s8, s{sDT}, 13\ns_add_u32 s7, s7, s8\ns_lshl_b32 s8, s{sW}, 11\ns_add_u32 s7, s7, s8")
    b(f"v_lshl_add_u32 v{vX2}, v249, 3, v5\nv_add_u32 v{vX2}, s7, v{vX2}")
    for sg in range(1, 4):
        b(f"s_xor_b32 s7, s{sW}, {sg}\ns_mul_i32 s7, s7, 6144\ns_add_u32 s7, s7, {LSCR+(sg-1)*2048}\nv_add_u32 v{vE1+sg-1}, s7, v6")
    b(f"s_mul_i32 s7, s{sW}, 6144\ns_add_u32 s7, s7, {LSCR}\nv_add_u32 v{vE0}, s7, v6")
    b(f"v_lshlrev_b32 v{vSA}, 4, v249\nv_lshl_add_u32 v{vSA}, v250, 2, v{vSA}\ns_lshl_b32 s7, s{sLT}, 8\nv_add_u32 v{vSA}, s7, v{vSA}")
    b(f"v_lshlrev_b32 v{vOUT}, 11, v249\nv_and_b32 v5, 1, v250\nv_lshl_add_u32 v{vOUT}, v5, 10, v{vOUT}\nv_lshrrev_b32 v5, 1, v250\nv_lshl_add_u32 v{vOUT}, v5, 4, v{vOUT}\ns_lshl_b32 s7, s{sLT}, 15\ns_lshl_b32 s8, s{sDT}, 7\ns_add_u32 s7, s7, s8\ns_lshl_b32 s8, s{sW}, 5\ns_add_u32 s7, s7, s8\nv_add_u32 v{vOUT}, s7, v{vOUT}")
    b(f"s_lshl_b32 s5, s{sDT}, 2\ns_add_u32 s5, s5, s{sW}\ns_mul_i32 s5, s5, 57344\ns_add_u32 s{sW2B}, s5, {W2F}")
def setup_p0(b):
    if FG:
        b(f"s_lshr_b32 s5, s{sCT}, 2\ns_lshl_b32 s5, s5, 1\ns_and_b32 s6, s{sW}, 1\ns_add_u32 s5, s5, s6\ns_lshl_b32 s5, s5, 7\ns_add_u32 s{sGS}, s{sGC}, s5")
        b(f"s_lshl_b32 s5, s{sW}, 1\ns_and_b32 s6, s{sLT}, 1\ns_add_u32 s5, s5, s6\ns_lshl_b32 s5, s5, 7\ns_add_u32 s{sGP}, s{sGC}, s5")
    else: b(f"s_mov_b32 s{sGP}, s{sGC}")
    b(f"@{{\ns_cmp_ge_u32 s{sCPI}, 128\ns_cselect_b64 s[{sEXW}:{sEXW+1}], -1, 0\ns_cmp_ge_u32 s{sDT}, 4\ns_cselect_b64 s[{sEXR}:{sEXR+1}], -1, 0\n@}}")
    b("v_lshlrev_b32 v5, 3, v61\nv_bfe_u32 v6, v1, 2, 2\nv_add_u32 v5, v5, v6\nv_lshlrev_b32 v5, 6, v5\nv_and_b32 v62, 3, v1\nv_lshl_add_u32 v5, v62, 3, v5")
    b("s_and_b32 s5, s95, 1\ns_lshl_b32 s5, s5, 5\ns_add_u32 s5, s5, s9\nv_add_u32 v209, s5, v5\nv_xor_b32 v210, 32, v209")
    b(f"s_lshl_b32 s99, s94, 11\ns_add_u32 s99, s99, {W2F}")
    b(f"s_lshl_b32 s11, s4, 16\ns_bfe_u32 s6, s2, 0x10002\ns_lshl_b32 s6, s6, 7\ns_add_u32 s11, s11, s6\ns_and_b32 s6, s2, 3\ns_lshl_b32 s6, s6, 14\ns_add_u32 s11, s11, s6\ns_lshl_b32 s6, s{sW}, 12\ns_add_u32 s11, s11, s6\ns_add_u32 s11, s11, {XP[0]}")
wq = list(dma)
def take(n):
    r = wq[:n]; del wq[:n]; return r
setup_p0(M)
if not TB: setup_dma(M)
M.add(interleave(gen(setup), take(opt("e0", 0)), start=20))
stamp(M, "p0 setup")
M("@vm b1")
stamp(M, "p0 rows")
M("v_swap_b32 v217, v220\nv_swap_b32 v219, v222")
M(f"buffer_store_dwordx4 v[216:219], v207, {WS}, s11 offen sc1 ;@p0s\nbuffer_store_dwordx4 v[220:223], v207, {WS}, s11 offen offset:256 sc1 ;@p0s")
for i in range(4): M(f"v_mov_b32 v{52+i}, 0")
for q in range(4):
    M(f"v_dot2c_f32_bf16 v52, s{sONE}, v{32+q}\nv_dot2c_f32_bf16 v53, v{32+q}, v{32+q}")
    M(f"v_dot2c_f32_bf16 v54, s{sONE}, v{36+q}\nv_dot2c_f32_bf16 v55, v{36+q}, v{36+q}")
for m_ in ["quad_perm:[1,0,3,2]", "quad_perm:[2,3,0,1]", "row_half_mirror", "row_mirror"]:
    for i in range(4): M(f"v_add_f32_dpp v{52+i}, v{52+i}, v{52+i} {m_} row_mask:0xf bank_mask:0xf")
xsum(M, [52, 53, 54, 55], 56, [16, 32])
for r in (52, 54): M(f"v_pk_mul_f32 {v(r,2)}, {v(r,2)}, s[{sINV}:{sINV+1}]")
for r in (52, 54): M(f"v_fma_f32 v{r+1}, -v{r}, v{r}, v{r+1}")
for r in (52, 54): rnd(M, r+1, r+1)
for r in (52, 54): M(f"v_add_f32 v{r+1}, s{sEPS}, v{r+1}")
for r in (52, 54): rnd(M, r+1, r+1)
for r in (52, 54): M(f"v_sqrt_f32 v{r+1}, abs(v{r+1})")
for r in (52, 54): M(f"v_cvt_pk_bf16_f32 v{r}, v{r}, v{r+1}")
M(f"s_lshl_b32 s5, s2, 6\ns_lshl_b32 s6, s{sW}, 4\ns_add_u32 s5, s5, s6\ns_add_u32 s15, s5, {ST0}")
stamp(M, "p0 stats")
nn = lab("nn"); nl = lab("nl"); nb = lab("nb")
M(f"s_waitcnt lgkmcnt(0)\ns_load_dword s{sNON}, s[38:39], 0\nv_mov_b32 v212, v52\nv_mov_b32 v214, v54")
tail.label(nn)
tail(f"s_mov_b32 s10, {SPIN}\nv_mov_b32 v213, 0")
tail.label(nl)
tail("global_load_dword v215, v213, s[38:39] sc1\ns_waitcnt vmcnt(0)")
tail(f"v_readfirstlane_b32 s{sNON}, v215\ns_cmp_lg_u32 s{sNON}, 0\ns_cbranch_scc1 {nb}")
tail(f"s_sub_u32 s10, s10, 1\ns_cmp_lg_u32 s10, 0\ns_cbranch_scc1 {nl}\ns_branch {nb}")
publish = gen(lambda b: (b(f"@{{\ns_waitcnt lgkmcnt(0)\ns_cmp_eq_u32 s{sNON}, 0\ns_cbranch_scc1 {nn}"), b.label(nb), b(f"v_mov_b32 v213, s{sNON}\nv_mov_b32 v215, s{sNON}\n@}}"), b(f"@vm p0s\n@{{\ns_barrier\ns_mov_b64 exec, 1\nbuffer_store_dwordx4 v[212:215], off, {WS}, s15 sc1\ns_mov_b64 exec, -1\n@}}"), stamp(b, "p0 published")))
def w2_relay(b):
    n3 = lab("n3")
    b("@vm b2")
    for mt in range(2):
        for hf in range(2): b(f"ds_read_b64_tr_b16 {v(224+4*mt+2*hf,2)}, v{209+mt} offset:{hf*256} ;@w2r")
    b(f"@lg w2r\n@{{\ns_cmp_ge_u32 s2, 224\ns_cbranch_scc1 {n3}")
    b(f"buffer_store_dwordx4 v[224:227], v2, {WS}, s99 offen sc1 ;@!\nbuffer_store_dwordx4 v[228:231], v2, {WS}, s99 offen offset:1024 sc1 ;@!")
    b.label(n3); b("@}")
def kgen(Kg):
    Kg(f"s_lshl_b32 s{sDK}, s13, 16\ns_and_b32 s{sDK+1}, s13, s{sMSK}")
    Kg(f"@{{\ns_lshl_b32 s5, s12, 16\ns_and_b32 s6, s12, s{sMSK}\ns_cmp_ge_u32 s{sW}, 2\ns_cselect_b32 s5, s6, s5\n@}}")
    L2E = f"{f2u(LOG2E):#x}"
    VAL = lambda row: 110 + 2*row if row < 45 else 62 + 2*(row - 45)
    Kg(f"v_mov_b32 v5, s5\nv_mul_f32 v5, {L2E}, v5\nv_exp_f32 v5, v5")
    for i in range(4): Kg(f"v_lshlrev_b32 v{48+i}, 16, v{48+i}")
    Kg(f"v_mul_f32 v48, {L2E}, v48\nv_exp_f32 v48, v48")
    Kg(f"s_mul_i32 s5, s{sW}, {ES}")
    Kg("v_lshlrev_b32 v98, 2, v1\nv_add_u32 v98, s5, v98")
    rnd(Kg, 5, 5); rnd(Kg, 48, 48)
    Kg(f"v_mul_f32 v49, v49, v5\nv_mul_f32 v48, v48, v5\nv_mul_f32 v49, 0.15915494, v49\nv_mul_f32 v48, s{sNL2E}, v48")
    Kg(f"v_add_f32 v5, v5, v5\nv_mul_f32 v{VAL(0)}, v50, v5\nv_mul_f32 v{VAL(0)+1}, v51, v5")
    E1, E8, E128, E1K = VAL(17), 34, VAL(24), VAL(48)
    PS = [(E1, 1.0), (E8, 8.0), (E128, 128.0), (E1K, 1024.0)]
    for k, (dst, p) in enumerate(PS): Kg(f"v_mul_f32 v{52+k}, {f2u(p):#x}, v48\nv_mul_f32 v{56+k}, {f2u(p):#x}, v49")
    for k, (dst, p) in enumerate(PS): Kg(f"v_exp_f32 v{52+k}, v{52+k}\nv_fract_f32 v{56+k}, v{56+k}")
    for k, (dst, p) in enumerate(PS): Kg(f"v_cos_f32 v{dst}, v{56+k}\nv_sin_f32 v{dst+1}, v{56+k}")
    Kg("v_mul_u32_u24 v99, 272, v60\nv_lshl_add_u32 v99, v61, 4, v99\nv_add_u32 v99, s5, v99")
    Kg(f"v_mov_b32 v{VAL(16)}, 1.0\nv_mov_b32 v{VAL(16)+1}, 0")
    for k, (dst, p) in enumerate(PS): Kg(f"v_mul_f32 v{dst}, v{dst}, v{52+k}\nv_mul_f32 v{dst+1}, v{dst+1}, v{52+k}")
    e16, e32, e64 = 36, 38, 32
    V = VAL
    levels = [
        [(V(1), V(0), E8), (V(18), E1, E1), (V(32), E128, E128), (e16, E8, E8), (V(56), E1K, E1K), (V(25), E1, E128), (V(49), E1K, E128)],
        [(e32, e16, e16), (V(20), V(18), V(18)), (V(40), V(32), V(32)), (V(2), V(0), e16), (V(3), V(1), e16), (V(19), V(18), E1), (V(36), V(32), E128),
         (V(26), V(18), E128), (V(50), E1K, V(32)), (V(33), V(32), V(18))],
        [(e64, e32, e32), (V(4), V(0), e32), (V(5), V(1), e32), (V(6), V(2), e32), (V(7), V(3), e32), (V(21), V(20), E1), (V(22), V(20), V(18)), (V(23), V(20), V(19)),
         (V(42), V(40), E128), (V(44), V(40), V(32)), (V(46), V(40), V(36)), (V(27), V(19), E128), (V(28), V(20), E128), (V(51), E1K, V(36)), (V(52), E1K, V(40)),
         (V(34), V(32), V(20)), (V(37), V(36), V(18)), (V(38), V(36), V(20)), (V(41), V(40), V(20))],
        [(V(8 + i), V(i), e64) for i in range(8)] +
        [(V(29), V(21), E128), (V(30), V(22), E128), (V(31), V(23), E128), (V(35), V(32), V(22)), (V(39), V(36), V(22)),
         (V(43), V(42), V(20)), (V(45), V(44), V(20)), (V(47), V(46), V(20)), (V(53), E1K, V(42)), (V(54), E1K, V(44)), (V(55), E1K, V(46))],
    ]
    row_of = {VAL(r): r for r in range(57)}
    pend = [0, 16, 17, 24, 48]; written = []
    rot = [0]
    def puts(rows):
        g = []
        for r in rows:
            t = 86 + rot[0] % 12; rot[0] += 1
            g.append((f"    v_cvt_pk_bf16_f32 v{t}, v{VAL(r)}, {'-' if r < 16 else ''}v{VAL(r)+1}", f"    ds_write_b32 v98, v{t} offset:{r*272}"))
            written.append(r)
        out = []
        for k in range(len(g) + 1):
            out.append(([g[k][0]] if k < len(g) else []) + ([g[k-1][1]] if k > 0 else []))
        return out
    for lv in levels:
        t = Buf()
        for d_, x_, y_ in lv: t(f"v_pk_mul_f32 {v(d_,2)}, {v(x_,2)}, {v(y_,2)} op_sel_hi:[1,0]")
        for d_, x_, y_ in lv: t(f"v_pk_fma_f32 {v(d_,2)}, {v(x_,2)}, {v(y_,2)}, {v(d_,2)} op_sel:[1,1,0] op_sel_hi:[0,1,1] neg_lo:[1,0,0]")
        Kg.add(interleave(t.l, puts(pend)))
        pend = [row_of[d_] for d_, _, _ in lv if d_ in row_of]
    Kg.add(flat(puts(pend)))
    assert sorted(written) == list(range(57))
    LOF, HF, GD = 110, 126, 62
    Kg("s_waitcnt lgkmcnt(0)")
    for s_ in range(4):
        Kg(f"ds_read_b128 {v(LOF+4*s_,4)}, v99 offset:{s_*64} ;@kf{s_}")
        for T in range(3): Kg(f"ds_read_b128 {v(HF+16*T+4*s_,4)}, v99 offset:{(16+16*T)*272+s_*64} ;@kf{s_}")
    Kg(f"s_mul_i32 s5, s{sW}, 3072\ns_add_u32 s5, s5, {LGT}")
    Kg("v_lshlrev_b32 v5, 2, v60\nv_lshl_add_u32 v5, v61, 8, v5\nv_add_u32 v5, s5, v5")
    for s_ in range(4):
        Kg(f"@lg kf{s_}")
        for T in range(3): Kg(f"v_mfma_f32_16x16x32_bf16 {v(GD+4*T,4)}, {v(HF+16*T+4*s_,4)}, {v(LOF+4*s_,4)}, {'0' if s_ == 0 else v(GD+4*T,4)}")
    for T in range(3):
        for r in range(0, 4, 2): Kg(f"ds_write2_b32 v5, v{GD+4*T+r}, v{GD+4*T+r+1} offset0:{r*16} offset1:{r*16+16}") if T == 0 else None
        if T:
            for r in range(4): Kg(f"ds_write_b32 v5, v{GD+4*T+r} offset:{(T*16+r)*64}")
M("@vm par,tb")
kl = gen(kgen)
PUB = opt("pub", 110)
cpl = ["    v_add_u32 v200, s90, v2", "    global_load_dwordx4 v[200:203], v200, s[42:43]"] if opt("cp0", 0) == 1 else []
W2E = opt("w2e", 0)
if W2E:
    publish = [l.replace("@vm p0s", "s_waitcnt vmcnt(0)") for l in publish]
    kl = interleave(kl, [publish + cpl], start=PUB, every=1)
    kl = gen(w2_relay) + kl
else: kl = interleave(kl, [publish + cpl + gen(w2_relay)], start=PUB, every=1)
M.add(interleave(kl, take(11 - opt("e0", 0)), start=opt("e1", 4)))
stamp(M, "kgen core")
M(f"s_mov_b32 s{sO}, {ST0}\nbuffer_load_dwordx4 v[232:235], v{vCS}, {WS}, s{sO} offen sc1 ;@cin\nbuffer_load_dwordx4 v[236:239], v{vCS}, {WS}, s{sO} offen offset:16 sc1 ;@cin")
M(f"s_mov_b32 s{sO}, {ST0+8192}\nbuffer_load_dwordx4 v[240:243], v{vCS}, {WS}, s{sO} offen sc1 ;@cin\nbuffer_load_dwordx4 v[244:247], v{vCS}, {WS}, s{sO} offen offset:16 sc1 ;@cin")
M("s_waitcnt lgkmcnt(0)\ns_barrier")
for c in range(2):
    for k in range(9): M(f"ds_read2st64_b32 {v(110+c*18+2*k,2)}, v{IDX+k} offset0:{24*c} offset1:{24*c+12} ;@g{c}")
M(f"v_bfe_u32 v5, v0, 4, 1\nv_mul_u32_u24 v5, {PKS}, v5\nv_lshl_add_u32 v5, v60, 2, v5\nv_add_u32 v5, {LPK}, v5\nv_mov_b32 v6, 0")
M("ds_write_b32 v5, v6")
M(f"v_lshlrev_b32 v5, 5, v0\nv_add_u32 v5, {LPK+64}, v5")
M("v_cmp_eq_u32 vcc, 0, v0")
for c in range(2):
    M(f"@lg g{c}")
    for k in range(9):
        r = 110 + c*18 + 2*k
        M(f"v_add_f32 v{r}, v{r}, v{r+1}")
    M(f"v_cndmask_b32 v{110+c*18}, v{110+c*18}, v6, vcc")
    for k in range(8): M(f"v_cvt_pk_bf16_f32 v{72+c*8+k}, v{110+c*18+2*(k+1)}, v{110+c*18+2*k}")
    M(f"ds_write_b128 v5, {v(72+c*8,4)} offset:{c*PKS}\nds_write_b128 v5, {v(76+c*8,4)} offset:{c*PKS+16}")
T0, U0, ACC = 32, 160, 224
BASE, RV, CST, UPK = 224, 232, 232, 240
def conv_stats(b, layer, half):
    b(f"s_mov_b32 s{sO}, {(ST2 if layer else ST0) + half*8192}")
    b(f"buffer_load_dwordx4 {v(CST,4)}, v{vCS}, {WS}, s{sO} offen sc1 ;@cin\nbuffer_load_dwordx4 {v(CST+4,4)}, v{vCS}, {WS}, s{sO} offen offset:16 sc1 ;@cin")
def conv_x(b, layer, half):
    b(f"s_mov_b32 s{sO}, {XP[2*layer] + half*0x100000}\nbuffer_load_dwordx4 v[248:251], v{vCX}, {WS}, s{sO} offen sc1 ;@cin")
def conv_inputs(b, layer, half):
    conv_x(b, layer, half); conv_stats(b, layer, half)
def gcheck(b):
    slow = lab("gs"); back = lab("gb"); lp = lab("gl")
    def chk(o):
        for k in range(8): o(f"v_xor_b32 v{160+k}, s{sNON}, v{CST+2*k+1}")
        o("v_or3_b32 v160, v160, v161, v162\nv_or3_b32 v163, v163, v164, v165\nv_or3_b32 v160, v160, v166, v167\nv_or_b32 v160, v160, v163\nv_cmp_ne_u32 vcc, 0, v160")
    b("@vm cin\n@{")
    chk(b); b(f"s_cbranch_vccnz {slow}"); b.label(back); b("@}")
    for k in range(4): b(f"v_mov_b32 v{252+k}, v{CST+8+2*k}")
    tail.label(slow); tail(f"s_mov_b32 s10, {SPIN}\ns_mov_b32 s11, {ST0}\ns_mov_b32 s5, {ST0+8192}")
    tail.label(lp)
    for k in range(4): tail(f"buffer_load_dwordx4 {v(CST+4*k,4)}, v{vCS}, {WS}, s{5 if k >= 2 else 11} offen offset:{16*(k&1)} sc1")
    tail("s_waitcnt vmcnt(0)")
    chk(tail); tail(f"s_cbranch_vccz {back}")
    tail(f"s_sub_u32 s10, s10, 1\ns_cmp_lg_u32 s10, 0\ns_cbranch_scc1 {lp}\ns_branch {back}")
def t_loads(b, js):
    for j in js:
        if j: b(f"v_add_u32 v5, {1024*j}, v{vTB}")
        ad = 5 if j else vTB
        for t in range(4):
            r = T0 + (j*4 + t)*4
            b(f"ds_read2_b32 {v(r,2)}, v{ad} offset0:{32*t+6} offset1:{32*t+4} ;@T\nds_read2_b32 {v(r+2,2)}, v{ad} offset0:{32*t+2} offset1:{32*t} ;@T")
def t_groups(ta=188):
    g = []
    for k in range(32):
        j, t = k >> 2, k & 3
        r = T0 + 4*k
        grp = [f"    v_add_u32 v{ta}, {1024*j}, v{vTB}"] if t == 0 else []
        grp += [f"    ds_read2_b32 {v(r,2)}, v{ta} offset0:{32*t+6} offset1:{32*t+4} ;@T", f"    ds_read2_b32 {v(r+2,2)}, v{ta} offset0:{32*t+2} offset1:{32*t} ;@T"]
        g.append(grp)
    return g
def u_pad(b):
    b(f"v_subrev_u32 v5, {LEX}, v{vEW}\nv_and_b32 v5, 0x3f0, v5\nv_lshrrev_b32 v5, 1, v5\nv_add_u32 v5, {LU}, v5\nv_mov_b32 v{UPK}, 0\nv_mov_b32 v{UPK+1}, 0")
    b(f"ds_write_b64 v5, {v(UPK,2)}\nds_write_b64 v5, {v(UPK,2)} offset:{US}")
def conv_half(b, layer, half, bg=[], pre_barrier=None, after_ln=None, after_mfma=None, tailbg=[], pre_barrier2=None):
    X = 248
    MN, RI, DD = 192, 196, 176
    b("@vm cin")
    stamp(b, f"L{layer} conv{half} loaded")
    if layer == 0:
        G = (lambda i: 252 + i) if half else (lambda i: CST + 2*i)
        for i in range(4): b(f"v_and_b32 v{RI+i}, s{sMSK}, v{G(i)}")
        for i in range(4): b(f"v_rcp_f32 v{RI+i}, v{RI+i}")
        for i in range(4): b(f"v_lshlrev_b32 v{MN+i}, 16, v{G(i)}")
    else:
        for i in range(4): b(f"v_pk_mul_f32 {v(CST+2*i,2)}, {v(CST+2*i,2)}, s[{sINV}:{sINV+1}]")
        for i in range(4): b(f"v_fma_f32 v{RI+i}, -v{CST+2*i}, v{CST+2*i}, v{CST+2*i+1}")
        for i in range(4): rnd(b, RI+i, RI+i)
        for i in range(4): b(f"v_add_f32 v{RI+i}, s{sEPS}, v{RI+i}")
        for i in range(4): rnd(b, RI+i, RI+i)
        for i in range(4): b(f"v_sqrt_f32 v{RI+i}, abs(v{RI+i})")
        for i in range(4): rnd(b, MN+i, CST+2*i)
        for i in range(4): rnd(b, RI+i, RI+i)
        for i in range(4): b(f"v_rcp_f32 v{RI+i}, v{RI+i}")
    for i in range(4): b(f"v_lshlrev_b32 v{BASE+i}, 16, v{X+i}\nv_and_b32 v{BASE+4+i}, s{sMSK}, v{X+i}")
    for k in range(4): b(f"v_pk_add_f32 {v(DD+2*k,2)}, {v(BASE+2*k,2)}, {v(MN+2*(k&1),2)} neg_lo:[0,1] neg_hi:[0,1]")
    if opt("rd", 1):
        for k in range(8): rnd(b, DD+k, DD+k)
    for k in range(4): b(f"v_pk_mul_f32 {v(DD+2*k,2)}, {v(DD+2*k,2)}, {v(RI+2*(k&1),2)}")
    for k in range(4): b(f"v_cvt_pk_bf16_f32 v{UPK+k}, v{DD+2*k}, v{DD+2*k+1}")
    b(f"ds_write_b64 v{vUW}, {v(UPK,2)} offset:{half*2048}\nds_write_b64 v{vUW}, {v(UPK+2,2)} offset:{US+half*2048}")
    F2 = opt("fine", 0) == 2 and layer == 1
    if F2: stamp(b, f"c{half} ln")
    if pre_barrier: b(pre_barrier)
    b("s_waitcnt lgkmcnt(0)\ns_barrier")
    if F2: stamp(b, f"c{half} bar1")
    if after_ln: after_ln(b)
    def urd(tp, t): return f"    ds_read_b128 {v(U0+(tp*4+t)*4,4)}, v{vUR} offset:{512 + 512*(tp+4*half) - 64*t - 32} ;@U{tp}_{t}"
    b.add([urd(0, t) for t in range(4)] + [urd(1, 0), urd(1, 1)])
    later = [urd(tp, t) for tp in range(1, 4) for t in range(4)][2:]
    fill = []
    for k in range(4):
        c = k >> 1
        fill += [f"    v_lshlrev_b32 v{RV+2*k}, 16, v{UPK+k}", f"    v_and_b32 v{RV+2*k+1}, s{sMSK}, v{UPK+k}"]
    for k in range(8): fill.append(f"    v_fmac_f32 v{BASE+k}, s{sDK + (k >> 2)}, v{RV+k}")
    ml = []; cnt = 0
    lastidx = {0: 12, 1: 25, 2: 34}
    for tp in range(4):
        for t in range(4):
            ml.append(f"    @lg U{tp}_{t}")
            for r in range(tp, 4):
                acc = ACC + (4*half + r)*4
                cin = "0" if (half == 0 and t == 0 and tp == 0) else ac(acc, 4)
                ml.append(f"    v_mfma_f32_16x16x32_bf16 {ac(acc,4)}, {v(T0+((r-tp)*4+t)*4,4)}, {v(U0+(tp*4+t)*4,4)}, {cin}")
                if later: ml.append(later.pop(0))
                elif fill: ml.append(fill.pop(0))
                for r_ in range(3):
                    if cnt == lastidx[r_] + (5 if r_ < 2 else 5): ml.append(f"    ds_write_b128 v{vEW}, {ac(ACC+(4*half+r_)*4,4)} offset:{r_*4096}")
                cnt += 1
    assert not later and not fill
    ml = interleave(ml, bg, start=2)
    b.add(ml)
    tailbg = list(tailbg)
    if F2: stamp(b, f"c{half} mfma")
    if after_mfma: after_mfma(b)
    if F2: stamp(b, f"c{half} chk")
    b(f"ds_write_b128 v{vEW}, {ac(ACC+(4*half+3)*4,4)} offset:{3*4096}")
    b.add(flat(tailbg[:2]))
    if half == 0: b.add(ab_list()[:GF1])
    if pre_barrier2: b(pre_barrier2)
    b("s_waitcnt lgkmcnt(0)\ns_barrier")
    if F2: stamp(b, f"c{half} bar2")
    for src in range(4): b(f"ds_read_b128 {v(RV+4*src,4)}, v{vER} offset:{src*1024} ;@E{src>>1}")
    b.add(flat(tailbg[2:]))
    if half == 0: b.add(ab_list()[GF1:GF1+GF2])
    b(f"s_mov_b32 s{sO}, {XP[1+2*layer] + half*0x100000}")
    for c in range(2):
        b(f"@lg E{c}")
        for k in range(2): b(f"v_pk_add_f32 {v(RV+8*c+2*k,2)}, {v(RV+8*c+2*k,2)}, {v(RV+8*c+4+2*k,2)}")
        for k in range(2): b(f"v_pk_add_f32 {v(BASE+4*c+2*k,2)}, {v(BASE+4*c+2*k,2)}, {v(RV+8*c+2*k,2)}")
    for i in range(4): b(f"v_cvt_pk_bf16_f32 v{244+i}, v{BASE+i}, v{BASE+4+i}")
    b(f"s_mov_b64 exec, s[{sEXW}:{sEXW+1}]\nv_swap_b32 v244, v245\nv_swap_b32 v246, v247\ns_mov_b64 exec, -1")
    b(f"buffer_store_dwordx4 v[244:247], v{vCX}, {WS}, s{sO} offen sc1 ;@cst")
    stamp(b, f"L{layer} conv{half} stored")
GF1, GF2 = opt("gf1", 5), opt("gf2", 7)
def ab_list():
    prs = sorted([(r, tp) for r in range(4, 8) for tp in range(4)], key=lambda p: (p[0] - p[1] > 3, p))
    out = []; seen = set()
    for grp in (prs[:6], prs[6:]):
        for t in range(4):
            for r, tp in grp:
                acc = ACC + r*4
                cin = ac(acc, 4) if r in seen else "0"
                seen.add(r)
                out.append(f"    v_mfma_f32_16x16x32_bf16 {ac(acc,4)}, {v(T0+((r-tp)*4+t)*4,4)}, {v(U0+(tp*4+t)*4,4)}, {cin}")
    return out
def conv_ab(b):
    b("@lg T")
    b.add(ab_list()[GF1+GF2:])
def colsum(b):
    wa_regs(b)
    b(f"@{{\ns_lshr_b32 s6, s{sW}, 1\ns_mul_i32 s6, s6, {256*224}\ns_lshl_b32 s5, s{sW}, 6\ns_cmp_eq_u32 s{sW}, 3\ns_cselect_b32 s5, 0, s5\ns_cselect_b64 vcc, -1, 0\ns_sub_u32 s5, s5, s6\n@}}")
    b(f"v_cndmask_b32 v248, v{vWA}, v253, vcc\nv_cndmask_b32 v249, v252, v253, vcc\nv_add_u32 v248, s5, v248\nv_add_u32 v249, s5, v249\nv_add_u32 v250, {256*224}, v248\nv_add_u32 v251, {256*224}, v249")
    for i in range(4): b(f"v_mov_b32 v{240+i}, s{sONE}")
    def rd(ks):
        for f2 in range(2):
            for hf in range(2):
                b(f"ds_read_b64_tr_b16 {v(96+(f2*8+ks%8)*4+2*hf,2)}, v{248 + f2 + 2*(ks//8)} offset:{(32*(ks%8)+16*hf)*224} ;@c{ks}")
    for ks in range(3): rd(ks)
    for ks in range(16):
        if ks + 3 < 16: rd(ks + 3)
        b(f"@lg c{ks}")
        for f2 in range(2):
            b(f"v_mfma_f32_16x16x32_bf16 {v(232+4*f2,4)}, {v(96+(f2*8+ks%8)*4,4)}, v[240:243], {'0' if ks == 0 else v(232+4*f2,4)}")
    b(f"s_lshl_b32 s5, s{sW}, 7\nv_add_u32 v5, s5, v{vCSA}")
    b("ds_write_b128 v5, v[232:235] ;@cs\nds_write_b128 v5, v[236:239] offset:64 ;@cs")

WB, SS, KA, SA = 160, 216, 224, 224
def g1_loads(layer, half):
    g = []
    X0 = 32 + 64 * half
    for ks in range(8):
        for n_, (dst, off) in enumerate([(0, 0), (4, 256), (2, 2048), (6, 2304)]):
            grp = []
            if n_ == 0: grp.append(f"    s_mov_b32 s{sB0}, {XP[1+2*layer] + half*0x100000 + ks*4096}")
            grp.append(f"    buffer_load_dwordx2 {v(X0+8*ks+dst,2)}, v{vGX}, {WS}, s{sB0} offen offset:{off} sc1 ;@x{ks}")
            g.append(grp)
    return g
def wread(b, ks, ft, hfs=(0, 1)):
    r = WB + (ks & 1) * 28 + ft * 4
    for hf in hfs:
        ad, off = (253, 0) if ft == 6 else ((252 if ft & 1 else vWA), (ft >> 1) * 64)
        b(f"ds_read_b64_tr_b16 {v(r+2*hf,2)}, v{ad} offset:{(32*ks+16*hf)*224 + off} ;@w{ks}_{ft}")
def wa_regs(b):
    b(f"v_xor_b32 v252, 32, v{vWA}\nv_and_b32 v253, 32, v{vWA}\nv_mul_u32_u24 v253, 6, v253\nv_sub_u32 v253, v{vWA}, v253\nv_add_u32 v253, 384, v253")
def g1_pre(b):
    wa_regs(b)
    for ft in range(7): wread(b, 0, ft)
def g1_loop(b, half, bg, hooks={}, slots=None):
    X0 = 32 + 64 * half
    bg = list(bg)
    if slots is None: slots = (0, 2, 4, 6) if len(bg) <= 32 else (0, 1, 3, 4, 6)
    def swaps(ks):
        x = X0 + 8 * ks
        b(f"@vm x{ks}\nv_swap_b32 v{x+1}, v{x+4}\nv_swap_b32 v{x+3}, v{x+6}")
    swaps(0)
    for ks in range(8):
        x = X0 + 8 * ks
        if opt("fine", 0) == 3 and len(STAMPS) > 25: stamp(b, f"g1{half} k{ks}")
        if ks in hooks: hooks[ks](b)
        if ks == 7:
            for ft in range(7):
                r = WB + 28 + ft * 4
                if ft in (0, 4): b(f"@lg w{ks}_{3 if ft == 0 else 6}")
                b(f"v_mfma_f32_16x16x32_bf16 {ac(SA+4*ft,4)}, {v(r,4)}, {v(x+4,4)}, {ac(SA+4*ft,4)}")
                b(f"ds_read_b128 {v(160+4*ft,4)}, v{vCSA} offset:{ft*64}")
                if ft < 4 and opt("ms", 1): b(f"v_mov_b32 v{220+ft}, 0x3e803e80")
                if ft in slots and bg: b.add(bg.pop(0))
            for ft in range(7):
                r = WB + 28 + ft * 4
                b(f"v_mfma_f32_16x16x32_bf16 {v(KA+4*ft,4)}, {v(r,4)}, {v(x,4)}, {v(KA+4*ft,4)}")
                if ft % 2 == 0 and ft // 2 < NW0: b(f"ds_write_b128 v{vXW}, {ac(SA+4*(ft//2),4)} offset:{(ft//2)*1024}")
            continue
        if opt("bs1", 0):
            for n_ in range(14):
                ft = n_ % 7; r = WB + (ks & 1) * 28 + ft * 4
                if n_ in (0, 3, 5): b(f"@lg w{ks}_{ {0: 2, 3: 4, 5: 6}[n_] }")
                if n_ < 7: b(f"v_mfma_f32_16x16x32_bf16 {ac(SA+4*ft,4)}, {v(r,4)}, {v(x+4,4)}, {'0' if ks == 0 else ac(SA+4*ft,4)}")
                else: b(f"v_mfma_f32_16x16x32_bf16 {v(KA+4*ft,4)}, {v(r,4)}, {v(x,4)}, {'0' if ks == 0 else v(KA+4*ft,4)}")
                wread(b, ks + 1, n_ // 2, (n_ & 1,))
                if n_ % 2 == 0 and n_ // 2 in slots and bg: b.add(bg.pop(0))
                if n_ == 11: swaps(ks + 1)
            continue
        for ft in range(7):
            r = WB + (ks & 1) * 28 + ft * 4
            if ft in (0, 4): b(f"@lg w{ks}_{3 if ft == 0 else 6}")
            b(f"v_mfma_f32_16x16x32_bf16 {ac(SA+4*ft,4)}, {v(r,4)}, {v(x+4,4)}, {'0' if ks == 0 else ac(SA+4*ft,4)}")
            wread(b, ks + 1, ft, (0,))
            if ft in slots and bg: b.add(bg.pop(0))
            b(f"v_mfma_f32_16x16x32_bf16 {v(KA+4*ft,4)}, {v(r,4)}, {v(x,4)}, {'0' if ks == 0 else v(KA+4*ft,4)}")
            wread(b, ks + 1, ft, (1,))
            if ft == 5: swaps(ks + 1)
    assert not bg
NW0 = opt("nw0", 2)
RC, CSR = 188, 160
MS = opt("ms", 1)
def g1_post1m(b, half, bg=[], chk=None, bg2=[]):
    X0 = 32 + 64 * half
    m = Buf(); d = Buf()
    for ks in range(8):
        for j in range(2):
            m(f"v_mfma_f32_16x16x32_bf16 {v(188+4*j,4)}, v[220:223], {v(X0+8*ks+4*j,4)}, {'0' if ks == 0 else v(188+4*j,4)}")
    wr = [[f"    ds_write_b128 v{vXW}, {ac(SA+4*ft,4)} offset:{ft*1024}"] for ft in range(NW0, 7)]
    nb = min(len(bg), opt("msb", 4))
    b.add(interleave(interleave(m.l, wr, start=1, every=3), bg[:nb], start=2))
    for ks in range(8):
        x = X0 + 8 * ks
        for q in range(4):
            o = 4 * (q & 1)
            if ks == 0 and q < 2: d(f"v_dot2_f32_bf16 v{SS+o+1}, v{x+q}, v{x+q}, 0\nv_dot2_f32_bf16 v{SS+o+3}, v{x+4+q}, v{x+4+q}, 0")
            else: d(f"v_dot2c_f32_bf16 v{SS+o+1}, v{x+q}, v{x+q}\nv_dot2c_f32_bf16 v{SS+o+3}, v{x+4+q}, v{x+4+q}")
    b.add(interleave(d.l, bg[nb:]))
    b(f"v_permlane32_swap_b32 v188, v192\nv_add_f32 v{SS+1}, v{SS+1}, v{SS+5}\nv_add_f32 v{SS+3}, v{SS+3}, v{SS+7}\nv_add_f32 v{SS}, v188, v192")
    b(f"v_permlane32_swap_b32 v{SS+1}, v{SS+3}\nv_add_f32 v{SS+1}, v{SS+1}, v{SS+3}")
    b(f"v_permlane16_swap_b32 v{SS}, v{SS+1}\nv_add_f32 v{SS}, v{SS}, v{SS+1}\nds_write_b32 v{vSW}, v{SS}")
    b("s_waitcnt lgkmcnt(0)\ns_barrier")
    b(f"ds_read2_b32 {v(SS,2)}, v{vSR} offset0:0 offset1:16 ;@s\nds_read2_b32 {v(SS+2,2)}, v{vSR} offset0:32 offset1:48 ;@s")
    for ft in range(7): b(f"ds_read_b128 {v(RC+4*ft,4)}, v{vXR} offset:{ft*1024} ;@r{ft}")
    chk(b)
    b.add(flat(bg2))
def g1_post1(b, half, bg=[], chk=None, bg2=[]):
    if MS: return g1_post1m(b, half, bg, chk, bg2)
    X0 = 32 + 64 * half
    d = Buf()
    for ks in range(8):
        x = X0 + 8 * ks
        for q in range(4):
            o = 4 * (q & 1)
            if ks == 0 and q < 2:
                d(f"v_dot2_f32_bf16 v{SS+o}, s{sONE}, v{x+q}, 0\nv_dot2_f32_bf16 v{SS+o+1}, v{x+q}, v{x+q}, 0")
                d(f"v_dot2_f32_bf16 v{SS+o+2}, s{sONE}, v{x+4+q}, 0\nv_dot2_f32_bf16 v{SS+o+3}, v{x+4+q}, v{x+4+q}, 0")
                continue
            d(f"v_dot2c_f32_bf16 v{SS+o}, s{sONE}, v{x+q}\nv_dot2c_f32_bf16 v{SS+o+1}, v{x+q}, v{x+q}")
            d(f"v_dot2c_f32_bf16 v{SS+o+2}, s{sONE}, v{x+4+q}\nv_dot2c_f32_bf16 v{SS+o+3}, v{x+4+q}, v{x+4+q}")
    wr = [[f"    ds_write_b128 v{vXW}, {ac(SA+4*ft,4)} offset:{ft*1024}"] for ft in range(NW0, 7)]
    dl = interleave(d.l, wr, start=8, every=24)
    cut = opt("cut", 140)
    b.add(interleave(dl[:cut], bg, start=4))
    chk(b)
    b.add(interleave(dl[cut:], bg2))
    if opt("fine", 0) == 2: stamp(b, f"p{len(STAMPS)} dots")
    b(f"v_pk_add_f32 {v(SS+2,2)}, {v(SS+2,2)}, {v(SS+6,2)}\nv_pk_add_f32 {v(SS,2)}, {v(SS,2)}, {v(SS+4,2)}")
    b(f"v_permlane32_swap_b32 v{SS}, v{SS+2}\nv_permlane32_swap_b32 v{SS+1}, v{SS+3}\nv_pk_add_f32 {v(SS,2)}, {v(SS,2)}, {v(SS+2,2)}")
    b(f"v_permlane16_swap_b32 v{SS}, v{SS+1}\nv_add_f32 v{SS}, v{SS}, v{SS+1}\nds_write_b32 v{vSW}, v{SS}")
    b("s_waitcnt lgkmcnt(0)\ns_barrier")
    b(f"ds_read2_b32 {v(SS,2)}, v{vSR} offset0:0 offset1:16 ;@s\nds_read2_b32 {v(SS+2,2)}, v{vSR} offset0:32 offset1:48 ;@s")
    for ft in range(7): b(f"ds_read_b128 {v(RC+4*ft,4)}, v{vXR} offset:{ft*1024} ;@r{ft}")
def g1_post2(b, layer, half):
    b("@lg s")
    b(f"v_pk_add_f32 {v(SS,2)}, {v(SS,2)}, {v(SS+2,2)}")
    mn, sd, c2 = SS, SS+1, SS+2
    st = Buf()
    st(f"v_pk_mul_f32 {v(SS,2)}, {v(SS,2)}, s[{sINV}:{sINV+1}]\nv_fma_f32 v{sd}, -v{mn}, v{mn}, v{sd}")
    rnd(st, sd, sd); rnd(st, mn, mn)
    st(f"v_add_f32 v{sd}, s{sEPS}, v{sd}"); rnd(st, sd, sd)
    st(f"v_sqrt_f32 v{sd}, abs(v{sd})"); rnd(st, sd, sd)
    st(f"v_rcp_f32 v{c2}, v{sd}\nv_mul_f32 v{c2}, s{sNL2E}, v{c2}")
    adds = []
    for ft in range(7):
        t = RC + 4*ft
        adds.append([f"    @lg r{ft}"] + [f"    v_pk_add_f32 {v(t+2*k,2)}, {v(t+2*k,2)}, {v(KA+4*ft+2*k,2)}" for k in range(2)])
    b.add(interleave(st.l, adds, start=1, every=1))
    if opt("fine", 0) == 2: stamp(b, f"p{len(STAMPS)} stats")
    silu_part(b, 0, SPL[0])
def silu_part(b, k0, k1):
    mn, c2 = SS, SS + 2
    K = range(k0, k1); R = range(2*k0, 2*k1)
    for k in K: b(f"v_pk_fma_f32 {v(RC+2*k,2)}, {v(CSR+2*k,2)}, {v(mn,2)}, {v(RC+2*k,2)} op_sel_hi:[1,0,1] neg_lo:[0,1,0] neg_hi:[0,1,0]")
    for k in K: b(f"v_pk_mul_f32 {v(CSR+2*k,2)}, {v(RC+2*k,2)}, {v(c2,2)} op_sel_hi:[1,0]")
    for r in R: b(f"v_exp_f32 v{CSR+r}, v{CSR+r}")
    for k in K: b(f"v_pk_fma_f32 {v(CSR+2*k,2)}, {v(CSR+2*k,2)}, {v(mn,2)}, {v(mn,2)} op_sel:[0,1,1] op_sel_hi:[1,1,1]")
    for r in R: b(f"v_rcp_f32 v{CSR+r}, v{CSR+r}")
    for k in K: b(f"v_pk_mul_f32 {v(CSR+2*k,2)}, {v(CSR+2*k,2)}, {v(RC+2*k,2)}")
    for k in K:
        ft = k >> 1
        b(f"v_cvt_pk_bf16_f32 v{KA + 8*(ft >> 1) + 2*(ft & 1) + (k & 1)}, v{CSR+2*k}, v{CSR+2*k+1}")
    for pr in range(3):
        if k0 <= 4*pr < k1:
            p = KA + 8*pr
            b(f"v_permlane16_swap_b32 v{p}, v{p+2}\nv_permlane16_swap_b32 v{p+1}, v{p+3}")
SPL = {0: [14], 1: [8, 14], 2: [8, 12, 14], 3: [4, 8, 12, 14], 4: [4, 8, 14], 5: [12, 14]}[opt("sp", 2)]
def g1_store(b, layer, half, pre=None):
    hb = HB[layer] + half * 32 * HT
    b(f"s_mov_b32 s{sO}, {hb}\ns_mov_b32 s5, {hb + 4096}")
    done = 0
    for n_, k1 in enumerate(SPL):
        if n_: silu_part(b, SPL[n_-1], k1)
        if k1 == 14 and pre: pre(b)
        while done < 3 and 4*done + 4 <= k1:
            b(f"buffer_store_dwordx4 {v(KA+8*done,4)}, v{vH4}, {WS}, s{sO if done < 2 else 5} offen offset:{(done&1)*2048} sc1 ;@hst")
            done += 1
    b(f"buffer_store_dwordx2 {v(KA+24,2)}, v{vH2}, {WS}, s5 offen offset:2048 sc1 ;@hst")

H0, C2, RS = 32, 192, 184
def g2_loads(layer, half):
    g = []
    for i in range(28):
        grp = []
        if i % 4 == 0: grp.append(f"    s_mov_b32 s{sB0}, {HB[layer] + half*32*HT + (i//2)*2048}")
        grp.append(f"    buffer_load_dwordx4 {v(H0+4*i,4)}, v{vHL}, {WS}, s{sB0} offen offset:{((i%4)//2)*2048 + (i&1)*256} sc1 ;@h{half}_{i//2}")
        g.append(grp)
    return g
def w2_loads():
    g = []
    for i in range(56):
        grp = []
        if i % 4 == 0: grp.append(f"    s_add_u32 s{sB1}, s{sW2B}, {(i//4)*4096}")
        grp.append(f"    buffer_load_dwordx4 {ac(4*i,4)}, v6, {WS}, s{sB1} offen offset:{(i%4)*1024} sc1 ;@a{i//4}")
        g.append(grp)
    return g
def g2_res(layer, half):
    RS = 144 if half == 0 else 184
    return [[f"    s_mov_b32 s{sO}, {XP[1+2*layer] + half*0x100000}"] +
            [f"    buffer_load_dwordx2 {v(RS+2*c,2)}, v{vX2}, {WS}, s{sO} offen offset:{c*256} sc1 ;@res" for c in range(2)]]
def g2_loop(b, half, bg, hooks={}, tg=None, nm=None, late=[]):
    bg = list(bg); late = list(late)
    if tg: b.add(flat(tg[28:]))
    LAG = opt("lag", 4)
    DEF = (0, 1) if opt("lg2", 1) else (0,)
    def mf(ks, sg, nt):
        d = C2 + 8*sg + 4*nt
        b(f"v_mfma_f32_16x16x32_bf16 {v(d,4)}, {ac((ks*4+sg)*4,4)}, {v(H0+4*(2*ks+nt),4)}, {'0' if ks == 0 else v(d,4)}")
    tq = []
    for ks in range(14):
        for hh in range(2):
            if 2*ks + hh in hooks: hooks[2*ks + hh](b)
            if hh == 0: b(f"@vm h{half}_{ks},a{ks}")
            sgs = [(3, 2), (1, 0)][hh]
            n_ = 0
            order = [(sg, nt) for sg in sgs for nt in range(2)]
            if opt("bs2", 0) == 1: order = [(sg, hh) for sg in (3, 2, 1, 0)]
            if opt("bs2", 0) == 2: order = [(sgs[0], 0), (sgs[0], 1), (sgs[1], 1), (sgs[1], 0)]
            for sg, nt in order:
                if ks >= 14 - LAG and sg in DEF: continue
                if True:
                    mf(ks, sg, nt); n_ += 1
                    if n_ == 1 and bg: b.add(bg.pop(0))
                    if n_ == 3 and tq: b.add(tq.pop(0))
            if n_ == 0 and bg: b.add(bg.pop(0))
        if tg and ks < 14 - LAG: tq += [tg[2*ks], tg[2*ks+1]]
    if "end" in hooks: hooks["end"](b)
    wr = [f"ds_write_b128 v{vE1+sg-1}, {v(C2+8*sg+4*q,4)} offset:{q*1024}" for sg in (3, 2) for q in range(2)]
    w1_ = [f"ds_write_b128 v{vE1}, {v(C2+8+4*q,4)} offset:{q*1024}" for q in range(2)]
    if 1 not in DEF: wr += w1_
    seq = [(ks, sg, nt) for sg in sorted(DEF, reverse=True) for ks in range(14 - LAG, 14) for nt in range(2)]
    for n_, (ks, sg, nt) in enumerate(seq):
        mf(ks, sg, nt)
        if 1 in DEF and n_ == 2*LAG + 3: wr += w1_
        if n_ >= 2 and n_ % 2 == 0 and wr: b(wr.pop(0))
        if n_ % 2 == 1 and late: b.add(late.pop(0))
        if n_ % 2 == 1 and tq: b.add(tq.pop(0))
    for w_ in wr: b(w_)
    b.add(flat(late))
    if tg: b.add(flat(tq) + flat(tg[2*(14-LAG):(20 if opt("tl", 1) else 28)]))
    assert not bg
def g2_post1(b, half):
    RS = 144 if half == 0 else 184
    b("@vm res")
    b(f"@{{\ns_mov_b64 exec, s[{sEXR}:{sEXR+1}]\nv_swap_b32 v{RS}, v{RS+1}\nv_swap_b32 v{RS+2}, v{RS+3}\ns_mov_b64 exec, -1\n@}}")
    for c in range(2):
        for nt in range(2): b(f"v_lshlrev_b32 v{224+4*nt+2*c}, 16, v{RS+2*c+nt}\nv_and_b32 v{225+4*nt+2*c}, s{sMSK}, v{RS+2*c+nt}")
    b("s_waitcnt lgkmcnt(0)\ns_barrier")
    for k in range(6): b(f"ds_read_b128 {v(160+4*k,4)}, v{vE0} offset:{k*1024} ;@q{k>>1}")
def g2_post2(b, layer, half):
    for s_ in range(3):
        b(f"@lg q{s_}")
        for k in range(4): b(f"v_pk_add_f32 {v(C2+2*k,2)}, {v(C2+2*k,2)}, {v(160+8*s_+2*k,2)}")
    if opt("ro", 1):
        for r in range(8): rnd(b, C2+r, C2+r)
    for k in range(4): b(f"v_pk_add_f32 {v(C2+2*k,2)}, {v(C2+2*k,2)}, {v(224+2*k,2)}")
    for k in range(4):
        dstk = (2*(k & 1) + (k >> 1)) if layer == 0 else k
        b(f"v_cvt_pk_bf16_f32 v{240+dstk}, v{C2+2*k}, v{C2+2*k+1}")
    if layer == 0:
        b(f"@{{\ns_mov_b32 s{sO}, {XP[2] + half*0x100000}")
        for c in range(2): b(f"buffer_store_dwordx2 {v(240+2*c,2)}, v{vX2}, {WS}, s{sO} offen offset:{c*256} sc1 ;@xst")
        b("@}")
        for nt in range(2): b(f"v_dot2_f32_bf16 v{244+2*nt}, s{sONE}, v{240+nt}, 0\nv_dot2_f32_bf16 v{245+2*nt}, v{240+nt}, v{240+nt}, 0")
        for nt in range(2): b(f"v_dot2_f32_bf16 v{244+2*nt}, s{sONE}, v{242+nt}, v{244+2*nt}\nv_dot2_f32_bf16 v{245+2*nt}, v{242+nt}, v{242+nt}, v{245+2*nt}")
        b("v_permlane32_swap_b32 v244, v246\nv_permlane32_swap_b32 v245, v247\nv_pk_add_f32 v[244:245], v[244:245], v[246:247]")
        b("v_permlane16_swap_b32 v244, v245\nv_add_f32 v244, v244, v245")
        LST = LSCR + 24576
        b(f"v_lshrrev_b32 v246, 2, v6\nv_add_u32 v246, {LST}, v246\ns_lshl_b32 s5, s{sW}, 8\nv_add_u32 v247, s5, v246")
        b("ds_write_b32 v247, v244\ns_waitcnt lgkmcnt(0)\ns_barrier")
        b("ds_read2st64_b32 v[244:245], v246 offset0:0 offset1:1\nds_read2st64_b32 v[246:247], v246 offset0:2 offset1:3")
        b(f"s_mov_b32 s{sO}, {ST2 + half*8192}\ns_waitcnt lgkmcnt(0)\nv_pk_add_f32 v[244:245], v[244:245], v[246:247]\nv_add_f32 v244, v244, v245")
        b(f"@{{\ns_mov_b64 exec, s[{sEXQ}:{sEXQ+1}]\nbuffer_atomic_add_f32 v244, v{vSA}, {WS}, s{sO} offen sc1 ;@xst\ns_mov_b64 exec, -1\n@}}")
    else:
        b("v_permlane16_swap_b32 v240, v242\nv_permlane16_swap_b32 v241, v243")
        b(f"s_mov_b32 s{sO}, {half*0x100000}\nbuffer_store_dwordx4 v[240:243], v{vOUT}, {srd(SOUT)}, s{sO} offen {opt('ofl', 'x').replace('x', '').replace('_', ' ')}")

gcheck(M); conv_x(M, 0, 0)
M(f"v_mov_b32 v{vPL}, v204\nv_mov_b32 v{vSG}, v205")
M("s_waitcnt lgkmcnt(0)\ns_barrier")
stamp(M, "kgen done")
XT, XUP, XPF, HPF, HP2, HUP = opt("xt", 10), opt("xup", 16), opt("xpf", 16), opt("hpf", 14), opt("hp2", 6), opt("hup", 14)
D1, D2, D3, D4, D5 = opt("d1", 6), opt("d2", 6), opt("d3", 5), opt("d4", 8), opt("d5", 6)
M.add(interleave(gen(t_loads, range(4)), take(D1))); u_pad(M)
for layer in range(2):
    L0 = layer == 0
    cA, cB = 4*layer, 4*layer + 1
    xa, xb, ha, hb_ = g1_loads(layer, 0), g1_loads(layer, 1), g2_loads(layer, 0), g2_loads(layer, 1)
    if L0:
        vm_ = take(D2); tg_ = t_groups(5)[16:]
        conv_half(M, layer, 0, bg=[tg_[k] + (vm_[k//2] if (k % 2 == 0 and k//2 < len(vm_)) else []) for k in range(16)])
        conv_x(M, 0, 1)
        s1_ = [l.replace("v5", "v240").replace("v6", "v241") for l in gen(setup_g1)]
        ab = interleave(gen(conv_ab), [gen(sig_all, cA, "cst")], start=opt("abs0", 30), every=1)
        ab = interleave(ab, [s1_[k:k+2] for k in range(0, len(s1_), 2)], start=2)
        M.add(interleave(ab, take(D3), start=1))
    else:
        conv_half(M, layer, 0, pre_barrier="@vm xst", after_ln=lambda b: sig_all(b, 3, "xst", barrier=False), after_mfma=(lambda b: poll_all(b, 3)) if opt("ep", 0) else None,
                  bg=([[]] * 4 + t_groups(5)[20:28] + [[]] * 2 if opt("tl", 1) else []))
        ab = gen(conv_ab)
        ev = sorted([(opt("abp", 2), 0, [] if opt("ep", 0) else gen(poll_all, 3)), (opt("abc", 40), 1, gen(check, "all", 3) + gen(conv_inputs, 1, 1)), (opt("abs", 52), 2, gen(sig_all, cA, "cst"))])
        pos = 0
        for p_, _, g_ in ev:
            M.add(ab[pos:p_]); M.add(g_); pos = p_
        M.add(ab[pos:])
    stamp(M, f"L{layer} conv0 signalled")
    if not L0:
        if opt("lateC", 0):
            conv_half(M, layer, 1, after_mfma=lambda b: poll_all(b, cA))
            g1_pre(M); check(M, "all", cA)
            M.add(flat(xa[:XUP]))
        else:
            conv_half(M, layer, 1, after_ln=lambda b: poll_all(b, cA), after_mfma=lambda b: check(b, "all", cA), tailbg=xa[:XT])
            g1_pre(M)
            M.add(flat(xa[XT:XUP]))
    else:
        assert not wq
        wq += w2_loads()
        sg_ = gen(setup_g2)
        sg_ = sg_[:3] + sg_[-4:] + sg_[3:-4]
        bgs = [sg_[k:k+2] for k in range(0, len(sg_), 2)]
        if W2E:
            wl = take(D4)
            for q, g_ in enumerate(wl): bgs[4 + q * ((len(bgs) - 4) // len(wl))] += g_
        conv_half(M, layer, 1, pre_barrier2="@vm w1", bg=bgs)
        poll_all(M, cA)
        cs_ = gen(colsum); cc = opt("cc", 30)
        M.add(interleave(cs_[:cc], take(D5 if W2E else 0), start=12))
        check(M, "all", cA)
        M.add(interleave(cs_[cc:], xa[:XUP]))
        g1_pre(M)
        M("@lg cs")
    stamp(M, f"L{layer} g1A ready")
    w2 = wq
    def mixw(x_, w_):
        if len(x_) + len(w_) <= 32: return x_ + w_
        x_ = list(x_); w_ = list(w_); o = []
        while x_ or w_:
            for q in range(5):
                src = x_ if (x_ and q < 4) else w_
                if src: o.append(src.pop(0))
                elif x_: o.append(x_.pop(0))
        return o + [[]] * (40 - len(o))
    XP1, HP1 = opt("xp1", 0), opt("hp1", 0)
    g1_loop(M, 0, mixw(xa[XUP:], take(opt("wa", 12))), {(opt("sg00", 0) if L0 else opt("sg0", 2)): lambda b: sig_all(b, cB, "cst")},
            slots=(None if L0 else [(0, 2, 4, 6), (0, 1, 3, 4, 6), (0, 1, 2, 3, 4, 5, 6)][opt("xs", 0)]))
    stamp(M, f"L{layer} g1A loop")
    poll_all(M, cB)
    g1_post1(M, 0, take(opt("wp", 14)), lambda b: check(b, "all", cB), xb[:XP1])
    stamp(M, f"L{layer} g1A post1")
    M.add(interleave(gen(g1_post2, layer, 0), xb[XP1:XPF]))
    g1_store(M, layer, 0, g1_pre)
    stamp(M, f"L{layer} g1A stored")
    if opt("fast", 0) and not L0:
        c1_, c2_ = opt("fc1", 5), opt("fc2", 16)
        n1 = 4 * (8 - c1_)
        g1_loop(M, 1, xb[XPF:] + [[]] * (4*c1_ - (32 - XPF)) + ha[:n1],
                {opt("sg1", 3): lambda b: sig_grp(b, 2*layer, "hst"), c1_ - 1: lambda b: poll_grp(b, 2*layer), c1_: lambda b: check(b, "grp", 2*layer)})
        stamp(M, f"L{layer} g1B loop")
        g1_post1(M, 1, [], lambda b: None, [])
        stamp(M, f"L{layer} g1B post1")
        M.add(interleave(gen(g1_post2, layer, 1), g2_res(layer, 0) + ha[n1:HPF]))
        g1_store(M, layer, 1)
        stamp(M, f"L{layer} g1B stored")
        rest = ha[HPF:]
        n2 = 28 - c2_
        g2_loop(M, 0, rest + [[]] * (c2_ - len(rest)) + hb_[:n2],
                {opt("sg2", 8): lambda b: sig_grp(b, 2*layer+1, "hst"), c2_ - 5: lambda b: poll_grp(b, 2*layer+1), c2_: lambda b: check(b, "grp", 2*layer+1)},
                late=hb_[n2:min(20, n2+8)])
        stamp(M, f"L{layer} g2A loop")
        g2_post1(M, 0); g2_post2(M, layer, 0)
        HP2_ = HUP = min(20, n2 + 8)
    else:
        g1_loop(M, 1, [[]] * opt("xsk", 2) + mixw(xb[XPF:], take(XPF - opt("xsk", 2))), {opt("sg1", 3): lambda b: sig_grp(b, 2*layer, "hst")})
        stamp(M, f"L{layer} g1B loop")
        poll_grp(M, 2*layer)
        g1_post1(M, 1, take(opt("wp", 14)), lambda b: check(b, "grp", 2*layer), ha[:HP1])
        stamp(M, f"L{layer} g1B post1")
        M.add(interleave(gen(g1_post2, layer, 1), g2_res(layer, 0) + ha[HP1:HPF]))
        g1_store(M, layer, 1)
        stamp(M, f"L{layer} g1B stored")
        rest = ha[HPF:]
        if w2:
            mix = []
            while rest or w2:
                mix.append((rest.pop(0) if rest else []) + (w2.pop(0) if w2 else []))
            rest = mix
        HP0 = opt("hp00", 8) if L0 else opt("hp0", 8)
        g2_loop(M, 0, [[]] * opt("hsk", 2) + rest, {opt("sg2", 8): lambda b: sig_grp(b, 2*layer+1, "hst"), (opt("pg2", 20) if HP0 else 27): lambda b: poll_grp(b, 2*layer+1),
                          "end": (lambda b: check(b, "grp", 2*layer+1) if HP0 else None)}, nm=("L1 g2A" if layer and opt("fine", 0) == 1 else None), late=hb_[:HP0])
        stamp(M, f"L{layer} g2A loop")
        if HP0: M.add(interleave(gen(g2_post1, 0) + gen(g2_post2, layer, 0), hb_[HP0:HP0+HP2], end=opt("hpe", 40)))
        else:
            if opt("lateA", 0) and L0:
                g2_post1(M, 0); g2_post2(M, layer, 0); check(M, "grp", 2*layer+1); M.add(flat(hb_[:HP2]))
            else:
                g2_post1(M, 0); check(M, "grp", 2*layer+1)
                M.add(interleave(gen(g2_post2, layer, 0), hb_[:HP2], end=opt("hpe", 30)))
        HP2_ = HP0 + HP2
    if L0 and opt("cpf", 1): M("v_add_u32 v5, s90, v6\nglobal_load_dwordx4 v[252:255], v5, s[42:43]")
    stamp(M, f"L{layer} g2A stored")
    M.add(flat(hb_[HP2_:HUP]))
    if L0:
        g2_loop(M, 1, hb_[HUP:] + g2_res(layer, 1), {opt("sg3", 4): lambda b: sig_all(b, 2, "xst"), 24: lambda b: poll_all(b, 2)}, tg=t_groups())
        stamp(M, f"L{layer} g2B loop")
        g2_post1(M, 1)
        if opt("lateB", 0):
            poll_all(M, 2); g2_post2(M, layer, 1); check(M, "all", 2); conv_inputs(M, 1, 0)
        else:
            check(M, "all", 2); conv_inputs(M, 1, 0)
            g2_post2(M, layer, 1)
        stamp(M, f"L{layer} g2B stored")
        u_pad(M)
    else:
        M("s_barrier")
        g2_loop(M, 1, hb_[HUP:] + g2_res(layer, 1), nm=("L1 g2B" if opt("fine", 0) == 1 else None))
        stamp(M, f"L{layer} g2B loop")
        g2_post1(M, 1); g2_post2(M, layer, 1)
        stamp(M, f"L{layer} g2B stored")
if STAMP:
    M(f"s_cmp_lg_u32 s{sW}, 0\ns_cbranch_scc1 {DONE}")
    M(f"v_mbcnt_lo_u32_b32 v5, -1, 0\nv_mbcnt_hi_u32_b32 v5, -1, v5\nv_lshlrev_b32 v5, 2, v5\ns_lshl_b32 s5, s2, 8\ns_add_u32 s5, s5, {0x1800000 + 0x400000}")
    M(f"buffer_store_dword v7, v5, {WS}, s5 offen")
M.label(DONE)
M("s_endpgm")

a = Asm()
a.kernel(NAME + "_kernel", vgpr=512, sgpr=102, accum=256)
lines = resolve(strip_marks(M.l)) + tail.l + [".Lkend:"]
lines, added = hazard.fix(lines)
import numpy as np
def rbf(j):
    u = np.array([j], dtype=np.float32).view(np.uint32)[0]
    u = (int(u) + 0x7FFF + ((int(u) >> 16) & 1)) & 0xFFFF0000
    return int(np.array([u], dtype=np.uint32).view(np.float32)[0])
def gaddr(j):
    p = rbf(max(j, 0)); e = 0 if p < 256 else 1 if p < 512 else 2 if p < 1024 else 3
    row = 8*e + ((((p >> 7) << 3) | (p & 7)) >> e)
    return LGT + row*64 + ((p >> 3) & 15)*4
def dmaoff(par_, k, lane):
    q = 16*k + (lane >> 2); pair, qq, sub = q // 7, q % 7, lane & 3
    full, half_ = (32, 0) if par_ else (0, 192)
    if qq < 3: return pair*7168 + full + qq*64 + sub*16
    if qq < 6: return pair*7168 + 3584 + full + (qq-3)*64 + (sub ^ 2)*16
    return pair*7168 + (sub >> 1)*3584 + half_ + (sub & 1)*16
if TB:
    it = [gaddr(8*t - 1 + 4*pl + k) for pl in range(2) for t in range(256) for k in range(4)] + [gaddr(8*t + 7) for t in range(256)]
    dt_ = [(dmaoff(p_, 4*pl + k, l_) if 4*pl + k < 7 else 0) for p_ in range(2) for pl in range(2) for l_ in range(64) for k in range(4)]
    for nm_, tb_ in (("idx_table", it), ("dma_table", dt_)):
        lines += [".p2align 6", f".type {nm_},@object", f"{nm_}:"] + [".long " + ", ".join(str(x) for x in tb_[q:q+16]) for q in range(0, len(tb_), 16)] + [f".size {nm_}, {4*len(tb_)}"]
a.lines += lines
print("nops added", added, "lines", len(a.lines), file=sys.stderr)
hdr = "".join(l for l in open(f"cdna_kernels/{NAME}.s.ref").readlines() if l.startswith(";") and "@launch" not in l and "Override" not in l and "grid=ceil" not in l)
a.launches = [f"; @launch grid=(256,1,1) block=(256,1,1) lds={LDS_BYTES}"]
open(OUT, "w").write(a.text(hdr))
json.dump(STAMPS, open("work/" + OUT.split("/")[-1] + ".stamps.json", "w"))
```
